```python
import torch

def _softmax(x, axis=-1):
    return torch.softmax(x, dim=axis)
def _gelu(x):
    return torch.nn.functional.gelu(x, approximate="tanh")
def _silu(x):
    return torch.nn.functional.silu(x)
def _sigmoid(x):
    return torch.sigmoid(x)
def _layernorm(x, axis=-1, eps=1e-5):
    m = x.mean(dim=axis, keepdim=True)
    v = x.var(dim=axis, keepdim=True, unbiased=False)
    return (x - m) / torch.sqrt(v + eps)
def _scatter_add(tgt, idx, src, axis=0):
    return tgt.clone().index_add_(axis, idx, src)
def _segment_sum(src, seg, n):
    out = torch.zeros((n,) + src.shape[1:], dtype=src.dtype)
    return out.index_add_(0, seg, src)
def _pad(x, pw):
    flat = tuple(v for pair in reversed(pw) for v in pair)
    return torch.nn.functional.pad(x, flat)

kernel_name = 'recurrent_scan__ssm_conv_s5__dense_activation_silu__prompt'

def setup_inputs():

    _w = (lambda a: (lambda t: t.to(torch.bfloat16) if t.is_floating_point() else t)(torch.as_tensor(a)))
    def _A_setup():
        B, S, D = 1, 2048, 576
        P = D
        Lambda_re = -0.5 * (lambda _x: torch.exp(torch.as_tensor(_x)))((lambda *s: torch.randn(*s, dtype=torch.bfloat16) * 0.8)(P))
        Lambda_im = (lambda *s: torch.randn(*s, dtype=torch.bfloat16) * 0.8)(P) * 1.0
        B_re = (lambda *s: torch.randn(*s, dtype=torch.bfloat16) * 0.8)(P, D) * (D ** -0.5)
        B_im = (lambda *s: torch.randn(*s, dtype=torch.bfloat16) * 0.8)(P, D) * (D ** -0.5)
        C_re = (lambda *s: torch.randn(*s, dtype=torch.bfloat16) * 0.8)(D, P) * (P ** -0.5)
        C_im = (lambda *s: torch.randn(*s, dtype=torch.bfloat16) * 0.8)(D, P) * (P ** -0.5)
        log_dt = (lambda *s: torch.randn(*s, dtype=torch.bfloat16) * 0.8)(P) * 0.3 - 2.0
        Dskip = (lambda *s: torch.randn(*s, dtype=torch.bfloat16) * 0.4)(D)
        return {
            "x": _w((lambda *s: torch.randn(*s, dtype=torch.bfloat16) * 0.05)(B, S, D)),
            "Lambda_re": _w(Lambda_re),
            "Lambda_im": _w(Lambda_im),
            "B_re": _w(B_re),
            "B_im": _w(B_im),
            "C_re": _w(C_re),
            "C_im": _w(C_im),
            "log_dt": _w(log_dt),
            "Dskip": _w(Dskip),
        }
    _A_in = _A_setup()

    def _B_setup():
        B, S, D, F = 1, 2048, 576, 4608
        return {
            "x": _w((lambda *s: torch.randn(*s, dtype=torch.bfloat16) * 0.05)(B, S, D)),
            "w1": _w((lambda *s: torch.randn(*s, dtype=torch.bfloat16) * 0.8)(D, F) * (D ** -0.5)),
            "w2": _w((lambda *s: torch.randn(*s, dtype=torch.bfloat16) * 0.1)(F, D) * (F ** -0.5)),
        }
    _B_in = _B_setup()

    return {
        "A_x": _A_in["x"],
        "A_Lambda_re": _A_in["Lambda_re"],
        "A_Lambda_im": _A_in["Lambda_im"],
        "A_B_re": _A_in["B_re"],
        "A_B_im": _A_in["B_im"],
        "A_C_re": _A_in["C_re"],
        "A_C_im": _A_in["C_im"],
        "A_log_dt": _A_in["log_dt"],
        "A_Dskip": _A_in["Dskip"],
        "B_x": _B_in["x"],
        "B_w1": _B_in["w1"],
        "B_w2": _B_in["w2"],
    }

def reference(A_x, A_Lambda_re, A_Lambda_im, A_B_re, A_B_im, A_C_re, A_C_im, A_log_dt, A_Dskip, B_x, B_w1, B_w2):
    def _A_ref(x, Lambda_re, Lambda_im, B_re, B_im, C_re, C_im, log_dt, Dskip):
        Bsz, L, H = x.shape
        Lam = Lambda_re + 1j * Lambda_im
        Bmat = B_re + 1j * B_im
        Cmat = C_re + 1j * C_im
        dt = torch.exp(log_dt)
        Lam_bar = torch.exp(dt * Lam)
        B_bar = ((Lam_bar - 1.0) / Lam)[:, None] * Bmat
        Bu = torch.einsum("bld,pd->blp", x + 0j, B_bar)
        h = torch.zeros_like(Bu[:, 0, :])
        hs = []
        for t in range(L):
            h = Lam_bar[None, :] * h + Bu[:, t, :]
            hs.append(h)
        hseq = torch.stack(hs, 1)
        y = 2.0 * torch.einsum("blp,dp->bld", hseq, Cmat).real + x * Dskip[None, None, :]
        return y

    def _B_ref(x, w1, w2):
        h = torch.einsum("bsd,df->bsf", x, w1)
        h = _silu(h)
        out = torch.einsum("bsf,fd->bsd", h, w2)
        return out

    x = A_x
    xn = _layernorm(x, axis=-1)
    s = _A_ref(xn, A_Lambda_re, A_Lambda_im, A_B_re, A_B_im, A_C_re, A_C_im, A_log_dt, A_Dskip)
    g = _silu(_B_ref(xn, B_w1, B_w2))
    return x + s * g
```

```python
import re

class Ins:
    __slots__ = ("text", "tag")
    def __init__(self, text, tag=None):
        self.text = text; self.tag = tag
    def __repr__(self): return self.text

_reg_re = re.compile(r'\b([vas])(\d+)\b|\b([vas])\[(\d+):(\d+)\]')
def regs_of(operand):
    out = []
    for m in _reg_re.finditer(operand):
        if m.group(1):
            out.append((m.group(1), int(m.group(2))))
        else:
            for i in range(int(m.group(4)), int(m.group(5)) + 1):
                out.append((m.group(3), i))
    if re.search(r'\bvcc\b', operand): out += [('s', 'vcc')]
    if re.search(r'\bexec\b', operand): out += [('s', 'exec')]
    if re.search(r'\bm0\b', operand): out += [('s', 'm0')]
    return out

def split_ops(text):
    t = text.split(';')[0].strip()
    parts = t.split(None, 1)
    op = parts[0]
    ops = []
    if len(parts) > 1:
        depth = 0; cur = ''
        for ch in parts[1]:
            if ch == '[': depth += 1
            if ch == ']': depth -= 1
            if ch == ',' and depth == 0:
                ops.append(cur.strip()); cur = ''
            else: cur += ch
        ops.append(cur.strip())
    return op, ops

TRANS = ('v_exp_f32', 'v_log_f32', 'v_rcp_f32', 'v_rsq_f32', 'v_sqrt_f32', 'v_sin_f32', 'v_cos_f32')

def classify(text):
    op, ops = split_ops(text)
    k = {'op': op, 'dst': [], 'src': [], 'kind': 'other'}
    if op.endswith(':') or op.startswith('.'):
        k['kind'] = 'label'; return k
    if op.startswith('v_mfma'):
        k['kind'] = 'mfma'
        k['dst'] = regs_of(ops[0]); k['srcA'] = regs_of(ops[1]); k['srcB'] = regs_of(ops[2]); k['srcC'] = regs_of(ops[3])
        k['src'] = k['srcA'] + k['srcB'] + k['srcC']
        k['passes'] = 8 if '32x32' in op else 4
        return k
    if op.startswith('v_'):
        k['kind'] = 'valu'
        base = op.replace('_e32', '').replace('_e64', '').replace('_dpp', '').replace('_sdwa', '')
        k['trans'] = base in TRANS
        k['dpp'] = ('row_' in text or 'quad_perm' in text or '_dpp' in op)
        if base.startswith('v_cmp'):
            k['dst'] = regs_of(ops[0]); k['src'] = sum((regs_of(o) for o in ops[1:]), [])
            if base.startswith('v_cmpx'): k['dst'] += [('s', 'exec')]
        elif base.startswith('v_permlane') and 'swap' in base:
            k['dst'] = regs_of(ops[0]) + regs_of(ops[1]); k['src'] = list(k['dst']); k['permlane'] = True
        elif base in ('v_add_co_u32', 'v_sub_co_u32', 'v_addc_co_u32', 'v_subb_co_u32'):
            k['dst'] = regs_of(ops[0]) + regs_of(ops[1]); k['src'] = sum((regs_of(o) for o in ops[2:]), [])
        else:
            k['dst'] = regs_of(ops[0]); k['src'] = sum((regs_of(o) for o in ops[1:]), [])
            if base in ('v_fmac_f32', 'v_dot2c_f32_bf16', 'v_writelane_b32'): k['src'] += k['dst']
        k['lane'] = base in ('v_readfirstlane_b32', 'v_readlane_b32')
        return k
    if op.startswith('buffer_') or op.startswith('global_'):
        k['kind'] = 'vmem'
        if op in ('buffer_inv', 'buffer_wbl2'):
            return k
        lds = bool(re.search(r'\blds\b', text.split(';')[0]))
        k['lds'] = lds
        allr = [regs_of(o) for o in ops]
        if 'load' in op and not lds:
            k['dst'] = allr[0]; k['src'] = sum(allr[1:], [])
        else:
            k['src'] = sum(allr, [])
            if lds: k['src'] += [('s', 'm0')]
            if 'store' in op:
                di = 0 if op.startswith('buffer_') else 1
                k['data'] = allr[di]
                k['wide'] = ('x3' in op or 'x4' in op)
            if 'atomic' in op and 'sc0' in text: k['dst'] = allr[0]
        return k
    if op.startswith('ds_'):
        k['kind'] = 'ds'
        allr = [regs_of(o) for o in ops]
        if 'read' in op or 'bpermute' in op or 'permute' in op or 'swizzle' in op:
            k['dst'] = allr[0]; k['src'] = sum(allr[1:], [])
        else:
            k['src'] = sum(allr, [])
        return k
    if op.startswith('s_'):
        k['kind'] = 'salu'
        if op == 's_nop': k['kind'] = 'nop'; k['n'] = int(ops[0], 0) + 1; return k
        if op.startswith('s_load') or op in ('s_memtime', 's_memrealtime'): k['kind'] = 'smem'
        if op.startswith('s_cbranch') or op in ('s_branch', 's_endpgm', 's_setpc_b64'): k['kind'] = 'branch'; return k
        if op in ('s_waitcnt', 's_barrier', 's_sleep', 's_setprio'): return k
        if op.startswith('s_cmp'):
            k['src'] = sum((regs_of(o) for o in ops), [])
        else:
            k['dst'] = regs_of(ops[0]) if ops else []; k['src'] = sum((regs_of(o) for o in ops[1:]), [])
            if 'saveexec' in op: k['dst'] += [('s', 'exec')]
        return k
    return k

def pad_hazards(lines):
    out = []
    def dist_back(pred, maxd):
        d = 0
        for text, c in reversed(out):
            if c['kind'] == 'label': continue
            if pred(c): return d
            d += c.get('n', 1) if c['kind'] == 'nop' else 1
            if d > maxd: return None
        return None
    nins = 0
    for text in lines:
        s = text.split(';')[0].strip()
        if not s:
            out.append((text, {'kind': 'label'})); continue
        c = classify(s)
        need = 0
        def req(pred, ws):
            nonlocal need
            d = dist_back(pred, ws)
            if d is not None and d < ws: need = max(need, ws - d)
        S = set(c['src']); D = set(c['dst'])
        vS = {r for r in S if r[0] in 'va'}; vD = {r for r in D if r[0] in 'va'}
        sS = {r for r in S if r[0] == 's'}
        kind = c['kind']
        if kind == 'mfma':
            req(lambda p: p['kind'] == 'valu' and set(p['dst']) & vS, 2)
            req(lambda p: p['kind'] == 'valu' and ('s', 'exec') in p['dst'], 4)
            AB = set(c['srcA']) | set(c['srcB']); C = set(c['srcC'])
            for ps, wAB, wC in ((8, 12, 10), (4, 8, 6)):
                req(lambda p: p['kind'] == 'mfma' and p['passes'] == ps and set(p['dst']) & AB, wAB)
                req(lambda p: p['kind'] == 'mfma' and p['passes'] == ps and (set(p['dst']) & C) and not (p['dst'] == c['srcC'] and p['passes'] == c['passes']), wC)
                req(lambda p: p['kind'] == 'mfma' and p['passes'] == ps and (set(p['dst']) & vD) and not (p['dst'] == c['srcC']), wC)
        if kind in ('valu', 'vmem', 'ds'):
            for ps, w in ((8, 12), (4, 8)):
                req(lambda p: p['kind'] == 'mfma' and p['passes'] == ps and set(p['dst']) & (vS | vD), w)
        if kind == 'valu':
            for ps, w in ((8, 7), (4, 3)):
                req(lambda p: p['kind'] == 'mfma' and p['passes'] == ps and set(p['srcC']) & vD, w)
            req(lambda p: p['kind'] == 'valu' and p.get('trans') and set(p['dst']) & vS and not c.get('trans_ok'), 1)
            req(lambda p: p['kind'] == 'vmem' and p.get('wide') and set(p['data']) & vD, 2)
            req(lambda p: p['kind'] == 'valu' and set(p['dst']) & sS, 2)
            if c.get('dpp'):
                req(lambda p: p['kind'] in ('valu',) and set(p['dst']) & vS, 2)
                req(lambda p: p['kind'] == 'valu' and ('s', 'exec') in p['dst'], 5)
            if c.get('permlane'):
                req(lambda p: p['kind'] == 'valu' and set(p['dst']) & vS, 2)
            if c.get('lane'):
                req(lambda p: p['kind'] == 'valu' and set(p['dst']) & vS, 1)
                req(lambda p: p['kind'] == 'valu' and ('s', 'exec') in p['dst'], 4)
            if 'sdwa' in c['op'] or 'op_sel' in s: pass
            req(lambda p: p['kind'] == 'valu' and p.get('sdwa_dst') and set(p['dst']) & vS, 1)
        if kind in ('vmem', 'ds'):
            req(lambda p: p['kind'] == 'vmem' and p.get('wide') and set(p['data']) & vD, 1)
        if kind == 'vmem':
            req(lambda p: p['kind'] == 'valu' and set(p['dst']) & sS, 5)
            if c.get('lds'):
                req(lambda p: p['kind'] == 'salu' and ('s', 'm0') in p['dst'], 1)
        if kind in ('salu', 'smem'):
            req(lambda p: p['kind'] == 'valu' and set(p['dst']) & sS, 2)
        while need > 0:
            n = min(need, 16)
            out.append(('  s_nop %d' % (n - 1), {'kind': 'nop', 'n': n, 'dst': [], 'src': []})); need -= n; nins += 1
        out.append((text, c))
    return [t for t, _ in out], nins

class Asm:
    def __init__(self):
        self.lines = []
        self.vm = []
        self.lg = []
    def __call__(self, text, tag=None):
        for l in text.strip('\n').split('\n'):
            s = l.strip()
            if not s: continue
            self.lines.append(s if s.endswith(':') or s.startswith('.') else '  ' + s)
            op = s.split()[0]
            if (op.startswith('buffer_') or op.startswith('global_')):
                self.vm.append(tag)
            elif op.startswith('ds_'):
                self.lg.append(tag)
            elif op == 's_waitcnt':
                m = re.search(r'vmcnt\((\d+)\)', s)
                if m:
                    n = int(m.group(1)); self.vm = self.vm[len(self.vm) - n:] if n < len(self.vm) and n > 0 else ([] if n == 0 else self.vm)
                m = re.search(r'lgkmcnt\((\d+)\)', s)
                if m:
                    n = int(m.group(1)); self.lg = self.lg[len(self.lg) - n:] if n < len(self.lg) and n > 0 else ([] if n == 0 else self.lg)
    def wait_vm(self, tag):
        idx = [i for i, t in enumerate(self.vm) if t == tag]
        if not idx: return
        n = len(self.vm) - 1 - idx[-1]
        self('s_waitcnt vmcnt(%d)' % min(n, 63))
    def wait_lg(self, tag):
        idx = [i for i, t in enumerate(self.lg) if t == tag]
        if not idx: return
        n = len(self.lg) - 1 - idx[-1]
        self('s_waitcnt lgkmcnt(%d)' % min(n, 15))
    def comment(self, s): self.lines.append('  ; ' + s)

def vr(i, n=1, p='v'):
    return '%s%d' % (p, i) if n == 1 else '%s[%d:%d]' % (p, i, i + n - 1)
def ar(i, n=1): return vr(i, n, 'a')
def sr(i, n=1): return vr(i, n, 's')

def kernel_header(name):
    return '.text\n.globl %s\n.p2align 8\n.type %s,@function\n%s:' % (name, name, name)

def kernel_desc(name, vgpr, accum, sgpr=102):
    return '''.section .rodata,"a"
.p2align 6
.amdhsa_kernel %s
  .amdhsa_next_free_vgpr %d
  .amdhsa_next_free_sgpr %d
  .amdhsa_accum_offset %d
  .amdhsa_group_segment_fixed_size 0
  .amdhsa_kernarg_size 120
  .amdhsa_user_sgpr_count 2
  .amdhsa_user_sgpr_kernarg_segment_ptr 1
  .amdhsa_system_sgpr_workgroup_id_x 1
  .amdhsa_float_denorm_mode_32 3
  .amdhsa_float_denorm_mode_16_64 3
.end_amdhsa_kernel''' % (name, vgpr, sgpr, accum)
```

```python
from asmlib import *
from gen import *
import gen as G

SLAB = 73728
E_OFF = 2*SLAB
LOG2E = 1.4426950408889634

V_LANE = 0
V_XO = 1
V_WD = 3
V_BD = 4
V_TR = 5
V_BR = 7
V_HO = 11
V_T0 = 13
V_XV = 16
V_ACC = 48
V_WF = 176
V_ET = 200
V_SC = 208
def xfrag(blk, ks):
    idx = (ks*2 + blk)*4
    return ar(idx, 4) if idx < 256 else vr(V_XV + idx - 256, 4)
def acc(s, blk): return V_ACC + 32*s + 16*blk

S_WS = 8; S_W1 = 12; S_BRE = 16; S_BIM = 20
S_G = 24; S_N = 25; S_W = 26
S_XB = 27
S_T = 28
S_M0W = 29
S_P = 30
S_HB = 33
S_T2 = 34
S_BB = 35
S_MASK = 36
S_LRE = 40; S_LIM = 42; S_LDT = 44
S_CNT = 46
S_TF = 38

class Fill:
    def __init__(self, a):
        self.a = a; self.q = []; self.mf = 0
    def add(self, fn, cost=4, ready=0, group=None):
        self.q.append((fn, cost, ready, group))
    def ins(self, text, ready=0, group=None, tag=None):
        op = text.split()[0]
        cost = 8 if op in TRANS else 4
        self.add(lambda a, t=text, g=tag: a(t, g), cost, ready, group)
    def pull(self, budget):
        while self.q:
            fn, cost, ready, group = self.q[0]
            if ready > self.mf or cost > budget: break
            self.q.pop(0); fn(self.a); budget -= cost
    def drain(self, group=None):
        if group is None: n = len(self.q)
        else:
            idx = [i for i, it in enumerate(self.q) if it[3] == group]
            n = idx[-1] + 1 if idx else 0
        for _ in range(n):
            fn, cost, ready, group_ = self.q.pop(0)
            assert ready <= self.mf, "draining unready filler"
            fn(self.a)

def epi_ffn(F, s, pi, c, ready):
    grp = ('acc', s)
    els = [(blk, j) for blk in range(2) for j in range(16)]
    n = len(els)
    r = lambda e: acc(s, els[e][0]) + els[e][1]
    t = lambda e: V_ET + (e % 8)
    F.add(lambda a: a('s_lshl_b32 s%d, s%d, 5' % (S_T2, S_P+pi)), 4, ready, grp)
    F.add(lambda a: a('s_add_u32 s%d, s%d, s%d' % (S_T2, S_T2, S_HB)), 4, ready, grp)
    for step in range(n + 6):
        e = step
        if e < n: F.ins('v_mul_f32 v%d, 0x%08x, v%d' % (t(e), f32bits(-LOG2E), r(e)), ready, grp)
        e = step - 1
        if 0 <= e < n: F.ins('v_exp_f32 v%d, v%d' % (t(e), t(e)), ready, grp)
        e = step - 2
        if 0 <= e < n: F.ins('v_add_f32 v%d, 1.0, v%d' % (t(e), t(e)), ready, grp)
        e = step - 3
        if 0 <= e < n: F.ins('v_rcp_f32 v%d, v%d' % (t(e), t(e)), ready, grp)
        e = step - 4
        if 0 <= e < n: F.ins('v_mul_f32 v%d, v%d, v%d' % (t(e), t(e), r(e)), ready, grp)
        e = step - 5
        if 0 <= e < n and e % 2 == 1:
            base = r(e - e % 8)
            F.ins('v_cvt_pk_bf16_f32 v%d, v%d, v%d' % (base + (e % 8)//2, t(e-1), t(e)), ready, grp)
            if e % 8 == 7:
                blk = els[e][0]; fr = (e % 16)//8
                F.ins('buffer_store_dwordx4 %s, v%d, s[%d:%d], s%d offen offset:%d sc1' % (vr(base, 4), V_HO+blk, S_WS, S_WS+3, S_T2, c*2048 + fr*1024), ready, grp, 'st')

(R_LR, R_LI, R_CR, R_CI, R_P32R, R_P32I, R_P256R, R_P256I, R_ER, R_EI, R_T1, R_T2, R_T3, R_T4, R_EA, R_SIDX, R_AO, R_TW, R_TRD) = range(V_SC, V_SC+19)
R_TWA = 244
R_BUF = V_SC + 20
assert R_BUF % 4 == 0 and R_ER % 2 == 0

def cmul_add(F, dr, di, ar_, ai, br, bi, cr, ci, ready=0, grp=None):
    F.ins('v_fma_f32 v%d, -v%d, v%d, v%d' % (R_T1, ai, bi, cr), ready, grp)
    F.ins('v_fma_f32 v%d, v%d, v%d, v%d' % (R_T2, ai, br, ci), ready, grp)
    F.ins('v_fma_f32 v%d, v%d, v%d, v%d' % (dr, ar_, br, R_T1), ready, grp)
    F.ins('v_fma_f32 v%d, v%d, v%d, v%d' % (di, ar_, bi, R_T2), ready, grp)

def csq(F, dr, di, sr_, si):
    F.ins('v_mul_f32 v%d, v%d, v%d' % (R_T1, si, si))
    F.ins('v_mul_f32 v%d, v%d, v%d' % (R_T2, sr_, si))
    F.ins('v_fma_f32 v%d, v%d, v%d, -v%d' % (dr, sr_, sr_, R_T1))
    F.ins('v_add_f32 v%d, v%d, v%d' % (di, R_T2, R_T2))

def scan_tables(F):
    F.add(lambda a: a.wait_vm('tab'), 4)
    F.ins('v_lshlrev_b32 v%d, 16, v%d' % (R_T3, R_T3))
    F.ins('v_lshlrev_b32 v%d, 16, v%d' % (R_T4, R_T4))
    F.ins('v_lshlrev_b32 v%d, 16, v%d' % (R_ER, R_ER))
    F.ins('v_mul_f32 v%d, 0x%08x, v%d' % (R_ER, f32bits(LOG2E), R_ER))
    F.ins('v_exp_f32 v%d, v%d' % (R_ER, R_ER))
    F.ins('v_cvt_pk_bf16_f32 v%d, v%d, v%d' % (R_ER, R_ER, R_ER))
    F.ins('v_lshlrev_b32 v%d, 16, v%d' % (R_ER, R_ER))
    F.ins('v_mul_f32 v%d, v%d, v%d' % (R_T1, R_ER, R_T3))
    F.ins('v_mul_f32 v%d, v%d, v%d' % (R_T2, R_ER, R_T4))
    F.ins('v_mul_f32 v%d, 0x%08x, v%d' % (R_T1, f32bits(LOG2E), R_T1))
    F.ins('v_exp_f32 v%d, v%d' % (R_T1, R_T1))
    F.ins('v_mul_f32 v%d, 0.15915494, v%d' % (R_T2, R_T2))
    F.ins('v_rndne_f32 v%d, v%d' % (R_EI, R_T2))
    F.ins('v_sub_f32 v%d, v%d, v%d' % (R_T2, R_T2, R_EI))
    F.ins('v_cos_f32 v%d, v%d' % (R_LR, R_T2))
    F.ins('v_sin_f32 v%d, v%d' % (R_LI, R_T2))
    F.ins('v_mul_f32 v%d, v%d, v%d' % (R_LR, R_LR, R_T1))
    F.ins('v_mul_f32 v%d, v%d, v%d' % (R_LI, R_LI, R_T1))
    F.ins('v_add_f32 v%d, -1.0, v%d' % (R_ER, R_LR))
    F.ins('v_mul_f32 v%d, v%d, v%d' % (R_T1, R_T3, R_T3))
    F.ins('v_fmac_f32 v%d, v%d, v%d' % (R_T1, R_T4, R_T4))
    F.ins('v_rcp_f32 v%d, v%d' % (R_T1, R_T1))
    F.ins('v_mul_f32 v%d, v%d, v%d' % (R_CR, R_ER, R_T3))
    F.ins('v_fmac_f32 v%d, v%d, v%d' % (R_CR, R_LI, R_T4))
    F.ins('v_mul_f32 v%d, v%d, v%d' % (R_CI, R_LI, R_T3))
    F.ins('v_fma_f32 v%d, -v%d, v%d, v%d' % (R_CI, R_ER, R_T4, R_CI))
    F.ins('v_mul_f32 v%d, v%d, v%d' % (R_CR, R_CR, R_T1))
    F.ins('v_mul_f32 v%d, v%d, v%d' % (R_CI, R_CI, R_T1))
    csq(F, R_P32R, R_P32I, R_LR, R_LI)
    for _ in range(4): csq(F, R_P32R, R_P32I, R_P32R, R_P32I)
    csq(F, R_P256R, R_P256I, R_P32R, R_P32I)
    for _ in range(2): csq(F, R_P256R, R_P256I, R_P256R, R_P256I)

def ureg(part, tt):
    return acc(part, tt >> 4) + (tt & 15)

def scan_early(F, ready):
    for tt in range(32):
        ur, ui = ureg(0, tt), ureg(1, tt)
        F.ins('v_mul_f32 v%d, v%d, v%d' % (R_T3, R_CI, ur), ready)
        F.ins('v_mul_f32 v%d, v%d, v%d' % (ur, R_CR, ur), ready)
        F.ins('v_fma_f32 v%d, -v%d, v%d, v%d' % (ur, R_CI, ui, ur), ready)
        F.ins('v_fma_f32 v%d, v%d, v%d, v%d' % (ui, R_CR, ui, R_T3), ready)
        if tt == 1:
            cmul_add(F, R_ER, R_EI, R_LR, R_LI, ureg(0, 0), ureg(1, 0), ur, ui, ready)
        elif tt > 1:
            cmul_add(F, R_ER, R_EI, R_LR, R_LI, R_ER, R_EI, ur, ui, ready)
    F.ins('ds_write_b64 v%d, %s' % (R_EA, vr(R_ER, 2)), ready, None, 'ew')
    F.add(lambda a: (a.wait_lg('ew'), a('s_barrier')), 8, ready)
    for n in range(4):
        F.ins('ds_read_b128 %s, v%d offset:%d' % (vr(R_BUF+4*n, 4), R_TW, E_OFF % 65536 + 16*n), ready, None, 'er')
    F.add(lambda a: a.wait_lg('er'), 4, ready)
    cmul_add(F, R_ER, R_EI, R_P32R, R_P32I, R_BUF, R_BUF+1, R_BUF+2, R_BUF+3, ready)
    for s in range(2, 8):
        cmul_add(F, R_ER, R_EI, R_P32R, R_P32I, R_ER, R_EI, R_BUF+2*s, R_BUF+2*s+1, ready)
    F.ins('v_cmp_eq_u32 vcc, -1, v%d' % R_ER, ready)
    F.ins('v_mov_b32 v%d, 0x7fc00000' % R_T1, ready)
    F.ins('v_cndmask_b32 v%d, v%d, v%d, vcc' % (R_ER, R_ER, R_T1), ready)
    F.add(lambda a: a('s_add_u32 s%d, s%d, %d' % (S_TF, S_BB+0, 7*4608)), 4, ready)
    F.ins('buffer_store_dwordx2 %s, v%d, s[%d:%d], s%d offen sc1' % (vr(R_ER, 2), R_AO, S_WS, S_WS+3, S_TF), ready, None, 'st')

def poll_issue(a):
    for j in range(7):
        a('s_add_u32 s%d, s%d, %d' % (S_TF, S_BB, j*4608))
        a('buffer_load_dwordx2 %s, v%d, s[%d:%d], s%d offen sc1' % (vr(R_BUF+2*j, 2), R_AO, S_WS, S_WS+3, S_TF), 'poll')

def poll_check(a):
    a.wait_vm('poll')
    a('s_mov_b32 s%d, 0' % S_CNT)
    a('K1_POLL:')
    a('v_max3_u32 v%d, v%d, v%d, v%d' % (R_T1, R_BUF, R_BUF+2, R_BUF+4))
    a('v_max3_u32 v%d, v%d, v%d, v%d' % (R_T1, R_T1, R_BUF+6, R_BUF+8))
    a('v_max3_u32 v%d, v%d, v%d, v%d' % (R_T1, R_T1, R_BUF+10, R_BUF+12))
    a('v_cmp_eq_u32 vcc, -1, v%d' % R_T1)
    a('s_nop 4')
    a('s_cbranch_vccz K1_POLL_OK')
    a('s_add_u32 s%d, s%d, 1' % (S_CNT, S_CNT))
    a('s_cmp_gt_u32 s%d, 200000' % S_CNT)
    a('s_cbranch_scc1 K1_POLL_OK')
    a('s_sleep 2')
    save = list(a.vm)
    poll_issue(a)
    a('s_waitcnt vmcnt(0)')
    a.vm = save
    a('s_branch K1_POLL')
    a('K1_POLL_OK:')

def scan_late(F, ready):
    F.add(poll_check, 24, ready)
    cmul_add(F, R_ER, R_EI, R_P256R, R_P256I, R_BUF, R_BUF+1, R_BUF+2, R_BUF+3, ready)
    for j in range(2, 7):
        cmul_add(F, R_ER, R_EI, R_P256R, R_P256I, R_ER, R_EI, R_BUF+2*j, R_BUF+2*j+1, ready)
    for n in range(4):
        F.ins('ds_read_b128 %s, v%d offset:%d' % (vr(R_BUF+4*n, 4), R_TW, E_OFF % 65536 + 16*n), ready, None, 'er')
    F.add(lambda a: a.wait_lg('er'), 4, ready)
    for s in range(7):
        F.ins('v_cmp_lt_u32 vcc, %d, v%d' % (s, R_SIDX), ready)
        cmul_add(F, R_T3, R_T4, R_P32R, R_P32I, R_ER, R_EI, R_BUF+2*s, R_BUF+2*s+1, ready)
        F.ins('v_cndmask_b32 v%d, v%d, v%d, vcc' % (R_ER, R_ER, R_T3), ready)
        F.ins('v_cndmask_b32 v%d, v%d, v%d, vcc' % (R_EI, R_EI, R_T4), ready)
    pr, pi_ = R_ER, R_EI
    for tt in range(32):
        ur, ui = ureg(0, tt), ureg(1, tt)
        cmul_add(F, ur, ui, R_LR, R_LI, pr, pi_, ur, ui, ready)
        pr, pi_ = ur, ui
    for part in range(2):
        for blk in range(2):
            b = acc(part, blk)
            neg = '-' if part else ''
            for k in range(8):
                F.ins('v_cvt_pk_bf16_f32 v%d, %sv%d, %sv%d' % (b+k, neg, b+2*k, neg, b+2*k+1), ready)
            for u in range(2):
                F.ins('ds_write_b128 v%d, %s offset:%d' % (R_TWA, vr(b+4*u, 4), (part*2+blk)*2048 + 16*u), ready, None, 'tw')
    F.add(lambda a: a.wait_lg('tw'), 4, ready)
    for part in range(2):
        F.add(lambda a, part=part: a('s_add_u32 s%d, s%d, %d' % (S_TF, S_CNT+1, part*36*1024)), 4, ready)
        for blk in range(2):
            b = acc(part, blk) + 8
            for ph in range(2):
                for u in range(2):
                    F.ins('ds_read_b64_tr_b16 %s, v%d offset:%d' % (vr(b+4*ph+2*u, 2), R_TRD, (part*2+blk)*2048 + ph*1024 + u*256), ready, None, 'tr%d%d' % (part, blk))
        for blk in range(2):
            b = acc(part, blk) + 8
            F.add(lambda a, part=part, blk=blk: a.wait_lg('tr%d%d' % (part, blk)), 4, ready)
            for ph in range(2):
                F.ins('buffer_store_dwordx4 %s, v%d, s[%d:%d], s%d offen offset:%d sc1' % (vr(b+4*ph, 4), V_HO+blk, S_WS, S_WS+3, S_TF, ph*1024), ready, None, 'st')

def dma_w1(a, slab, pi, n, tag):
    a('s_add_u32 m0, s%d, %d' % (S_M0W, slab*SLAB + n*4096))
    a('s_add_u32 s%d, s%d, %d' % (S_T, S_P+pi, n*32*9216))
    a('buffer_load_dwordx4 v%d, s[%d:%d], s%d offen lds' % (V_WD, S_W1, S_W1+3, S_T), tag)

def dma_b(a, kb, part, tag):
    a('s_add_u32 m0, s%d, %d' % (S_M0W, kb*8192 + part*4096))
    a('s_movk_i32 s%d, %d' % (S_T, kb*128))
    s = S_BIM if part else S_BRE
    a('buffer_load_dwordx4 v%d, s[%d:%d], s%d offen lds' % (V_BD, s, s+3, S_T), tag)

def group_loads(a, q, mixed):
    tag = 'g%d' % q
    if mixed:
        dma_b(a, q, 0, tag); dma_b(a, q, 1, tag)
    else:
        dma_w1(a, 0, 0, 2*q, tag); dma_w1(a, 0, 0, 2*q+1, tag)
    a('s_add_u32 s%d, s%d, %d' % (S_T, S_XB, q*4096))
    for kk in range(4):
        for blk in range(2):
            a('buffer_load_dwordx4 %s, v%d, s[%d:%d], s%d offen offset:%d' % (xfrag(blk, 4*q+kk), V_XO+blk, S_WS, S_WS+3, S_T, kk*1024), tag)

def body(a, mixed):
    F = Fill(a)
    BUD = 20
    PRE = 6
    if mixed:
        a('global_load_ushort v%d, v%d, s[%d:%d]' % (R_T3, V_T0, S_LRE, S_LRE+1), 'tab')
        a('global_load_ushort v%d, v%d, s[%d:%d]' % (R_T4, V_T0, S_LIM, S_LIM+1), 'tab')
        a('global_load_ushort v%d, v%d, s[%d:%d]' % (R_ER, V_T0, S_LDT, S_LDT+1), 'tab')
    for q in range(PRE): group_loads(a, q, mixed)
    if mixed: scan_tables(F)
    pend = [lambda q=q: group_loads(a, q, mixed) for q in range(PRE, 9)]
    pend += [lambda n=n: dma_w1(a, 1, 1, n, 'slab1') for n in range(18)]
    steps = [('p1', 0, ks) for ks in range(36)] + [('c', ci, ks) for ci in range(4) for ks in range(36)]
    slot_of = {}
    ring = {'pos': 0}
    trbase = {'cur': [0, 0]}
    def set_tr(c, want):
        if trbase['cur'][c] != want:
            d = want - trbase['cur'][c]
            a('v_add_u32 v%d, 0x%x, v%d' % (V_TR+c, d & 0xffffffff, V_TR+c))
            trbase['cur'][c] = want
    def tr_frag(c, slab, ks, dst, tag):
        bias = slab*SLAB + (36864 if ks >= 18 else 0)
        set_tr(c, bias)
        off = slab*SLAB + ks*2048 - bias
        a('ds_read_b64_tr_b16 %s, v%d offset:%d' % (vr(dst, 2), V_TR+c, off), tag)
        a('ds_read_b64_tr_b16 %s, v%d offset:%d' % (vr(dst+2, 2), V_TR+c, off+512), tag)
    def issue_read(i):
        kind, ci, ks = steps[i]
        tag = 'f%d' % i
        if kind == 'p1':
            if ks % 4 == 0:
                a.wait_vm('g%d' % (ks//4)); a('s_barrier')
            regs = []
            for c in range(2):
                dst = V_WF + 4*(ring['pos'] % 6); ring['pos'] += 1; regs.append(dst)
                if mixed:
                    if ks == 32 and c == 0:
                        for r in range(4): a('v_add_u32 v%d, 0x10000, v%d' % (V_BR+r, V_BR+r))
                    a('ds_read_b128 %s, v%d offset:%d' % (vr(dst, 4), V_BR + (ks & 3), ((ks >> 2)*8192 + c*4096) % 65536), tag)
                else:
                    tr_frag(c, 0, ks, dst, tag)
            slot_of[i] = regs
        else:
            slab = 1 if ci < 2 else 0
            if ks == 0 and ci == 0:
                while pend: pend.pop(0)()
                a.wait_vm('slab1'); a('s_waitcnt lgkmcnt(0)'); a('s_barrier')
                pend.extend([lambda n=n: dma_w1(a, 0, 2, n, 'slab0b') for n in range(18)])
            if ks == 0 and ci == 2:
                assert not pend
                a.wait_vm('slab0b'); a('s_waitcnt lgkmcnt(0)'); a('s_barrier')
            dst = V_WF + 4*(ring['pos'] % 6); ring['pos'] += 1
            tr_frag(ci & 1, slab, ks, dst, tag)
            slot_of[i] = [dst]
    accset = [2, 3, 2, 3] if mixed else [2, 3, 0, 1]
    nread = 0
    used = 0
    def frags(i): return 2 if steps[i][0] == 'p1' else 1
    inflight = 0
    for i, (kind, ci, ks) in enumerate(steps):
        while nread < len(steps) and inflight + frags(nread) <= 6 and nread <= i + 4:
            issue_read(nread); inflight += frags(nread); nread += 1
        if kind == 'c' and ks == 0:
            F.drain(('acc', accset[ci]))
            rdy = F.mf + 3
            if ci == 0:
                if mixed: scan_early(F, rdy + 9)
                else:
                    epi_ffn(F, 0, 0, 0, rdy + 9); epi_ffn(F, 1, 0, 1, rdy)
            else:
                if mixed and ci == 2: F.add(poll_issue, 24, rdy)
                epi_ffn(F, accset[ci-1], 1 + (ci-1)//2, (ci-1) & 1, rdy)
                if mixed and ci == 2: scan_late(F, rdy)
        a.wait_lg('f%d' % i)
        if kind == 'p1':
            for c in range(2):
                for blk in range(2):
                    d = vr(acc(c, blk), 16); w = vr(slot_of[i][c], 4); x = xfrag(blk, ks)
                    A, B = (x, w) if mixed else (w, x)
                    a('v_mfma_f32_32x32x16_bf16 %s, %s, %s, %s' % (d, A, B, d if ks else '0'))
                    F.mf += 1
                    if pend and ((ks % 4 == 1 and c == 0 and blk == 0) or (len(pend) <= 18 and ks >= 12 and blk == 0)): pend.pop(0)()
                    else: F.pull(BUD)
        else:
            for blk in range(2):
                d = vr(acc(accset[ci], blk), 16)
                a('v_mfma_f32_32x32x16_bf16 %s, %s, %s, %s' % (d, vr(slot_of[i][0], 4), xfrag(blk, ks), d if ks else '0'))
                F.mf += 1
                if pend: pend.pop(0)()
                else: F.pull(BUD)
        inflight -= frags(i)
    F.mf += 100
    F.drain()
    epi_ffn(F, accset[3], 2, 1, 0)
    F.drain()
    a('s_endpgm')

def gen_k1():
    a = Asm()
    name = 'k1_gemma_kernel'
    a(kernel_header(name))
    a('s_cmp_ge_u32 s2, 240')
    a('s_cbranch_scc1 K1_END')
    a('s_load_dwordx2 s[48:49], s[0:1], %d' % D_WS)
    a('s_load_dwordx2 s[50:51], s[0:1], %d' % B_W1)
    a('s_load_dwordx4 s[52:55], s[0:1], %d' % A_BRE)
    a('s_load_dwordx4 s[40:43], s[0:1], %d' % A_LRE)
    a('s_load_dwordx2 s[44:45], s[0:1], %d' % A_LDT)
    a('s_and_b32 s3, s2, 7'); a('s_lshr_b32 s4, s2, 3')
    a('s_lshr_b32 s5, s3, 1'); a('s_mul_i32 s5, s5, 30'); a('s_add_u32 s5, s5, s4')
    a('s_lshr_b32 s%d, s5, 2' % S_N)
    a('s_and_b32 s5, s5, 3'); a('s_and_b32 s3, s3, 1'); a('s_lshl_b32 s3, s3, 2'); a('s_add_u32 s%d, s3, s5' % S_G)
    a('v_lshrrev_b32 v%d, 6, v0' % V_T0)
    a('v_readfirstlane_b32 s%d, v%d' % (S_W, V_T0))
    a('v_and_b32 v0, 63, v0')
    a('s_lshl_b32 s%d, s%d, 10' % (S_M0W, S_W))
    a('s_mul_i32 s%d, s%d, %d' % (S_XB, S_G, 8*36864))
    if XF_OFF: a('s_add_u32 s%d, s%d, %d' % (S_XB, S_XB, XF_OFF))
    a('s_mul_i32 s%d, s%d, %d' % (S_HB, S_G, 8*HF_RB))
    a('s_add_u32 s%d, s%d, %d' % (S_HB, S_HB, HF_OFF))
    a('s_mul_i32 s3, s%d, 73728' % S_W)
    a('v_lshl_add_u32 v%d, v0, 4, s3' % V_XO)
    a('v_add_u32 v%d, 36864, v%d' % (V_XO+1, V_XO))
    a('s_mul_i32 s3, s%d, %d' % (S_W, 2*HF_RB))
    a('v_lshl_add_u32 v%d, v0, 4, s3' % V_HO)
    a('v_add_u32 v%d, %d, v%d' % (V_HO+1, HF_RB, V_HO))
    a('v_lshrrev_b32 v13, 3, v0')
    a('v_and_b32 v14, 7, v0')
    a('v_bfe_u32 v15, v0, 4, 1')
    a('v_lshlrev_b32 v15, 2, v15')
    a('v_xor_b32 v14, v14, v15')
    a('s_lshl_b32 s3, s%d, 3' % S_W)
    a('v_add_u32 v13, s3, v13')
    a('v_mul_u32_u24 v%d, 9216, v13' % V_WD)
    a('v_lshl_add_u32 v%d, v14, 4, v%d' % (V_WD, V_WD))
    a('v_lshrrev_b32 v14, 5, v0'); a('v_lshlrev_b32 v14, 10, v14')
    a('v_bfe_u32 v15, v0, 2, 2'); a('v_lshl_add_u32 v14, v15, 7, v14')
    a('v_bfe_u32 v15, v0, 4, 1'); a('v_lshl_add_u32 v14, v15, 5, v14')
    a('v_and_b32 v15, 3, v0'); a('v_lshl_add_u32 v14, v15, 3, v14')
    a('v_bfe_u32 v15, v0, 3, 1'); a('v_lshl_add_u32 v%d, v15, 6, v14' % V_TR)
    a('v_xor_b32 v%d, 64, v%d' % (V_TR+1, V_TR))
    a('s_waitcnt lgkmcnt(0)')
    srd(a, S_WS, 48, WS_USED)
    srd(a, S_W1, 50, 576*9216)
    a('s_cmp_lt_u32 s%d, 18' % S_N)
    a('s_cbranch_scc1 K1_MIXED')
    a('s_mul_i32 s3, s%d, 3' % S_N); a('s_sub_u32 s3, s3, 18')
    a('s_lshl_b32 s%d, s3, 7' % S_P)
    a('s_add_u32 s%d, s%d, 128' % (S_P+1, S_P)); a('s_add_u32 s%d, s%d, 256' % (S_P+2, S_P))
    sv = (list(a.vm), list(a.lg))
    body(a, False)
    a.vm, a.lg = sv
    a('K1_MIXED:')
    srd(a, S_BRE, 52, 576*1152)
    srd(a, S_BIM, 54, 576*1152)
    a('s_lshl_b32 s%d, s%d, 8' % (S_P+1, S_N)); a('s_add_u32 s%d, s%d, 128' % (S_P+2, S_P+1))
    a('v_bfe_u32 v15, v13, 1, 3'); a('v_and_b32 v14, 7, v0'); a('v_xor_b32 v14, v14, v15')
    a('s_lshl_b32 s3, s%d, 5' % S_N)
    a('v_add_u32 v13, s3, v13')
    a('v_mul_u32_u24 v%d, 1152, v13' % V_BD)
    a('v_lshl_add_u32 v%d, v14, 4, v%d' % (V_BD, V_BD))
    a('v_and_b32 v13, 31, v0'); a('v_lshrrev_b32 v14, 5, v0'); a('v_bfe_u32 v15, v0, 1, 3'); a('v_xor_b32 v14, v14, v15')
    a('v_lshlrev_b32 v14, 4, v14'); a('v_lshl_add_u32 v%d, v13, 7, v14' % V_BR)
    for e in range(1, 4): a('v_xor_b32 v%d, %d, v%d' % (V_BR+e, 32*e, V_BR))
    a('v_lshrrev_b32 v14, 5, v0'); a('s_lshl_b32 s4, s%d, 1' % S_W); a('v_add_u32 v%d, s4, v14' % R_SIDX)
    a('v_lshlrev_b32 v%d, 6, v13' % R_TW)
    a('v_add_u32 v%d, 0x%x, v%d' % (R_TW, E_OFF - E_OFF % 65536, R_TW))
    a('v_lshl_add_u32 v%d, v%d, 3, v%d' % (R_EA, R_SIDX, R_TW))
    a('v_add_u32 v%d, 0x%x, v%d' % (R_EA, E_OFF % 65536, R_EA))
    a('v_add_u32 v15, s3, v13')
    a('v_lshlrev_b32 v%d, 3, v15' % R_AO)
    a('s_mul_i32 s%d, s%d, 4608' % (S_BB, S_G)); a('s_add_u32 s%d, s%d, %d' % (S_BB, S_BB, AGG_OFF))
    a('s_lshl_b32 s4, s%d, 11' % S_N); a('s_add_u32 s4, s4, %d' % (288*1024)); a('s_add_u32 s%d, s4, s%d' % (S_CNT+1, S_HB))
    a('s_lshl_b32 s4, s%d, 13' % S_W); a('s_add_u32 s4, s4, %d' % SLAB)
    a('v_lshrrev_b32 v14, 5, v0'); a('v_lshlrev_b32 v14, 9, v14')
    a('v_bfe_u32 v15, v0, 2, 2'); a('v_lshl_add_u32 v14, v15, 6, v14')
    a('v_and_b32 v15, 1, v0'); a('v_lshl_add_u32 v14, v15, 5, v14')
    a('v_bfe_u32 v15, v0, 4, 1'); a('v_lshl_add_u32 v14, v15, 4, v14')
    a('v_bfe_u32 v15, v0, 1, 1'); a('v_lshl_add_u32 v14, v15, 3, v14')
    a('v_add_u32 v%d, s4, v14' % R_TRD)
    a('v_lshrrev_b32 v14, 5, v0'); a('v_lshlrev_b32 v14, 5, v14'); a('v_lshl_add_u32 v14, v13, 6, v14')
    a('v_add_u32 v%d, s4, v14' % R_TWA)
    a('v_lshrrev_b32 v%d, 2, v%d' % (V_T0, R_AO))
    body(a, True)
    a('K1_END:')
    a('s_endpgm')
    return name, a.lines, kernel_desc(name, 512, 256, 64), '(240,1,1)', '(256,1,1)', 2*SLAB + 2048
```

```python
from asmlib import *
from gen import *
from k1 import Fill, LOG2E

V_HO = 1
V_WD = 2
V_RD = 5
V_RW = 7
V_RR = 8
V_PO = 9
V_T = 10
V_H = 16
V_ACC = 88
V_RB = 184
S_WS = 8; S_WT = 12
S_MT = 24; S_NT = 25; S_SP = 26; S_W = 27
S_HB = 28; S_T = 29; S_MW = 30; S_WB = 31; S_PB = 32; S_TF = 33
REG = 36864
RED = 36864

def wfrag(ks, dt): return ar((ks*3 + dt)*4, 4)
def hfrag(ks): return vr(V_H + 4*ks, 4)
def accr(s, dt): return V_ACC + 48*s + 16*dt

def dma_unit(a, u, ssm, tag):
    slot = u % 6
    for n in range(6):
        a('s_add_u32 m0, s%d, %d' % (S_MW, slot*6144 + n*1024))
        if ssm:
            a('s_add_u32 s%d, s%d, %d' % (S_T, S_WB, n*16*1152 + u*64))
            a('buffer_load_dwordx4 v%d, s[%d:%d], s%d offen lds' % (V_WD, S_WT, S_WT+3, S_T), tag)
        else:
            if n % 3 == 0: a('s_add_u32 s%d, s%d, %d' % (S_T, S_WB, (2*u + n//3)*16*1152))
            a('buffer_load_dwordx4 v%d, s[%d:%d], s%d offen lds' % (V_WD + n % 3, S_WT, S_WT+3, S_T), tag)

def read_unit(a, u, ssm, tag):
    slot = u % 6
    for e in range(2):
        ks = 2*u + e
        for dt in range(3):
            base = (ks*3 + dt)*4
            if ssm:
                a('ds_read_b128 %s, v%d offset:%d' % (ar(base, 4), V_RD+e, slot*6144 + dt*2048), tag)
            else:
                off = slot*6144 + e*3072 + dt*64
                a('ds_read_b64_tr_b16 %s, v%d offset:%d' % (ar(base, 2), V_RD, off), tag)
                a('ds_read_b64_tr_b16 %s, v%d offset:%d' % (ar(base+2, 2), V_RD, off+1536), tag)

def hload(a, r, ks):
    if ks % 4 == 0: a('s_add_u32 s%d, s%d, %d' % (S_T, S_HB, r*HF_RB + ks*1024))
    a('buffer_load_dwordx4 %s, v%d, s[%d:%d], s%d offen offset:%d' % (hfrag(ks), V_HO, S_WS, S_WS+3, S_T, (ks % 4)*1024), 'h%d_%d' % (r, ks))

def reduce_fill(F, r, ready):
    s = r & 1; grp = ('acc', s); buf = (r & 1)*RED
    for q in range(4):
        for dt in range(3):
            F.ins('ds_write_b128 v%d, %s offset:%d' % (V_RW + 0, vr(accr(s, dt) + 4*q, 4), q*12288 + dt*1024), ready, grp, 'rw%d' % r)
    F.add(lambda a: (a.wait_lg('rw%d' % r), a('s_barrier')), 8, ready)
    for src in range(4):
        for dt in range(3):
            F.ins('ds_read_b128 %s, v%d offset:%d' % (vr(V_RB + (src*3+dt)*4, 4), V_RR, src*3072 + dt*1024), ready, None, 'rr%d' % r)
    F.add(lambda a: a.wait_lg('rr%d' % r), 4, ready)
    F.ins('v_xor_b32 v%d, 0x%x, v%d' % (V_RW, 0x10000, V_RW), ready)
    F.ins('v_xor_b32 v%d, 0x%x, v%d' % (V_RR, 0x10000, V_RR), ready)
    for k in range(12):
        F.ins('v_add_f32 v%d, v%d, v%d' % (V_RB+k, V_RB+k, V_RB+12+k), ready)
        F.ins('v_add_f32 v%d, v%d, v%d' % (V_RB+24+k, V_RB+24+k, V_RB+36+k), ready)
    for k in range(12):
        F.ins('v_add_f32 v%d, v%d, v%d' % (V_RB+k, V_RB+k, V_RB+24+k), ready)
    F.add(lambda a: a('s_add_u32 s%d, s%d, %d' % (S_TF, S_PB, r*6*12288)), 4, ready)
    for dt in range(3):
        F.ins('buffer_store_dwordx4 %s, v%d, s[%d:%d], s%d offen offset:%d sc1' % (vr(V_RB+4*dt, 4), V_PO, S_WS, S_WS+3, S_TF, dt*1024), ready, None, 'st')

def body(a, ssm):
    F = Fill(a); BUD = 20
    for u in range(6):
        dma_unit(a, u, ssm, 'w%d' % u)
        a('s_add_u32 s%d, s%d, %d' % (S_T, S_HB, 2*u*1024))
        for e in range(2):
            a('buffer_load_dwordx4 %s, v%d, s[%d:%d], s%d offen offset:%d' % (hfrag(2*u+e), V_HO, S_WS, S_WS+3, S_T, e*1024), 'h0_%d' % (2*u+e))
    a('s_add_u32 s%d, s%d, %d' % (S_T, S_HB, 12*1024))
    for ks in range(12, 16):
        a('buffer_load_dwordx4 %s, v%d, s[%d:%d], s%d offen offset:%d' % (hfrag(ks), V_HO, S_WS, S_WS+3, S_T, (ks-12)*1024), 'h0_%d' % ks)
    a('s_add_u32 s%d, s%d, %d' % (S_T, S_HB, 16*1024))
    for ks in range(16, 18):
        a('buffer_load_dwordx4 %s, v%d, s[%d:%d], s%d offen offset:%d' % (hfrag(ks), V_HO, S_WS, S_WS+3, S_T, (ks-16)*1024), 'h0_%d' % ks)
    for r in range(8):
        s = r & 1
        F.drain(('acc', s))
        if r > 0: reduce_fill(F, r-1, F.mf + 4)
        for ks in range(18):
            if r == 0 and ks % 2 == 0:
                u = ks // 2
                a.wait_vm('w%d' % u)
                read_unit(a, u, ssm, 'wr%d' % u)
                a.wait_lg('wr%d' % u)
                if u < 3: dma_unit(a, u+6, ssm, 'w%d' % (u+6))
                if u == 8: a('s_barrier')
            a.wait_vm('h%d_%d' % (r, ks))
            for dt in range(3):
                d = vr(accr(s, dt), 16)
                a('v_mfma_f32_32x32x16_bf16 %s, %s, %s, %s' % (d, hfrag(ks), wfrag(ks, dt), d if ks else '0'))
                F.mf += 1
                if dt < 2: F.pull(BUD)
            if r < 7:
                if r == 0 and ks % 4: a('s_add_u32 s%d, s%d, %d' % (S_T, S_HB, (r+1)*HF_RB + (ks - ks % 4)*1024))
                hload(a, r+1, ks)
            F.pull(BUD - 8)
    F.mf += 100
    F.drain()
    reduce_fill(F, 7, 0)
    F.drain()
    a('s_endpgm')

def gen_k2():
    a = Asm()
    name = 'k2_gemmb_kernel'
    a(kernel_header(name))
    a('s_cmp_ge_u32 s2, 240')
    a('s_cbranch_scc1 K2_END')
    a('s_load_dwordx2 s[48:49], s[0:1], %d' % D_WS)
    a('s_load_dwordx2 s[50:51], s[0:1], %d' % B_W2)
    a('s_load_dwordx4 s[52:55], s[0:1], %d' % A_CRE)
    a('s_and_b32 s3, s2, 7'); a('s_lshr_b32 s4, s2, 3')
    a('s_mul_i32 s5, s4, 43'); a('s_lshr_b32 s5, s5, 8')
    a('s_mul_i32 s6, s5, 6'); a('s_sub_u32 s%d, s4, s6' % S_NT)
    a('s_mul_i32 s3, s3, 5'); a('s_add_u32 s3, s3, s5')
    a('s_lshr_b32 s%d, s3, 3' % S_SP); a('s_and_b32 s%d, s3, 7' % S_MT)
    a('v_lshrrev_b32 v10, 6, v0')
    a('v_readfirstlane_b32 s%d, v10' % S_W)
    a('v_and_b32 v0, 63, v0')
    a('s_mul_i32 s%d, s%d, %d' % (S_MW, S_W, REG))
    a('s_mul_i32 s%d, s%d, %d' % (S_HB, S_MT, 8*HF_RB))
    a('s_mul_i32 s3, s%d, %d' % (S_SP, 72*1024))
    a('s_add_u32 s%d, s%d, s3' % (S_HB, S_HB)); a('s_add_u32 s%d, s%d, %d' % (S_HB, S_HB, HF_OFF))
    a('s_mul_i32 s3, s%d, %d' % (S_W, 18*1024))
    a('v_lshl_add_u32 v%d, v0, 4, s3' % V_HO)
    a('s_lshl_b32 s3, s%d, 6' % S_SP); a('s_lshl_b32 s4, s%d, 3' % S_MT); a('s_add_u32 s3, s3, s4')
    a('s_mul_i32 s3, s3, 6'); a('s_add_u32 s3, s3, s%d' % S_NT); a('s_mul_i32 s3, s3, 12288')
    a('s_add_u32 s%d, s3, %d' % (S_PB, PART_OFF))
    a('s_mul_i32 s3, s%d, 3072' % S_W)
    a('v_lshl_add_u32 v%d, v0, 4, s3' % V_PO)
    a('v_mov_b32 v%d, v%d' % (V_RW, V_PO))
    a('s_mul_i32 s3, s%d, 12288' % S_W)
    a('v_lshl_add_u32 v%d, v0, 4, s3' % V_RR)
    a('s_waitcnt lgkmcnt(0)')
    srd(a, S_WS, 48, WS_USED)
    a('s_cmp_eq_u32 s%d, 4' % S_SP)
    a('s_cbranch_scc1 K2_SSM')
    srd(a, S_WT, 50, 4608*1152)
    a('s_mul_i32 s3, s%d, 1152' % S_SP); a('s_mul_i32 s4, s%d, 288' % S_W); a('s_add_u32 s3, s3, s4')
    a('s_mul_i32 s3, s3, 1152'); a('s_mul_i32 s4, s%d, 192' % S_NT); a('s_add_u32 s%d, s3, s4' % S_WB)
    for n in range(3):
        a('v_add_u32 v10, %d, v0' % (64*n))
        a('v_mul_u32_u24 v11, 0x1556, v10'); a('v_lshrrev_b32 v11, 16, v11')
        a('v_mul_u32_u24 v12, 12, v11'); a('v_sub_u32 v12, v10, v12')
        a('v_mul_u32_u24 v11, 1152, v11'); a('v_lshl_add_u32 v%d, v12, 4, v11' % (V_WD+n))
    a('v_lshrrev_b32 v10, 5, v0'); a('v_lshlrev_b32 v10, 2, v10'); a('v_bfe_u32 v11, v0, 2, 2'); a('v_add_u32 v10, v10, v11')
    a('v_mul_u32_u24 v10, 192, v10')
    a('v_bfe_u32 v11, v0, 4, 1'); a('v_lshl_add_u32 v10, v11, 5, v10')
    a('v_and_b32 v11, 3, v0'); a('v_lshl_add_u32 v10, v11, 3, v10')
    a('v_add_u32 v%d, s%d, v10' % (V_RD, S_MW))
    sv = (list(a.vm), list(a.lg))
    body(a, False)
    a.vm, a.lg = sv
    a('K2_SSM:')
    a('s_cmp_lt_u32 s%d, 2' % S_W)
    a('s_cselect_b32 s50, s52, s54'); a('s_cselect_b32 s51, s53, s55')
    srd(a, S_WT, 50, 576*1152)
    a('s_mul_i32 s3, s%d, %d' % (S_NT, 96*1152)); a('s_and_b32 s4, s%d, 1' % S_W); a('s_mul_i32 s4, s4, 576'); a('s_add_u32 s%d, s3, s4' % S_WB)
    a('v_lshrrev_b32 v10, 2, v0'); a('v_and_b32 v11, 3, v0'); a('v_bfe_u32 v12, v0, 4, 2'); a('v_xor_b32 v11, v11, v12')
    a('v_mul_u32_u24 v10, 1152, v10'); a('v_lshl_add_u32 v%d, v11, 4, v10' % V_WD)
    a('v_and_b32 v10, 31, v0'); a('v_lshrrev_b32 v11, 5, v0'); a('v_bfe_u32 v12, v0, 2, 2'); a('v_xor_b32 v11, v11, v12')
    a('v_lshlrev_b32 v11, 4, v11'); a('v_lshl_add_u32 v10, v10, 6, v11')
    a('v_xor_b32 v11, 32, v10')
    a('v_add_u32 v%d, s%d, v10' % (V_RD, S_MW)); a('v_add_u32 v%d, s%d, v11' % (V_RD+1, S_MW))
    body(a, True)
    a('K2_END:')
    a('s_endpgm')
    return name, a.lines, kernel_desc(name, 512, 256, 64), '(240,1,1)', '(256,1,1)', 4*REG

def gen_k3():
    a = Asm()
    name = 'k3_fin_kernel'
    a(kernel_header(name))
    a('s_cmp_ge_u32 s2, 384')
    a('s_cbranch_scc1 K3_END')
    a('s_load_dwordx2 s[48:49], s[0:1], %d' % D_WS)
    a('s_load_dwordx2 s[50:51], s[0:1], %d' % A_X)
    a('s_load_dwordx2 s[52:53], s[0:1], %d' % D_OUT)
    a('s_mul_i32 s3, s2, 10923'); a('s_lshr_b32 s3, s3, 16')
    a('s_mul_i32 s4, s3, 6'); a('s_sub_u32 s4, s2, s4')
    a('v_lshrrev_b32 v1, 6, v0')
    a('v_and_b32 v2, 63, v0')
    a('v_mul_u32_u24 v3, 3072, v1'); a('v_lshl_add_u32 v3, v2, 4, v3')
    a('s_mul_i32 s5, s2, 12288'); a('s_add_u32 s5, s5, %d' % PART_OFF)
    a('s_lshr_b32 s6, s3, 1'); a('s_lshl_b32 s6, s6, 6'); a('s_and_b32 s7, s3, 1'); a('s_lshl_b32 s7, s7, 4'); a('s_add_u32 s6, s6, s7')
    a('v_lshrrev_b32 v4, 5, v2'); a('v_lshlrev_b32 v4, 5, v4'); a('v_lshl_add_u32 v4, v1, 2, v4'); a('v_add_u32 v4, s6, v4')
    a('v_mul_u32_u24 v4, 576, v4'); a('v_and_b32 v5, 31, v2'); a('s_mul_i32 s7, s4, 96'); a('v_add3_u32 v4, v4, v5, s7')
    a('v_lshlrev_b32 v5, 1, v4'); a('v_lshlrev_b32 v6, 2, v4'); a('v_add_u32 v7, 4608, v6')
    a('s_waitcnt lgkmcnt(0)')
    srd(a, 8, 48, WS_USED); srd(a, 12, 50, 2048*1152); srd(a, 16, 52, 2048*2304)
    for sp in range(5):
        for dt in range(3):
            a('buffer_load_dwordx4 %s, v3, s[8:11], s5 offen offset:%d' % (vr(16 + (sp*3+dt)*4, 4), dt*1024))
        if sp < 4: a('s_add_u32 s5, s5, %d' % (64*6*12288))
    a('s_mov_b32 s6, %d' % XS_OFF)
    for dt in range(3):
        for r in range(4):
            a('buffer_load_ushort v%d, v5, s[12:15], 0 offen offset:%d' % (80 + dt*4 + r, r*1152 + dt*64))
            a('buffer_load_ushort v%d, v5, s[8:11], s6 offen offset:%d' % (92 + dt*4 + r, r*1152 + dt*64))
    a('s_waitcnt vmcnt(0)')
    for k in range(12):
        a('v_add_f32 v%d, v%d, v%d' % (16+k, 16+k, 28+k)); a('v_add_f32 v%d, v%d, v%d' % (40+k, 40+k, 52+k))
        a('v_add_f32 v%d, v%d, v%d' % (16+k, 16+k, 40+k))
        a('v_cvt_pk_bf16_f32 v%d, v%d, v%d' % (16+k, 16+k, 16+k)); a('v_lshlrev_b32 v%d, 16, v%d' % (16+k, 16+k))
        a('v_mul_f32 v%d, 0x%08x, v%d' % (28+k, f32bits(-LOG2E), 16+k))
        a('v_exp_f32 v%d, v%d' % (28+k, 28+k)); a('v_add_f32 v%d, 1.0, v%d' % (28+k, 28+k)); a('v_rcp_f32 v%d, v%d' % (28+k, 28+k))
        a('v_mul_f32 v%d, v%d, v%d' % (16+k, 16+k, 28+k))
        a('v_cvt_pk_bf16_f32 v%d, v%d, v%d' % (16+k, 16+k, 16+k)); a('v_lshlrev_b32 v%d, 16, v%d' % (16+k, 16+k))
        a('v_lshlrev_b32 v%d, 16, v%d' % (80+k, 80+k)); a('v_lshlrev_b32 v%d, 16, v%d' % (92+k, 92+k))
        a('v_fma_f32 v%d, 2.0, v%d, v%d' % (64+k, 64+k, 92+k))
        a('v_mul_f32 v%d, v%d, v%d' % (64+k, 64+k, 16+k))
        a('v_add_f32 v%d, v%d, v%d' % (64+k, 64+k, 80+k))
        dt, r = k // 4, k % 4
        a('buffer_store_dword v%d, v%d, s[16:19], 0 offen offset:%d' % (64+k, 6 + r//2, (r % 2)*2304 + dt*128))
    a('K3_END:')
    a('s_endpgm')
    return name, a.lines, kernel_desc(name, 104, 104, 64), '(384,1,1)', '(256,1,1)', 0
```

```python
import sys
from asmlib import *

PFX = "recurrent_scan__ssm_conv_s5__dense_activation_silu__prompt"
XF_OFF   = 0
XF_SZ    = 64*36*1024
XS_OFF   = XF_OFF + XF_SZ
XS_SZ    = 2048*576*2
AGG_OFF  = XS_OFF + XS_SZ
AGG_SZ   = 256*17*16
HF_OFF   = 8*1024*1024
HF_RB    = 360*1024
HF_SZ    = 64*HF_RB
PART_OFF = 32*1024*1024
PART_SZ  = 5*64*6*12*1024
WS_USED  = PART_OFF + PART_SZ
assert AGG_OFF + AGG_SZ <= HF_OFF and HF_OFF + HF_SZ <= PART_OFF
A_X, A_LRE, A_LIM, A_BRE, A_BIM, A_CRE, A_CIM, A_LDT, A_DSK, B_X, B_W1, B_W2, D_OUT, D_DBG, D_WS = [8*i for i in range(15)]

def srd(a, s, lo, nbytes):
    a('s_mov_b32 s%d, s%d' % (s, lo))
    a('s_and_b32 s%d, s%d, 0xffff' % (s+1, lo+1))
    a('s_mov_b32 s%d, 0x%x' % (s+2, nbytes))
    a('s_mov_b32 s%d, 0x00020000' % (s+3))

def gen_k0():
    a = Asm()
    name = 'k0_ln_kernel'
    a(kernel_header(name))
    a('s_cmp_ge_u32 s2, 256')
    a('s_cbranch_scc1 K0_END')
    a('s_load_dwordx2 s[4:5], s[0:1], %d' % A_X)
    a('s_load_dwordx2 s[6:7], s[0:1], %d' % A_DSK)
    a('s_load_dwordx2 s[8:9], s[0:1], %d' % D_WS)
    a('v_and_b32 v1, 7, v0')
    a('v_lshrrev_b32 v2, 3, v0')
    a('s_lshr_b32 s10, s2, 3')
    a('s_lshl_b32 s10, s10, 6')
    a('s_bfe_u32 s11, s2, 0x10002')
    a('s_lshl_b32 s11, s11, 4')
    a('s_add_u32 s10, s10, s11')
    a('s_and_b32 s11, s2, 3')
    a('s_lshl_b32 s12, s11, 2')
    a('s_add_u32 s10, s10, s12')
    a('v_lshrrev_b32 v3, 2, v1')
    a('v_lshlrev_b32 v3, 5, v3')
    a('v_and_b32 v4, 3, v1')
    a('v_add3_u32 v3, v3, v4, s10')
    a('v_mul_u32_u24 v3, 1152, v3')
    a('v_lshlrev_b32 v4, 4, v2')
    a('v_add_u32 v3, v3, v4')
    a('s_lshr_b32 s13, s2, 2')
    a('s_mul_i32 s13, s13, 36864')
    a('s_lshl_b32 s12, s11, 7')
    a('s_add_u32 s13, s13, s12')
    a('v_lshlrev_b32 v5, 9, v2')
    a('v_lshlrev_b32 v6, 4, v1')
    a('v_add3_u32 v5, v5, v6, s13')
    a('s_waitcnt lgkmcnt(0)')
    srd(a, 16, 4, 2048*1152)
    srd(a, 20, 6, 1152)
    srd(a, 24, 8, WS_USED)
    for n in range(3):
        a('buffer_load_dwordx4 %s, v3, s[16:19], 0 offen offset:%d' % (vr(8+4*n, 4), 384*n), 'x')
    for n in range(3):
        a('buffer_load_dwordx4 %s, v4, s[20:23], 0 offen offset:%d' % (vr(20+4*n, 4), 384*n), 'd')
    a('s_mul_i32 s14, s2, 17')
    a('v_add_u32 v7, s14, v0')
    a('v_cmp_lt_u32 vcc, 2015, v7')
    a('v_cndmask_b32 v60, 0, -1, vcc')
    a('v_mov_b32 v61, v60'); a('v_mov_b32 v62, v60'); a('v_mov_b32 v63, v60')
    a('s_mov_b32 s14, %d' % AGG_OFF)
    a('v_lshlrev_b32 v7, 4, v7')
    a('v_cmp_gt_u32 vcc, 17, v0')
    a('s_and_saveexec_b64 s[28:29], vcc')
    a('s_cbranch_execz K0_NOFILL')
    a('buffer_store_dwordx4 v[60:63], v7, s[24:27], s14 offen sc1')
    a.vm.pop()
    a('K0_NOFILL:')
    a('s_mov_b64 exec, s[28:29]')
    a('v_lshrrev_b32 v6, 4, v0')
    a('v_lshlrev_b32 v6, 2, v6')
    a('v_lshl_add_u32 v6, v1, 6, v6')
    a('v_lshlrev_b32 v7, 6, v1')
    a('s_waitcnt vmcnt(0)')
    for n in range(12):
        a('v_lshlrev_b32 v%d, 16, v%d' % (32+2*n, 8+n))
        a('v_and_b32 v%d, 0xffff0000, v%d' % (33+2*n, 8+n))
    def reduce_rows(acc, ldsoff):
        a('v_add_f32_dpp v%d, v%d, v%d row_ror:8 row_mask:0xf bank_mask:0xf' % (acc, acc, acc))
        a('ds_write_b32 v6, v%d offset:%d' % (acc, ldsoff))
        a('s_waitcnt lgkmcnt(0)')
        a('s_barrier')
        for n in range(3):
            a('ds_read_b128 %s, v7 offset:%d' % (vr(64+4*n, 4), ldsoff+16*n))
        a('s_waitcnt lgkmcnt(0)')
        for n in range(6): a('v_add_f32 v%d, v%d, v%d' % (64+n, 64+n, 70+n))
        for n in range(3): a('v_add_f32 v%d, v%d, v%d' % (64+n, 64+n, 67+n))
        a('v_add_f32 v64, v64, v65')
        a('v_add_f32 v%d, v64, v66' % acc)
    for n in range(4): a('v_add_f32 v%d, v%d, v%d' % (56+n, 32+n, 36+n))
    for m in range(2, 6):
        for n in range(4): a('v_add_f32 v%d, v%d, v%d' % (56+n, 56+n, 32+4*m+n))
    a('v_add_f32 v56, v56, v57'); a('v_add_f32 v58, v58, v59'); a('v_add_f32 v56, v56, v58')
    reduce_rows(56, 0)
    a('v_mul_f32 v56, 0x%08x, v56' % f32bits(1.0/576))
    for n in range(4):
        a('v_sub_f32 v%d, v%d, v56' % (60+n, 32+n))
        a('v_mul_f32 v%d, v%d, v%d' % (76+n, 60+n, 60+n))
    for m in range(1, 6):
        for n in range(4):
            a('v_sub_f32 v%d, v%d, v56' % (60+n, 32+4*m+n))
            a('v_fmac_f32 v%d, v%d, v%d' % (76+n, 60+n, 60+n))
    a('v_add_f32 v76, v76, v77'); a('v_add_f32 v78, v78, v79'); a('v_add_f32 v57, v76, v78')
    reduce_rows(57, 512)
    a('v_mul_f32 v57, 0x%08x, v57' % f32bits(1.0/576))
    a('v_cvt_pk_bf16_f32 v58, v56, v57')
    a('v_lshlrev_b32 v56, 16, v58')
    a('v_and_b32 v57, 0xffff0000, v58')
    a('v_add_f32 v57, 0x%08x, v57' % f32bits(1e-5))
    a('v_cvt_pk_bf16_f32 v57, v57, v57')
    a('v_lshlrev_b32 v57, 16, v57')
    a('v_sqrt_f32 v57, v57')
    a('v_cvt_pk_bf16_f32 v57, v57, v57')
    a('v_lshlrev_b32 v57, 16, v57')
    a('v_rcp_f32 v57, v57')
    for n in range(12):
        lo, hi = 32+2*n, 33+2*n
        a('v_sub_f32 v%d, v%d, v56' % (lo, lo)); a('v_sub_f32 v%d, v%d, v56' % (hi, hi))
        a('v_cvt_pk_bf16_f32 v%d, v%d, v%d' % (8+n, lo, hi))
        a('v_lshlrev_b32 v%d, 16, v%d' % (lo, 8+n)); a('v_and_b32 v%d, 0xffff0000, v%d' % (hi, 8+n))
        a('v_mul_f32 v%d, v%d, v57' % (lo, lo)); a('v_mul_f32 v%d, v%d, v57' % (hi, hi))
        a('v_cvt_pk_bf16_f32 v%d, v%d, v%d' % (8+n, lo, hi))
        if n % 4 == 3:
            q = n // 4
            a('s_mov_b32 s14, %d' % (XF_OFF + 12288*q))
            a('buffer_store_dwordx4 %s, v5, s[24:27], s14 offen sc1' % vr(8+4*q, 4))
    a('s_mov_b32 s14, %d' % XS_OFF)
    for n in range(12):
        lo, hi = 32+2*n, 33+2*n
        a('v_lshlrev_b32 v%d, 16, v%d' % (lo, 8+n)); a('v_and_b32 v%d, 0xffff0000, v%d' % (hi, 8+n))
        a('v_lshlrev_b32 v60, 16, v%d' % (20+n)); a('v_and_b32 v61, 0xffff0000, v%d' % (20+n))
        a('v_mul_f32 v%d, v%d, v60' % (lo, lo)); a('v_mul_f32 v%d, v%d, v61' % (hi, hi))
        a('v_cvt_pk_bf16_f32 v%d, v%d, v%d' % (20+n, lo, hi))
        if n % 4 == 3:
            q = n // 4
            a('buffer_store_dwordx4 %s, v3, s[24:27], s14 offen offset:%d sc1' % (vr(20+4*q, 4), 384*q))
    a('K0_END:')
    a('s_endpgm')
    return name, a.lines, kernel_desc(name, 80, 80, 40), '(256,1,1)', '(192,1,1)', 1024

import struct
def f32bits(x): return struct.unpack('<I', struct.pack('<f', x))[0]

def assemble(kernels, header_lines):
    out = list(header_lines)
    for name, lines, desc, grid, block, lds in kernels:
        out.append('; @launch kernel=%s grid=%s block=%s lds=%d' % (name, grid, block, lds))
    out.append('.amdgcn_target "amdgcn-amd-amdhsa--gfx950"')
    for name, lines, desc, grid, block, lds in kernels:
        padded, n = pad_hazards(lines)
        sys.stderr.write('%s: %d lines, %d nops inserted\n' % (name, len(padded), n))
        out += padded
    for name, lines, desc, grid, block, lds in kernels:
        out.append(desc)
    return '\n'.join(out) + '\n'

if __name__ == '__main__':
    from k1 import gen_k1
    from k2 import gen_k2, gen_k3
    ref = open('cdna_kernels/%s.s.ref' % PFX).read().split('\n')
    hdr = [l for l in ref if l.startswith(';') and '@launch' not in l and 'Override launch' not in l and 'grid=ceil' not in l]
    hdr = hdr[:16]
    ks = [gen_k0(), gen_k1(), gen_k2(), gen_k3()]
    sys.stdout.write(assemble(ks, hdr))
```

```python
import re

class Ins:
    __slots__ = ("text", "tag")
    def __init__(self, text, tag=None):
        self.text = text; self.tag = tag
    def __repr__(self): return self.text

_reg_re = re.compile(r'\b([vas])(\d+)\b|\b([vas])\[(\d+):(\d+)\]')
def regs_of(operand):
    out = []
    for m in _reg_re.finditer(operand):
        if m.group(1):
            out.append((m.group(1), int(m.group(2))))
        else:
            for i in range(int(m.group(4)), int(m.group(5)) + 1):
                out.append((m.group(3), i))
    if re.search(r'\bvcc\b', operand): out += [('s', 'vcc')]
    if re.search(r'\bexec\b', operand): out += [('s', 'exec')]
    if re.search(r'\bm0\b', operand): out += [('s', 'm0')]
    return out

def split_ops(text):
    t = text.split(';')[0].strip()
    parts = t.split(None, 1)
    op = parts[0]
    ops = []
    if len(parts) > 1:
        depth = 0; cur = ''
        for ch in parts[1]:
            if ch == '[': depth += 1
            if ch == ']': depth -= 1
            if ch == ',' and depth == 0:
                ops.append(cur.strip()); cur = ''
            else: cur += ch
        ops.append(cur.strip())
    return op, ops

TRANS = ('v_exp_f32', 'v_log_f32', 'v_rcp_f32', 'v_rsq_f32', 'v_sqrt_f32', 'v_sin_f32', 'v_cos_f32')

def classify(text):
    op, ops = split_ops(text)
    k = {'op': op, 'dst': [], 'src': [], 'kind': 'other'}
    if op.endswith(':') or op.startswith('.'):
        k['kind'] = 'label'; return k
    if op.startswith('v_mfma'):
        k['kind'] = 'mfma'
        k['dst'] = regs_of(ops[0]); k['srcA'] = regs_of(ops[1]); k['srcB'] = regs_of(ops[2]); k['srcC'] = regs_of(ops[3])
        k['src'] = k['srcA'] + k['srcB'] + k['srcC']
        k['passes'] = 8 if '32x32' in op else 4
        return k
    if op.startswith('v_'):
        k['kind'] = 'valu'
        base = op.replace('_e32', '').replace('_e64', '').replace('_dpp', '').replace('_sdwa', '')
        k['trans'] = base in TRANS
        k['dpp'] = ('row_' in text or 'quad_perm' in text or '_dpp' in op)
        if base.startswith('v_cmp'):
            k['dst'] = regs_of(ops[0]); k['src'] = sum((regs_of(o) for o in ops[1:]), [])
            if base.startswith('v_cmpx'): k['dst'] += [('s', 'exec')]
        elif base.startswith('v_permlane') and 'swap' in base:
            k['dst'] = regs_of(ops[0]) + regs_of(ops[1]); k['src'] = list(k['dst']); k['permlane'] = True
        elif base in ('v_add_co_u32', 'v_sub_co_u32', 'v_addc_co_u32', 'v_subb_co_u32'):
            k['dst'] = regs_of(ops[0]) + regs_of(ops[1]); k['src'] = sum((regs_of(o) for o in ops[2:]), [])
        else:
            k['dst'] = regs_of(ops[0]); k['src'] = sum((regs_of(o) for o in ops[1:]), [])
            if base in ('v_fmac_f32', 'v_dot2c_f32_bf16', 'v_writelane_b32'): k['src'] += k['dst']
        k['lane'] = base in ('v_readfirstlane_b32', 'v_readlane_b32')
        return k
    if op.startswith('buffer_') or op.startswith('global_'):
        k['kind'] = 'vmem'
        if op in ('buffer_inv', 'buffer_wbl2'):
            return k
        lds = bool(re.search(r'\blds\b', text.split(';')[0]))
        k['lds'] = lds
        allr = [regs_of(o) for o in ops]
        if 'load' in op and not lds:
            k['dst'] = allr[0]; k['src'] = sum(allr[1:], [])
        else:
            k['src'] = sum(allr, [])
            if lds: k['src'] += [('s', 'm0')]
            if 'store' in op:
                di = 0 if op.startswith('buffer_') else 1
                k['data'] = allr[di]
                k['wide'] = ('x3' in op or 'x4' in op)
            if 'atomic' in op and 'sc0' in text: k['dst'] = allr[0]
        return k
    if op.startswith('ds_'):
        k['kind'] = 'ds'
        allr = [regs_of(o) for o in ops]
        if 'read' in op or 'bpermute' in op or 'permute' in op or 'swizzle' in op:
            k['dst'] = allr[0]; k['src'] = sum(allr[1:], [])
        else:
            k['src'] = sum(allr, [])
        return k
    if op.startswith('s_'):
        k['kind'] = 'salu'
        if op == 's_nop': k['kind'] = 'nop'; k['n'] = int(ops[0], 0) + 1; return k
        if op.startswith('s_load') or op in ('s_memtime', 's_memrealtime'): k['kind'] = 'smem'
        if op.startswith('s_cbranch') or op in ('s_branch', 's_endpgm', 's_setpc_b64'): k['kind'] = 'branch'; return k
        if op in ('s_waitcnt', 's_barrier', 's_sleep', 's_setprio'): return k
        if op.startswith('s_cmp'):
            k['src'] = sum((regs_of(o) for o in ops), [])
        else:
            k['dst'] = regs_of(ops[0]) if ops else []; k['src'] = sum((regs_of(o) for o in ops[1:]), [])
            if 'saveexec' in op: k['dst'] += [('s', 'exec')]
        return k
    return k

def pad_hazards(lines):
    out = []
    def dist_back(pred, maxd):
        d = 0
        for text, c in reversed(out):
            if c['kind'] == 'label': continue
            if pred(c): return d
            d += c.get('n', 1) if c['kind'] == 'nop' else 1
            if d > maxd: return None
        return None
    nins = 0
    for text in lines:
        s = text.split(';')[0].strip()
        if not s:
            out.append((text, {'kind': 'label'})); continue
        c = classify(s)
        need = 0
        def req(pred, ws):
            nonlocal need
            d = dist_back(pred, ws)
            if d is not None and d < ws: need = max(need, ws - d)
        S = set(c['src']); D = set(c['dst'])
        vS = {r for r in S if r[0] in 'va'}; vD = {r for r in D if r[0] in 'va'}
        sS = {r for r in S if r[0] == 's'}
        kind = c['kind']
        if kind == 'mfma':
            req(lambda p: p['kind'] == 'valu' and set(p['dst']) & vS, 2)
            req(lambda p: p['kind'] == 'valu' and ('s', 'exec') in p['dst'], 4)
            AB = set(c['srcA']) | set(c['srcB']); C = set(c['srcC'])
            for ps, wAB, wC in ((8, 12, 10), (4, 8, 6)):
                req(lambda p: p['kind'] == 'mfma' and p['passes'] == ps and set(p['dst']) & AB, wAB)
                req(lambda p: p['kind'] == 'mfma' and p['passes'] == ps and (set(p['dst']) & C) and not (p['dst'] == c['srcC'] and p['passes'] == c['passes']), wC)
                req(lambda p: p['kind'] == 'mfma' and p['passes'] == ps and (set(p['dst']) & vD) and not (p['dst'] == c['srcC']), wC)
        if kind in ('valu', 'vmem', 'ds'):
            for ps, w in ((8, 12), (4, 8)):
                req(lambda p: p['kind'] == 'mfma' and p['passes'] == ps and set(p['dst']) & (vS | vD), w)
        if kind == 'valu':
            for ps, w in ((8, 7), (4, 3)):
                req(lambda p: p['kind'] == 'mfma' and p['passes'] == ps and set(p['srcC']) & vD, w)
            req(lambda p: p['kind'] == 'valu' and p.get('trans') and set(p['dst']) & vS and not c.get('trans_ok'), 1)
            req(lambda p: p['kind'] == 'vmem' and p.get('wide') and set(p['data']) & vD, 2)
            req(lambda p: p['kind'] == 'valu' and set(p['dst']) & sS, 2)
            if c.get('dpp'):
                req(lambda p: p['kind'] in ('valu',) and set(p['dst']) & vS, 2)
                req(lambda p: p['kind'] == 'valu' and ('s', 'exec') in p['dst'], 5)
            if c.get('permlane'):
                req(lambda p: p['kind'] == 'valu' and set(p['dst']) & vS, 2)
            if c.get('lane'):
                req(lambda p: p['kind'] == 'valu' and set(p['dst']) & vS, 1)
                req(lambda p: p['kind'] == 'valu' and ('s', 'exec') in p['dst'], 4)
            if 'sdwa' in c['op'] or 'op_sel' in s: pass
            req(lambda p: p['kind'] == 'valu' and p.get('sdwa_dst') and set(p['dst']) & vS, 1)
        if kind in ('vmem', 'ds'):
            req(lambda p: p['kind'] == 'vmem' and p.get('wide') and set(p['data']) & vD, 1)
        if kind == 'vmem':
            req(lambda p: p['kind'] == 'valu' and set(p['dst']) & sS, 5)
            if c.get('lds'):
                req(lambda p: p['kind'] == 'salu' and ('s', 'm0') in p['dst'], 1)
        if kind in ('salu', 'smem'):
            req(lambda p: p['kind'] == 'valu' and set(p['dst']) & sS, 2)
        while need > 0:
            n = min(need, 16)
            out.append(('  s_nop %d' % (n - 1), {'kind': 'nop', 'n': n, 'dst': [], 'src': []})); need -= n; nins += 1
        out.append((text, c))
    return [t for t, _ in out], nins

class Asm:
    def __init__(self):
        self.lines = []
        self.vm = []
        self.lg = []
    def __call__(self, text, tag=None):
        for l in text.strip('\n').split('\n'):
            s = l.strip()
            if not s: continue
            self.lines.append(s if s.endswith(':') or s.startswith('.') else '  ' + s)
            op = s.split()[0]
            if (op.startswith('buffer_') or op.startswith('global_')):
                self.vm.append(tag)
            elif op.startswith('ds_'):
                self.lg.append(tag)
            elif op == 's_waitcnt':
                m = re.search(r'vmcnt\((\d+)\)', s)
                if m:
                    n = int(m.group(1)); self.vm = self.vm[len(self.vm) - n:] if n < len(self.vm) and n > 0 else ([] if n == 0 else self.vm)
                m = re.search(r'lgkmcnt\((\d+)\)', s)
                if m:
                    n = int(m.group(1)); self.lg = self.lg[len(self.lg) - n:] if n < len(self.lg) and n > 0 else ([] if n == 0 else self.lg)
    def wait_vm(self, tag):
        idx = [i for i, t in enumerate(self.vm) if t == tag]
        if not idx: return
        n = len(self.vm) - 1 - idx[-1]
        self('s_waitcnt vmcnt(%d)' % min(n, 63))
    def wait_lg(self, tag):
        idx = [i for i, t in enumerate(self.lg) if t == tag]
        if not idx: return
        n = len(self.lg) - 1 - idx[-1]
        self('s_waitcnt lgkmcnt(%d)' % min(n, 15))
    def comment(self, s): self.lines.append('  ; ' + s)

def vr(i, n=1, p='v'):
    return '%s%d' % (p, i) if n == 1 else '%s[%d:%d]' % (p, i, i + n - 1)
def ar(i, n=1): return vr(i, n, 'a')
def sr(i, n=1): return vr(i, n, 's')

def kernel_header(name):
    return '.text\n.globl %s\n.p2align 8\n.type %s,@function\n%s:' % (name, name, name)

def kernel_desc(name, vgpr, accum, sgpr=102):
    return '''.section .rodata,"a"
.p2align 6
.amdhsa_kernel %s
  .amdhsa_next_free_vgpr %d
  .amdhsa_next_free_sgpr %d
  .amdhsa_accum_offset %d
  .amdhsa_group_segment_fixed_size 0
  .amdhsa_kernarg_size 120
  .amdhsa_user_sgpr_count 2
  .amdhsa_user_sgpr_kernarg_segment_ptr 1
  .amdhsa_system_sgpr_workgroup_id_x 1
  .amdhsa_float_denorm_mode_32 3
  .amdhsa_float_denorm_mode_16_64 3
.end_amdhsa_kernel''' % (name, vgpr, sgpr, accum)


import os
DIAG = int(os.environ.get('DIAG', '0'))
NKERN = int(os.environ.get('NKERN', '4'))
STAMP_OFF = 60*1024*1024
S_STAMP = 64
class Stamps:
    def __init__(self): self.n = 0
def stamp(a, st):
    if not DIAG: return
    assert st.n < 16
    a(('s_memtime' if DIAG == 2 else 's_memrealtime') + ' s[%d:%d]' % (S_STAMP + 2*st.n, S_STAMP + 2*st.n + 1))
    a.lg_smem = True
    st.n += 1
def stamp_flush(a, st, kidx, s_ws, s_wave=None, vtmp=250):
    if not DIAG: return
    stamp(a, st)
    a('s_waitcnt vmcnt(0) lgkmcnt(0)')
    stamp(a, st)
    a('s_waitcnt lgkmcnt(0)')
    a('s_lshl_b32 s96, s2, 8')
    if s_wave is not None:
        a('s_lshl_b32 s97, s%d, 6' % s_wave); a('s_add_u32 s96, s96, s97')
    a('s_add_u32 s96, s96, %d' % (STAMP_OFF + kidx*512*256))
    a('s_mov_b64 exec, 1')
    a('v_mov_b32 v%d, 0' % vtmp)
    for i in range(st.n):
        a('v_mov_b32 v%d, s%d' % (vtmp+1, S_STAMP + 2*i))
        a('buffer_store_dword v%d, v%d, s[%d:%d], s96 offen offset:%d' % (vtmp+1, vtmp, s_ws, s_ws+3, 4*i))
    a('s_waitcnt vmcnt(0)')
    if DIAG == 3:
        lab = 'DBG_SKIP_%d_%d' % (kidx, len(a.lines))
        a('s_cmp_lg_u32 s96, %d' % (STAMP_OFF + kidx*512*256))
        a('s_cbranch_scc1 %s' % lab)
        a('s_load_dwordx2 s[98:99], s[0:1], 104')
        a('s_waitcnt lgkmcnt(0)')
        a('s_add_u32 s98, s98, %d' % (512*(NKERN-1-kidx)))
        a('s_addc_u32 s99, s99, 0')
        for i, k in enumerate((0, 1, st.n-2, st.n-1)):
            a('v_mov_b32 v%d, s%d' % (vtmp+1, S_STAMP + 2*k))
            a('global_store_dword v%d, v%d, s[98:99] offset:%d' % (vtmp, vtmp+1, 16*kidx + 4*i))
        a('s_waitcnt vmcnt(0)')
        a('%s:' % lab)
```

```python
from asmlib import *
from gen import *
import gen as G

SLAB = 73728
E_OFF = 2*SLAB
LOG2E = 1.4426950408889634

V_LANE = 0
V_XO = 1
V_WD = 3
V_BD = 4
V_TR = 5
V_BR = 7
V_HO = 11
V_T0 = 13
V_XV = 16
V_ACC = 48
V_WF = 176
V_ET = 200
V_SC = 208
def xfrag(blk, ks):
    idx = (ks*2 + blk)*4
    return ar(idx, 4) if idx < 256 else vr(V_XV + idx - 256, 4)
def acc(s, blk): return V_ACC + 32*s + 16*blk

S_WS = 8; S_W1 = 12; S_BRE = 16; S_BIM = 20
S_G = 24; S_N = 25; S_W = 26
S_XB = 27
S_T = 28
S_M0W = 29
S_P = 30
S_HB = 33
S_T2 = 34
S_BB = 35
S_MASK = 36
S_LRE = 40; S_LIM = 42; S_LDT = 44
S_CNT = 46
S_TF = 38

class Fill:
    def __init__(self, a):
        self.a = a; self.q = []; self.mf = 0
    def add(self, fn, cost=4, ready=0, group=None):
        self.q.append((fn, cost, ready, group))
    def ins(self, text, ready=0, group=None, tag=None):
        op = text.split()[0]
        cost = 8 if op in TRANS else 4
        self.add(lambda a, t=text, g=tag: a(t, g), cost, ready, group)
    def pull(self, budget):
        while self.q:
            fn, cost, ready, group = self.q[0]
            if ready > self.mf or cost > budget: break
            self.q.pop(0); fn(self.a); budget -= cost
    def drain(self, group=None):
        if group is None: n = len(self.q)
        else:
            idx = [i for i, it in enumerate(self.q) if it[3] == group]
            n = idx[-1] + 1 if idx else 0
        for _ in range(n):
            fn, cost, ready, group_ = self.q.pop(0)
            assert ready <= self.mf, "draining unready filler"
            fn(self.a)

def epi_ffn(F, s, pi, c, ready):
    grp = ('acc', s)
    els = [(blk, j) for blk in range(2) for j in range(16)]
    n = len(els)
    r = lambda e: acc(s, els[e][0]) + els[e][1]
    t = lambda e: V_ET + (e % 8)
    F.add(lambda a: a('s_lshl_b32 s%d, s%d, 5' % (S_T2, S_P+pi)), 4, ready, grp)
    F.add(lambda a: a('s_add_u32 s%d, s%d, s%d' % (S_T2, S_T2, S_HB)), 4, ready, grp)
    for step in range(n + 6):
        e = step
        if e < n: F.ins('v_mul_f32 v%d, 0x%08x, v%d' % (t(e), f32bits(-LOG2E), r(e)), ready, grp)
        e = step - 1
        if 0 <= e < n: F.ins('v_exp_f32 v%d, v%d' % (t(e), t(e)), ready, grp)
        e = step - 2
        if 0 <= e < n: F.ins('v_add_f32 v%d, 1.0, v%d' % (t(e), t(e)), ready, grp)
        e = step - 3
        if 0 <= e < n: F.ins('v_rcp_f32 v%d, v%d' % (t(e), t(e)), ready, grp)
        e = step - 4
        if 0 <= e < n: F.ins('v_mul_f32 v%d, v%d, v%d' % (t(e), t(e), r(e)), ready, grp)
        e = step - 5
        if 0 <= e < n and e % 2 == 1:
            base = r(e - e % 8)
            F.ins('v_cvt_pk_bf16_f32 v%d, v%d, v%d' % (base + (e % 8)//2, t(e-1), t(e)), ready, grp)
            if e % 8 == 7:
                blk = els[e][0]; fr = (e % 16)//8
                F.ins('buffer_store_dwordx4 %s, v%d, s[%d:%d], s%d offen offset:%d sc1' % (vr(base, 4), V_HO+blk, S_WS, S_WS+3, S_T2, c*2048 + fr*1024), ready, grp, 'st')

(R_LR, R_LI, R_CR, R_CI, R_P32R, R_P32I, R_P256R, R_P256I, R_ER, R_EI, R_T1, R_T2, R_T3, R_T4, R_EA, R_SIDX, R_AO, R_TW, R_TRD) = range(V_SC, V_SC+19)
R_TWA = 244
R_BUF = V_SC + 20
assert R_BUF % 4 == 0 and R_ER % 2 == 0

def cmul_add(F, dr, di, ar_, ai, br, bi, cr, ci, ready=0, grp=None):
    F.ins('v_fma_f32 v%d, -v%d, v%d, v%d' % (R_T1, ai, bi, cr), ready, grp)
    F.ins('v_fma_f32 v%d, v%d, v%d, v%d' % (R_T2, ai, br, ci), ready, grp)
    F.ins('v_fma_f32 v%d, v%d, v%d, v%d' % (dr, ar_, br, R_T1), ready, grp)
    F.ins('v_fma_f32 v%d, v%d, v%d, v%d' % (di, ar_, bi, R_T2), ready, grp)

def csq(F, dr, di, sr_, si):
    F.ins('v_mul_f32 v%d, v%d, v%d' % (R_T1, si, si))
    F.ins('v_mul_f32 v%d, v%d, v%d' % (R_T2, sr_, si))
    F.ins('v_fma_f32 v%d, v%d, v%d, -v%d' % (dr, sr_, sr_, R_T1))
    F.ins('v_add_f32 v%d, v%d, v%d' % (di, R_T2, R_T2))

def scan_tables(F):
    F.add(lambda a: a.wait_vm('tab'), 4)
    F.ins('v_lshlrev_b32 v%d, 16, v%d' % (R_T3, R_T3))
    F.ins('v_lshlrev_b32 v%d, 16, v%d' % (R_T4, R_T4))
    F.ins('v_lshlrev_b32 v%d, 16, v%d' % (R_ER, R_ER))
    F.ins('v_mul_f32 v%d, 0x%08x, v%d' % (R_ER, f32bits(LOG2E), R_ER))
    F.ins('v_exp_f32 v%d, v%d' % (R_ER, R_ER))
    F.ins('v_cvt_pk_bf16_f32 v%d, v%d, v%d' % (R_ER, R_ER, R_ER))
    F.ins('v_lshlrev_b32 v%d, 16, v%d' % (R_ER, R_ER))
    F.ins('v_mul_f32 v%d, v%d, v%d' % (R_T1, R_ER, R_T3))
    F.ins('v_mul_f32 v%d, v%d, v%d' % (R_T2, R_ER, R_T4))
    F.ins('v_mul_f32 v%d, 0x%08x, v%d' % (R_T1, f32bits(LOG2E), R_T1))
    F.ins('v_exp_f32 v%d, v%d' % (R_T1, R_T1))
    F.ins('v_mul_f32 v%d, 0.15915494, v%d' % (R_T2, R_T2))
    F.ins('v_rndne_f32 v%d, v%d' % (R_EI, R_T2))
    F.ins('v_sub_f32 v%d, v%d, v%d' % (R_T2, R_T2, R_EI))
    F.ins('v_cos_f32 v%d, v%d' % (R_LR, R_T2))
    F.ins('v_sin_f32 v%d, v%d' % (R_LI, R_T2))
    F.ins('v_mul_f32 v%d, v%d, v%d' % (R_LR, R_LR, R_T1))
    F.ins('v_mul_f32 v%d, v%d, v%d' % (R_LI, R_LI, R_T1))
    F.ins('v_add_f32 v%d, -1.0, v%d' % (R_ER, R_LR))
    F.ins('v_mul_f32 v%d, v%d, v%d' % (R_T1, R_T3, R_T3))
    F.ins('v_fmac_f32 v%d, v%d, v%d' % (R_T1, R_T4, R_T4))
    F.ins('v_rcp_f32 v%d, v%d' % (R_T1, R_T1))
    F.ins('v_mul_f32 v%d, v%d, v%d' % (R_CR, R_ER, R_T3))
    F.ins('v_fmac_f32 v%d, v%d, v%d' % (R_CR, R_LI, R_T4))
    F.ins('v_mul_f32 v%d, v%d, v%d' % (R_CI, R_LI, R_T3))
    F.ins('v_fma_f32 v%d, -v%d, v%d, v%d' % (R_CI, R_ER, R_T4, R_CI))
    F.ins('v_mul_f32 v%d, v%d, v%d' % (R_CR, R_CR, R_T1))
    F.ins('v_mul_f32 v%d, v%d, v%d' % (R_CI, R_CI, R_T1))
    csq(F, R_P32R, R_P32I, R_LR, R_LI)
    for _ in range(4): csq(F, R_P32R, R_P32I, R_P32R, R_P32I)
    csq(F, R_P256R, R_P256I, R_P32R, R_P32I)
    for _ in range(2): csq(F, R_P256R, R_P256I, R_P256R, R_P256I)

def ureg(part, tt):
    return acc(part, tt >> 4) + (tt & 15)

def scan_early(F, ready):
    for tt in range(32):
        ur, ui = ureg(0, tt), ureg(1, tt)
        F.ins('v_mul_f32 v%d, v%d, v%d' % (R_T3, R_CI, ur), ready)
        F.ins('v_mul_f32 v%d, v%d, v%d' % (ur, R_CR, ur), ready)
        F.ins('v_fma_f32 v%d, -v%d, v%d, v%d' % (ur, R_CI, ui, ur), ready)
        F.ins('v_fma_f32 v%d, v%d, v%d, v%d' % (ui, R_CR, ui, R_T3), ready)
        if tt == 1:
            cmul_add(F, R_ER, R_EI, R_LR, R_LI, ureg(0, 0), ureg(1, 0), ur, ui, ready)
        elif tt > 1:
            cmul_add(F, R_ER, R_EI, R_LR, R_LI, R_ER, R_EI, ur, ui, ready)
    F.ins('ds_write_b64 v%d, %s' % (R_EA, vr(R_ER, 2)), ready, None, 'ew')
    F.add(lambda a: (a.wait_lg('ew'), a('s_barrier')), 8, ready)
    for n in range(4):
        F.ins('ds_read_b128 %s, v%d offset:%d' % (vr(R_BUF+4*n, 4), R_TW, E_OFF % 65536 + 16*n), ready, None, 'er')
    F.add(lambda a: a.wait_lg('er'), 4, ready)
    cmul_add(F, R_ER, R_EI, R_P32R, R_P32I, R_BUF, R_BUF+1, R_BUF+2, R_BUF+3, ready)
    for s in range(2, 8):
        cmul_add(F, R_ER, R_EI, R_P32R, R_P32I, R_ER, R_EI, R_BUF+2*s, R_BUF+2*s+1, ready)
    F.ins('v_cmp_eq_u32 vcc, -1, v%d' % R_ER, ready)
    F.ins('v_mov_b32 v%d, 0x7fc00000' % R_T1, ready)
    F.ins('v_cndmask_b32 v%d, v%d, v%d, vcc' % (R_ER, R_ER, R_T1), ready)
    F.add(lambda a: a('s_add_u32 s%d, s%d, %d' % (S_TF, S_BB+0, 7*4608)), 4, ready)
    F.ins('buffer_store_dwordx2 %s, v%d, s[%d:%d], s%d offen sc1' % (vr(R_ER, 2), R_AO, S_WS, S_WS+3, S_TF), ready, None, 'st')

def poll_issue(a):
    for j in range(7):
        a('s_add_u32 s%d, s%d, %d' % (S_TF, S_BB, j*4608))
        a('buffer_load_dwordx2 %s, v%d, s[%d:%d], s%d offen sc1' % (vr(R_BUF+2*j, 2), R_AO, S_WS, S_WS+3, S_TF), 'poll')

def poll_check(a):
    a.wait_vm('poll')
    a('s_mov_b32 s%d, 0' % S_CNT)
    a('K1_POLL:')
    a('v_max3_u32 v%d, v%d, v%d, v%d' % (R_T1, R_BUF, R_BUF+2, R_BUF+4))
    a('v_max3_u32 v%d, v%d, v%d, v%d' % (R_T1, R_T1, R_BUF+6, R_BUF+8))
    a('v_max3_u32 v%d, v%d, v%d, v%d' % (R_T1, R_T1, R_BUF+10, R_BUF+12))
    a('v_cmp_eq_u32 vcc, -1, v%d' % R_T1)
    a('s_nop 4')
    a('s_cbranch_vccz K1_POLL_OK')
    a('s_add_u32 s%d, s%d, 1' % (S_CNT, S_CNT))
    a('s_cmp_gt_u32 s%d, 200000' % S_CNT)
    a('s_cbranch_scc1 K1_POLL_OK')
    a('s_sleep 2')
    save = list(a.vm)
    poll_issue(a)
    a('s_waitcnt vmcnt(0)')
    a.vm = save
    a('s_branch K1_POLL')
    a('K1_POLL_OK:')

def scan_late(F, ready):
    F.add(poll_check, 24, ready)
    cmul_add(F, R_ER, R_EI, R_P256R, R_P256I, R_BUF, R_BUF+1, R_BUF+2, R_BUF+3, ready)
    for j in range(2, 7):
        cmul_add(F, R_ER, R_EI, R_P256R, R_P256I, R_ER, R_EI, R_BUF+2*j, R_BUF+2*j+1, ready)
    for n in range(4):
        F.ins('ds_read_b128 %s, v%d offset:%d' % (vr(R_BUF+4*n, 4), R_TW, E_OFF % 65536 + 16*n), ready, None, 'er')
    F.add(lambda a: a.wait_lg('er'), 4, ready)
    for s in range(7):
        F.ins('v_cmp_lt_u32 vcc, %d, v%d' % (s, R_SIDX), ready)
        cmul_add(F, R_T3, R_T4, R_P32R, R_P32I, R_ER, R_EI, R_BUF+2*s, R_BUF+2*s+1, ready)
        F.ins('v_cndmask_b32 v%d, v%d, v%d, vcc' % (R_ER, R_ER, R_T3), ready)
        F.ins('v_cndmask_b32 v%d, v%d, v%d, vcc' % (R_EI, R_EI, R_T4), ready)
    pr, pi_ = R_ER, R_EI
    for tt in range(32):
        ur, ui = ureg(0, tt), ureg(1, tt)
        cmul_add(F, ur, ui, R_LR, R_LI, pr, pi_, ur, ui, ready)
        pr, pi_ = ur, ui
    for part in range(2):
        for blk in range(2):
            b = acc(part, blk)
            neg = '-' if part else ''
            for k in range(8):
                F.ins('v_cvt_pk_bf16_f32 v%d, %sv%d, %sv%d' % (b+k, neg, b+2*k, neg, b+2*k+1), ready)
            for u in range(2):
                F.ins('ds_write_b128 v%d, %s offset:%d' % (R_TWA, vr(b+4*u, 4), (part*2+blk)*2048 + 16*u), ready, None, 'tw')
    F.add(lambda a: a.wait_lg('tw'), 4, ready)
    for part in range(2):
        F.add(lambda a, part=part: a('s_add_u32 s%d, s%d, %d' % (S_TF, S_CNT+1, part*36*1024)), 4, ready)
        for blk in range(2):
            b = acc(part, blk) + 8
            for ph in range(2):
                for u in range(2):
                    F.ins('ds_read_b64_tr_b16 %s, v%d offset:%d' % (vr(b+4*ph+2*u, 2), R_TRD, (part*2+blk)*2048 + ph*1024 + u*256), ready, None, 'tr%d%d' % (part, blk))
        for blk in range(2):
            b = acc(part, blk) + 8
            F.add(lambda a, part=part, blk=blk: a.wait_lg('tr%d%d' % (part, blk)), 4, ready)
            for ph in range(2):
                F.ins('buffer_store_dwordx4 %s, v%d, s[%d:%d], s%d offen offset:%d sc1' % (vr(b+4*ph, 4), V_HO+blk, S_WS, S_WS+3, S_TF, ph*1024), ready, None, 'st')

def dma_w1(a, slab, pi, n, tag):
    a('s_add_u32 m0, s%d, %d' % (S_M0W, slab*SLAB + n*4096))
    a('s_add_u32 s%d, s%d, %d' % (S_T, S_P+pi, n*32*9216))
    a('buffer_load_dwordx4 v%d, s[%d:%d], s%d offen lds' % (V_WD, S_W1, S_W1+3, S_T), tag)

def dma_b(a, kb, part, tag):
    a('s_add_u32 m0, s%d, %d' % (S_M0W, kb*8192 + part*4096))
    a('s_movk_i32 s%d, %d' % (S_T, kb*128))
    s = S_BIM if part else S_BRE
    a('buffer_load_dwordx4 v%d, s[%d:%d], s%d offen lds' % (V_BD, s, s+3, S_T), tag)

def group_loads(a, q, mixed):
    tag = 'g%d' % q
    if mixed:
        dma_b(a, q, 0, tag); dma_b(a, q, 1, tag)
    else:
        dma_w1(a, 0, 0, 2*q, tag); dma_w1(a, 0, 0, 2*q+1, tag)
    a('s_add_u32 s%d, s%d, %d' % (S_T, S_XB, q*4096))
    for kk in range(4):
        for blk in range(2):
            a('buffer_load_dwordx4 %s, v%d, s[%d:%d], s%d offen offset:%d' % (xfrag(blk, 4*q+kk), V_XO+blk, S_WS, S_WS+3, S_T, kk*1024), tag)

def body(a, mixed, st):
    F = Fill(a)
    BUD = 20
    PRE = 6
    if mixed:
        a('global_load_ushort v%d, v%d, s[%d:%d]' % (R_T3, V_T0, S_LRE, S_LRE+1), 'tab')
        a('global_load_ushort v%d, v%d, s[%d:%d]' % (R_T4, V_T0, S_LIM, S_LIM+1), 'tab')
        a('global_load_ushort v%d, v%d, s[%d:%d]' % (R_ER, V_T0, S_LDT, S_LDT+1), 'tab')
    for q in range(PRE): group_loads(a, q, mixed)
    if mixed: scan_tables(F)
    pend = [lambda q=q: group_loads(a, q, mixed) for q in range(PRE, 9)]
    pend += [lambda n=n: dma_w1(a, 1, 1, n, 'slab1') for n in range(18)]
    steps = [('p1', 0, ks) for ks in range(36)] + [('c', ci, ks) for ci in range(4) for ks in range(36)]
    slot_of = {}
    ring = {'pos': 0}
    trbase = {'cur': [0, 0]}
    def set_tr(c, want):
        if trbase['cur'][c] != want:
            d = want - trbase['cur'][c]
            a('v_add_u32 v%d, 0x%x, v%d' % (V_TR+c, d & 0xffffffff, V_TR+c))
            trbase['cur'][c] = want
    def tr_frag(c, slab, ks, dst, tag):
        bias = slab*SLAB + (36864 if ks >= 18 else 0)
        set_tr(c, bias)
        off = slab*SLAB + ks*2048 - bias
        a('ds_read_b64_tr_b16 %s, v%d offset:%d' % (vr(dst, 2), V_TR+c, off), tag)
        a('ds_read_b64_tr_b16 %s, v%d offset:%d' % (vr(dst+2, 2), V_TR+c, off+512), tag)
    def issue_read(i):
        kind, ci, ks = steps[i]
        tag = 'f%d' % i
        if kind == 'p1':
            if ks % 4 == 0:
                a.wait_vm('g%d' % (ks//4)); a('s_barrier')
                if ks in (0, 16, 32): stamp(a, st)
            regs = []
            for c in range(2):
                dst = V_WF + 4*(ring['pos'] % 6); ring['pos'] += 1; regs.append(dst)
                if mixed:
                    if ks == 32 and c == 0:
                        for r in range(4): a('v_add_u32 v%d, 0x10000, v%d' % (V_BR+r, V_BR+r))
                    a('ds_read_b128 %s, v%d offset:%d' % (vr(dst, 4), V_BR + (ks & 3), ((ks >> 2)*8192 + c*4096) % 65536), tag)
                else:
                    tr_frag(c, 0, ks, dst, tag)
            slot_of[i] = regs
        else:
            slab = 1 if ci < 2 else 0
            if ks == 0 and ci == 0:
                while pend: pend.pop(0)()
                a.wait_vm('slab1'); a('s_waitcnt lgkmcnt(0)'); a('s_barrier')
                pend.extend([lambda n=n: dma_w1(a, 0, 2, n, 'slab0b') for n in range(18)])
            if ks == 0 and ci == 2:
                assert not pend
                a.wait_vm('slab0b'); a('s_waitcnt lgkmcnt(0)'); a('s_barrier')
            dst = V_WF + 4*(ring['pos'] % 6); ring['pos'] += 1
            tr_frag(ci & 1, slab, ks, dst, tag)
            slot_of[i] = [dst]
    accset = [2, 3, 2, 3] if mixed else [2, 3, 0, 1]
    nread = 0
    used = 0
    def frags(i): return 2 if steps[i][0] == 'p1' else 1
    inflight = 0
    for i, (kind, ci, ks) in enumerate(steps):
        while nread < len(steps) and inflight + frags(nread) <= 6 and nread <= i + 4:
            issue_read(nread); inflight += frags(nread); nread += 1
        if kind == 'c' and ks == 0:
            stamp(a, st)
            F.drain(('acc', accset[ci]))
            rdy = F.mf + 3
            if ci == 0:
                if mixed: scan_early(F, rdy + 9)
                else:
                    epi_ffn(F, 0, 0, 0, rdy + 9); epi_ffn(F, 1, 0, 1, rdy)
            else:
                if mixed and ci == 2: F.add(poll_issue, 24, rdy)
                epi_ffn(F, accset[ci-1], 1 + (ci-1)//2, (ci-1) & 1, rdy)
                if mixed and ci == 2: scan_late(F, rdy)
        a.wait_lg('f%d' % i)
        if kind == 'p1':
            for c in range(2):
                for blk in range(2):
                    d = vr(acc(c, blk), 16); w = vr(slot_of[i][c], 4); x = xfrag(blk, ks)
                    A, B = (x, w) if mixed else (w, x)
                    a('v_mfma_f32_32x32x16_bf16 %s, %s, %s, %s' % (d, A, B, d if ks else '0'))
                    F.mf += 1
                    if pend and ((ks % 4 == 1 and c == 0 and blk == 0) or (len(pend) <= 18 and ks >= 12 and blk == 0)): pend.pop(0)()
                    else: F.pull(BUD)
        else:
            for blk in range(2):
                d = vr(acc(accset[ci], blk), 16)
                a('v_mfma_f32_32x32x16_bf16 %s, %s, %s, %s' % (d, vr(slot_of[i][0], 4), xfrag(blk, ks), d if ks else '0'))
                F.mf += 1
                if pend: pend.pop(0)()
                else: F.pull(BUD)
        inflight -= frags(i)
    stamp(a, st)
    F.mf += 100
    F.drain()
    stamp(a, st)
    epi_ffn(F, accset[3], 2, 1, 0)
    F.drain()
    stamp_flush(a, st, 1, S_WS, S_W, 13)
    a('s_endpgm')

def gen_k1():
    a = Asm()
    name = 'k1_gemma_kernel'
    a(kernel_header(name))
    a('s_cmp_ge_u32 s2, 240')
    a('s_cbranch_scc1 K1_END')
    st = Stamps(); stamp(a, st)
    a('s_load_dwordx2 s[48:49], s[0:1], %d' % D_WS)
    a('s_load_dwordx2 s[50:51], s[0:1], %d' % B_W1)
    a('s_load_dwordx4 s[52:55], s[0:1], %d' % A_BRE)
    a('s_load_dwordx4 s[40:43], s[0:1], %d' % A_LRE)
    a('s_load_dwordx2 s[44:45], s[0:1], %d' % A_LDT)
    a('s_and_b32 s3, s2, 7'); a('s_lshr_b32 s4, s2, 3')
    a('s_lshr_b32 s5, s3, 1'); a('s_mul_i32 s5, s5, 30'); a('s_add_u32 s5, s5, s4')
    a('s_lshr_b32 s%d, s5, 2' % S_N)
    a('s_and_b32 s5, s5, 3'); a('s_and_b32 s3, s3, 1'); a('s_lshl_b32 s3, s3, 2'); a('s_add_u32 s%d, s3, s5' % S_G)
    a('v_lshrrev_b32 v%d, 6, v0' % V_T0)
    a('v_readfirstlane_b32 s%d, v%d' % (S_W, V_T0))
    a('v_and_b32 v0, 63, v0')
    a('s_lshl_b32 s%d, s%d, 10' % (S_M0W, S_W))
    a('s_mul_i32 s%d, s%d, %d' % (S_XB, S_G, 8*36864))
    if XF_OFF: a('s_add_u32 s%d, s%d, %d' % (S_XB, S_XB, XF_OFF))
    a('s_mul_i32 s%d, s%d, %d' % (S_HB, S_G, 8*HF_RB))
    a('s_add_u32 s%d, s%d, %d' % (S_HB, S_HB, HF_OFF))
    a('s_mul_i32 s3, s%d, 73728' % S_W)
    a('v_lshl_add_u32 v%d, v0, 4, s3' % V_XO)
    a('v_add_u32 v%d, 36864, v%d' % (V_XO+1, V_XO))
    a('s_mul_i32 s3, s%d, %d' % (S_W, 2*HF_RB))
    a('v_lshl_add_u32 v%d, v0, 4, s3' % V_HO)
    a('v_add_u32 v%d, %d, v%d' % (V_HO+1, HF_RB, V_HO))
    a('v_lshrrev_b32 v13, 3, v0')
    a('v_and_b32 v14, 7, v0')
    a('v_bfe_u32 v15, v0, 4, 1')
    a('v_lshlrev_b32 v15, 2, v15')
    a('v_xor_b32 v14, v14, v15')
    a('s_lshl_b32 s3, s%d, 3' % S_W)
    a('v_add_u32 v13, s3, v13')
    a('v_mul_u32_u24 v%d, 9216, v13' % V_WD)
    a('v_lshl_add_u32 v%d, v14, 4, v%d' % (V_WD, V_WD))
    a('v_lshrrev_b32 v14, 5, v0'); a('v_lshlrev_b32 v14, 10, v14')
    a('v_bfe_u32 v15, v0, 2, 2'); a('v_lshl_add_u32 v14, v15, 7, v14')
    a('v_bfe_u32 v15, v0, 4, 1'); a('v_lshl_add_u32 v14, v15, 5, v14')
    a('v_and_b32 v15, 3, v0'); a('v_lshl_add_u32 v14, v15, 3, v14')
    a('v_bfe_u32 v15, v0, 3, 1'); a('v_lshl_add_u32 v%d, v15, 6, v14' % V_TR)
    a('v_xor_b32 v%d, 64, v%d' % (V_TR+1, V_TR))
    a('s_waitcnt lgkmcnt(0)')
    srd(a, S_WS, 48, WS_USED)
    srd(a, S_W1, 50, 576*9216)
    a('s_cmp_lt_u32 s%d, 18' % S_N)
    a('s_cbranch_scc1 K1_MIXED')
    a('s_mul_i32 s3, s%d, 3' % S_N); a('s_sub_u32 s3, s3, 18')
    a('s_lshl_b32 s%d, s3, 7' % S_P)
    a('s_add_u32 s%d, s%d, 128' % (S_P+1, S_P)); a('s_add_u32 s%d, s%d, 256' % (S_P+2, S_P))
    sv = (list(a.vm), list(a.lg))
    body(a, False, st)
    st.n = 1
    a.vm, a.lg = sv
    a('K1_MIXED:')
    srd(a, S_BRE, 52, 576*1152)
    srd(a, S_BIM, 54, 576*1152)
    a('s_lshl_b32 s%d, s%d, 8' % (S_P+1, S_N)); a('s_add_u32 s%d, s%d, 128' % (S_P+2, S_P+1))
    a('v_bfe_u32 v15, v13, 1, 3'); a('v_and_b32 v14, 7, v0'); a('v_xor_b32 v14, v14, v15')
    a('s_lshl_b32 s3, s%d, 5' % S_N)
    a('v_add_u32 v13, s3, v13')
    a('v_mul_u32_u24 v%d, 1152, v13' % V_BD)
    a('v_lshl_add_u32 v%d, v14, 4, v%d' % (V_BD, V_BD))
    a('v_and_b32 v13, 31, v0'); a('v_lshrrev_b32 v14, 5, v0'); a('v_bfe_u32 v15, v0, 1, 3'); a('v_xor_b32 v14, v14, v15')
    a('v_lshlrev_b32 v14, 4, v14'); a('v_lshl_add_u32 v%d, v13, 7, v14' % V_BR)
    for e in range(1, 4): a('v_xor_b32 v%d, %d, v%d' % (V_BR+e, 32*e, V_BR))
    a('v_lshrrev_b32 v14, 5, v0'); a('s_lshl_b32 s4, s%d, 1' % S_W); a('v_add_u32 v%d, s4, v14' % R_SIDX)
    a('v_lshlrev_b32 v%d, 6, v13' % R_TW)
    a('v_add_u32 v%d, 0x%x, v%d' % (R_TW, E_OFF - E_OFF % 65536, R_TW))
    a('v_lshl_add_u32 v%d, v%d, 3, v%d' % (R_EA, R_SIDX, R_TW))
    a('v_add_u32 v%d, 0x%x, v%d' % (R_EA, E_OFF % 65536, R_EA))
    a('v_add_u32 v15, s3, v13')
    a('v_lshlrev_b32 v%d, 3, v15' % R_AO)
    a('s_mul_i32 s%d, s%d, 4608' % (S_BB, S_G)); a('s_add_u32 s%d, s%d, %d' % (S_BB, S_BB, AGG_OFF))
    a('s_lshl_b32 s4, s%d, 11' % S_N); a('s_add_u32 s4, s4, %d' % (288*1024)); a('s_add_u32 s%d, s4, s%d' % (S_CNT+1, S_HB))
    a('s_lshl_b32 s4, s%d, 13' % S_W); a('s_add_u32 s4, s4, %d' % SLAB)
    a('v_lshrrev_b32 v14, 5, v0'); a('v_lshlrev_b32 v14, 9, v14')
    a('v_bfe_u32 v15, v0, 2, 2'); a('v_lshl_add_u32 v14, v15, 6, v14')
    a('v_and_b32 v15, 1, v0'); a('v_lshl_add_u32 v14, v15, 5, v14')
    a('v_bfe_u32 v15, v0, 4, 1'); a('v_lshl_add_u32 v14, v15, 4, v14')
    a('v_bfe_u32 v15, v0, 1, 1'); a('v_lshl_add_u32 v14, v15, 3, v14')
    a('v_add_u32 v%d, s4, v14' % R_TRD)
    a('v_lshrrev_b32 v14, 5, v0'); a('v_lshlrev_b32 v14, 5, v14'); a('v_lshl_add_u32 v14, v13, 6, v14')
    a('v_add_u32 v%d, s4, v14' % R_TWA)
    a('v_lshrrev_b32 v%d, 2, v%d' % (V_T0, R_AO))
    body(a, True, st)
    a('K1_END:')
    a('s_endpgm')
    return name, a.lines, kernel_desc(name, 512, 256, 102 if DIAG else 64), '(240,1,1)', '(256,1,1)', 2*SLAB + 2048
```

```python
from asmlib import *
from gen import *
from k1 import Fill, LOG2E

V_HO = 1
V_WD = 2
V_RD = 5
V_RW = 7
V_RR = 8
V_PO = 9
V_T = 10
V_H = 16
V_ACC = 88
V_RB = 184
S_WS = 8; S_WT = 12
S_MT = 24; S_NT = 25; S_SP = 26; S_W = 27
S_HB = 28; S_T = 29; S_MW = 30; S_WB = 31; S_PB = 32; S_TF = 33
REG = 36864
RED = 36864

def wfrag(ks, dt): return ar((ks*3 + dt)*4, 4)
def hfrag(ks): return vr(V_H + 4*ks, 4)
def accr(s, dt): return V_ACC + 48*s + 16*dt

def dma_unit(a, u, ssm, tag):
    slot = u % 6
    for n in range(6):
        a('s_add_u32 m0, s%d, %d' % (S_MW, slot*6144 + n*1024))
        if ssm:
            a('s_add_u32 s%d, s%d, %d' % (S_T, S_WB, n*16*1152 + u*64))
            a('buffer_load_dwordx4 v%d, s[%d:%d], s%d offen lds' % (V_WD, S_WT, S_WT+3, S_T), tag)
        else:
            if n % 3 == 0: a('s_add_u32 s%d, s%d, %d' % (S_T, S_WB, (2*u + n//3)*16*1152))
            a('buffer_load_dwordx4 v%d, s[%d:%d], s%d offen lds' % (V_WD + n % 3, S_WT, S_WT+3, S_T), tag)

def read_unit(a, u, ssm, tag):
    slot = u % 6
    for e in range(2):
        ks = 2*u + e
        for dt in range(3):
            base = (ks*3 + dt)*4
            if ssm:
                a('ds_read_b128 %s, v%d offset:%d' % (ar(base, 4), V_RD+e, slot*6144 + dt*2048), tag)
            else:
                off = slot*6144 + e*3072 + dt*64
                a('ds_read_b64_tr_b16 %s, v%d offset:%d' % (ar(base, 2), V_RD, off), tag)
                a('ds_read_b64_tr_b16 %s, v%d offset:%d' % (ar(base+2, 2), V_RD, off+1536), tag)

def hload(a, r, ks):
    if ks % 4 == 0: a('s_add_u32 s%d, s%d, %d' % (S_T, S_HB, r*HF_RB + ks*1024))
    a('buffer_load_dwordx4 %s, v%d, s[%d:%d], s%d offen offset:%d' % (hfrag(ks), V_HO, S_WS, S_WS+3, S_T, (ks % 4)*1024), 'h%d_%d' % (r, ks))

def reduce_fill(F, r, ready):
    s = r & 1; grp = ('acc', s); buf = (r & 1)*RED
    for q in range(4):
        for dt in range(3):
            F.ins('ds_write_b128 v%d, %s offset:%d' % (V_RW + 0, vr(accr(s, dt) + 4*q, 4), q*12288 + dt*1024), ready, grp, 'rw%d' % r)
    F.add(lambda a: (a.wait_lg('rw%d' % r), a('s_barrier')), 8, ready)
    for src in range(4):
        for dt in range(3):
            F.ins('ds_read_b128 %s, v%d offset:%d' % (vr(V_RB + (src*3+dt)*4, 4), V_RR, src*3072 + dt*1024), ready, None, 'rr%d' % r)
    F.add(lambda a: a.wait_lg('rr%d' % r), 4, ready)
    F.ins('v_xor_b32 v%d, 0x%x, v%d' % (V_RW, 0x10000, V_RW), ready)
    F.ins('v_xor_b32 v%d, 0x%x, v%d' % (V_RR, 0x10000, V_RR), ready)
    for k in range(12):
        F.ins('v_add_f32 v%d, v%d, v%d' % (V_RB+k, V_RB+k, V_RB+12+k), ready)
        F.ins('v_add_f32 v%d, v%d, v%d' % (V_RB+24+k, V_RB+24+k, V_RB+36+k), ready)
    for k in range(12):
        F.ins('v_add_f32 v%d, v%d, v%d' % (V_RB+k, V_RB+k, V_RB+24+k), ready)
    F.add(lambda a: a('s_add_u32 s%d, s%d, %d' % (S_TF, S_PB, r*6*12288)), 4, ready)
    for dt in range(3):
        F.ins('buffer_store_dwordx4 %s, v%d, s[%d:%d], s%d offen offset:%d sc1' % (vr(V_RB+4*dt, 4), V_PO, S_WS, S_WS+3, S_TF, dt*1024), ready, None, 'st')

def body(a, ssm, st):
    F = Fill(a); BUD = 20
    for u in range(6):
        dma_unit(a, u, ssm, 'w%d' % u)
        a('s_add_u32 s%d, s%d, %d' % (S_T, S_HB, 2*u*1024))
        for e in range(2):
            a('buffer_load_dwordx4 %s, v%d, s[%d:%d], s%d offen offset:%d' % (hfrag(2*u+e), V_HO, S_WS, S_WS+3, S_T, e*1024), 'h0_%d' % (2*u+e))
    a('s_add_u32 s%d, s%d, %d' % (S_T, S_HB, 12*1024))
    for ks in range(12, 16):
        a('buffer_load_dwordx4 %s, v%d, s[%d:%d], s%d offen offset:%d' % (hfrag(ks), V_HO, S_WS, S_WS+3, S_T, (ks-12)*1024), 'h0_%d' % ks)
    a('s_add_u32 s%d, s%d, %d' % (S_T, S_HB, 16*1024))
    for ks in range(16, 18):
        a('buffer_load_dwordx4 %s, v%d, s[%d:%d], s%d offen offset:%d' % (hfrag(ks), V_HO, S_WS, S_WS+3, S_T, (ks-16)*1024), 'h0_%d' % ks)
    for r in range(8):
        s = r & 1
        F.drain(('acc', s))
        stamp(a, st)
        if r > 0: reduce_fill(F, r-1, F.mf + 4)
        for ks in range(18):
            if r == 0 and ks % 2 == 0:
                u = ks // 2
                a.wait_vm('w%d' % u)
                if u == 0: stamp(a, st)
                read_unit(a, u, ssm, 'wr%d' % u)
                a.wait_lg('wr%d' % u)
                if u < 3: dma_unit(a, u+6, ssm, 'w%d' % (u+6))
                if u == 8: a('s_barrier')
            a.wait_vm('h%d_%d' % (r, ks))
            for dt in range(3):
                d = vr(accr(s, dt), 16)
                a('v_mfma_f32_32x32x16_bf16 %s, %s, %s, %s' % (d, hfrag(ks), wfrag(ks, dt), d if ks else '0'))
                F.mf += 1
                if dt < 2: F.pull(BUD)
            if r < 7:
                if r == 0 and ks % 4: a('s_add_u32 s%d, s%d, %d' % (S_T, S_HB, (r+1)*HF_RB + (ks - ks % 4)*1024))
                hload(a, r+1, ks)
            F.pull(BUD - 8)
    stamp(a, st)
    F.mf += 100
    F.drain()
    reduce_fill(F, 7, 0)
    F.drain()
    stamp_flush(a, st, 2, S_WS, S_W, 10)
    a('s_endpgm')

def gen_k2():
    a = Asm()
    name = 'k2_gemmb_kernel'
    a(kernel_header(name))
    a('s_cmp_ge_u32 s2, 240')
    a('s_cbranch_scc1 K2_END')
    st = Stamps(); stamp(a, st)
    a('s_load_dwordx2 s[48:49], s[0:1], %d' % D_WS)
    a('s_load_dwordx2 s[50:51], s[0:1], %d' % B_W2)
    a('s_load_dwordx4 s[52:55], s[0:1], %d' % A_CRE)
    a('s_and_b32 s3, s2, 7'); a('s_lshr_b32 s4, s2, 3')
    a('s_mul_i32 s5, s4, 43'); a('s_lshr_b32 s5, s5, 8')
    a('s_mul_i32 s6, s5, 6'); a('s_sub_u32 s%d, s4, s6' % S_NT)
    a('s_mul_i32 s3, s3, 5'); a('s_add_u32 s3, s3, s5')
    a('s_lshr_b32 s%d, s3, 3' % S_SP); a('s_and_b32 s%d, s3, 7' % S_MT)
    a('v_lshrrev_b32 v10, 6, v0')
    a('v_readfirstlane_b32 s%d, v10' % S_W)
    a('v_and_b32 v0, 63, v0')
    a('s_mul_i32 s%d, s%d, %d' % (S_MW, S_W, REG))
    a('s_mul_i32 s%d, s%d, %d' % (S_HB, S_MT, 8*HF_RB))
    a('s_mul_i32 s3, s%d, %d' % (S_SP, 72*1024))
    a('s_add_u32 s%d, s%d, s3' % (S_HB, S_HB)); a('s_add_u32 s%d, s%d, %d' % (S_HB, S_HB, HF_OFF))
    a('s_mul_i32 s3, s%d, %d' % (S_W, 18*1024))
    a('v_lshl_add_u32 v%d, v0, 4, s3' % V_HO)
    a('s_lshl_b32 s3, s%d, 6' % S_SP); a('s_lshl_b32 s4, s%d, 3' % S_MT); a('s_add_u32 s3, s3, s4')
    a('s_mul_i32 s3, s3, 6'); a('s_add_u32 s3, s3, s%d' % S_NT); a('s_mul_i32 s3, s3, 12288')
    a('s_add_u32 s%d, s3, %d' % (S_PB, PART_OFF))
    a('s_mul_i32 s3, s%d, 3072' % S_W)
    a('v_lshl_add_u32 v%d, v0, 4, s3' % V_PO)
    a('v_mov_b32 v%d, v%d' % (V_RW, V_PO))
    a('s_mul_i32 s3, s%d, 12288' % S_W)
    a('v_lshl_add_u32 v%d, v0, 4, s3' % V_RR)
    a('s_waitcnt lgkmcnt(0)')
    srd(a, S_WS, 48, WS_USED)
    a('s_cmp_eq_u32 s%d, 4' % S_SP)
    a('s_cbranch_scc1 K2_SSM')
    srd(a, S_WT, 50, 4608*1152)
    a('s_mul_i32 s3, s%d, 1152' % S_SP); a('s_mul_i32 s4, s%d, 288' % S_W); a('s_add_u32 s3, s3, s4')
    a('s_mul_i32 s3, s3, 1152'); a('s_mul_i32 s4, s%d, 192' % S_NT); a('s_add_u32 s%d, s3, s4' % S_WB)
    for n in range(3):
        a('v_add_u32 v10, %d, v0' % (64*n))
        a('v_mul_u32_u24 v11, 0x1556, v10'); a('v_lshrrev_b32 v11, 16, v11')
        a('v_mul_u32_u24 v12, 12, v11'); a('v_sub_u32 v12, v10, v12')
        a('v_mul_u32_u24 v11, 1152, v11'); a('v_lshl_add_u32 v%d, v12, 4, v11' % (V_WD+n))
    a('v_lshrrev_b32 v10, 5, v0'); a('v_lshlrev_b32 v10, 2, v10'); a('v_bfe_u32 v11, v0, 2, 2'); a('v_add_u32 v10, v10, v11')
    a('v_mul_u32_u24 v10, 192, v10')
    a('v_bfe_u32 v11, v0, 4, 1'); a('v_lshl_add_u32 v10, v11, 5, v10')
    a('v_and_b32 v11, 3, v0'); a('v_lshl_add_u32 v10, v11, 3, v10')
    a('v_add_u32 v%d, s%d, v10' % (V_RD, S_MW))
    sv = (list(a.vm), list(a.lg))
    body(a, False, st)
    st.n = 1
    a.vm, a.lg = sv
    a('K2_SSM:')
    a('s_cmp_lt_u32 s%d, 2' % S_W)
    a('s_cselect_b32 s50, s52, s54'); a('s_cselect_b32 s51, s53, s55')
    srd(a, S_WT, 50, 576*1152)
    a('s_mul_i32 s3, s%d, %d' % (S_NT, 96*1152)); a('s_and_b32 s4, s%d, 1' % S_W); a('s_mul_i32 s4, s4, 576'); a('s_add_u32 s%d, s3, s4' % S_WB)
    a('v_lshrrev_b32 v10, 2, v0'); a('v_and_b32 v11, 3, v0'); a('v_bfe_u32 v12, v0, 4, 2'); a('v_xor_b32 v11, v11, v12')
    a('v_mul_u32_u24 v10, 1152, v10'); a('v_lshl_add_u32 v%d, v11, 4, v10' % V_WD)
    a('v_and_b32 v10, 31, v0'); a('v_lshrrev_b32 v11, 5, v0'); a('v_bfe_u32 v12, v0, 2, 2'); a('v_xor_b32 v11, v11, v12')
    a('v_lshlrev_b32 v11, 4, v11'); a('v_lshl_add_u32 v10, v10, 6, v11')
    a('v_xor_b32 v11, 32, v10')
    a('v_add_u32 v%d, s%d, v10' % (V_RD, S_MW)); a('v_add_u32 v%d, s%d, v11' % (V_RD+1, S_MW))
    body(a, True, st)
    a('K2_END:')
    a('s_endpgm')
    return name, a.lines, kernel_desc(name, 512, 256, 102 if DIAG else 64), '(240,1,1)', '(256,1,1)', 4*REG

def gen_k3():
    a = Asm()
    name = 'k3_fin_kernel'
    a(kernel_header(name))
    a('s_cmp_ge_u32 s2, 384')
    a('s_cbranch_scc1 K3_END')
    st = Stamps(); stamp(a, st)
    a('s_load_dwordx2 s[48:49], s[0:1], %d' % D_WS)
    a('s_load_dwordx2 s[50:51], s[0:1], %d' % A_X)
    a('s_load_dwordx2 s[52:53], s[0:1], %d' % D_OUT)
    a('s_mul_i32 s3, s2, 10923'); a('s_lshr_b32 s3, s3, 16')
    a('s_mul_i32 s4, s3, 6'); a('s_sub_u32 s4, s2, s4')
    a('v_lshrrev_b32 v1, 6, v0')
    a('v_and_b32 v2, 63, v0')
    a('v_mul_u32_u24 v3, 3072, v1'); a('v_lshl_add_u32 v3, v2, 4, v3')
    a('s_mul_i32 s5, s2, 12288'); a('s_add_u32 s5, s5, %d' % PART_OFF)
    a('s_lshr_b32 s6, s3, 1'); a('s_lshl_b32 s6, s6, 6'); a('s_and_b32 s7, s3, 1'); a('s_lshl_b32 s7, s7, 4'); a('s_add_u32 s6, s6, s7')
    a('v_lshrrev_b32 v4, 5, v2'); a('v_lshlrev_b32 v4, 5, v4'); a('v_lshl_add_u32 v4, v1, 2, v4'); a('v_add_u32 v4, s6, v4')
    a('v_mul_u32_u24 v4, 576, v4'); a('v_and_b32 v5, 31, v2'); a('s_mul_i32 s7, s4, 96'); a('v_add3_u32 v4, v4, v5, s7')
    a('v_lshlrev_b32 v5, 1, v4'); a('v_lshlrev_b32 v6, 2, v4'); a('v_add_u32 v7, 4608, v6')
    a('s_waitcnt lgkmcnt(0)')
    srd(a, 8, 48, WS_USED); srd(a, 12, 50, 2048*1152); srd(a, 16, 52, 2048*2304)
    for sp in range(5):
        for dt in range(3):
            a('buffer_load_dwordx4 %s, v3, s[8:11], s5 offen offset:%d' % (vr(16 + (sp*3+dt)*4, 4), dt*1024))
        if sp < 4: a('s_add_u32 s5, s5, %d' % (64*6*12288))
    a('s_mov_b32 s6, %d' % XS_OFF)
    for dt in range(3):
        for r in range(4):
            a('buffer_load_ushort v%d, v5, s[12:15], 0 offen offset:%d' % (80 + dt*4 + r, r*1152 + dt*64))
            a('buffer_load_ushort v%d, v5, s[8:11], s6 offen offset:%d' % (92 + dt*4 + r, r*1152 + dt*64))
    a('s_waitcnt vmcnt(0)')
    stamp(a, st)
    for k in range(12):
        a('v_add_f32 v%d, v%d, v%d' % (16+k, 16+k, 28+k)); a('v_add_f32 v%d, v%d, v%d' % (40+k, 40+k, 52+k))
        a('v_add_f32 v%d, v%d, v%d' % (16+k, 16+k, 40+k))
        a('v_cvt_pk_bf16_f32 v%d, v%d, v%d' % (16+k, 16+k, 16+k)); a('v_lshlrev_b32 v%d, 16, v%d' % (16+k, 16+k))
        a('v_mul_f32 v%d, 0x%08x, v%d' % (28+k, f32bits(-LOG2E), 16+k))
        a('v_exp_f32 v%d, v%d' % (28+k, 28+k)); a('v_add_f32 v%d, 1.0, v%d' % (28+k, 28+k)); a('v_rcp_f32 v%d, v%d' % (28+k, 28+k))
        a('v_mul_f32 v%d, v%d, v%d' % (16+k, 16+k, 28+k))
        a('v_cvt_pk_bf16_f32 v%d, v%d, v%d' % (16+k, 16+k, 16+k)); a('v_lshlrev_b32 v%d, 16, v%d' % (16+k, 16+k))
        a('v_lshlrev_b32 v%d, 16, v%d' % (80+k, 80+k)); a('v_lshlrev_b32 v%d, 16, v%d' % (92+k, 92+k))
        a('v_fma_f32 v%d, 2.0, v%d, v%d' % (64+k, 64+k, 92+k))
        a('v_mul_f32 v%d, v%d, v%d' % (64+k, 64+k, 16+k))
        a('v_add_f32 v%d, v%d, v%d' % (64+k, 64+k, 80+k))
        dt, r = k // 4, k % 4
        a('buffer_store_dword v%d, v%d, s[16:19], 0 offen offset:%d' % (64+k, 6 + r//2, (r % 2)*2304 + dt*128))
    if DIAG:
        a('v_readfirstlane_b32 s30, v1'); a('s_nop 4')
    stamp_flush(a, st, 3, 8, 30, 10)
    a('K3_END:')
    a('s_endpgm')
    return name, a.lines, kernel_desc(name, 104, 104, 102 if DIAG else 64), '(384,1,1)', '(256,1,1)', 0
```

```python
import sys
from asmlib import *

PFX = "recurrent_scan__ssm_conv_s5__dense_activation_silu__prompt"
XF_OFF   = 0
XF_SZ    = 64*36*1024
XS_OFF   = XF_OFF + XF_SZ
XS_SZ    = 2048*576*2
AGG_OFF  = XS_OFF + XS_SZ
AGG_SZ   = 256*17*16
HF_OFF   = 8*1024*1024
HF_RB    = 360*1024
HF_SZ    = 64*HF_RB
PART_OFF = 32*1024*1024
PART_SZ  = 5*64*6*12*1024
WS_USED  = PART_OFF + PART_SZ
if DIAG: WS_USED = 64*1024*1024
assert AGG_OFF + AGG_SZ <= HF_OFF and HF_OFF + HF_SZ <= PART_OFF
A_X, A_LRE, A_LIM, A_BRE, A_BIM, A_CRE, A_CIM, A_LDT, A_DSK, B_X, B_W1, B_W2, D_OUT, D_DBG, D_WS = [8*i for i in range(15)]

def srd(a, s, lo, nbytes):
    a('s_mov_b32 s%d, s%d' % (s, lo))
    a('s_and_b32 s%d, s%d, 0xffff' % (s+1, lo+1))
    a('s_mov_b32 s%d, 0x%x' % (s+2, nbytes))
    a('s_mov_b32 s%d, 0x00020000' % (s+3))

def gen_k0():
    a = Asm()
    name = 'k0_ln_kernel'
    a(kernel_header(name))
    a('s_cmp_ge_u32 s2, 256')
    a('s_cbranch_scc1 K0_END')
    st = Stamps(); stamp(a, st)
    a('s_load_dwordx2 s[4:5], s[0:1], %d' % A_X)
    a('s_load_dwordx2 s[6:7], s[0:1], %d' % A_DSK)
    a('s_load_dwordx2 s[8:9], s[0:1], %d' % D_WS)
    a('v_and_b32 v1, 7, v0')
    a('v_lshrrev_b32 v2, 3, v0')
    a('s_lshr_b32 s10, s2, 3')
    a('s_lshl_b32 s10, s10, 6')
    a('s_bfe_u32 s11, s2, 0x10002')
    a('s_lshl_b32 s11, s11, 4')
    a('s_add_u32 s10, s10, s11')
    a('s_and_b32 s11, s2, 3')
    a('s_lshl_b32 s12, s11, 2')
    a('s_add_u32 s10, s10, s12')
    a('v_lshrrev_b32 v3, 2, v1')
    a('v_lshlrev_b32 v3, 5, v3')
    a('v_and_b32 v4, 3, v1')
    a('v_add3_u32 v3, v3, v4, s10')
    a('v_mul_u32_u24 v3, 1152, v3')
    a('v_lshlrev_b32 v4, 4, v2')
    a('v_add_u32 v3, v3, v4')
    a('s_lshr_b32 s13, s2, 2')
    a('s_mul_i32 s13, s13, 36864')
    a('s_lshl_b32 s12, s11, 7')
    a('s_add_u32 s13, s13, s12')
    a('v_lshlrev_b32 v5, 9, v2')
    a('v_lshlrev_b32 v6, 4, v1')
    a('v_add3_u32 v5, v5, v6, s13')
    a('s_waitcnt lgkmcnt(0)')
    srd(a, 16, 4, 2048*1152)
    srd(a, 20, 6, 1152)
    srd(a, 24, 8, WS_USED)
    for n in range(3):
        a('buffer_load_dwordx4 %s, v3, s[16:19], 0 offen offset:%d' % (vr(8+4*n, 4), 384*n), 'x')
    for n in range(3):
        a('buffer_load_dwordx4 %s, v4, s[20:23], 0 offen offset:%d' % (vr(20+4*n, 4), 384*n), 'd')
    a('s_mul_i32 s14, s2, 17')
    a('v_add_u32 v7, s14, v0')
    a('v_cmp_lt_u32 vcc, 2015, v7')
    a('v_cndmask_b32 v60, 0, -1, vcc')
    a('v_mov_b32 v61, v60'); a('v_mov_b32 v62, v60'); a('v_mov_b32 v63, v60')
    a('s_mov_b32 s14, %d' % AGG_OFF)
    a('v_lshlrev_b32 v7, 4, v7')
    a('v_cmp_gt_u32 vcc, 17, v0')
    a('s_and_saveexec_b64 s[28:29], vcc')
    a('s_cbranch_execz K0_NOFILL')
    a('buffer_store_dwordx4 v[60:63], v7, s[24:27], s14 offen sc1')
    a.vm.pop()
    a('K0_NOFILL:')
    a('s_mov_b64 exec, s[28:29]')
    a('v_lshrrev_b32 v6, 4, v0')
    a('v_lshlrev_b32 v6, 2, v6')
    a('v_lshl_add_u32 v6, v1, 6, v6')
    a('v_lshlrev_b32 v7, 6, v1')
    a('s_waitcnt vmcnt(0)')
    stamp(a, st)
    for n in range(12):
        a('v_lshlrev_b32 v%d, 16, v%d' % (32+2*n, 8+n))
        a('v_and_b32 v%d, 0xffff0000, v%d' % (33+2*n, 8+n))
    def reduce_rows(acc, ldsoff):
        a('v_add_f32_dpp v%d, v%d, v%d row_ror:8 row_mask:0xf bank_mask:0xf' % (acc, acc, acc))
        a('ds_write_b32 v6, v%d offset:%d' % (acc, ldsoff))
        a('s_waitcnt lgkmcnt(0)')
        a('s_barrier')
        for n in range(3):
            a('ds_read_b128 %s, v7 offset:%d' % (vr(64+4*n, 4), ldsoff+16*n))
        a('s_waitcnt lgkmcnt(0)')
        for n in range(6): a('v_add_f32 v%d, v%d, v%d' % (64+n, 64+n, 70+n))
        for n in range(3): a('v_add_f32 v%d, v%d, v%d' % (64+n, 64+n, 67+n))
        a('v_add_f32 v64, v64, v65')
        a('v_add_f32 v%d, v64, v66' % acc)
    for n in range(4): a('v_add_f32 v%d, v%d, v%d' % (56+n, 32+n, 36+n))
    for m in range(2, 6):
        for n in range(4): a('v_add_f32 v%d, v%d, v%d' % (56+n, 56+n, 32+4*m+n))
    a('v_add_f32 v56, v56, v57'); a('v_add_f32 v58, v58, v59'); a('v_add_f32 v56, v56, v58')
    reduce_rows(56, 0)
    a('v_mul_f32 v56, 0x%08x, v56' % f32bits(1.0/576))
    for n in range(4):
        a('v_sub_f32 v%d, v%d, v56' % (60+n, 32+n))
        a('v_mul_f32 v%d, v%d, v%d' % (76+n, 60+n, 60+n))
    for m in range(1, 6):
        for n in range(4):
            a('v_sub_f32 v%d, v%d, v56' % (60+n, 32+4*m+n))
            a('v_fmac_f32 v%d, v%d, v%d' % (76+n, 60+n, 60+n))
    a('v_add_f32 v76, v76, v77'); a('v_add_f32 v78, v78, v79'); a('v_add_f32 v57, v76, v78')
    reduce_rows(57, 512)
    a('v_mul_f32 v57, 0x%08x, v57' % f32bits(1.0/576))
    a('v_cvt_pk_bf16_f32 v58, v56, v57')
    a('v_lshlrev_b32 v56, 16, v58')
    a('v_and_b32 v57, 0xffff0000, v58')
    a('v_add_f32 v57, 0x%08x, v57' % f32bits(1e-5))
    a('v_cvt_pk_bf16_f32 v57, v57, v57')
    a('v_lshlrev_b32 v57, 16, v57')
    a('v_sqrt_f32 v57, v57')
    a('v_cvt_pk_bf16_f32 v57, v57, v57')
    a('v_lshlrev_b32 v57, 16, v57')
    a('v_rcp_f32 v57, v57')
    for n in range(12):
        lo, hi = 32+2*n, 33+2*n
        a('v_sub_f32 v%d, v%d, v56' % (lo, lo)); a('v_sub_f32 v%d, v%d, v56' % (hi, hi))
        a('v_cvt_pk_bf16_f32 v%d, v%d, v%d' % (8+n, lo, hi))
        a('v_lshlrev_b32 v%d, 16, v%d' % (lo, 8+n)); a('v_and_b32 v%d, 0xffff0000, v%d' % (hi, 8+n))
        a('v_mul_f32 v%d, v%d, v57' % (lo, lo)); a('v_mul_f32 v%d, v%d, v57' % (hi, hi))
        a('v_cvt_pk_bf16_f32 v%d, v%d, v%d' % (8+n, lo, hi))
        if n % 4 == 3:
            q = n // 4
            a('s_mov_b32 s14, %d' % (XF_OFF + 12288*q))
            a('buffer_store_dwordx4 %s, v5, s[24:27], s14 offen sc1' % vr(8+4*q, 4))
    a('s_mov_b32 s14, %d' % XS_OFF)
    for n in range(12):
        lo, hi = 32+2*n, 33+2*n
        a('v_lshlrev_b32 v%d, 16, v%d' % (lo, 8+n)); a('v_and_b32 v%d, 0xffff0000, v%d' % (hi, 8+n))
        a('v_lshlrev_b32 v60, 16, v%d' % (20+n)); a('v_and_b32 v61, 0xffff0000, v%d' % (20+n))
        a('v_mul_f32 v%d, v%d, v60' % (lo, lo)); a('v_mul_f32 v%d, v%d, v61' % (hi, hi))
        a('v_cvt_pk_bf16_f32 v%d, v%d, v%d' % (20+n, lo, hi))
        if n % 4 == 3:
            q = n // 4
            a('buffer_store_dwordx4 %s, v3, s[24:27], s14 offen offset:%d sc1' % (vr(20+4*q, 4), 384*q))
    if DIAG:
        a('v_lshrrev_b32 v1, 6, v0'); a('s_nop 1'); a('v_readfirstlane_b32 s30, v1'); a('s_nop 4')
    stamp_flush(a, st, 0, 24, 30, 70)
    a('K0_END:')
    a('s_endpgm')
    return name, a.lines, kernel_desc(name, 80, 80, 102 if DIAG else 40), '(256,1,1)', '(192,1,1)', 1024

import struct
def f32bits(x): return struct.unpack('<I', struct.pack('<f', x))[0]

def assemble(kernels, header_lines):
    out = list(header_lines)
    for name, lines, desc, grid, block, lds in kernels:
        out.append('; @launch kernel=%s grid=%s block=%s lds=%d' % (name, grid, block, lds))
    out.append('.amdgcn_target "amdgcn-amd-amdhsa--gfx950"')
    for name, lines, desc, grid, block, lds in kernels:
        padded, n = pad_hazards(lines)
        sys.stderr.write('%s: %d lines, %d nops inserted\n' % (name, len(padded), n))
        out += padded
    for name, lines, desc, grid, block, lds in kernels:
        out.append(desc)
    return '\n'.join(out) + '\n'

if __name__ == '__main__':
    from k1 import gen_k1
    from k2 import gen_k2, gen_k3
    ref = open('cdna_kernels/%s.s.ref' % PFX).read().split('\n')
    hdr = [l for l in ref if l.startswith(';') and '@launch' not in l and 'Override launch' not in l and 'grid=ceil' not in l]
    hdr = hdr[:16]
    ks = [gen_k0(), gen_k1(), gen_k2(), gen_k3()]
    sys.stdout.write(assemble(ks, hdr))
```

```python
import re

class Ins:
    __slots__ = ("text", "tag")
    def __init__(self, text, tag=None):
        self.text = text; self.tag = tag
    def __repr__(self): return self.text

_reg_re = re.compile(r'\b([vas])(\d+)\b|\b([vas])\[(\d+):(\d+)\]')
def regs_of(operand):
    out = []
    for m in _reg_re.finditer(operand):
        if m.group(1):
            out.append((m.group(1), int(m.group(2))))
        else:
            for i in range(int(m.group(4)), int(m.group(5)) + 1):
                out.append((m.group(3), i))
    if re.search(r'\bvcc\b', operand): out += [('s', 'vcc')]
    if re.search(r'\bexec\b', operand): out += [('s', 'exec')]
    if re.search(r'\bm0\b', operand): out += [('s', 'm0')]
    return out

def split_ops(text):
    t = text.split(';')[0].strip()
    parts = t.split(None, 1)
    op = parts[0]
    ops = []
    if len(parts) > 1:
        depth = 0; cur = ''
        for ch in parts[1]:
            if ch == '[': depth += 1
            if ch == ']': depth -= 1
            if ch == ',' and depth == 0:
                ops.append(cur.strip()); cur = ''
            else: cur += ch
        ops.append(cur.strip())
    return op, ops

TRANS = ('v_exp_f32', 'v_log_f32', 'v_rcp_f32', 'v_rsq_f32', 'v_sqrt_f32', 'v_sin_f32', 'v_cos_f32')

def classify(text):
    op, ops = split_ops(text)
    k = {'op': op, 'dst': [], 'src': [], 'kind': 'other'}
    if op.endswith(':') or op.startswith('.'):
        k['kind'] = 'label'; return k
    if op.startswith('v_mfma'):
        k['kind'] = 'mfma'
        k['dst'] = regs_of(ops[0]); k['srcA'] = regs_of(ops[1]); k['srcB'] = regs_of(ops[2]); k['srcC'] = regs_of(ops[3])
        k['src'] = k['srcA'] + k['srcB'] + k['srcC']
        k['passes'] = 8 if '32x32' in op else 4
        return k
    if op.startswith('v_'):
        k['kind'] = 'valu'
        base = op.replace('_e32', '').replace('_e64', '').replace('_dpp', '').replace('_sdwa', '')
        k['trans'] = base in TRANS
        k['dpp'] = ('row_' in text or 'quad_perm' in text or '_dpp' in op)
        if base.startswith('v_cmp'):
            k['dst'] = regs_of(ops[0]); k['src'] = sum((regs_of(o) for o in ops[1:]), [])
            if base.startswith('v_cmpx'): k['dst'] += [('s', 'exec')]
        elif base.startswith('v_permlane') and 'swap' in base:
            k['dst'] = regs_of(ops[0]) + regs_of(ops[1]); k['src'] = list(k['dst']); k['permlane'] = True
        elif base in ('v_add_co_u32', 'v_sub_co_u32', 'v_addc_co_u32', 'v_subb_co_u32'):
            k['dst'] = regs_of(ops[0]) + regs_of(ops[1]); k['src'] = sum((regs_of(o) for o in ops[2:]), [])
        else:
            k['dst'] = regs_of(ops[0]); k['src'] = sum((regs_of(o) for o in ops[1:]), [])
            if base in ('v_fmac_f32', 'v_dot2c_f32_bf16', 'v_writelane_b32'): k['src'] += k['dst']
        k['lane'] = base in ('v_readfirstlane_b32', 'v_readlane_b32')
        return k
    if op.startswith('buffer_') or op.startswith('global_'):
        k['kind'] = 'vmem'
        if op in ('buffer_inv', 'buffer_wbl2'):
            return k
        lds = bool(re.search(r'\blds\b', text.split(';')[0]))
        k['lds'] = lds
        allr = [regs_of(o) for o in ops]
        if 'load' in op and not lds:
            k['dst'] = allr[0]; k['src'] = sum(allr[1:], [])
        else:
            k['src'] = sum(allr, [])
            if lds: k['src'] += [('s', 'm0')]
            if 'store' in op:
                di = 0 if op.startswith('buffer_') else 1
                k['data'] = allr[di]
                k['wide'] = ('x3' in op or 'x4' in op)
            if 'atomic' in op and 'sc0' in text: k['dst'] = allr[0]
        return k
    if op.startswith('ds_'):
        k['kind'] = 'ds'
        allr = [regs_of(o) for o in ops]
        if 'read' in op or 'bpermute' in op or 'permute' in op or 'swizzle' in op:
            k['dst'] = allr[0]; k['src'] = sum(allr[1:], [])
        else:
            k['src'] = sum(allr, [])
        return k
    if op.startswith('s_'):
        k['kind'] = 'salu'
        if op == 's_nop': k['kind'] = 'nop'; k['n'] = int(ops[0], 0) + 1; return k
        if op.startswith('s_load') or op in ('s_memtime', 's_memrealtime'): k['kind'] = 'smem'
        if op.startswith('s_cbranch') or op in ('s_branch', 's_endpgm', 's_setpc_b64'): k['kind'] = 'branch'; return k
        if op in ('s_waitcnt', 's_barrier', 's_sleep', 's_setprio'): return k
        if op.startswith('s_cmp'):
            k['src'] = sum((regs_of(o) for o in ops), [])
        else:
            k['dst'] = regs_of(ops[0]) if ops else []; k['src'] = sum((regs_of(o) for o in ops[1:]), [])
            if 'saveexec' in op: k['dst'] += [('s', 'exec')]
        return k
    return k

def pad_hazards(lines):
    out = []
    def dist_back(pred, maxd):
        d = 0
        for text, c in reversed(out):
            if c['kind'] == 'label': continue
            if pred(c): return d
            d += c.get('n', 1) if c['kind'] == 'nop' else 1
            if d > maxd: return None
        return None
    nins = 0
    for text in lines:
        s = text.split(';')[0].strip()
        if not s:
            out.append((text, {'kind': 'label'})); continue
        c = classify(s)
        need = 0
        def req(pred, ws):
            nonlocal need
            d = dist_back(pred, ws)
            if d is not None and d < ws: need = max(need, ws - d)
        S = set(c['src']); D = set(c['dst'])
        vS = {r for r in S if r[0] in 'va'}; vD = {r for r in D if r[0] in 'va'}
        sS = {r for r in S if r[0] == 's'}
        kind = c['kind']
        if kind == 'mfma':
            req(lambda p: p['kind'] == 'valu' and set(p['dst']) & vS, 2)
            req(lambda p: p['kind'] == 'valu' and ('s', 'exec') in p['dst'], 4)
            AB = set(c['srcA']) | set(c['srcB']); C = set(c['srcC'])
            for ps, wAB, wC in ((8, 12, 10), (4, 8, 6)):
                req(lambda p: p['kind'] == 'mfma' and p['passes'] == ps and set(p['dst']) & AB, wAB)
                req(lambda p: p['kind'] == 'mfma' and p['passes'] == ps and (set(p['dst']) & C) and not (p['dst'] == c['srcC'] and p['passes'] == c['passes']), wC)
                req(lambda p: p['kind'] == 'mfma' and p['passes'] == ps and (set(p['dst']) & vD) and not (p['dst'] == c['srcC']), wC)
        if kind in ('valu', 'vmem', 'ds'):
            for ps, w in ((8, 12), (4, 8)):
                req(lambda p: p['kind'] == 'mfma' and p['passes'] == ps and set(p['dst']) & (vS | vD), w)
        if kind == 'valu':
            for ps, w in ((8, 7), (4, 3)):
                req(lambda p: p['kind'] == 'mfma' and p['passes'] == ps and set(p['srcC']) & vD, w)
            req(lambda p: p['kind'] == 'valu' and p.get('trans') and set(p['dst']) & vS and not c.get('trans_ok'), 1)
            req(lambda p: p['kind'] == 'vmem' and p.get('wide') and set(p['data']) & vD, 2)
            req(lambda p: p['kind'] == 'valu' and set(p['dst']) & sS, 2)
            if c.get('dpp'):
                req(lambda p: p['kind'] in ('valu',) and set(p['dst']) & vS, 2)
                req(lambda p: p['kind'] == 'valu' and ('s', 'exec') in p['dst'], 5)
            if c.get('permlane'):
                req(lambda p: p['kind'] == 'valu' and set(p['dst']) & vS, 2)
            if c.get('lane'):
                req(lambda p: p['kind'] == 'valu' and set(p['dst']) & vS, 1)
                req(lambda p: p['kind'] == 'valu' and ('s', 'exec') in p['dst'], 4)
            if 'sdwa' in c['op'] or 'op_sel' in s: pass
            req(lambda p: p['kind'] == 'valu' and p.get('sdwa_dst') and set(p['dst']) & vS, 1)
        if kind in ('vmem', 'ds'):
            req(lambda p: p['kind'] == 'vmem' and p.get('wide') and set(p['data']) & vD, 1)
        if kind == 'vmem':
            req(lambda p: p['kind'] == 'valu' and set(p['dst']) & sS, 5)
            if c.get('lds'):
                req(lambda p: p['kind'] == 'salu' and ('s', 'm0') in p['dst'], 1)
        if kind in ('salu', 'smem'):
            req(lambda p: p['kind'] == 'valu' and set(p['dst']) & sS, 2)
        while need > 0:
            n = min(need, 16)
            out.append(('  s_nop %d' % (n - 1), {'kind': 'nop', 'n': n, 'dst': [], 'src': []})); need -= n; nins += 1
        out.append((text, c))
    return [t for t, _ in out], nins

class Asm:
    def __init__(self):
        self.lines = []
        self.vm = []
        self.lg = []
        self.seen = set()
    def __call__(self, text, tag=None):
        for l in text.strip('\n').split('\n'):
            s = l.strip()
            if not s: continue
            self.lines.append(s if s.endswith(':') or s.startswith('.') else '  ' + s)
            op = s.split()[0]
            if tag is not None: self.seen.add(tag)
            if (op.startswith('buffer_') or op.startswith('global_')):
                self.vm.append(tag)
            elif op.startswith('ds_'):
                self.lg.append(tag)
            elif op == 's_waitcnt':
                m = re.search(r'vmcnt\((\d+)\)', s)
                if m:
                    n = int(m.group(1)); self.vm = self.vm[len(self.vm) - n:] if n < len(self.vm) and n > 0 else ([] if n == 0 else self.vm)
                m = re.search(r'lgkmcnt\((\d+)\)', s)
                if m:
                    n = int(m.group(1)); self.lg = self.lg[len(self.lg) - n:] if n < len(self.lg) and n > 0 else ([] if n == 0 else self.lg)
    def wait_vm(self, tag):
        assert tag in self.seen, 'waiting for a tag never issued: %s' % tag
        idx = [i for i, t in enumerate(self.vm) if t == tag]
        if not idx: return
        n = len(self.vm) - 1 - idx[-1]
        self('s_waitcnt vmcnt(%d)' % min(n, 63))
    def wait_lg(self, tag):
        assert tag in self.seen, 'waiting for a tag never issued: %s' % tag
        idx = [i for i, t in enumerate(self.lg) if t == tag]
        if not idx: return
        n = len(self.lg) - 1 - idx[-1]
        self('s_waitcnt lgkmcnt(%d)' % min(n, 15))
    def comment(self, s): self.lines.append('  ; ' + s)

def vr(i, n=1, p='v'):
    return '%s%d' % (p, i) if n == 1 else '%s[%d:%d]' % (p, i, i + n - 1)
def ar(i, n=1): return vr(i, n, 'a')
def sr(i, n=1): return vr(i, n, 's')

def kernel_header(name):
    return '.text\n.globl %s\n.p2align 8\n.type %s,@function\n%s:' % (name, name, name)

def kernel_desc(name, vgpr, accum, sgpr=102):
    return '''.section .rodata,"a"
.p2align 6
.amdhsa_kernel %s
  .amdhsa_next_free_vgpr %d
  .amdhsa_next_free_sgpr %d
  .amdhsa_accum_offset %d
  .amdhsa_group_segment_fixed_size 0
  .amdhsa_kernarg_size 120
  .amdhsa_user_sgpr_count 2
  .amdhsa_user_sgpr_kernarg_segment_ptr 1
  .amdhsa_system_sgpr_workgroup_id_x 1
  .amdhsa_float_denorm_mode_32 3
  .amdhsa_float_denorm_mode_16_64 3
.end_amdhsa_kernel''' % (name, vgpr, sgpr, accum)


import os
DIAG = int(os.environ.get('DIAG', '0'))
NKERN = int(os.environ.get('NKERN', '4'))
STAMP_OFF = 60*1024*1024
S_STAMP = 64
class Stamps:
    def __init__(self): self.n = 0
def stamp(a, st):
    if not DIAG: return
    assert st.n < 16
    a(('s_memtime' if DIAG == 2 else 's_memrealtime') + ' s[%d:%d]' % (S_STAMP + 2*st.n, S_STAMP + 2*st.n + 1))
    a.lg_smem = True
    st.n += 1
def stamp_flush(a, st, kidx, s_ws, s_wave=None, vtmp=250):
    if not DIAG: return
    stamp(a, st)
    a('s_waitcnt vmcnt(0) lgkmcnt(0)')
    stamp(a, st)
    a('s_waitcnt lgkmcnt(0)')
    a('s_lshl_b32 s96, s2, 8')
    if s_wave is not None:
        a('s_lshl_b32 s97, s%d, 6' % s_wave); a('s_add_u32 s96, s96, s97')
    a('s_add_u32 s96, s96, %d' % (STAMP_OFF + kidx*512*256))
    a('s_mov_b64 exec, 1')
    a('v_mov_b32 v%d, 0' % vtmp)
    for i in range(st.n):
        a('v_mov_b32 v%d, s%d' % (vtmp+1, S_STAMP + 2*i))
        a('buffer_store_dword v%d, v%d, s[%d:%d], s96 offen offset:%d' % (vtmp+1, vtmp, s_ws, s_ws+3, 4*i))
    a('s_waitcnt vmcnt(0)')
    if DIAG == 3:
        lab = 'DBG_SKIP_%d_%d' % (kidx, len(a.lines))
        a('s_cmp_lg_u32 s96, %d' % (STAMP_OFF + kidx*512*256))
        a('s_cbranch_scc1 %s' % lab)
        a('s_load_dwordx2 s[98:99], s[0:1], 104')
        a('s_waitcnt lgkmcnt(0)')
        a('s_add_u32 s98, s98, %d' % (512*(NKERN-1-kidx)))
        a('s_addc_u32 s99, s99, 0')
        for i, k in enumerate((0, 1, st.n-2, st.n-1)):
            a('v_mov_b32 v%d, s%d' % (vtmp+1, S_STAMP + 2*k))
            a('global_store_dword v%d, v%d, s[98:99] offset:%d' % (vtmp, vtmp+1, 16*kidx + 4*i))
        a('s_waitcnt vmcnt(0)')
        a('%s:' % lab)
```

```python
from asmlib import *

def slots_of(text):
    op = text.split()[0]
    if op in TRANS: return 2
    if op == 'ds_write_b128': return 5
    if op.startswith('ds_write'): return 2
    if op.startswith('buffer_store') or op.startswith('global_store'): return 4
    if op.startswith('buffer_load') or op.startswith('global_load'):
        return 4
    return 1

class Stream:
    def __init__(self, name): self.name = name; self.q = []; self.last = -10**9
    def ins(self, text, tag=None, ready=0, delay=0, group=None):
        self.q.append((lambda a, t=text, g=tag: a(t, g), slots_of(text), ready, delay, group))
    def fn(self, f, cost=1, ready=0, delay=0, group=None):
        self.q.append((f, cost, ready, delay, group))

class Sched:
    GAP = 6
    def __init__(self, a):
        self.a = a; self.mf = 0; self.streams = []; self.used = 0
    def stream(self, name):
        s = Stream(name); self.streams.append(s); return s
    def mfma(self, text):
        self.fill()
        self.a(text); self.mf += 1; self.used = 0
    def must(self, text, tag=None):
        self.a(text, tag); self.used += slots_of(text)
    def must_fn(self, f):
        n = len(self.a.lines); f(self.a)
        for l in self.a.lines[n:]:
            s = l.strip()
            if s and not s.endswith(':') and not s.startswith(';'): self.used += slots_of(s)
    def fill(self, reserve=0):
        prog = True
        while prog:
            prog = False
            for s in self.streams:
                if not s.q: continue
                f, cost, ready, delay, group = s.q[0]
                if ready > self.mf or s.last + delay > self.mf: continue
                room = self.GAP - reserve - self.used
                if cost > room and not (cost > self.GAP and self.used == 0): continue
                s.q.pop(0); f(self.a); self.used += cost; s.last = self.mf; prog = True
                break
    def drain(self, group=None, stream=None):
        for s in self.streams:
            if stream is not None and s is not stream: continue
            if group is None: n = len(s.q)
            else:
                idx = [i for i, it in enumerate(s.q) if it[4] == group]
                n = idx[-1] + 1 if idx else 0
            for _ in range(n):
                f, cost, ready, delay, g = s.q.pop(0)
                assert ready <= self.mf, 'draining unready filler %s' % s.name
                f(self.a); self.used += cost; s.last = self.mf
            if n and group is not None: self.note = (group, n)
    def pending(self): return {s.name: sum(it[1] for it in s.q) for s in self.streams}
```

```python
import sys, os, struct
from asmlib import *
from sched import *
def P(name, dflt): return int(os.environ.get(name, dflt))
def f32bits(x): return struct.unpack('<I', struct.pack('<f', x))[0]
PFX = "recurrent_scan__ssm_conv_s5__dense_activation_silu__prompt"
LOG2E = 1.4426950408889634

WSB      = P('WSB', 0)
NONCE_OFF= 0
LNF_OFF  = 4096
HFL_OFF  = 8192
CFL_OFF  = 12288
STAT_OFF = 16384
AGG_OFF  = 65536
XF_OFF   = 1024*1024
CF_OFF   = 4*1024*1024
HF_OFF   = 8*1024*1024
HF_RB    = 360*1024
PF_OFF   = 32*1024*1024
PY_OFF   = 48*1024*1024
WS_USED  = 64*1024*1024
A_X, A_LRE, A_LIM, A_BRE, A_BIM, A_CRE, A_CIM, A_LDT, A_DSK, B_X, B_W1, B_W2, D_OUT, D_DBG, D_WS = [8*i for i in range(15)]

SLAB = 73728
E_OFF = 2*SLAB
TB_OFF = E_OFF + 2048
LDS_BYTES = TB_OFF + 8192

def srd(a, s, lo, nbytes):
    a('s_mov_b32 s%d, s%d' % (s, lo))
    a('s_and_b32 s%d, s%d, 0xffff' % (s+1, lo+1))
    a('s_mov_b32 s%d, 0x%x' % (s+2, nbytes))
    a('s_mov_b32 s%d, 0x00020000' % (s+3))

S_WS = 8; S_W1 = 12; S_BRE = 16; S_BIM = 20; S_WT = 24
S_X = 16; S_OUT = 20
S_G = 28; S_N = 29; S_W = 30; S_XB = 31; S_T = 32; S_M0W = 33
S_P = 34
S_HB = 37; S_T2 = 38; S_BB = 39; S_NL2E = 40; S_TX = 41; S_TF = 42; S_CNT = 43; S_HS = 44; S_NONCE = 45
S_MT = 46; S_NT = 47; S_SP = 48; S_WB = 49; S_WSTR = 50; S_MW = 51; S_T3 = 52; S_T4 = 53; S_MASK = 54; S_TEAM = 55
S_ORD = 56
S_HBB = S_HB; S_HN = S_TX; S_PB = S_BB
SP0 = 96

V_XO = 1; V_WD = 3; V_BD = 4; V_TR = 5; V_BR = 7; V_HO = 11; V_T0 = 13
V_XV = 16; V_ACC = 48; V_WF = 176; V_ET = 200; V_SC = 208
V_W2D = 7
def xfrag(blk, ks):
    idx = (ks*2 + blk)*4
    return ar(idx, 4) if idx < 256 else vr(V_XV + idx - 256, 4)
def acc(s, blk): return V_ACC + 32*s + 16*blk
(R_LR, R_LI, R_CR, R_CI, R_P32R, R_P32I, R_P256R, R_P256I, R_T1, R_T2, R_T3, R_T4, R_ER, R_EI, R_TG0, R_TG1, R_EA, R_SIDX, R_AO, R_TW) = range(V_SC, V_SC+20)
R_BUF = V_SC + 20
R_TWA, R_TRD, R_P512R, R_P512I, R_GH, R_AW = range(244, 250)
V_PL = 250
V_PA = 252
assert R_BUF % 4 == 0 and R_ER % 4 == 0

WSR = 's[%d:%d]' % (S_WS, S_WS+3)
label_n = [0]
def poll_loop(a, loads, check, sleep=1):
    label_n[0] += 1; L = 'POLL%d' % label_n[0]
    a('s_mov_b32 s%d, 0' % S_CNT)
    a(L + ':')
    check(a)
    a('s_cbranch_scc1 %s_OK' % L)
    a('s_add_u32 s%d, s%d, 1' % (S_CNT, S_CNT))
    a('s_cmp_gt_u32 s%d, %d' % (S_CNT, P('SPIN', 20000)))
    a('s_cbranch_scc1 %s_OK' % L)
    a('s_sleep %d' % sleep)
    save = list(a.vm)
    loads(a)
    a('s_waitcnt vmcnt(0)')
    a.vm = save
    a('s_branch %s' % L)
    a(L + '_OK:')

def chk_all_eq(reg):
    def f(a):
        a('v_cmp_ne_u32 vcc, s%d, v%d' % (S_NONCE, reg))
        a('s_nop 1')
        a('s_cmp_eq_u64 vcc, 0')
    return f

def epi_ffn(E, s, pi, c, ready, blks=(0, 1)):
    grp = ('acc', s)
    els = [(blk, j) for blk in blks for j in range(16)]
    n = len(els)
    r = lambda e: acc(s, els[e][0]) + els[e][1]
    t = lambda e: V_ET + (e % 8)
    I = lambda text, tag=None: E.ins(text, tag, ready, 0, grp)
    I('s_lshl_b32 s%d, s%d, 5' % (S_T2, S_P+pi))
    I('s_add_u32 s%d, s%d, s%d' % (S_T2, S_T2, S_HB))
    for step in range(n + 6):
        e = step
        if e < n: I('v_mul_f32 v%d, s%d, v%d' % (t(e), S_NL2E, r(e)))
        e = step - 1
        if 0 <= e < n: I('v_exp_f32 v%d, v%d' % (t(e), t(e)))
        e = step - 2
        if 0 <= e < n: I('v_add_f32 v%d, 1.0, v%d' % (t(e), t(e)))
        e = step - 3
        if 0 <= e < n: I('v_rcp_f32 v%d, v%d' % (t(e), t(e)))
        e = step - 4
        if 0 <= e < n: I('v_mul_f32 v%d, v%d, v%d' % (t(e), t(e), r(e)))
        e = step - 5
        if 0 <= e < n and e % 2 == 1:
            base = r(e - e % 8)
            I('v_cvt_pk_bf16_f32 v%d, v%d, v%d' % (base + (e % 8)//2, t(e-1), t(e)))
            if e % 8 == 7:
                blk = els[e][0]; fr = (e % 16)//8
                I('buffer_store_dwordx4 %s, v%d, %s, s%d offen offset:%d sc1' % (vr(base, 4), V_HO+blk, WSR, S_T2, c*2048 + fr*1024), 'st')

def cmul_add(F, dr, di, ar_, ai, br, bi, cr, ci, ready=0):
    F.ins('v_fma_f32 v%d, -v%d, v%d, v%d' % (R_T1, ai, bi, cr), None, ready)
    F.ins('v_fma_f32 v%d, v%d, v%d, v%d' % (R_T2, ai, br, ci), None, ready)
    F.ins('v_fma_f32 v%d, v%d, v%d, v%d' % (dr, ar_, br, R_T1), None, ready)
    F.ins('v_fma_f32 v%d, v%d, v%d, v%d' % (di, ar_, bi, R_T2), None, ready)

def csq(F, dr, di, sr_, si):
    F.ins('v_mul_f32 v%d, v%d, v%d' % (R_T1, si, si))
    F.ins('v_mul_f32 v%d, v%d, v%d' % (R_T2, sr_, si))
    F.ins('v_fma_f32 v%d, v%d, v%d, -v%d' % (dr, sr_, sr_, R_T1))
    F.ins('v_add_f32 v%d, v%d, v%d' % (di, R_T2, R_T2))

def scan_tables(F):
    F.ins('v_lshlrev_b32 v%d, 16, v%d' % (R_T3, R_T3))
    F.ins('v_lshlrev_b32 v%d, 16, v%d' % (R_T4, R_T4))
    F.ins('v_lshlrev_b32 v%d, 16, v%d' % (R_ER, R_ER))
    F.ins('v_mul_f32 v%d, 0x%08x, v%d' % (R_ER, f32bits(LOG2E), R_ER))
    F.ins('v_exp_f32 v%d, v%d' % (R_ER, R_ER))
    F.ins('v_cvt_pk_bf16_f32 v%d, v%d, v%d' % (R_ER, R_ER, R_ER))
    F.ins('v_lshlrev_b32 v%d, 16, v%d' % (R_ER, R_ER))
    F.ins('v_mul_f32 v%d, v%d, v%d' % (R_T1, R_ER, R_T3))
    F.ins('v_mul_f32 v%d, v%d, v%d' % (R_T2, R_ER, R_T4))
    F.ins('v_mul_f32 v%d, 0x%08x, v%d' % (R_T1, f32bits(LOG2E), R_T1))
    F.ins('v_exp_f32 v%d, v%d' % (R_T1, R_T1))
    F.ins('v_mul_f32 v%d, 0.15915494, v%d' % (R_T2, R_T2))
    F.ins('v_rndne_f32 v%d, v%d' % (R_EI, R_T2))
    F.ins('v_sub_f32 v%d, v%d, v%d' % (R_T2, R_T2, R_EI))
    F.ins('v_cos_f32 v%d, v%d' % (R_LR, R_T2))
    F.ins('v_sin_f32 v%d, v%d' % (R_LI, R_T2))
    F.ins('v_mul_f32 v%d, v%d, v%d' % (R_LR, R_LR, R_T1))
    F.ins('v_mul_f32 v%d, v%d, v%d' % (R_LI, R_LI, R_T1))
    F.ins('v_add_f32 v%d, -1.0, v%d' % (R_ER, R_LR))
    F.ins('v_mul_f32 v%d, v%d, v%d' % (R_T1, R_T3, R_T3))
    F.ins('v_fmac_f32 v%d, v%d, v%d' % (R_T1, R_T4, R_T4))
    F.ins('v_rcp_f32 v%d, v%d' % (R_T1, R_T1))
    F.ins('v_mul_f32 v%d, v%d, v%d' % (R_CR, R_ER, R_T3))
    F.ins('v_fmac_f32 v%d, v%d, v%d' % (R_CR, R_LI, R_T4))
    F.ins('v_mul_f32 v%d, v%d, v%d' % (R_CI, R_LI, R_T3))
    F.ins('v_fma_f32 v%d, -v%d, v%d, v%d' % (R_CI, R_ER, R_T4, R_CI))
    F.ins('v_mul_f32 v%d, v%d, v%d' % (R_CR, R_CR, R_T1))
    F.ins('v_mul_f32 v%d, v%d, v%d' % (R_CI, R_CI, R_T1))
    csq(F, R_P32R, R_P32I, R_LR, R_LI)
    for _ in range(4): csq(F, R_P32R, R_P32I, R_P32R, R_P32I)
    csq(F, R_P256R, R_P256I, R_P32R, R_P32I)
    for _ in range(2): csq(F, R_P256R, R_P256I, R_P256R, R_P256I)
    csq(F, R_P512R, R_P512I, R_P256R, R_P256I)
    F.ins('v_mov_b32 v%d, s%d' % (R_TG0, S_NONCE))
    F.ins('v_mov_b32 v%d, s%d' % (R_TG1, S_NONCE))

def ureg(part, tt): return acc(part, tt >> 4) + (tt & 15)

def scan_early(F, ready):
    cmul_add(F, R_ER, R_EI, R_LR, R_LI, ureg(0, 0), ureg(1, 0), ureg(0, 1), ureg(1, 1), ready)
    for tt in range(2, 32):
        cmul_add(F, R_ER, R_EI, R_LR, R_LI, R_ER, R_EI, ureg(0, tt), ureg(1, tt), ready)
    F.ins('ds_write_b64 v%d, %s' % (R_EA, vr(R_ER, 2)), 'ew')
    F.fn(lambda a: (a.wait_lg('ew'), a('s_barrier')), 2, 0, 2)
    for n in range(4):
        F.ins('ds_read_b128 %s, v%d offset:%d' % (vr(R_BUF+4*n, 4), R_TW, E_OFF % 65536 + 16*n), 'er')
    F.fn(lambda a: a.wait_lg('er'), 1, 0, 4)
    cmul_add(F, R_ER, R_EI, R_P32R, R_P32I, R_BUF, R_BUF+1, R_BUF+2, R_BUF+3)
    for s in range(2, 8):
        cmul_add(F, R_ER, R_EI, R_P32R, R_P32I, R_ER, R_EI, R_BUF+2*s, R_BUF+2*s+1)
    F.ins('s_add_u32 s%d, s%d, %d' % (S_TF, S_BB, 8*9216))
    F.ins('buffer_store_dwordx4 %s, v%d, %s, s%d offen sc1' % (vr(R_ER, 4), R_AW, WSR, S_TF), 'st')
    for tt in range(32):
        ur, ui = ureg(0, tt), ureg(1, tt)
        F.ins('v_mul_f32 v%d, v%d, v%d' % (R_T3, R_CI, ur))
        F.ins('v_mul_f32 v%d, v%d, v%d' % (ur, R_CR, ur))
        F.ins('v_fma_f32 v%d, -v%d, v%d, v%d' % (ur, R_CI, ui, ur))
        F.ins('v_fma_f32 v%d, v%d, v%d, v%d' % (ui, R_CR, ui, R_T3))

def agg_insts():
    out = []
    for m in range(4):
        out.append('s_add_u32 s%d, s%d, %d' % (S_TF, S_BB, 2*m*9216))
        out.append('buffer_load_dwordx4 %s, v%d, %s, s%d offen sc1' % (vr(R_BUF+4*m, 4), R_AO, WSR, S_TF))
    return out
def agg_check(a):
    for m in range(4):
        a('v_cmp_le_u32 vcc, %d, v%d' % (8-2*m, R_GH))
        a('v_cndmask_b32 v%d, v%d, v%d, vcc' % (R_BUF+4*m+3, R_TG0, R_BUF+4*m+2))
    a('v_xor_b32 v%d, v%d, v%d' % (R_T1, R_BUF+3, R_BUF+7))
    a('v_xor_b32 v%d, v%d, v%d' % (R_T2, R_BUF+11, R_BUF+15))
    a('v_xor_b32 v%d, v%d, v%d' % (R_T3, R_BUF+3, R_TG0))
    a('v_xor_b32 v%d, v%d, v%d' % (R_T4, R_BUF+11, R_TG0))
    a('v_or3_b32 v%d, v%d, v%d, v%d' % (R_T1, R_T1, R_T2, R_T3))
    a('v_or_b32 v%d, v%d, v%d' % (R_T1, R_T1, R_T4))
    a('v_cmp_ne_u32 vcc, 0, v%d' % R_T1)
    a('s_nop 1')
    a('s_cmp_eq_u64 vcc, 0')

def scan_late(F, ready_poll):
    for t in agg_insts(): F.ins(t, 'poll', ready_poll)
    F.fn(lambda a: (a.wait_vm('poll'), poll_loop(a, lambda a: [a(t) for t in agg_insts()], agg_check)), 5, 0, P('POLLD', 40))
    for m in range(4):
        F.ins('v_cmp_le_u32 s[60:61], %d, v%d' % (8-2*m, R_GH))
        F.ins('v_cndmask_b32 v%d, 0, v%d, s[60:61]' % (R_BUF+4*m, R_BUF+4*m))
        F.ins('v_cndmask_b32 v%d, 0, v%d, s[60:61]' % (R_BUF+4*m+1, R_BUF+4*m+1))
    cmul_add(F, R_ER, R_EI, R_P512R, R_P512I, R_BUF, R_BUF+1, R_BUF+4, R_BUF+5)
    for m in range(2, 4):
        cmul_add(F, R_ER, R_EI, R_P512R, R_P512I, R_ER, R_EI, R_BUF+4*m, R_BUF+4*m+1)
    for n in range(4):
        F.ins('ds_read_b128 %s, v%d offset:%d' % (vr(R_BUF+4*n, 4), R_TW, E_OFF % 65536 + 16*n), 'er')
    F.ins('v_mov_b32 v%d, v%d' % (R_T3, R_ER)); F.ins('v_mov_b32 v%d, v%d' % (R_T4, R_EI))
    F.ins('v_permlane32_swap_b32 v%d, v%d' % (R_ER, R_T3)); F.ins('v_permlane32_swap_b32 v%d, v%d' % (R_EI, R_T4))
    cmul_add(F, R_ER, R_EI, R_P256R, R_P256I, R_ER, R_EI, R_T3, R_T4)
    F.fn(lambda a: a.wait_lg('er'), 1, 0, 2)
    for s in range(7):
        F.ins('v_cmp_lt_u32 s[60:61], %d, v%d' % (s, R_SIDX))
        cmul_add(F, R_T3, R_T4, R_P32R, R_P32I, R_ER, R_EI, R_BUF+2*s, R_BUF+2*s+1)
        F.ins('v_cndmask_b32 v%d, v%d, v%d, s[60:61]' % (R_ER, R_ER, R_T3))
        F.ins('v_cndmask_b32 v%d, v%d, v%d, s[60:61]' % (R_EI, R_EI, R_T4))
    F.ins('v_mul_f32 v%d, v%d, v%d' % (R_T3, R_CI, R_ER))
    F.ins('v_mul_f32 v%d, v%d, v%d' % (R_ER, R_CR, R_ER))
    F.ins('v_fma_f32 v%d, -v%d, v%d, v%d' % (R_ER, R_CI, R_EI, R_ER))
    F.ins('v_fma_f32 v%d, v%d, v%d, v%d' % (R_EI, R_CR, R_EI, R_T3))
    pr, pi_ = R_ER, R_EI
    def pack(part, blk):
        b = acc(part, blk); neg = '-' if part else ''
        for k in range(8):
            F.ins('v_cvt_pk_bf16_f32 v%d, %sv%d, %sv%d' % (b+k, neg, b+2*k, neg, b+2*k+1))
        for u in range(2):
            F.ins('ds_write_b128 v%d, %s offset:%d' % (R_TWA, vr(b+4*u, 4), 16*u), 'tw')
        for ph in range(2):
            for u in range(2):
                F.ins('ds_read_b64_tr_b16 %s, v%d offset:%d' % (vr(b+8+4*ph+2*u, 2), R_TRD, ph*1024 + u*256), 'tr%d%d' % (part, blk))
    def store(part, blk, dl):
        b = acc(part, blk) + 8
        F.ins('s_add_u32 s%d, s%d, %d' % (S_TF, S_HS, part*36*1024))
        F.fn(lambda a: a.wait_lg('tr%d%d' % (part, blk)), 1, 0, dl)
        for ph in range(2):
            F.ins('buffer_store_dwordx4 %s, v%d, %s, s%d offen offset:%d sc1' % (vr(b+4*ph, 4), V_HO+blk, WSR, S_TF, ph*1024), 'st')
    for tt in range(32):
        ur, ui = ureg(0, tt), ureg(1, tt)
        cmul_add(F, ur, ui, R_LR, R_LI, pr, pi_, ur, ui)
        pr, pi_ = ur, ui
        if tt == 16: pack(0, 0); pack(1, 0)
        if tt == 24: store(0, 0, 0); store(1, 0, 0)
    pack(0, 1); pack(1, 1); store(0, 1, 2); store(1, 1, 2)

def dma_w1(a, slab, pi, n, tag, vreg=V_WD, dm=0):
    a('s_add_u32 m0, s%d, %d' % (S_M0W, slab*SLAB + n*4096 + dm))
    a('s_add_u32 s%d, s%d, %d' % (S_T, S_P+pi, n*32*9216))
    a('buffer_load_dwordx4 v%d, s[%d:%d], s%d offen lds' % (vreg, S_W1, S_W1+3, S_T), tag)

def dma_b(a, kb, part, tag, vreg=V_BD, dm=0):
    a('s_add_u32 m0, s%d, %d' % (S_M0W, kb*8192 + part*4096 + dm))
    a('s_movk_i32 s%d, %d' % (S_T, kb*128))
    s = S_BIM if part else S_BRE
    a('buffer_load_dwordx4 v%d, s[%d:%d], s%d offen lds' % (vreg, s, s+3, S_T), tag)

def xload(a, ks, blk):
    if ks % 4 == 0 and blk == 0: a('s_add_u32 s%d, s%d, %d' % (S_TX, S_XB, (ks//4)*4096))
    a('buffer_load_dwordx4 %s, v%d, %s, s%d offen offset:%d sc1' % (xfrag(blk, ks), V_XO+blk, WSR, S_TX, (ks % 4)*1024), 'x%d' % ks)

def w2_slot(ks):
    u = ks // 2
    base = (SLAB if (u // 3) % 2 == 0 else 0) + (u % 3)*6144
    return base + (ks % 2)*3072
def w2_dma(ks):
    out = ['s_add_u32 m0, s%d, %d' % (S_MW, w2_slot(ks))]
    for n in range(3):
        out.append('buffer_load_dwordx4 v%d, s[%d:%d], s%d offen offset:%d sc1 lds' % (V_W2D+n, S_WT, S_WT+3, S_WB, n*1024))
    out.append('s_add_u32 s%d, s%d, s%d' % (S_WB, S_WB, S_WSTR))
    return out

def phaseB_setup(F, ready):
    I = lambda t: F.ins(t, None, ready)
    def ld(a):
        a('s_load_dwordx2 s[%d:%d], s[0:1], %d' % (SP0, SP0+1, B_W2))
    F.fn(ld, 1, ready)
    I('s_and_b32 s3, s2, 7'); I('s_lshr_b32 s4, s2, 3')
    I('s_mul_i32 s5, s4, 43'); I('s_lshr_b32 s5, s5, 8')
    I('s_mul_i32 s6, s5, 6'); I('s_sub_u32 s%d, s4, s6' % S_NT)
    I('s_mul_i32 s3, s3, 5'); I('s_add_u32 s3, s3, s5')
    I('s_lshr_b32 s%d, s3, 3' % S_SP); I('s_and_b32 s%d, s3, 7' % S_MT)
    I('s_mul_i32 s%d, s%d, 18432' % (S_MW, S_W))
    I('s_mul_i32 s3, s%d, 1152' % S_SP); I('s_mul_i32 s4, s%d, 288' % S_W); I('s_add_u32 s3, s3, s4')
    I('s_mul_i32 s3, s3, 1152'); I('s_mul_i32 s4, s%d, 192' % S_NT); I('s_add_u32 s3, s3, s4')
    I('s_lshl_b32 s4, s%d, 2' % S_NT); I('s_add_u32 s4, s4, s%d' % S_W); I('s_mul_i32 s4, s4, 55296'); I('s_add_u32 s4, s4, %d' % CF_OFF)
    for n in range(3):
        I('v_add_u32 v13, %d, v0' % (64*n))
        I('v_mul_u32_u24 v14, 0x1556, v13'); I('v_lshrrev_b32 v14, 16, v14')
        I('v_mul_u32_u24 v15, 960, v14')
        I('v_lshl_add_u32 v%d, v0, 4, v15' % (V_W2D+n))
    def sel(a):
        a('s_waitcnt lgkmcnt(0)')
        a('s_cmp_eq_u32 s%d, 4' % S_SP)
        a('s_cselect_b32 s%d, s4, s3' % S_WB)
        a('s_cselect_b32 s%d, 3072, s%d' % (S_WSTR, S_WSTR))
        a('s_cselect_b32 s%d, s%d, s%d' % (S_WT, S_WS, SP0))
        a('s_cselect_b32 s%d, s%d, s%d' % (S_WT+1, S_WS+1, SP0+1))
        a('s_cselect_b32 s%d, s%d, s%d' % (S_WT+2, S_WS+2, S_WT+2))
        a('s_cselect_b64 vcc, -1, 0')
        a('s_and_b32 s%d, s%d, 0xffff' % (S_WT+1, S_WT+1))
        a('v_lshlrev_b32 v13, 4, v0')
        for n in range(3): a('v_cndmask_b32 v%d, v%d, v13, vcc' % (V_W2D+n, V_W2D+n))
    I('s_mov_b32 s%d, %d' % (S_WSTR, 16*1152)); I('s_mov_b32 s%d, %d' % (S_WT+2, 4608*1152)); I('s_mov_b32 s%d, 0x00020000' % (S_WT+3))
    F.fn(sel, 5, ready, 4)
    I('v_min_u32 v%d, 47, v0' % V_PA); I('v_lshlrev_b32 v%d, 2, v%d' % (V_PA, V_PA)); I('s_mov_b32 s%d, %d' % (S_T3, CFL_OFF))
    ldc = 'buffer_load_dword v%d, v%d, %s, s%d offen sc1' % (V_PL, V_PA, WSR, S_T3)
    F.ins(ldc, 'cfl', ready)
    F.fn(lambda a: (a.wait_vm('cfl'), poll_loop(a, lambda a: a(ldc), chk_all_eq(V_PL))), 5, 0, 30)

def phaseA(a, mixed, st):
    S = Sched(a)
    SC = S.stream('scan'); E = S.stream('epi'); B = S.stream('bpre')
    pend = [lambda a, ks=ks, blk=blk: xload(a, ks, blk) for ks in range(36) for blk in range(2)]
    for _ in range(P('XBURST', 16)): pend.pop(0)(a)
    a('s_barrier')
    if mixed: scan_tables(SC)
    frs = []
    for ks in range(36):
        for c in range(2): frs.append(('p1', 0, ks, c))
    for ci in range(4):
        for ks in range(36): frs.append(('c', ci, ks, ci & 1))
    consumed = [0]; trbase = [0, 0]; reads = []
    def pre(n):
        kind, ci, ks, c = frs[n]
        def f(a):
            if kind == 'p1' and mixed and ks == 32 and c == 0:
                for r in range(4): a('v_add_u32 v%d, 0x10000, v%d' % (V_BR+r, V_BR+r))
            if kind == 'c' and ci == 0 and ks == 0:
                a('s_waitcnt lgkmcnt(0)'); a('s_barrier')
                pend.extend([lambda a, n=n: dma_w1(a, 0, 2, n, 'w2') for n in range(18)])
            if kind == 'c' and ci == 2 and ks == 0:
                assert not pend
                a.wait_vm('w2'); a('s_waitcnt lgkmcnt(0)'); a('s_barrier')
            if not (kind == 'p1' and mixed):
                slab = 0 if kind == 'p1' else (1 if ci < 2 else 0)
                bias = slab*SLAB + (36864 if ks >= 18 else 0)
                if trbase[c] != bias:
                    a('v_add_u32 v%d, 0x%x, v%d' % (V_TR+c, (bias - trbase[c]) & 0xffffffff, V_TR+c)); trbase[c] = bias
        return f
    for n, (kind, ci, ks, c) in enumerate(frs):
        dst = V_WF + 4*(n % 6); tag = 'f%d' % n
        if kind == 'p1' and mixed:
            reads.append((n, lambda a, n=n, dst=dst, ks=ks, c=c, tag=tag: (pre(n)(a), a('ds_read_b128 %s, v%d offset:%d' % (vr(dst, 4), V_BR + (ks & 3), ((ks >> 2)*8192 + c*4096) % 65536), tag))))
        else:
            off = (ks % 18)*2048
            reads.append((n, lambda a, n=n, dst=dst, c=c, off=off, tag=tag: (pre(n)(a), a('ds_read_b64_tr_b16 %s, v%d offset:%d' % (vr(dst, 2), V_TR+c, off), tag))))
            reads.append((n, lambda a, dst=dst, c=c, off=off, tag=tag: a('ds_read_b64_tr_b16 %s, v%d offset:%d' % (vr(dst+2, 2), V_TR+c, off+512), tag)))
    def issue_reads(quota):
        while reads and quota > 0 and reads[0][0] < consumed[0] + 6:
            S.must_fn(reads.pop(0)[1]); quota -= 1
    def issued(n): return not reads or reads[0][0] > n
    accset = [2, 3, 2, 3] if mixed else [2, 3, 0, 1]
    issue_reads(100)
    n = 0
    while n < len(frs):
        kind, ci, ks, c = frs[n]
        if kind == 'p1' and ks == 1 and c == 0: stamp(a, st)
        if kind == 'c' and ks == 0:
            if ci in (0, 2): stamp(a, st)
            S.drain(('acc', accset[ci]))
            rdy = S.mf + 2
            if ci == 0:
                if mixed:
                    scan_early(SC, rdy); scan_late(SC, S.mf + P('POLLAT', 130))
                else:
                    epi_ffn(E, 0, 0, 0, rdy); epi_ffn(E, 1, 0, 1, rdy)
            else:
                epi_ffn(E, accset[ci-1], 1 + (ci-1)//2, (ci-1) & 1, rdy)
            if ci == 1:
                S.streams = [E, SC, B]
            if ci == 2:
                phaseB_setup(B, rdy); S.streams = [B, E, SC]
            if ci == 3:
                for k2 in range(6):
                    for t in w2_dma(k2): B.ins(t, 'v%d' % k2, S.mf + P('W2AT', 10) + 8*k2)
                S.streams = [B, SC, E]
        while not issued(n): issue_reads(1)
        S.fill(reserve=2 if kind == 'p1' and c == 0 else 1)
        if kind == 'p1':
            if c == 0:
                S.must_fn(lambda a: a.wait_vm('x%d' % ks))
                S.must_fn(lambda a: a.wait_lg('f%d' % (n+1) if issued(n+1) else 'f%d' % n))
            else: S.must_fn(lambda a: a.wait_lg('f%d' % n))
        else:
            if ks % 2 == 0 and n + 1 < len(frs) and issued(n+1): S.must_fn(lambda a: a.wait_lg('f%d' % (n+1)))
            S.must_fn(lambda a: a.wait_lg('f%d' % n))
        for blk in range(2):
            sset = c if kind == 'p1' else accset[ci]
            d = vr(acc(sset, blk), 16); w = vr(V_WF + 4*(n % 6), 4); x = xfrag(blk, ks)
            A, Bo = (x, w) if (mixed and kind == 'p1') else (w, x)
            S.mfma('v_mfma_f32_32x32x16_bf16 %s, %s, %s, %s' % (d, A, Bo, d if ks else '0'))
            if blk == 1: consumed[0] = n + 1
            issue_reads(1)
            if pend and blk == 0: S.must_fn(pend.pop(0))
        n += 1
    sys.stderr.write('phaseA mixed=%d pending at end: %s\n' % (mixed, S.pending()))
    stamp(a, st)
    S.mf += 1000
    S.drain(stream=B)
    a('s_barrier')
    epi_ffn(E, accset[3], 2, 1, 0)
    dm = [(t, 'v%d' % k2) for k2 in range(6, 12) for t in w2_dma(k2)]
    q = SC.q + E.q; SC.q = []; E.q = []
    for i, it in enumerate(q):
        it[0](a)
        if i % 6 == 5 and dm:
            t, tg = dm.pop(0); a(t, tg)
    for t, tg in dm: a(t, tg)
    stamp(a, st)

VB_HO = 1; VB_O = 2; VB_RD = 5; VB_RW = 6; VB_RR = 10; VB_PO = 13; VB_T = 14
NH = 26
VB_H = 16; VB_ACC = VB_H + 4*NH; VB_RB = VB_ACC + 96
assert VB_RB + 40 <= 256
A_XX = 216
RED = 36864
def wfrag(ks, dt): return ar((ks*3 + dt)*4, 4)
def hslot(n): return VB_H + 4*(n % NH)
def accr(s, dt): return VB_ACC + 48*s + 16*dt

def w2_read(a, ks, ssm):
    sl = w2_slot(ks); hi = sl >= SLAB
    for dt in range(3):
        base = (ks*3 + dt)*4
        reg = VB_RD if hi else VB_RW
        off = sl - (SLAB if hi else 0)
        if ssm:
            a('ds_read_b128 %s, v%d offset:%d' % (ar(base, 4), reg, off + dt*1024), 'wr%d' % ks)
        else:
            a('ds_read_b64_tr_b16 %s, v%d offset:%d' % (ar(base, 2), reg, off + dt*64), 'wr%d' % ks)
            a('ds_read_b64_tr_b16 %s, v%d offset:%d' % (ar(base+2, 2), reg, off + dt*64 + 1536), 'wr%d' % ks)

def hload(a, n):
    i, ks = divmod(n, 18)
    if ks == 0:
        a('s_mul_i32 s%d, s%d, %d' % (S_HN, S_ORD+i, HF_RB)); a('s_add_u32 s%d, s%d, s%d' % (S_HN, S_HN, S_HBB))
    elif ks % 4 == 0: a('s_add_u32 s%d, s%d, 4096' % (S_HN, S_HN))
    a('buffer_load_dwordx4 %s, v%d, %s, s%d offen offset:%d sc1' % (vr(hslot(n), 4), VB_HO, WSR, S_HN, (ks % 4)*1024), 'h%d' % n)

def reduce_fill(R, i, ready, send, ssm, dl=1):
    s = i & 1; grp = ('acc', s); buf = s*RED
    for q in range(1, 4):
        for dt in range(3):
            for u in range(2):
                R.ins('ds_write_b64 v%d, %s offset:%d' % (VB_RW, vr(accr(s, dt) + 4*q + 2*u, 2), buf + (q-1)*3072 + dt*1024 + u*512), 'rw%d' % i, ready, 0, grp)
    R.fn(lambda a: (a.wait_lg('rw%d' % i), a('s_barrier')), 2, 0, 3*dl)
    for q in range(1, 4):
        for dt in range(3):
            for u in range(2):
                R.ins('ds_read_b64 %s, v%d offset:%d' % (vr(VB_RB + ((q-1)*3+dt)*4 + 2*u, 2), VB_RR+q-1, buf + dt*1024 + u*512), 'rr%d' % i)
    R.fn(lambda a: a.wait_lg('rr%d' % i), 1, 0, 4*dl)
    for k in range(12):
        own = accr(s, k//4) + k % 4
        R.ins('v_add_f32 v%d, v%d, v%d' % (VB_RB+k, VB_RB+k, own), None, 0, 0, grp)
        R.ins('v_add_f32 v%d, v%d, v%d' % (VB_RB+12+k, VB_RB+12+k, VB_RB+24+k))
    SB = VB_RB + 24
    for k in range(12):
        dst = SB + 4*(k//3) + k % 3 if (send and ssm) else VB_RB + k
        R.ins('v_add_f32 v%d, v%d, v%d' % (dst, VB_RB+k, VB_RB+12+k))
    if send:
        ng = 4 if ssm else 2
        if not ssm:
            for p in range(6): R.ins('v_cvt_pk_bf16_f32 v%d, v%d, v%d' % (SB + 4*(p//3) + p % 3, VB_RB+2*p, VB_RB+2*p+1))
        for g in range(ng): R.ins('v_mov_b32 v%d, s%d' % (SB + 4*g + 3, S_NONCE))
        R.ins('s_mul_i32 s%d, s%d, %d' % (S_TF, S_ORD+i, 6*4*ng*1024))
        R.ins('s_add_u32 s%d, s%d, s%d' % (S_TF, S_TF, S_PB))
        for g in range(ng):
            R.ins('buffer_store_dwordx4 %s, v%d, %s, s%d offen offset:%d sc1' % (vr(SB+4*g, 4), VB_PO, WSR, S_TF, g*1024), 'st')

def fetch_insts(i, quads):
    out = []
    out.append('s_mul_i32 s%d, s%d, 6' % (S_T4, S_ORD+i)); out.append('s_add_u32 s%d, s%d, s%d' % (S_T4, S_T4, S_TEAM))
    out.append('s_lshl_b32 s%d, s%d, 13' % (S_T4, S_T4))
    for src in range(3):
        out.append('s_sub_u32 s%d, s%d, %d' % (S_T3, S_SP, src+1)); out.append('s_and_b32 s%d, s%d, 3' % (S_T3, S_T3))
        out.append('s_mul_i32 s%d, s%d, %d' % (S_T3, S_T3, 64*6*8192)); out.append('s_add_u32 s%d, s%d, s%d' % (S_T3, S_T3, S_T4))
        out.append('s_add_u32 s%d, s%d, %d' % (S_T3, S_T3, PF_OFF))
        for g in range(2):
            out.append('buffer_load_dwordx4 %s, v%d, %s, s%d offen offset:%d sc1' % (vr(quads[src*2+g], 4), VB_PO, WSR, S_T3, g*1024))
    out.append('s_lshl_b32 s%d, s%d, 1' % (S_T3, S_T4)); out.append('s_add_u32 s%d, s%d, %d' % (S_T3, S_T3, PY_OFF))
    for g in range(4):
        out.append('buffer_load_dwordx4 %s, v%d, %s, s%d offen offset:%d sc1' % (vr(quads[6+g], 4), VB_RD, WSR, S_T3, g*1024))
    return out
def fetch_check(quads):
    def f(a):
        t = [q+3 for q in quads]
        for op, d in (('v_min3_u32', VB_T), ('v_max3_u32', VB_T+1)):
            a('%s v%d, v%d, v%d, v%d' % (op, d, t[0], t[1], t[2]))
            for k in (3, 5, 7): a('%s v%d, v%d, v%d, v%d' % (op, d, d, t[k], t[k+1]))
            a('%s v%d, v%d, v%d, v%d' % (op, d, d, t[9], t[9]))
        a('v_xor_b32 v%d, s%d, v%d' % (VB_T, S_NONCE, VB_T)); a('v_xor_b32 v%d, s%d, v%d' % (VB_T+1, S_NONCE, VB_T+1))
        a('v_or_b32 v%d, v%d, v%d' % (VB_T, VB_T, VB_T+1))
        a('v_cmp_ne_u32 vcc, 0, v%d' % VB_T)
        a('s_nop 1')
        a('s_cmp_eq_u64 vcc, 0')
    return f

OUTFL = os.environ.get('OUTFL', '')
def final_fill(G, i, j, quads, dl):
    G.fn(lambda a: (a.wait_vm('fp%d' % i), poll_loop(a, lambda a: [a(t) for t in fetch_insts(i, quads)], fetch_check(quads))), 5, 0, dl)
    G.ins('s_lshr_b32 s%d, s%d, 1' % (S_T3, S_ORD+i)); G.ins('s_lshl_b32 s%d, s%d, 2' % (S_T3, S_T3))
    G.ins('s_and_b32 s%d, s%d, 1' % (S_T4, S_ORD+i)); G.ins('s_add_u32 s%d, s%d, s%d' % (S_T3, S_T3, S_T4))
    G.ins('s_mul_i32 s%d, s%d, %d' % (S_T3, S_T3, 16*2304))
    pk = lambda src, k: quads[src*2 + (k//2)//3] + (k//2) % 3
    y = lambda k: quads[6 + k//3] + k % 3
    o = lambda k: VB_RB + k
    t1 = lambda k: VB_RB + 12 + k
    t2 = lambda k: VB_RB + 24 + k
    unp = lambda d, src, k: ('v_and_b32 v%d, 0xffff0000, v%d' if k % 2 else 'v_lshlrev_b32 v%d, 16, v%d') % (d, pk(src, k))
    return [
        lambda k: unp(t1(k), 0, k), lambda k: unp(t2(k), 1, k),
        lambda k: 'v_add_f32 v%d, v%d, v%d' % (t1(k), t1(k), t2(k)),
        lambda k: unp(t2(k), 2, k),
        lambda k: 'v_add_f32 v%d, v%d, v%d' % (o(k), o(k), t1(k)),
        lambda k: 'v_add_f32 v%d, v%d, v%d' % (o(k), o(k), t2(k)),
        lambda k: 'v_cvt_pk_bf16_f32 v%d, v%d, v%d' % (o(k), o(k), o(k)),
        lambda k: 'v_accvgpr_read_b32 v%d, a%d' % (t2(k), A_XX+12*j+k),
        lambda k: 'v_lshlrev_b32 v%d, 16, v%d' % (o(k), o(k)),
        lambda k: 'v_mul_f32 v%d, s%d, v%d' % (t1(k), S_NL2E, o(k)),
        lambda k: 'v_exp_f32 v%d, v%d' % (t1(k), t1(k)),
        lambda k: 'v_add_f32 v%d, 1.0, v%d' % (t1(k), t1(k)),
        lambda k: 'v_rcp_f32 v%d, v%d' % (t1(k), t1(k)),
        lambda k: 'v_mul_f32 v%d, v%d, v%d' % (o(k), o(k), t1(k)),
        lambda k: 'v_and_b32 v%d, 0xffff0000, v%d' % (t1(k), t2(k)),
        lambda k: 'v_cvt_pk_bf16_f32 v%d, v%d, v%d' % (o(k), o(k), o(k)),
        lambda k: 'v_fma_f32 v%d, 2.0, v%d, v%d' % (t1(k), y(k), t1(k)),
        lambda k: 'v_lshlrev_b32 v%d, 16, v%d' % (o(k), o(k)),
        lambda k: 'v_lshlrev_b32 v%d, 16, v%d' % (t2(k), t2(k)),
        lambda k: 'v_mul_f32 v%d, v%d, v%d' % (t1(k), t1(k), o(k)),
        lambda k: 'v_add_f32 v%d, v%d, v%d' % (t1(k), t1(k), t2(k)),
        lambda k: 'buffer_store_dword v%d, v%d, s[%d:%d], s%d offen offset:%d%s' % (t1(k), VB_O+1 + (k % 4)//2, S_OUT, S_OUT+3, S_T3, (k % 2)*2304 + (k//4)*128, OUTFL),
    ]
def emit_final(G, stages):
    for k0 in range(0, 12, 4):
        for stg in stages:
            for k in range(k0, k0+4): G.ins(stg(k), 'out')

def xx_precompute_loads(a):
    T = VB_ACC
    a('s_load_dwordx2 s[%d:%d], s[0:1], %d' % (SP0, SP0+1, A_X))
    a('s_load_dwordx2 s[%d:%d], s[0:1], %d' % (SP0+2, SP0+3, D_OUT))
    a('s_load_dwordx2 s[%d:%d], s[0:1], %d' % (SP0+4, SP0+5, A_DSK))
    a('s_lshl_b32 s3, s%d, 8' % S_MT); a('s_lshl_b32 s4, s%d, 2' % S_W); a('s_add_u32 s3, s3, s4')
    a('v_and_b32 v%d, 32, v0' % VB_O); a('v_add_u32 v%d, s3, v%d' % (VB_O, VB_O))
    a('s_lshl_b32 s5, s%d, 6' % S_SP)
    a('v_add_u32 v%d, s5, v%d' % (T+60, VB_O)); a('v_lshlrev_b32 v%d, 3, v%d' % (T+60, T+60))
    a('v_mul_u32_u24 v%d, 576, v%d' % (VB_O, VB_O))
    a('v_and_b32 v%d, 31, v0' % (VB_O+1)); a('s_mul_i32 s4, s%d, 96' % S_NT)
    a('v_add_u32 v%d, s4, v%d' % (T+61, VB_O+1)); a('v_add_u32 v%d, v%d, v%d' % (VB_O, VB_O, T+61)); a('v_lshlrev_b32 v%d, 1, v%d' % (T+61, T+61))
    a('v_lshlrev_b32 v%d, 2, v%d' % (VB_O+1, VB_O)); a('v_add_u32 v%d, 4608, v%d' % (VB_O+2, VB_O+1)); a('v_lshlrev_b32 v%d, 1, v%d' % (VB_O, VB_O))
    a('s_waitcnt lgkmcnt(0)')
    srd(a, S_X, SP0, 2048*1152); srd(a, S_OUT, SP0+2, 2048*2304)
    a('s_mul_i32 s%d, s%d, %d' % (S_T3, S_SP, 64*1152))
    for j in range(2):
        for k in range(12):
            a('buffer_load_ushort v%d, v%d, s[%d:%d], s%d offen offset:%d' % (T+12*j+k, VB_O, S_X, S_X+3, S_T3, (k % 4)*1152 + (k//4)*64), 'xx')
        if j == 0: a('s_add_u32 s%d, s%d, %d' % (S_T3, S_T3, 16*1152))
    for dt in range(3):
        a('global_load_ushort v%d, v%d, s[%d:%d] offset:%d' % (T+40+dt, T+61, SP0+4, SP0+5, dt*64), 'xx')
def stat_loads(a):
    T = VB_ACC
    a('s_mov_b32 s%d, %d' % (S_T4, STAT_OFF))
    for j in range(2):
        for u in range(2):
            a('buffer_load_dwordx4 %s, v%d, %s, s%d offen offset:%d sc1' % (vr(T+24+8*j+4*u, 4), T+60, WSR, S_T4, j*128 + u*16), 'xs')
def xx_compute():
    T = VB_ACC; out = []
    for dt in range(3): out.append('v_lshlrev_b32 v%d, 16, v%d' % (T+40+dt, T+40+dt))
    for j in range(2):
        x = lambda k: T+12*j+k
        t = lambda k: T+44+k
        m = lambda k: T+24+8*j+2*(k % 4)
        st = [lambda k: 'v_lshlrev_b32 v%d, 16, v%d' % (x(k), x(k)),
              lambda k: 'v_sub_f32 v%d, v%d, v%d' % (t(k), x(k), m(k)),
              lambda k: 'v_cvt_pk_bf16_f32 v%d, v%d, v%d' % (t(k), t(k), t(k)),
              lambda k: 'v_lshlrev_b32 v%d, 16, v%d' % (t(k), t(k)),
              lambda k: 'v_mul_f32 v%d, v%d, v%d' % (t(k), t(k), m(k)+1),
              lambda k: 'v_cvt_pk_bf16_f32 v%d, v%d, v%d' % (t(k), t(k), t(k)),
              lambda k: 'v_lshlrev_b32 v%d, 16, v%d' % (t(k), t(k)),
              lambda k: 'v_mul_f32 v%d, v%d, v%d' % (t(k), t(k), T+40+k//4),
              lambda k: 'v_cvt_pk_bf16_f32 v%d, v%d, v%d' % (t(k), x(k), t(k)),
              lambda k: 'v_accvgpr_write_b32 a%d, v%d' % (A_XX+12*j+k, t(k))]
        for s in st:
            for k in range(12): out.append(s(k))
    return out

def phaseB(a, ssm, st):
    if ssm:
        a('v_lshlrev_b32 v14, 4, v0')
    else:
        a('v_lshrrev_b32 v14, 5, v0'); a('v_lshlrev_b32 v14, 2, v14'); a('v_bfe_u32 v15, v0, 2, 2'); a('v_add_u32 v14, v14, v15')
        a('v_mul_u32_u24 v14, 192, v14')
        a('v_bfe_u32 v15, v0, 4, 1'); a('v_lshl_add_u32 v14, v15, 5, v14')
        a('v_and_b32 v15, 3, v0'); a('v_lshl_add_u32 v14, v15, 3, v14')
    a('v_add_u32 v%d, s%d, v14' % (VB_RW, S_MW)); a('v_add_u32 v%d, %d, v%d' % (VB_RD, SLAB, VB_RW))
    a('s_lshl_b32 s3, s%d, 9' % S_G); a('s_lshl_b32 s4, s%d, 7' % S_W); a('s_add_u32 s3, s3, s4'); a('s_lshl_b32 s4, s%d, 2' % S_N); a('s_add_u32 s3, s3, s4')
    a('s_add_u32 s%d, s3, %d' % (S_TF, HFL_OFF))
    a('v_mov_b32 v14, 0'); a('v_mov_b32 v15, s%d' % S_NONCE)
    a('s_waitcnt vmcnt(0)')
    a('buffer_store_dword v15, v14, %s, s%d offen sc1' % (WSR, S_TF), 'fl')
    stamp(a, st)
    for ks in range(6): w2_read(a, ks, ssm)
    a('s_waitcnt lgkmcnt(0)')
    for ks in range(12, 18):
        for t in w2_dma(ks): a(t, 'v%d' % ks)
    for ks in range(6, 12): w2_read(a, ks, ssm)
    if not ssm: xx_precompute_loads(a)
    a('s_mul_i32 s%d, s%d, %d' % (S_HBB, S_MT, 8*HF_RB)); a('s_mul_i32 s3, s%d, %d' % (S_SP, 72*1024))
    a('s_add_u32 s%d, s%d, s3' % (S_HBB, S_HBB)); a('s_add_u32 s%d, s%d, %d' % (S_HBB, S_HBB, HF_OFF))
    a('s_lshl_b32 s4, s%d, 3' % S_W)
    a('v_add_u32 v14, s4, v0'); a('v_and_b32 v14, 31, v14'); a('v_and_b32 v15, 32, v0'); a('v_add_u32 v14, v14, v15')
    a('s_mul_i32 s3, s%d, %d' % (S_W, 18*1024)); a('v_lshl_add_u32 v%d, v14, 4, s3' % VB_HO)
    a('s_mul_i32 s%d, s%d, 48' % (S_TEAM, S_MT)); a('s_add_u32 s%d, s%d, s%d' % (S_TEAM, S_TEAM, S_NT))
    if ssm:
        a('s_lshl_b32 s3, s%d, 14' % S_TEAM); a('s_add_u32 s%d, s3, %d' % (S_PB, PY_OFF))
        a('s_lshl_b32 s3, s%d, 12' % S_W); a('v_lshl_add_u32 v%d, v0, 4, s3' % VB_PO)
        for i, r in enumerate((0, 2, 4, 6, 1, 3, 5, 7)): a('s_mov_b32 s%d, %d' % (S_ORD+i, r))
        a('s_mov_b32 s%d, 0x3ffff' % S_MASK)
    else:
        a('s_lshl_b32 s3, s%d, 13' % S_TEAM); a('s_mul_i32 s4, s%d, %d' % (S_SP, 64*6*8192)); a('s_add_u32 s3, s3, s4'); a('s_add_u32 s%d, s3, %d' % (S_PB, PF_OFF))
        a('s_lshl_b32 s3, s%d, 11' % S_W); a('v_lshl_add_u32 v%d, v0, 4, s3' % VB_PO)
        a('s_lshl_b32 s3, s%d, 1' % S_SP)
        for i in range(8):
            a('s_add_u32 s%d, s3, %d' % (S_ORD+i, i+2)); a('s_and_b32 s%d, s%d, 7' % (S_ORD+i, S_ORD+i))
        a('s_mul_i32 s3, s%d, 9' % S_SP); a('s_lshl_b32 s3, 0x1ff, s3')
        a('s_mul_i32 s4, s%d, 6' % S_SP); a('s_add_u32 s4, s4, 6'); a('s_lshl_b32 s4, 0x3f, s4')
        a('s_cmp_lt_u32 s%d, 2' % S_SP); a('s_cselect_b32 s%d, s3, s4' % S_MASK)
    for q in range(1, 4):
        a('s_sub_u32 s3, s%d, %d' % (S_W, q)); a('s_and_b32 s3, s3, 3'); a('s_mul_i32 s3, s3, 9216'); a('s_add_u32 s3, s3, %d' % ((q-1)*3072))
        a('v_lshl_add_u32 v%d, v0, 3, s3' % (VB_RR+q-1))
    PL = VB_RB; PA = VB_RB + 2
    a('v_lshlrev_b32 v%d, 2, v0' % PA)
    a('s_lshl_b32 s%d, s%d, 9' % (S_T2, S_MT)); a('s_add_u32 s%d, s%d, %d' % (S_T2, S_T2, HFL_OFF))
    def hpl(a):
        a('buffer_load_dword v%d, v%d, %s, s%d offen sc1' % (PL, PA, WSR, S_T2), 'hp')
        a('buffer_load_dword v%d, v%d, %s, s%d offen offset:256 sc1' % (PL+1, PA, WSR, S_T2), 'hp')
    def hchk(a):
        a('v_cmp_ne_u32 vcc, s%d, v%d' % (S_NONCE, PL))
        a('v_cmp_ne_u32 s[4:5], s%d, v%d' % (S_NONCE, PL+1))
        a('s_nop 1')
        a('s_or_b64 s[4:5], s[4:5], vcc'); a('s_or_b32 s4, s4, s5'); a('s_and_b32 s4, s4, s%d' % S_MASK)
        a('s_cmp_eq_u32 s4, 0')
    hpl(a)
    a.wait_vm('v17')
    for ks in range(12, 18): w2_read(a, ks, ssm)
    a.wait_vm('hp')
    poll_loop(a, hpl, hchk)
    stamp(a, st)
    nld = [0]
    def next_h(a):
        if nld[0] < 144: hload(a, nld[0]); nld[0] += 1
    if not ssm: stat_loads(a)
    for _ in range(P('HBURST', 12)): next_h(a)
    if not ssm:
        a.wait_vm('xs')
        for t in xx_compute(): a(t)
    a('s_waitcnt lgkmcnt(0)')
    a('s_mul_i32 s3, s%d, 9216' % S_W); a('v_lshl_add_u32 v%d, v0, 3, s3' % VB_RW)
    a('s_lshl_b32 s3, s%d, 12' % S_W); a('v_lshl_add_u32 v%d, v0, 4, s3' % VB_RD)
    a('s_barrier')
    S = Sched(a); R = S.stream('red'); G = S.stream('xchg')
    qA = [hslot(118+k) for k in range(10)]
    qB = [accr(0, dt) + 4*q for q in (1, 2, 3) for dt in range(3)] + [hslot(128)]
    for i in range(8):
        s = i & 1
        S.drain(('acc', s))
        if i in (0, 7): stamp(a, st)
        base = S.mf
        if i > 0: reduce_fill(R, i-1, base + 2, ssm or i-1 < 6, ssm)
        if not ssm and i == 7:
            for t in fetch_insts(6, qA): G.ins(t, 'fp6', base + 7)
            G.fn(lambda a: ('rr6' in a.seen) or sys.exit('order'), 0, base + P('FBAT', 30))
            for t in fetch_insts(7, qB): G.ins(t, 'fp7')
        for ks in range(18):
            n = 18*i + ks
            S.fill(reserve=1)
            S.must_fn(lambda a: a.wait_vm('h%d' % n))
            for dt in range(3):
                d = vr(accr(s, dt), 16)
                S.mfma('v_mfma_f32_32x32x16_bf16 %s, %s, %s, %s' % (d, vr(hslot(n), 4), wfrag(ks, dt), d if ks else '0'))
                lim = n + NH + (1 if dt == 2 else 0)
                if nld[0] < min(lim, 144) and (dt != 1): S.must_fn(next_h)
    sys.stderr.write('phaseB ssm=%d pending at end: %s\n' % (ssm, S.pending()))
    stamp(a, st)
    S.mf += 1000
    S.drain()
    if ssm:
        reduce_fill(R, 7, 0, True, True); S.drain()
        stamp(a, st)
    else:
        reduce_fill(R, 7, 0, False, False)
        rest = R.q[18:]; R.q = R.q[:18]; S.drain()
        emit_final(G, final_fill(G, 6, 0, qA, 0)); S.drain()
        stamp(a, st)
        R.q = rest; S.drain()
        emit_final(G, final_fill(G, 7, 1, qB, 0)); S.drain()
        a('s_lshl_b32 s3, s%d, 9' % S_SP); a('s_add_u32 s3, s3, s%d' % S_TEAM); a('s_lshl_b32 s4, s%d, 12' % S_W); a('s_add_u32 s3, s3, s4')
        a('s_cmp_eq_u32 s3, %d' % (7*48))
        a('s_cbranch_scc0 NOBUMP')
        a('v_mov_b32 v14, %d' % NONCE_OFF); a('v_mov_b32 v15, s%d' % S_NONCE)
        a('buffer_store_dword v15, v14, %s, 0 offen sc1' % WSR)
        a('NOBUMP:')
    stamp_flush(a, st, 0, S_WS, S_W, 14)
    a('s_endpgm')

def ln_part(a):
    X = 48; F = 72; T = 112
    a('s_lshl_b32 s3, s2, 1'); a('s_add_u32 s3, s3, s%d' % S_W)
    a('s_lshr_b32 s4, s3, 4'); a('s_lshl_b32 s4, s4, 6')
    a('s_and_b32 s5, s3, 1'); a('s_lshl_b32 s5, s5, 5'); a('s_add_u32 s4, s4, s5')
    a('s_bfe_u32 s5, s3, 0x10003'); a('s_lshl_b32 s5, s5, 4'); a('s_add_u32 s4, s4, s5')
    a('s_bfe_u32 s5, s3, 0x20001'); a('s_lshl_b32 s5, s5, 2'); a('s_add_u32 s4, s4, s5')
    a('v_and_b32 v%d, 3, v0' % T); a('v_lshrrev_b32 v%d, 2, v0' % (T+1))
    a('v_add_u32 v%d, s4, v%d' % (T+2, T))
    a('v_mul_u32_u24 v%d, 1152, v%d' % (T+3, T+2)); a('v_lshl_add_u32 v%d, v%d, 4, v%d' % (T+3, T+1, T+3))
    for k in range(4): a('v_mov_b32 v%d, 0' % (X+16+k))
    a('s_waitcnt lgkmcnt(0)')
    for n in range(4):
        a('global_load_dwordx4 %s, v%d, s[%d:%d] offset:%d' % (vr(X+4*n, 4), T+3, SP0, SP0+1, 256*n), 'lx')
    a('s_mov_b32 exec_hi, 0')
    a('global_load_dwordx4 %s, v%d, s[%d:%d] offset:1024' % (vr(X+16, 4), T+3, SP0, SP0+1), 'lx')
    a('s_mov_b32 exec_hi, -1')
    srd(a, S_WS, SP0+2, WS_USED)
    a('s_load_dword s%d, s[%d:%d], %d' % (S_NONCE, SP0+2, SP0+3, NONCE_OFF))
    a('s_lshr_b32 s5, s3, 3'); a('s_mul_i32 s5, s5, 36864'); a('s_and_b32 s6, s3, 7'); a('s_lshl_b32 s6, s6, 7'); a('s_add_u32 s5, s5, s6')
    a('s_add_u32 s5, s5, %d' % XF_OFF)
    a('v_lshrrev_b32 v%d, 3, v0' % (T+4)); a('v_lshlrev_b32 v%d, 10, v%d' % (T+4, T+4))
    a('v_and_b32 v%d, 7, v0' % (T+5)); a('v_lshl_add_u32 v%d, v%d, 4, v%d' % (T+4, T+5, T+4))
    a('v_lshlrev_b32 v%d, 3, v%d' % (T+2, T+2))
    a('s_waitcnt vmcnt(0)')
    for n in range(20):
        a('v_lshlrev_b32 v%d, 16, v%d' % (F+2*n, X+n)); a('v_and_b32 v%d, 0xffff0000, v%d' % (F+2*n+1, X+n))
    A = T+8
    def allred(r):
        a('v_add_f32_dpp v%d, v%d, v%d row_ror:4 row_mask:0xf bank_mask:0xf' % (r, r, r))
        a('v_add_f32_dpp v%d, v%d, v%d row_ror:8 row_mask:0xf bank_mask:0xf' % (r, r, r))
        a('v_mov_b32 v%d, v%d' % (T+6, r)); a('v_permlane16_swap_b32 v%d, v%d' % (r, T+6)); a('v_add_f32 v%d, v%d, v%d' % (r, r, T+6))
        a('v_mov_b32 v%d, v%d' % (T+6, r)); a('v_permlane32_swap_b32 v%d, v%d' % (r, T+6)); a('v_add_f32 v%d, v%d, v%d' % (r, r, T+6))
    for k in range(4): a('v_add_f32 v%d, v%d, v%d' % (A+k, F+k, F+4+k))
    for m in range(2, 10):
        for k in range(4): a('v_add_f32 v%d, v%d, v%d' % (A+k, A+k, F+4*m+k))
    a('v_add_f32 v%d, v%d, v%d' % (A, A, A+1)); a('v_add_f32 v%d, v%d, v%d' % (A+2, A+2, A+3)); a('v_add_f32 v%d, v%d, v%d' % (A, A, A+2))
    allred(A)
    a('v_mul_f32 v%d, 0x%08x, v%d' % (A, f32bits(1.0/576), A))
    Q = A+4; D = A+8
    for m in range(10):
        if m == 8: a('s_mov_b32 exec_hi, 0')
        for k in range(4): a('v_sub_f32 v%d, v%d, v%d' % (D+k, F+4*m+k, A))
        for k in range(4): a(('v_mul_f32' if m == 0 else 'v_fmac_f32') + ' v%d, v%d, v%d' % (Q+k, D+k, D+k))
    a('s_mov_b32 exec_hi, -1')
    a('v_add_f32 v%d, v%d, v%d' % (Q, Q, Q+1)); a('v_add_f32 v%d, v%d, v%d' % (Q+2, Q+2, Q+3)); a('v_add_f32 v%d, v%d, v%d' % (A+1, Q, Q+2))
    allred(A+1)
    a('v_mul_f32 v%d, 0x%08x, v%d' % (A+1, f32bits(1.0/576), A+1))
    a('v_cvt_pk_bf16_f32 v%d, v%d, v%d' % (A+2, A, A+1))
    a('v_lshlrev_b32 v%d, 16, v%d' % (A, A+2)); a('v_and_b32 v%d, 0xffff0000, v%d' % (A+1, A+2))
    a('v_add_f32 v%d, 0x%08x, v%d' % (A+1, f32bits(1e-5), A+1))
    a('v_cvt_pk_bf16_f32 v%d, v%d, v%d' % (A+1, A+1, A+1)); a('v_lshlrev_b32 v%d, 16, v%d' % (A+1, A+1))
    a('v_sqrt_f32 v%d, v%d' % (A+1, A+1))
    a('v_cvt_pk_bf16_f32 v%d, v%d, v%d' % (A+1, A+1, A+1)); a('v_lshlrev_b32 v%d, 16, v%d' % (A+1, A+1))
    a('v_rcp_f32 v%d, v%d' % (A+1, A+1))
    for q in range(5):
        if q == 4: a('s_mov_b32 exec_hi, 0')
        ns = range(4*q, 4*q+4)
        for n in ns: a('v_sub_f32 v%d, v%d, v%d' % (F+2*n, F+2*n, A)); a('v_sub_f32 v%d, v%d, v%d' % (F+2*n+1, F+2*n+1, A))
        for n in ns: a('v_cvt_pk_bf16_f32 v%d, v%d, v%d' % (X+n, F+2*n, F+2*n+1))
        for n in ns: a('v_lshlrev_b32 v%d, 16, v%d' % (F+2*n, X+n)); a('v_and_b32 v%d, 0xffff0000, v%d' % (F+2*n+1, X+n))
        for n in ns: a('v_mul_f32 v%d, v%d, v%d' % (F+2*n, F+2*n, A+1)); a('v_mul_f32 v%d, v%d, v%d' % (F+2*n+1, F+2*n+1, A+1))
        for n in ns: a('v_cvt_pk_bf16_f32 v%d, v%d, v%d' % (X+n, F+2*n, F+2*n+1))
        a('buffer_store_dwordx4 %s, v%d, %s, s5 offen sc1' % (vr(X+4*q, 4), T+4, WSR))
        if q < 4: a('s_add_u32 s5, s5, 8192')
    a('s_mov_b32 exec_lo, 15')
    a('s_mov_b32 s5, %d' % STAT_OFF)
    assert A % 2 == 0
    a('buffer_store_dwordx2 %s, v%d, %s, s5 offen sc1' % (vr(A, 2), T+2, WSR))
    a('s_mov_b64 exec, -1')
    a('s_waitcnt lgkmcnt(0)')
    nonce_mix(a)
    a('s_lshl_b32 s3, s3, 2'); a('s_add_u32 s3, s3, %d' % LNF_OFF)
    a('v_mov_b32 v%d, 0' % T); a('v_mov_b32 v%d, s%d' % (T+1, S_NONCE))
    a('s_waitcnt vmcnt(0)')
    a('buffer_store_dword v%d, v%d, %s, s3 offen sc1' % (T+1, T, WSR))

def nonce_mix(a):
    a('s_mul_i32 s%d, s%d, 0x0019660d' % (S_NONCE, S_NONCE))
    a('s_add_u32 s%d, s%d, 0x3c6ef35f' % (S_NONCE, S_NONCE))

def light_part(a):
    a('s_cmp_eq_u32 s%d, 0' % S_W); a('s_cbranch_scc1 KEND')
    a('s_load_dwordx4 s[%d:%d], s[0:1], %d' % (SP0, SP0+3, A_CRE))
    a('s_sub_u32 s3, s2, 240'); a('s_mul_i32 s3, s3, 3'); a('s_add_u32 s3, s3, s%d' % S_W); a('s_sub_u32 s3, s3, 1')
    a('s_lshr_b32 s4, s3, 3'); a('s_mul_i32 s4, s4, %d' % (96*1152))
    a('s_bfe_u32 s5, s3, 0x10001'); a('s_mul_i32 s5, s5, 576'); a('s_add_u32 s4, s4, s5')
    a('s_and_b32 s5, s3, 1'); a('s_mul_i32 s5, s5, 288'); a('s_add_u32 s4, s4, s5')
    a('v_and_b32 v1, 31, v0'); a('v_mul_u32_u24 v1, 1152, v1'); a('v_lshrrev_b32 v2, 5, v0'); a('v_lshl_add_u32 v1, v2, 4, v1'); a('v_add_u32 v1, s4, v1')
    a('v_add_u32 v2, %d, v1' % (32*1152)); a('v_add_u32 v3, %d, v1' % (64*1152))
    a('v_lshlrev_b32 v4, 4, v0')
    a('s_mul_i32 s6, s3, 27648'); a('s_add_u32 s6, s6, %d' % CF_OFF)
    a('s_waitcnt lgkmcnt(0)')
    a('s_bitcmp1_b32 s3, 2')
    a('s_cselect_b32 s%d, s%d, s%d' % (SP0, SP0+2, SP0)); a('s_cselect_b32 s%d, s%d, s%d' % (SP0+1, SP0+3, SP0+1))
    for f in range(27):
        a('global_load_dwordx4 %s, v%d, s[%d:%d] offset:%d' % (vr(16+4*f, 4), 1 + f % 3, SP0, SP0+1, (f//3)*32), 'c%d' % f)
    for f in range(27):
        a.wait_vm('c%d' % f)
        a('buffer_store_dwordx4 %s, v4, %s, s6 offen offset:%d sc1' % (vr(16+4*f, 4), WSR, (f % 4)*1024))
        if f % 4 == 3: a('s_add_u32 s6, s6, 4096')
    a('s_lshl_b32 s3, s3, 2'); a('s_add_u32 s3, s3, %d' % CFL_OFF)
    a('v_mov_b32 v1, 0'); a('v_mov_b32 v2, s%d' % S_NONCE)
    a('s_waitcnt vmcnt(0)')
    a('buffer_store_dword v2, v1, %s, s3 offen sc1' % WSR)
    a('s_endpgm')

def gen():
    a = Asm()
    name = PFX + '_kernel'
    a(kernel_header(name))
    a('KSTART:')
    a('s_cmp_ge_u32 s2, 256'); a('s_cbranch_scc1 KEND')
    st = Stamps(); stamp(a, st)
    a('s_load_dwordx2 s[%d:%d], s[0:1], %d' % (SP0, SP0+1, A_X))
    a('s_load_dwordx2 s[%d:%d], s[0:1], %d' % (SP0+2, SP0+3, D_WS))
    a('s_load_dwordx2 s[%d:%d], s[0:1], %d' % (SP0+4, SP0+5, B_W1))
    a('s_load_dwordx4 s[56:59], s[0:1], %d' % A_BRE)
    a('s_load_dwordx4 s[60:63], s[0:1], %d' % A_LRE)
    a('s_load_dwordx2 s[54:55], s[0:1], %d' % A_LDT)
    a('v_lshrrev_b32 v13, 6, v0')
    a('v_readfirstlane_b32 s%d, v13' % S_W)
    a('v_and_b32 v0, 63, v0')
    a('s_cmp_ge_u32 s%d, 2' % S_W); a('s_cbranch_scc1 SKIP_LN')
    ln_part(a)
    a.vm = []
    a('SKIP_LN:')
    a('s_waitcnt lgkmcnt(0)')
    srd(a, S_WS, SP0+2, WS_USED)
    a('s_cmp_lt_u32 s%d, 2' % S_W); a('s_cbranch_scc1 HAVE_NONCE')
    a('s_load_dword s%d, s[%d:%d], %d' % (S_NONCE, SP0+2, SP0+3, NONCE_OFF))
    a('s_cmp_lt_u32 s2, 240'); a('s_cbranch_scc1 HAVE_NONCE')
    a('s_waitcnt lgkmcnt(0)'); nonce_mix(a)
    a('HAVE_NONCE:')
    a('s_cmp_lt_u32 s2, 240'); a('s_cbranch_scc1 HEAVY')
    light_part(a)
    a.vm = []
    a('HEAVY:')
    srd(a, S_W1, SP0+4, 576*9216)
    a('s_and_b32 s3, s2, 7'); a('s_lshr_b32 s4, s2, 3')
    a('s_lshr_b32 s5, s3, 1'); a('s_mul_i32 s5, s5, 30'); a('s_add_u32 s5, s5, s4')
    a('s_lshr_b32 s%d, s5, 2' % S_N)
    a('s_and_b32 s5, s5, 3'); a('s_and_b32 s3, s3, 1'); a('s_lshl_b32 s3, s3, 2'); a('s_add_u32 s%d, s3, s5' % S_G)
    a('s_lshl_b32 s%d, s%d, 10' % (S_M0W, S_W))
    a('v_lshrrev_b32 v13, 3, v0'); a('v_and_b32 v14, 7, v0'); a('v_bfe_u32 v15, v0, 4, 1'); a('v_lshlrev_b32 v15, 2, v15'); a('v_xor_b32 v14, v14, v15')
    a('s_lshl_b32 s3, s%d, 3' % S_W); a('v_add_u32 v13, s3, v13')
    a('v_mul_u32_u24 v%d, 9216, v13' % V_WD); a('v_lshl_add_u32 v%d, v14, 4, v%d' % (V_WD, V_WD))
    def common2():
        a('s_mov_b32 s%d, 0x%08x' % (S_NL2E, f32bits(-LOG2E)))
        a('s_mul_i32 s%d, s%d, %d' % (S_XB, S_G, 8*36864)); a('s_add_u32 s%d, s%d, %d' % (S_XB, S_XB, XF_OFF))
        a('s_mul_i32 s%d, s%d, %d' % (S_HB, S_G, 8*HF_RB)); a('s_add_u32 s%d, s%d, %d' % (S_HB, S_HB, HF_OFF))
        a('s_mul_i32 s3, s%d, 73728' % S_W)
        a('v_bfe_u32 v14, v0, 2, 3'); a('v_lshlrev_b32 v14, 7, v14'); a('v_lshrrev_b32 v15, 5, v0'); a('v_lshl_add_u32 v14, v15, 6, v14')
        a('v_and_b32 v15, 3, v0'); a('v_lshl_add_u32 v14, v15, 4, v14'); a('v_add_u32 v%d, s3, v14' % V_XO)
        a('v_add_u32 v%d, 36864, v%d' % (V_XO+1, V_XO))
        a('s_mul_i32 s3, s%d, %d' % (S_W, 2*HF_RB))
        a('v_lshl_add_u32 v%d, v0, 4, s3' % V_HO); a('v_add_u32 v%d, %d, v%d' % (V_HO+1, HF_RB, V_HO))
        a('v_lshrrev_b32 v14, 5, v0'); a('v_lshlrev_b32 v14, 10, v14')
        a('v_bfe_u32 v15, v0, 2, 2'); a('v_lshl_add_u32 v14, v15, 7, v14')
        a('v_bfe_u32 v15, v0, 4, 1'); a('v_lshl_add_u32 v14, v15, 5, v14')
        a('v_and_b32 v15, 3, v0'); a('v_lshl_add_u32 v14, v15, 3, v14')
        a('v_bfe_u32 v15, v0, 3, 1'); a('v_lshl_add_u32 v%d, v15, 6, v14' % V_TR)
        a('v_xor_b32 v%d, 64, v%d' % (V_TR+1, V_TR))
    def w1_and_poll(tagp):
        for n in range(18): dma_w1(a, 1, 1, n, 'w1')
        common2()
        a('v_and_b32 v%d, 15, v0' % V_PA); a('v_lshlrev_b32 v%d, 2, v%d' % (V_PA, V_PA))
        a('s_lshl_b32 s3, s%d, 8' % S_G); a('s_lshl_b32 s4, s%d, 6' % S_W); a('s_add_u32 s3, s3, s4'); a('s_add_u32 s%d, s3, %d' % (S_T3, LNF_OFF))
        ld = 'buffer_load_dword v%d, v%d, %s, s%d offen sc1' % (V_PL, V_PA, WSR, S_T3)
        a(ld); a('s_waitcnt vmcnt(0)')
        stamp(a, st)
        poll_loop(a, lambda a: a(ld), chk_all_eq(V_PL))
        stamp(a, st)
    def w0(mixed):
        L = 'W0SKIP%d' % mixed
        a('s_cmp_lt_u32 s%d, 2' % S_W); a('s_cbranch_scc1 %s' % L)
        if mixed:
            a('v_subrev_u32 v%d, %d, v%d' % (V_PA, 16*1152, V_BD))
            for n in range(18): dma_b(a, n//2, n % 2, 'w0'); dma_b(a, n//2, n % 2, 'w0', V_PA, -2048)
        else:
            a('v_subrev_u32 v%d, %d, v%d' % (V_PA, 16*9216, V_WD))
            for n in range(18): dma_w1(a, 0, 0, n, 'w0'); dma_w1(a, 0, 0, n, 'w0', V_PA, -2048)
        if P('CODEPF', 1):
            a('s_getpc_b64 s[4:5]'); lab = 'PFPC%d' % mixed; a(lab + ':')
            a('s_sub_u32 s4, s4, %s-KSTART' % lab); a('s_subb_u32 s5, s5, 0')
            a('s_and_b32 s6, s%d, 1' % S_W); a('s_lshl_b32 s6, s6, 13')
            a('v_lshl_add_u32 v%d, v0, 7, s6' % V_PL)
            NPF = P('NPF', 5)
            for k in range(NPF):
                a('v_min_u32 v%d, KLAST-KSTART, v%d' % (V_PL+1, V_PL))
                a('global_load_dword v%d, v%d, s[4:5]' % (V_PL+3, V_PL+1))
                a('v_add_u32 v%d, 16384, v%d' % (V_PL, V_PL))
        a('s_waitcnt lgkmcnt(0)'); nonce_mix(a)
        a(L + ':')
        a.vm = []
    a('s_cmp_lt_u32 s%d, 18' % S_N); a('s_cbranch_scc1 A_MIXED')
    a('s_mul_i32 s3, s%d, 3' % S_N); a('s_sub_u32 s3, s3, 18'); a('s_lshl_b32 s%d, s3, 7' % S_P)
    a('s_add_u32 s%d, s%d, 128' % (S_P+1, S_P)); a('s_add_u32 s%d, s%d, 256' % (S_P+2, S_P))
    w0(0); w1_and_poll(0)
    phaseA(a, False, st)
    a('s_branch A_DONE')
    nst = st.n; st.n = 1; a.vm = []; a.lg = []; a.seen = set()
    a('A_MIXED:')
    srd(a, S_BRE, 56, 576*1152); srd(a, S_BIM, 58, 576*1152)
    a('s_lshl_b32 s%d, s%d, 8' % (S_P+1, S_N)); a('s_add_u32 s%d, s%d, 128' % (S_P+2, S_P+1))
    a('v_bfe_u32 v15, v13, 1, 3'); a('v_and_b32 v14, 7, v0'); a('v_xor_b32 v14, v14, v15')
    a('s_lshl_b32 s7, s%d, 5' % S_N); a('v_add_u32 v13, s7, v13')
    a('v_mul_u32_u24 v%d, 1152, v13' % V_BD); a('v_lshl_add_u32 v%d, v14, 4, v%d' % (V_BD, V_BD))
    w0(1)
    a('v_and_b32 v13, 31, v0'); a('v_lshrrev_b32 v14, 5, v0'); a('v_bfe_u32 v15, v0, 1, 3'); a('v_xor_b32 v14, v14, v15')
    a('v_lshlrev_b32 v14, 4, v14'); a('v_lshl_add_u32 v%d, v13, 7, v14' % V_BR)
    for e in range(1, 4): a('v_xor_b32 v%d, %d, v%d' % (V_BR+e, 32*e, V_BR))
    a('v_lshrrev_b32 v14, 5, v0'); a('s_lshl_b32 s4, s%d, 1' % S_W); a('v_add_u32 v%d, s4, v14' % R_SIDX)
    a('v_add_u32 v%d, s%d, v14' % (R_GH, S_G))
    a('v_lshlrev_b32 v%d, 6, v13' % R_TW); a('v_add_u32 v%d, 0x%x, v%d' % (R_TW, E_OFF - E_OFF % 65536, R_TW))
    a('v_lshl_add_u32 v%d, v%d, 3, v%d' % (R_EA, R_SIDX, R_TW)); a('v_add_u32 v%d, 0x%x, v%d' % (R_EA, E_OFF % 65536, R_EA))
    a('v_add_u32 v15, s7, v13')
    a('v_lshlrev_b32 v%d, 4, v15' % R_AW)
    a('v_mul_u32_u24 v14, 9216, v14'); a('v_add_u32 v%d, v14, v%d' % (R_AO, R_AW))
    a('v_lshlrev_b32 v15, 1, v15')
    a('global_load_ushort v%d, v15, s[60:61]' % R_T3); a('global_load_ushort v%d, v15, s[62:63]' % R_T4); a('global_load_ushort v%d, v15, s[54:55]' % R_ER)
    a('s_mul_i32 s%d, s%d, 9216' % (S_BB, S_G)); a('s_add_u32 s%d, s%d, %d' % (S_BB, S_BB, AGG_OFF))
    a('s_lshl_b32 s4, s%d, 11' % S_W); a('s_add_u32 s4, s4, %d' % TB_OFF)
    a('v_lshrrev_b32 v14, 5, v0'); a('v_lshlrev_b32 v14, 9, v14')
    a('v_bfe_u32 v15, v0, 2, 2'); a('v_lshl_add_u32 v14, v15, 6, v14')
    a('v_and_b32 v15, 1, v0'); a('v_lshl_add_u32 v14, v15, 5, v14')
    a('v_bfe_u32 v15, v0, 4, 1'); a('v_lshl_add_u32 v14, v15, 4, v14')
    a('v_bfe_u32 v15, v0, 1, 1'); a('v_lshl_add_u32 v14, v15, 3, v14')
    a('v_add_u32 v%d, s4, v14' % R_TRD)
    a('v_lshrrev_b32 v14, 5, v0'); a('v_lshlrev_b32 v14, 5, v14'); a('v_lshl_add_u32 v14, v13, 6, v14')
    a('v_add_u32 v%d, s4, v14' % R_TWA)
    w1_and_poll(1)
    a('s_lshl_b32 s4, s%d, 11' % S_N); a('s_add_u32 s4, s4, %d' % (288*1024)); a('s_add_u32 s%d, s4, s%d' % (S_HS, S_HB))
    phaseA(a, True, st)
    assert st.n == nst or not DIAG
    a('A_DONE:')
    a('s_nop 15')
    a.vm = []; a.lg = []; a.seen = set()
    a('s_cmp_eq_u32 s%d, 4' % S_SP); a('s_cbranch_scc1 B_SSM')
    phaseB(a, False, st)
    st.n = nst; a.vm = []; a.lg = []; a.seen = set()
    a('B_SSM:')
    phaseB(a, True, st)
    a('KEND:')
    a('KLAST:')
    a('s_endpgm')
    return name, a.lines, kernel_desc(name, 512, 256, 102)

if __name__ == '__main__':
    ref = open('cdna_kernels/%s.s.ref' % PFX).read().split('\n')
    hdr = [l for l in ref if l.startswith(';') and '@launch' not in l and 'Override launch' not in l and 'grid=ceil' not in l][:16]
    name, lines, desc = gen()
    padded, n = pad_hazards(lines)
    sys.stderr.write('%d lines, %d nops inserted\n' % (len(padded), n))
    out = hdr + ['; @launch grid=(256,1,1) block=(256,1,1) lds=%d' % LDS_BYTES, '.amdgcn_target "amdgcn-amd-amdhsa--gfx950"'] + padded + [desc]
    sys.stdout.write('\n'.join(out) + '\n')
```

```python
import re

class Ins:
    __slots__ = ("text", "tag")
    def __init__(self, text, tag=None):
        self.text = text; self.tag = tag
    def __repr__(self): return self.text

_reg_re = re.compile(r'\b([vas])(\d+)\b|\b([vas])\[(\d+):(\d+)\]')
def regs_of(operand):
    out = []
    for m in _reg_re.finditer(operand):
        if m.group(1):
            out.append((m.group(1), int(m.group(2))))
        else:
            for i in range(int(m.group(4)), int(m.group(5)) + 1):
                out.append((m.group(3), i))
    if re.search(r'\bvcc\b', operand): out += [('s', 'vcc')]
    if re.search(r'\bexec\b', operand): out += [('s', 'exec')]
    if re.search(r'\bm0\b', operand): out += [('s', 'm0')]
    return out

def split_ops(text):
    t = text.split(';')[0].strip()
    parts = t.split(None, 1)
    op = parts[0]
    ops = []
    if len(parts) > 1:
        depth = 0; cur = ''
        for ch in parts[1]:
            if ch == '[': depth += 1
            if ch == ']': depth -= 1
            if ch == ',' and depth == 0:
                ops.append(cur.strip()); cur = ''
            else: cur += ch
        ops.append(cur.strip())
    return op, ops

TRANS = ('v_exp_f32', 'v_log_f32', 'v_rcp_f32', 'v_rsq_f32', 'v_sqrt_f32', 'v_sin_f32', 'v_cos_f32')

def classify(text):
    op, ops = split_ops(text)
    k = {'op': op, 'dst': [], 'src': [], 'kind': 'other'}
    if op.endswith(':') or op.startswith('.'):
        k['kind'] = 'label'; return k
    if op.startswith('v_mfma'):
        k['kind'] = 'mfma'
        k['dst'] = regs_of(ops[0]); k['srcA'] = regs_of(ops[1]); k['srcB'] = regs_of(ops[2]); k['srcC'] = regs_of(ops[3])
        k['src'] = k['srcA'] + k['srcB'] + k['srcC']
        k['passes'] = 8 if '32x32' in op else 4
        return k
    if op.startswith('v_'):
        k['kind'] = 'valu'
        base = op.replace('_e32', '').replace('_e64', '').replace('_dpp', '').replace('_sdwa', '')
        k['trans'] = base in TRANS
        k['dpp'] = ('row_' in text or 'quad_perm' in text or '_dpp' in op)
        if base.startswith('v_cmp'):
            k['dst'] = regs_of(ops[0]); k['src'] = sum((regs_of(o) for o in ops[1:]), [])
            if base.startswith('v_cmpx'): k['dst'] += [('s', 'exec')]
        elif base.startswith('v_permlane') and 'swap' in base:
            k['dst'] = regs_of(ops[0]) + regs_of(ops[1]); k['src'] = list(k['dst']); k['permlane'] = True
        elif base in ('v_add_co_u32', 'v_sub_co_u32', 'v_addc_co_u32', 'v_subb_co_u32'):
            k['dst'] = regs_of(ops[0]) + regs_of(ops[1]); k['src'] = sum((regs_of(o) for o in ops[2:]), [])
        else:
            k['dst'] = regs_of(ops[0]); k['src'] = sum((regs_of(o) for o in ops[1:]), [])
            if base in ('v_fmac_f32', 'v_dot2c_f32_bf16', 'v_writelane_b32'): k['src'] += k['dst']
        k['lane'] = base in ('v_readfirstlane_b32', 'v_readlane_b32')
        return k
    if op.startswith('buffer_') or op.startswith('global_'):
        k['kind'] = 'vmem'
        if op in ('buffer_inv', 'buffer_wbl2'):
            return k
        lds = bool(re.search(r'\blds\b', text.split(';')[0]))
        k['lds'] = lds
        allr = [regs_of(o) for o in ops]
        if 'load' in op and not lds:
            k['dst'] = allr[0]; k['src'] = sum(allr[1:], [])
        else:
            k['src'] = sum(allr, [])
            if lds: k['src'] += [('s', 'm0')]
            if 'store' in op:
                di = 0 if op.startswith('buffer_') else 1
                k['data'] = allr[di]
                k['wide'] = ('x3' in op or 'x4' in op)
            if 'atomic' in op and 'sc0' in text: k['dst'] = allr[0]
        return k
    if op.startswith('ds_'):
        k['kind'] = 'ds'
        allr = [regs_of(o) for o in ops]
        if 'read' in op or 'bpermute' in op or 'permute' in op or 'swizzle' in op:
            k['dst'] = allr[0]; k['src'] = sum(allr[1:], [])
        else:
            k['src'] = sum(allr, [])
        return k
    if op.startswith('s_'):
        k['kind'] = 'salu'
        if op == 's_nop': k['kind'] = 'nop'; k['n'] = int(ops[0], 0) + 1; return k
        if op.startswith('s_load') or op in ('s_memtime', 's_memrealtime'): k['kind'] = 'smem'
        if op.startswith('s_cbranch') or op in ('s_branch', 's_endpgm', 's_setpc_b64'): k['kind'] = 'branch'; return k
        if op in ('s_waitcnt', 's_barrier', 's_sleep', 's_setprio'): return k
        if op.startswith('s_cmp'):
            k['src'] = sum((regs_of(o) for o in ops), [])
        else:
            k['dst'] = regs_of(ops[0]) if ops else []; k['src'] = sum((regs_of(o) for o in ops[1:]), [])
            if 'saveexec' in op: k['dst'] += [('s', 'exec')]
        return k
    return k

def pad_hazards(lines):
    out = []
    def dist_back(pred, maxd):
        d = 0
        for text, c in reversed(out):
            if c['kind'] == 'label': continue
            if pred(c): return d
            d += c.get('n', 1) if c['kind'] == 'nop' else 1
            if d > maxd: return None
        return None
    nins = 0
    for text in lines:
        s = text.split(';')[0].strip()
        if not s:
            out.append((text, {'kind': 'label'})); continue
        c = classify(s)
        need = 0
        def req(pred, ws):
            nonlocal need
            d = dist_back(pred, ws)
            if d is not None and d < ws: need = max(need, ws - d)
        S = set(c['src']); D = set(c['dst'])
        vS = {r for r in S if r[0] in 'va'}; vD = {r for r in D if r[0] in 'va'}
        sS = {r for r in S if r[0] == 's'}
        kind = c['kind']
        if kind == 'mfma':
            req(lambda p: p['kind'] == 'valu' and set(p['dst']) & vS, 2)
            req(lambda p: p['kind'] == 'valu' and ('s', 'exec') in p['dst'], 4)
            AB = set(c['srcA']) | set(c['srcB']); C = set(c['srcC'])
            for ps, wAB, wC in ((8, 12, 10), (4, 8, 6)):
                req(lambda p: p['kind'] == 'mfma' and p['passes'] == ps and set(p['dst']) & AB, wAB)
                req(lambda p: p['kind'] == 'mfma' and p['passes'] == ps and (set(p['dst']) & C) and not (p['dst'] == c['srcC'] and p['passes'] == c['passes']), wC)
                req(lambda p: p['kind'] == 'mfma' and p['passes'] == ps and (set(p['dst']) & vD) and not (p['dst'] == c['srcC']), wC)
        if kind in ('valu', 'vmem', 'ds'):
            for ps, w in ((8, 12), (4, 8)):
                req(lambda p: p['kind'] == 'mfma' and p['passes'] == ps and set(p['dst']) & (vS | vD), w)
        if kind == 'valu':
            for ps, w in ((8, 7), (4, 3)):
                req(lambda p: p['kind'] == 'mfma' and p['passes'] == ps and set(p['srcC']) & vD, w)
            req(lambda p: p['kind'] == 'valu' and p.get('trans') and set(p['dst']) & vS and not c.get('trans_ok'), 1)
            req(lambda p: p['kind'] == 'vmem' and p.get('wide') and set(p['data']) & vD, 2)
            req(lambda p: p['kind'] == 'valu' and set(p['dst']) & sS, 2)
            if c.get('dpp'):
                req(lambda p: p['kind'] in ('valu',) and set(p['dst']) & vS, 2)
                req(lambda p: p['kind'] == 'valu' and ('s', 'exec') in p['dst'], 5)
            if c.get('permlane'):
                req(lambda p: p['kind'] == 'valu' and set(p['dst']) & vS, 2)
            if c.get('lane'):
                req(lambda p: p['kind'] == 'valu' and set(p['dst']) & vS, 1)
                req(lambda p: p['kind'] == 'valu' and ('s', 'exec') in p['dst'], 4)
            if 'sdwa' in c['op'] or 'op_sel' in s: pass
            req(lambda p: p['kind'] == 'valu' and p.get('sdwa_dst') and set(p['dst']) & vS, 1)
        if kind in ('vmem', 'ds'):
            req(lambda p: p['kind'] == 'vmem' and p.get('wide') and set(p['data']) & vD, 1)
        if kind == 'vmem':
            req(lambda p: p['kind'] == 'valu' and set(p['dst']) & sS, 5)
            if c.get('lds'):
                req(lambda p: p['kind'] == 'salu' and ('s', 'm0') in p['dst'], 1)
        if kind in ('salu', 'smem'):
            req(lambda p: p['kind'] == 'valu' and set(p['dst']) & sS, 2)
        while need > 0:
            n = min(need, 16)
            out.append(('  s_nop %d' % (n - 1), {'kind': 'nop', 'n': n, 'dst': [], 'src': []})); need -= n; nins += 1
        out.append((text, c))
    return [t for t, _ in out], nins

class Asm:
    def __init__(self):
        self.lines = []
        self.vm = []
        self.lg = []
        self.seen = set()
        self.tagcount = {}
    def __call__(self, text, tag=None):
        for l in text.strip('\n').split('\n'):
            s = l.strip()
            if not s: continue
            self.lines.append(s if s.endswith(':') or s.startswith('.') else '  ' + s)
            op = s.split()[0]
            if tag is not None: self.seen.add(tag); self.tagcount[tag] = self.tagcount.get(tag, 0) + 1
            if (op.startswith('buffer_') or op.startswith('global_')):
                self.vm.append(tag)
            elif op.startswith('ds_'):
                self.lg.append(tag)
            elif op == 's_waitcnt':
                m = re.search(r'vmcnt\((\d+)\)', s)
                if m:
                    n = int(m.group(1)); self.vm = self.vm[len(self.vm) - n:] if n < len(self.vm) and n > 0 else ([] if n == 0 else self.vm)
                m = re.search(r'lgkmcnt\((\d+)\)', s)
                if m:
                    n = int(m.group(1)); self.lg = self.lg[len(self.lg) - n:] if n < len(self.lg) and n > 0 else ([] if n == 0 else self.lg)
    def wait_vm(self, tag):
        assert tag in self.seen, 'waiting for a tag never issued: %s' % tag
        idx = [i for i, t in enumerate(self.vm) if t == tag]
        if not idx: return
        n = len(self.vm) - 1 - idx[-1]
        self('s_waitcnt vmcnt(%d)' % min(n, 63))
    def wait_lg(self, tag):
        assert tag in self.seen, 'waiting for a tag never issued: %s' % tag
        idx = [i for i, t in enumerate(self.lg) if t == tag]
        if not idx: return
        n = len(self.lg) - 1 - idx[-1]
        self('s_waitcnt lgkmcnt(%d)' % min(n, 15))
    def comment(self, s): self.lines.append('  ; ' + s)

def vr(i, n=1, p='v'):
    return '%s%d' % (p, i) if n == 1 else '%s[%d:%d]' % (p, i, i + n - 1)
def ar(i, n=1): return vr(i, n, 'a')
def sr(i, n=1): return vr(i, n, 's')

def kernel_header(name):
    return '.text\n.globl %s\n.p2align 8\n.type %s,@function\n%s:' % (name, name, name)

def kernel_desc(name, vgpr, accum, sgpr=102):
    return '''.section .rodata,"a"
.p2align 6
.amdhsa_kernel %s
  .amdhsa_next_free_vgpr %d
  .amdhsa_next_free_sgpr %d
  .amdhsa_accum_offset %d
  .amdhsa_group_segment_fixed_size 0
  .amdhsa_kernarg_size 120
  .amdhsa_user_sgpr_count 2
  .amdhsa_user_sgpr_kernarg_segment_ptr 1
  .amdhsa_system_sgpr_workgroup_id_x 1
  .amdhsa_float_denorm_mode_32 3
  .amdhsa_float_denorm_mode_16_64 3
.end_amdhsa_kernel''' % (name, vgpr, sgpr, accum)


import os
DIAG = int(os.environ.get('DIAG', '0'))
NKERN = int(os.environ.get('NKERN', '4'))
STAMP_OFF = 60*1024*1024
S_STAMP = 64
class Stamps:
    def __init__(self): self.n = 0
STNAMES = os.environ.get('STAMPS', '').split(',') if os.environ.get('STAMPS') else None
def nstamp(a, name):
    if not DIAG or STNAMES is None or name not in STNAMES: return
    i = STNAMES.index(name)
    a(('s_memtime' if DIAG == 2 else 's_memrealtime') + ' s[%d:%d]' % (S_STAMP + 2*i, S_STAMP + 2*i + 1))
def stamp(a, st, force=False):
    if not DIAG: return
    if STNAMES is not None and not force: return
    assert st.n < 16
    a(('s_memtime' if DIAG == 2 else 's_memrealtime') + ' s[%d:%d]' % (S_STAMP + 2*st.n, S_STAMP + 2*st.n + 1))
    a.lg_smem = True
    st.n += 1
def stamp_flush(a, st, kidx, s_ws, s_wave=None, vtmp=250):
    if not DIAG: return
    if STNAMES is not None: st.n = len(STNAMES)
    stamp(a, st, True)
    a('s_waitcnt vmcnt(0) lgkmcnt(0)')
    stamp(a, st, True)
    a('s_waitcnt lgkmcnt(0)')
    a('s_lshl_b32 s96, s2, 8')
    if s_wave is not None:
        a('s_lshl_b32 s97, s%d, 6' % s_wave); a('s_add_u32 s96, s96, s97')
    a('s_add_u32 s96, s96, %d' % (STAMP_OFF + kidx*512*256))
    a('s_mov_b64 exec, 1')
    a('v_mov_b32 v%d, 0' % vtmp)
    for i in range(st.n):
        a('v_mov_b32 v%d, s%d' % (vtmp+1, S_STAMP + 2*i))
        a('buffer_store_dword v%d, v%d, s[%d:%d], s96 offen offset:%d' % (vtmp+1, vtmp, s_ws, s_ws+3, 4*i))
    a('s_waitcnt vmcnt(0)')
    if DIAG == 3:
        lab = 'DBG_SKIP_%d_%d' % (kidx, len(a.lines))
        a('s_cmp_lg_u32 s96, %d' % (STAMP_OFF + kidx*512*256))
        a('s_cbranch_scc1 %s' % lab)
        a('s_load_dwordx2 s[98:99], s[0:1], 104')
        a('s_waitcnt lgkmcnt(0)')
        a('s_add_u32 s98, s98, %d' % (512*(NKERN-1-kidx)))
        a('s_addc_u32 s99, s99, 0')
        for i, k in enumerate((0, 1, st.n-2, st.n-1)):
            a('v_mov_b32 v%d, s%d' % (vtmp+1, S_STAMP + 2*k))
            a('global_store_dword v%d, v%d, s[98:99] offset:%d' % (vtmp, vtmp+1, 16*kidx + 4*i))
        a('s_waitcnt vmcnt(0)')
        a('%s:' % lab)
```

```python
from asmlib import *
import os as _os

def slots_of(text):
    op = text.split()[0]
    if op in TRANS: return 2
    if op == 'ds_write_b128': return 5
    if op.startswith('ds_write'): return 2
    if op.startswith('buffer_store') or op.startswith('global_store'): return int(_os.environ.get('CST', 3))
    if op.startswith('buffer_load') or op.startswith('global_load'):
        return int(_os.environ.get('CLD', 2))
    return 1

import re as _re, os as _os
VOP2 = ('v_add_f32','v_sub_f32','v_subrev_f32','v_mul_f32','v_fmac_f32','v_min_f32','v_max_f32','v_add_u32','v_sub_u32','v_subrev_u32','v_and_b32','v_or_b32','v_xor_b32',
        'v_lshlrev_b32','v_lshrrev_b32','v_mul_u32_u24','v_min_u32','v_max_u32','v_cndmask_b32')
VOP1 = ('v_mov_b32','v_exp_f32','v_rcp_f32','v_sqrt_f32','v_sin_f32','v_cos_f32','v_rndne_f32','v_permlane32_swap_b32','v_permlane16_swap_b32','v_readfirstlane_b32')
def _lit(o):
    o = o.strip()
    if _re.match(r'^-?[vas]\d|^[vas]\[|^vcc|^exec|^m0|^scc', o): return False
    if o in ('0.5','-0.5','1.0','-1.0','2.0','-2.0','4.0','-4.0','0.15915494'): return False
    try:
        v = int(o, 0); return not (-16 <= v <= 64)
    except ValueError: return True
def bytes_of(text):
    op, ops = split_ops(text)
    if op.startswith('s_'):
        if op.startswith('s_load') or op.startswith('s_mem'): return 8
        if op in ('s_waitcnt','s_barrier','s_nop','s_sleep','s_branch','s_movk_i32') or op.startswith('s_cbranch'): return 4
        return 8 if any(_lit(o) for o in ops[(0 if op.startswith('s_cmp') else 1):]) else 4
    if op in VOP1: return 8 if (_lit(ops[1]) or ops[1].startswith('-')) else 4
    if op in VOP2:
        if op == 'v_cndmask_b32' and ops[3] != 'vcc': return 8
        if not _re.match(r'^v\d', ops[2]) or ops[1].startswith('-v'): return 8
        return 8 if _lit(ops[1]) else 4
    if op.startswith('v_cmp'): return 4 if (ops[0] == 'vcc' and not _lit(ops[1])) else 8
    return 8

class Stream:
    def __init__(self, name): self.name = name; self.q = []; self.last = -10**9; self.gate = None
    def ins(self, text, tag=None, ready=0, delay=0, group=None):
        self.q.append((lambda a, t=text, g=tag: a(t, g), slots_of(text), ready, delay, group, bytes_of(text)))
    def fn(self, f, cost=1, ready=0, delay=0, group=None):
        self.q.append((f, cost, ready, delay, group, 4*cost))

class Sched:
    GAP = int(_os.environ.get('GAP', 6))
    BYT = int(_os.environ.get('BYT', 48))
    def __init__(self, a):
        self.a = a; self.mf = 0; self.streams = []; self.used = 0; self.ub = 0; self.always = []
    def stream(self, name):
        s = Stream(name); self.streams.append(s); return s
    def mfma(self, text):
        self.fill()
        self.a(text); self.mf += 1; self.used = 0; self.ub = 0
    def must(self, text, tag=None):
        self.a(text, tag); self.used += slots_of(text); self.ub += bytes_of(text)
    def must_fn(self, f):
        n = len(self.a.lines); f(self.a)
        for l in self.a.lines[n:]:
            s = l.strip()
            if s and not s.endswith(':') and not s.startswith(';'): self.used += slots_of(s); self.ub += bytes_of(s)
    def fill(self, reserve=0):
        prog = True
        while prog:
            prog = False
            for s in self.always + self.streams:
                if not s.q or (s.gate and not s.gate()): continue
                f, cost, ready, delay, group, nb = s.q[0]
                if ready > self.mf or s.last + delay > self.mf: continue
                room = self.GAP - reserve - self.used
                if cost > room and not (cost > self.GAP and self.used == 0): continue
                if self.ub + nb + 4*reserve > self.BYT: continue
                s.q.pop(0); f(self.a); self.used += cost; self.ub += nb; s.last = self.mf; prog = True
                break
    def drain(self, group=None, stream=None):
        for s in self.streams:
            if stream is not None and s is not stream: continue
            if group is None: n = len(s.q)
            else:
                idx = [i for i, it in enumerate(s.q) if it[4] == group]
                n = idx[-1] + 1 if idx else 0
            for _ in range(n):
                f, cost, ready, delay, g, nb = s.q.pop(0)
                assert ready <= self.mf, 'draining unready filler %s' % s.name
                f(self.a); self.used += cost; s.last = self.mf
            if n and group is not None: self.note = (group, n)
    def pending(self): return {s.name: sum(it[1] for it in s.q) for s in self.streams}
```

```python
import sys, os, struct
from asmlib import *
from sched import *
def P(name, dflt): return int(os.environ.get(name, dflt))
def f32bits(x): return struct.unpack('<I', struct.pack('<f', x))[0]
PFX = "recurrent_scan__ssm_conv_s5__dense_activation_silu__prompt"
LOG2E = 1.4426950408889634

WSB      = P('WSB', 0)
NONCE_OFF= 0
STAT_OFF = 16384
AGG_OFF  = 65536
FS       = 128
LNF_OFF  = 256*1024
HFL_OFF  = 384*1024
HSF_OFF  = 448*1024
CFL_OFF  = 512*1024
OOB      = 0x7ffffff0
XF_OFF   = 1024*1024
CF_OFF   = 4*1024*1024
HF_OFF   = 8*1024*1024
HF_RB    = 360*1024
PF_OFF   = 32*1024*1024
PY_OFF   = 48*1024*1024
WS_USED  = 64*1024*1024
A_X, A_LRE, A_LIM, A_BRE, A_BIM, A_CRE, A_CIM, A_LDT, A_DSK, B_X, B_W1, B_W2, D_OUT, D_DBG, D_WS = [8*i for i in range(15)]

SLAB = 73728
E_OFF = 2*SLAB
TB_OFF = E_OFF + 2048
LDS_BYTES = TB_OFF + 8192

def srd(a, s, lo, nbytes):
    a('s_mov_b32 s%d, s%d' % (s, lo))
    a('s_and_b32 s%d, s%d, 0xffff' % (s+1, lo+1))
    a('s_mov_b32 s%d, 0x%x' % (s+2, nbytes))
    a('s_mov_b32 s%d, 0x00020000' % (s+3))

S_WS = 8; S_W1 = 12; S_BRE = 16; S_BIM = 20; S_WT = 24
S_X = 16; S_OUT = 20
S_G = 28; S_N = 29; S_W = 30; S_XB = 31; S_T = 32; S_M0W = 33
S_P = 34
S_HB = 37; S_T2 = 38; S_BB = 39; S_NL2E = 40; S_TX = 41; S_TF = 42; S_CNT = 43; S_HS = 44; S_NONCE = 45
S_MT = 46; S_NT = 47; S_SP = 48; S_WB = 49; S_WSTR = 50; S_MW = 51; S_T3 = 52; S_T4 = 53; S_MASK = 54; S_TEAM = 55
S_SHORT = S_XB
S_ORD = 56
S_HBB = S_HB; S_HN = S_TX; S_PB = S_BB
SP0 = 96

V_XO = 1; V_WD = 3; V_BD = 4; V_TR = 5; V_BR = 7; V_HO = 11; V_T0 = 13
V_XV = 16; V_ACC = 48; V_WF = 176; V_ET = 200; V_SC = 208
V_W2D = 253
def xfrag(blk, ks):
    idx = (ks*2 + blk)*4
    return ar(idx, 4) if idx < 256 else vr(V_XV + idx - 256, 4)
def acc(s, blk): return V_ACC + 32*s + 16*blk
(R_LR, R_LI, R_CR, R_CI, R_P32R, R_P32I, R_P256R, R_P256I, R_T1, R_T2, R_T3, R_T4, R_ER, R_EI, R_TG0, R_TG1, R_EA, R_SIDX, R_AO, R_TW) = range(V_SC, V_SC+20)
R_BUF = V_SC + 20
R_TWA, R_TRD, R_P512R, R_P512I, R_GH, R_AW = range(244, 250)
R_NLI = 4
R_NCI = R_TG1
R_U0 = R_T4
R_MR, R_MI = 1, 2
R_LLR, R_LLI = 7, 8
V_PL = 250
V_PA = 252
V_RDB = 251
assert R_BUF % 4 == 0 and R_ER % 4 == 0

WSR = 's[%d:%d]' % (S_WS, S_WS+3)
label_n = [0]
def poll_loop(a, loads, check, sleep=1):
    label_n[0] += 1; L = 'POLL%d' % label_n[0]
    a('s_mov_b32 s%d, 0' % S_CNT)
    a(L + ':')
    check(a)
    a('s_cbranch_scc1 %s_OK' % L)
    a('s_add_u32 s%d, s%d, 1' % (S_CNT, S_CNT))
    a('s_cmp_gt_u32 s%d, %d' % (S_CNT, P('SPIN', 20000)))
    a('s_cbranch_scc1 %s_OK' % L)
    a('s_sleep %d' % sleep)
    save = list(a.vm)
    loads(a)
    a('s_waitcnt vmcnt(0)')
    a.vm = save
    a('s_branch %s' % L)
    a(L + '_OK:')

def chk_all_eq(reg):
    def f(a):
        a('v_cmp_ne_u32 vcc, s%d, v%d' % (S_NONCE, reg))
        a('s_nop 1')
        a('s_cmp_eq_u64 vcc, 0')
    return f

def epi_ffn(E, s, pi, c, ready, blks=(0, 1)):
    grp = ('acc', s)
    els = [(blk, j) for blk in blks for j in range(16)]
    n = len(els)
    r = lambda e: acc(s, els[e][0]) + els[e][1]
    t = lambda e: V_ET + (e % 8)
    I = lambda text, tag=None: E.ins(text, tag, ready, 0, grp)
    I('s_lshl_b32 s%d, s%d, 5' % (S_T2, S_P+pi))
    I('s_add_u32 s%d, s%d, s%d' % (S_T2, S_T2, S_HB))
    for step in range(n + 6):
        e = step
        if e < n: I('v_mul_f32 v%d, s%d, v%d' % (t(e), S_NL2E, r(e)))
        e = step - 1
        if 0 <= e < n: I('v_exp_f32 v%d, v%d' % (t(e), t(e)))
        e = step - 2
        if 0 <= e < n: I('v_add_f32 v%d, 1.0, v%d' % (t(e), t(e)))
        e = step - 3
        if 0 <= e < n: I('v_rcp_f32 v%d, v%d' % (t(e), t(e)))
        e = step - 4
        if 0 <= e < n: I('v_mul_f32 v%d, v%d, v%d' % (t(e), t(e), r(e)))
        e = step - 5
        if 0 <= e < n and e % 2 == 1:
            base = r(e - e % 8)
            I('v_cvt_pk_bf16_f32 v%d, v%d, v%d' % (base + (e % 8)//2, t(e-1), t(e)))
            if e % 8 == 7:
                blk = els[e][0]; fr = (e % 16)//8
                I('buffer_store_dwordx4 %s, v%d, %s, s%d offen offset:%d sc1' % (vr(base, 4), V_HO+blk, WSR, S_T2, c*2048 + fr*1024), 'st')

def cmul_add(F, dr, di, ar_, ai, br, bi, cr, ci, ready=0):
    F.ins('v_fma_f32 v%d, -v%d, v%d, v%d' % (R_T1, ai, bi, cr), None, ready)
    F.ins('v_fma_f32 v%d, v%d, v%d, v%d' % (R_T2, ai, br, ci), None, ready)
    F.ins('v_fma_f32 v%d, v%d, v%d, v%d' % (dr, ar_, br, R_T1), None, ready)
    F.ins('v_fma_f32 v%d, v%d, v%d, v%d' % (di, ar_, bi, R_T2), None, ready)

def csq(F, dr, di, sr_, si):
    F.ins('v_mul_f32 v%d, v%d, v%d' % (R_T1, si, si))
    F.ins('v_mul_f32 v%d, v%d, v%d' % (R_T2, sr_, si))
    F.ins('v_fma_f32 v%d, v%d, v%d, -v%d' % (dr, sr_, sr_, R_T1))
    F.ins('v_add_f32 v%d, v%d, v%d' % (di, R_T2, R_T2))

def scan_tables(F):
    F.ins('v_lshlrev_b32 v%d, 16, v%d' % (R_T3, R_T3))
    F.ins('v_lshlrev_b32 v%d, 16, v%d' % (R_T4, R_T4))
    F.ins('v_lshlrev_b32 v%d, 16, v%d' % (R_ER, R_ER))
    F.ins('v_mul_f32 v%d, 0x%08x, v%d' % (R_ER, f32bits(LOG2E), R_ER))
    F.ins('v_exp_f32 v%d, v%d' % (R_ER, R_ER))
    F.ins('v_cvt_pk_bf16_f32 v%d, v%d, v%d' % (R_ER, R_ER, R_ER))
    F.ins('v_lshlrev_b32 v%d, 16, v%d' % (R_ER, R_ER))
    F.ins('v_mul_f32 v%d, v%d, v%d' % (R_T1, R_ER, R_T3))
    F.ins('v_mul_f32 v%d, v%d, v%d' % (R_T2, R_ER, R_T4))
    F.ins('v_mul_f32 v%d, 0x%08x, v%d' % (R_T1, f32bits(LOG2E), R_T1))
    F.ins('v_exp_f32 v%d, v%d' % (R_T1, R_T1))
    F.ins('v_mul_f32 v%d, 0.15915494, v%d' % (R_T2, R_T2))
    F.ins('v_rndne_f32 v%d, v%d' % (R_EI, R_T2))
    F.ins('v_sub_f32 v%d, v%d, v%d' % (R_T2, R_T2, R_EI))
    F.ins('v_cos_f32 v%d, v%d' % (R_LR, R_T2))
    F.ins('v_sin_f32 v%d, v%d' % (R_LI, R_T2))
    F.ins('v_mul_f32 v%d, v%d, v%d' % (R_LR, R_LR, R_T1))
    F.ins('v_mul_f32 v%d, v%d, v%d' % (R_LI, R_LI, R_T1))
    F.ins('v_add_f32 v%d, -1.0, v%d' % (R_ER, R_LR))
    F.ins('v_mul_f32 v%d, v%d, v%d' % (R_T1, R_T3, R_T3))
    F.ins('v_fmac_f32 v%d, v%d, v%d' % (R_T1, R_T4, R_T4))
    F.ins('v_rcp_f32 v%d, v%d' % (R_T1, R_T1))
    F.ins('v_mul_f32 v%d, v%d, v%d' % (R_CR, R_ER, R_T3))
    F.ins('v_fmac_f32 v%d, v%d, v%d' % (R_CR, R_LI, R_T4))
    F.ins('v_mul_f32 v%d, v%d, v%d' % (R_CI, R_LI, R_T3))
    F.ins('v_fma_f32 v%d, -v%d, v%d, v%d' % (R_CI, R_ER, R_T4, R_CI))
    F.ins('v_mul_f32 v%d, v%d, v%d' % (R_CR, R_CR, R_T1))
    F.ins('v_mul_f32 v%d, v%d, v%d' % (R_CI, R_CI, R_T1))
    csq(F, R_P32R, R_P32I, R_LR, R_LI)
    for _ in range(4): csq(F, R_P32R, R_P32I, R_P32R, R_P32I)
    csq(F, R_P256R, R_P256I, R_P32R, R_P32I)
    for _ in range(2): csq(F, R_P256R, R_P256I, R_P256R, R_P256I)
    csq(F, R_P512R, R_P512I, R_P256R, R_P256I)
    F.ins('v_mov_b32 v%d, s%d' % (R_TG0, S_NONCE))
    F.ins('v_sub_f32 v%d, 0, v%d' % (R_NLI, R_LI))
    F.ins('v_sub_f32 v%d, 0, v%d' % (R_NCI, R_CI))

def ureg(part, tt): return acc(part, tt >> 4) + (tt & 15)
def uim(tt): return R_U0 if tt == 0 else acc(1, 0) + tt - 1

def scan_early(F, ready, half):
    for tt in range(16*half, 16*half + 16):
        ur, ui, un = ureg(0, tt), ureg(1, tt), uim(tt)
        F.ins('v_mul_f32 v%d, v%d, v%d' % (un, R_CI, ur), None, ready)
        F.ins('v_mul_f32 v%d, v%d, v%d' % (ur, R_CR, ur))
        F.ins('v_fmac_f32 v%d, v%d, v%d' % (un, R_CR, ui))
        F.ins('v_fmac_f32 v%d, v%d, v%d' % (ur, R_NCI, ui))
        if tt == 0: continue
        pairs = [(R_ER, R_EI), (R_T1, R_T2)]
        nr, ni = pairs[(31 - tt) % 2]
        er, ei = (ureg(0, 0), uim(0)) if tt == 1 else pairs[(32 - tt) % 2]
        F.ins('v_fma_f32 v%d, v%d, v%d, v%d' % (ni, R_LI, er, un))
        F.ins('v_fma_f32 v%d, v%d, v%d, v%d' % (nr, R_NLI, ei, ur))
        F.ins('v_fmac_f32 v%d, v%d, v%d' % (ni, R_LR, ei))
        F.ins('v_fmac_f32 v%d, v%d, v%d' % (nr, R_LR, er))
    if half == 0: return
    F.ins('ds_write_b64 v%d, %s' % (R_EA, vr(R_ER, 2)), 'ew')
    F.fn(lambda a: (a.wait_lg('ew'), a('s_barrier')), 2, 0, 2)
    for n in range(4):
        F.ins('ds_read_b128 %s, v%d offset:%d' % (vr(R_BUF+4*n, 4), R_TW, E_OFF % 65536 + 16*n), 'er')
    F.ins('v_mov_b32 v%d, s%d' % (R_TG1, S_NONCE))
    F.ins('s_add_u32 s%d, s%d, %d' % (S_TF, S_BB, 8*9216))
    F.fn(lambda a: a.wait_lg('er'), 1, 0, 4)
    cmul_add(F, R_ER, R_EI, R_P32R, R_P32I, R_BUF, R_BUF+1, R_BUF+2, R_BUF+3)
    for s in range(2, 8):
        cmul_add(F, R_ER, R_EI, R_P32R, R_P32I, R_ER, R_EI, R_BUF+2*s, R_BUF+2*s+1)
    F.ins('buffer_store_dwordx4 %s, v%d, %s, s%d offen sc1' % (vr(R_ER, 4), R_AW, WSR, S_TF), 'st')
    F.ins('v_mov_b32 v%d, 0' % R_LLR); F.ins('v_mov_b32 v%d, 0' % R_LLI); F.ins('v_mov_b32 v%d, 1.0' % R_MR); F.ins('v_mov_b32 v%d, 0' % R_MI)
    F.ins('v_mov_b32 v%d, 0' % R_CR)
    for s in range(7):
        F.ins('v_cmp_lt_u32 s[60:61], %d, v%d' % (s, R_SIDX))
        cmul_add(F, R_T3, R_CI, R_P32R, R_P32I, R_LLR, R_LLI, R_BUF+2*s, R_BUF+2*s+1)
        F.ins('v_cndmask_b32 v%d, v%d, v%d, s[60:61]' % (R_LLR, R_LLR, R_T3))
        F.ins('v_cndmask_b32 v%d, v%d, v%d, s[60:61]' % (R_LLI, R_LLI, R_CI))
        cmul_add(F, R_T3, R_CI, R_P32R, R_P32I, R_MR, R_MI, R_CR, R_CR)
        F.ins('v_cndmask_b32 v%d, v%d, v%d, s[60:61]' % (R_MR, R_MR, R_T3))
        F.ins('v_cndmask_b32 v%d, v%d, v%d, s[60:61]' % (R_MI, R_MI, R_CI))

def agg_insts():
    out = []
    for m in range(4):
        out.append('s_add_u32 s%d, s%d, %d' % (S_TF, S_BB, 2*m*9216))
        out.append('buffer_load_dwordx4 %s, v%d, %s, s%d offen sc1' % (vr(R_BUF+4*m, 4), R_AO, WSR, S_TF))
    return out
def agg_check(a):
    for m in range(4):
        a('v_cmp_le_u32 vcc, %d, v%d' % (8-2*m, R_GH))
        a('v_cndmask_b32 v%d, v%d, v%d, vcc' % (R_BUF+4*m+3, R_TG0, R_BUF+4*m+2))
    a('v_xor_b32 v%d, v%d, v%d' % (R_T1, R_BUF+3, R_BUF+7))
    a('v_xor_b32 v%d, v%d, v%d' % (R_T2, R_BUF+11, R_BUF+15))
    a('v_xor_b32 v%d, v%d, v%d' % (R_T3, R_BUF+3, R_TG0))
    a('v_xor_b32 v%d, v%d, v%d' % (R_CI, R_BUF+11, R_TG0))
    a('v_or3_b32 v%d, v%d, v%d, v%d' % (R_T1, R_T1, R_T2, R_T3))
    a('v_or_b32 v%d, v%d, v%d' % (R_T1, R_T1, R_CI))
    a('v_cmp_ne_u32 vcc, 0, v%d' % R_T1)
    a('s_nop 1')
    a('s_cmp_eq_u64 vcc, 0')

def scan_late(F, ready_poll):
    for t in agg_insts(): F.ins(t, 'poll', ready_poll)
    F.fn(lambda a: (a.wait_vm('poll'), poll_loop(a, lambda a: [a(t) for t in agg_insts()], agg_check)), 5, 0, P('POLLD', 34))
    for m in range(4):
        F.ins('v_cmp_le_u32 s[60:61], %d, v%d' % (8-2*m, R_GH))
        F.ins('v_cndmask_b32 v%d, 0, v%d, s[60:61]' % (R_BUF+4*m, R_BUF+4*m))
        F.ins('v_cndmask_b32 v%d, 0, v%d, s[60:61]' % (R_BUF+4*m+1, R_BUF+4*m+1))
    cmul_add(F, R_ER, R_EI, R_P512R, R_P512I, R_BUF, R_BUF+1, R_BUF+4, R_BUF+5)
    for m in range(2, 4):
        cmul_add(F, R_ER, R_EI, R_P512R, R_P512I, R_ER, R_EI, R_BUF+4*m, R_BUF+4*m+1)
    F.ins('v_mov_b32 v%d, v%d' % (R_T3, R_ER)); F.ins('v_mov_b32 v%d, v%d' % (R_CI, R_EI))
    F.ins('v_permlane32_swap_b32 v%d, v%d' % (R_ER, R_T3)); F.ins('v_permlane32_swap_b32 v%d, v%d' % (R_EI, R_CI))
    cmul_add(F, R_ER, R_EI, R_P256R, R_P256I, R_ER, R_EI, R_T3, R_CI)
    cmul_add(F, R_ER, R_EI, R_MR, R_MI, R_ER, R_EI, R_LLR, R_LLI)
    pr, pi_ = R_ER, R_EI
    land = lambda part, blk: R_BUF if (part, blk) == (1, 0) else acc(part, blk) + 8
    def pack(part, blk):
        b = acc(part, blk); neg = '-' if part else ''
        src = (lambda t: uim(16*blk + t)) if part else (lambda t: b + t)
        for k in range(8):
            F.ins('v_cvt_pk_bf16_f32 v%d, %sv%d, %sv%d' % (b+k, neg, src(2*k), neg, src(2*k+1)))
        for u in range(2):
            F.ins('ds_write_b128 v%d, %s offset:%d' % (R_TWA, vr(b+4*u, 4), 16*u), 'tw')
        for ph in range(2):
            for u in range(2):
                F.ins('ds_read_b64_tr_b16 %s, v%d offset:%d' % (vr(land(part, blk)+4*ph+2*u, 2), R_TRD, ph*1024 + u*256), 'tr%d%d' % (part, blk))
    def store(part, blk, dl):
        b = land(part, blk)
        F.ins('s_add_u32 s%d, s%d, %d' % (S_TF, S_HS, part*36*1024))
        F.fn(lambda a: a.wait_lg('tr%d%d' % (part, blk)), 1, 0, dl)
        for ph in range(2):
            F.ins('buffer_store_dwordx4 %s, v%d, %s, s%d offen offset:%d sc1' % (vr(b+4*ph, 4), V_HO+blk, WSR, S_TF, ph*1024), 'hs')
    for tt in range(32):
        ur, ui = ureg(0, tt), uim(tt)
        F.ins('v_fmac_f32 v%d, v%d, v%d' % (ur, R_NLI, pi_))
        F.ins('v_fmac_f32 v%d, v%d, v%d' % (ui, R_LI, pr))
        F.ins('v_fmac_f32 v%d, v%d, v%d' % (ur, R_LR, pr))
        F.ins('v_fmac_f32 v%d, v%d, v%d' % (ui, R_LR, pi_))
        pr, pi_ = ur, ui
        if tt == 16: pack(0, 0); pack(1, 0)
        if tt == 24: store(0, 0, 0); store(1, 0, 0)
    pack(0, 1); pack(1, 1); store(0, 1, 2); store(1, 1, 2)
    F.fn(hs_flag, 5, 0, P('HSD', 36), 'hsflag')

def hs_flag(a):
    a('s_add_u32 s%d, s%d, %d' % (S_TF, S_T4, HSF_OFF))
    a.wait_vm('hs'); a('s_barrier')
    a('buffer_store_dword v%d, v%d, %s, s%d offen sc1' % (R_TG0, V_PA, WSR, S_TF), 'fl')

def dma_w1(a, slab, pi, n, tag, vreg=V_WD, dm=0):
    a('s_add_u32 m0, s%d, %d' % (S_M0W, slab*SLAB + n*4096 + dm))
    a('s_add_u32 s%d, s%d, %d' % (S_T, S_P+pi, n*32*9216))
    a('buffer_load_dwordx4 v%d, s[%d:%d], s%d offen lds' % (vreg, S_W1, S_W1+3, S_T), tag)

def dma_b(a, kb, part, tag, vreg=V_BD, dm=0):
    a('s_add_u32 m0, s%d, %d' % (S_M0W, kb*8192 + part*4096 + dm))
    a('s_movk_i32 s%d, %d' % (S_T, kb*128))
    s = S_BIM if part else S_BRE
    a('buffer_load_dwordx4 v%d, s[%d:%d], s%d offen lds' % (vreg, s, s+3, S_T), tag)

def xload(a, ks, blk):
    if ks % 4 == 0: a('s_add_u32 s%d, s%d, %d' % (S_TX, S_XB, (ks//4)*4096))
    a('buffer_load_dwordx4 %s, v%d, %s, s%d offen offset:%d sc1' % (xfrag(blk, ks), V_XO+blk, WSR, S_TX, (ks % 4)*1024), 'x%d_%d' % (blk, ks))

def w2_slot(ks):
    u = ks // 2
    base = (SLAB if u < 6 else 0) + (u % 3)*6144
    return base + (ks % 2)*3072
def w2_dma(ks):
    out = ['s_add_u32 m0, s%d, %d' % (S_MW, w2_slot(ks))]
    for n in range(3):
        out.append('buffer_load_dwordx4 v%d, s[%d:%d], s%d offen offset:%d sc1 lds' % (V_W2D+n, S_WT, S_WT+3, S_WB, n*1024))
    out.append('s_add_u32 s%d, s%d, s%d' % (S_WB, S_WB, S_WSTR))
    return out

def phaseB_setup(F, ready):
    I = lambda t: F.ins(t, None, ready)
    def ld(a):
        a('s_load_dwordx2 s[%d:%d], s[0:1], %d' % (SP0, SP0+1, B_W2))
    F.fn(ld, 1, ready)
    I('s_and_b32 s3, s2, 7'); I('s_lshr_b32 s4, s2, 3')
    I('s_mul_i32 s5, s4, 43'); I('s_lshr_b32 s5, s5, 8')
    I('s_mul_i32 s6, s5, 6'); I('s_sub_u32 s%d, s4, s6' % S_NT)
    I('s_mul_i32 s3, s3, 5'); I('s_add_u32 s3, s3, s5')
    I('s_lshr_b32 s%d, s3, 3' % S_SP); I('s_and_b32 s%d, s3, 7' % S_MT)
    I('s_mul_i32 s%d, s%d, 18432' % (S_MW, S_W))
    I('s_mul_i32 s3, s%d, 1152' % S_SP); I('s_mul_i32 s4, s%d, 288' % S_W); I('s_add_u32 s3, s3, s4')
    I('s_mul_i32 s3, s3, 1152'); I('s_mul_i32 s4, s%d, 192' % S_NT); I('s_add_u32 s3, s3, s4')
    I('s_lshl_b32 s4, s%d, 2' % S_NT); I('s_add_u32 s4, s4, s%d' % S_W); I('s_mul_i32 s4, s4, 55296'); I('s_add_u32 s4, s4, %d' % CF_OFF)
    for n in range(3):
        I('v_add_u32 v13, %d, v0' % (64*n))
        I('v_mul_u32_u24 v14, 0x1556, v13'); I('v_lshrrev_b32 v14, 16, v14')
        I('v_mul_u32_u24 v15, 960, v14')
        I('v_lshl_add_u32 v%d, v0, 4, v15' % (V_W2D+n))
    I('v_lshrrev_b32 v14, 5, v0'); I('v_lshlrev_b32 v14, 2, v14'); I('v_bfe_u32 v15, v0, 2, 2'); I('v_add_u32 v14, v14, v15')
    I('v_mul_u32_u24 v14, 192, v14')
    I('v_bfe_u32 v15, v0, 4, 1'); I('v_lshl_add_u32 v14, v15, 5, v14')
    I('v_and_b32 v15, 3, v0'); I('v_lshl_add_u32 v%d, v15, 3, v14' % V_RDB)
    def sel(a):
        a('s_waitcnt lgkmcnt(0)')
        a('s_cmp_eq_u32 s%d, 4' % S_SP)
        a('s_cselect_b32 s%d, s4, s3' % S_WB)
        a('s_cselect_b32 s%d, 3072, s%d' % (S_WSTR, S_WSTR))
        a('s_cselect_b32 s%d, s%d, s%d' % (S_WT, S_WS, SP0))
        a('s_cselect_b32 s%d, s%d, s%d' % (S_WT+1, S_WS+1, SP0+1))
        a('s_cselect_b32 s%d, s%d, s%d' % (S_WT+2, S_WS+2, S_WT+2))
        a('s_cselect_b64 vcc, -1, 0')
        a('s_and_b32 s%d, s%d, 0xffff' % (S_WT+1, S_WT+1))
        a('v_lshlrev_b32 v13, 4, v0')
        for n in range(3): a('v_cndmask_b32 v%d, v%d, v13, vcc' % (V_W2D+n, V_W2D+n))
        a('v_cndmask_b32 v%d, v%d, v13, vcc' % (V_RDB, V_RDB))
        a('s_add_u32 s3, s%d, %d' % (S_MW, SLAB)); a('v_add_u32 v%d, s3, v%d' % (V_RDB, V_RDB))
    I('s_mov_b32 s%d, %d' % (S_WSTR, 16*1152)); I('s_mov_b32 s%d, %d' % (S_WT+2, 4608*1152)); I('s_mov_b32 s%d, 0x00020000' % (S_WT+3))
    F.fn(sel, 5, ready, 4)
    I('s_lshl_b32 s3, s%d, 12' % S_G); I('s_lshl_b32 s4, s%d, 7' % S_N); I('s_add_u32 s%d, s3, s4' % S_T4)
    I('v_or_b32 v%d, s%d, v0' % (V_PA, S_W)); I('v_min_u32 v%d, 1, v%d' % (V_PA, V_PA)); I('v_lshlrev_b32 v%d, 30, v%d' % (V_PA, V_PA))
    I('v_mov_b32 v%d, s%d' % (V_PL, S_NONCE))

def cfl_check(a):
    label_n[0] += 1; L = 'CFS%d' % label_n[0]
    a('s_cmp_lg_u32 s%d, 4' % S_SP); a('s_cbranch_scc1 %s' % L)
    save = list(a.vm)
    a('v_min_u32 v13, 47, v0'); a('v_lshlrev_b32 v13, 7, v13'); a('s_mov_b32 s%d, %d' % (S_T3, CFL_OFF))
    ldc = 'buffer_load_dword v14, v13, %s, s%d offen sc1' % (WSR, S_T3)
    a(ldc); a('s_waitcnt vmcnt(0)')
    poll_loop(a, lambda a: a(ldc), chk_all_eq(14))
    a.vm = save
    a(L + ':')

def w2_read_br(ks):
    def f(a):
        label_n[0] += 1; L = 'WR%d' % label_n[0]
        off = w2_slot(ks) - SLAB
        a.wait_vm('v%d' % ks)
        a('s_cmp_eq_u32 s%d, 4' % S_SP); a('s_cbranch_scc1 %s_S' % L)
        save = list(a.lg)
        for dt in range(3):
            base = (ks*3 + dt)*4
            a('ds_read_b64_tr_b16 %s, v%d offset:%d' % (ar(base, 2), V_RDB, off + dt*64), 'wr%d' % ks)
            a('ds_read_b64_tr_b16 %s, v%d offset:%d' % (ar(base+2, 2), V_RDB, off + dt*64 + 1536), 'wr%d' % ks)
        a('s_branch %s_E' % L)
        a(L + '_S:')
        a.lg = save
        for dt in range(3):
            base = (ks*3 + dt)*4
            a('ds_read_b64 %s, v%d offset:%d' % (ar(base, 2), V_RDB, off + dt*1024), 'wr%d' % ks)
            a('ds_read_b64 %s, v%d offset:%d' % (ar(base+2, 2), V_RDB, off + dt*1024 + 8), 'wr%d' % ks)
        a(L + '_E:')
    return f

def phaseA(a, mixed, st):
    S = Sched(a)
    SC = S.stream('scan'); D = S.stream('dma'); E = S.stream('epi'); B = S.stream('bpre')
    pend = [lambda a, ks=ks, blk=blk: xload(a, ks, blk) for blk in range(2) for ks in range(36)]
    for _ in range(P('XBURST', 16)): pend.pop(0)(a)
    nstamp(a, 'xb'); a('s_barrier'); nstamp(a, 'bar0')
    if mixed: scan_tables(SC)
    phaseB_setup(B, 0)
    frs = []
    for blk in range(2):
        for ks in range(36):
            for c in range(2): frs.append(('p1', blk, ks, c))
    for ci in range(4):
        for ks in range(36): frs.append(('c', ci, ks, ci & 1))
    consumed = [0]; trbase = [0, 0]; reads = []
    def pre(n):
        kind, ci, ks, c = frs[n]
        def f(a):
            if kind == 'p1' and mixed and ks == 32 and c == 0:
                for r in range(4): a('v_add_u32 v%d, 0x10000, v%d' % (V_BR+r, V_BR+r))
            if kind == 'p1' and mixed and ks == 0 and c == 0 and ci == 1:
                for r in range(4): a('v_subrev_u32 v%d, 0x10000, v%d' % (V_BR+r, V_BR+r))
            if kind == 'c' and ci == 0 and ks == 0:
                a('s_waitcnt lgkmcnt(0)'); a('s_barrier')
                for k in range(18): D.fn(lambda a, k=k: dma_w1(a, 0, 2, k, 'w2'), 4, 0, P('W2SP', 4))
            if kind == 'c' and ci == 2 and ks == 0:
                assert not pend and not D.q
                a.wait_vm('w2'); a('s_waitcnt lgkmcnt(0)'); a('s_barrier')
            if not (kind == 'p1' and mixed):
                slab = 0 if kind == 'p1' else (1 if ci < 2 else 0)
                bias = slab*SLAB + (36864 if ks >= 18 else 0)
                if trbase[c] != bias:
                    a('v_add_u32 v%d, 0x%x, v%d' % (V_TR+c, (bias - trbase[c]) & 0xffffffff, V_TR+c)); trbase[c] = bias
        return f
    for n, (kind, ci, ks, c) in enumerate(frs):
        dst = V_WF + 4*(n % 6); tag = 'f%d' % n
        if kind == 'p1' and mixed:
            reads.append((n, lambda a, n=n, dst=dst, ks=ks, c=c, tag=tag: (pre(n)(a), a('ds_read_b128 %s, v%d offset:%d' % (vr(dst, 4), V_BR + (ks & 3), ((ks >> 2)*8192 + c*4096) % 65536), tag))))
        else:
            off = (ks % 18)*2048
            reads.append((n, lambda a, n=n, dst=dst, c=c, off=off, tag=tag: (pre(n)(a), a('ds_read_b64_tr_b16 %s, v%d offset:%d' % (vr(dst, 2), V_TR+c, off), tag))))
            reads.append((n, lambda a, dst=dst, c=c, off=off, tag=tag: a('ds_read_b64_tr_b16 %s, v%d offset:%d' % (vr(dst+2, 2), V_TR+c, off+512), tag)))
    def issue_reads(quota):
        while reads and quota > 0 and reads[0][0] < consumed[0] + 6:
            S.must_fn(reads.pop(0)[1]); quota -= 1
    def issued(n): return not reads or reads[0][0] > n
    accset = [2, 3, 2, 3] if mixed else [2, 3, 0, 1]
    issue_reads(100)
    n = 0
    while n < len(frs):
        kind, ci, ks, c = frs[n]
        if kind == 'p1' and ks == 1 and c == 0 and ci == 0: stamp(a, st); nstamp(a, 'p1s')
        if kind == 'p1' and ks == 0 and c == 0 and ci == 1:
            nstamp(a, 'p1b')
            S.drain(stream=B)
            if mixed: scan_early(SC, S.mf + 3, 0)
            else:
                epi_ffn(E, 0, 0, 0, S.mf + 3, (0,)); epi_ffn(E, 1, 0, 1, S.mf + 3, (0,))
        if kind == 'c' and ks == 0:
            if ci in (0, 2): stamp(a, st)
            nstamp(a, 'c%d' % ci)
            S.drain(('acc', accset[ci]))
            rdy = S.mf + 2
            if ci == 0:
                if mixed:
                    scan_early(SC, rdy, 1); scan_late(SC, S.mf + P('POLLAT', 100))
                else:
                    epi_ffn(E, 0, 0, 0, rdy, (1,)); epi_ffn(E, 1, 0, 1, rdy, (1,))
            else:
                epi_ffn(E, accset[ci-1], 1 + (ci-1)//2, (ci-1) & 1, rdy)
            if ci == 1:
                S.streams = [D, E, SC, B]
            if ci == 0: S.drain(stream=B)
            if ci == 2:
                B.fn(cfl_check, 2, S.mf + 2)
                for k2 in range(6):
                    for t in w2_dma(k2): B.ins(t, 'v%d' % k2, S.mf + P('W2AT', 4) + 11*k2)
                S.streams = [B, E, SC]
            if ci == 3:
                for k2 in range(6):
                    B.fn(w2_read_br(k2), 5, S.mf + 5 + 11*k2)
                    B.fn(lambda a, k2=k2: a.wait_lg('wr%d' % k2), 1, 0, 4)
                    for t in w2_dma(k2+6): B.ins(t, 'v%d' % (k2+6))
                S.streams = [B, SC, E] if P('SCF', 1) else [B, E, SC]
        while not issued(n): issue_reads(1)
        S.fill(reserve=2 if kind == 'p1' and c == 0 else 1)
        if kind == 'p1':
            if c == 0:
                S.must_fn(lambda a: a.wait_vm('x%d_%d' % (ci, ks)))
                S.must_fn(lambda a: a.wait_lg('f%d' % (n+1) if issued(n+1) else 'f%d' % n))
            else: S.must_fn(lambda a: a.wait_lg('f%d' % n))
        else:
            if ks % 2 == 0 and n + 1 < len(frs) and issued(n+1): S.must_fn(lambda a: a.wait_lg('f%d' % (n+1)))
            S.must_fn(lambda a: a.wait_lg('f%d' % n))
        blks = (ci,) if kind == 'p1' else (0, 1)
        for blk in blks:
            sset = c if kind == 'p1' else accset[ci]
            d = vr(acc(sset, blk), 16); w = vr(V_WF + 4*(n % 6), 4); x = xfrag(blk, ks)
            A, Bo = (x, w) if (mixed and kind == 'p1') else (w, x)
            S.mfma('v_mfma_f32_32x32x16_bf16 %s, %s, %s, %s' % (d, A, Bo, d if ks else '0'))
            if blk == blks[-1]: consumed[0] = n + 1
            issue_reads(2 if kind == 'p1' else 1)
            if pend and (c == 0 if kind == 'p1' else blk == 0): S.must_fn(pend.pop(0))
        n += 1
    sys.stderr.write('phaseA mixed=%d pending at end: %s\n' % (mixed, S.pending()))
    stamp(a, st); nstamp(a, 'tl0')
    S.mf += 1000
    S.drain(stream=B)
    a('s_barrier')
    epi_ffn(E, accset[3], 2, 1, 0)
    late = [it for it in SC.q if it[4] == 'hsflag']
    q = [it for it in SC.q if it[4] != 'hsflag'] + E.q; SC.q = []; E.q = []
    nsc = len(q) - len([1 for it in q if it[4] is not None and it[4][0] == 'acc'])
    for i, it in enumerate(q):
        it[0](a)
        if late and i == nsc + P('HSD2', 200): late.pop()[0](a)
    nstamp(a, 'tl1')
    for k2 in range(12, 15):
        for t in w2_dma(k2): a(t, 'v%d' % k2)
    for k2 in range(6, 12): w2_read_br(k2)(a)
    if late: late.pop()[0](a)
    a('s_add_u32 s%d, s%d, %d' % (S_TF, S_T4, HFL_OFF))
    a.wait_vm('st'); a('s_barrier')
    a('buffer_store_dword v%d, v%d, %s, s%d offen sc1' % (V_PL, V_PA, WSR, S_TF), 'fl')
    nstamp(a, 'flg')
    for k2 in range(15, 18):
        for t in w2_dma(k2): a(t, 'v%d' % k2)
    stamp(a, st); nstamp(a, 't1')

VB_HO = 1; VB_O = 2; VB_RD = 5; VB_RW = 6; VB_T = 7; VB_RR = 10; VB_PO = 13
VB_ACC = 16; VB_RB = 112; VB_H = 152
A_XX = 216
RED = 36864
S_FB = 34
def wfrag(ks, dt): return ar((ks*3 + dt)*4, 4)
def accr(s, dt): return VB_ACC + 48*s + 16*dt
X = os.environ.get('X', '')

def w2_read(a, ks, ssm):
    sl = w2_slot(ks); hi = sl >= SLAB
    for dt in range(3):
        base = (ks*3 + dt)*4
        reg = VB_RD if hi else VB_RW
        off = sl - (SLAB if hi else 0)
        if ssm:
            a('ds_read_b128 %s, v%d offset:%d' % (ar(base, 4), reg, off + dt*1024), 'wr%d' % ks)
        else:
            a('ds_read_b64_tr_b16 %s, v%d offset:%d' % (ar(base, 2), reg, off + dt*64), 'wr%d' % ks)
            a('ds_read_b64_tr_b16 %s, v%d offset:%d' % (ar(base+2, 2), reg, off + dt*64 + 1536), 'wr%d' % ks)

def reduce_fill(R, i, ready, send, ssm, io=None, dl=1):
    s = i & 1; grp = ('acc', s); buf = s*RED
    if io is None: io = i
    for q in range(1, 4):
        for dt in range(3):
            R.ins('ds_write_b128 v%d, %s offset:%d' % (VB_RW, vr(accr(s, dt) + 4*q, 4), buf + (q-1)*3072 + dt*1024), 'rw%d' % i, ready, P('WRD', 2), grp)
    R.fn(lambda a: (a.wait_lg('rw%d' % i), a('s_barrier')), 2, 0, 2*dl)
    for q in range(1, 4):
        for dt in range(3):
            R.ins('ds_read_b128 %s, v%d offset:%d' % (vr(VB_RB + ((q-1)*3+dt)*4, 4), VB_RR+q-1, buf + dt*1024), 'rr%d' % i)
    R.fn(lambda a: a.wait_lg('rr%d' % i), 1, 0, 4*dl)
    for k in range(12):
        own = accr(s, k//4) + k % 4
        R.ins('v_add_f32 v%d, v%d, v%d' % (VB_RB+k, VB_RB+k, own), None, 0, 0, grp)
        R.ins('v_add_f32 v%d, v%d, v%d' % (VB_RB+12+k, VB_RB+12+k, VB_RB+24+k))
    SB = VB_RB + 24
    for k in range(12):
        dst = SB + 4*(k//3) + k % 3 if (send and ssm) else VB_RB + k
        R.ins('v_add_f32 v%d, v%d, v%d' % (dst, VB_RB+k, VB_RB+12+k), 'sum%d' % i)
    if send:
        ng = 4 if ssm else 2
        if not ssm:
            for p in range(6): R.ins('v_cvt_pk_bf16_f32 v%d, v%d, v%d' % (SB + 4*(p//3) + p % 3, VB_RB+2*p, VB_RB+2*p+1))
        for g in range(ng): R.ins('v_mov_b32 v%d, s%d' % (SB + 4*g + 3, S_NONCE))
        R.ins('s_mul_i32 s%d, s%d, %d' % (S_TF, S_ORD+io, 6*4*ng*1024))
        R.ins('s_add_u32 s%d, s%d, s%d' % (S_TF, S_TF, S_PB))
        for g in range(ng):
            R.ins('buffer_store_dwordx4 %s, v%d, %s, s%d offen offset:%d sc1' % (vr(SB+4*g, 4), VB_PO, WSR, S_TF, g*1024), 'st', 0, 2 if g else 0)

def ffn_loads(quads):
    return ['buffer_load_dwordx4 %s, v%d, %s, s%d offen offset:%d sc1' % (vr(quads[src*2+g], 4), VB_PO, WSR, S_FB+src, g*1024) for src in range(3) for g in range(2)]
def y_loads(quads):
    return ['buffer_load_dwordx4 %s, v%d, %s, s%d offen offset:%d sc1' % (vr(quads[g], 4), VB_RD, WSR, S_T2, g*1024) for g in range(4)]
def tag_check(quads):
    def f(a):
        t = [q+3 for q in quads]
        for op, d in (('v_min3_u32', VB_T), ('v_max3_u32', VB_T+1)):
            a('%s v%d, v%d, v%d, v%d' % (op, d, t[0], t[1], t[2]))
            r = t[3:]
            while r:
                a('%s v%d, v%d, v%d, v%d' % (op, d, d, r[0], r[1] if len(r) > 1 else r[0])); r = r[2:]
        a('v_cmp_ne_u32 vcc, s%d, v%d' % (S_NONCE, VB_T))
        a('v_cmp_ne_u32 s[4:5], s%d, v%d' % (S_NONCE, VB_T+1))
        a('s_nop 1')
        a('s_or_b64 vcc, vcc, s[4:5]')
        a('s_cmp_eq_u64 vcc, 0')
    return f
def checked(G, tag, loads, quads, dl):
    G.fn(lambda a: (a.wait_vm(tag), poll_loop(a, lambda a: [a(t) for t in loads], tag_check(quads), P('RSLEEP', 8))), 5, 0, dl)
def presum(G, quads, ps):
    pk = lambda src, k: quads[src*2 + (k//2)//3] + (k//2) % 3
    unp = lambda d, src, k: ('v_and_b32 v%d, 0xffff0000, v%d' if k % 2 else 'v_lshlrev_b32 v%d, 16, v%d') % (d, pk(src, k))
    for k in range(12):
        G.ins(unp(ps(k), 0, k)); G.ins(unp(VB_T, 1, k)); G.ins(unp(VB_T+1, 2, k))
        G.ins('v_add_f32 v%d, v%d, v%d' % (ps(k), ps(k), VB_T)); G.ins('v_add_f32 v%d, v%d, v%d' % (ps(k), ps(k), VB_T+1))
def prep_s(G, j, yq):
    y = lambda k: yq[k//3] + k % 3
    for k in range(12):
        G.ins('v_accvgpr_read_b32 v%d, a%d' % (VB_T + k % 2, A_XX+12*j+k))
        G.ins('v_and_b32 v%d, 0xffff0000, v%d' % (VB_T + k % 2, VB_T + k % 2))
        G.ins('v_fma_f32 v%d, 2.0, v%d, v%d' % (y(k), y(k), VB_T + k % 2))
OUTFL = os.environ.get('OUTFL', '')
def chain(G, j, ps, yq, first=None):
    y = lambda k: yq[k//3] + k % 3
    o = lambda k: VB_RB + k
    t1 = lambda k: VB_RB + 12 + k
    t2 = lambda k: VB_RB + 24 + k
    rnd = [lambda k: None if k % 2 else 'v_cvt_pk_bf16_f32 v%d, v%d, v%d' % (o(k+1), o(k), o(k+1)),
           lambda k: ('v_and_b32 v%d, 0xffff0000, v%d' % (o(k), o(k))) if k % 2 else ('v_lshlrev_b32 v%d, 16, v%d' % (o(k), o(k+1)))]
    stages = [lambda k: 'v_add_f32 v%d, v%d, v%d' % (o(k), o(k), ps(k))] + rnd + [
        lambda k: 'v_mul_f32 v%d, s%d, v%d' % (t1(k), S_NL2E, o(k)),
        lambda k: 'v_exp_f32 v%d, v%d' % (t1(k), t1(k)),
        lambda k: 'v_accvgpr_read_b32 v%d, a%d' % (t2(k), A_XX+12*j+k),
        lambda k: 'v_add_f32 v%d, 1.0, v%d' % (t1(k), t1(k)),
        lambda k: 'v_rcp_f32 v%d, v%d' % (t1(k), t1(k)),
        lambda k: 'v_lshlrev_b32 v%d, 16, v%d' % (t2(k), t2(k)),
        lambda k: 'v_mul_f32 v%d, v%d, v%d' % (o(k), o(k), t1(k))] + rnd + [
        lambda k: 'v_fma_f32 v%d, v%d, v%d, v%d' % (t2(k), y(k), o(k), t2(k)),
        lambda k: 'buffer_store_dword v%d, v%d, s[%d:%d], s%d offen offset:%d%s' % (t2(k), VB_O+1 + (k % 4)//2, S_OUT, S_OUT+3, S_T3, (k % 2)*2304 + (k//4)*128, OUTFL)]
    if first: G.fn(first, 0)
    for k0 in range(0, 12, 4):
        for stg in stages:
            for k in range(k0, k0+4):
                t = stg(k)
                if t: G.ins(t, 'out')

XT = 224
def xx_setup(a):
    a('s_load_dwordx2 s[%d:%d], s[0:1], %d' % (SP0, SP0+1, A_X))
    a('s_load_dwordx2 s[%d:%d], s[0:1], %d' % (SP0+2, SP0+3, D_OUT))
    a('s_load_dwordx2 s[%d:%d], s[0:1], %d' % (SP0+4, SP0+5, A_DSK))
def xx_fill(G):
    T = XT; I = G.ins
    SA, DA = T+27, T+28
    I('s_lshl_b32 s3, s%d, 8' % S_MT); I('s_lshl_b32 s4, s%d, 6' % S_SP); I('s_add_u32 s3, s3, s4')
    I('s_lshl_b32 s4, s%d, 2' % S_W); I('s_add_u32 s3, s3, s4')
    I('v_and_b32 v%d, 32, v0' % VB_O); I('v_add_u32 v%d, s3, v%d' % (VB_O, VB_O))
    I('v_lshlrev_b32 v%d, 3, v%d' % (SA, VB_O))
    I('v_mul_u32_u24 v%d, 576, v%d' % (VB_O, VB_O))
    I('v_and_b32 v%d, 31, v0' % (VB_O+1)); I('s_mul_i32 s4, s%d, 96' % S_NT)
    I('v_add_u32 v%d, s4, v%d' % (DA, VB_O+1)); I('v_add_u32 v%d, v%d, v%d' % (VB_O, VB_O, DA)); I('v_lshlrev_b32 v%d, 1, v%d' % (DA, DA))
    I('v_lshlrev_b32 v%d, 2, v%d' % (VB_O+1, VB_O)); I('v_add_u32 v%d, 4608, v%d' % (VB_O+2, VB_O+1)); I('v_lshlrev_b32 v%d, 1, v%d' % (VB_O, VB_O))
    G.fn(lambda a: srd(a, S_X, SP0, 2048*1152), 4); G.fn(lambda a: srd(a, S_OUT, SP0+2, 2048*2304), 4)
    I('s_movk_i32 s7, %d' % (16*1152)); I('s_mov_b32 s6, %d' % STAT_OFF)
    for dt in range(3):
        I('global_load_ushort v%d, v%d, s[%d:%d] offset:%d' % (T+20+dt, DA, SP0+4, SP0+5, dt*64), 'xx0')
    for j in range(2):
        for k in range(12):
            I('buffer_load_ushort v%d, v%d, s[%d:%d], %s offen offset:%d' % (T+k, VB_O, S_X, S_X+3, 's7' if j else '0', (k % 4)*1152 + (k//4)*64), 'xx%d' % j)
        for u in range(2):
            I('buffer_load_dwordx4 %s, v%d, %s, s6 offen offset:%d sc1' % (vr(T+12+4*u, 4), SA, WSR, j*128 + u*16), 'xx%d' % j)
        G.fn(lambda a, j=j: a.wait_vm('xx%d' % j), 1, 0, P('XXD', 40))
        if j == 0:
            for dt in range(3): I('v_lshlrev_b32 v%d, 16, v%d' % (T+20+dt, T+20+dt))
        x = lambda k: T+k
        t = lambda k: T+23+k % 4
        mm = lambda k: T+12+2*(k % 4)
        rnd = [lambda k: None if k % 2 else 'v_cvt_pk_bf16_f32 v%d, v%d, v%d' % (t(k+1), t(k), t(k+1)),
               lambda k: ('v_and_b32 v%d, 0xffff0000, v%d' % (t(k), t(k))) if k % 2 else ('v_lshlrev_b32 v%d, 16, v%d' % (t(k), t(k+1)))]
        st = [lambda k: 'v_lshlrev_b32 v%d, 16, v%d' % (x(k), x(k)),
              lambda k: 'v_sub_f32 v%d, v%d, v%d' % (t(k), x(k), mm(k))] + rnd + [
              lambda k: 'v_mul_f32 v%d, v%d, v%d' % (t(k), t(k), mm(k)+1)] + rnd + [
              lambda k: 'v_mul_f32 v%d, v%d, v%d' % (t(k), t(k), T+20+k//4),
              lambda k: 'v_cvt_pk_bf16_f32 v%d, v%d, v%d' % (t(k), x(k), t(k)),
              lambda k: 'v_accvgpr_write_b32 a%d, v%d' % (A_XX+12*j+k, t(k))]
        for k0 in range(0, 12, 4):
            for s in st:
                for k in range(k0, k0+4):
                    tx = s(k)
                    if tx: I(tx)

def flag_lanes(a, two):
    PA = VB_RB + 8
    a('v_and_b32 v14, 31, v0'); a('v_lshrrev_b32 v15, v14, s%d' % S_MASK); a('v_and_b32 v15, 1, v15'); a('v_xor_b32 v15, 1, v15')
    a('v_lshlrev_b32 v%d, 7, v0' % PA)
    if not two:
        a('v_lshrrev_b32 v14, 5, v0'); a('v_or_b32 v15, v15, v14')
    a('v_lshl_add_u32 v%d, v15, 30, v%d' % (PA, PA))
def flag_poll(a, off_reg, nld, stride):
    PL = VB_RB; PA = VB_RB + 8
    def ld(a):
        for i in range(nld):
            if i: a('s_add_u32 s6, s%d, %d' % (off_reg, i*stride))
            a('buffer_load_dword v%d, v%d, %s, s%d offen sc1' % (PL+i, PA, WSR, 6 if i else off_reg), 'hp')
    def chk(a):
        a('v_cmp_ne_u32 s[4:5], s%d, v%d' % (S_NONCE, PL))
        for i in range(1, nld):
            a('v_cmp_ne_u32 vcc, s%d, v%d' % (S_NONCE, PL+i)); a('s_nop 1'); a('s_or_b64 s[4:5], s[4:5], vcc')
        if nld > 1: a('s_or_b32 s4, s4, s5')
        else: a('s_nop 1')
        a('s_and_b32 s4, s4, s%d' % S_MASK)
        a('s_cmp_eq_u32 s4, 0')
    return ld, chk

def b_common(a, ssm):
    a('s_mul_i32 s%d, s%d, %d' % (S_HBB, S_MT, 8*HF_RB)); a('s_mul_i32 s3, s%d, %d' % (S_SP, 72*1024))
    a('s_add_u32 s%d, s%d, s3' % (S_HBB, S_HBB)); a('s_add_u32 s%d, s%d, %d' % (S_HBB, S_HBB, HF_OFF))
    a('s_lshl_b32 s4, s%d, 3' % S_W)
    a('v_add_u32 v14, s4, v0'); a('v_and_b32 v14, 31, v14'); a('v_and_b32 v15, 32, v0'); a('v_add_u32 v14, v14, v15')
    a('s_mul_i32 s3, s%d, %d' % (S_W, 18*1024)); a('v_lshl_add_u32 v%d, v14, 4, s3' % VB_HO)
    a('s_mul_i32 s%d, s%d, 48' % (S_TEAM, S_MT)); a('s_add_u32 s%d, s%d, s%d' % (S_TEAM, S_TEAM, S_NT))
    if ssm:
        a('s_lshl_b32 s3, s%d, 14' % S_TEAM); a('s_add_u32 s%d, s3, %d' % (S_PB, PY_OFF))
        a('s_lshl_b32 s3, s%d, 12' % S_W); a('v_lshl_add_u32 v%d, v0, 4, s3' % VB_PO)
    else:
        a('s_lshl_b32 s3, s%d, 13' % S_TEAM); a('s_mul_i32 s4, s%d, %d' % (S_SP, 64*6*8192)); a('s_add_u32 s3, s3, s4'); a('s_add_u32 s%d, s3, %d' % (S_PB, PF_OFF))
        a('s_lshl_b32 s3, s%d, 11' % S_W); a('v_lshl_add_u32 v%d, v0, 4, s3' % VB_PO)
    for q in range(1, 4):
        a('s_sub_u32 s3, s%d, %d' % (S_W, q)); a('s_and_b32 s3, s3, 3'); a('s_mul_i32 s3, s3, 9216'); a('s_add_u32 s3, s3, %d' % ((q-1)*3072))
        a('v_lshl_add_u32 v%d, v0, 4, s3' % (VB_RR+q-1))

def phaseB(a, ssm, st):
    NH = P('NHS', 24) if ssm else P('NHF', 18)
    hslot = lambda n: VB_H + 4*(n % NH)
    def hload(a, n):
        i, ks = divmod(n, 18)
        if ks == 0:
            a('s_mul_i32 s%d, s%d, %d' % (S_HN, S_ORD+i, HF_RB)); a('s_add_u32 s%d, s%d, s%d' % (S_HN, S_HN, S_HBB))
        elif ks % 4 == 0: a('s_add_u32 s%d, s%d, 4096' % (S_HN, S_HN))
        a('buffer_load_dwordx4 %s, v%d, %s, s%d offen offset:%d sc1' % (vr(hslot(n), 4), VB_HO, WSR, S_HN, (ks % 4)*1024), 'h%d' % n)
    a.vm = ['v17']; a.seen |= {'v17'}
    a('v_subrev_u32 v%d, %d, v%d' % (VB_RW, SLAB, V_RDB))
    if ssm:
        for i, r in enumerate((0, 2, 4, 6, 1, 3, 3, 3)): a('s_mov_b32 s%d, %d' % (S_ORD+i, r))
        a('s_mov_b32 s%d, 0x3ffff' % S_MASK); a('s_mov_b32 s%d, 1' % S_SHORT)
    else:
        for i in range(3):
            a('s_add_u32 s3, s%d, %d' % (S_SP, i+1)); a('s_and_b32 s3, s3, 3'); a('s_lshl_b32 s%d, s3, 1' % (S_ORD+i)); a('s_add_u32 s%d, s%d, 1' % (S_ORD+3+i, S_ORD+i))
        a('s_lshl_b32 s%d, s%d, 1' % (S_ORD+6, S_SP)); a('s_add_u32 s%d, s%d, 1' % (S_ORD+7, S_ORD+6))
        a('s_mul_i32 s3, s%d, 9' % S_SP); a('s_lshl_b32 s3, 0x1ff, s3')
        a('s_mul_i32 s4, s%d, 6' % S_SP); a('s_add_u32 s4, s4, 6'); a('s_lshl_b32 s4, 0x3f, s4')
        a('s_cmp_lt_u32 s%d, 2' % S_SP); a('s_cselect_b32 s%d, s3, s4' % S_MASK)
    flag_lanes(a, 0)
    a('s_lshl_b32 s%d, s%d, 12' % (S_T4, S_MT)); a('s_add_u32 s%d, s%d, %d' % (S_T4, S_T4, HSF_OFF if ssm else HFL_OFF))
    ld, chk = flag_poll(a, S_T4, 1, 0)
    ld(a)
    if not ssm:
        b_common(a, ssm)
        a('s_mul_i32 s5, s%d, 12' % S_SP); a('s_add_u32 s5, s5, s%d' % S_TEAM); a('s_lshl_b32 s5, s5, 13')
        for src in range(3):
            a('s_sub_u32 s3, s%d, %d' % (S_SP, src+1)); a('s_and_b32 s3, s3, 3'); a('s_mul_i32 s3, s3, %d' % (64*6*8192))
            a('s_add_u32 s3, s3, s5'); a('s_add_u32 s%d, s3, %d' % (S_FB+src, PF_OFF))
        a('s_lshl_b32 s5, s5, 1'); a('s_add_u32 s%d, s5, %d' % (S_T2, PY_OFF))
        a('s_mov_b32 s%d, 0' % S_T3)
        xx_setup(a)
    a.wait_vm('v17')
    for ks in range(12, 18): w2_read(a, ks, ssm)
    nstamp(a, 't2')
    a.wait_vm('hp')
    poll_loop(a, ld, chk)
    if ssm:
        a('B_SSM2:')
        a.vm = []
        b_common(a, ssm)
    stamp(a, st); nstamp(a, 't3')
    nld = [0]
    def next_h(a):
        if nld[0] < 144: hload(a, nld[0]); nld[0] += 1
    for _ in range(P('HBURST', 12)): next_h(a)
    a('s_waitcnt lgkmcnt(0)')
    a('s_mul_i32 s3, s%d, 9216' % S_W); a('v_lshl_add_u32 v%d, v0, 4, s3' % VB_RW)
    a('s_lshl_b32 s3, s%d, 12' % S_W); a('v_lshl_add_u32 v%d, v0, 4, s3' % VB_RD)
    a('s_barrier')
    S = Sched(a); R = S.stream('red'); G = S.stream('xchg'); C = S.stream('chain')
    C.gate = lambda: not R.q and 'prepA' in a.seen
    if not ssm:
        XR = VB_H + 4*NH
        L = [XR + 4*k for k in range(6)]
        PSr = [XR+24+k for k in range(8)] + [VB_RB+36+k for k in range(4)]
        psA = lambda k: PSr[k]
        yA = L[:4]
        acq = [accr(0, dt) + 4*q for q in (1, 2, 3) for dt in range(3)]
        fB = acq[:6]; yB = [hslot(126+k) for k in range(4)]
        psB = lambda k: acq[6 + k//4] + k % 4
    for i in range(8):
        s = i & 1
        S.drain(('acc', s))
        if ssm and i == 6:
            S.drain()
            a('s_cmp_eq_u32 s%d, 1' % S_SHORT); a('s_cbranch_scc1 B_SSM_TAIL')
        if i in (0, 7): stamp(a, st)
        nstamp(a, 'b%d' % i)
        base = S.mf
        if i > 0: reduce_fill(R, i-1, base + 2, ssm or i-1 < 6, ssm)
        if not ssm:
            if i == 0: xx_fill(G)
            if i == P('FAST', 5):
                for t in ffn_loads(L): G.ins(t, 'fA', base + P('FAAT', 0))
                checked(G, 'fA', ffn_loads(L), L, P('CHKD', 44))
                presum(G, L, psA)
            if i == 6:
                for t in y_loads(yA): G.ins(t, 'yA', base + P('YAAT', 0))
                checked(G, 'yA', y_loads(yA), yA, P('CHKD', 44))
                prep_s(G, 0, yA); G.fn(lambda a: a.seen.add('prepA'), 0)
                for src in range(3): G.ins('s_add_u32 s%d, s%d, %d' % (S_FB+src, S_FB+src, 6*8192))
                G.ins('s_add_u32 s%d, s%d, %d' % (S_T2, S_T2, 6*16384))
            if i == 7:
                G.fn(lambda a: ('rr6' in a.seen) or sys.exit('order'), 0, base + P('FBAT', 24))
                for t in ffn_loads(fB): G.ins(t, 'fB')
                for t in y_loads(yB): G.ins(t, 'yB')
                chain(C, 0, psA, yA)
        for ks in range(18):
            n = 18*i + ks
            S.fill(reserve=1)
            S.must_fn(lambda a: a.wait_vm('h%d' % n))
            for dt in range(3):
                d = vr(accr(s, dt), 16)
                S.mfma('v_mfma_f32_32x32x16_bf16 %s, %s, %s, %s' % (d, vr(hslot(n), 4), wfrag(ks, dt), d if ks else '0'))
                lim = n + NH + (1 if dt == 2 else 0)
                if nld[0] < min(lim, 144) and (dt != 1): S.must_fn(next_h)
    sys.stderr.write('phaseB ssm=%d pending at end: %s\n' % (ssm, S.pending()))
    stamp(a, st); nstamp(a, 'e0')
    S.mf += 1000
    if ssm:
        S.drain()
        a('B_SSM_TAIL:')
        a('s_nop 11')
        a.lg = []
        reduce_fill(R, 7, 0, True, True); S.drain()
        stamp(a, st)
    else:
        S.drain(stream=R); S.drain(stream=G)
        restA = C.q; C.q = []
        reduce_fill(R, 7, 0, False, False)
        wr = R.q[:9]; rest = R.q[9:]
        R.q = []
        k = 0
        while wr or restA[k:]:
            if wr: R.q.append(wr.pop(0))
            R.q += restA[k:k+6]; k += 6
        S.drain()
        stamp(a, st); nstamp(a, 'e1')
        R.q = rest[:10]; S.drain()
        checked(G, 'fB', ffn_loads(fB), fB, 0); presum(G, fB, psB); S.drain()
        nstamp(a, 'e2')
        R.q = rest[10:]; S.drain()
        checked(G, 'yB', y_loads(yB), yB, 0); prep_s(G, 1, yB)
        G.ins('s_mov_b32 s%d, %d' % (S_T3, 16*2304))
        chain(G, 1, psB, yB); S.drain()
        a('s_lshl_b32 s3, s%d, 9' % S_SP); a('s_add_u32 s3, s3, s%d' % S_TEAM); a('s_lshl_b32 s4, s%d, 12' % S_W); a('s_add_u32 s3, s3, s4')
        a('s_cmp_eq_u32 s3, %d' % (7*48))
        a('s_cbranch_scc0 NOBUMP')
        a('v_mov_b32 v14, %d' % NONCE_OFF); a('v_mov_b32 v15, s%d' % S_NONCE)
        a('s_mov_b64 exec, 1')
        a('buffer_store_dword v15, v14, %s, 0 offen sc1' % WSR)
        a('NOBUMP:')
    stamp_flush(a, st, 0, S_WS, S_W, 14)
    a('s_endpgm')

def ln_part(a):
    X = 48; F = 72; T = 112
    a('s_lshl_b32 s3, s2, 1'); a('s_add_u32 s3, s3, s%d' % S_W)
    a('s_lshr_b32 s4, s3, 4'); a('s_lshl_b32 s4, s4, 6')
    a('s_and_b32 s5, s3, 1'); a('s_lshl_b32 s5, s5, 5'); a('s_add_u32 s4, s4, s5')
    a('s_bfe_u32 s5, s3, 0x10003'); a('s_lshl_b32 s5, s5, 4'); a('s_add_u32 s4, s4, s5')
    a('s_bfe_u32 s5, s3, 0x20001'); a('s_lshl_b32 s5, s5, 2'); a('s_add_u32 s4, s4, s5')
    a('v_and_b32 v%d, 3, v0' % T); a('v_lshrrev_b32 v%d, 2, v0' % (T+1))
    a('v_add_u32 v%d, s4, v%d' % (T+2, T))
    a('v_mul_u32_u24 v%d, 1152, v%d' % (T+3, T+2)); a('v_lshl_add_u32 v%d, v%d, 4, v%d' % (T+3, T+1, T+3))
    for k in range(4): a('v_mov_b32 v%d, 0' % (X+16+k))
    a('s_waitcnt lgkmcnt(0)'); nstamp(a, 'ln0')
    for n in range(4):
        a('global_load_dwordx4 %s, v%d, s[%d:%d] offset:%d' % (vr(X+4*n, 4), T+3, SP0, SP0+1, 256*n), 'lx')
    a('s_mov_b32 exec_hi, 0')
    a('global_load_dwordx4 %s, v%d, s[%d:%d] offset:1024' % (vr(X+16, 4), T+3, SP0, SP0+1), 'lx')
    a('s_mov_b32 exec_hi, -1')
    srd(a, S_WS, SP0+2, WS_USED)
    a('s_load_dword s%d, s[%d:%d], %d' % (S_NONCE, SP0+2, SP0+3, NONCE_OFF))
    a('s_lshr_b32 s5, s3, 3'); a('s_mul_i32 s5, s5, 36864'); a('s_and_b32 s6, s3, 7'); a('s_lshl_b32 s6, s6, 7'); a('s_add_u32 s5, s5, s6')
    a('s_add_u32 s5, s5, %d' % XF_OFF)
    a('v_lshrrev_b32 v%d, 3, v0' % (T+4)); a('v_lshlrev_b32 v%d, 10, v%d' % (T+4, T+4))
    a('v_and_b32 v%d, 7, v0' % (T+5)); a('v_lshl_add_u32 v%d, v%d, 4, v%d' % (T+4, T+5, T+4))
    a('v_lshlrev_b32 v%d, 3, v%d' % (T+2, T+2))
    a('s_waitcnt vmcnt(0)'); nstamp(a, 'ln1')
    for n in range(20):
        a('v_lshlrev_b32 v%d, 16, v%d' % (F+2*n, X+n)); a('v_and_b32 v%d, 0xffff0000, v%d' % (F+2*n+1, X+n))
    A = T+8
    def allred(r):
        a('v_add_f32_dpp v%d, v%d, v%d row_ror:4 row_mask:0xf bank_mask:0xf' % (r, r, r))
        a('v_add_f32_dpp v%d, v%d, v%d row_ror:8 row_mask:0xf bank_mask:0xf' % (r, r, r))
        a('v_mov_b32 v%d, v%d' % (T+6, r)); a('v_permlane16_swap_b32 v%d, v%d' % (r, T+6)); a('v_add_f32 v%d, v%d, v%d' % (r, r, T+6))
        a('v_mov_b32 v%d, v%d' % (T+6, r)); a('v_permlane32_swap_b32 v%d, v%d' % (r, T+6)); a('v_add_f32 v%d, v%d, v%d' % (r, r, T+6))
    pr = lambda r: vr(r, 2)
    for k in range(2): a('v_pk_add_f32 %s, %s, %s' % (pr(A+2*k), pr(F+2*k), pr(F+4+2*k)))
    for m in range(2, 10):
        for k in range(2): a('v_pk_add_f32 %s, %s, %s' % (pr(A+2*k), pr(A+2*k), pr(F+4*m+2*k)))
    a('v_pk_add_f32 %s, %s, %s' % (pr(A), pr(A), pr(A+2))); a('v_add_f32 v%d, v%d, v%d' % (A, A, A+1))
    allred(A)
    a('v_mul_f32 v%d, 0x%08x, v%d' % (A, f32bits(1.0/576), A))
    Q = A+4; D = A+8
    for m in range(10):
        if m == 8: a('s_mov_b32 exec_hi, 0')
        for k in range(2): a('v_pk_add_f32 %s, %s, %s op_sel_hi:[1,0] neg_lo:[0,1] neg_hi:[0,1]' % (pr(D+4*(m % 2)+2*k), pr(F+4*m+2*k), pr(A)))
        for k in range(2):
            d = pr(D+4*(m % 2)+2*k)
            a(('v_pk_mul_f32 %s, %s, %s' % (pr(Q+2*k), d, d)) if m == 0 else ('v_pk_fma_f32 %s, %s, %s, %s' % (pr(Q+2*k), d, d, pr(Q+2*k))))
    a('s_mov_b32 exec_hi, -1')
    a('v_pk_add_f32 %s, %s, %s' % (pr(Q), pr(Q), pr(Q+2))); a('v_add_f32 v%d, v%d, v%d' % (A+1, Q, Q+1))
    allred(A+1)
    a('v_mul_f32 v%d, 0x%08x, v%d' % (A+1, f32bits(1.0/576), A+1))
    a('v_cvt_pk_bf16_f32 v%d, v%d, v%d' % (A+2, A, A+1))
    a('v_lshlrev_b32 v%d, 16, v%d' % (A, A+2)); a('v_and_b32 v%d, 0xffff0000, v%d' % (A+1, A+2))
    a('v_add_f32 v%d, 0x%08x, v%d' % (A+1, f32bits(1e-5), A+1))
    a('v_cvt_pk_bf16_f32 v%d, v%d, v%d' % (A+1, A+1, A+1)); a('v_lshlrev_b32 v%d, 16, v%d' % (A+1, A+1))
    a('v_sqrt_f32 v%d, v%d' % (A+1, A+1))
    a('v_cvt_pk_bf16_f32 v%d, v%d, v%d' % (A+1, A+1, A+1)); a('v_lshlrev_b32 v%d, 16, v%d' % (A+1, A+1))
    a('v_rcp_f32 v%d, v%d' % (A+1, A+1))
    for q in range(5):
        if q == 4: a('s_mov_b32 exec_hi, 0')
        ns = range(4*q, 4*q+4)
        for n in ns: a('v_pk_add_f32 %s, %s, %s op_sel_hi:[1,0] neg_lo:[0,1] neg_hi:[0,1]' % (pr(F+2*n), pr(F+2*n), pr(A)))
        for n in ns: a('v_cvt_pk_bf16_f32 v%d, v%d, v%d' % (X+n, F+2*n, F+2*n+1))
        for n in ns: a('v_lshlrev_b32 v%d, 16, v%d' % (F+2*n, X+n)); a('v_and_b32 v%d, 0xffff0000, v%d' % (F+2*n+1, X+n))
        for n in ns: a('v_pk_mul_f32 %s, %s, %s op_sel:[0,1] op_sel_hi:[1,1]' % (pr(F+2*n), pr(F+2*n), pr(A)))
        for n in ns: a('v_cvt_pk_bf16_f32 v%d, v%d, v%d' % (X+n, F+2*n, F+2*n+1))
        a('buffer_store_dwordx4 %s, v%d, %s, s5 offen sc1' % (vr(X+4*q, 4), T+4, WSR))
        if q < 4: a('s_add_u32 s5, s5, 8192')
    a('s_mov_b32 exec_lo, 15')
    a('s_mov_b32 s5, %d' % STAT_OFF)
    assert A % 2 == 0
    a('buffer_store_dwordx2 %s, v%d, %s, s5 offen sc1' % (vr(A, 2), T+2, WSR))
    a('s_mov_b64 exec, -1'); nstamp(a, 'ln2')
    a('s_waitcnt lgkmcnt(0)')
    nonce_mix(a)
    a('s_lshl_b32 s3, s3, 7'); a('s_add_u32 s3, s3, %d' % LNF_OFF)
    a('v_mov_b32 v%d, 0' % T); a('v_mov_b32 v%d, s%d' % (T+1, S_NONCE))
    a('s_mov_b64 exec, 1')
    a('s_waitcnt vmcnt(0)')
    a('buffer_store_dword v%d, v%d, %s, s3 offen sc1' % (T+1, T, WSR)); nstamp(a, 'ln3')
    a('s_mov_b64 exec, -1')

def nonce_mix(a):
    a('s_mul_i32 s%d, s%d, 0x0019660d' % (S_NONCE, S_NONCE))
    a('s_add_u32 s%d, s%d, 0x3c6ef35f' % (S_NONCE, S_NONCE))

def light_part(a):
    if P('LBAR', 1): a('s_barrier')
    a('s_cmp_eq_u32 s%d, 0' % S_W); a('s_cbranch_scc1 LIGHT2')
    a('s_load_dwordx4 s[%d:%d], s[0:1], %d' % (SP0, SP0+3, A_CRE))
    a('s_sub_u32 s3, s2, 240'); a('s_mul_i32 s3, s3, 3'); a('s_add_u32 s3, s3, s%d' % S_W); a('s_sub_u32 s3, s3, 1')
    a('s_lshr_b32 s4, s3, 3'); a('s_mul_i32 s4, s4, %d' % (96*1152))
    a('s_bfe_u32 s5, s3, 0x10001'); a('s_mul_i32 s5, s5, 576'); a('s_add_u32 s4, s4, s5')
    a('s_and_b32 s5, s3, 1'); a('s_mul_i32 s5, s5, 288'); a('s_add_u32 s4, s4, s5')
    a('v_and_b32 v1, 31, v0'); a('v_mul_u32_u24 v1, 1152, v1'); a('v_lshrrev_b32 v2, 5, v0'); a('v_lshl_add_u32 v1, v2, 4, v1'); a('v_add_u32 v1, s4, v1')
    a('v_add_u32 v2, %d, v1' % (32*1152)); a('v_add_u32 v3, %d, v1' % (64*1152))
    a('v_lshlrev_b32 v4, 4, v0')
    a('s_mul_i32 s6, s3, 27648'); a('s_add_u32 s6, s6, %d' % CF_OFF)
    a('s_waitcnt lgkmcnt(0)')
    a('s_bitcmp1_b32 s3, 2')
    a('s_cselect_b32 s%d, s%d, s%d' % (SP0, SP0+2, SP0)); a('s_cselect_b32 s%d, s%d, s%d' % (SP0+1, SP0+3, SP0+1))
    for f in range(27):
        a('global_load_dwordx4 %s, v%d, s[%d:%d] offset:%d' % (vr(16+4*f, 4), 1 + f % 3, SP0, SP0+1, (f//3)*32), 'c%d' % f)
    for f in range(27):
        a.wait_vm('c%d' % f)
        a('buffer_store_dwordx4 %s, v4, %s, s6 offen offset:%d sc1' % (vr(16+4*f, 4), WSR, (f % 4)*1024))
        if f % 4 == 3: a('s_add_u32 s6, s6, 4096')
    a('s_lshl_b32 s3, s3, 7'); a('s_add_u32 s3, s3, %d' % CFL_OFF)
    a('v_mov_b32 v1, 0'); a('v_mov_b32 v2, s%d' % S_NONCE)
    a('s_mov_b64 exec, 1')
    a('s_waitcnt vmcnt(0)')
    a('buffer_store_dword v2, v1, %s, s3 offen sc1' % WSR)
    a('s_mov_b64 exec, -1')
    a('LIGHT2:')
    a.vm = []
    a('s_cmp_ge_u32 s2, 252'); a('s_cbranch_scc1 KEND')
    a('s_sub_u32 s3, s2, 240'); a('s_lshr_b32 s%d, s3, 1' % S_NT); a('s_and_b32 s3, s3, 1')
    a('s_lshl_b32 s4, s3, 1'); a('s_add_u32 s4, s4, 5')
    for i in range(8): a('s_add_u32 s%d, s4, %d' % (S_ORD+i, 8*i))
    a('s_mov_b32 s%d, 0' % S_MT); a('s_mov_b32 s%d, 4' % S_SP); a('s_mov_b32 s%d, 0' % S_SHORT); a('s_mov_b32 s%d, 0x3ffff' % S_MASK)
    a('s_mov_b32 s%d, %d' % (S_T4, HSF_OFF))
    a('v_min_u32 v1, 47, v0'); a('v_lshlrev_b32 v1, 7, v1'); a('s_mov_b32 s%d, %d' % (S_T3, CFL_OFF))
    ldc = 'buffer_load_dword v2, v1, %s, s%d offen sc1' % (WSR, S_T3)
    a(ldc); a('s_waitcnt vmcnt(0)')
    poll_loop(a, lambda a: a(ldc), chk_all_eq(2), 8)
    a('s_lshl_b32 s4, s%d, 2' % S_NT); a('s_add_u32 s4, s4, s%d' % S_W); a('s_mul_i32 s4, s4, 55296'); a('s_add_u32 s4, s4, %d' % CF_OFF)
    a('v_lshlrev_b32 v4, 4, v0')
    for f in range(54):
        a('buffer_load_dwordx4 %s, v4, %s, s4 offen offset:%d sc1' % (ar(4*f, 4), WSR, (f % 4)*1024))
        if f % 4 == 3: a('s_add_u32 s4, s4, 4096')
    flag_lanes(a, 1)
    ld, chk = flag_poll(a, S_T4, 4, 8192)
    ld(a); a('s_waitcnt vmcnt(0)')
    poll_loop(a, ld, chk, 16)
    a('s_branch B_SSM2')

def gen():
    a = Asm()
    name = PFX + '_kernel'
    a(kernel_header(name))
    a('KSTART:')
    a('s_cmp_ge_u32 s2, 256'); a('s_cbranch_scc1 KEND')
    st = Stamps(); stamp(a, st); nstamp(a, 'start')
    for nm in ('ln0', 'ln1', 'ln2', 'ln3', 'w0a', 'w0b'): nstamp(a, nm)
    a('s_load_dwordx2 s[%d:%d], s[0:1], %d' % (SP0, SP0+1, A_X))
    a('s_load_dwordx2 s[%d:%d], s[0:1], %d' % (SP0+2, SP0+3, D_WS))
    a('s_load_dwordx2 s[%d:%d], s[0:1], %d' % (SP0+4, SP0+5, B_W1))
    a('s_load_dwordx4 s[56:59], s[0:1], %d' % A_BRE)
    a('s_load_dwordx4 s[60:63], s[0:1], %d' % A_LRE)
    a('s_load_dwordx2 s[54:55], s[0:1], %d' % A_LDT)
    a('v_lshrrev_b32 v13, 6, v0')
    a('v_readfirstlane_b32 s%d, v13' % S_W)
    a('v_and_b32 v0, 63, v0')
    a('s_cmp_ge_u32 s%d, 2' % S_W); a('s_cbranch_scc1 SKIP_LN')
    ln_part(a)
    a.vm = []
    a('SKIP_LN:')
    a('s_waitcnt lgkmcnt(0)')
    srd(a, S_WS, SP0+2, WS_USED)
    a('s_cmp_lt_u32 s%d, 2' % S_W); a('s_cbranch_scc1 HAVE_NONCE')
    a('s_load_dword s%d, s[%d:%d], %d' % (S_NONCE, SP0+2, SP0+3, NONCE_OFF))
    a('s_cmp_lt_u32 s2, 240'); a('s_cbranch_scc1 HAVE_NONCE')
    a('s_waitcnt lgkmcnt(0)'); nonce_mix(a)
    a('HAVE_NONCE:')
    a('s_cmp_lt_u32 s2, 240'); a('s_cbranch_scc1 HEAVY')
    light_part(a)
    a.vm = []
    a('HEAVY:')
    srd(a, S_W1, SP0+4, 576*9216)
    a('s_and_b32 s3, s2, 7'); a('s_lshr_b32 s4, s2, 3')
    a('s_lshr_b32 s5, s3, 1'); a('s_mul_i32 s5, s5, 30'); a('s_add_u32 s5, s5, s4')
    a('s_lshr_b32 s6, s5, 2')
    a('s_mul_i32 s7, s6, 52'); a('s_lshr_b32 s7, s7, 8')
    a('s_mul_i32 s4, s7, 5'); a('s_sub_u32 s4, s6, s4')
    a('s_mul_i32 s6, s7, 3'); a('s_add_u32 s6, s6, s4')
    a('s_lshl_b32 s7, s7, 1'); a('s_add_u32 s7, s7, s4'); a('s_add_u32 s7, s7, 15')
    a('s_cmp_lt_u32 s4, 3'); a('s_cselect_b32 s%d, s6, s7' % S_N)
    a('s_and_b32 s5, s5, 3'); a('s_and_b32 s3, s3, 1'); a('s_lshl_b32 s3, s3, 2'); a('s_add_u32 s%d, s3, s5' % S_G)
    a('s_lshl_b32 s%d, s%d, 10' % (S_M0W, S_W))
    a('v_lshrrev_b32 v13, 3, v0'); a('v_and_b32 v14, 7, v0'); a('v_bfe_u32 v15, v0, 4, 1'); a('v_lshlrev_b32 v15, 2, v15'); a('v_xor_b32 v14, v14, v15')
    a('s_lshl_b32 s3, s%d, 3' % S_W); a('v_add_u32 v13, s3, v13')
    a('v_mul_u32_u24 v%d, 9216, v13' % V_WD); a('v_lshl_add_u32 v%d, v14, 4, v%d' % (V_WD, V_WD))
    def common2():
        a('s_mov_b32 s%d, 0x%08x' % (S_NL2E, f32bits(-LOG2E)))
        a('s_mul_i32 s%d, s%d, %d' % (S_XB, S_G, 8*36864)); a('s_add_u32 s%d, s%d, %d' % (S_XB, S_XB, XF_OFF))
        a('s_mul_i32 s%d, s%d, %d' % (S_HB, S_G, 8*HF_RB)); a('s_add_u32 s%d, s%d, %d' % (S_HB, S_HB, HF_OFF))
        a('s_mul_i32 s3, s%d, 73728' % S_W)
        a('v_bfe_u32 v14, v0, 2, 3'); a('v_lshlrev_b32 v14, 7, v14'); a('v_lshrrev_b32 v15, 5, v0'); a('v_lshl_add_u32 v14, v15, 6, v14')
        a('v_and_b32 v15, 3, v0'); a('v_lshl_add_u32 v14, v15, 4, v14'); a('v_add_u32 v%d, s3, v14' % V_XO)
        a('v_add_u32 v%d, 36864, v%d' % (V_XO+1, V_XO))
        a('s_mul_i32 s3, s%d, %d' % (S_W, 2*HF_RB))
        a('v_lshl_add_u32 v%d, v0, 4, s3' % V_HO); a('v_add_u32 v%d, %d, v%d' % (V_HO+1, HF_RB, V_HO))
        a('v_lshrrev_b32 v14, 5, v0'); a('v_lshlrev_b32 v14, 10, v14')
        a('v_bfe_u32 v15, v0, 2, 2'); a('v_lshl_add_u32 v14, v15, 7, v14')
        a('v_bfe_u32 v15, v0, 4, 1'); a('v_lshl_add_u32 v14, v15, 5, v14')
        a('v_and_b32 v15, 3, v0'); a('v_lshl_add_u32 v14, v15, 3, v14')
        a('v_bfe_u32 v15, v0, 3, 1'); a('v_lshl_add_u32 v%d, v15, 6, v14' % V_TR)
        a('v_xor_b32 v%d, 64, v%d' % (V_TR+1, V_TR))
    def w1_and_poll(tagp):
        nstamp(a, 'w1i')
        common2()
        a('v_and_b32 v%d, 15, v0' % V_PA); a('v_lshlrev_b32 v%d, 7, v%d' % (V_PA, V_PA))
        a('s_lshl_b32 s3, s%d, 13' % S_G); a('s_lshl_b32 s4, s%d, 11' % S_W); a('s_add_u32 s3, s3, s4'); a('s_add_u32 s%d, s3, %d' % (S_T3, LNF_OFF))
        ld = 'buffer_load_dword v%d, v%d, %s, s%d offen sc1' % (V_PL, V_PA, WSR, S_T3)
        a(ld); a('s_waitcnt vmcnt(0)')
        stamp(a, st); nstamp(a, 'pl0')
        poll_loop(a, lambda a: a(ld), chk_all_eq(V_PL))
        stamp(a, st); nstamp(a, 'pl1')
    def w0(mixed):
        L = 'W0SKIP%d' % mixed
        a('s_cmp_lt_u32 s%d, 2' % S_W); a('s_cbranch_scc1 %s' % L); nstamp(a, 'w0a')
        if mixed:
            a('v_subrev_u32 v%d, %d, v%d' % (V_PA, 16*1152, V_BD))
            for n in range(18): dma_b(a, n//2, n % 2, 'w0'); dma_b(a, n//2, n % 2, 'w0', V_PA, -2048)
        else:
            a('v_subrev_u32 v%d, %d, v%d' % (V_PA, 16*9216, V_WD))
            for n in range(18): dma_w1(a, 0, 0, n, 'w0'); dma_w1(a, 0, 0, n, 'w0', V_PA, -2048)
        a('v_subrev_u32 v%d, %d, v%d' % (V_PA, 16*9216, V_WD))
        for n in range(18): dma_w1(a, 1, 1, n, 'w1'); dma_w1(a, 1, 1, n, 'w1', V_PA, -2048)
        if P('CODEPF', 1):
            a('s_getpc_b64 s[4:5]'); lab = 'PFPC%d' % mixed; a(lab + ':')
            a('s_sub_u32 s4, s4, %s-KSTART' % lab); a('s_subb_u32 s5, s5, 0')
            a('s_and_b32 s6, s%d, 1' % S_W); a('s_lshl_b32 s6, s6, 13')
            a('v_lshl_add_u32 v%d, v0, 7, s6' % V_PL)
            NPF = P('NPF', 5)
            for k in range(NPF):
                a('v_min_u32 v%d, KLAST-KSTART, v%d' % (V_PL+1, V_PL))
                a('global_load_dword v%d, v%d, s[4:5]' % (V_PL+3, V_PL+1))
                a('v_add_u32 v%d, 16384, v%d' % (V_PL, V_PL))
        nstamp(a, 'w0b'); a('s_waitcnt lgkmcnt(0)'); nonce_mix(a)
        a(L + ':')
        a.vm = []
    a('s_cmp_lt_u32 s%d, 18' % S_N); a('s_cbranch_scc1 A_MIXED')
    a('s_mul_i32 s3, s%d, 3' % S_N); a('s_sub_u32 s3, s3, 18'); a('s_lshl_b32 s%d, s3, 7' % S_P)
    a('s_add_u32 s%d, s%d, 128' % (S_P+1, S_P)); a('s_add_u32 s%d, s%d, 256' % (S_P+2, S_P))
    w0(0); w1_and_poll(0)
    phaseA(a, False, st)
    a('s_branch A_DONE')
    nst = st.n; st.n = 1; a.vm = []; a.lg = []; a.seen = set()
    a('A_MIXED:')
    srd(a, S_BRE, 56, 576*1152); srd(a, S_BIM, 58, 576*1152)
    a('s_lshl_b32 s%d, s%d, 8' % (S_P+1, S_N)); a('s_add_u32 s%d, s%d, 128' % (S_P+2, S_P+1))
    a('v_bfe_u32 v15, v13, 1, 3'); a('v_and_b32 v14, 7, v0'); a('v_xor_b32 v14, v14, v15')
    a('s_lshl_b32 s7, s%d, 5' % S_N); a('v_add_u32 v13, s7, v13')
    a('v_mul_u32_u24 v%d, 1152, v13' % V_BD); a('v_lshl_add_u32 v%d, v14, 4, v%d' % (V_BD, V_BD))
    w0(1)
    a('v_and_b32 v13, 31, v0'); a('v_lshrrev_b32 v14, 5, v0'); a('v_bfe_u32 v15, v0, 1, 3'); a('v_xor_b32 v14, v14, v15')
    a('v_lshlrev_b32 v14, 4, v14'); a('v_lshl_add_u32 v%d, v13, 7, v14' % V_BR)
    for e in range(1, 4): a('v_xor_b32 v%d, %d, v%d' % (V_BR+e, 32*e, V_BR))
    a('v_lshrrev_b32 v14, 5, v0'); a('s_lshl_b32 s4, s%d, 1' % S_W); a('v_add_u32 v%d, s4, v14' % R_SIDX)
    a('v_add_u32 v%d, s%d, v14' % (R_GH, S_G))
    a('v_lshlrev_b32 v%d, 6, v13' % R_TW); a('v_add_u32 v%d, 0x%x, v%d' % (R_TW, E_OFF - E_OFF % 65536, R_TW))
    a('v_lshl_add_u32 v%d, v%d, 3, v%d' % (R_EA, R_SIDX, R_TW)); a('v_add_u32 v%d, 0x%x, v%d' % (R_EA, E_OFF % 65536, R_EA))
    a('v_add_u32 v15, s7, v13')
    a('v_lshlrev_b32 v%d, 4, v15' % R_AW)
    a('v_mul_u32_u24 v14, 9216, v14'); a('v_add_u32 v%d, v14, v%d' % (R_AO, R_AW))
    a('v_min_u32 v14, 1, v%d' % R_SIDX); a('v_lshl_add_u32 v%d, v14, 30, v%d' % (R_AW, R_AW))
    a('v_lshlrev_b32 v15, 1, v15')
    a('global_load_ushort v%d, v15, s[60:61]' % R_T3); a('global_load_ushort v%d, v15, s[62:63]' % R_T4); a('global_load_ushort v%d, v15, s[54:55]' % R_ER)
    a('s_mul_i32 s%d, s%d, 9216' % (S_BB, S_G)); a('s_add_u32 s%d, s%d, %d' % (S_BB, S_BB, AGG_OFF))
    a('s_lshl_b32 s4, s%d, 11' % S_W); a('s_add_u32 s4, s4, %d' % TB_OFF)
    a('v_lshrrev_b32 v14, 5, v0'); a('v_lshlrev_b32 v14, 9, v14')
    a('v_bfe_u32 v15, v0, 2, 2'); a('v_lshl_add_u32 v14, v15, 6, v14')
    a('v_and_b32 v15, 1, v0'); a('v_lshl_add_u32 v14, v15, 5, v14')
    a('v_bfe_u32 v15, v0, 4, 1'); a('v_lshl_add_u32 v14, v15, 4, v14')
    a('v_bfe_u32 v15, v0, 1, 1'); a('v_lshl_add_u32 v14, v15, 3, v14')
    a('v_add_u32 v%d, s4, v14' % R_TRD)
    a('v_lshrrev_b32 v14, 5, v0'); a('v_lshlrev_b32 v14, 5, v14'); a('v_lshl_add_u32 v14, v13, 6, v14')
    a('v_add_u32 v%d, s4, v14' % R_TWA)
    w1_and_poll(1)
    a('s_lshl_b32 s4, s%d, 11' % S_N); a('s_add_u32 s4, s4, %d' % (288*1024)); a('s_add_u32 s%d, s4, s%d' % (S_HS, S_HB))
    phaseA(a, True, st)
    assert st.n == nst or not DIAG or STNAMES
    a('A_DONE:')
    a('s_nop 15')
    a.vm = []; a.lg = []; a.seen = set()
    a('s_cmp_eq_u32 s%d, 4' % S_SP); a('s_cbranch_scc1 B_SSM')
    phaseB(a, False, st)
    st.n = nst; a.vm = []; a.lg = []; a.seen = set()
    a('B_SSM:')
    phaseB(a, True, st)
    a('KEND:')
    a('KLAST:')
    a('s_endpgm')
    return name, a.lines, kernel_desc(name, 512, 256, 102)

if __name__ == '__main__':
    ref = open('cdna_kernels/%s.s.ref' % PFX).read().split('\n')
    hdr = [l for l in ref if l.startswith(';') and '@launch' not in l and 'Override launch' not in l and 'grid=ceil' not in l][:16]
    name, lines, desc = gen()
    padded, n = pad_hazards(lines)
    sys.stderr.write('%d lines, %d nops inserted\n' % (len(padded), n))
    out = hdr + ['; @launch grid=(256,1,1) block=(256,1,1) lds=%d' % LDS_BYTES, '.amdgcn_target "amdgcn-amd-amdhsa--gfx950"'] + padded + [desc]
    sys.stdout.write('\n'.join(out) + '\n')
```

```python
import sys, os, struct
from asmlib import *
from sched import *
def P(name, dflt): return int(os.environ.get(name, dflt))
def f32bits(x): return struct.unpack('<I', struct.pack('<f', x))[0]
PFX = "recurrent_scan__ssm_conv_s5__dense_activation_silu__prompt"
LOG2E = 1.4426950408889634

WSB      = P('WSB', 0)*1024*1024
NONCE_OFF= 0
STAT_OFF = 16384
AGG_OFF  = 65536
FS       = 128
LNF_OFF  = 256*1024
HFL_OFF  = 384*1024
HSF_OFF  = 448*1024
CFL_OFF  = 512*1024
OOB      = 0x7ffffff0
XF_OFF   = 1024*1024
CF_OFF   = 4*1024*1024
HF_OFF   = 8*1024*1024
HF_RB    = 360*1024
PF_OFF   = 32*1024*1024
PY_OFF   = 48*1024*1024
WS_USED  = 64*1024*1024
A_X, A_LRE, A_LIM, A_BRE, A_BIM, A_CRE, A_CIM, A_LDT, A_DSK, B_X, B_W1, B_W2, D_OUT, D_DBG, D_WS = [8*i for i in range(15)]

SLAB = 73728
E_OFF = 2*SLAB
TB_OFF = E_OFF + 2048
LDS_BYTES = TB_OFF + 8192

def ws_srd(a):
    a('s_add_u32 s%d, s%d, 0x%x' % (S_WS, SP0+2, WSB))
    a('s_addc_u32 s%d, s%d, 0' % (S_WS+1, SP0+3))
    a('s_and_b32 s%d, s%d, 0xffff' % (S_WS+1, S_WS+1))
    a('s_mov_b32 s%d, 0x%x' % (S_WS+2, WS_USED))
    a('s_mov_b32 s%d, 0x00020000' % (S_WS+3))
def srd(a, s, lo, nbytes):
    a('s_mov_b32 s%d, s%d' % (s, lo))
    a('s_and_b32 s%d, s%d, 0xffff' % (s+1, lo+1))
    a('s_mov_b32 s%d, 0x%x' % (s+2, nbytes))
    a('s_mov_b32 s%d, 0x00020000' % (s+3))

S_WS = 8; S_W1 = 12; S_BRE = 16; S_BIM = 20; S_WT = 24
S_X = 16; S_OUT = 20
S_G = 28; S_N = 29; S_W = 30; S_XB = 31; S_T = 32; S_M0W = 33
S_P = 34
S_HB = 37; S_T2 = 38; S_BB = 39; S_NL2E = 40; S_TX = 41; S_TF = 42; S_CNT = 43; S_HS = 44; S_NONCE = 45
S_MT = 46; S_NT = 47; S_SP = 48; S_WB = 49; S_WSTR = 50; S_MW = 51; S_T3 = 52; S_T4 = 53; S_MASK = 54; S_TEAM = 55
S_SHORT = S_XB
S_ORD = 56
S_HBB = S_HB; S_HN = S_TX; S_PB = S_BB
SP0 = 96

V_XO = 1; V_WD = 3; V_BD = 4; V_TR = 5; V_BR = 7; V_HO = 11; V_T0 = 13
V_XV = 16; V_ACC = 48; V_WF = 176; V_ET = 200; V_SC = 208
V_W2D = 253
def xfrag(blk, ks):
    idx = (ks*2 + blk)*4
    return ar(idx, 4) if idx < 256 else vr(V_XV + idx - 256, 4)
def acc(s, blk): return V_ACC + 32*s + 16*blk
(R_LR, R_LI, R_CR, R_CI, R_P32R, R_P32I, R_P256R, R_P256I, R_T1, R_T2, R_T3, R_T4, R_ER, R_EI, R_TG0, R_TG1, R_EA, R_SIDX, R_AO, R_TW) = range(V_SC, V_SC+20)
R_BUF = V_SC + 20
R_TWA, R_TRD, R_P512R, R_P512I, R_GH, R_AW = range(244, 250)
R_NLI = 4
R_NCI = R_TG1
R_U0 = R_T4
R_MR, R_MI = 1, 2
R_LLR, R_LLI = 7, 8
V_PL = 250
V_PA = 252
V_DUM = 10
V_RDB = 251
assert R_BUF % 4 == 0 and R_ER % 4 == 0

WSR = 's[%d:%d]' % (S_WS, S_WS+3)
label_n = [0]
def poll_loop(a, loads, check, sleep=1):
    label_n[0] += 1; L = 'POLL%d' % label_n[0]
    a('s_mov_b32 s%d, 0' % S_CNT)
    a(L + ':')
    check(a)
    a('s_cbranch_scc1 %s_OK' % L)
    a('s_add_u32 s%d, s%d, 1' % (S_CNT, S_CNT))
    a('s_cmp_gt_u32 s%d, %d' % (S_CNT, P('SPIN', 20000)))
    a('s_cbranch_scc1 %s_OK' % L)
    a('s_sleep %d' % sleep)
    save = list(a.vm)
    loads(a)
    a('s_waitcnt vmcnt(0)')
    a.vm = save
    a('s_branch %s' % L)
    a(L + '_OK:')

def chk_all_eq(reg):
    def f(a):
        a('v_cmp_ne_u32 vcc, s%d, v%d' % (S_NONCE, reg))
        a('s_nop 1')
        a('s_cmp_eq_u64 vcc, 0')
    return f

def epi_ffn(E, s, pi, c, ready, blks=(0, 1)):
    grp = ('acc', s)
    els = [(blk, j) for blk in blks for j in range(16)]
    n = len(els)
    r = lambda e: acc(s, els[e][0]) + els[e][1]
    t = lambda e: V_ET + (e % 8)
    I = lambda text, tag=None: E.ins(text, tag, ready, 0, grp)
    I('s_lshl_b32 s%d, s%d, 5' % (S_T2, S_P+pi))
    I('s_add_u32 s%d, s%d, s%d' % (S_T2, S_T2, S_HB))
    for step in range(n + 6):
        e = step
        if e < n: I('v_mul_f32 v%d, s%d, v%d' % (t(e), S_NL2E, r(e)))
        e = step - 1
        if 0 <= e < n: I('v_exp_f32 v%d, v%d' % (t(e), t(e)))
        e = step - 2
        if 0 <= e < n: I('v_add_f32 v%d, 1.0, v%d' % (t(e), t(e)))
        e = step - 3
        if 0 <= e < n: I('v_rcp_f32 v%d, v%d' % (t(e), t(e)))
        e = step - 4
        if 0 <= e < n: I('v_mul_f32 v%d, v%d, v%d' % (t(e), t(e), r(e)))
        e = step - 5
        if 0 <= e < n and e % 2 == 1:
            base = r(e - e % 8)
            I('v_cvt_pk_bf16_f32 v%d, v%d, v%d' % (base + (e % 8)//2, t(e-1), t(e)))
            if e % 8 == 7:
                blk = els[e][0]; fr = (e % 16)//8
                I('buffer_store_dwordx4 %s, v%d, %s, s%d offen offset:%d sc1' % (vr(base, 4), V_HO+blk, WSR, S_T2, c*2048 + fr*1024), 'st')

def cmul_add(F, dr, di, ar_, ai, br, bi, cr, ci, ready=0):
    F.ins('v_fma_f32 v%d, -v%d, v%d, v%d' % (R_T1, ai, bi, cr), None, ready)
    F.ins('v_fma_f32 v%d, v%d, v%d, v%d' % (R_T2, ai, br, ci), None, ready)
    F.ins('v_fma_f32 v%d, v%d, v%d, v%d' % (dr, ar_, br, R_T1), None, ready)
    F.ins('v_fma_f32 v%d, v%d, v%d, v%d' % (di, ar_, bi, R_T2), None, ready)

def csq(F, dr, di, sr_, si):
    F.ins('v_mul_f32 v%d, v%d, v%d' % (R_T1, si, si))
    F.ins('v_mul_f32 v%d, v%d, v%d' % (R_T2, sr_, si))
    F.ins('v_fma_f32 v%d, v%d, v%d, -v%d' % (dr, sr_, sr_, R_T1))
    F.ins('v_add_f32 v%d, v%d, v%d' % (di, R_T2, R_T2))

def scan_tables(F):
    F.ins('v_lshlrev_b32 v%d, 16, v%d' % (R_T3, R_T3))
    F.ins('v_lshlrev_b32 v%d, 16, v%d' % (R_T4, R_T4))
    F.ins('v_lshlrev_b32 v%d, 16, v%d' % (R_ER, R_ER))
    F.ins('v_mul_f32 v%d, 0x%08x, v%d' % (R_ER, f32bits(LOG2E), R_ER))
    F.ins('v_exp_f32 v%d, v%d' % (R_ER, R_ER))
    F.ins('v_cvt_pk_bf16_f32 v%d, v%d, v%d' % (R_ER, R_ER, R_ER))
    F.ins('v_lshlrev_b32 v%d, 16, v%d' % (R_ER, R_ER))
    F.ins('v_mul_f32 v%d, v%d, v%d' % (R_T1, R_ER, R_T3))
    F.ins('v_mul_f32 v%d, v%d, v%d' % (R_T2, R_ER, R_T4))
    F.ins('v_mul_f32 v%d, 0x%08x, v%d' % (R_T1, f32bits(LOG2E), R_T1))
    F.ins('v_exp_f32 v%d, v%d' % (R_T1, R_T1))
    F.ins('v_mul_f32 v%d, 0.15915494, v%d' % (R_T2, R_T2))
    F.ins('v_rndne_f32 v%d, v%d' % (R_EI, R_T2))
    F.ins('v_sub_f32 v%d, v%d, v%d' % (R_T2, R_T2, R_EI))
    F.ins('v_cos_f32 v%d, v%d' % (R_LR, R_T2))
    F.ins('v_sin_f32 v%d, v%d' % (R_LI, R_T2))
    F.ins('v_mul_f32 v%d, v%d, v%d' % (R_LR, R_LR, R_T1))
    F.ins('v_mul_f32 v%d, v%d, v%d' % (R_LI, R_LI, R_T1))
    F.ins('v_add_f32 v%d, -1.0, v%d' % (R_ER, R_LR))
    F.ins('v_mul_f32 v%d, v%d, v%d' % (R_T1, R_T3, R_T3))
    F.ins('v_fmac_f32 v%d, v%d, v%d' % (R_T1, R_T4, R_T4))
    F.ins('v_rcp_f32 v%d, v%d' % (R_T1, R_T1))
    F.ins('v_mul_f32 v%d, v%d, v%d' % (R_CR, R_ER, R_T3))
    F.ins('v_fmac_f32 v%d, v%d, v%d' % (R_CR, R_LI, R_T4))
    F.ins('v_mul_f32 v%d, v%d, v%d' % (R_CI, R_LI, R_T3))
    F.ins('v_fma_f32 v%d, -v%d, v%d, v%d' % (R_CI, R_ER, R_T4, R_CI))
    F.ins('v_mul_f32 v%d, v%d, v%d' % (R_CR, R_CR, R_T1))
    F.ins('v_mul_f32 v%d, v%d, v%d' % (R_CI, R_CI, R_T1))
    csq(F, R_P32R, R_P32I, R_LR, R_LI)
    for _ in range(4): csq(F, R_P32R, R_P32I, R_P32R, R_P32I)
    csq(F, R_P256R, R_P256I, R_P32R, R_P32I)
    for _ in range(2): csq(F, R_P256R, R_P256I, R_P256R, R_P256I)
    csq(F, R_P512R, R_P512I, R_P256R, R_P256I)
    F.ins('v_mov_b32 v%d, s%d' % (R_TG0, S_NONCE))
    F.ins('v_sub_f32 v%d, 0, v%d' % (R_NLI, R_LI))
    F.ins('v_sub_f32 v%d, 0, v%d' % (R_NCI, R_CI))

def ureg(part, tt): return acc(part, tt >> 4) + (tt & 15)
def uim(tt): return R_U0 if tt == 0 else acc(1, 0) + tt - 1

def scan_early(F, ready, half, cb=None):
    for tt in range(16*half, 16*half + 16):
        ur, ui, un = ureg(0, tt), ureg(1, tt), uim(tt)
        F.ins('v_mul_f32 v%d, v%d, v%d' % (un, R_CI, ur), None, ready)
        F.ins('v_mul_f32 v%d, v%d, v%d' % (ur, R_CR, ur))
        F.ins('v_fmac_f32 v%d, v%d, v%d' % (un, R_CR, ui))
        F.ins('v_fmac_f32 v%d, v%d, v%d' % (ur, R_NCI, ui))
        if tt == 0: continue
        pairs = [(R_ER, R_EI), (R_T1, R_T2)]
        nr, ni = pairs[(31 - tt) % 2]
        er, ei = (ureg(0, 0), uim(0)) if tt == 1 else pairs[(32 - tt) % 2]
        F.ins('v_fma_f32 v%d, v%d, v%d, v%d' % (ni, R_LI, er, un))
        F.ins('v_fma_f32 v%d, v%d, v%d, v%d' % (nr, R_NLI, ei, ur))
        F.ins('v_fmac_f32 v%d, v%d, v%d' % (ni, R_LR, ei))
        F.ins('v_fmac_f32 v%d, v%d, v%d' % (nr, R_LR, er))
    if half == 0: return
    F.ins('ds_write_b64 v%d, %s' % (R_EA, vr(R_ER, 2)), 'ew')
    F.fn(lambda a: (a.wait_lg('ew'), a('s_barrier')), 2, 0, 2)
    for n in range(4):
        F.ins('ds_read_b128 %s, v%d offset:%d' % (vr(R_BUF+4*n, 4), R_TW, E_OFF % 65536 + 16*n), 'er')
    F.ins('v_mov_b32 v%d, s%d' % (R_TG1, S_NONCE))
    F.ins('s_add_u32 s%d, s%d, %d' % (S_TF, S_BB, 8*9216))
    F.fn(lambda a: a.wait_lg('er'), 1, 0, 4)
    cmul_add(F, R_ER, R_EI, R_P32R, R_P32I, R_BUF, R_BUF+1, R_BUF+2, R_BUF+3)
    for s in range(2, 8):
        cmul_add(F, R_ER, R_EI, R_P32R, R_P32I, R_ER, R_EI, R_BUF+2*s, R_BUF+2*s+1)
    F.ins('buffer_store_dwordx4 %s, v%d, %s, s%d offen sc1' % (vr(R_ER, 4), R_AW, WSR, S_TF), 'st')
    F.fn(lambda a: cb(), 0)
    F.ins('v_mov_b32 v%d, 0' % R_LLR); F.ins('v_mov_b32 v%d, 0' % R_LLI); F.ins('v_mov_b32 v%d, 1.0' % R_MR); F.ins('v_mov_b32 v%d, 0' % R_MI)
    F.ins('v_mov_b32 v%d, 0' % R_CR)
    for s in range(7):
        F.ins('v_cmp_lt_u32 s[60:61], %d, v%d' % (s, R_SIDX))
        cmul_add(F, R_T3, R_CI, R_P32R, R_P32I, R_LLR, R_LLI, R_BUF+2*s, R_BUF+2*s+1)
        F.ins('v_cndmask_b32 v%d, v%d, v%d, s[60:61]' % (R_LLR, R_LLR, R_T3))
        F.ins('v_cndmask_b32 v%d, v%d, v%d, s[60:61]' % (R_LLI, R_LLI, R_CI))
        cmul_add(F, R_T3, R_CI, R_P32R, R_P32I, R_MR, R_MI, R_CR, R_CR)
        F.ins('v_cndmask_b32 v%d, v%d, v%d, s[60:61]' % (R_MR, R_MR, R_T3))
        F.ins('v_cndmask_b32 v%d, v%d, v%d, s[60:61]' % (R_MI, R_MI, R_CI))

def agg_insts():
    out = []
    for m in range(4):
        out.append('s_add_u32 s%d, s%d, %d' % (S_TF, S_BB, 2*m*9216))
        out.append('buffer_load_dwordx4 %s, v%d, %s, s%d offen sc1' % (vr(R_BUF+4*m, 4), R_AO, WSR, S_TF))
    return out
def agg_check(a):
    for m in range(4):
        a('v_cmp_le_u32 vcc, %d, v%d' % (8-2*m, R_GH))
        a('v_cndmask_b32 v%d, v%d, v%d, vcc' % (R_BUF+4*m+3, R_TG0, R_BUF+4*m+2))
    a('v_xor_b32 v%d, v%d, v%d' % (R_T1, R_BUF+3, R_BUF+7))
    a('v_xor_b32 v%d, v%d, v%d' % (R_T2, R_BUF+11, R_BUF+15))
    a('v_xor_b32 v%d, v%d, v%d' % (R_T3, R_BUF+3, R_TG0))
    a('v_xor_b32 v%d, v%d, v%d' % (R_CI, R_BUF+11, R_TG0))
    a('v_or3_b32 v%d, v%d, v%d, v%d' % (R_T1, R_T1, R_T2, R_T3))
    a('v_or_b32 v%d, v%d, v%d' % (R_T1, R_T1, R_CI))
    a('v_cmp_ne_u32 vcc, 0, v%d' % R_T1)
    a('s_nop 1')
    a('s_cmp_eq_u64 vcc, 0')

def scan_late(F, ready_poll):
    for t in agg_insts(): F.ins(t, 'poll', ready_poll)
    F.fn(lambda a: (a.wait_vm('poll'), poll_loop(a, lambda a: [a(t) for t in agg_insts()], agg_check)), 5, 0, P('POLLD', 34))
    for m in range(4):
        F.ins('v_cmp_le_u32 s[60:61], %d, v%d' % (8-2*m, R_GH))
        F.ins('v_cndmask_b32 v%d, 0, v%d, s[60:61]' % (R_BUF+4*m, R_BUF+4*m))
        F.ins('v_cndmask_b32 v%d, 0, v%d, s[60:61]' % (R_BUF+4*m+1, R_BUF+4*m+1))
    cmul_add(F, R_ER, R_EI, R_P512R, R_P512I, R_BUF, R_BUF+1, R_BUF+4, R_BUF+5)
    for m in range(2, 4):
        cmul_add(F, R_ER, R_EI, R_P512R, R_P512I, R_ER, R_EI, R_BUF+4*m, R_BUF+4*m+1)
    F.ins('v_mov_b32 v%d, v%d' % (R_T3, R_ER)); F.ins('v_mov_b32 v%d, v%d' % (R_CI, R_EI))
    F.ins('v_permlane32_swap_b32 v%d, v%d' % (R_ER, R_T3)); F.ins('v_permlane32_swap_b32 v%d, v%d' % (R_EI, R_CI))
    cmul_add(F, R_ER, R_EI, R_P256R, R_P256I, R_ER, R_EI, R_T3, R_CI)
    cmul_add(F, R_ER, R_EI, R_MR, R_MI, R_ER, R_EI, R_LLR, R_LLI)
    pr, pi_ = R_ER, R_EI
    land = lambda part, blk: R_BUF if (part, blk) == (1, 0) else acc(part, blk) + 8
    def pack(part, blk):
        b = acc(part, blk); neg = '-' if part else ''
        src = (lambda t: uim(16*blk + t)) if part else (lambda t: b + t)
        for k in range(8):
            F.ins('v_cvt_pk_bf16_f32 v%d, %sv%d, %sv%d' % (b+k, neg, src(2*k), neg, src(2*k+1)))
        for u in range(2):
            F.ins('ds_write_b128 v%d, %s offset:%d' % (R_TWA, vr(b+4*u, 4), 16*u), 'tw')
        for ph in range(2):
            for u in range(2):
                F.ins('ds_read_b64_tr_b16 %s, v%d offset:%d' % (vr(land(part, blk)+4*ph+2*u, 2), R_TRD, ph*1024 + u*256), 'tr%d%d' % (part, blk))
    def store(part, blk, dl):
        b = land(part, blk)
        F.ins('s_add_u32 s%d, s%d, %d' % (S_TF, S_HS, part*36*1024))
        F.fn(lambda a: a.wait_lg('tr%d%d' % (part, blk)), 1, 0, dl)
        for ph in range(2):
            F.ins('buffer_store_dwordx4 %s, v%d, %s, s%d offen offset:%d sc1' % (vr(b+4*ph, 4), V_HO+blk, WSR, S_TF, ph*1024), 'hs')
    for tt in range(32):
        ur, ui = ureg(0, tt), uim(tt)
        F.ins('v_fmac_f32 v%d, v%d, v%d' % (ur, R_NLI, pi_))
        F.ins('v_fmac_f32 v%d, v%d, v%d' % (ui, R_LI, pr))
        F.ins('v_fmac_f32 v%d, v%d, v%d' % (ur, R_LR, pr))
        F.ins('v_fmac_f32 v%d, v%d, v%d' % (ui, R_LR, pi_))
        pr, pi_ = ur, ui
        if tt == 16: pack(0, 0); pack(1, 0)
        if tt == 24: store(0, 0, 0); store(1, 0, 0)
    pack(0, 1); pack(1, 1); store(0, 1, 2); store(1, 1, 2)
    F.fn(hs_flag, 5, 0, P('HSD', 36), 'hsflag')

def hs_flag(a):
    a('s_add_u32 s%d, s%d, %d' % (S_TF, S_T4, HSF_OFF))
    a.wait_vm('hs'); a('s_barrier')
    a('buffer_store_dword v%d, v%d, %s, s%d offen sc1' % (R_TG0, V_PA, WSR, S_TF), 'fl')

WNT = os.environ.get('WNT', '')
XNT = os.environ.get('XNT', '')
W2NT = os.environ.get('W2NT', '')
def dma_w1(a, slab, pi, n, tag, vreg=V_WD, dm=0):
    a('s_add_u32 m0, s%d, %d' % (S_M0W, slab*SLAB + n*4096 + dm))
    a('s_add_u32 s%d, s%d, %d' % (S_T, S_P+pi, n*32*9216))
    a('buffer_load_dwordx4 v%d, s[%d:%d], s%d offen%s lds' % (vreg, S_W1, S_W1+3, S_T, WNT), tag)

def dma_b(a, kb, part, tag, vreg=V_BD, dm=0):
    a('s_add_u32 m0, s%d, %d' % (S_M0W, kb*8192 + part*4096 + dm))
    a('s_movk_i32 s%d, %d' % (S_T, kb*128))
    s = S_BIM if part else S_BRE
    a('buffer_load_dwordx4 v%d, s[%d:%d], s%d offen%s lds' % (vreg, s, s+3, S_T, WNT), tag)

def xload(a, ks, blk):
    if ks % 4 == 0: a('s_add_u32 s%d, s%d, %d' % (S_TX, S_XB, (ks//4)*4096))
    a('buffer_load_dwordx4 %s, v%d, %s, s%d offen offset:%d sc1' % (xfrag(blk, ks), V_XO+blk, WSR, S_TX, (ks % 4)*1024), 'x%d_%d' % (blk, ks))

def w2_slot(ks):
    u = ks // 2
    base = (SLAB if u < 6 else 0) + (u % 3)*6144
    return base + (ks % 2)*3072
def w2_dma(ks):
    out = ['s_add_u32 m0, s%d, %d' % (S_MW, w2_slot(ks))]
    for n in range(3):
        out.append('buffer_load_dwordx4 v%d, s[%d:%d], s%d offen offset:%d sc1%s lds' % (V_W2D+n, S_WT, S_WT+3, S_WB, n*1024, W2NT))
    out.append('s_add_u32 s%d, s%d, s%d' % (S_WB, S_WB, S_WSTR))
    return out

def phaseB_setup(F, ready):
    I = lambda t: F.ins(t, None, ready)
    def ld(a):
        a('s_load_dwordx2 s[%d:%d], s[0:1], %d' % (SP0, SP0+1, B_W2))
    F.fn(ld, 1, ready)
    I('s_and_b32 s3, s2, 7'); I('s_lshr_b32 s4, s2, 3')
    I('s_mul_i32 s5, s4, 43'); I('s_lshr_b32 s5, s5, 8')
    I('s_mul_i32 s6, s5, 6'); I('s_sub_u32 s%d, s4, s6' % S_NT)
    I('s_mul_i32 s3, s3, 5'); I('s_add_u32 s3, s3, s5')
    I('s_lshr_b32 s%d, s3, 3' % S_SP); I('s_and_b32 s%d, s3, 7' % S_MT)
    I('s_mul_i32 s%d, s%d, 18432' % (S_MW, S_W))
    I('s_mul_i32 s3, s%d, 1152' % S_SP); I('s_mul_i32 s4, s%d, 288' % S_W); I('s_add_u32 s3, s3, s4')
    I('s_mul_i32 s3, s3, 1152'); I('s_mul_i32 s4, s%d, 192' % S_NT); I('s_add_u32 s3, s3, s4')
    I('s_lshl_b32 s4, s%d, 2' % S_NT); I('s_add_u32 s4, s4, s%d' % S_W); I('s_mul_i32 s4, s4, 55296'); I('s_add_u32 s4, s4, %d' % CF_OFF)
    for n in range(3):
        I('v_add_u32 v13, %d, v0' % (64*n))
        I('v_mul_u32_u24 v14, 0x1556, v13'); I('v_lshrrev_b32 v14, 16, v14')
        I('v_mul_u32_u24 v15, 960, v14')
        I('v_lshl_add_u32 v%d, v0, 4, v15' % (V_W2D+n))
    I('v_lshrrev_b32 v14, 5, v0'); I('v_lshlrev_b32 v14, 2, v14'); I('v_bfe_u32 v15, v0, 2, 2'); I('v_add_u32 v14, v14, v15')
    I('v_mul_u32_u24 v14, 192, v14')
    I('v_bfe_u32 v15, v0, 4, 1'); I('v_lshl_add_u32 v14, v15, 5, v14')
    I('v_and_b32 v15, 3, v0'); I('v_lshl_add_u32 v%d, v15, 3, v14' % V_RDB)
    def sel(a):
        a('s_waitcnt lgkmcnt(0)')
        a('s_cmp_eq_u32 s%d, 4' % S_SP)
        a('s_cselect_b32 s%d, s4, s3' % S_WB)
        a('s_cselect_b32 s%d, 3072, s%d' % (S_WSTR, S_WSTR))
        a('s_cselect_b32 s%d, s%d, s%d' % (S_WT, S_WS, SP0))
        a('s_cselect_b32 s%d, s%d, s%d' % (S_WT+1, S_WS+1, SP0+1))
        a('s_cselect_b32 s%d, s%d, s%d' % (S_WT+2, S_WS+2, S_WT+2))
        a('s_cselect_b64 vcc, -1, 0')
        a('s_and_b32 s%d, s%d, 0xffff' % (S_WT+1, S_WT+1))
        a('v_lshlrev_b32 v13, 4, v0')
        for n in range(3): a('v_cndmask_b32 v%d, v%d, v13, vcc' % (V_W2D+n, V_W2D+n))
        a('v_cndmask_b32 v%d, v%d, v13, vcc' % (V_RDB, V_RDB))
        a('s_add_u32 s3, s%d, %d' % (S_MW, SLAB)); a('v_add_u32 v%d, s3, v%d' % (V_RDB, V_RDB))
    I('s_mov_b32 s%d, %d' % (S_WSTR, 16*1152)); I('s_mov_b32 s%d, %d' % (S_WT+2, 4608*1152)); I('s_mov_b32 s%d, 0x00020000' % (S_WT+3))
    F.fn(sel, 5, ready, 4)
    F.fn(lambda a: srd(a, 16, SP0, 4608*1152), 4, ready)
    I('s_lshl_b32 s3, s%d, 12' % S_G); I('s_lshl_b32 s4, s%d, 7' % S_N); I('s_add_u32 s%d, s3, s4' % S_T4)
    I('v_or_b32 v%d, s%d, v0' % (V_PA, S_W)); I('v_min_u32 v%d, 1, v%d' % (V_PA, V_PA)); I('v_lshlrev_b32 v%d, 30, v%d' % (V_PA, V_PA))
    I('v_mov_b32 v%d, s%d' % (V_PL, S_NONCE))

def w2_touch(F, ready):
    I = lambda t: F.ins(t, None, ready)
    I('s_lshr_b32 s3, s2, 3'); I('s_lshl_b32 s3, s3, 2'); I('s_add_u32 s3, s3, s%d' % S_W); I('s_mul_i32 s3, s3, %d' % (88*128))
    I('s_and_b32 s4, s2, 7'); I('s_mul_i32 s4, s4, 5'); I('s_add_u32 s5, s4, 4'); I('s_lshr_b32 s4, s4, 3'); I('s_lshr_b32 s5, s5, 3')
    I('s_mul_i32 s4, s4, %d' % (1152*1152)); I('s_mul_i32 s5, s5, %d' % (1152*1152)); I('s_add_u32 s4, s4, s3'); I('s_add_u32 s5, s5, s3')
    I('v_min_u32 v13, 43, v0'); I('v_lshlrev_b32 v13, 7, v13')
    for sreg in (4, 5):
        I('v_add_u32 v14, s%d, v13' % sreg); I('v_add_u32 v15, %d, v14' % (44*128))
        F.ins('buffer_load_dword v%d, v14, s[16:19], 0 offen' % V_DUM, None, ready, 3)
        F.ins('buffer_load_dword v%d, v15, s[16:19], 0 offen' % V_DUM, None, ready, 3)

def cfl_check(a):
    label_n[0] += 1; L = 'CFS%d' % label_n[0]
    a('s_cmp_lg_u32 s%d, 4' % S_SP); a('s_cbranch_scc1 %s' % L)
    save = list(a.vm)
    a('v_min_u32 v13, 47, v0'); a('v_lshlrev_b32 v13, 7, v13'); a('s_mov_b32 s%d, %d' % (S_T3, CFL_OFF))
    ldc = 'buffer_load_dword v14, v13, %s, s%d offen sc1' % (WSR, S_T3)
    a(ldc); a('s_waitcnt vmcnt(0)')
    poll_loop(a, lambda a: a(ldc), chk_all_eq(14))
    a.vm = save
    a(L + ':')

def w2_read_br(ks):
    def f(a):
        label_n[0] += 1; L = 'WR%d' % label_n[0]
        off = w2_slot(ks) - SLAB
        a.wait_vm('v%d' % ks)
        a('s_cmp_eq_u32 s%d, 4' % S_SP); a('s_cbranch_scc1 %s_S' % L)
        save = list(a.lg)
        for dt in range(3):
            base = (ks*3 + dt)*4
            a('ds_read_b64_tr_b16 %s, v%d offset:%d' % (ar(base, 2), V_RDB, off + dt*64), 'wr%d' % ks)
            a('ds_read_b64_tr_b16 %s, v%d offset:%d' % (ar(base+2, 2), V_RDB, off + dt*64 + 1536), 'wr%d' % ks)
        a('s_branch %s_E' % L)
        a(L + '_S:')
        a.lg = save
        for dt in range(3):
            base = (ks*3 + dt)*4
            a('ds_read_b64 %s, v%d offset:%d' % (ar(base, 2), V_RDB, off + dt*1024), 'wr%d' % ks)
            a('ds_read_b64 %s, v%d offset:%d' % (ar(base+2, 2), V_RDB, off + dt*1024 + 8), 'wr%d' % ks)
        a(L + '_E:')
    return f

def phaseA(a, mixed, st):
    S = Sched(a)
    SC = S.stream('scan'); D = S.stream('dma'); E = S.stream('epi'); B = S.stream('bpre')
    pend = [lambda a, ks=ks, blk=blk: xload(a, ks, blk) for blk in range(2) for ks in range(36)]
    for _ in range(P('XBURST', 16)): pend.pop(0)(a)
    nstamp(a, 'xb'); a('s_barrier'); nstamp(a, 'bar0')
    if mixed: scan_tables(SC)
    phaseB_setup(B, 0)
    frs = []
    for blk in range(2):
        for ks in range(36):
            for c in range(2): frs.append(('p1', blk, ks, c))
    for ci in range(4):
        for ks in range(36): frs.append(('c', ci, ks, ci & 1))
    consumed = [0]; trbase = [0, 0]; reads = []
    def pre(n):
        kind, ci, ks, c = frs[n]
        def f(a):
            if kind == 'p1' and mixed and ks == 32 and c == 0:
                for r in range(4): a('v_add_u32 v%d, 0x10000, v%d' % (V_BR+r, V_BR+r))
            if kind == 'p1' and mixed and ks == 0 and c == 0 and ci == 1:
                for r in range(4): a('v_subrev_u32 v%d, 0x10000, v%d' % (V_BR+r, V_BR+r))
            if kind == 'c' and ci == 0 and ks == 0:
                a('s_waitcnt lgkmcnt(0)'); a('s_barrier')
                for k in range(18): D.fn(lambda a, k=k: dma_w1(a, 0, 2, k, 'w2'), 4, 0, P('W2SP', 3))
            if kind == 'c' and ci == 2 and ks == 0:
                assert not pend and not D.q
                a.wait_vm('w2'); a('s_waitcnt lgkmcnt(0)'); a('s_barrier')
            if not (kind == 'p1' and mixed):
                slab = 0 if kind == 'p1' else (1 if ci < 2 else 0)
                bias = slab*SLAB + (36864 if ks >= 18 else 0)
                if trbase[c] != bias:
                    a('v_add_u32 v%d, 0x%x, v%d' % (V_TR+c, (bias - trbase[c]) & 0xffffffff, V_TR+c)); trbase[c] = bias
        return f
    for n, (kind, ci, ks, c) in enumerate(frs):
        dst = V_WF + 4*(n % 6); tag = 'f%d' % n
        if kind == 'p1' and mixed:
            reads.append((n, lambda a, n=n, dst=dst, ks=ks, c=c, tag=tag: (pre(n)(a), a('ds_read_b128 %s, v%d offset:%d' % (vr(dst, 4), V_BR + (ks & 3), ((ks >> 2)*8192 + c*4096) % 65536), tag))))
        else:
            off = (ks % 18)*2048
            reads.append((n, lambda a, n=n, dst=dst, c=c, off=off, tag=tag: (pre(n)(a), a('ds_read_b64_tr_b16 %s, v%d offset:%d' % (vr(dst, 2), V_TR+c, off), tag))))
            reads.append((n, lambda a, dst=dst, c=c, off=off, tag=tag: a('ds_read_b64_tr_b16 %s, v%d offset:%d' % (vr(dst+2, 2), V_TR+c, off+512), tag)))
    def issue_reads(quota):
        while reads and quota > 0 and reads[0][0] < consumed[0] + 6:
            S.must_fn(reads.pop(0)[1]); quota -= 1
    def issued(n): return not reads or reads[0][0] > n
    accset = [2, 3, 2, 3] if mixed else [2, 3, 0, 1]
    issue_reads(100)
    n = 0
    while n < len(frs):
        kind, ci, ks, c = frs[n]
        if kind == 'p1' and ks == 1 and c == 0 and ci == 0: stamp(a, st); nstamp(a, 'p1s')
        if kind == 'p1' and ks == 0 and c == 0 and ci == 1:
            nstamp(a, 'p1b')
            S.drain(stream=B)
            if mixed: scan_early(SC, S.mf + 3, 0)
            else:
                epi_ffn(E, 0, 0, 0, S.mf + 3, (0,)); epi_ffn(E, 1, 0, 1, S.mf + 3, (0,))
        if kind == 'c' and ks == 0:
            if ci in (0, 2): stamp(a, st)
            nstamp(a, 'c%d' % ci)
            S.drain(('acc', accset[ci]))
            rdy = S.mf + 2
            if ci == 0:
                if mixed:
                    scan_early(SC, rdy, 1, lambda: setattr(S, 'streams', [D, SC, E, B])); scan_late(SC, S.mf + P('POLLAT', 100))
                else:
                    epi_ffn(E, 0, 0, 0, rdy, (1,)); epi_ffn(E, 1, 0, 1, rdy, (1,))
            else:
                epi_ffn(E, accset[ci-1], 1 + (ci-1)//2, (ci-1) & 1, rdy)
            if ci == 1:
                S.streams = [D, E, SC, B]
            if ci == 0:
                S.drain(stream=B)
                if P('W2TOUCH', 0):
                    keep = D.q; D.q = []; w2_touch(D, S.mf); D.q += keep
            if ci == 2:
                B.fn(cfl_check, 2, S.mf + 2)
                for k2 in range(6):
                    for t in w2_dma(k2): B.ins(t, 'v%d' % k2, S.mf + P('W2AT', 4) + 11*k2)
                S.streams = [B, E, SC]
            if ci == 3:
                for k2 in range(6):
                    B.fn(w2_read_br(k2), 5, S.mf + 5 + 11*k2)
                    B.fn(lambda a, k2=k2: a.wait_lg('wr%d' % k2), 1, 0, 4)
                    for t in w2_dma(k2+6): B.ins(t, 'v%d' % (k2+6))
                S.streams = [B, SC, E] if P('SCF', 1) else [B, E, SC]
        while not issued(n): issue_reads(1)
        S.fill(reserve=2 if kind == 'p1' and c == 0 else 1)
        if kind == 'p1':
            if c == 0:
                S.must_fn(lambda a: a.wait_vm('x%d_%d' % (ci, ks)))
                S.must_fn(lambda a: a.wait_lg('f%d' % (n+1) if issued(n+1) else 'f%d' % n))
            else: S.must_fn(lambda a: a.wait_lg('f%d' % n))
        else:
            if ks % 2 == 0 and n + 1 < len(frs) and issued(n+1): S.must_fn(lambda a: a.wait_lg('f%d' % (n+1)))
            S.must_fn(lambda a: a.wait_lg('f%d' % n))
        blks = (ci,) if kind == 'p1' else (0, 1)
        for blk in blks:
            sset = c if kind == 'p1' else accset[ci]
            d = vr(acc(sset, blk), 16); w = vr(V_WF + 4*(n % 6), 4); x = xfrag(blk, ks)
            A, Bo = (x, w) if (mixed and kind == 'p1') else (w, x)
            S.mfma('v_mfma_f32_32x32x16_bf16 %s, %s, %s, %s' % (d, A, Bo, d if ks else '0'))
            if blk == blks[-1]: consumed[0] = n + 1
            issue_reads(2 if kind == 'p1' else 1)
            if pend and (c == 0 if kind == 'p1' else blk == 0): S.must_fn(pend.pop(0))
        n += 1
    sys.stderr.write('phaseA mixed=%d pending at end: %s\n' % (mixed, S.pending()))
    stamp(a, st); nstamp(a, 'tl0')
    S.mf += 1000
    S.drain(stream=B)
    a('s_barrier')
    epi_ffn(E, accset[3], 2, 1, 0)
    late = [it for it in SC.q if it[4] == 'hsflag']
    q = [it for it in SC.q if it[4] != 'hsflag'] + E.q; SC.q = []; E.q = []
    nsc = len(q) - len([1 for it in q if it[4] is not None and it[4][0] == 'acc'])
    for i, it in enumerate(q):
        it[0](a)
        if late and i == nsc + P('HSD2', 200): late.pop()[0](a)
    nstamp(a, 'tl1')
    for k2 in range(12, 15):
        for t in w2_dma(k2): a(t, 'v%d' % k2)
    for k2 in range(6, 12): w2_read_br(k2)(a)
    if late: late.pop()[0](a)
    a('s_add_u32 s%d, s%d, %d' % (S_TF, S_T4, HFL_OFF))
    a.wait_vm('st'); a('s_barrier')
    a('buffer_store_dword v%d, v%d, %s, s%d offen sc1' % (V_PL, V_PA, WSR, S_TF), 'fl')
    nstamp(a, 'flg')
    for k2 in range(15, 18):
        for t in w2_dma(k2): a(t, 'v%d' % k2)
    stamp(a, st); nstamp(a, 't1')

VB_HO = 1; VB_O = 2; VB_RD = 5; VB_RW = 6; VB_T = 7; VB_RR = 10; VB_PO = 13
VB_ACC = 16; VB_RB = 112; VB_H = 152
A_XX = 216
RED = 36864
S_FB = 34
def wfrag(ks, dt): return ar((ks*3 + dt)*4, 4)
def accr(s, dt): return VB_ACC + 48*s + 16*dt
X = os.environ.get('X', '')

def w2_read(a, ks, ssm):
    sl = w2_slot(ks); hi = sl >= SLAB
    for dt in range(3):
        base = (ks*3 + dt)*4
        reg = VB_RD if hi else VB_RW
        off = sl - (SLAB if hi else 0)
        if ssm:
            a('ds_read_b128 %s, v%d offset:%d' % (ar(base, 4), reg, off + dt*1024), 'wr%d' % ks)
        else:
            a('ds_read_b64_tr_b16 %s, v%d offset:%d' % (ar(base, 2), reg, off + dt*64), 'wr%d' % ks)
            a('ds_read_b64_tr_b16 %s, v%d offset:%d' % (ar(base+2, 2), reg, off + dt*64 + 1536), 'wr%d' % ks)

def reduce_fill(R, i, ready, send, ssm, io=None, dl=1):
    s = i & 1; grp = ('acc', s); buf = s*RED
    if io is None: io = i
    for q in range(1, 4):
        for dt in range(3):
            R.ins('ds_write_b128 v%d, %s offset:%d' % (VB_RW, vr(accr(s, dt) + 4*q, 4), buf + (q-1)*3072 + dt*1024), 'rw%d' % i, ready, P('WRD', 2), grp)
    R.fn(lambda a: (a.wait_lg('rw%d' % i), a('s_barrier')), 2, 0, 2*dl)
    for q in range(1, 4):
        for dt in range(3):
            R.ins('ds_read_b128 %s, v%d offset:%d' % (vr(VB_RB + ((q-1)*3+dt)*4, 4), VB_RR+q-1, buf + dt*1024), 'rr%d' % i)
    R.fn(lambda a: a.wait_lg('rr%d' % i), 1, 0, 4*dl)
    for k in range(12):
        own = accr(s, k//4) + k % 4
        R.ins('v_add_f32 v%d, v%d, v%d' % (VB_RB+k, VB_RB+k, own), None, 0, 0, grp)
        R.ins('v_add_f32 v%d, v%d, v%d' % (VB_RB+12+k, VB_RB+12+k, VB_RB+24+k))
    SB = VB_RB + 24
    for k in range(12):
        dst = SB + 4*(k//3) + k % 3 if (send and ssm) else VB_RB + k
        R.ins('v_add_f32 v%d, v%d, v%d' % (dst, VB_RB+k, VB_RB+12+k), 'sum%d' % i)
    if send:
        ng = 4 if ssm else 2
        if not ssm:
            for p in range(6): R.ins('v_cvt_pk_bf16_f32 v%d, v%d, v%d' % (SB + 4*(p//3) + p % 3, VB_RB+2*p, VB_RB+2*p+1))
        for g in range(ng): R.ins('v_mov_b32 v%d, s%d' % (SB + 4*g + 3, S_NONCE))
        R.ins('s_mul_i32 s%d, s%d, %d' % (S_TF, S_ORD+io, 6*4*ng*1024))
        R.ins('s_add_u32 s%d, s%d, s%d' % (S_TF, S_TF, S_PB))
        for g in range(ng):
            R.ins('buffer_store_dwordx4 %s, v%d, %s, s%d offen offset:%d sc1' % (vr(SB+4*g, 4), VB_PO, WSR, S_TF, g*1024), 'st', 0, 2 if g else 0)

def ffn_loads(quads):
    return ['buffer_load_dwordx4 %s, v%d, %s, s%d offen offset:%d sc1' % (vr(quads[src*2+g], 4), VB_PO, WSR, S_FB+src, g*1024) for src in range(3) for g in range(2)]
def y_loads(quads):
    return ['buffer_load_dwordx4 %s, v%d, %s, s%d offen offset:%d sc1' % (vr(quads[g], 4), VB_RD, WSR, S_T2, g*1024) for g in range(4)]
def tag_check(quads):
    def f(a):
        t = [q+3 for q in quads]
        for op, d in (('v_min3_u32', VB_T), ('v_max3_u32', VB_T+1)):
            a('%s v%d, v%d, v%d, v%d' % (op, d, t[0], t[1], t[2]))
            r = t[3:]
            while r:
                a('%s v%d, v%d, v%d, v%d' % (op, d, d, r[0], r[1] if len(r) > 1 else r[0])); r = r[2:]
        a('v_cmp_ne_u32 vcc, s%d, v%d' % (S_NONCE, VB_T))
        a('v_cmp_ne_u32 s[4:5], s%d, v%d' % (S_NONCE, VB_T+1))
        a('s_nop 1')
        a('s_or_b64 vcc, vcc, s[4:5]')
        a('s_cmp_eq_u64 vcc, 0')
    return f
def checked(G, tag, loads, quads, dl):
    G.fn(lambda a: (a.wait_vm(tag), poll_loop(a, lambda a: [a(t) for t in loads], tag_check(quads), P('RSLEEP', 8))), 5, 0, dl)
def presum(G, quads, ps):
    pk = lambda src, k: quads[src*2 + (k//2)//3] + (k//2) % 3
    unp = lambda d, src, k: ('v_and_b32 v%d, 0xffff0000, v%d' if k % 2 else 'v_lshlrev_b32 v%d, 16, v%d') % (d, pk(src, k))
    for k in range(12):
        G.ins(unp(ps(k), 0, k)); G.ins(unp(VB_T, 1, k)); G.ins(unp(VB_T+1, 2, k))
        G.ins('v_add_f32 v%d, v%d, v%d' % (ps(k), ps(k), VB_T)); G.ins('v_add_f32 v%d, v%d, v%d' % (ps(k), ps(k), VB_T+1))
def prep_s(G, j, yq):
    y = lambda k: yq[k//3] + k % 3
    for k in range(12):
        G.ins('v_accvgpr_read_b32 v%d, a%d' % (VB_T + k % 2, A_XX+12*j+k))
        G.ins('v_and_b32 v%d, 0xffff0000, v%d' % (VB_T + k % 2, VB_T + k % 2))
        G.ins('v_fma_f32 v%d, 2.0, v%d, v%d' % (y(k), y(k), VB_T + k % 2))
OUTFL = os.environ.get('OUTFL', ' sc1')
def chain(G, j, ps, yq, first=None):
    y = lambda k: yq[k//3] + k % 3
    o = lambda k: VB_RB + k
    t1 = lambda k: VB_RB + 12 + k
    t2 = lambda k: VB_RB + 24 + k
    rnd = [lambda k: None if k % 2 else 'v_cvt_pk_bf16_f32 v%d, v%d, v%d' % (o(k+1), o(k), o(k+1)),
           lambda k: ('v_and_b32 v%d, 0xffff0000, v%d' % (o(k), o(k))) if k % 2 else ('v_lshlrev_b32 v%d, 16, v%d' % (o(k), o(k+1)))]
    stages = [lambda k: 'v_add_f32 v%d, v%d, v%d' % (o(k), o(k), ps(k))] + rnd + [
        lambda k: 'v_mul_f32 v%d, s%d, v%d' % (t1(k), S_NL2E, o(k)),
        lambda k: 'v_exp_f32 v%d, v%d' % (t1(k), t1(k)),
        lambda k: 'v_accvgpr_read_b32 v%d, a%d' % (t2(k), A_XX+12*j+k),
        lambda k: 'v_add_f32 v%d, 1.0, v%d' % (t1(k), t1(k)),
        lambda k: 'v_rcp_f32 v%d, v%d' % (t1(k), t1(k)),
        lambda k: 'v_lshlrev_b32 v%d, 16, v%d' % (t2(k), t2(k)),
        lambda k: 'v_mul_f32 v%d, v%d, v%d' % (o(k), o(k), t1(k))] + rnd + [
        lambda k: 'v_fma_f32 v%d, v%d, v%d, v%d' % (t2(k), y(k), o(k), t2(k)),
        lambda k: 'buffer_store_dword v%d, v%d, s[%d:%d], s%d offen offset:%d%s' % (t2(k), VB_O+1 + (k % 4)//2, S_OUT, S_OUT+3, S_T3, (k % 2)*2304 + (k//4)*128, OUTFL)]
    if first: G.fn(first, 0)
    for k0 in range(0, 12, 4):
        for stg in stages:
            for k in range(k0, k0+4):
                t = stg(k)
                if t: G.ins(t, 'out')

XT = 224
def xx_setup(a):
    a('s_load_dwordx2 s[%d:%d], s[0:1], %d' % (SP0, SP0+1, A_X))
    a('s_load_dwordx2 s[%d:%d], s[0:1], %d' % (SP0+2, SP0+3, D_OUT))
    a('s_load_dwordx2 s[%d:%d], s[0:1], %d' % (SP0+4, SP0+5, A_DSK))
def xx_fill(G):
    T = XT; I = G.ins
    SA, DA = T+27, T+28
    I('s_lshl_b32 s3, s%d, 8' % S_MT); I('s_lshl_b32 s4, s%d, 6' % S_SP); I('s_add_u32 s3, s3, s4')
    I('s_lshl_b32 s4, s%d, 2' % S_W); I('s_add_u32 s3, s3, s4')
    I('v_and_b32 v%d, 32, v0' % VB_O); I('v_add_u32 v%d, s3, v%d' % (VB_O, VB_O))
    I('v_lshlrev_b32 v%d, 3, v%d' % (SA, VB_O))
    I('v_mul_u32_u24 v%d, 576, v%d' % (VB_O, VB_O))
    I('v_and_b32 v%d, 31, v0' % (VB_O+1)); I('s_mul_i32 s4, s%d, 96' % S_NT)
    I('v_add_u32 v%d, s4, v%d' % (DA, VB_O+1)); I('v_add_u32 v%d, v%d, v%d' % (VB_O, VB_O, DA)); I('v_lshlrev_b32 v%d, 1, v%d' % (DA, DA))
    I('v_lshlrev_b32 v%d, 2, v%d' % (VB_O+1, VB_O)); I('v_add_u32 v%d, 4608, v%d' % (VB_O+2, VB_O+1)); I('v_lshlrev_b32 v%d, 1, v%d' % (VB_O, VB_O))
    G.fn(lambda a: srd(a, S_X, SP0, 2048*1152), 4); G.fn(lambda a: srd(a, S_OUT, SP0+2, 2048*2304), 4)
    I('s_movk_i32 s7, %d' % (16*1152)); I('s_mov_b32 s6, %d' % STAT_OFF)
    for dt in range(3):
        I('global_load_ushort v%d, v%d, s[%d:%d] offset:%d' % (T+20+dt, DA, SP0+4, SP0+5, dt*64), 'xx0')
    for j in range(2):
        for k in range(12):
            I('buffer_load_ushort v%d, v%d, s[%d:%d], %s offen offset:%d' % (T+k, VB_O, S_X, S_X+3, 's7' if j else '0', (k % 4)*1152 + (k//4)*64), 'xx%d' % j)
        for u in range(2):
            I('buffer_load_dwordx4 %s, v%d, %s, s6 offen offset:%d sc1' % (vr(T+12+4*u, 4), SA, WSR, j*128 + u*16), 'xx%d' % j)
        G.fn(lambda a, j=j: a.wait_vm('xx%d' % j), 1, 0, P('XXD', 40))
        if j == 0:
            for dt in range(3): I('v_lshlrev_b32 v%d, 16, v%d' % (T+20+dt, T+20+dt))
        x = lambda k: T+k
        t = lambda k: T+23+k % 4
        mm = lambda k: T+12+2*(k % 4)
        rnd = [lambda k: None if k % 2 else 'v_cvt_pk_bf16_f32 v%d, v%d, v%d' % (t(k+1), t(k), t(k+1)),
               lambda k: ('v_and_b32 v%d, 0xffff0000, v%d' % (t(k), t(k))) if k % 2 else ('v_lshlrev_b32 v%d, 16, v%d' % (t(k), t(k+1)))]
        st = [lambda k: 'v_lshlrev_b32 v%d, 16, v%d' % (x(k), x(k)),
              lambda k: 'v_sub_f32 v%d, v%d, v%d' % (t(k), x(k), mm(k))] + rnd + [
              lambda k: 'v_mul_f32 v%d, v%d, v%d' % (t(k), t(k), mm(k)+1)] + rnd + [
              lambda k: 'v_mul_f32 v%d, v%d, v%d' % (t(k), t(k), T+20+k//4),
              lambda k: 'v_cvt_pk_bf16_f32 v%d, v%d, v%d' % (t(k), x(k), t(k)),
              lambda k: 'v_accvgpr_write_b32 a%d, v%d' % (A_XX+12*j+k, t(k))]
        for k0 in range(0, 12, 4):
            for s in st:
                for k in range(k0, k0+4):
                    tx = s(k)
                    if tx: I(tx)

def flag_lanes(a, two):
    PA = VB_RB + 8
    a('v_and_b32 v14, 31, v0'); a('v_lshrrev_b32 v15, v14, s%d' % S_MASK); a('v_and_b32 v15, 1, v15'); a('v_xor_b32 v15, 1, v15')
    a('v_lshlrev_b32 v%d, 7, v0' % PA)
    if not two:
        a('v_lshrrev_b32 v14, 5, v0'); a('v_or_b32 v15, v15, v14')
    a('v_lshl_add_u32 v%d, v15, 30, v%d' % (PA, PA))
def flag_poll(a, off_reg, nld, stride):
    PL = VB_RB; PA = VB_RB + 8
    def ld(a):
        for i in range(nld):
            if i: a('s_add_u32 s6, s%d, %d' % (off_reg, i*stride))
            a('buffer_load_dword v%d, v%d, %s, s%d offen sc1' % (PL+i, PA, WSR, 6 if i else off_reg), 'hp')
    def chk(a):
        a('v_cmp_ne_u32 s[4:5], s%d, v%d' % (S_NONCE, PL))
        for i in range(1, nld):
            a('v_cmp_ne_u32 vcc, s%d, v%d' % (S_NONCE, PL+i)); a('s_nop 1'); a('s_or_b64 s[4:5], s[4:5], vcc')
        if nld > 1: a('s_or_b32 s4, s4, s5')
        else: a('s_nop 1')
        a('s_and_b32 s4, s4, s%d' % S_MASK)
        a('s_cmp_eq_u32 s4, 0')
    return ld, chk

def b_common(a, ssm):
    a('s_mul_i32 s%d, s%d, %d' % (S_HBB, S_MT, 8*HF_RB)); a('s_mul_i32 s3, s%d, %d' % (S_SP, 72*1024))
    a('s_add_u32 s%d, s%d, s3' % (S_HBB, S_HBB)); a('s_add_u32 s%d, s%d, %d' % (S_HBB, S_HBB, HF_OFF))
    a('s_lshl_b32 s4, s%d, 3' % S_W)
    a('v_add_u32 v14, s4, v0'); a('v_and_b32 v14, 31, v14'); a('v_and_b32 v15, 32, v0'); a('v_add_u32 v14, v14, v15')
    a('s_mul_i32 s3, s%d, %d' % (S_W, 18*1024)); a('v_lshl_add_u32 v%d, v14, 4, s3' % VB_HO)
    a('s_mul_i32 s%d, s%d, 48' % (S_TEAM, S_MT)); a('s_add_u32 s%d, s%d, s%d' % (S_TEAM, S_TEAM, S_NT))
    if ssm:
        a('s_lshl_b32 s3, s%d, 14' % S_TEAM); a('s_add_u32 s%d, s3, %d' % (S_PB, PY_OFF))
        a('s_lshl_b32 s3, s%d, 12' % S_W); a('v_lshl_add_u32 v%d, v0, 4, s3' % VB_PO)
    else:
        a('s_lshl_b32 s3, s%d, 13' % S_TEAM); a('s_mul_i32 s4, s%d, %d' % (S_SP, 64*6*8192)); a('s_add_u32 s3, s3, s4'); a('s_add_u32 s%d, s3, %d' % (S_PB, PF_OFF))
        a('s_lshl_b32 s3, s%d, 11' % S_W); a('v_lshl_add_u32 v%d, v0, 4, s3' % VB_PO)
    for q in range(1, 4):
        a('s_sub_u32 s3, s%d, %d' % (S_W, q)); a('s_and_b32 s3, s3, 3'); a('s_mul_i32 s3, s3, 9216'); a('s_add_u32 s3, s3, %d' % ((q-1)*3072))
        a('v_lshl_add_u32 v%d, v0, 4, s3' % (VB_RR+q-1))

def phaseB(a, ssm, st):
    NH = P('NHS', 24) if ssm else P('NHF', 18)
    hslot = lambda n: VB_H + 4*(n % NH)
    def hload(a, n):
        i, ks = divmod(n, 18)
        if ks == 0:
            a('s_mul_i32 s%d, s%d, %d' % (S_HN, S_ORD+i, HF_RB)); a('s_add_u32 s%d, s%d, s%d' % (S_HN, S_HN, S_HBB))
        elif ks % 4 == 0: a('s_add_u32 s%d, s%d, 4096' % (S_HN, S_HN))
        a('buffer_load_dwordx4 %s, v%d, %s, s%d offen offset:%d sc1' % (vr(hslot(n), 4), VB_HO, WSR, S_HN, (ks % 4)*1024), 'h%d' % n)
    a.vm = ['v17']; a.seen |= {'v17'}
    a('v_subrev_u32 v%d, %d, v%d' % (VB_RW, SLAB, V_RDB))
    if ssm:
        for i, r in enumerate((0, 2, 4, 6, 1, 3, 3, 3)): a('s_mov_b32 s%d, %d' % (S_ORD+i, r))
        a('s_mov_b32 s%d, 0x3ffff' % S_MASK); a('s_mov_b32 s%d, 1' % S_SHORT)
    else:
        for i in range(3):
            a('s_add_u32 s3, s%d, %d' % (S_SP, i+1)); a('s_and_b32 s3, s3, 3'); a('s_lshl_b32 s%d, s3, 1' % (S_ORD+i)); a('s_add_u32 s%d, s%d, 1' % (S_ORD+3+i, S_ORD+i))
        a('s_lshl_b32 s%d, s%d, 1' % (S_ORD+6, S_SP)); a('s_add_u32 s%d, s%d, 1' % (S_ORD+7, S_ORD+6))
        a('s_mul_i32 s3, s%d, 9' % S_SP); a('s_lshl_b32 s3, 0x1ff, s3')
        a('s_mul_i32 s4, s%d, 6' % S_SP); a('s_add_u32 s4, s4, 6'); a('s_lshl_b32 s4, 0x3f, s4')
        a('s_cmp_lt_u32 s%d, 2' % S_SP); a('s_cselect_b32 s%d, s3, s4' % S_MASK)
    flag_lanes(a, 0)
    a('s_lshl_b32 s%d, s%d, 12' % (S_T4, S_MT)); a('s_add_u32 s%d, s%d, %d' % (S_T4, S_T4, HSF_OFF if ssm else HFL_OFF))
    ld, chk = flag_poll(a, S_T4, 1, 0)
    ld(a)
    if not ssm:
        b_common(a, ssm)
        a('s_mul_i32 s5, s%d, 12' % S_SP); a('s_add_u32 s5, s5, s%d' % S_TEAM); a('s_lshl_b32 s5, s5, 13')
        for src in range(3):
            a('s_sub_u32 s3, s%d, %d' % (S_SP, src+1)); a('s_and_b32 s3, s3, 3'); a('s_mul_i32 s3, s3, %d' % (64*6*8192))
            a('s_add_u32 s3, s3, s5'); a('s_add_u32 s%d, s3, %d' % (S_FB+src, PF_OFF))
        a('s_lshl_b32 s5, s5, 1'); a('s_add_u32 s%d, s5, %d' % (S_T2, PY_OFF))
        a('s_mov_b32 s%d, 0' % S_T3)
        xx_setup(a)
    a.wait_vm('v17')
    for ks in range(12, 18): w2_read(a, ks, ssm)
    nstamp(a, 't2')
    a.wait_vm('hp')
    poll_loop(a, ld, chk)
    if ssm:
        a('B_SSM2:')
        a.vm = []
        b_common(a, ssm)
    stamp(a, st); nstamp(a, 't3')
    nld = [0]
    def next_h(a):
        if nld[0] < 144: hload(a, nld[0]); nld[0] += 1
    for _ in range(P('HBURST', 12)): next_h(a)
    a('s_waitcnt lgkmcnt(0)')
    a('s_mul_i32 s3, s%d, 9216' % S_W); a('v_lshl_add_u32 v%d, v0, 4, s3' % VB_RW)
    a('s_lshl_b32 s3, s%d, 12' % S_W); a('v_lshl_add_u32 v%d, v0, 4, s3' % VB_RD)
    a('s_barrier')
    S = Sched(a); R = S.stream('red'); G = S.stream('xchg'); C = S.stream('chain')
    C.gate = lambda: not R.q and 'prepA' in a.seen
    if not ssm:
        XR = VB_H + 4*NH
        L = [XR + 4*k for k in range(6)]
        PSr = [XR+24+k for k in range(8)] + [VB_RB+36+k for k in range(4)]
        psA = lambda k: PSr[k]
        yA = L[:4]
        acq = [accr(0, dt) + 4*q for q in (1, 2, 3) for dt in range(3)]
        fB = acq[:6]; yB = [hslot(126+k) for k in range(4)]
        psB = lambda k: acq[6 + k//4] + k % 4
    for i in range(8):
        s = i & 1
        S.drain(('acc', s))
        if ssm and i == 6:
            S.drain()
            a('s_cmp_eq_u32 s%d, 1' % S_SHORT); a('s_cbranch_scc1 B_SSM_TAIL')
        if i in (0, 7): stamp(a, st)
        nstamp(a, 'b%d' % i)
        base = S.mf
        if i > 0: reduce_fill(R, i-1, base + 2, ssm or i-1 < 6, ssm)
        if not ssm:
            if i == 0: xx_fill(G)
            if i == P('FAST', 5):
                for t in ffn_loads(L): G.ins(t, 'fA', base + P('FAAT', 0))
                checked(G, 'fA', ffn_loads(L), L, P('CHKD', 44))
                presum(G, L, psA)
            if i == 6:
                for t in y_loads(yA): G.ins(t, 'yA', base + P('YAAT', 0))
                checked(G, 'yA', y_loads(yA), yA, P('CHKD', 44))
                prep_s(G, 0, yA); G.fn(lambda a: a.seen.add('prepA'), 0)
                for src in range(3): G.ins('s_add_u32 s%d, s%d, %d' % (S_FB+src, S_FB+src, 6*8192))
                G.ins('s_add_u32 s%d, s%d, %d' % (S_T2, S_T2, 6*16384))
            if i == 7:
                G.fn(lambda a: ('rr6' in a.seen) or sys.exit('order'), 0, base + P('FBAT', 24))
                for t in ffn_loads(fB): G.ins(t, 'fB')
                for t in y_loads(yB): G.ins(t, 'yB')
                chain(C, 0, psA, yA)
        for ks in range(18):
            n = 18*i + ks
            S.fill(reserve=1)
            S.must_fn(lambda a: a.wait_vm('h%d' % n))
            for dt in range(3):
                d = vr(accr(s, dt), 16)
                S.mfma('v_mfma_f32_32x32x16_bf16 %s, %s, %s, %s' % (d, vr(hslot(n), 4), wfrag(ks, dt), d if ks else '0'))
                lim = n + NH + (1 if dt == 2 else 0)
                if nld[0] < min(lim, 144) and (dt != 1): S.must_fn(next_h)
    sys.stderr.write('phaseB ssm=%d pending at end: %s\n' % (ssm, S.pending()))
    stamp(a, st); nstamp(a, 'e0')
    S.mf += 1000
    if ssm:
        S.drain()
        a('B_SSM_TAIL:')
        a('s_nop 11')
        a.lg = []
        reduce_fill(R, 7, 0, True, True); S.drain()
        stamp(a, st)
    else:
        S.drain(stream=R); S.drain(stream=G)
        restA = C.q; C.q = []
        reduce_fill(R, 7, 0, False, False)
        wr = R.q[:9]; rest = R.q[9:]
        R.q = []
        k = 0
        while wr or restA[k:]:
            if wr: R.q.append(wr.pop(0))
            R.q += restA[k:k+6]; k += 6
        S.drain()
        stamp(a, st); nstamp(a, 'e1')
        R.q = rest[:10]; S.drain()
        checked(G, 'fB', ffn_loads(fB), fB, 0); presum(G, fB, psB); S.drain()
        nstamp(a, 'e2')
        R.q = rest[10:]; S.drain()
        checked(G, 'yB', y_loads(yB), yB, 0); prep_s(G, 1, yB)
        G.ins('s_mov_b32 s%d, %d' % (S_T3, 16*2304))
        chain(G, 1, psB, yB); S.drain()
        a('s_lshl_b32 s3, s%d, 9' % S_SP); a('s_add_u32 s3, s3, s%d' % S_TEAM); a('s_lshl_b32 s4, s%d, 12' % S_W); a('s_add_u32 s3, s3, s4')
        a('s_cmp_eq_u32 s3, %d' % (7*48))
        a('s_cbranch_scc0 NOBUMP')
        a('v_mov_b32 v14, %d' % NONCE_OFF); a('v_mov_b32 v15, s%d' % S_NONCE)
        a('s_mov_b64 exec, 1')
        a('buffer_store_dword v15, v14, %s, 0 offen sc1' % WSR)
        a('NOBUMP:')
    stamp_flush(a, st, 0, S_WS, S_W, 14)
    a('s_endpgm')

def ln_part(a):
    X = 48; F = 72; T = 112
    a('s_lshl_b32 s3, s2, 1'); a('s_add_u32 s3, s3, s%d' % S_W)
    a('s_lshr_b32 s4, s3, 4'); a('s_lshl_b32 s4, s4, 6')
    a('s_and_b32 s5, s3, 1'); a('s_lshl_b32 s5, s5, 5'); a('s_add_u32 s4, s4, s5')
    a('s_bfe_u32 s5, s3, 0x10003'); a('s_lshl_b32 s5, s5, 4'); a('s_add_u32 s4, s4, s5')
    a('s_bfe_u32 s5, s3, 0x20001'); a('s_lshl_b32 s5, s5, 2'); a('s_add_u32 s4, s4, s5')
    a('v_and_b32 v%d, 3, v0' % T); a('v_lshrrev_b32 v%d, 2, v0' % (T+1))
    a('v_add_u32 v%d, s4, v%d' % (T+2, T))
    a('v_mul_u32_u24 v%d, 1152, v%d' % (T+3, T+2)); a('v_lshl_add_u32 v%d, v%d, 4, v%d' % (T+3, T+1, T+3))
    for k in range(4): a('v_mov_b32 v%d, 0' % (X+16+k))
    a('s_waitcnt lgkmcnt(0)'); nstamp(a, 'ln0')
    for n in range(4):
        a('global_load_dwordx4 %s, v%d, s[%d:%d] offset:%d%s' % (vr(X+4*n, 4), T+3, SP0, SP0+1, 256*n, XNT), 'lx')
    a('s_mov_b32 exec_hi, 0')
    a('global_load_dwordx4 %s, v%d, s[%d:%d] offset:1024%s' % (vr(X+16, 4), T+3, SP0, SP0+1, XNT), 'lx')
    a('s_mov_b32 exec_hi, -1')
    ws_srd(a)
    a('s_load_dword s%d, s[%d:%d], %d' % (S_NONCE, S_WS, S_WS+1, NONCE_OFF))
    a('s_lshr_b32 s5, s3, 3'); a('s_mul_i32 s5, s5, 36864'); a('s_and_b32 s6, s3, 7'); a('s_lshl_b32 s6, s6, 7'); a('s_add_u32 s5, s5, s6')
    a('s_add_u32 s5, s5, %d' % XF_OFF)
    a('v_lshrrev_b32 v%d, 3, v0' % (T+4)); a('v_lshlrev_b32 v%d, 10, v%d' % (T+4, T+4))
    a('v_and_b32 v%d, 7, v0' % (T+5)); a('v_lshl_add_u32 v%d, v%d, 4, v%d' % (T+4, T+5, T+4))
    a('v_lshlrev_b32 v%d, 3, v%d' % (T+2, T+2))
    a('s_waitcnt vmcnt(0)'); nstamp(a, 'ln1')
    for n in range(20):
        a('v_lshlrev_b32 v%d, 16, v%d' % (F+2*n, X+n)); a('v_and_b32 v%d, 0xffff0000, v%d' % (F+2*n+1, X+n))
    A = T+8
    def allred(r):
        a('v_add_f32_dpp v%d, v%d, v%d row_ror:4 row_mask:0xf bank_mask:0xf' % (r, r, r))
        a('v_add_f32_dpp v%d, v%d, v%d row_ror:8 row_mask:0xf bank_mask:0xf' % (r, r, r))
        a('v_mov_b32 v%d, v%d' % (T+6, r)); a('v_permlane16_swap_b32 v%d, v%d' % (r, T+6)); a('v_add_f32 v%d, v%d, v%d' % (r, r, T+6))
        a('v_mov_b32 v%d, v%d' % (T+6, r)); a('v_permlane32_swap_b32 v%d, v%d' % (r, T+6)); a('v_add_f32 v%d, v%d, v%d' % (r, r, T+6))
    pr = lambda r: vr(r, 2)
    for k in range(2): a('v_pk_add_f32 %s, %s, %s' % (pr(A+2*k), pr(F+2*k), pr(F+4+2*k)))
    for m in range(2, 10):
        for k in range(2): a('v_pk_add_f32 %s, %s, %s' % (pr(A+2*k), pr(A+2*k), pr(F+4*m+2*k)))
    a('v_pk_add_f32 %s, %s, %s' % (pr(A), pr(A), pr(A+2))); a('v_add_f32 v%d, v%d, v%d' % (A, A, A+1))
    allred(A)
    a('v_mul_f32 v%d, 0x%08x, v%d' % (A, f32bits(1.0/576), A))
    Q = A+4; D = A+8
    for m in range(10):
        if m == 8: a('s_mov_b32 exec_hi, 0')
        for k in range(2): a('v_pk_add_f32 %s, %s, %s op_sel_hi:[1,0] neg_lo:[0,1] neg_hi:[0,1]' % (pr(D+4*(m % 2)+2*k), pr(F+4*m+2*k), pr(A)))
        for k in range(2):
            d = pr(D+4*(m % 2)+2*k)
            a(('v_pk_mul_f32 %s, %s, %s' % (pr(Q+2*k), d, d)) if m == 0 else ('v_pk_fma_f32 %s, %s, %s, %s' % (pr(Q+2*k), d, d, pr(Q+2*k))))
    a('s_mov_b32 exec_hi, -1')
    a('v_pk_add_f32 %s, %s, %s' % (pr(Q), pr(Q), pr(Q+2))); a('v_add_f32 v%d, v%d, v%d' % (A+1, Q, Q+1))
    allred(A+1)
    a('v_mul_f32 v%d, 0x%08x, v%d' % (A+1, f32bits(1.0/576), A+1))
    a('v_cvt_pk_bf16_f32 v%d, v%d, v%d' % (A+2, A, A+1))
    a('v_lshlrev_b32 v%d, 16, v%d' % (A, A+2)); a('v_and_b32 v%d, 0xffff0000, v%d' % (A+1, A+2))
    a('v_add_f32 v%d, 0x%08x, v%d' % (A+1, f32bits(1e-5), A+1))
    a('v_cvt_pk_bf16_f32 v%d, v%d, v%d' % (A+1, A+1, A+1)); a('v_lshlrev_b32 v%d, 16, v%d' % (A+1, A+1))
    a('v_sqrt_f32 v%d, v%d' % (A+1, A+1))
    a('v_cvt_pk_bf16_f32 v%d, v%d, v%d' % (A+1, A+1, A+1)); a('v_lshlrev_b32 v%d, 16, v%d' % (A+1, A+1))
    a('v_rcp_f32 v%d, v%d' % (A+1, A+1))
    for q in range(5):
        if q == 4: a('s_mov_b32 exec_hi, 0')
        ns = range(4*q, 4*q+4)
        for n in ns: a('v_pk_add_f32 %s, %s, %s op_sel_hi:[1,0] neg_lo:[0,1] neg_hi:[0,1]' % (pr(F+2*n), pr(F+2*n), pr(A)))
        for n in ns: a('v_cvt_pk_bf16_f32 v%d, v%d, v%d' % (X+n, F+2*n, F+2*n+1))
        for n in ns: a('v_lshlrev_b32 v%d, 16, v%d' % (F+2*n, X+n)); a('v_and_b32 v%d, 0xffff0000, v%d' % (F+2*n+1, X+n))
        for n in ns: a('v_pk_mul_f32 %s, %s, %s op_sel:[0,1] op_sel_hi:[1,1]' % (pr(F+2*n), pr(F+2*n), pr(A)))
        for n in ns: a('v_cvt_pk_bf16_f32 v%d, v%d, v%d' % (X+n, F+2*n, F+2*n+1))
        a('buffer_store_dwordx4 %s, v%d, %s, s5 offen sc1' % (vr(X+4*q, 4), T+4, WSR))
        if q < 4: a('s_add_u32 s5, s5, 8192')
    a('s_mov_b32 exec_lo, 15')
    a('s_mov_b32 s5, %d' % STAT_OFF)
    assert A % 2 == 0
    a('buffer_store_dwordx2 %s, v%d, %s, s5 offen sc1' % (vr(A, 2), T+2, WSR))
    a('s_mov_b64 exec, -1'); nstamp(a, 'ln2')
    a('s_waitcnt lgkmcnt(0)')
    nonce_mix(a)
    a('s_lshl_b32 s3, s3, 7'); a('s_add_u32 s3, s3, %d' % LNF_OFF)
    a('v_mov_b32 v%d, 0' % T); a('v_mov_b32 v%d, s%d' % (T+1, S_NONCE))
    a('s_mov_b64 exec, 1')
    a('s_waitcnt vmcnt(0)')
    a('buffer_store_dword v%d, v%d, %s, s3 offen sc1' % (T+1, T, WSR)); nstamp(a, 'ln3')
    a('s_mov_b64 exec, -1')

def nonce_mix(a):
    a('s_mul_i32 s%d, s%d, 0x0019660d' % (S_NONCE, S_NONCE))
    a('s_add_u32 s%d, s%d, 0x3c6ef35f' % (S_NONCE, S_NONCE))

def light_part(a):
    if P('LBAR', 1): a('s_barrier')
    a('s_cmp_eq_u32 s%d, 0' % S_W); a('s_cbranch_scc1 LIGHT2')
    a('s_load_dwordx4 s[%d:%d], s[0:1], %d' % (SP0, SP0+3, A_CRE))
    a('s_sub_u32 s3, s2, 240'); a('s_mul_i32 s3, s3, 3'); a('s_add_u32 s3, s3, s%d' % S_W); a('s_sub_u32 s3, s3, 1')
    a('s_lshr_b32 s4, s3, 3'); a('s_mul_i32 s4, s4, %d' % (96*1152))
    a('s_bfe_u32 s5, s3, 0x10001'); a('s_mul_i32 s5, s5, 576'); a('s_add_u32 s4, s4, s5')
    a('s_and_b32 s5, s3, 1'); a('s_mul_i32 s5, s5, 288'); a('s_add_u32 s4, s4, s5')
    a('v_and_b32 v1, 31, v0'); a('v_mul_u32_u24 v1, 1152, v1'); a('v_lshrrev_b32 v2, 5, v0'); a('v_lshl_add_u32 v1, v2, 4, v1'); a('v_add_u32 v1, s4, v1')
    a('v_add_u32 v2, %d, v1' % (32*1152)); a('v_add_u32 v3, %d, v1' % (64*1152))
    a('v_lshlrev_b32 v4, 4, v0')
    a('s_mul_i32 s6, s3, 27648'); a('s_add_u32 s6, s6, %d' % CF_OFF)
    a('s_waitcnt lgkmcnt(0)')
    a('s_bitcmp1_b32 s3, 2')
    a('s_cselect_b32 s%d, s%d, s%d' % (SP0, SP0+2, SP0)); a('s_cselect_b32 s%d, s%d, s%d' % (SP0+1, SP0+3, SP0+1))
    for f in range(27):
        a('global_load_dwordx4 %s, v%d, s[%d:%d] offset:%d' % (vr(16+4*f, 4), 1 + f % 3, SP0, SP0+1, (f//3)*32), 'c%d' % f)
    for f in range(27):
        a.wait_vm('c%d' % f)
        a('buffer_store_dwordx4 %s, v4, %s, s6 offen offset:%d sc1' % (vr(16+4*f, 4), WSR, (f % 4)*1024))
        if f % 4 == 3: a('s_add_u32 s6, s6, 4096')
    a('s_lshl_b32 s3, s3, 7'); a('s_add_u32 s3, s3, %d' % CFL_OFF)
    a('v_mov_b32 v1, 0'); a('v_mov_b32 v2, s%d' % S_NONCE)
    a('s_mov_b64 exec, 1')
    a('s_waitcnt vmcnt(0)')
    a('buffer_store_dword v2, v1, %s, s3 offen sc1' % WSR)
    a('s_mov_b64 exec, -1')
    a('LIGHT2:')
    a.vm = []
    a('s_cmp_ge_u32 s2, 252'); a('s_cbranch_scc1 KEND')
    a('s_sub_u32 s3, s2, 240'); a('s_lshr_b32 s%d, s3, 1' % S_NT); a('s_and_b32 s3, s3, 1')
    a('s_lshl_b32 s4, s3, 1'); a('s_add_u32 s4, s4, 5')
    for i in range(8): a('s_add_u32 s%d, s4, %d' % (S_ORD+i, 8*i))
    a('s_mov_b32 s%d, 0' % S_MT); a('s_mov_b32 s%d, 4' % S_SP); a('s_mov_b32 s%d, 0' % S_SHORT); a('s_mov_b32 s%d, 0x3ffff' % S_MASK)
    a('s_mov_b32 s%d, %d' % (S_T4, HSF_OFF))
    a('v_min_u32 v1, 47, v0'); a('v_lshlrev_b32 v1, 7, v1'); a('s_mov_b32 s%d, %d' % (S_T3, CFL_OFF))
    ldc = 'buffer_load_dword v2, v1, %s, s%d offen sc1' % (WSR, S_T3)
    a(ldc); a('s_waitcnt vmcnt(0)')
    poll_loop(a, lambda a: a(ldc), chk_all_eq(2), 8)
    a('s_lshl_b32 s4, s%d, 2' % S_NT); a('s_add_u32 s4, s4, s%d' % S_W); a('s_mul_i32 s4, s4, 55296'); a('s_add_u32 s4, s4, %d' % CF_OFF)
    a('v_lshlrev_b32 v4, 4, v0')
    for f in range(54):
        a('buffer_load_dwordx4 %s, v4, %s, s4 offen offset:%d sc1' % (ar(4*f, 4), WSR, (f % 4)*1024))
        if f % 4 == 3: a('s_add_u32 s4, s4, 4096')
    flag_lanes(a, 1)
    ld, chk = flag_poll(a, S_T4, 4, 8192)
    ld(a); a('s_waitcnt vmcnt(0)')
    poll_loop(a, ld, chk, 16)
    a('s_branch B_SSM2')

def gen():
    a = Asm()
    name = PFX + '_kernel'
    a(kernel_header(name))
    a('KSTART:')
    a('s_cmp_ge_u32 s2, 256'); a('s_cbranch_scc1 KEND')
    st = Stamps(); stamp(a, st); nstamp(a, 'start')
    for nm in ('ln0', 'ln1', 'ln2', 'ln3', 'w0a', 'w0b'): nstamp(a, nm)
    a('s_load_dwordx2 s[%d:%d], s[0:1], %d' % (SP0, SP0+1, A_X))
    a('s_load_dwordx2 s[%d:%d], s[0:1], %d' % (SP0+2, SP0+3, D_WS))
    a('s_load_dwordx2 s[%d:%d], s[0:1], %d' % (SP0+4, SP0+5, B_W1))
    a('s_load_dwordx4 s[56:59], s[0:1], %d' % A_BRE)
    a('s_load_dwordx4 s[60:63], s[0:1], %d' % A_LRE)
    a('s_load_dwordx2 s[54:55], s[0:1], %d' % A_LDT)
    a('v_lshrrev_b32 v13, 6, v0')
    a('v_readfirstlane_b32 s%d, v13' % S_W)
    a('v_and_b32 v0, 63, v0')
    a('s_cmp_ge_u32 s%d, 2' % S_W); a('s_cbranch_scc1 SKIP_LN')
    ln_part(a)
    a.vm = []
    a('s_branch LN_DONE')
    a('SKIP_LN:')
    if P('CODEPF', 1):
        a('s_getpc_b64 s[4:5]'); a('PFPC:')
        a('s_sub_u32 s4, s4, PFPC-KSTART'); a('s_subb_u32 s5, s5, 0')
        a('s_lshr_b32 s6, s2, 3'); a('s_and_b32 s6, s6, 7'); a('s_add_u32 s6, s6, 1'); a('s_lshl_b32 s6, s6, 13')
        a('s_cmp_eq_u32 s%d, 3' % S_W); a('s_cselect_b32 s6, 0, s6')
        a('v_lshl_add_u32 v%d, v0, 7, s6' % V_PL)
        a('v_min_u32 v%d, KLAST-KSTART, v%d' % (V_PL, V_PL))
        a('global_load_dword v%d, v%d, s[4:5]' % (V_PL+3, V_PL))
        a.vm = []
    a('LN_DONE:')
    a('s_waitcnt lgkmcnt(0)')
    ws_srd(a)
    a('s_cmp_lt_u32 s%d, 2' % S_W); a('s_cbranch_scc1 HAVE_NONCE')
    a('s_load_dword s%d, s[%d:%d], %d' % (S_NONCE, S_WS, S_WS+1, NONCE_OFF))
    a('s_cmp_lt_u32 s2, 240'); a('s_cbranch_scc1 HAVE_NONCE')
    a('s_waitcnt lgkmcnt(0)'); nonce_mix(a)
    a('HAVE_NONCE:')
    a('s_cmp_lt_u32 s2, 240'); a('s_cbranch_scc1 HEAVY')
    light_part(a)
    a.vm = []
    a('HEAVY:')
    srd(a, S_W1, SP0+4, 576*9216)
    a('s_and_b32 s3, s2, 7'); a('s_lshr_b32 s4, s2, 3')
    a('s_lshr_b32 s5, s3, 1'); a('s_mul_i32 s5, s5, 30'); a('s_add_u32 s5, s5, s4')
    a('s_lshr_b32 s6, s5, 2')
    a('s_mul_i32 s7, s6, 52'); a('s_lshr_b32 s7, s7, 8')
    a('s_mul_i32 s4, s7, 5'); a('s_sub_u32 s4, s6, s4')
    a('s_mul_i32 s6, s7, 3'); a('s_add_u32 s6, s6, s4')
    a('s_lshl_b32 s7, s7, 1'); a('s_add_u32 s7, s7, s4'); a('s_add_u32 s7, s7, 15')
    a('s_cmp_lt_u32 s4, 3'); a('s_cselect_b32 s%d, s6, s7' % S_N)
    a('s_and_b32 s5, s5, 3'); a('s_and_b32 s3, s3, 1'); a('s_lshl_b32 s3, s3, 2'); a('s_add_u32 s%d, s3, s5' % S_G)
    a('s_lshl_b32 s%d, s%d, 10' % (S_M0W, S_W))
    a('v_lshrrev_b32 v13, 3, v0'); a('v_and_b32 v14, 7, v0'); a('v_bfe_u32 v15, v0, 4, 1'); a('v_lshlrev_b32 v15, 2, v15'); a('v_xor_b32 v14, v14, v15')
    a('s_lshl_b32 s3, s%d, 3' % S_W); a('v_add_u32 v13, s3, v13')
    a('v_mul_u32_u24 v%d, 9216, v13' % V_WD); a('v_lshl_add_u32 v%d, v14, 4, v%d' % (V_WD, V_WD))
    def common2():
        a('s_mov_b32 s%d, 0x%08x' % (S_NL2E, f32bits(-LOG2E)))
        a('s_mul_i32 s%d, s%d, %d' % (S_XB, S_G, 8*36864)); a('s_add_u32 s%d, s%d, %d' % (S_XB, S_XB, XF_OFF))
        a('s_mul_i32 s%d, s%d, %d' % (S_HB, S_G, 8*HF_RB)); a('s_add_u32 s%d, s%d, %d' % (S_HB, S_HB, HF_OFF))
        a('s_mul_i32 s3, s%d, 73728' % S_W)
        a('v_bfe_u32 v14, v0, 2, 3'); a('v_lshlrev_b32 v14, 7, v14'); a('v_lshrrev_b32 v15, 5, v0'); a('v_lshl_add_u32 v14, v15, 6, v14')
        a('v_and_b32 v15, 3, v0'); a('v_lshl_add_u32 v14, v15, 4, v14'); a('v_add_u32 v%d, s3, v14' % V_XO)
        a('v_add_u32 v%d, 36864, v%d' % (V_XO+1, V_XO))
        a('s_mul_i32 s3, s%d, %d' % (S_W, 2*HF_RB))
        a('v_lshl_add_u32 v%d, v0, 4, s3' % V_HO); a('v_add_u32 v%d, %d, v%d' % (V_HO+1, HF_RB, V_HO))
        a('v_lshrrev_b32 v14, 5, v0'); a('v_lshlrev_b32 v14, 10, v14')
        a('v_bfe_u32 v15, v0, 2, 2'); a('v_lshl_add_u32 v14, v15, 7, v14')
        a('v_bfe_u32 v15, v0, 4, 1'); a('v_lshl_add_u32 v14, v15, 5, v14')
        a('v_and_b32 v15, 3, v0'); a('v_lshl_add_u32 v14, v15, 3, v14')
        a('v_bfe_u32 v15, v0, 3, 1'); a('v_lshl_add_u32 v%d, v15, 6, v14' % V_TR)
        a('v_xor_b32 v%d, 64, v%d' % (V_TR+1, V_TR))
    def w1_and_poll(tagp):
        nstamp(a, 'w1i')
        common2()
        a('v_and_b32 v%d, 15, v0' % V_PA); a('v_lshlrev_b32 v%d, 7, v%d' % (V_PA, V_PA))
        a('s_lshl_b32 s3, s%d, 13' % S_G); a('s_lshl_b32 s4, s%d, 11' % S_W); a('s_add_u32 s3, s3, s4'); a('s_add_u32 s%d, s3, %d' % (S_T3, LNF_OFF))
        ld = 'buffer_load_dword v%d, v%d, %s, s%d offen sc1' % (V_PL, V_PA, WSR, S_T3)
        a(ld); a('s_waitcnt vmcnt(0)')
        stamp(a, st); nstamp(a, 'pl0')
        poll_loop(a, lambda a: a(ld), chk_all_eq(V_PL))
        stamp(a, st); nstamp(a, 'pl1')
    def w0(mixed):
        L = 'W0SKIP%d' % mixed
        a('s_cmp_lt_u32 s%d, 2' % S_W); a('s_cbranch_scc1 %s' % L); nstamp(a, 'w0a')
        if P('WTOUCH', 0):
            a('s_and_b32 s3, s%d, 3' % S_G); a('s_mul_i32 s3, s3, %d' % (144*9216))
            a('s_cmp_eq_u32 s%d, 3' % S_W); a('s_cselect_b32 s4, s%d, s%d' % (S_P+1, S_P+(1 if mixed else 0))); a('s_add_u32 s3, s3, s4')
            a('v_min_u32 v%d, 47, v0' % V_PA); a('v_mul_u32_u24 v%d, 9216, v%d' % (V_PA, V_PA))
            for k in range(3):
                a('buffer_load_dword v%d, v%d, s[%d:%d], s3 offen' % (V_PL+3, V_PA, S_W1, S_W1+3))
                a('s_add_u32 s3, s3, %d' % (48*9216))
        if mixed:
            a('v_subrev_u32 v%d, %d, v%d' % (V_PA, 16*1152, V_BD))
            for n in range(18): dma_b(a, n//2, n % 2, 'w0'); dma_b(a, n//2, n % 2, 'w0', V_PA, -2048)
        else:
            a('v_subrev_u32 v%d, %d, v%d' % (V_PA, 16*9216, V_WD))
            for n in range(18): dma_w1(a, 0, 0, n, 'w0'); dma_w1(a, 0, 0, n, 'w0', V_PA, -2048)
        a('v_subrev_u32 v%d, %d, v%d' % (V_PA, 16*9216, V_WD))
        for n in range(18): dma_w1(a, 1, 1, n, 'w1'); dma_w1(a, 1, 1, n, 'w1', V_PA, -2048)
        nstamp(a, 'w0b'); a('s_waitcnt lgkmcnt(0)'); nonce_mix(a)
        a(L + ':')
        a.vm = []
    a('s_cmp_lt_u32 s%d, 18' % S_N); a('s_cbranch_scc1 A_MIXED')
    a('s_mul_i32 s3, s%d, 3' % S_N); a('s_sub_u32 s3, s3, 18'); a('s_lshl_b32 s%d, s3, 7' % S_P)
    a('s_add_u32 s%d, s%d, 128' % (S_P+1, S_P)); a('s_add_u32 s%d, s%d, 256' % (S_P+2, S_P))
    w0(0); w1_and_poll(0)
    phaseA(a, False, st)
    a('s_branch A_DONE')
    nst = st.n; st.n = 1; a.vm = []; a.lg = []; a.seen = set()
    a('A_MIXED:')
    srd(a, S_BRE, 56, 576*1152); srd(a, S_BIM, 58, 576*1152)
    a('s_lshl_b32 s%d, s%d, 8' % (S_P+1, S_N)); a('s_add_u32 s%d, s%d, 128' % (S_P+2, S_P+1))
    a('v_bfe_u32 v15, v13, 1, 3'); a('v_and_b32 v14, 7, v0'); a('v_xor_b32 v14, v14, v15')
    a('s_lshl_b32 s7, s%d, 5' % S_N); a('v_add_u32 v13, s7, v13')
    a('v_mul_u32_u24 v%d, 1152, v13' % V_BD); a('v_lshl_add_u32 v%d, v14, 4, v%d' % (V_BD, V_BD))
    w0(1)
    a('v_and_b32 v13, 31, v0'); a('v_lshrrev_b32 v14, 5, v0'); a('v_bfe_u32 v15, v0, 1, 3'); a('v_xor_b32 v14, v14, v15')
    a('v_lshlrev_b32 v14, 4, v14'); a('v_lshl_add_u32 v%d, v13, 7, v14' % V_BR)
    for e in range(1, 4): a('v_xor_b32 v%d, %d, v%d' % (V_BR+e, 32*e, V_BR))
    a('v_lshrrev_b32 v14, 5, v0'); a('s_lshl_b32 s4, s%d, 1' % S_W); a('v_add_u32 v%d, s4, v14' % R_SIDX)
    a('v_add_u32 v%d, s%d, v14' % (R_GH, S_G))
    a('v_lshlrev_b32 v%d, 6, v13' % R_TW); a('v_add_u32 v%d, 0x%x, v%d' % (R_TW, E_OFF - E_OFF % 65536, R_TW))
    a('v_lshl_add_u32 v%d, v%d, 3, v%d' % (R_EA, R_SIDX, R_TW)); a('v_add_u32 v%d, 0x%x, v%d' % (R_EA, E_OFF % 65536, R_EA))
    a('v_add_u32 v15, s7, v13')
    a('v_lshlrev_b32 v%d, 4, v15' % R_AW)
    a('v_mul_u32_u24 v14, 9216, v14'); a('v_add_u32 v%d, v14, v%d' % (R_AO, R_AW))
    a('v_min_u32 v14, 1, v%d' % R_SIDX); a('v_lshl_add_u32 v%d, v14, 30, v%d' % (R_AW, R_AW))
    a('v_lshlrev_b32 v15, 1, v15')
    a('global_load_ushort v%d, v15, s[60:61]' % R_T3); a('global_load_ushort v%d, v15, s[62:63]' % R_T4); a('global_load_ushort v%d, v15, s[54:55]' % R_ER)
    a('s_mul_i32 s%d, s%d, 9216' % (S_BB, S_G)); a('s_add_u32 s%d, s%d, %d' % (S_BB, S_BB, AGG_OFF))
    a('s_lshl_b32 s4, s%d, 11' % S_W); a('s_add_u32 s4, s4, %d' % TB_OFF)
    a('v_lshrrev_b32 v14, 5, v0'); a('v_lshlrev_b32 v14, 9, v14')
    a('v_bfe_u32 v15, v0, 2, 2'); a('v_lshl_add_u32 v14, v15, 6, v14')
    a('v_and_b32 v15, 1, v0'); a('v_lshl_add_u32 v14, v15, 5, v14')
    a('v_bfe_u32 v15, v0, 4, 1'); a('v_lshl_add_u32 v14, v15, 4, v14')
    a('v_bfe_u32 v15, v0, 1, 1'); a('v_lshl_add_u32 v14, v15, 3, v14')
    a('v_add_u32 v%d, s4, v14' % R_TRD)
    a('v_lshrrev_b32 v14, 5, v0'); a('v_lshlrev_b32 v14, 5, v14'); a('v_lshl_add_u32 v14, v13, 6, v14')
    a('v_add_u32 v%d, s4, v14' % R_TWA)
    w1_and_poll(1)
    a('s_lshl_b32 s4, s%d, 11' % S_N); a('s_add_u32 s4, s4, %d' % (288*1024)); a('s_add_u32 s%d, s4, s%d' % (S_HS, S_HB))
    phaseA(a, True, st)
    assert st.n == nst or not DIAG or STNAMES
    a('A_DONE:')
    a('s_nop 15')
    a.vm = []; a.lg = []; a.seen = set()
    a('s_cmp_eq_u32 s%d, 4' % S_SP); a('s_cbranch_scc1 B_SSM')
    phaseB(a, False, st)
    st.n = nst; a.vm = []; a.lg = []; a.seen = set()
    a('B_SSM:')
    phaseB(a, True, st)
    a('KEND:')
    a('KLAST:')
    a('s_endpgm')
    return name, a.lines, kernel_desc(name, 512, 256, 102)

if __name__ == '__main__':
    ref = open('cdna_kernels/%s.s.ref' % PFX).read().split('\n')
    hdr = [l for l in ref if l.startswith(';') and '@launch' not in l and 'Override launch' not in l and 'grid=ceil' not in l][:16]
    name, lines, desc = gen()
    padded, n = pad_hazards(lines)
    sys.stderr.write('%d lines, %d nops inserted\n' % (len(padded), n))
    out = hdr + ['; @launch grid=(256,1,1) block=(256,1,1) lds=%d' % LDS_BYTES, '.amdgcn_target "amdgcn-amd-amdhsa--gfx950"'] + padded + [desc]
    sys.stdout.write('\n'.join(out) + '\n')
```

```python
import sys, os, struct
from asmlib import *
from sched import *
def P(name, dflt): return int(os.environ.get(name, dflt))
def f32bits(x): return struct.unpack('<I', struct.pack('<f', x))[0]
PFX = "recurrent_scan__ssm_conv_s5__dense_activation_silu__prompt"
LOG2E = 1.4426950408889634

WSB      = P('WSB', 0)*1024*1024
NONCE_OFF= 0
STAT_OFF = 16384
AGG_OFF  = 65536
FS       = 128
LNF_OFF  = 256*1024
HEF_OFF  = 320*1024
HFL_OFF  = 384*1024
HSF_OFF  = 448*1024
CFL_OFF  = 512*1024
OOB      = 0x7ffffff0
XF_OFF   = 1024*1024
CF_OFF   = 4*1024*1024
HF_OFF   = 8*1024*1024
HF_RB    = 360*1024
PF_OFF   = 32*1024*1024
PY_OFF   = 48*1024*1024
WS_USED  = 64*1024*1024
A_X, A_LRE, A_LIM, A_BRE, A_BIM, A_CRE, A_CIM, A_LDT, A_DSK, B_X, B_W1, B_W2, D_OUT, D_DBG, D_WS = [8*i for i in range(15)]

SLAB = 73728
E_OFF = 2*SLAB
TB_OFF = E_OFF + 3072
LDS_BYTES = TB_OFF + 8192

def ws_srd(a):
    a('s_add_u32 s%d, s%d, 0x%x' % (S_WS, SP0+2, WSB))
    a('s_addc_u32 s%d, s%d, 0' % (S_WS+1, SP0+3))
    a('s_and_b32 s%d, s%d, 0xffff' % (S_WS+1, S_WS+1))
    a('s_mov_b32 s%d, 0x%x' % (S_WS+2, WS_USED))
    a('s_mov_b32 s%d, 0x00020000' % (S_WS+3))
def srd(a, s, lo, nbytes):
    a('s_mov_b32 s%d, s%d' % (s, lo))
    a('s_and_b32 s%d, s%d, 0xffff' % (s+1, lo+1))
    a('s_mov_b32 s%d, 0x%x' % (s+2, nbytes))
    a('s_mov_b32 s%d, 0x00020000' % (s+3))

S_WS = 8; S_W1 = 12; S_BRE = 16; S_BIM = 20; S_WT = 24
S_X = 16; S_OUT = 20
S_G = 28; S_N = 29; S_W = 30; S_XB = 31; S_T = 32; S_M0W = 33
S_P = 34
S_HB = 37; S_T2 = 38; S_BB = 39; S_NL2E = 40; S_TX = 41; S_TF = 42; S_CNT = 43; S_HS = 44; S_NONCE = 45
S_MT = 46; S_NT = 47; S_SP = 48; S_WB = 49; S_WSTR = 50; S_MW = 51; S_T3 = 52; S_T4 = 53; S_MASK = 54; S_TEAM = 55
S_SHORT = S_XB
S_SW = 34
S_PF = 12
S_ORD = 56
S_HBB = S_HB; S_HN = S_TX; S_PB = S_BB
SP0 = 96

V_XO = 1; V_WD = 3; V_BD = 4; V_TR = 5; V_BR = 7; V_HO = 11; V_T0 = 13
V_XV = 16; V_ACC = 48; V_WF = 176; V_ET = 200; V_SC = 208
V_W2D = 253
def xfrag(blk, ks):
    idx = (ks*2 + blk)*4
    return ar(idx, 4) if idx < 256 else vr(V_XV + idx - 256, 4)
def acc(s, blk): return V_ACC + 32*s + 16*blk
(R_LR, R_LI, R_CR, R_CI, R_P32R, R_P32I, R_P256R, R_P256I, R_T1, R_T2, R_T3, R_T4, R_ER, R_EI, R_TG0, R_TG1, R_EA, R_SIDX, R_AO, R_TW) = range(V_SC, V_SC+20)
R_BUF = V_SC + 20
R_TWA, R_TRD, R_P512R, R_P512I, R_GH, R_AW = range(244, 250)
R_NLI = 4
R_NCI = R_TG1
R_U0 = R_T4
R_MR, R_MI = 1, 2
R_LLR, R_LLI = 7, 8
V_PL = 250
V_PA = 252
V_DUM = 10
V_RDB = 251
assert R_BUF % 4 == 0 and R_ER % 4 == 0

WSR = 's[%d:%d]' % (S_WS, S_WS+3)
label_n = [0]
OOL = []
def poll_loop(a, loads, check, sleep=1, rec=None):
    label_n[0] += 1; L = 'POLL%d' % label_n[0]
    if DIAG: a('s_mov_b32 s%d, 0' % S_CNT)
    check(a)
    a('s_cbranch_scc0 %s' % L)
    a(L + '_OK:')
    if DIAG and STNAMES and rec in STNAMES: a('s_mov_b32 s%d, s%d' % (S_STAMP + 2*STNAMES.index(rec), S_CNT))
    b = Asm()
    b(L + ':')
    b('s_mov_b32 s%d, 0' % S_CNT)
    b(L + '_R:')
    b('s_add_u32 s%d, s%d, 1' % (S_CNT, S_CNT))
    b('s_cmp_gt_u32 s%d, %d' % (S_CNT, P('SPIN', 20000)))
    b('s_cbranch_scc1 %s_OK' % L)
    b('s_sleep %d' % sleep)
    loads(b)
    b('s_waitcnt vmcnt(0)')
    check(b)
    b('s_cbranch_scc0 %s_R' % L)
    b('s_branch %s_OK' % L)
    OOL.extend(b.lines)

def chk_all_eq(reg):
    def f(a):
        a('v_cmp_ne_u32 vcc, s%d, v%d' % (S_NONCE, reg))
        a('s_nop 1')
        a('s_cmp_eq_u64 vcc, 0')
    return f

def epi_ffn(E, s, pi, c, ready, blks=(0, 1), mixed=False):
    grp = ('acc', s)
    els = [(blk, j) for blk in blks for j in range(16)]
    n = len(els)
    r = lambda e: acc(s, els[e][0]) + els[e][1]
    t = lambda e: V_ET + (e % 8)
    I = lambda text, tag=None: E.ins(text, tag, ready, 0, grp)
    I('s_lshl_b32 s%d, s%d, 5' % (S_T2, S_P+pi))
    I('s_add_u32 s%d, s%d, s%d' % (S_T2, S_T2, S_HB))
    if mixed: I('%s s%d, s%d, s%d' % ('s_sub_u32' if c else 's_add_u32', S_T2, S_T2, S_SW))
    for step in range(n + 6):
        e = step
        if e < n: I('v_mul_f32 v%d, s%d, v%d' % (t(e), S_NL2E, r(e)))
        e = step - 1
        if 0 <= e < n: I('v_exp_f32 v%d, v%d' % (t(e), t(e)))
        e = step - 2
        if 0 <= e < n: I('v_add_f32 v%d, 1.0, v%d' % (t(e), t(e)))
        e = step - 3
        if 0 <= e < n: I('v_rcp_f32 v%d, v%d' % (t(e), t(e)))
        e = step - 4
        if 0 <= e < n: I('v_mul_f32 v%d, v%d, v%d' % (t(e), t(e), r(e)))
        e = step - 5
        if 0 <= e < n and e % 2 == 1:
            base = r(e - e % 8)
            I('v_cvt_pk_bf16_f32 v%d, v%d, v%d' % (base + (e % 8)//2, t(e-1), t(e)))
            if e % 8 == 7:
                blk = els[e][0]; fr = (e % 16)//8
                I('buffer_store_dwordx4 %s, v%d, %s, s%d offen offset:%d sc1' % (vr(base, 4), V_HO+blk, WSR, S_T2, c*2048 + fr*1024), 'st' if (pi == 2 or (mixed and c == 1)) else 'se')

def cmul_add(F, dr, di, ar_, ai, br, bi, cr, ci, ready=0):
    F.ins('v_fma_f32 v%d, -v%d, v%d, v%d' % (R_T1, ai, bi, cr), None, ready)
    F.ins('v_fma_f32 v%d, v%d, v%d, v%d' % (R_T2, ai, br, ci), None, ready)
    F.ins('v_fma_f32 v%d, v%d, v%d, v%d' % (dr, ar_, br, R_T1), None, ready)
    F.ins('v_fma_f32 v%d, v%d, v%d, v%d' % (di, ar_, bi, R_T2), None, ready)

def csq(F, dr, di, sr_, si):
    F.ins('v_mul_f32 v%d, v%d, v%d' % (R_T1, si, si))
    F.ins('v_mul_f32 v%d, v%d, v%d' % (R_T2, sr_, si))
    F.ins('v_fma_f32 v%d, v%d, v%d, -v%d' % (dr, sr_, sr_, R_T1))
    F.ins('v_add_f32 v%d, v%d, v%d' % (di, R_T2, R_T2))

def scan_tables(F):
    F.ins('v_lshlrev_b32 v%d, 16, v%d' % (R_T3, R_T3))
    F.ins('v_lshlrev_b32 v%d, 16, v%d' % (R_T4, R_T4))
    F.ins('v_lshlrev_b32 v%d, 16, v%d' % (R_ER, R_ER))
    F.ins('v_mul_f32 v%d, 0x%08x, v%d' % (R_ER, f32bits(LOG2E), R_ER))
    F.ins('v_exp_f32 v%d, v%d' % (R_ER, R_ER))
    F.ins('v_cvt_pk_bf16_f32 v%d, v%d, v%d' % (R_ER, R_ER, R_ER))
    F.ins('v_lshlrev_b32 v%d, 16, v%d' % (R_ER, R_ER))
    F.ins('v_mul_f32 v%d, v%d, v%d' % (R_T1, R_ER, R_T3))
    F.ins('v_mul_f32 v%d, v%d, v%d' % (R_T2, R_ER, R_T4))
    F.ins('v_mul_f32 v%d, 0x%08x, v%d' % (R_T1, f32bits(LOG2E), R_T1))
    F.ins('v_exp_f32 v%d, v%d' % (R_T1, R_T1))
    F.ins('v_mul_f32 v%d, 0.15915494, v%d' % (R_T2, R_T2))
    F.ins('v_rndne_f32 v%d, v%d' % (R_EI, R_T2))
    F.ins('v_sub_f32 v%d, v%d, v%d' % (R_T2, R_T2, R_EI))
    F.ins('v_cos_f32 v%d, v%d' % (R_LR, R_T2))
    F.ins('v_sin_f32 v%d, v%d' % (R_LI, R_T2))
    F.ins('v_mul_f32 v%d, v%d, v%d' % (R_LR, R_LR, R_T1))
    F.ins('v_mul_f32 v%d, v%d, v%d' % (R_LI, R_LI, R_T1))
    F.ins('v_add_f32 v%d, -1.0, v%d' % (R_ER, R_LR))
    F.ins('v_mul_f32 v%d, v%d, v%d' % (R_T1, R_T3, R_T3))
    F.ins('v_fmac_f32 v%d, v%d, v%d' % (R_T1, R_T4, R_T4))
    F.ins('v_rcp_f32 v%d, v%d' % (R_T1, R_T1))
    F.ins('v_mul_f32 v%d, v%d, v%d' % (R_CR, R_ER, R_T3))
    F.ins('v_fmac_f32 v%d, v%d, v%d' % (R_CR, R_LI, R_T4))
    F.ins('v_mul_f32 v%d, v%d, v%d' % (R_CI, R_LI, R_T3))
    F.ins('v_fma_f32 v%d, -v%d, v%d, v%d' % (R_CI, R_ER, R_T4, R_CI))
    F.ins('v_mul_f32 v%d, v%d, v%d' % (R_CR, R_CR, R_T1))
    F.ins('v_mul_f32 v%d, v%d, v%d' % (R_CI, R_CI, R_T1))
    csq(F, R_P32R, R_P32I, R_LR, R_LI)
    for _ in range(4): csq(F, R_P32R, R_P32I, R_P32R, R_P32I)
    MR, MI, Z = R_BUF, R_BUF+1, R_BUF+2
    F.ins('v_mov_b32 v%d, 0' % Z)
    F.ins('v_and_b32 v%d, 1, v%d' % (R_T3, R_SIDX)); F.ins('v_cmp_ne_u32 s[60:61], 0, v%d' % R_T3)
    F.ins('v_cndmask_b32 v%d, 1.0, v%d, s[60:61]' % (MR, R_P32R)); F.ins('v_cndmask_b32 v%d, 0, v%d, s[60:61]' % (MI, R_P32I))
    for b in (1, 2):
        if b == 1: csq(F, R_P256R, R_P256I, R_P32R, R_P32I)
        else: csq(F, R_P256R, R_P256I, R_P256R, R_P256I)
        F.ins('v_and_b32 v%d, %d, v%d' % (R_T3, 1 << b, R_SIDX)); F.ins('v_cmp_ne_u32 s[60:61], 0, v%d' % R_T3)
        cmul_add(F, R_BUF+4, R_BUF+5, R_P256R, R_P256I, MR, MI, Z, Z)
        F.ins('v_cndmask_b32 v%d, v%d, v%d, s[60:61]' % (MR, MR, R_BUF+4)); F.ins('v_cndmask_b32 v%d, v%d, v%d, s[60:61]' % (MI, MI, R_BUF+5))
    csq(F, R_P256R, R_P256I, R_P256R, R_P256I)
    csq(F, R_P512R, R_P512I, R_P256R, R_P256I)
    F.ins('v_mov_b32 v%d, s%d' % (R_TG0, S_NONCE))
    F.ins('v_sub_f32 v%d, 0, v%d' % (R_NLI, R_LI))
    F.ins('v_sub_f32 v%d, 0, v%d' % (R_NCI, R_CI))

def ureg(part, tt): return acc(part, tt >> 4) + (tt & 15)
def uim(tt): return R_U0 if tt == 0 else acc(1, 0) + tt - 1

def scan_early(F, ready, half, cb=None):
    for tt in range(16*half, 16*half + 16):
        ur, ui, un = ureg(0, tt), ureg(1, tt), uim(tt)
        F.ins('v_mul_f32 v%d, v%d, v%d' % (un, R_CI, ur), None, ready)
        F.ins('v_mul_f32 v%d, v%d, v%d' % (ur, R_CR, ur))
        F.ins('v_fmac_f32 v%d, v%d, v%d' % (un, R_CR, ui))
        F.ins('v_fmac_f32 v%d, v%d, v%d' % (ur, R_NCI, ui))
        if tt == 0: continue
        pairs = [(R_ER, R_EI), (R_T1, R_T2)]
        nr, ni = pairs[(31 - tt) % 2]
        er, ei = (ureg(0, 0), uim(0)) if tt == 1 else pairs[(32 - tt) % 2]
        F.ins('v_fma_f32 v%d, v%d, v%d, v%d' % (ni, R_LI, er, un))
        F.ins('v_fma_f32 v%d, v%d, v%d, v%d' % (nr, R_NLI, ei, ur))
        F.ins('v_fmac_f32 v%d, v%d, v%d' % (ni, R_LR, ei))
        F.ins('v_fmac_f32 v%d, v%d, v%d' % (nr, R_LR, er))
    if half == 0: return
    F.ins('v_mov_b32 v%d, v%d' % (R_MR, R_BUF)); F.ins('v_mov_b32 v%d, v%d' % (R_MI, R_BUF+1))
    F.ins('ds_write_b64 v%d, %s' % (R_EA, vr(R_ER, 2)), 'ew')
    F.fn(lambda a: (a.wait_lg('ew'), a('s_barrier')), 2, 0, 2)
    for n in range(4):
        F.ins('ds_read_b128 %s, v%d offset:%d' % (vr(R_BUF+4*n, 4), R_TW, E_OFF % 65536 + 16*n), 'er')
    F.ins('v_mov_b32 v%d, s%d' % (R_TG1, S_NONCE))
    F.ins('s_add_u32 s%d, s%d, %d' % (S_TF, S_BB, 8*9216))
    F.fn(lambda a: a.wait_lg('er'), 1, 0, 4)
    cmul_add(F, R_ER, R_EI, R_P32R, R_P32I, R_BUF, R_BUF+1, R_BUF+2, R_BUF+3)
    for s in range(2, 8):
        cmul_add(F, R_ER, R_EI, R_P32R, R_P32I, R_ER, R_EI, R_BUF+2*s, R_BUF+2*s+1)
    F.ins('buffer_store_dwordx4 %s, v%d, %s, s%d offen sc1' % (vr(R_ER, 4), R_AW, WSR, S_TF), 'st')
    F.fn(lambda a: cb(), 0)
    F.ins('v_xor_b32 v%d, 16, v%d' % (R_EA, R_TWA)); F.ins('v_xor_b32 v%d, 32, v%d' % (R_TW, R_TRD))
    F.ins('v_mov_b32 v%d, 0' % R_LLR); F.ins('v_mov_b32 v%d, 0' % R_LLI)
    for s in range(7):
        F.ins('v_cmp_lt_u32 s[60:61], %d, v%d' % (s, R_SIDX))
        cmul_add(F, R_T3, R_CI, R_P32R, R_P32I, R_LLR, R_LLI, R_BUF+2*s, R_BUF+2*s+1)
        F.ins('v_cndmask_b32 v%d, v%d, v%d, s[60:61]' % (R_LLR, R_LLR, R_T3))
        F.ins('v_cndmask_b32 v%d, v%d, v%d, s[60:61]' % (R_LLI, R_LLI, R_CI))

def agg_insts():
    out = []
    for m in range(4):
        out.append('s_add_u32 s%d, s%d, %d' % (S_TF, S_BB, 2*m*9216))
        out.append('buffer_load_dwordx4 %s, v%d, %s, s%d offen sc1' % (vr(R_BUF+4*m, 4), R_AO, WSR, S_TF))
    return out
def agg_check(a):
    for m in range(4):
        a('v_cmp_le_u32 vcc, %d, v%d' % (8-2*m, R_GH))
        a('v_cndmask_b32 v%d, v%d, v%d, vcc' % (R_BUF+4*m+3, R_TG0, R_BUF+4*m+2))
    a('v_xor_b32 v%d, v%d, v%d' % (R_T1, R_BUF+3, R_BUF+7))
    a('v_xor_b32 v%d, v%d, v%d' % (R_T2, R_BUF+11, R_BUF+15))
    a('v_xor_b32 v%d, v%d, v%d' % (R_T3, R_BUF+3, R_TG0))
    a('v_xor_b32 v%d, v%d, v%d' % (R_CI, R_BUF+11, R_TG0))
    a('v_or3_b32 v%d, v%d, v%d, v%d' % (R_T1, R_T1, R_T2, R_T3))
    a('v_or_b32 v%d, v%d, v%d' % (R_T1, R_T1, R_CI))
    a('v_cmp_ne_u32 vcc, 0, v%d' % R_T1)
    a('s_nop 1')
    a('s_cmp_eq_u64 vcc, 0')

def scan_late(F, ready_poll):
    for t in agg_insts(): F.ins(t, 'poll', ready_poll)
    F.fn(lambda a: (a.wait_vm('poll'), poll_loop(a, lambda a: [a(t) for t in agg_insts()], agg_check, 1, 'r_agg')), 5, 0, P('POLLD', 34))
    for m in range(4):
        F.ins('v_cmp_le_u32 s[60:61], %d, v%d' % (8-2*m, R_GH))
        F.ins('v_cndmask_b32 v%d, 0, v%d, s[60:61]' % (R_BUF+4*m, R_BUF+4*m))
        F.ins('v_cndmask_b32 v%d, 0, v%d, s[60:61]' % (R_BUF+4*m+1, R_BUF+4*m+1))
    cmul_add(F, R_ER, R_EI, R_P512R, R_P512I, R_BUF, R_BUF+1, R_BUF+4, R_BUF+5)
    for m in range(2, 4):
        cmul_add(F, R_ER, R_EI, R_P512R, R_P512I, R_ER, R_EI, R_BUF+4*m, R_BUF+4*m+1)
    F.ins('v_mov_b32 v%d, v%d' % (R_T3, R_ER)); F.ins('v_mov_b32 v%d, v%d' % (R_CI, R_EI))
    F.ins('v_permlane32_swap_b32 v%d, v%d' % (R_ER, R_T3)); F.ins('v_permlane32_swap_b32 v%d, v%d' % (R_EI, R_CI))
    cmul_add(F, R_ER, R_EI, R_P256R, R_P256I, R_ER, R_EI, R_T3, R_CI)
    cmul_add(F, R_ER, R_EI, R_MR, R_MI, R_ER, R_EI, R_LLR, R_LLI)
    pr, pi_ = R_ER, R_EI
    land = lambda part, blk: R_BUF if (part, blk) == (1, 0) else acc(part, blk) + 8
    def pack(part, blk):
        b = acc(part, blk); neg = '-' if part else ''
        src = (lambda t: uim(16*blk + t)) if part else (lambda t: b + t)
        for k in range(8):
            F.ins('v_cvt_pk_bf16_f32 v%d, %sv%d, %sv%d' % (b+k, neg, src(2*k), neg, src(2*k+1)))
        for u in range(2):
            F.ins('ds_write_b128 v%d, %s' % (R_EA if u else R_TWA, vr(b+4*u, 4)), 'tw', 0, P('TWSP', 1))
        for ph in range(2):
            for u in range(2):
                F.ins('ds_read_b64_tr_b16 %s, v%d offset:%d' % (vr(land(part, blk)+4*ph+2*u, 2), R_TW if u else R_TRD, ph*1024 + u*256), 'tr%d%d' % (part, blk))
    def store(part, blk, dl):
        b = land(part, blk)
        F.ins('s_add_u32 s%d, s%d, %d' % (S_TF, S_HS, part*36*1024))
        F.fn(lambda a: a.wait_lg('tr%d%d' % (part, blk)), 1, 0, dl)
        for ph in range(2):
            F.ins('buffer_store_dwordx4 %s, v%d, %s, s%d offen offset:%d sc1' % (vr(b+4*ph, 4), V_HO+blk, WSR, S_TF, ph*1024), 'hs', 0, P('HSSP', 0))
    for tt in range(32):
        ur, ui = ureg(0, tt), uim(tt)
        F.ins('v_fmac_f32 v%d, v%d, v%d' % (ur, R_LR, pr))
        F.ins('v_fmac_f32 v%d, v%d, v%d' % (ui, R_LI, pr))
        F.ins('v_fmac_f32 v%d, v%d, v%d' % (ur, R_NLI, pi_))
        F.ins('v_fmac_f32 v%d, v%d, v%d' % (ui, R_LR, pi_))
        pr, pi_ = ur, ui
        if tt == 16: pack(0, 0); pack(1, 0)
        if tt == 24: store(0, 0, 0); store(1, 0, 0)
    pack(0, 1); pack(1, 1); store(0, 1, 2); store(1, 1, 2)
    F.fn(hs_flag, 5, 0, P('HSD', 36), 'hsflag')

def hs_flag(a):
    a('s_add_u32 s%d, s%d, %d' % (S_TF, S_T4, HSF_OFF))
    a.wait_vm('hs'); a('s_barrier')
    a('buffer_store_dword v%d, v%d, %s, s%d offen sc1' % (R_TG0, V_PA, WSR, S_TF), 'fl')

WNT = os.environ.get('WNT', '')
XNT = os.environ.get('XNT', '')
W2NT = os.environ.get('W2NT', '')
def he_flag(a):
    a('s_add_u32 s%d, s%d, %d' % (S_T, S_T4, HEF_OFF))
    a.wait_vm('se'); a('s_barrier')
    a('buffer_store_dword v%d, v%d, %s, s%d offen sc1' % (V_PL, V_PA, WSR, S_T), 'fl')

def dma_w1(a, slab, pi, n, tag, vreg=V_WD, dm=0):
    a('s_add_u32 m0, s%d, %d' % (S_M0W, slab*SLAB + n*4096 + dm))
    a('s_add_u32 s%d, s%d, %d' % (S_T, S_P+pi, n*32*9216))
    a('buffer_load_dwordx4 v%d, s[%d:%d], s%d offen%s lds' % (vreg, S_W1, S_W1+3, S_T, WNT), tag)

def dma_b(a, kb, part, tag, vreg=V_BD, dm=0):
    a('s_add_u32 m0, s%d, %d' % (S_M0W, kb*8192 + part*4096 + dm))
    a('s_movk_i32 s%d, %d' % (S_T, kb*128))
    s = S_BIM if part else S_BRE
    a('buffer_load_dwordx4 v%d, s[%d:%d], s%d offen%s lds' % (vreg, s, s+3, S_T, WNT), tag)

def xload(a, ks, blk):
    if ks % 4 == 0: a('s_add_u32 s%d, s%d, %d' % (S_TX, S_XB, (ks//4)*4096))
    a('buffer_load_dwordx4 %s, v%d, %s, s%d offen offset:%d sc1' % (xfrag(blk, ks), V_XO+blk, WSR, S_TX, (ks % 4)*1024), 'x%d_%d' % (blk, ks))

def w2_slot(ks):
    u = ks // 2
    base = (SLAB if u < 6 else 0) + (u % 3)*6144
    return base + (ks % 2)*3072
def w2_dma(ks):
    out = ['s_add_u32 m0, s%d, %d' % (S_MW, w2_slot(ks))]
    for n in range(3):
        out.append('buffer_load_dwordx4 v%d, s[%d:%d], s%d offen offset:%d sc1%s lds' % (V_W2D+n, S_WT, S_WT+3, S_WB, n*1024, W2NT))
    out.append('s_add_u32 s%d, s%d, s%d' % (S_WB, S_WB, S_WSTR))
    return out

def phaseB_setup(F, ready):
    I = lambda t: F.ins(t, None, ready)
    def ld(a):
        a('s_load_dwordx2 s[%d:%d], s[0:1], %d' % (SP0, SP0+1, B_W2))
    F.fn(ld, 1, ready)
    I('s_and_b32 s3, s2, 7'); I('s_lshr_b32 s4, s2, 3')
    I('s_mul_i32 s5, s4, 43'); I('s_lshr_b32 s5, s5, 8')
    I('s_mul_i32 s6, s5, 6'); I('s_sub_u32 s%d, s4, s6' % S_NT)
    I('s_mul_i32 s3, s3, 5'); I('s_add_u32 s3, s3, s5')
    I('s_lshr_b32 s%d, s3, 3' % S_SP); I('s_and_b32 s%d, s3, 7' % S_MT)
    I('s_mul_i32 s%d, s%d, 18432' % (S_MW, S_W))
    I('s_mul_i32 s3, s%d, 1152' % S_SP); I('s_mul_i32 s4, s%d, 288' % S_W); I('s_add_u32 s3, s3, s4')
    I('s_mul_i32 s3, s3, 1152'); I('s_mul_i32 s4, s%d, 192' % S_NT); I('s_add_u32 s3, s3, s4')
    I('s_lshl_b32 s4, s%d, 2' % S_NT); I('s_add_u32 s4, s4, s%d' % S_W); I('s_mul_i32 s4, s4, 55296'); I('s_add_u32 s4, s4, %d' % CF_OFF)
    for n in range(3):
        I('v_add_u32 v13, %d, v0' % (64*n))
        I('v_mul_u32_u24 v14, 0x1556, v13'); I('v_lshrrev_b32 v14, 16, v14')
        I('v_mul_u32_u24 v15, 960, v14')
        I('v_lshl_add_u32 v%d, v0, 4, v15' % (V_W2D+n))
    I('v_lshrrev_b32 v14, 5, v0'); I('v_lshlrev_b32 v14, 2, v14'); I('v_bfe_u32 v15, v0, 2, 2'); I('v_add_u32 v14, v14, v15')
    I('v_mul_u32_u24 v14, 192, v14')
    I('v_bfe_u32 v15, v0, 4, 1'); I('v_lshl_add_u32 v14, v15, 5, v14')
    I('v_and_b32 v15, 3, v0'); I('v_lshl_add_u32 v%d, v15, 3, v14' % V_RDB)
    def sel(a):
        a('s_waitcnt lgkmcnt(0)')
        a('s_cmp_eq_u32 s%d, 4' % S_SP)
        a('s_cselect_b32 s%d, s4, s3' % S_WB)
        a('s_cselect_b32 s%d, 3072, s%d' % (S_WSTR, S_WSTR))
        a('s_cselect_b32 s%d, s%d, s%d' % (S_WT, S_WS, SP0))
        a('s_cselect_b32 s%d, s%d, s%d' % (S_WT+1, S_WS+1, SP0+1))
        a('s_cselect_b32 s%d, s%d, s%d' % (S_WT+2, S_WS+2, S_WT+2))
        a('s_cselect_b64 vcc, -1, 0')
        a('s_and_b32 s%d, s%d, 0xffff' % (S_WT+1, S_WT+1))
        a('v_lshlrev_b32 v13, 4, v0')
        for n in range(3): a('v_cndmask_b32 v%d, v%d, v13, vcc' % (V_W2D+n, V_W2D+n))
        a('v_cndmask_b32 v%d, v%d, v13, vcc' % (V_RDB, V_RDB))
        a('s_add_u32 s3, s%d, %d' % (S_MW, SLAB)); a('v_add_u32 v%d, s3, v%d' % (V_RDB, V_RDB))
    I('s_mov_b32 s%d, %d' % (S_WSTR, 16*1152)); I('s_mov_b32 s%d, %d' % (S_WT+2, 4608*1152)); I('s_mov_b32 s%d, 0x00020000' % (S_WT+3))
    F.fn(sel, 5, ready, 4)
    F.fn(lambda a: srd(a, 16, SP0, 4608*1152), 4, ready)
    I('s_lshl_b32 s3, s%d, 12' % S_G); I('s_lshl_b32 s4, s%d, 7' % S_N); I('s_add_u32 s%d, s3, s4' % S_T4)
    I('v_or_b32 v%d, s%d, v0' % (V_PA, S_W)); I('v_min_u32 v%d, 1, v%d' % (V_PA, V_PA)); I('v_lshlrev_b32 v%d, 30, v%d' % (V_PA, V_PA))
    I('v_mov_b32 v%d, s%d' % (V_PL, S_NONCE))

def w2_touch(F, ready):
    I = lambda t: F.ins(t, None, ready)
    I('s_lshr_b32 s3, s2, 3'); I('s_lshl_b32 s3, s3, 2'); I('s_add_u32 s3, s3, s%d' % S_W); I('s_mul_i32 s3, s3, %d' % (88*128))
    I('s_and_b32 s4, s2, 7'); I('s_mul_i32 s4, s4, 5'); I('s_add_u32 s5, s4, 4'); I('s_lshr_b32 s4, s4, 3'); I('s_lshr_b32 s5, s5, 3')
    I('s_mul_i32 s4, s4, %d' % (1152*1152)); I('s_mul_i32 s5, s5, %d' % (1152*1152)); I('s_add_u32 s4, s4, s3'); I('s_add_u32 s5, s5, s3')
    I('v_min_u32 v13, 43, v0'); I('v_lshlrev_b32 v13, 7, v13')
    for sreg in (4, 5):
        I('v_add_u32 v14, s%d, v13' % sreg); I('v_add_u32 v15, %d, v14' % (44*128))
        F.ins('buffer_load_dword v%d, v14, s[16:19], 0 offen' % V_DUM, None, ready, 3)
        F.ins('buffer_load_dword v%d, v15, s[16:19], 0 offen' % V_DUM, None, ready, 3)

def code_touch(a):
    label_n[0] += 1; L = 'CT%d' % label_n[0]
    a('s_getpc_b64 s[4:5]'); a(L + ':')
    a('s_add_u32 s4, s4, A_DONE-%s' % L); a('s_addc_u32 s5, s5, 0')
    a('s_lshl_b32 s6, s%d, 13' % S_W)
    a('v_lshl_add_u32 v13, v0, 7, s6'); a('v_min_u32 v13, KLAST-A_DONE, v13')
    a('global_load_dword v%d, v13, s[4:5]' % V_DUM)

TDN = P('TDN', 0)
def cfl_check(a):
    label_n[0] += 1; L = 'CFS%d' % label_n[0]
    a('s_cmp_lg_u32 s%d, 4' % S_SP); a('s_cbranch_scc1 %s' % L)
    save = list(a.vm)
    a('v_min_u32 v13, 47, v0'); a('v_lshlrev_b32 v13, 7, v13'); a('s_mov_b32 s%d, %d' % (S_T3, CFL_OFF))
    ldc = 'buffer_load_dword v14, v13, %s, s%d offen sc1' % (WSR, S_T3)
    a(ldc); a('s_waitcnt vmcnt(0)')
    poll_loop(a, lambda a: a(ldc), chk_all_eq(14))
    a.vm = save
    a(L + ':')

def w2_read_br(ks):
    def f(a):
        label_n[0] += 1; L = 'WR%d' % label_n[0]
        off = w2_slot(ks) - SLAB
        a.wait_vm('v%d' % ks)
        a('s_cmp_eq_u32 s%d, 4' % S_SP); a('s_cbranch_scc1 %s_S' % L)
        save = list(a.lg)
        for dt in range(3):
            base = (ks*3 + dt)*4
            a('ds_read_b64_tr_b16 %s, v%d offset:%d' % (ar(base, 2), V_RDB, off + dt*64), 'wr%d' % ks)
            a('ds_read_b64_tr_b16 %s, v%d offset:%d' % (ar(base+2, 2), V_RDB, off + dt*64 + 1536), 'wr%d' % ks)
        a('s_branch %s_E' % L)
        a(L + '_S:')
        a.lg = save
        for dt in range(3):
            base = (ks*3 + dt)*4
            a('ds_read_b64 %s, v%d offset:%d' % (ar(base, 2), V_RDB, off + dt*1024), 'wr%d' % ks)
            a('ds_read_b64 %s, v%d offset:%d' % (ar(base+2, 2), V_RDB, off + dt*1024 + 8), 'wr%d' % ks)
        a(L + '_E:')
    return f

def phaseA(a, mixed, st):
    S = Sched(a)
    SC = S.stream('scan'); D = S.stream('dma'); E = S.stream('epi'); B = S.stream('bpre')
    EF = Stream('ef'); EF.fn(he_flag, 5); a.tagcount = {}
    NSE = 4 if mixed else 16; tse = [None]
    def ef_gate():
        if a.tagcount.get('se', 0) < NSE: return False
        if tse[0] is None: tse[0] = S.mf
        return S.mf >= tse[0] + P('EFD', 30)
    EF.gate = ef_gate
    pend = [lambda a, ks=ks, blk=blk: xload(a, ks, blk) for blk in range(2) for ks in range(36)]
    for _ in range(P('XBURST', 16)): pend.pop(0)(a)
    nstamp(a, 'xb'); a('s_barrier'); nstamp(a, 'bar0')
    if mixed: scan_tables(SC)
    phaseB_setup(B, 0)
    frs = []
    for blk in range(2):
        for ks in range(36):
            for c in range(2): frs.append(('p1', blk, ks, c))
    for ci in range(4):
        for ks in range(36): frs.append(('c', ci, ks, ci & 1))
    consumed = [0]; trbase = [0, 0]; reads = []
    def pre(n):
        kind, ci, ks, c = frs[n]
        def f(a):
            if kind == 'p1' and mixed and ks == 32 and c == 0:
                for r in range(4): a('v_add_u32 v%d, 0x10000, v%d' % (V_BR+r, V_BR+r))
            if kind == 'p1' and mixed and ks == 0 and c == 0 and ci == 1:
                for r in range(4): a('v_subrev_u32 v%d, 0x10000, v%d' % (V_BR+r, V_BR+r))
            if kind == 'c' and ci == 0 and ks == 0:
                a('s_waitcnt lgkmcnt(0)'); a('s_barrier')
                for k in range(18): D.fn(lambda a, k=k: dma_w1(a, 0, 2, k, 'w2'), 4, 0, P('W2SP', 3))
            if kind == 'c' and ci == 2 and ks == 0:
                assert not pend and not D.q
                a.wait_vm('w2'); a('s_waitcnt lgkmcnt(0)'); a('s_barrier')
            if not (kind == 'p1' and mixed):
                slab = 0 if kind == 'p1' else (1 if ci < 2 else 0)
                bias = slab*SLAB + (36864 if ks >= 18 else 0)
                if trbase[c] != bias:
                    a('v_add_u32 v%d, 0x%x, v%d' % (V_TR+c, (bias - trbase[c]) & 0xffffffff, V_TR+c)); trbase[c] = bias
        return f
    for n, (kind, ci, ks, c) in enumerate(frs):
        dst = V_WF + 4*(n % 6); tag = 'f%d' % n
        if kind == 'p1' and mixed:
            reads.append((n, lambda a, n=n, dst=dst, ks=ks, c=c, tag=tag: (pre(n)(a), a('ds_read_b128 %s, v%d offset:%d' % (vr(dst, 4), V_BR + (ks & 3), ((ks >> 2)*8192 + c*4096) % 65536), tag))))
        else:
            off = (ks % 18)*2048
            reads.append((n, lambda a, n=n, dst=dst, c=c, off=off, tag=tag: (pre(n)(a), a('ds_read_b64_tr_b16 %s, v%d offset:%d' % (vr(dst, 2), V_TR+c, off), tag))))
            reads.append((n, lambda a, dst=dst, c=c, off=off, tag=tag: a('ds_read_b64_tr_b16 %s, v%d offset:%d' % (vr(dst+2, 2), V_TR+c, off+512), tag)))
    def issue_reads(quota):
        while reads and quota > 0 and reads[0][0] < consumed[0] + 6:
            S.must_fn(reads.pop(0)[1]); quota -= 1
    def issued(n): return not reads or reads[0][0] > n
    accset = ([2, 3, 2, 0] if P('SC2', 1) else [2, 3, 2, 3]) if mixed else [2, 3, 0, 1]
    issue_reads(100)
    n = 0
    while n < len(frs):
        kind, ci, ks, c = frs[n]
        if kind == 'p1' and ks == 1 and c == 0 and ci == 0: stamp(a, st); nstamp(a, 'p1s')
        if kind == 'p1' and ks == 0 and c == 0 and ci == 1:
            nstamp(a, 'p1b')
            S.drain(stream=B)
            if mixed: scan_early(SC, S.mf + 3, 0)
            else:
                epi_ffn(E, 0, 0, 0, S.mf + 3, (0,)); epi_ffn(E, 1, 0, 1, S.mf + 3, (0,))
        if kind == 'c' and ks == 0:
            if ci in (0, 2): stamp(a, st)
            nstamp(a, 'c%d' % ci)
            S.note = None; S.drain(('acc', accset[ci]))
            if S.note: sys.stderr.write('  forced drain at chunk %d: %s\n' % (ci, S.note))
            rdy = S.mf + 2
            if ci == 0:
                if mixed:
                    scan_early(SC, rdy, 1, lambda: setattr(S, 'streams', [D, SC, E, B])); scan_late(SC, S.mf + P('POLLAT', 100))
                else:
                    epi_ffn(E, 0, 0, 0, rdy, (1,)); epi_ffn(E, 1, 0, 1, rdy, (1,))
            else:
                epi_ffn(E, accset[ci-1], 1 + (ci-1)//2, (ci-1) & 1, rdy, (0, 1), mixed)
            if ci == 1:
                S.streams = [D, SC, E, B]
            if ci == 0:
                S.drain(stream=B)
                if P('W2TOUCH', 0):
                    keep = D.q; D.q = []; w2_touch(D, S.mf); D.q += keep
            if ci == 2:
                B.fn(cfl_check, 2, S.mf + 2)
                if P('CTOUCH', 1): B.fn(code_touch, 5, S.mf + 2)
                def pf(a):
                    a('s_cmp_eq_u32 s%d, 4' % S_SP)
                    a('s_cselect_b32 s%d, 0x3ffff, s%d' % (S_MASK, S_MASK)); a('s_cselect_b32 s%d, %d, s%d' % (S_PF, HSF_OFF, S_PF))
                B.ins('s_mov_b32 s%d, 0x3fffffff' % S_MASK); B.ins('s_mov_b32 s%d, %d' % (S_PF, HEF_OFF)); B.fn(pf, 3)
                B.ins('s_lshl_b32 s3, s%d, 12' % S_MT); B.ins('s_add_u32 s%d, s%d, s3' % (S_PF, S_PF))
                B.fn(lambda a: flag_lanes(a, 0), 5)
                for k2 in range(6):
                    for t in w2_dma(k2): B.ins(t, 'v%d' % k2, S.mf + P('W2AT', 4) + 11*k2, P('DMSP', 3) if 'lds' in t else 0)
                S.streams = [EF, B, SC, E]
            if ci == 3:
                if mixed and P('SC2', 1):
                    keep = [it for it in SC.q if it[4] == 'hsflag']; SC.q = [it for it in SC.q if it[4] != 'hsflag']
                    sys.stderr.write('  forced SC drain %s\n' % S.pending()); S.drain(stream=SC); SC.q = keep
                for k2 in range(6):
                    B.fn(w2_read_br(k2), 5, S.mf + 5 + 11*k2)
                    B.fn(lambda a, k2=k2: a.wait_lg('wr%d' % k2), 1, 0, 4)
                    for t in w2_dma(k2+6): B.ins(t, 'v%d' % (k2+6), 0, P('DMSP2', 2) if 'lds' in t else 0)
                S.streams = [EF, B, SC, E]
        while not issued(n): issue_reads(1)
        S.fill(reserve=2 if kind == 'p1' and c == 0 else 1)
        if kind == 'p1':
            if c == 0:
                S.must_fn(lambda a: a.wait_vm('x%d_%d' % (ci, ks)))
                S.must_fn(lambda a: a.wait_lg('f%d' % (n+1) if issued(n+1) else 'f%d' % n))
            else: S.must_fn(lambda a: a.wait_lg('f%d' % n))
        else:
            if ks % 2 == 0 and n + 1 < len(frs) and issued(n+1): S.must_fn(lambda a: a.wait_lg('f%d' % (n+1)))
            S.must_fn(lambda a: a.wait_lg('f%d' % n))
        blks = (ci,) if kind == 'p1' else (0, 1)
        for blk in blks:
            sset = c if kind == 'p1' else accset[ci]
            d = vr(acc(sset, blk), 16); w = vr(V_WF + 4*(n % 6), 4); x = xfrag(blk, ks)
            A, Bo = (x, w) if (mixed and kind == 'p1') else (w, x)
            S.mfma('v_mfma_f32_32x32x16_bf16 %s, %s, %s, %s' % (d, A, Bo, d if ks else '0'))
            if blk == blks[-1]: consumed[0] = n + 1
            issue_reads(2 if kind == 'p1' else 1)
            if pend and (c == 0 if kind == 'p1' else blk == 0): S.must_fn(pend.pop(0))
        n += 1
    sys.stderr.write('phaseA mixed=%d pending at end: %s\n' % (mixed, S.pending()))
    stamp(a, st); nstamp(a, 'tl0')
    S.mf += 1000
    S.drain(stream=B)
    a('s_barrier')
    epi_ffn(E, accset[3], 2, 1, 0, (0, 1), mixed)
    assert not SC.q and not EF.q
    q = E.q; E.q = []
    dm = []
    for k2 in range(12, 12 + TDN):
        t = w2_dma(k2); dm += [(t[0:2], k2), (t[2:3], k2), (t[3:5], k2)]
    sp_ = max(1, (len(q) - P('TD0', 10)) // max(1, 3*TDN))
    for i, it in enumerate(q):
        if i == max(0, len(q) - P('EPA', 150)): flag_poll('hp')[0](a)
        it[0](a)
        if dm and i >= P('TD0', 10) and (i - P('TD0', 10)) % sp_ == 0:
            ts, k2 = dm.pop(0)
            for t in ts: a(t, 'v%d' % k2)
    assert not dm and a.vm[-1] == 'st'
    nstamp(a, 'tl1')
    a.wait_vm('hp')
    ld, chk = flag_poll()
    poll_loop(a, ld, chk, 1, 'r_h')
    a.wait_vm('v11')
    stamp(a, st); nstamp(a, 't3')

VB_HO = 1; VB_O = 2; VB_RD = 5; VB_RW = 6; VB_T = 7; VB_RR = 10; VB_PO = 13
VB_ACC = 16; VB_RB = 112; VB_H = 152
A_XX = 216
RED = 36864
S_FB = 34
def wfrag(ks, dt): return ar((ks*3 + dt)*4, 4)
def accr(s, dt): return VB_ACC + 48*s + 16*dt
X = os.environ.get('X', '')

def w2_read(a, ks, ssm):
    sl = w2_slot(ks); hi = sl >= SLAB
    for dt in range(3):
        base = (ks*3 + dt)*4
        reg = VB_RD
        off = sl - (SLAB if hi else 0)
        if ssm:
            a('ds_read_b128 %s, v%d offset:%d' % (ar(base, 4), reg, off + dt*1024), 'wr%d' % ks)
        else:
            a('ds_read_b64_tr_b16 %s, v%d offset:%d' % (ar(base, 2), reg, off + dt*64), 'wr%d' % ks)
            a('ds_read_b64_tr_b16 %s, v%d offset:%d' % (ar(base+2, 2), reg, off + dt*64 + 1536), 'wr%d' % ks)

def reduce_fill(R, i, ready, send, ssm, io=None, dl=1, wrd=2):
    s = i & 1; grp = ('acc', s); buf = s*RED
    if io is None: io = i
    for q in range(1, 4):
        for dt in range(3):
            R.ins('ds_write_b128 v%d, %s offset:%d' % (VB_RW, vr(accr(s, dt) + 4*q, 4), buf + (q-1)*3072 + dt*1024), 'rw%d' % i, ready, wrd, grp)
    R.fn(lambda a: (a.wait_lg('rw%d' % i), a('s_barrier')), 2, 0, 2*dl)
    for q in range(1, 4):
        for dt in range(3):
            R.ins('ds_read_b128 %s, v%d offset:%d' % (vr(VB_RB + ((q-1)*3+dt)*4, 4), VB_RR+q-1, buf + dt*1024), 'rr%d' % i)
    R.fn(lambda a: a.wait_lg('rr%d' % i), 1, 0, 4*dl)
    for k in range(12):
        own = accr(s, k//4) + k % 4
        R.ins('v_add_f32 v%d, v%d, v%d' % (VB_RB+k, VB_RB+k, own), None, 0, 0, grp)
        R.ins('v_add_f32 v%d, v%d, v%d' % (VB_RB+12+k, VB_RB+12+k, VB_RB+24+k))
    SB = VB_RB + 24
    for k in range(12):
        dst = SB + 4*(k//3) + k % 3 if (send and ssm) else VB_RB + k
        R.ins('v_add_f32 v%d, v%d, v%d' % (dst, VB_RB+k, VB_RB+12+k), 'sum%d' % i)
    if send:
        ng = 4 if ssm else 2
        if not ssm:
            for p in range(6): R.ins('v_cvt_pk_bf16_f32 v%d, v%d, v%d' % (SB + 4*(p//3) + p % 3, VB_RB+2*p, VB_RB+2*p+1))
        for g in range(ng): R.ins('v_mov_b32 v%d, s%d' % (SB + 4*g + 3, S_NONCE))
        R.ins('s_mul_i32 s%d, s%d, %d' % (S_TF, S_ORD+io, 6*4*ng*1024))
        R.ins('s_add_u32 s%d, s%d, s%d' % (S_TF, S_TF, S_PB))
        for g in range(ng):
            if 'nost' in X: continue
            R.ins('buffer_store_dwordx4 %s, v%d, %s, s%d offen offset:%d%s' % (vr(SB+4*g, 4), VB_PO, WSR, S_TF, g*1024, '' if 'plainst' in X else ' sc1'), 'st', 0, 2 if g else 0)

def ffn_loads(quads):
    return ['buffer_load_dwordx4 %s, v%d, %s, s%d offen offset:%d sc1' % (vr(quads[src*2+g], 4), VB_PO, WSR, S_FB+src, g*1024) for src in range(3) for g in range(2)]
def y_loads(quads):
    return ['buffer_load_dwordx4 %s, v%d, %s, s%d offen offset:%d sc1' % (vr(quads[g], 4), VB_RD, WSR, S_T2, g*1024) for g in range(4)]
def tag_check(quads):
    def f(a):
        t = [q+3 for q in quads]
        for op, d in (('v_min3_u32', VB_T), ('v_max3_u32', VB_T+1)):
            a('%s v%d, v%d, v%d, v%d' % (op, d, t[0], t[1], t[2]))
            r = t[3:]
            while r:
                a('%s v%d, v%d, v%d, v%d' % (op, d, d, r[0], r[1] if len(r) > 1 else r[0])); r = r[2:]
        a('v_cmp_ne_u32 vcc, s%d, v%d' % (S_NONCE, VB_T))
        a('v_cmp_ne_u32 s[4:5], s%d, v%d' % (S_NONCE, VB_T+1))
        a('s_nop 1')
        a('s_or_b64 vcc, vcc, s[4:5]')
        a('s_cmp_eq_u64 vcc, 0')
    return f
def checked(G, tag, loads, quads, dl):
    G.fn(lambda a: (nstamp(a, 'w0' + tag), a.wait_vm(tag), nstamp(a, 'w1' + tag), poll_loop(a, lambda a: [a(t) for t in loads], tag_check(quads), P('RSLEEP', 8), 'r_' + tag)), 5, 0, dl)
def presum(G, quads, ps):
    pk = lambda src, k: quads[src*2 + (k//2)//3] + (k//2) % 3
    unp = lambda d, src, k: ('v_and_b32 v%d, 0xffff0000, v%d' if k % 2 else 'v_lshlrev_b32 v%d, 16, v%d') % (d, pk(src, k))
    for k in range(12):
        G.ins(unp(ps(k), 0, k)); G.ins(unp(VB_T, 1, k)); G.ins(unp(VB_T+1, 2, k))
        G.ins('v_add_f32 v%d, v%d, v%d' % (ps(k), ps(k), VB_T)); G.ins('v_add_f32 v%d, v%d, v%d' % (ps(k), ps(k), VB_T+1))
def prep_s(G, j, yq):
    y = lambda k: yq[k//3] + k % 3
    for k in range(12):
        G.ins('v_accvgpr_read_b32 v%d, a%d' % (VB_T + k % 2, A_XX+12*j+k))
        G.ins('v_and_b32 v%d, 0xffff0000, v%d' % (VB_T + k % 2, VB_T + k % 2))
        G.ins('v_fma_f32 v%d, 2.0, v%d, v%d' % (y(k), y(k), VB_T + k % 2))
OUTFL = os.environ.get('OUTFL', ' sc1')
def chain(G, j, ps, yq, first=None):
    y = lambda k: yq[k//3] + k % 3
    o = lambda k: VB_RB + k
    t1 = lambda k: VB_RB + 12 + k
    t2 = lambda k: VB_RB + 24 + k
    rnd = [lambda k: None if k % 2 else 'v_cvt_pk_bf16_f32 v%d, v%d, v%d' % (o(k+1), o(k), o(k+1)),
           lambda k: ('v_and_b32 v%d, 0xffff0000, v%d' % (o(k), o(k))) if k % 2 else ('v_lshlrev_b32 v%d, 16, v%d' % (o(k), o(k+1)))]
    stages = [lambda k: 'v_add_f32 v%d, v%d, v%d' % (o(k), o(k), ps(k))] + rnd + [
        lambda k: 'v_mul_f32 v%d, s%d, v%d' % (t1(k), S_NL2E, o(k)),
        lambda k: 'v_exp_f32 v%d, v%d' % (t1(k), t1(k)),
        lambda k: 'v_accvgpr_read_b32 v%d, a%d' % (t2(k), A_XX+12*j+k),
        lambda k: 'v_add_f32 v%d, 1.0, v%d' % (t1(k), t1(k)),
        lambda k: 'v_rcp_f32 v%d, v%d' % (t1(k), t1(k)),
        lambda k: 'v_lshlrev_b32 v%d, 16, v%d' % (t2(k), t2(k)),
        lambda k: 'v_mul_f32 v%d, v%d, v%d' % (o(k), o(k), t1(k))] + rnd + [
        lambda k: 'v_fma_f32 v%d, v%d, v%d, v%d' % (t2(k), y(k), o(k), t2(k)),
        lambda k: 'buffer_store_dword v%d, v%d, s[%d:%d], s%d offen offset:%d%s' % (t2(k), VB_O+1 + (k % 4)//2, S_OUT, S_OUT+3, S_T3, (k % 2)*2304 + (k//4)*128, OUTFL)]
    if first: G.fn(first, 0)
    for k0 in range(0, 12, 4):
        for stg in stages:
            for k in range(k0, k0+4):
                t = stg(k)
                if t: G.ins(t, 'out')

XT = 224
def xx_setup(a):
    a('s_load_dwordx2 s[%d:%d], s[0:1], %d' % (SP0, SP0+1, A_X))
    a('s_load_dwordx2 s[%d:%d], s[0:1], %d' % (SP0+2, SP0+3, D_OUT))
    a('s_load_dwordx2 s[%d:%d], s[0:1], %d' % (SP0+4, SP0+5, A_DSK))
def xx_fill(G):
    T = XT; I = G.ins
    SA, DA = T+27, T+28
    I('s_lshl_b32 s3, s%d, 8' % S_MT); I('s_lshl_b32 s4, s%d, 6' % S_SP); I('s_add_u32 s3, s3, s4')
    I('s_lshl_b32 s4, s%d, 2' % S_W); I('s_add_u32 s3, s3, s4')
    I('v_and_b32 v%d, 32, v0' % VB_O); I('v_add_u32 v%d, s3, v%d' % (VB_O, VB_O))
    I('v_lshlrev_b32 v%d, 3, v%d' % (SA, VB_O))
    I('v_mul_u32_u24 v%d, 576, v%d' % (VB_O, VB_O))
    I('v_and_b32 v%d, 31, v0' % (VB_O+1)); I('s_mul_i32 s4, s%d, 96' % S_NT)
    I('v_add_u32 v%d, s4, v%d' % (DA, VB_O+1)); I('v_add_u32 v%d, v%d, v%d' % (VB_O, VB_O, DA)); I('v_lshlrev_b32 v%d, 1, v%d' % (DA, DA))
    I('v_lshlrev_b32 v%d, 2, v%d' % (VB_O+1, VB_O)); I('v_add_u32 v%d, 4608, v%d' % (VB_O+2, VB_O+1)); I('v_lshlrev_b32 v%d, 1, v%d' % (VB_O, VB_O))
    G.fn(lambda a: srd(a, S_X, SP0, 2048*1152), 4); G.fn(lambda a: srd(a, S_OUT, SP0+2, 2048*2304), 4)
    I('s_movk_i32 s7, %d' % (16*1152)); I('s_mov_b32 s6, %d' % STAT_OFF)
    for dt in range(3):
        I('global_load_ushort v%d, v%d, s[%d:%d] offset:%d' % (T+20+dt, DA, SP0+4, SP0+5, dt*64), 'xx0')
    for j in range(2):
        for k in range(12):
            I('buffer_load_ushort v%d, v%d, s[%d:%d], %s offen offset:%d' % (T+k, VB_O, S_X, S_X+3, 's7' if j else '0', (k % 4)*1152 + (k//4)*64), 'xx%d' % j, 0, P('XXSP', 3))
        for u in range(2):
            I('buffer_load_dwordx4 %s, v%d, %s, s6 offen offset:%d sc1' % (vr(T+12+4*u, 4), SA, WSR, j*128 + u*16), 'xx%d' % j)
        G.fn(lambda a, j=j: a.wait_vm('xx%d' % j), 1, 0, P('XXD', 30))
        if j == 0:
            for dt in range(3): I('v_lshlrev_b32 v%d, 16, v%d' % (T+20+dt, T+20+dt))
        x = lambda k: T+k
        t = lambda k: T+23+k % 4
        mm = lambda k: T+12+2*(k % 4)
        rnd = [lambda k: None if k % 2 else 'v_cvt_pk_bf16_f32 v%d, v%d, v%d' % (t(k+1), t(k), t(k+1)),
               lambda k: ('v_and_b32 v%d, 0xffff0000, v%d' % (t(k), t(k))) if k % 2 else ('v_lshlrev_b32 v%d, 16, v%d' % (t(k), t(k+1)))]
        st = [lambda k: 'v_lshlrev_b32 v%d, 16, v%d' % (x(k), x(k)),
              lambda k: 'v_sub_f32 v%d, v%d, v%d' % (t(k), x(k), mm(k))] + rnd + [
              lambda k: 'v_mul_f32 v%d, v%d, v%d' % (t(k), t(k), mm(k)+1)] + rnd + [
              lambda k: 'v_mul_f32 v%d, v%d, v%d' % (t(k), t(k), T+20+k//4),
              lambda k: 'v_cvt_pk_bf16_f32 v%d, v%d, v%d' % (t(k), x(k), t(k)),
              lambda k: 'v_accvgpr_write_b32 a%d, v%d' % (A_XX+12*j+k, t(k))]
        for k0 in range(0, 12, 4):
            for s in st:
                for k in range(k0, k0+4):
                    tx = s(k)
                    if tx: I(tx)

FPA = 9; FPL = 8
def flag_lanes(a, two):
    a('v_and_b32 v14, 31, v0'); a('v_lshrrev_b32 v15, v14, s%d' % S_MASK); a('v_and_b32 v15, 1, v15'); a('v_xor_b32 v15, 1, v15')
    a('v_lshlrev_b32 v%d, 7, %s' % (FPA, 'v0' if two else 'v14'))
    a('v_lshl_add_u32 v%d, v15, 30, v%d' % (FPA, FPA))
def flag_poll(tag='hp'):
    def ld(a):
        a('buffer_load_dword v%d, v%d, %s, s%d offen sc1' % (FPL, FPA, WSR, S_PF), tag)
    def chk(a):
        a('v_cmp_ne_u32 vcc, s%d, v%d' % (S_NONCE, FPL))
        a('s_nop 1')
        a('s_or_b32 s4, vcc_lo, vcc_hi'); a('s_and_b32 s4, s4, s%d' % S_MASK)
        a('s_cmp_eq_u32 s4, 0')
    return ld, chk

def b_common(a, ssm, part=0):
  if part != 2:
    a('s_mul_i32 s%d, s%d, %d' % (S_HBB, S_MT, 8*HF_RB)); a('s_mul_i32 s3, s%d, %d' % (S_SP, 72*1024))
    a('s_add_u32 s%d, s%d, s3' % (S_HBB, S_HBB)); a('s_add_u32 s%d, s%d, %d' % (S_HBB, S_HBB, HF_OFF))
    a('s_lshl_b32 s4, s%d, 3' % S_W)
    a('v_add_u32 v14, s4, v0'); a('v_and_b32 v14, 31, v14'); a('v_and_b32 v15, 32, v0'); a('v_add_u32 v14, v14, v15')
    a('s_mul_i32 s3, s%d, %d' % (S_W, 18*1024)); a('v_lshl_add_u32 v%d, v14, 4, s3' % VB_HO)
  if part != 1:
    a('s_mul_i32 s%d, s%d, 48' % (S_TEAM, S_MT)); a('s_add_u32 s%d, s%d, s%d' % (S_TEAM, S_TEAM, S_NT))
    if ssm:
        a('s_lshl_b32 s3, s%d, 14' % S_TEAM); a('s_add_u32 s%d, s3, %d' % (S_PB, PY_OFF))
        a('s_lshl_b32 s3, s%d, 12' % S_W); a('v_lshl_add_u32 v%d, v0, 4, s3' % VB_PO)
    else:
        a('s_lshl_b32 s3, s%d, 13' % S_TEAM); a('s_mul_i32 s4, s%d, %d' % (S_SP, 64*6*8192)); a('s_add_u32 s3, s3, s4'); a('s_add_u32 s%d, s3, %d' % (S_PB, PF_OFF))
        a('s_lshl_b32 s3, s%d, 11' % S_W); a('v_lshl_add_u32 v%d, v0, 4, s3' % VB_PO)
    for q in range(1, 4):
        a('s_sub_u32 s3, s%d, %d' % (S_W, q)); a('s_and_b32 s3, s3, 3'); a('s_mul_i32 s3, s3, 9216'); a('s_add_u32 s3, s3, %d' % ((q-1)*3072 + SLAB))
        a('v_lshl_add_u32 v%d, v0, 4, s3' % (VB_RR+q-1))
    a('s_mul_i32 s3, s%d, 9216' % S_W); a('s_add_u32 s3, s3, %d' % SLAB); a('v_lshl_add_u32 v%d, v0, 4, s3' % VB_RW)

def phaseB(a, ssm, st):
    NH = P('NHS', 24) if ssm else P('NHF', 18)
    hslot = lambda n: VB_H + 4*(n % NH)
    KE = P('KE', 8)
    seq = [(0, k) for k in range(KE)] + [(1, k) for k in range(KE)] + [(0, k) for k in range(KE, 18)] + [(1, k) for k in range(KE, 18)]
    seq += [(i, ks) for i in range(2, 8) for ks in range(18)]
    if ssm: seq = [(i, ks) for i in range(8) for ks in range(18)]
    def hload(a, n):
        i, ks = seq[n]
        if n == 0 or seq[n-1][0] != i:
            a('s_mul_i32 s%d, s%d, %d' % (S_HN, S_ORD+i, HF_RB)); a('s_add_u32 s%d, s%d, s%d' % (S_HN, S_HN, S_HBB))
            if ks: a('s_add_u32 s%d, s%d, %d' % (S_HN, S_HN, (ks//4)*4096))
        elif ks % 4 == 0: a('s_add_u32 s%d, s%d, 4096' % (S_HN, S_HN))
        a('buffer_load_dwordx4 %s, v%d, %s, s%d offen offset:%d sc1' % (vr(hslot(n), 4), VB_HO, WSR, S_HN, (ks % 4)*1024), 'h%d' % n)
    a.tagcount = {}
    a.vm = ['st']; a.seen |= {'st'}
    nld = [0]; okl = [ssm]
    def next_h(a):
        if nld[0] < 144: hload(a, nld[0]); nld[0] += 1
    a('s_add_u32 s%d, s%d, %d' % (S_TF, S_T4, HFL_OFF))
    if ssm:
        for i, r in enumerate((0, 2, 4, 6, 1, 3, 3, 3)): a('s_mov_b32 s%d, %d' % (S_ORD+i, r))
        a('s_mov_b32 s%d, 1' % S_SHORT); a('s_mov_b32 s%d, 0' % S_T3)
        for k2 in range(12 + TDN, 18):
            for t in w2_dma(k2): a(t, 'v%d' % k2)
        b_common(a, ssm)
    else:
        for i in range(3):
            a('s_add_u32 s3, s%d, %d' % (S_SP, i+1)); a('s_and_b32 s3, s3, 3'); a('s_lshl_b32 s%d, s3, 1' % (S_ORD+i)); a('s_add_u32 s%d, s%d, 1' % (S_ORD+3+i, S_ORD+i))
        b_common(a, ssm, 1)
        for _ in range(P('HBURST', 10)): next_h(a)
        a('s_lshl_b32 s%d, s%d, 1' % (S_ORD+6, S_SP)); a('s_add_u32 s%d, s%d, 1' % (S_ORD+7, S_ORD+6))
        xx_setup(a)
        b_common(a, ssm, 2)
    a('v_mov_b32 v%d, v%d' % (VB_RD, V_RDB))
    for ks in range(6, 12): w2_read(a, ks, ssm)
    a('v_subrev_u32 v%d, %d, v%d' % (VB_RD, SLAB, V_RDB))
    a('s_waitcnt lgkmcnt(0)')
    a.wait_vm('st'); a('s_barrier')
    a('buffer_store_dword v%d, v%d, %s, s%d offen sc1' % (V_PL, V_PA, WSR, S_TF), 'fl')
    nstamp(a, 'flg')
    if ssm:
        if TDN < 6: a.wait_vm('v17')
        for ks in range(12, 18): w2_read(a, ks, ssm)
        a('s_waitcnt lgkmcnt(0)')
        a('B_SSM2:')
        a.vm = []
        for _ in range(P('HBURST', 10)): next_h(a)
    S = Sched(a); R = S.stream('red'); G = S.stream('xchg'); C = S.stream('chain')
    C.gate = lambda: not R.q and 'prepA' in a.seen
    if not ssm:
        XR = VB_H + 4*NH
        L = [XR + 4*k for k in range(6)]
        PSr = [XR+24+k for k in range(8)] + [VB_RB+36+k for k in range(4)]
        psA = lambda k: PSr[k]
        yA = L[:4]
        acq = [accr(0, dt) + 4*q for q in (1, 2, 3) for dt in range(3)]
        fB = L[4:6] + acq[:4]; yB = [hslot(126+k) for k in range(4)]
        psB = lambda k: acq[6 + k//4] + k % 4
    if not ssm:
        I = G.ins
        l2, c2 = flag_poll('hl')
        I('s_lshl_b32 s3, s%d, 3' % S_SP); I('s_lshl_b32 s3, 0xff, s3'); I('s_lshl_b32 s5, s%d, 2' % S_SP); I('s_lshl_b32 s5, 0x3f, s5')
        I('s_or_b32 s3, s3, s5'); I('s_and_b32 s%d, s%d, s3' % (S_MASK, S_MASK))
        I('s_add_u32 s%d, s%d, %d' % (S_PF, S_PF, HFL_OFF - HEF_OFF))
        for k2 in range(12 + TDN, 18):
            for t in w2_dma(k2): I(t, 'v%d' % k2, P('D15', 6) + P('D15S', 2)*(k2-12-TDN), P('D15D', 0) if 'lds' in t else 0)
        C.gate, gsave = None, C.gate
        C.fn(l2, 2, P('LP0', 16)); C.fn(lambda a: setattr(C, 'gate', gsave), 0)
        S.streams = [C, R, G]
        I('s_mul_i32 s5, s%d, 12' % S_SP); I('s_add_u32 s5, s5, s%d' % S_TEAM); I('s_lshl_b32 s5, s5, 13')
        for src in range(3):
            I('s_sub_u32 s3, s%d, %d' % (S_SP, src+1)); I('s_and_b32 s3, s3, 3'); I('s_mul_i32 s3, s3, %d' % (64*6*8192))
            I('s_add_u32 s3, s3, s5'); I('s_add_u32 s%d, s3, %d' % (S_FB+src, PF_OFF))
        I('s_lshl_b32 s5, s5, 1'); I('s_add_u32 s%d, s5, %d' % (S_T2, PY_OFF)); I('s_mov_b32 s%d, 0' % S_T3)
        tmp = Asm()
        for ks in range(12, 18): w2_read(tmp, ks, False)
        for k, t in enumerate(tmp.lines):
            if k % 6 == 0 and k//6 >= TDN: G.fn(lambda a, k=k: a.wait_vm('v%d' % (12 + k//6)), 1, P('RDAT', 40) + P('RDS', 3)*(k//6))
            I(t.strip(), 'wr%d' % (12 + k//6))
        I('s_lshl_b32 s3, s%d, 12' % S_W); I('v_lshl_add_u32 v%d, v0, 4, s3' % VB_RD)
        G.fn(lambda a: None, 0, P('LPC', 33) + 1)
        xx_fill(G)
    for n in range(144):
        i, ks = seq[n]; s = i & 1; p = n // 18
        if ks == 0:
            S.note = None; S.drain(('acc', s))
            if S.note: sys.stderr.write('  B forced drain at block %d: %s\n' % (i, S.note))
        if n % 18 == 0:
            if ssm and p == 6:
                S.drain()
                a('s_cmp_eq_u32 s%d, 1' % S_SHORT); a('s_cbranch_scc1 B_SSM_TAIL')
            if p in (0, 7): stamp(a, st)
            nstamp(a, 'b%d' % p)
        base = S.mf
        if n > 0 and seq[n-1][1] == 17:
            j = seq[n-1][0]
            reduce_fill(R, j, base + 2, ssm or j < 6, ssm, None, 1, 1 if (not ssm and j == 0) else P('WRD', 2))
        if not ssm and n % 18 == 0:
            if p == 4:
                FA0 = P('FA0', 0); FSP = P('FSP', 12)
                for k, t in enumerate(ffn_loads(L)): G.ins(t, 'fA', base + FA0 + FSP*k)
                checked(G, 'fA', ffn_loads(L), L, P('CHKD', 40))
                presum(G, L, psA)
                for src in range(3): G.ins('s_add_u32 s%d, s%d, %d' % (S_FB+src, S_FB+src, 6*8192))
            if p == 6:
                for k, t in enumerate(y_loads(yA)): G.ins(t, 'yA', base + P('YAAT', 0) + P('YSP', 7)*k)
                for k, t in enumerate(ffn_loads(fB)[:2]): G.ins(t, 'fB', 0, P('YSP', 7))
                checked(G, 'yA', y_loads(yA), yA, P('CHKD2', 22))
                prep_s(G, 0, yA); G.fn(lambda a: a.seen.add('prepA'), 0)
                G.ins('s_add_u32 s%d, s%d, %d' % (S_T2, S_T2, 6*16384))
            if p == 7:
                G.fn(lambda a: ('rr6' in a.seen) or sys.exit('order'), 0, base + P('FBAT', 24))
                lb = ffn_loads(fB)
                for t in lb[2:4]: G.ins(t, 'fB', 0, 3)
                for t in y_loads(yB): G.ins(t, 'yB', 0, 3)
                for t in lb[4:6]: G.ins(t, 'fB', 0, 3)
                chain(C, 0, psA, yA)
        if ssm and i in (0, 2, 4):
            l2, c2 = flag_poll('hp%d' % i)
            if ks == 0: S.must_fn(lambda a: (a('s_add_u32 s%d, s%d, s%d' % (S_PF, S_PF, S_T3)), l2(a)))
            if ks == 35 - NH:
                assert nld[0] <= 18*(i+2)
                S.must_fn(lambda a: (a.wait_vm('hp%d' % i), poll_loop(a, l2, c2, 4)))
        if not okl[0] and S.mf >= P('LPC', 33):
            S.must_fn(lambda a: (nstamp(a, 'lp0'), a.wait_vm('hl'), poll_loop(a, l2, c2, 1, 'r_l'), nstamp(a, 'lp1')))
            okl[0] = True; S.streams = [R, G, C]
            for _ in range(P('LBURST', 6)):
                if nld[0] < n + NH: S.must_fn(next_h)
        S.fill(reserve=1)
        S.must_fn(lambda a: a.wait_vm('h%d' % n))
        if not ssm and i == 0 and ks >= 12:
            assert a.tagcount.get('wr%d' % ks, 0) == 6, ks
            S.must_fn(lambda a: a.wait_lg('wr%d' % ks))
        for dt in range(3):
            d = vr(accr(s, dt), 16)
            S.mfma('v_mfma_f32_32x32x16_bf16 %s, %s, %s, %s' % (d, vr(hslot(n), 4), wfrag(ks, dt), d if ks else '0'))
            lim = n + NH + (1 if dt == 2 else 0)
            if not okl[0]: lim = min(lim, 2*KE)
            if nld[0] < min(lim, 144) and (dt != 1 or n < 36): S.must_fn(next_h)
    sys.stderr.write('phaseB ssm=%d pending at end: %s\n' % (ssm, S.pending()))
    stamp(a, st); nstamp(a, 'e0')
    S.mf += 1000
    if ssm:
        S.drain()
        a('B_SSM_TAIL:')
        a('s_nop 11')
        a.lg = []
        reduce_fill(R, 7, 0, True, True); S.drain()
        stamp(a, st)
    else:
        S.drain(stream=R); S.drain(stream=G)
        restA = C.q; C.q = []
        reduce_fill(R, 7, 0, False, False)
        wr = R.q[:9]; rest = R.q[9:]
        R.q = []
        k = 0
        while wr or restA[k:]:
            if wr: R.q.append(wr.pop(0))
            R.q += restA[k:k+6]; k += 6
        S.drain()
        stamp(a, st); nstamp(a, 'e1')
        R.q = rest[:10]; S.drain()
        checked(G, 'yB', y_loads(yB), yB, 0); prep_s(G, 1, yB); S.drain()
        R.q = rest[10:]; S.drain()
        nstamp(a, 'e2')
        checked(G, 'fB', ffn_loads(fB), fB, 0); presum(G, fB, psB)
        G.ins('s_mov_b32 s%d, %d' % (S_T3, 16*2304))
        chain(G, 1, psB, yB); S.drain()
        a('s_lshl_b32 s3, s%d, 9' % S_SP); a('s_add_u32 s3, s3, s%d' % S_TEAM); a('s_lshl_b32 s4, s%d, 12' % S_W); a('s_add_u32 s3, s3, s4')
        a('s_cmp_eq_u32 s3, %d' % (7*48))
        a('s_cbranch_scc0 NOBUMP')
        a('v_mov_b32 v14, %d' % NONCE_OFF); a('v_mov_b32 v15, s%d' % S_NONCE)
        a('s_mov_b64 exec, 1')
        a('buffer_store_dword v15, v14, %s, 0 offen sc1' % WSR)
        a('NOBUMP:')
    stamp_flush(a, st, 0, S_WS, S_W, 14)
    a('s_endpgm')

def ln_part(a):
    X = 48; F = 72; T = 112
    a('s_lshl_b32 s3, s2, 1'); a('s_add_u32 s3, s3, s%d' % S_W)
    a('s_lshr_b32 s4, s3, 4'); a('s_lshl_b32 s4, s4, 6')
    a('s_and_b32 s5, s3, 1'); a('s_lshl_b32 s5, s5, 5'); a('s_add_u32 s4, s4, s5')
    a('s_bfe_u32 s5, s3, 0x10003'); a('s_lshl_b32 s5, s5, 4'); a('s_add_u32 s4, s4, s5')
    a('s_bfe_u32 s5, s3, 0x20001'); a('s_lshl_b32 s5, s5, 2'); a('s_add_u32 s4, s4, s5')
    a('v_and_b32 v%d, 3, v0' % T); a('v_lshrrev_b32 v%d, 2, v0' % (T+1))
    a('v_add_u32 v%d, s4, v%d' % (T+2, T))
    a('v_mul_u32_u24 v%d, 1152, v%d' % (T+3, T+2)); a('v_lshl_add_u32 v%d, v%d, 4, v%d' % (T+3, T+1, T+3))
    for k in range(4): a('v_mov_b32 v%d, 0' % (X+16+k))
    a('s_waitcnt lgkmcnt(0)'); nstamp(a, 'ln0')
    for n in range(4):
        a('global_load_dwordx4 %s, v%d, s[%d:%d] offset:%d%s' % (vr(X+4*n, 4), T+3, SP0, SP0+1, 256*n, XNT), 'lx')
    a('s_mov_b32 exec_hi, 0')
    a('global_load_dwordx4 %s, v%d, s[%d:%d] offset:1024%s' % (vr(X+16, 4), T+3, SP0, SP0+1, XNT), 'lx')
    a('s_mov_b32 exec_hi, -1')
    ws_srd(a)
    a('s_load_dword s%d, s[%d:%d], %d' % (S_NONCE, S_WS, S_WS+1, NONCE_OFF))
    a('s_lshr_b32 s5, s3, 3'); a('s_mul_i32 s5, s5, 36864'); a('s_and_b32 s6, s3, 7'); a('s_lshl_b32 s6, s6, 7'); a('s_add_u32 s5, s5, s6')
    a('s_add_u32 s5, s5, %d' % XF_OFF)
    a('v_lshrrev_b32 v%d, 3, v0' % (T+4)); a('v_lshlrev_b32 v%d, 10, v%d' % (T+4, T+4))
    a('v_and_b32 v%d, 7, v0' % (T+5)); a('v_lshl_add_u32 v%d, v%d, 4, v%d' % (T+4, T+5, T+4))
    a('v_lshlrev_b32 v%d, 3, v%d' % (T+2, T+2))
    MK = S_T; HM = S_T2
    a('s_mov_b32 s%d, 0xffff0000' % HM)
    DRY = P('DRY', 0)
    if DRY:
        a('s_mov_b32 s%d, 0' % MK); a('s_mov_b64 exec, 0')
    else:
        a('s_mov_b32 s%d, -1' % MK); a('s_waitcnt vmcnt(0)'); nstamp(a, 'ln1')
    a('LN_BODY:')
    def unpack(n): a('v_lshlrev_b32 v%d, 16, v%d' % (F+2*n, X+n)); a('v_and_b32 v%d, s%d, v%d' % (F+2*n+1, HM, X+n))
    A = T+8
    def allred(r):
        return ['v_add_f32_dpp v%d, v%d, v%d row_ror:4 row_mask:0xf bank_mask:0xf' % (r, r, r),
                'v_add_f32_dpp v%d, v%d, v%d row_ror:8 row_mask:0xf bank_mask:0xf' % (r, r, r),
                'v_mov_b32 v%d, v%d' % (T+6, r), 'v_permlane16_swap_b32 v%d, v%d' % (r, T+6), 'v_add_f32 v%d, v%d, v%d' % (r, r, T+6),
                'v_mov_b32 v%d, v%d' % (T+6, r), 'v_permlane32_swap_b32 v%d, v%d' % (r, T+6), 'v_add_f32 v%d, v%d, v%d' % (r, r, T+6)]
    pr = lambda r: vr(r, 2)
    Q = A+4
    for n in range(20):
        unpack(n)
        if n >= 5:
            k = n - 1
            a('v_pk_add_f32 %s, %s, %s' % (pr(Q+2*(k % 4)), pr(F+2*(k-4)) if k < 8 else pr(Q+2*(k % 4)), pr(F+2*k)))
    a('v_pk_add_f32 %s, %s, %s' % (pr(Q+6), pr(Q+6), pr(F+38)))
    a('v_pk_add_f32 %s, %s, %s' % (pr(Q), pr(Q), pr(Q+2))); a('v_pk_add_f32 %s, %s, %s' % (pr(Q+4), pr(Q+4), pr(Q+6)))
    a('v_pk_add_f32 %s, %s, %s' % (pr(Q), pr(Q), pr(Q+4))); a('v_add_f32 v%d, v%d, v%d' % (A+2, Q, Q+1))
    for t in allred(A+2): a(t)
    a('v_mul_f32 v%d, 0x%08x, v%d' % (A+2, f32bits(1.0/576), A+2))
    a('v_cvt_pk_bf16_f32 v%d, v%d, v%d' % (A, A+2, A+2)); a('v_lshlrev_b32 v%d, 16, v%d' % (A, A))
    a('v_sub_f32 v%d, v%d, v%d' % (A+2, A+2, A))
    for n in range(20):
        if n == 16: a('s_mov_b32 exec_hi, 0')
        a('v_pk_add_f32 %s, %s, %s op_sel_hi:[1,0] neg_lo:[0,1] neg_hi:[0,1]' % (pr(F+2*n), pr(F+2*n), pr(A)))
        if n % 4 == 3:
            for k in range(n-3, n+1):
                d = pr(F+2*k); q = pr(Q+2*(k % 4))
                a(('v_pk_mul_f32 %s, %s, %s' % (q, d, d)) if k < 4 else ('v_pk_fma_f32 %s, %s, %s, %s' % (q, d, d, q)))
    a('s_mov_b32 exec_hi, s%d' % MK)
    ch = ['v_pk_add_f32 %s, %s, %s' % (pr(Q), pr(Q), pr(Q+2)), 'v_pk_add_f32 %s, %s, %s' % (pr(Q+4), pr(Q+4), pr(Q+6)),
          'v_pk_add_f32 %s, %s, %s' % (pr(Q), pr(Q), pr(Q+4)), 'v_add_f32 v%d, v%d, v%d' % (A+1, Q, Q+1)] + allred(A+1) + [
          'v_mul_f32 v%d, 0x%08x, v%d' % (A+1, f32bits(1.0/576), A+1),
          'v_fma_f32 v%d, -v%d, v%d, v%d' % (A+1, A+2, A+2, A+1),
          'v_cvt_pk_bf16_f32 v%d, v%d, v%d' % (A+1, A+1, A+1), 'v_lshlrev_b32 v%d, 16, v%d' % (A+1, A+1),
          'v_add_f32 v%d, 0x%08x, v%d' % (A+1, f32bits(1e-5), A+1),
          'v_cvt_pk_bf16_f32 v%d, v%d, v%d' % (A+1, A+1, A+1), 'v_lshlrev_b32 v%d, 16, v%d' % (A+1, A+1),
          'v_sqrt_f32 v%d, v%d' % (A+1, A+1),
          'v_cvt_pk_bf16_f32 v%d, v%d, v%d' % (A+1, A+1, A+1), 'v_lshlrev_b32 v%d, 16, v%d' % (A+1, A+1),
          'v_rcp_f32 v%d, v%d' % (A+1, A+1)]
    for n in range(21):
        if n < 20: a('v_cvt_pk_bf16_f32 v%d, v%d, v%d' % (X+n, F+2*n, F+2*n+1))
        if ch: a(ch.pop(0))
        if n > 0: unpack(n-1)
    for t in ch: a(t)
    for q in range(5):
        if q == 4: a('s_mov_b32 exec_hi, 0')
        ns = range(4*q, 4*q+4)
        for n in ns: a('v_pk_mul_f32 %s, %s, %s op_sel:[0,1] op_sel_hi:[1,1]' % (pr(F+2*n), pr(F+2*n), pr(A)))
        for n in ns: a('v_cvt_pk_bf16_f32 v%d, v%d, v%d' % (X+n, F+2*n, F+2*n+1))
        if DRY: a('s_cbranch_execz LN_S%d' % q)
        a('buffer_store_dwordx4 %s, v%d, %s, s5 offen sc1' % (vr(X+4*q, 4), T+4, WSR))
        if q < 4: a('s_add_u32 s5, s5, 8192')
        if DRY and q < 4: a('LN_S%d:' % q)
    if DRY:
        a('s_branch LN_REAL_DONE')
        a('LN_S4:')
        a('s_mov_b32 s%d, -1' % MK); a('s_mov_b64 exec, -1'); nstamp(a, 'lnd')
        a('s_waitcnt vmcnt(0)'); nstamp(a, 'ln1')
        a('s_branch LN_BODY')
        a('LN_REAL_DONE:')
    a('s_mov_b32 exec_lo, 15')
    a('s_mov_b32 s5, %d' % STAT_OFF)
    assert A % 2 == 0
    a('buffer_store_dwordx2 %s, v%d, %s, s5 offen sc1' % (vr(A, 2), T+2, WSR))
    a('s_mov_b64 exec, -1'); nstamp(a, 'ln2')
    a('s_waitcnt lgkmcnt(0)')
    nonce_mix(a)
    a('s_lshl_b32 s3, s3, 7'); a('s_add_u32 s3, s3, %d' % LNF_OFF)
    a('v_mov_b32 v%d, 0' % T); a('v_mov_b32 v%d, s%d' % (T+1, S_NONCE))
    a('s_mov_b64 exec, 1')
    a('s_waitcnt vmcnt(0)')
    a('buffer_store_dword v%d, v%d, %s, s3 offen sc1' % (T+1, T, WSR)); nstamp(a, 'ln3')
    a('s_mov_b64 exec, -1')

def nonce_mix(a):
    a('s_mul_i32 s%d, s%d, 0x0019660d' % (S_NONCE, S_NONCE))
    a('s_add_u32 s%d, s%d, 0x3c6ef35f' % (S_NONCE, S_NONCE))

def light_part(a):
    if P('LBAR', 1): a('s_barrier')
    a('s_cmp_eq_u32 s%d, 0' % S_W); a('s_cbranch_scc1 LIGHT2')
    a('s_load_dwordx4 s[%d:%d], s[0:1], %d' % (SP0, SP0+3, A_CRE))
    a('s_sub_u32 s3, s2, 240'); a('s_mul_i32 s3, s3, 3'); a('s_add_u32 s3, s3, s%d' % S_W); a('s_sub_u32 s3, s3, 1')
    a('s_lshr_b32 s4, s3, 3'); a('s_mul_i32 s4, s4, %d' % (96*1152))
    a('s_bfe_u32 s5, s3, 0x10001'); a('s_mul_i32 s5, s5, 576'); a('s_add_u32 s4, s4, s5')
    a('s_and_b32 s5, s3, 1'); a('s_mul_i32 s5, s5, 288'); a('s_add_u32 s4, s4, s5')
    a('v_and_b32 v1, 31, v0'); a('v_mul_u32_u24 v1, 1152, v1'); a('v_lshrrev_b32 v2, 5, v0'); a('v_lshl_add_u32 v1, v2, 4, v1'); a('v_add_u32 v1, s4, v1')
    a('v_add_u32 v2, %d, v1' % (32*1152)); a('v_add_u32 v3, %d, v1' % (64*1152))
    a('v_lshlrev_b32 v4, 4, v0')
    a('s_mul_i32 s6, s3, 27648'); a('s_add_u32 s6, s6, %d' % CF_OFF)
    a('s_waitcnt lgkmcnt(0)')
    a('s_bitcmp1_b32 s3, 2')
    a('s_cselect_b32 s%d, s%d, s%d' % (SP0, SP0+2, SP0)); a('s_cselect_b32 s%d, s%d, s%d' % (SP0+1, SP0+3, SP0+1))
    for f in range(27):
        a('global_load_dwordx4 %s, v%d, s[%d:%d] offset:%d' % (vr(16+4*f, 4), 1 + f % 3, SP0, SP0+1, (f//3)*32), 'c%d' % f)
    for f in range(27):
        a.wait_vm('c%d' % f)
        a('buffer_store_dwordx4 %s, v4, %s, s6 offen offset:%d sc1' % (vr(16+4*f, 4), WSR, (f % 4)*1024))
        if f % 4 == 3: a('s_add_u32 s6, s6, 4096')
    a('s_lshl_b32 s3, s3, 7'); a('s_add_u32 s3, s3, %d' % CFL_OFF)
    a('v_mov_b32 v1, 0'); a('v_mov_b32 v2, s%d' % S_NONCE)
    a('s_mov_b64 exec, 1')
    a('s_waitcnt vmcnt(0)')
    a('buffer_store_dword v2, v1, %s, s3 offen sc1' % WSR)
    a('s_mov_b64 exec, -1')
    a('LIGHT2:')
    a.vm = []
    a('s_cmp_ge_u32 s2, 252'); a('s_cbranch_scc1 KEND')
    a('s_sub_u32 s3, s2, 240'); a('s_lshr_b32 s%d, s3, 1' % S_NT); a('s_and_b32 s3, s3, 1')
    a('s_lshl_b32 s4, s3, 1'); a('s_add_u32 s4, s4, 5')
    for i in range(8): a('s_add_u32 s%d, s4, %d' % (S_ORD+i, 8*i))
    a('s_mov_b32 s%d, 0' % S_MT); a('s_mov_b32 s%d, 4' % S_SP); a('s_mov_b32 s%d, 0' % S_SHORT); a('s_mov_b32 s%d, 0x3ffff' % S_MASK)
    a('s_mov_b32 s%d, %d' % (S_PF, HSF_OFF))
    a('v_min_u32 v1, 47, v0'); a('v_lshlrev_b32 v1, 7, v1'); a('s_mov_b32 s%d, %d' % (S_T3, CFL_OFF))
    ldc = 'buffer_load_dword v2, v1, %s, s%d offen sc1' % (WSR, S_T3)
    a(ldc); a('s_waitcnt vmcnt(0)')
    poll_loop(a, lambda a: a(ldc), chk_all_eq(2), 8)
    a('s_lshl_b32 s4, s%d, 2' % S_NT); a('s_add_u32 s4, s4, s%d' % S_W); a('s_mul_i32 s4, s4, 55296'); a('s_add_u32 s4, s4, %d' % CF_OFF)
    a('v_lshlrev_b32 v4, 4, v0')
    for f in range(54):
        a('buffer_load_dwordx4 %s, v4, %s, s4 offen offset:%d sc1' % (ar(4*f, 4), WSR, (f % 4)*1024))
        if f % 4 == 3: a('s_add_u32 s4, s4, 4096')
    flag_lanes(a, 1)
    a('s_mov_b32 s%d, 8192' % S_T3)
    ld, chk = flag_poll()
    ld(a); a('s_waitcnt vmcnt(0)')
    b_common(a, True)
    poll_loop(a, ld, chk, P('LSLEEP', 6))
    a('s_branch B_SSM2')

def early_pair(a, se, dst):
    a('s_mul_i32 s3, s%d, 86' % se); a('s_lshr_b32 s3, s3, 8'); a('s_mul_i32 s4, s3, 3'); a('s_sub_u32 s4, s%d, s4' % se)
    a('s_cmp_lt_u32 s4, 2'); a('s_cselect_b32 s4, s4, 5')
    a('s_mul_i32 s3, s3, 9'); a('s_add_u32 s3, s3, s4'); a('s_lshl_b32 s%d, s3, 7' % dst)
def mixed_pair(a):
    a('s_lshr_b32 s3, s%d, 1' % S_N); a('s_mul_i32 s3, s3, 9'); a('s_and_b32 s%d, s%d, 1' % (S_SW, S_N))
    a('s_lshl_b32 s4, s%d, 1' % S_SW); a('s_sub_u32 s3, s3, s4'); a('s_add_u32 s3, s3, 6')
    a('s_add_u32 s5, s%d, 54' % S_N); a('s_cmp_lt_u32 s%d, 16' % S_N); a('s_cselect_b32 s3, s3, s5')
    a('s_lshl_b32 s%d, s3, 7' % (S_P+1)); a('s_lshl_b32 s%d, s%d, 11' % (S_SW, S_SW))
def late_pair(a):
    a('s_lshr_b32 s3, s%d, 2' % S_N); a('s_and_b32 s4, s%d, 3' % S_N); a('s_mul_i32 s3, s3, 9'); a('s_add_u32 s3, s3, s4')
    a('s_cmp_lt_u32 s4, 2'); a('s_cselect_b32 s4, 2, 5'); a('s_add_u32 s3, s3, s4'); a('s_lshl_b32 s%d, s3, 7' % (S_P+2))

def gen():
    a = Asm()
    name = PFX + '_kernel'
    a(kernel_header(name))
    a('KSTART:')
    a('s_cmp_ge_u32 s2, 256'); a('s_cbranch_scc1 KEND')
    st = Stamps(); stamp(a, st); nstamp(a, 'start')
    for nm in ('ln0', 'lnd', 'ln1', 'ln2', 'ln3', 'w0a', 'w0b'): nstamp(a, nm)
    a('s_load_dwordx2 s[%d:%d], s[0:1], %d' % (SP0, SP0+1, A_X))
    a('s_load_dwordx2 s[%d:%d], s[0:1], %d' % (SP0+2, SP0+3, D_WS))
    a('s_load_dwordx2 s[%d:%d], s[0:1], %d' % (SP0+4, SP0+5, B_W1))
    a('s_load_dwordx4 s[56:59], s[0:1], %d' % A_BRE)
    a('s_load_dwordx4 s[60:63], s[0:1], %d' % A_LRE)
    a('s_load_dwordx2 s[54:55], s[0:1], %d' % A_LDT)
    a('v_lshrrev_b32 v13, 6, v0')
    a('v_readfirstlane_b32 s%d, v13' % S_W)
    a('v_and_b32 v0, 63, v0')
    a('s_cmp_ge_u32 s%d, 2' % S_W); a('s_cbranch_scc1 SKIP_LN')
    ln_part(a)
    a.vm = []
    a('s_branch LN_DONE')
    a('SKIP_LN:')
    if P('CODEPF', 1):
        a('s_getpc_b64 s[4:5]'); a('PFPC:')
        a('s_sub_u32 s4, s4, PFPC-KSTART'); a('s_subb_u32 s5, s5, 0')
        a('s_lshr_b32 s6, s2, 3'); a('s_and_b32 s6, s6, 7'); a('s_add_u32 s6, s6, 1'); a('s_lshl_b32 s6, s6, 13')
        a('s_cmp_eq_u32 s%d, 3' % S_W); a('s_cselect_b32 s6, 0, s6')
        a('v_lshl_add_u32 v%d, v0, 7, s6' % V_PL)
        a('v_min_u32 v%d, KLAST-KSTART, v%d' % (V_PL, V_PL))
        a('global_load_dword v%d, v%d, s[4:5]' % (V_PL+3, V_PL))
        a.vm = []
    a('LN_DONE:')
    a('s_waitcnt lgkmcnt(0)')
    ws_srd(a)
    a('s_cmp_lt_u32 s%d, 2' % S_W); a('s_cbranch_scc1 HAVE_NONCE')
    a('s_load_dword s%d, s[%d:%d], %d' % (S_NONCE, S_WS, S_WS+1, NONCE_OFF))
    a('s_cmp_lt_u32 s2, 240'); a('s_cbranch_scc1 HAVE_NONCE')
    a('s_waitcnt lgkmcnt(0)'); nonce_mix(a)
    a('HAVE_NONCE:')
    a('s_cmp_lt_u32 s2, 240'); a('s_cbranch_scc1 HEAVY')
    light_part(a)
    a.vm = []
    a('HEAVY:')
    srd(a, S_W1, SP0+4, 576*9216)
    a('s_and_b32 s3, s2, 7'); a('s_lshr_b32 s4, s2, 3')
    a('s_lshr_b32 s5, s3, 1'); a('s_mul_i32 s5, s5, 30'); a('s_add_u32 s5, s5, s4')
    a('s_lshr_b32 s6, s5, 2')
    a('s_mul_i32 s7, s6, 52'); a('s_lshr_b32 s7, s7, 8')
    a('s_mul_i32 s4, s7, 5'); a('s_sub_u32 s4, s6, s4')
    a('s_mul_i32 s6, s7, 3'); a('s_add_u32 s6, s6, s4')
    a('s_lshl_b32 s7, s7, 1'); a('s_add_u32 s7, s7, s4'); a('s_add_u32 s7, s7, 15')
    a('s_cmp_lt_u32 s4, 3'); a('s_cselect_b32 s%d, s6, s7' % S_N)
    a('s_and_b32 s5, s5, 3'); a('s_and_b32 s3, s3, 1'); a('s_lshl_b32 s3, s3, 2'); a('s_add_u32 s%d, s3, s5' % S_G)
    a('s_lshl_b32 s%d, s%d, 10' % (S_M0W, S_W))
    a('v_lshrrev_b32 v13, 3, v0'); a('v_and_b32 v14, 7, v0'); a('v_bfe_u32 v15, v0, 4, 1'); a('v_lshlrev_b32 v15, 2, v15'); a('v_xor_b32 v14, v14, v15')
    a('s_lshl_b32 s3, s%d, 3' % S_W); a('v_add_u32 v13, s3, v13')
    a('v_mul_u32_u24 v%d, 9216, v13' % V_WD); a('v_lshl_add_u32 v%d, v14, 4, v%d' % (V_WD, V_WD))
    def common2():
        a('s_mov_b32 s%d, 0x%08x' % (S_NL2E, f32bits(-LOG2E)))
        a('s_mul_i32 s%d, s%d, %d' % (S_XB, S_G, 8*36864)); a('s_add_u32 s%d, s%d, %d' % (S_XB, S_XB, XF_OFF))
        a('s_mul_i32 s%d, s%d, %d' % (S_HB, S_G, 8*HF_RB)); a('s_add_u32 s%d, s%d, %d' % (S_HB, S_HB, HF_OFF))
        a('s_mul_i32 s3, s%d, 73728' % S_W)
        a('v_bfe_u32 v14, v0, 2, 3'); a('v_lshlrev_b32 v14, 7, v14'); a('v_lshrrev_b32 v15, 5, v0'); a('v_lshl_add_u32 v14, v15, 6, v14')
        a('v_and_b32 v15, 3, v0'); a('v_lshl_add_u32 v14, v15, 4, v14'); a('v_add_u32 v%d, s3, v14' % V_XO)
        a('v_add_u32 v%d, 36864, v%d' % (V_XO+1, V_XO))
        a('s_mul_i32 s3, s%d, %d' % (S_W, 2*HF_RB))
        a('v_lshl_add_u32 v%d, v0, 4, s3' % V_HO); a('v_add_u32 v%d, %d, v%d' % (V_HO+1, HF_RB, V_HO))
        a('v_lshrrev_b32 v14, 5, v0'); a('v_lshlrev_b32 v14, 10, v14')
        a('v_bfe_u32 v15, v0, 2, 2'); a('v_lshl_add_u32 v14, v15, 7, v14')
        a('v_bfe_u32 v15, v0, 4, 1'); a('v_lshl_add_u32 v14, v15, 5, v14')
        a('v_and_b32 v15, 3, v0'); a('v_lshl_add_u32 v14, v15, 3, v14')
        a('v_bfe_u32 v15, v0, 3, 1'); a('v_lshl_add_u32 v%d, v15, 6, v14' % V_TR)
        a('v_xor_b32 v%d, 64, v%d' % (V_TR+1, V_TR))
    def w1_and_poll(tagp):
        nstamp(a, 'w1i')
        common2()
        a('v_and_b32 v%d, 15, v0' % V_PA); a('v_lshlrev_b32 v%d, 7, v%d' % (V_PA, V_PA))
        a('s_lshl_b32 s3, s%d, 13' % S_G); a('s_lshl_b32 s4, s%d, 11' % S_W); a('s_add_u32 s3, s3, s4'); a('s_add_u32 s%d, s3, %d' % (S_T3, LNF_OFF))
        ld = 'buffer_load_dword v%d, v%d, %s, s%d offen sc1' % (V_PL, V_PA, WSR, S_T3)
        a(ld); a('s_waitcnt vmcnt(0)')
        stamp(a, st); nstamp(a, 'pl0')
        poll_loop(a, lambda a: a(ld), chk_all_eq(V_PL))
        stamp(a, st); nstamp(a, 'pl1')
    def w0(mixed):
        L = 'W0SKIP%d' % mixed
        a('s_cmp_lt_u32 s%d, 2' % S_W); a('s_cbranch_scc1 %s' % L); nstamp(a, 'w0a')
        if P('WTOUCH', 0):
            a('s_and_b32 s3, s%d, 3' % S_G); a('s_mul_i32 s3, s3, %d' % (144*9216))
            a('s_cmp_eq_u32 s%d, 3' % S_W); a('s_cselect_b32 s4, s%d, s%d' % (S_P+1, S_P+(1 if mixed else 0))); a('s_add_u32 s3, s3, s4')
            a('v_min_u32 v%d, 47, v0' % V_PA); a('v_mul_u32_u24 v%d, 9216, v%d' % (V_PA, V_PA))
            for k in range(3):
                a('buffer_load_dword v%d, v%d, s[%d:%d], s3 offen' % (V_PL+3, V_PA, S_W1, S_W1+3))
                a('s_add_u32 s3, s3, %d' % (48*9216))
        if mixed:
            a('v_subrev_u32 v%d, %d, v%d' % (V_PA, 16*1152, V_BD))
            for n in range(18): dma_b(a, n//2, n % 2, 'w0'); dma_b(a, n//2, n % 2, 'w0', V_PA, -2048)
        else:
            a('v_subrev_u32 v%d, %d, v%d' % (V_PA, 16*9216, V_WD))
            for n in range(18): dma_w1(a, 0, 0, n, 'w0'); dma_w1(a, 0, 0, n, 'w0', V_PA, -2048)
        a('v_subrev_u32 v%d, %d, v%d' % (V_PA, 16*9216, V_WD))
        for n in range(18): dma_w1(a, 1, 1, n, 'w1'); dma_w1(a, 1, 1, n, 'w1', V_PA, -2048)
        nstamp(a, 'w0b'); a('s_waitcnt lgkmcnt(0)'); nonce_mix(a)
        a(L + ':')
        a.vm = []
    a('s_cmp_lt_u32 s%d, 18' % S_N); a('s_cbranch_scc1 A_MIXED')
    a('s_lshl_b32 s7, s%d, 1' % S_N); a('s_sub_u32 s7, s7, 36')
    early_pair(a, 7, S_P); a('s_add_u32 s7, s7, 1'); early_pair(a, 7, S_P+1); late_pair(a)
    w0(0); w1_and_poll(0)
    phaseA(a, False, st)
    a('s_branch A_DONE')
    nst = st.n; st.n = 1; a.vm = []; a.lg = []; a.seen = set()
    a('A_MIXED:')
    srd(a, S_BRE, 56, 576*1152); srd(a, S_BIM, 58, 576*1152)
    mixed_pair(a); late_pair(a)
    a('v_bfe_u32 v15, v13, 1, 3'); a('v_and_b32 v14, 7, v0'); a('v_xor_b32 v14, v14, v15')
    a('s_lshl_b32 s7, s%d, 5' % S_N); a('v_add_u32 v13, s7, v13')
    a('v_mul_u32_u24 v%d, 1152, v13' % V_BD); a('v_lshl_add_u32 v%d, v14, 4, v%d' % (V_BD, V_BD))
    w0(1)
    a('v_and_b32 v13, 31, v0'); a('v_lshrrev_b32 v14, 5, v0'); a('v_bfe_u32 v15, v0, 1, 3'); a('v_xor_b32 v14, v14, v15')
    a('v_lshlrev_b32 v14, 4, v14'); a('v_lshl_add_u32 v%d, v13, 7, v14' % V_BR)
    for e in range(1, 4): a('v_xor_b32 v%d, %d, v%d' % (V_BR+e, 32*e, V_BR))
    a('v_lshrrev_b32 v14, 5, v0'); a('s_lshl_b32 s4, s%d, 1' % S_W); a('v_add_u32 v%d, s4, v14' % R_SIDX)
    a('v_add_u32 v%d, s%d, v14' % (R_GH, S_G))
    a('v_mul_u32_u24 v%d, 80, v13' % R_TW); a('v_add_u32 v%d, 0x%x, v%d' % (R_TW, E_OFF - E_OFF % 65536, R_TW))
    a('v_lshl_add_u32 v%d, v%d, 3, v%d' % (R_EA, R_SIDX, R_TW)); a('v_add_u32 v%d, 0x%x, v%d' % (R_EA, E_OFF % 65536, R_EA))
    a('v_add_u32 v15, s7, v13')
    a('v_lshlrev_b32 v%d, 4, v15' % R_AW)
    a('v_mul_u32_u24 v14, 9216, v14'); a('v_add_u32 v%d, v14, v%d' % (R_AO, R_AW))
    a('v_min_u32 v14, 1, v%d' % R_SIDX); a('v_lshl_add_u32 v%d, v14, 30, v%d' % (R_AW, R_AW))
    a('v_lshlrev_b32 v15, 1, v15')
    a('global_load_ushort v%d, v15, s[60:61]' % R_T3); a('global_load_ushort v%d, v15, s[62:63]' % R_T4); a('global_load_ushort v%d, v15, s[54:55]' % R_ER)
    a('s_mul_i32 s%d, s%d, 9216' % (S_BB, S_G)); a('s_add_u32 s%d, s%d, %d' % (S_BB, S_BB, AGG_OFF))
    a('s_lshl_b32 s4, s%d, 11' % S_W); a('s_add_u32 s4, s4, %d' % TB_OFF)
    a('v_lshrrev_b32 v14, 5, v0'); a('v_lshlrev_b32 v14, 9, v14')
    a('v_bfe_u32 v15, v0, 2, 2'); a('v_lshl_add_u32 v14, v15, 6, v14')
    a('v_and_b32 v15, 1, v0'); a('v_lshl_add_u32 v14, v15, 5, v14')
    a('v_bfe_u32 v15, v0, 4, 1'); a('v_lshl_add_u32 v14, v15, 4, v14')
    a('v_bfe_u32 v15, v0, 1, 1'); a('v_lshl_add_u32 v14, v15, 3, v14')
    a('v_bfe_u32 v15, v0, 3, 1'); a('v_lshlrev_b32 v15, 4, v15'); a('v_xor_b32 v14, v14, v15')
    a('v_add_u32 v%d, s4, v14' % R_TRD)
    a('v_lshrrev_b32 v14, 5, v0'); a('v_lshlrev_b32 v14, 1, v14'); a('v_bfe_u32 v15, v0, 1, 2'); a('v_xor_b32 v14, v14, v15')
    a('v_lshlrev_b32 v14, 4, v14'); a('v_lshl_add_u32 v14, v13, 6, v14')
    a('v_add_u32 v%d, s4, v14' % R_TWA)
    w1_and_poll(1)
    a('s_lshr_b32 s4, s%d, 5' % S_SW); a('v_xor_b32 v%d, s4, v%d' % (V_TR, V_TR)); a('v_xor_b32 v%d, s4, v%d' % (V_TR+1, V_TR+1))
    a('s_lshl_b32 s4, s%d, 11' % S_N); a('s_add_u32 s4, s4, %d' % (288*1024)); a('s_add_u32 s%d, s4, s%d' % (S_HS, S_HB))
    phaseA(a, True, st)
    assert st.n == nst or not DIAG or STNAMES
    a('A_DONE:')
    a('s_nop 15')
    a.vm = []; a.lg = []; a.seen = set()
    a('s_cmp_eq_u32 s%d, 4' % S_SP); a('s_cbranch_scc1 B_SSM')
    phaseB(a, False, st)
    st.n = nst; a.vm = []; a.lg = []; a.seen = set()
    a('B_SSM:')
    phaseB(a, True, st)
    a.lines.extend(OOL)
    a('KEND:')
    a('KLAST:')
    a('s_endpgm')
    return name, a.lines, kernel_desc(name, 512, 256, 102)

if __name__ == '__main__':
    ref = open('cdna_kernels/%s.s.ref' % PFX).read().split('\n')
    hdr = [l for l in ref if l.startswith(';') and '@launch' not in l and 'Override launch' not in l and 'grid=ceil' not in l][:16]
    name, lines, desc = gen()
    padded, n = pad_hazards(lines)
    sys.stderr.write('%d lines, %d nops inserted\n' % (len(padded), n))
    out = hdr + ['; @launch grid=(256,1,1) block=(256,1,1) lds=%d' % LDS_BYTES, '.amdgcn_target "amdgcn-amd-amdhsa--gfx950"'] + padded + [desc]
    sys.stdout.write('\n'.join(out) + '\n')
```

```python
import sys, os, struct
from asmlib import *
from sched import *
def P(name, dflt): return int(os.environ.get(name, dflt))
def f32bits(x): return struct.unpack('<I', struct.pack('<f', x))[0]
PFX = "recurrent_scan__ssm_conv_s5__dense_activation_silu__prompt"
LOG2E = 1.4426950408889634

WSB      = P('WSB', 0)*1024*1024
NONCE_OFF= 0
STAT_OFF = 16384
AGG_OFF  = 65536
FS       = 128
LNF_OFF  = 256*1024
HEF_OFF  = 320*1024
HFL_OFF  = 384*1024
HSF_OFF  = 448*1024
CFL_OFF  = 512*1024
OOB      = 0x7ffffff0
XF_OFF   = 1024*1024
CF_OFF   = 4*1024*1024
HF_OFF   = 8*1024*1024
HF_RB    = 360*1024
PF_OFF   = 32*1024*1024
if P('COMPACT', 0):
    CF_OFF = XF_OFF + 64*36*1024; HF_OFF = CF_OFF + 24*55296; PF_OFF = HF_OFF + 64*HF_RB
PY_OFF   = (PF_OFF + 4*64*6*8192) if P('COMPACT', 0) else 48*1024*1024
WS_USED  = 64*1024*1024
A_X, A_LRE, A_LIM, A_BRE, A_BIM, A_CRE, A_CIM, A_LDT, A_DSK, B_X, B_W1, B_W2, D_OUT, D_DBG, D_WS = [8*i for i in range(15)]

SLAB = 73728
E_OFF = 2*SLAB
TB_OFF = E_OFF + 3072
LDS_BYTES = TB_OFF + 8192

def ws_srd(a):
    a('s_add_u32 s%d, s%d, 0x%x' % (S_WS, SP0+2, WSB))
    a('s_addc_u32 s%d, s%d, 0' % (S_WS+1, SP0+3))
    a('s_and_b32 s%d, s%d, 0xffff' % (S_WS+1, S_WS+1))
    a('s_mov_b32 s%d, 0x%x' % (S_WS+2, WS_USED))
    a('s_mov_b32 s%d, 0x00020000' % (S_WS+3))
def srd(a, s, lo, nbytes):
    a('s_mov_b32 s%d, s%d' % (s, lo))
    a('s_and_b32 s%d, s%d, 0xffff' % (s+1, lo+1))
    a('s_mov_b32 s%d, 0x%x' % (s+2, nbytes))
    a('s_mov_b32 s%d, 0x00020000' % (s+3))

S_WS = 8; S_W1 = 12; S_BRE = 16; S_BIM = 20; S_WT = 24
S_X = 16; S_OUT = 20
S_G = 28; S_N = 29; S_W = 30; S_XB = 31; S_T = 32; S_M0W = 33
S_P = 34
S_HB = 37; S_T2 = 38; S_BB = 39; S_NL2E = 40; S_TX = 41; S_TF = 42; S_CNT = 43; S_HS = 44; S_NONCE = 45
S_MT = 46; S_NT = 47; S_SP = 48; S_WB = 49; S_WSTR = 50; S_MW = 51; S_T3 = 52; S_T4 = 53; S_MASK = 54; S_TEAM = 55
S_SHORT = S_XB
S_SW = 34
S_PF = 12
S_ORD = 56
S_HBB = S_HB; S_HN = S_TX; S_PB = S_BB
SP0 = 96

V_XO = 1; V_WD = 3; V_BD = 4; V_TR = 5; V_BR = 7; V_HO = 11; V_T0 = 13
V_XV = 16; V_ACC = 48; V_WF = 176; V_ET = 200; V_SC = 208
V_W2D = 253
def xfrag(blk, ks):
    idx = (ks*2 + blk)*4
    return ar(idx, 4) if idx < 256 else vr(V_XV + idx - 256, 4)
def acc(s, blk): return V_ACC + 32*s + 16*blk
(R_LR, R_LI, R_CR, R_CI, R_P32R, R_P32I, R_P256R, R_P256I, R_T1, R_T2, R_T3, R_T4, R_ER, R_EI, R_TG0, R_TG1, R_EA, R_SIDX, R_AO, R_TW) = range(V_SC, V_SC+20)
R_BUF = V_SC + 20
R_TWA, R_TRD, R_P512R, R_P512I, R_GH, R_AW = range(244, 250)
R_NLI = 4
R_NCI = R_TG1
R_U0 = R_T4
R_MR, R_MI = 1, 2
R_LLR, R_LLI = 7, 8
V_PL = 250
V_PA = 252
V_DUM = 13
V_RDB = 251
assert R_BUF % 4 == 0 and R_ER % 4 == 0

WSR = 's[%d:%d]' % (S_WS, S_WS+3)
label_n = [0]
OOL = []
def poll_loop(a, loads, check, sleep=1, rec=None):
    label_n[0] += 1; L = 'POLL%d' % label_n[0]
    if DIAG: a('s_mov_b32 s%d, 0' % S_CNT)
    check(a)
    a('s_cbranch_scc0 %s' % L)
    a(L + '_OK:')
    if DIAG and STNAMES and rec in STNAMES: a('s_mov_b32 s%d, s%d' % (S_STAMP + 2*STNAMES.index(rec), S_CNT))
    b = Asm()
    b(L + ':')
    b('s_mov_b32 s%d, 0' % S_CNT)
    b(L + '_R:')
    b('s_add_u32 s%d, s%d, 1' % (S_CNT, S_CNT))
    b('s_cmp_gt_u32 s%d, %d' % (S_CNT, P('SPIN', 20000)))
    b('s_cbranch_scc1 %s_OK' % L)
    b('s_sleep %d' % sleep)
    loads(b)
    b('s_waitcnt vmcnt(0)')
    check(b)
    b('s_cbranch_scc0 %s_R' % L)
    b('s_branch %s_OK' % L)
    OOL.extend(b.lines)

def chk_all_eq(reg):
    def f(a):
        a('v_cmp_ne_u32 vcc, s%d, v%d' % (S_NONCE, reg))
        a('s_nop 1')
        a('s_cmp_eq_u64 vcc, 0')
    return f

def epi_ffn(E, s, pi, c, ready, blks=(0, 1), mixed=False):
    grp = ('acc', s)
    els = [(blk, j) for blk in blks for j in range(16)]
    n = len(els)
    r = lambda e: acc(s, els[e][0]) + els[e][1]
    t = lambda e: V_ET + (e % 8)
    I = lambda text, tag=None: E.ins(text, tag, ready, 0, grp)
    I('s_lshl_b32 s%d, s%d, 5' % (S_T2, S_P+pi))
    I('s_add_u32 s%d, s%d, s%d' % (S_T2, S_T2, S_HB))
    if mixed: I('%s s%d, s%d, s%d' % ('s_sub_u32' if c else 's_add_u32', S_T2, S_T2, S_SW))
    for step in range(n + 6):
        e = step
        if e < n: I('v_mul_f32 v%d, s%d, v%d' % (t(e), S_NL2E, r(e)))
        e = step - 1
        if 0 <= e < n: I('v_exp_f32 v%d, v%d' % (t(e), t(e)))
        e = step - 2
        if 0 <= e < n: I('v_add_f32 v%d, 1.0, v%d' % (t(e), t(e)))
        e = step - 3
        if 0 <= e < n: I('v_rcp_f32 v%d, v%d' % (t(e), t(e)))
        e = step - 4
        if 0 <= e < n: I('v_mul_f32 v%d, v%d, v%d' % (t(e), t(e), r(e)))
        e = step - 5
        if 0 <= e < n and e % 2 == 1:
            base = r(e - e % 8)
            I('v_cvt_pk_bf16_f32 v%d, v%d, v%d' % (base + (e % 8)//2, t(e-1), t(e)))
            if e % 8 == 7:
                blk = els[e][0]; fr = (e % 16)//8
                I('buffer_store_dwordx4 %s, v%d, %s, s%d offen offset:%d sc1' % (vr(base, 4), V_HO+blk, WSR, S_T2, c*2048 + fr*1024), 'st' if (pi == 2 or (mixed and c == 1)) else 'se')

def cmul_add(F, dr, di, ar_, ai, br, bi, cr, ci, ready=0):
    F.ins('v_fma_f32 v%d, -v%d, v%d, v%d' % (R_T1, ai, bi, cr), None, ready)
    F.ins('v_fma_f32 v%d, v%d, v%d, v%d' % (R_T2, ai, br, ci), None, ready)
    F.ins('v_fma_f32 v%d, v%d, v%d, v%d' % (dr, ar_, br, R_T1), None, ready)
    F.ins('v_fma_f32 v%d, v%d, v%d, v%d' % (di, ar_, bi, R_T2), None, ready)

def csq(F, dr, di, sr_, si):
    F.ins('v_mul_f32 v%d, v%d, v%d' % (R_T1, si, si))
    F.ins('v_mul_f32 v%d, v%d, v%d' % (R_T2, sr_, si))
    F.ins('v_fma_f32 v%d, v%d, v%d, -v%d' % (dr, sr_, sr_, R_T1))
    F.ins('v_add_f32 v%d, v%d, v%d' % (di, R_T2, R_T2))

def scan_tables(F):
    F.ins('v_lshlrev_b32 v%d, 16, v%d' % (R_T3, R_T3))
    F.ins('v_lshlrev_b32 v%d, 16, v%d' % (R_T4, R_T4))
    F.ins('v_lshlrev_b32 v%d, 16, v%d' % (R_ER, R_ER))
    F.ins('v_mul_f32 v%d, 0x%08x, v%d' % (R_ER, f32bits(LOG2E), R_ER))
    F.ins('v_exp_f32 v%d, v%d' % (R_ER, R_ER))
    F.ins('v_cvt_pk_bf16_f32 v%d, v%d, v%d' % (R_ER, R_ER, R_ER))
    F.ins('v_lshlrev_b32 v%d, 16, v%d' % (R_ER, R_ER))
    F.ins('v_mul_f32 v%d, v%d, v%d' % (R_T1, R_ER, R_T3))
    F.ins('v_mul_f32 v%d, v%d, v%d' % (R_T2, R_ER, R_T4))
    F.ins('v_mul_f32 v%d, 0x%08x, v%d' % (R_T1, f32bits(LOG2E), R_T1))
    F.ins('v_exp_f32 v%d, v%d' % (R_T1, R_T1))
    F.ins('v_mul_f32 v%d, 0.15915494, v%d' % (R_T2, R_T2))
    F.ins('v_rndne_f32 v%d, v%d' % (R_EI, R_T2))
    F.ins('v_sub_f32 v%d, v%d, v%d' % (R_T2, R_T2, R_EI))
    F.ins('v_cos_f32 v%d, v%d' % (R_LR, R_T2))
    F.ins('v_sin_f32 v%d, v%d' % (R_LI, R_T2))
    F.ins('v_mul_f32 v%d, v%d, v%d' % (R_LR, R_LR, R_T1))
    F.ins('v_mul_f32 v%d, v%d, v%d' % (R_LI, R_LI, R_T1))
    F.ins('v_add_f32 v%d, -1.0, v%d' % (R_ER, R_LR))
    F.ins('v_mul_f32 v%d, v%d, v%d' % (R_T1, R_T3, R_T3))
    F.ins('v_fmac_f32 v%d, v%d, v%d' % (R_T1, R_T4, R_T4))
    F.ins('v_rcp_f32 v%d, v%d' % (R_T1, R_T1))
    F.ins('v_mul_f32 v%d, v%d, v%d' % (R_CR, R_ER, R_T3))
    F.ins('v_fmac_f32 v%d, v%d, v%d' % (R_CR, R_LI, R_T4))
    F.ins('v_mul_f32 v%d, v%d, v%d' % (R_CI, R_LI, R_T3))
    F.ins('v_fma_f32 v%d, -v%d, v%d, v%d' % (R_CI, R_ER, R_T4, R_CI))
    F.ins('v_mul_f32 v%d, v%d, v%d' % (R_CR, R_CR, R_T1))
    F.ins('v_mul_f32 v%d, v%d, v%d' % (R_CI, R_CI, R_T1))
    csq(F, R_P32R, R_P32I, R_LR, R_LI)
    for _ in range(4): csq(F, R_P32R, R_P32I, R_P32R, R_P32I)
    MR, MI, Z = R_BUF, R_BUF+1, R_BUF+2
    F.ins('v_mov_b32 v%d, 0' % Z)
    F.ins('v_and_b32 v%d, 1, v%d' % (R_T3, R_SIDX)); F.ins('v_cmp_ne_u32 s[60:61], 0, v%d' % R_T3)
    F.ins('v_cndmask_b32 v%d, 1.0, v%d, s[60:61]' % (MR, R_P32R)); F.ins('v_cndmask_b32 v%d, 0, v%d, s[60:61]' % (MI, R_P32I))
    for b in (1, 2):
        if b == 1: csq(F, R_P256R, R_P256I, R_P32R, R_P32I)
        else: csq(F, R_P256R, R_P256I, R_P256R, R_P256I)
        F.ins('v_and_b32 v%d, %d, v%d' % (R_T3, 1 << b, R_SIDX)); F.ins('v_cmp_ne_u32 s[60:61], 0, v%d' % R_T3)
        cmul_add(F, R_BUF+4, R_BUF+5, R_P256R, R_P256I, MR, MI, Z, Z)
        F.ins('v_cndmask_b32 v%d, v%d, v%d, s[60:61]' % (MR, MR, R_BUF+4)); F.ins('v_cndmask_b32 v%d, v%d, v%d, s[60:61]' % (MI, MI, R_BUF+5))
    csq(F, R_P256R, R_P256I, R_P256R, R_P256I)
    csq(F, R_P512R, R_P512I, R_P256R, R_P256I)
    F.ins('v_mov_b32 v%d, s%d' % (R_TG0, S_NONCE))
    F.ins('v_sub_f32 v%d, 0, v%d' % (R_NLI, R_LI))
    F.ins('v_sub_f32 v%d, 0, v%d' % (R_NCI, R_CI))

def ureg(part, tt): return acc(part, tt >> 4) + (tt & 15)
def uim(tt): return R_U0 if tt == 0 else acc(1, 0) + tt - 1

def scan_early(F, ready, half, cb=None):
    for tt in range(16*half, 16*half + 16):
        ur, ui, un = ureg(0, tt), ureg(1, tt), uim(tt)
        F.ins('v_mul_f32 v%d, v%d, v%d' % (un, R_CI, ur), None, ready)
        F.ins('v_mul_f32 v%d, v%d, v%d' % (ur, R_CR, ur))
        F.ins('v_fmac_f32 v%d, v%d, v%d' % (un, R_CR, ui))
        F.ins('v_fmac_f32 v%d, v%d, v%d' % (ur, R_NCI, ui))
        if tt == 0: continue
        pairs = [(R_ER, R_EI), (R_T1, R_T2)]
        nr, ni = pairs[(31 - tt) % 2]
        er, ei = (ureg(0, 0), uim(0)) if tt == 1 else pairs[(32 - tt) % 2]
        F.ins('v_fma_f32 v%d, v%d, v%d, v%d' % (ni, R_LI, er, un))
        F.ins('v_fma_f32 v%d, v%d, v%d, v%d' % (nr, R_NLI, ei, ur))
        F.ins('v_fmac_f32 v%d, v%d, v%d' % (ni, R_LR, ei))
        F.ins('v_fmac_f32 v%d, v%d, v%d' % (nr, R_LR, er))
    if half == 0: return
    F.ins('v_mov_b32 v%d, v%d' % (R_MR, R_BUF)); F.ins('v_mov_b32 v%d, v%d' % (R_MI, R_BUF+1))
    F.ins('ds_write_b64 v%d, %s' % (R_EA, vr(R_ER, 2)), 'ew')
    F.fn(lambda a: (a.wait_lg('ew'), a('s_barrier')), 2, 0, 2)
    for n in range(4):
        F.ins('ds_read_b128 %s, v%d offset:%d' % (vr(R_BUF+4*n, 4), R_TW, E_OFF % 65536 + 16*n), 'er')
    F.ins('v_mov_b32 v%d, s%d' % (R_TG1, S_NONCE))
    F.ins('s_add_u32 s%d, s%d, %d' % (S_TF, S_BB, 8*9216))
    F.fn(lambda a: a.wait_lg('er'), 1, 0, 4)
    cmul_add(F, R_ER, R_EI, R_P32R, R_P32I, R_BUF, R_BUF+1, R_BUF+2, R_BUF+3)
    for s in range(2, 8):
        cmul_add(F, R_ER, R_EI, R_P32R, R_P32I, R_ER, R_EI, R_BUF+2*s, R_BUF+2*s+1)
    F.ins('buffer_store_dwordx4 %s, v%d, %s, s%d offen sc1' % (vr(R_ER, 4), R_AW, WSR, S_TF), 'st')
    F.fn(lambda a: cb(), 0)
    F.ins('v_xor_b32 v%d, 16, v%d' % (R_EA, R_TWA)); F.ins('v_xor_b32 v%d, 32, v%d' % (R_TW, R_TRD))
    F.ins('v_mov_b32 v%d, 0' % R_LLR); F.ins('v_mov_b32 v%d, 0' % R_LLI)
    for s in range(7):
        F.ins('v_cmp_lt_u32 s[60:61], %d, v%d' % (s, R_SIDX))
        cmul_add(F, R_T3, R_CI, R_P32R, R_P32I, R_LLR, R_LLI, R_BUF+2*s, R_BUF+2*s+1)
        F.ins('v_cndmask_b32 v%d, v%d, v%d, s[60:61]' % (R_LLR, R_LLR, R_T3))
        F.ins('v_cndmask_b32 v%d, v%d, v%d, s[60:61]' % (R_LLI, R_LLI, R_CI))

def agg_insts():
    out = []
    for m in range(4):
        out.append('s_add_u32 s%d, s%d, %d' % (S_TF, S_BB, 2*m*9216))
        out.append('buffer_load_dwordx4 %s, v%d, %s, s%d offen sc1' % (vr(R_BUF+4*m, 4), R_AO, WSR, S_TF))
    return out
def agg_check(a):
    for m in range(4):
        a('v_cmp_le_u32 vcc, %d, v%d' % (8-2*m, R_GH))
        a('v_cndmask_b32 v%d, v%d, v%d, vcc' % (R_BUF+4*m+3, R_TG0, R_BUF+4*m+2))
    a('v_xor_b32 v%d, v%d, v%d' % (R_T1, R_BUF+3, R_BUF+7))
    a('v_xor_b32 v%d, v%d, v%d' % (R_T2, R_BUF+11, R_BUF+15))
    a('v_xor_b32 v%d, v%d, v%d' % (R_T3, R_BUF+3, R_TG0))
    a('v_xor_b32 v%d, v%d, v%d' % (R_CI, R_BUF+11, R_TG0))
    a('v_or3_b32 v%d, v%d, v%d, v%d' % (R_T1, R_T1, R_T2, R_T3))
    a('v_or_b32 v%d, v%d, v%d' % (R_T1, R_T1, R_CI))
    a('v_cmp_ne_u32 vcc, 0, v%d' % R_T1)
    a('s_nop 1')
    a('s_cmp_eq_u64 vcc, 0')

def scan_late(F, ready_poll):
    for t in agg_insts(): F.ins(t, 'poll', ready_poll)
    F.fn(lambda a: (a.wait_vm('poll'), poll_loop(a, lambda a: [a(t) for t in agg_insts()], agg_check, 1, 'r_agg')), 5, 0, P('POLLD', 34))
    for m in range(4):
        F.ins('v_cmp_le_u32 s[60:61], %d, v%d' % (8-2*m, R_GH))
        F.ins('v_cndmask_b32 v%d, 0, v%d, s[60:61]' % (R_BUF+4*m, R_BUF+4*m))
        F.ins('v_cndmask_b32 v%d, 0, v%d, s[60:61]' % (R_BUF+4*m+1, R_BUF+4*m+1))
    cmul_add(F, R_ER, R_EI, R_P512R, R_P512I, R_BUF, R_BUF+1, R_BUF+4, R_BUF+5)
    for m in range(2, 4):
        cmul_add(F, R_ER, R_EI, R_P512R, R_P512I, R_ER, R_EI, R_BUF+4*m, R_BUF+4*m+1)
    F.ins('v_mov_b32 v%d, v%d' % (R_T3, R_ER)); F.ins('v_mov_b32 v%d, v%d' % (R_CI, R_EI))
    F.ins('v_permlane32_swap_b32 v%d, v%d' % (R_ER, R_T3)); F.ins('v_permlane32_swap_b32 v%d, v%d' % (R_EI, R_CI))
    cmul_add(F, R_ER, R_EI, R_P256R, R_P256I, R_ER, R_EI, R_T3, R_CI)
    cmul_add(F, R_ER, R_EI, R_MR, R_MI, R_ER, R_EI, R_LLR, R_LLI)
    pr, pi_ = R_ER, R_EI
    land = lambda part, blk: R_BUF if (part, blk) == (1, 0) else acc(part, blk) + 8
    def pack(part, blk):
        b = acc(part, blk); neg = '-' if part else ''
        src = (lambda t: uim(16*blk + t)) if part else (lambda t: b + t)
        for k in range(8):
            F.ins('v_cvt_pk_bf16_f32 v%d, %sv%d, %sv%d' % (b+k, neg, src(2*k), neg, src(2*k+1)))
        for u in range(2):
            F.ins('ds_write_b128 v%d, %s' % (R_EA if u else R_TWA, vr(b+4*u, 4)), 'tw', 0, P('TWSP', 1))
        for ph in range(2):
            for u in range(2):
                F.ins('ds_read_b64_tr_b16 %s, v%d offset:%d' % (vr(land(part, blk)+4*ph+2*u, 2), R_TW if u else R_TRD, ph*1024 + u*256), 'tr%d%d' % (part, blk))
    def store(part, blk, dl):
        b = land(part, blk)
        F.ins('s_add_u32 s%d, s%d, %d' % (S_TF, S_HS, part*36*1024))
        F.fn(lambda a: a.wait_lg('tr%d%d' % (part, blk)), 1, 0, dl)
        for ph in range(2):
            F.ins('buffer_store_dwordx4 %s, v%d, %s, s%d offen offset:%d sc1' % (vr(b+4*ph, 4), V_HO+blk, WSR, S_TF, ph*1024), 'hs', 0, P('HSSP', 0))
    for tt in range(32):
        ur, ui = ureg(0, tt), uim(tt)
        F.ins('v_fmac_f32 v%d, v%d, v%d' % (ur, R_LR, pr))
        F.ins('v_fmac_f32 v%d, v%d, v%d' % (ui, R_LI, pr))
        F.ins('v_fmac_f32 v%d, v%d, v%d' % (ur, R_NLI, pi_))
        F.ins('v_fmac_f32 v%d, v%d, v%d' % (ui, R_LR, pi_))
        pr, pi_ = ur, ui
        if tt == 16: pack(0, 0); pack(1, 0)
        if tt == 24: store(0, 0, 0); store(1, 0, 0)
    pack(0, 1); pack(1, 1); store(0, 1, 2); store(1, 1, 2)
    F.fn(hs_flag, 5, 0, P('HSD', 36), 'hsflag')

def hs_flag(a):
    a('s_add_u32 s%d, s%d, %d' % (S_TF, S_T4, HSF_OFF))
    a.wait_vm('hs'); a('s_barrier')
    a('buffer_store_dword v%d, v%d, %s, s%d offen sc1' % (R_TG0, V_PA, WSR, S_TF), 'fl')

WNT = os.environ.get('WNT', '')
XNT = os.environ.get('XNT', '')
W2NT = os.environ.get('W2NT', '')
def he_flag(a):
    a('s_add_u32 s%d, s%d, %d' % (S_T, S_T4, HEF_OFF))
    a.wait_vm('se'); a('s_barrier')
    a('buffer_store_dword v%d, v%d, %s, s%d offen sc1' % (V_PL, V_PA, WSR, S_T), 'fl')

def dma_w1(a, slab, pi, n, tag, vreg=V_WD, dm=0):
    a('s_add_u32 m0, s%d, %d' % (S_M0W, slab*SLAB + n*4096 + dm))
    a('s_add_u32 s%d, s%d, %d' % (S_T, S_P+pi, n*32*9216))
    a('buffer_load_dwordx4 v%d, s[%d:%d], s%d offen%s lds' % (vreg, S_W1, S_W1+3, S_T, WNT), tag)

def dma_b(a, kb, part, tag, vreg=V_BD, dm=0):
    a('s_add_u32 m0, s%d, %d' % (S_M0W, kb*8192 + part*4096 + dm))
    a('s_movk_i32 s%d, %d' % (S_T, kb*128))
    s = S_BIM if part else S_BRE
    a('buffer_load_dwordx4 v%d, s[%d:%d], s%d offen%s lds' % (vreg, s, s+3, S_T, WNT), tag)

def xload(a, ks, blk):
    if ks % 4 == 0: a('s_add_u32 s%d, s%d, %d' % (S_TX, S_XB, (ks//4)*4096))
    a('buffer_load_dwordx4 %s, v%d, %s, s%d offen offset:%d sc1' % (xfrag(blk, ks), V_XO+blk, WSR, S_TX, (ks % 4)*1024), 'x%d_%d' % (blk, ks))

def w2_slot(ks):
    u = ks // 2
    base = (SLAB if u < 6 else 0) + (u % 3)*6144
    return base + (ks % 2)*3072
def w2_dma(ks):
    out = ['s_add_u32 m0, s%d, %d' % (S_MW, w2_slot(ks))]
    for n in range(3):
        out.append('buffer_load_dwordx4 v%d, s[%d:%d], s%d offen offset:%d sc1%s lds' % (V_W2D+n, S_WT, S_WT+3, S_WB, n*1024, W2NT))
    out.append('s_add_u32 s%d, s%d, s%d' % (S_WB, S_WB, S_WSTR))
    return out

def phaseB_setup(F, ready):
    I = lambda t: F.ins(t, None, ready)
    def ld(a):
        a('s_load_dwordx2 s[%d:%d], s[0:1], %d' % (SP0, SP0+1, B_W2))
    F.fn(ld, 1, ready)
    I('s_and_b32 s3, s2, 7'); I('s_lshr_b32 s4, s2, 3')
    I('s_mul_i32 s5, s4, 43'); I('s_lshr_b32 s5, s5, 8')
    I('s_mul_i32 s6, s5, 6'); I('s_sub_u32 s%d, s4, s6' % S_NT)
    I('s_mul_i32 s3, s3, 5'); I('s_add_u32 s3, s3, s5')
    I('s_lshr_b32 s%d, s3, 3' % S_SP); I('s_and_b32 s%d, s3, 7' % S_MT)
    I('s_mul_i32 s%d, s%d, 18432' % (S_MW, S_W))
    I('s_mul_i32 s3, s%d, 1152' % S_SP); I('s_mul_i32 s4, s%d, 288' % S_W); I('s_add_u32 s3, s3, s4')
    I('s_mul_i32 s3, s3, 1152'); I('s_mul_i32 s4, s%d, 192' % S_NT); I('s_add_u32 s3, s3, s4')
    I('s_lshl_b32 s4, s%d, 2' % S_NT); I('s_add_u32 s4, s4, s%d' % S_W); I('s_mul_i32 s4, s4, 55296'); I('s_add_u32 s4, s4, %d' % CF_OFF)
    for n in range(3):
        I('v_add_u32 v13, %d, v0' % (64*n))
        I('v_mul_u32_u24 v14, 0x1556, v13'); I('v_lshrrev_b32 v14, 16, v14')
        I('v_mul_u32_u24 v15, 960, v14')
        I('v_lshl_add_u32 v%d, v0, 4, v15' % (V_W2D+n))
    I('v_lshrrev_b32 v14, 5, v0'); I('v_lshlrev_b32 v14, 2, v14'); I('v_bfe_u32 v15, v0, 2, 2'); I('v_add_u32 v14, v14, v15')
    I('v_mul_u32_u24 v14, 192, v14')
    I('v_bfe_u32 v15, v0, 4, 1'); I('v_lshl_add_u32 v14, v15, 5, v14')
    I('v_and_b32 v15, 3, v0'); I('v_lshl_add_u32 v%d, v15, 3, v14' % V_RDB)
    def sel(a):
        a('s_waitcnt lgkmcnt(0)')
        a('s_cmp_eq_u32 s%d, 4' % S_SP)
        a('s_cselect_b32 s%d, s4, s3' % S_WB)
        a('s_cselect_b32 s%d, 3072, s%d' % (S_WSTR, S_WSTR))
        a('s_cselect_b32 s%d, s%d, s%d' % (S_WT, S_WS, SP0))
        a('s_cselect_b32 s%d, s%d, s%d' % (S_WT+1, S_WS+1, SP0+1))
        a('s_cselect_b32 s%d, s%d, s%d' % (S_WT+2, S_WS+2, S_WT+2))
        a('s_cselect_b64 vcc, -1, 0')
        a('s_and_b32 s%d, s%d, 0xffff' % (S_WT+1, S_WT+1))
        a('v_lshlrev_b32 v13, 4, v0')
        for n in range(3): a('v_cndmask_b32 v%d, v%d, v13, vcc' % (V_W2D+n, V_W2D+n))
        a('v_cndmask_b32 v%d, v%d, v13, vcc' % (V_RDB, V_RDB))
        a('s_add_u32 s3, s%d, %d' % (S_MW, SLAB)); a('v_add_u32 v%d, s3, v%d' % (V_RDB, V_RDB))
    I('s_mov_b32 s%d, %d' % (S_WSTR, 16*1152)); I('s_mov_b32 s%d, %d' % (S_WT+2, 4608*1152)); I('s_mov_b32 s%d, 0x00020000' % (S_WT+3))
    F.fn(sel, 5, ready, 4)
    F.fn(lambda a: srd(a, 16, SP0, 4608*1152), 4, ready)
    I('s_lshl_b32 s3, s%d, 12' % S_G); I('s_lshl_b32 s4, s%d, 7' % S_N); I('s_add_u32 s%d, s3, s4' % S_T4)
    I('v_or_b32 v%d, s%d, v0' % (V_PA, S_W)); I('v_min_u32 v%d, 1, v%d' % (V_PA, V_PA)); I('v_lshlrev_b32 v%d, 30, v%d' % (V_PA, V_PA))
    I('v_mov_b32 v%d, s%d' % (V_PL, S_NONCE))

def w2_touch(F, ready):
    I = lambda t: F.ins(t, None, ready)
    I('s_lshr_b32 s3, s2, 3'); I('s_lshl_b32 s3, s3, 2'); I('s_add_u32 s3, s3, s%d' % S_W); I('s_mul_i32 s3, s3, %d' % (88*128))
    I('s_and_b32 s4, s2, 7'); I('s_mul_i32 s4, s4, 5'); I('s_add_u32 s5, s4, 4'); I('s_lshr_b32 s4, s4, 3'); I('s_lshr_b32 s5, s5, 3')
    I('s_mul_i32 s4, s4, %d' % (1152*1152)); I('s_mul_i32 s5, s5, %d' % (1152*1152)); I('s_add_u32 s4, s4, s3'); I('s_add_u32 s5, s5, s3')
    NT_ = P('TNL', 11); nper = 88 // NT_
    I('v_min_u32 v13, %d, v0' % (NT_-1)); I('v_lshlrev_b32 v13, 7, v13')
    I('v_add_u32 v14, s4, v13'); I('v_add_u32 v15, s5, v13')
    for k in range(nper):
        F.ins('buffer_load_dword v%d, v14, s[16:19], 0 offen' % V_DUM, None, ready, P('TSP', 8) if k else 0)
        F.ins('buffer_load_dword v%d, v15, s[16:19], 0 offen' % V_DUM, None, ready, P('TSP', 8))
        if k < nper-1: I('v_add_u32 v14, %d, v14' % (NT_*128)); I('v_add_u32 v15, %d, v15' % (NT_*128))

def code_touch(a):
    label_n[0] += 1; L = 'CT%d' % label_n[0]
    a('s_getpc_b64 s[4:5]'); a(L + ':')
    a('s_add_u32 s4, s4, A_DONE-%s' % L); a('s_addc_u32 s5, s5, 0')
    a('s_lshl_b32 s6, s%d, 13' % S_W)
    a('v_lshl_add_u32 v14, v0, 7, s6'); a('v_min_u32 v14, KLAST-A_DONE, v14')
    a('global_load_dword v10, v14, s[4:5]')

TDN = P('TDN', 0)
def cfl_check(a):
    label_n[0] += 1; L = 'CFS%d' % label_n[0]
    a('s_cmp_lg_u32 s%d, 4' % S_SP); a('s_cbranch_scc1 %s' % L)
    save = list(a.vm)
    a('v_min_u32 v15, 47, v0'); a('v_lshlrev_b32 v15, 7, v15'); a('s_mov_b32 s%d, %d' % (S_T3, CFL_OFF))
    ldc = 'buffer_load_dword v14, v15, %s, s%d offen sc1' % (WSR, S_T3)
    a(ldc); a('s_waitcnt vmcnt(0)')
    poll_loop(a, lambda a: a(ldc), chk_all_eq(14))
    a.vm = save
    a(L + ':')

def w2_read_br(ks):
    def f(a):
        label_n[0] += 1; L = 'WR%d' % label_n[0]
        off = w2_slot(ks) - SLAB
        a.wait_vm('v%d' % ks)
        a('s_cmp_eq_u32 s%d, 4' % S_SP); a('s_cbranch_scc1 %s_S' % L)
        save = list(a.lg)
        for dt in range(3):
            base = (ks*3 + dt)*4
            a('ds_read_b64_tr_b16 %s, v%d offset:%d' % (ar(base, 2), V_RDB, off + dt*64), 'wr%d' % ks)
            a('ds_read_b64_tr_b16 %s, v%d offset:%d' % (ar(base+2, 2), V_RDB, off + dt*64 + 1536), 'wr%d' % ks)
        a('s_branch %s_E' % L)
        a(L + '_S:')
        a.lg = save
        for dt in range(3):
            base = (ks*3 + dt)*4
            a('ds_read_b64 %s, v%d offset:%d' % (ar(base, 2), V_RDB, off + dt*1024), 'wr%d' % ks)
            a('ds_read_b64 %s, v%d offset:%d' % (ar(base+2, 2), V_RDB, off + dt*1024 + 8), 'wr%d' % ks)
        a(L + '_E:')
    return f

def phaseA(a, mixed, st):
    S = Sched(a)
    SC = S.stream('scan'); D = S.stream('dma'); E = S.stream('epi'); B = S.stream('bpre')
    TC = Stream('touch')
    EF = Stream('ef'); EF.fn(he_flag, 5); a.tagcount = {}
    NSE = 4 if mixed else 16; tse = [None]
    def ef_gate():
        if a.tagcount.get('se', 0) < NSE: return False
        if tse[0] is None: tse[0] = S.mf
        return S.mf >= tse[0] + P('EFD', 30)
    EF.gate = ef_gate
    pend = [lambda a, ks=ks, blk=blk: xload(a, ks, blk) for blk in range(2) for ks in range(36)]
    for _ in range(P('XBURST', 16)): pend.pop(0)(a)
    nstamp(a, 'xb'); a('s_barrier'); nstamp(a, 'bar0')
    if mixed: scan_tables(SC)
    phaseB_setup(B, 0)
    frs = []
    for blk in range(2):
        for ks in range(36):
            for c in range(2): frs.append(('p1', blk, ks, c))
    for ci in range(4):
        for ks in range(36): frs.append(('c', ci, ks, ci & 1))
    consumed = [0]; trbase = [0, 0]; reads = []
    def pre(n):
        kind, ci, ks, c = frs[n]
        def f(a):
            if kind == 'p1' and mixed and ks == 32 and c == 0:
                for r in range(4): a('v_add_u32 v%d, 0x10000, v%d' % (V_BR+r, V_BR+r))
            if kind == 'p1' and mixed and ks == 0 and c == 0 and ci == 1:
                for r in range(4): a('v_subrev_u32 v%d, 0x10000, v%d' % (V_BR+r, V_BR+r))
            if kind == 'c' and ci == 0 and ks == 0:
                a('s_waitcnt lgkmcnt(0)'); a('s_barrier')
                for k in range(18): D.fn(lambda a, k=k: dma_w1(a, 0, 2, k, 'w2'), 4, 0, P('W2SP', 3))
            if kind == 'c' and ci == 2 and ks == 0:
                assert not pend and not D.q and not TC.q
                a.wait_vm('w2'); a('s_waitcnt lgkmcnt(0)'); a('s_barrier')
            if not (kind == 'p1' and mixed):
                slab = 0 if kind == 'p1' else (1 if ci < 2 else 0)
                bias = slab*SLAB + (36864 if ks >= 18 else 0)
                if trbase[c] != bias:
                    a('v_add_u32 v%d, 0x%x, v%d' % (V_TR+c, (bias - trbase[c]) & 0xffffffff, V_TR+c)); trbase[c] = bias
        return f
    for n, (kind, ci, ks, c) in enumerate(frs):
        dst = V_WF + 4*(n % 6); tag = 'f%d' % n
        if kind == 'p1' and mixed:
            reads.append((n, lambda a, n=n, dst=dst, ks=ks, c=c, tag=tag: (pre(n)(a), a('ds_read_b128 %s, v%d offset:%d' % (vr(dst, 4), V_BR + (ks & 3), ((ks >> 2)*8192 + c*4096) % 65536), tag))))
        else:
            off = (ks % 18)*2048
            reads.append((n, lambda a, n=n, dst=dst, c=c, off=off, tag=tag: (pre(n)(a), a('ds_read_b64_tr_b16 %s, v%d offset:%d' % (vr(dst, 2), V_TR+c, off), tag))))
            reads.append((n, lambda a, dst=dst, c=c, off=off, tag=tag: a('ds_read_b64_tr_b16 %s, v%d offset:%d' % (vr(dst+2, 2), V_TR+c, off+512), tag)))
    def issue_reads(quota):
        while reads and quota > 0 and reads[0][0] < consumed[0] + 6:
            S.must_fn(reads.pop(0)[1]); quota -= 1
    def issued(n): return not reads or reads[0][0] > n
    accset = ([2, 3, 2, 0] if P('SC2', 1) else [2, 3, 2, 3]) if mixed else [2, 3, 0, 1]
    issue_reads(100)
    n = 0
    while n < len(frs):
        kind, ci, ks, c = frs[n]
        if kind == 'p1' and ks == 1 and c == 0 and ci == 0: stamp(a, st); nstamp(a, 'p1s')
        if kind == 'p1' and ks == 0 and c == 0 and ci == 1:
            nstamp(a, 'p1b')
            S.drain(stream=B)
            if P('W2TOUCH', 1):
                w2_touch(TC, S.mf + P('TAT', 44)); S.always = [TC]
            if mixed: scan_early(SC, S.mf + 3, 0)
            else:
                epi_ffn(E, 0, 0, 0, S.mf + 3, (0,)); epi_ffn(E, 1, 0, 1, S.mf + 3, (0,))
        if kind == 'c' and ks == 0:
            if ci in (0, 2): stamp(a, st)
            nstamp(a, 'c%d' % ci)
            S.note = None; S.drain(('acc', accset[ci]))
            if S.note: sys.stderr.write('  forced drain at chunk %d: %s\n' % (ci, S.note))
            rdy = S.mf + 2
            if ci == 0:
                if mixed:
                    scan_early(SC, rdy, 1, lambda: setattr(S, 'streams', [D, SC, E, B])); scan_late(SC, S.mf + P('POLLAT', 100))
                else:
                    epi_ffn(E, 0, 0, 0, rdy, (1,)); epi_ffn(E, 1, 0, 1, rdy, (1,))
            else:
                epi_ffn(E, accset[ci-1], 1 + (ci-1)//2, (ci-1) & 1, rdy, (0, 1), mixed)
            if ci == 1:
                S.streams = [D, SC, E, B]
            if ci == 0:
                S.drain(stream=B)
            if ci == 2:
                B.fn(cfl_check, 2, S.mf + 2)
                if P('CTOUCH', 1): B.fn(code_touch, 5, S.mf + 2)
                def pf(a):
                    a('s_cmp_eq_u32 s%d, 4' % S_SP)
                    a('s_cselect_b32 s%d, 0x3ffff, s%d' % (S_MASK, S_MASK)); a('s_cselect_b32 s%d, %d, s%d' % (S_PF, HSF_OFF, S_PF))
                B.ins('s_mov_b32 s%d, 0x3fffffff' % S_MASK); B.ins('s_mov_b32 s%d, %d' % (S_PF, HEF_OFF)); B.fn(pf, 3)
                B.ins('s_lshl_b32 s3, s%d, 12' % S_MT); B.ins('s_add_u32 s%d, s%d, s3' % (S_PF, S_PF))
                B.fn(lambda a: flag_lanes(a, 0), 5)
                for k2 in range(6):
                    for t in w2_dma(k2): B.ins(t, 'v%d' % k2, S.mf + P('W2AT', 4) + 11*k2, P('DMSP', 3) if 'lds' in t else 0)
                S.streams = [EF, B, SC, E]
            if ci == 3:
                if mixed and P('SC2', 1):
                    keep = [it for it in SC.q if it[4] == 'hsflag']; SC.q = [it for it in SC.q if it[4] != 'hsflag']
                    sys.stderr.write('  forced SC drain %s\n' % S.pending()); S.drain(stream=SC); SC.q = keep
                for k2 in range(6):
                    B.fn(w2_read_br(k2), 5, S.mf + 5 + 11*k2)
                    B.fn(lambda a, k2=k2: a.wait_lg('wr%d' % k2), 1, 0, 4)
                    for t in w2_dma(k2+6): B.ins(t, 'v%d' % (k2+6), 0, P('DMSP2', 2) if 'lds' in t else 0)
                S.streams = [EF, B, SC, E]
        while not issued(n): issue_reads(1)
        S.fill(reserve=2 if kind == 'p1' and c == 0 else 1)
        if kind == 'p1':
            if c == 0:
                S.must_fn(lambda a: a.wait_vm('x%d_%d' % (ci, ks)))
                S.must_fn(lambda a: a.wait_lg('f%d' % (n+1) if issued(n+1) else 'f%d' % n))
            else: S.must_fn(lambda a: a.wait_lg('f%d' % n))
        else:
            if ks % 2 == 0 and n + 1 < len(frs) and issued(n+1): S.must_fn(lambda a: a.wait_lg('f%d' % (n+1)))
            S.must_fn(lambda a: a.wait_lg('f%d' % n))
        blks = (ci,) if kind == 'p1' else (0, 1)
        for blk in blks:
            sset = c if kind == 'p1' else accset[ci]
            d = vr(acc(sset, blk), 16); w = vr(V_WF + 4*(n % 6), 4); x = xfrag(blk, ks)
            A, Bo = (x, w) if (mixed and kind == 'p1') else (w, x)
            S.mfma('v_mfma_f32_32x32x16_bf16 %s, %s, %s, %s' % (d, A, Bo, d if ks else '0'))
            if blk == blks[-1]: consumed[0] = n + 1
            issue_reads(2 if kind == 'p1' else 1)
            if pend and (c == 0 if kind == 'p1' else blk == 0): S.must_fn(pend.pop(0))
        n += 1
    sys.stderr.write('phaseA mixed=%d pending at end: %s\n' % (mixed, S.pending()))
    stamp(a, st); nstamp(a, 'tl0')
    S.mf += 1000
    S.drain(stream=B)
    a('s_barrier')
    epi_ffn(E, accset[3], 2, 1, 0, (0, 1), mixed)
    assert not SC.q and not EF.q
    q = E.q; E.q = []
    dm = []
    for k2 in range(12, 12 + TDN):
        t = w2_dma(k2); dm += [(t[0:2], k2), (t[2:3], k2), (t[3:5], k2)]
    sp_ = max(1, (len(q) - P('TD0', 10)) // max(1, 3*TDN))
    for i, it in enumerate(q):
        if i == max(0, len(q) - P('EPA', 150)): flag_poll('hp')[0](a)
        it[0](a)
        if dm and i >= P('TD0', 10) and (i - P('TD0', 10)) % sp_ == 0:
            ts, k2 = dm.pop(0)
            for t in ts: a(t, 'v%d' % k2)
    assert not dm and a.vm[-1] == 'st'
    nstamp(a, 'tl1')
    a.wait_vm('hp')
    ld, chk = flag_poll()
    poll_loop(a, ld, chk, 1, 'r_h')
    a.wait_vm('v11')
    stamp(a, st); nstamp(a, 't3')

VB_HO = 1; VB_O = 2; VB_RD = 5; VB_RW = 6; VB_T = 7; VB_RR = 10; VB_PO = 13
VB_ACC = 16; VB_RB = 112; VB_H = 152
A_XX = 216
RED = 36864
S_FB = 34
def wfrag(ks, dt): return ar((ks*3 + dt)*4, 4)
def accr(s, dt): return VB_ACC + 48*s + 16*dt
X = os.environ.get('X', '')

def w2_read(a, ks, ssm):
    sl = w2_slot(ks); hi = sl >= SLAB
    for dt in range(3):
        base = (ks*3 + dt)*4
        reg = VB_RD
        off = sl - (SLAB if hi else 0)
        if ssm:
            a('ds_read_b128 %s, v%d offset:%d' % (ar(base, 4), reg, off + dt*1024), 'wr%d' % ks)
        else:
            a('ds_read_b64_tr_b16 %s, v%d offset:%d' % (ar(base, 2), reg, off + dt*64), 'wr%d' % ks)
            a('ds_read_b64_tr_b16 %s, v%d offset:%d' % (ar(base+2, 2), reg, off + dt*64 + 1536), 'wr%d' % ks)

def reduce_fill(R, i, ready, send, ssm, io=None, dl=1, wrd=2):
    s = i & 1; grp = ('acc', s); buf = s*RED
    if io is None: io = i
    for q in range(1, 4):
        for dt in range(3):
            R.ins('ds_write_b128 v%d, %s offset:%d' % (VB_RW, vr(accr(s, dt) + 4*q, 4), buf + (q-1)*3072 + dt*1024), 'rw%d' % i, ready, wrd, grp)
    R.fn(lambda a: (a.wait_lg('rw%d' % i), a('s_barrier')), 2, 0, 2*dl)
    for q in range(1, 4):
        for dt in range(3):
            R.ins('ds_read_b128 %s, v%d offset:%d' % (vr(VB_RB + ((q-1)*3+dt)*4, 4), VB_RR+q-1, buf + dt*1024), 'rr%d' % i)
    R.fn(lambda a: a.wait_lg('rr%d' % i), 1, 0, 4*dl)
    for k in range(12):
        own = accr(s, k//4) + k % 4
        R.ins('v_add_f32 v%d, v%d, v%d' % (VB_RB+k, VB_RB+k, own), None, 0, 0, grp)
        R.ins('v_add_f32 v%d, v%d, v%d' % (VB_RB+12+k, VB_RB+12+k, VB_RB+24+k))
    SB = VB_RB + 24
    for k in range(12):
        dst = SB + 4*(k//3) + k % 3 if (send and ssm) else VB_RB + k
        R.ins('v_add_f32 v%d, v%d, v%d' % (dst, VB_RB+k, VB_RB+12+k), 'sum%d' % i)
    if send:
        ng = 4 if ssm else 2
        if not ssm:
            for p in range(6): R.ins('v_cvt_pk_bf16_f32 v%d, v%d, v%d' % (SB + 4*(p//3) + p % 3, VB_RB+2*p, VB_RB+2*p+1))
        for g in range(ng): R.ins('v_mov_b32 v%d, s%d' % (SB + 4*g + 3, S_NONCE))
        R.ins('s_mul_i32 s%d, s%d, %d' % (S_TF, S_ORD+io, 6*4*ng*1024))
        R.ins('s_add_u32 s%d, s%d, s%d' % (S_TF, S_TF, S_PB))
        for g in range(ng):
            if 'nost' in X: continue
            R.ins('buffer_store_dwordx4 %s, v%d, %s, s%d offen offset:%d%s' % (vr(SB+4*g, 4), VB_PO, WSR, S_TF, g*1024, '' if 'plainst' in X else ' sc1'), 'st', 0, 2 if g else 0)

def ffn_loads(quads):
    return ['buffer_load_dwordx4 %s, v%d, %s, s%d offen offset:%d sc1' % (vr(quads[src*2+g], 4), VB_PO, WSR, S_FB+src, g*1024) for src in range(3) for g in range(2)]
def y_loads(quads):
    return ['buffer_load_dwordx4 %s, v%d, %s, s%d offen offset:%d sc1' % (vr(quads[g], 4), VB_RD, WSR, S_T2, g*1024) for g in range(4)]
def tag_check(quads):
    def f(a):
        t = [q+3 for q in quads]
        for op, d in (('v_min3_u32', VB_T), ('v_max3_u32', VB_T+1)):
            a('%s v%d, v%d, v%d, v%d' % (op, d, t[0], t[1], t[2]))
            r = t[3:]
            while r:
                a('%s v%d, v%d, v%d, v%d' % (op, d, d, r[0], r[1] if len(r) > 1 else r[0])); r = r[2:]
        a('v_cmp_ne_u32 vcc, s%d, v%d' % (S_NONCE, VB_T))
        a('v_cmp_ne_u32 s[4:5], s%d, v%d' % (S_NONCE, VB_T+1))
        a('s_nop 1')
        a('s_or_b64 vcc, vcc, s[4:5]')
        a('s_cmp_eq_u64 vcc, 0')
    return f
def checked(G, tag, loads, quads, dl):
    G.fn(lambda a: (nstamp(a, 'w0' + tag), a.wait_vm(tag), nstamp(a, 'w1' + tag), poll_loop(a, lambda a: [a(t) for t in loads], tag_check(quads), P('RSLEEP', 8), 'r_' + tag)), 5, 0, dl)
def presum(G, quads, ps):
    pk = lambda src, k: quads[src*2 + (k//2)//3] + (k//2) % 3
    unp = lambda d, src, k: ('v_and_b32 v%d, 0xffff0000, v%d' if k % 2 else 'v_lshlrev_b32 v%d, 16, v%d') % (d, pk(src, k))
    for k in range(12):
        G.ins(unp(ps(k), 0, k)); G.ins(unp(VB_T, 1, k)); G.ins(unp(VB_T+1, 2, k))
        G.ins('v_add_f32 v%d, v%d, v%d' % (ps(k), ps(k), VB_T)); G.ins('v_add_f32 v%d, v%d, v%d' % (ps(k), ps(k), VB_T+1))
def prep_s(G, j, yq):
    y = lambda k: yq[k//3] + k % 3
    for k in range(12):
        G.ins('v_accvgpr_read_b32 v%d, a%d' % (VB_T + k % 2, A_XX+12*j+k))
        G.ins('v_and_b32 v%d, 0xffff0000, v%d' % (VB_T + k % 2, VB_T + k % 2))
        G.ins('v_fma_f32 v%d, 2.0, v%d, v%d' % (y(k), y(k), VB_T + k % 2))
OUTFL = os.environ.get('OUTFL', '')
def chain(G, j, ps, yq, first=None):
    y = lambda k: yq[k//3] + k % 3
    o = lambda k: VB_RB + k
    t1 = lambda k: VB_RB + 12 + k
    t2 = lambda k: VB_RB + 24 + k
    rnd = [lambda k: None if k % 2 else 'v_cvt_pk_bf16_f32 v%d, v%d, v%d' % (o(k+1), o(k), o(k+1)),
           lambda k: ('v_and_b32 v%d, 0xffff0000, v%d' % (o(k), o(k))) if k % 2 else ('v_lshlrev_b32 v%d, 16, v%d' % (o(k), o(k+1)))]
    stages = [lambda k: 'v_add_f32 v%d, v%d, v%d' % (o(k), o(k), ps(k))] + rnd + [
        lambda k: 'v_mul_f32 v%d, s%d, v%d' % (t1(k), S_NL2E, o(k)),
        lambda k: 'v_exp_f32 v%d, v%d' % (t1(k), t1(k)),
        lambda k: 'v_accvgpr_read_b32 v%d, a%d' % (t2(k), A_XX+12*j+k),
        lambda k: 'v_add_f32 v%d, 1.0, v%d' % (t1(k), t1(k)),
        lambda k: 'v_rcp_f32 v%d, v%d' % (t1(k), t1(k)),
        lambda k: 'v_lshlrev_b32 v%d, 16, v%d' % (t2(k), t2(k)),
        lambda k: 'v_mul_f32 v%d, v%d, v%d' % (o(k), o(k), t1(k))] + rnd + [
        lambda k: 'v_fma_f32 v%d, v%d, v%d, v%d' % (t2(k), y(k), o(k), t2(k)),
        lambda k: 'buffer_store_dword v%d, v%d, s[%d:%d], s%d offen offset:%d%s' % (t2(k), VB_O+1 + (k % 4)//2, S_OUT, S_OUT+3, S_T3, (k % 2)*2304 + (k//4)*128, OUTFL)]
    if first: G.fn(first, 0)
    for k0 in range(0, 12, 4):
        for stg in stages:
            for k in range(k0, k0+4):
                t = stg(k)
                if t: G.ins(t, 'out')

XT = 224
def xx_setup(a):
    a('s_load_dwordx2 s[%d:%d], s[0:1], %d' % (SP0, SP0+1, A_X))
    a('s_load_dwordx2 s[%d:%d], s[0:1], %d' % (SP0+2, SP0+3, D_OUT))
    a('s_load_dwordx2 s[%d:%d], s[0:1], %d' % (SP0+4, SP0+5, A_DSK))
def xx_fill(G):
    T = XT; I = G.ins
    SA, DA = T+27, T+28
    I('s_lshl_b32 s3, s%d, 8' % S_MT); I('s_lshl_b32 s4, s%d, 6' % S_SP); I('s_add_u32 s3, s3, s4')
    I('s_lshl_b32 s4, s%d, 2' % S_W); I('s_add_u32 s3, s3, s4')
    I('v_and_b32 v%d, 32, v0' % VB_O); I('v_add_u32 v%d, s3, v%d' % (VB_O, VB_O))
    I('v_lshlrev_b32 v%d, 3, v%d' % (SA, VB_O))
    I('v_mul_u32_u24 v%d, 576, v%d' % (VB_O, VB_O))
    I('v_and_b32 v%d, 31, v0' % (VB_O+1)); I('s_mul_i32 s4, s%d, 96' % S_NT)
    I('v_add_u32 v%d, s4, v%d' % (DA, VB_O+1)); I('v_add_u32 v%d, v%d, v%d' % (VB_O, VB_O, DA)); I('v_lshlrev_b32 v%d, 1, v%d' % (DA, DA))
    I('v_lshlrev_b32 v%d, 2, v%d' % (VB_O+1, VB_O)); I('v_add_u32 v%d, 4608, v%d' % (VB_O+2, VB_O+1)); I('v_lshlrev_b32 v%d, 1, v%d' % (VB_O, VB_O))
    G.fn(lambda a: srd(a, S_X, SP0, 2048*1152), 4); G.fn(lambda a: srd(a, S_OUT, SP0+2, 2048*2304), 4)
    I('s_movk_i32 s7, %d' % (16*1152)); I('s_mov_b32 s6, %d' % STAT_OFF)
    for dt in range(3):
        I('global_load_ushort v%d, v%d, s[%d:%d] offset:%d' % (T+20+dt, DA, SP0+4, SP0+5, dt*64), 'xx0')
    for j in range(2):
        for k in range(12):
            I('buffer_load_ushort v%d, v%d, s[%d:%d], %s offen offset:%d' % (T+k, VB_O, S_X, S_X+3, 's7' if j else '0', (k % 4)*1152 + (k//4)*64), 'xx%d' % j, 0, P('XXSP', 3))
        for u in range(2):
            I('buffer_load_dwordx4 %s, v%d, %s, s6 offen offset:%d sc1' % (vr(T+12+4*u, 4), SA, WSR, j*128 + u*16), 'xx%d' % j)
        G.fn(lambda a, j=j: a.wait_vm('xx%d' % j), 1, 0, P('XXD', 30))
        if j == 0:
            for dt in range(3): I('v_lshlrev_b32 v%d, 16, v%d' % (T+20+dt, T+20+dt))
        x = lambda k: T+k
        t = lambda k: T+23+k % 4
        mm = lambda k: T+12+2*(k % 4)
        rnd = [lambda k: None if k % 2 else 'v_cvt_pk_bf16_f32 v%d, v%d, v%d' % (t(k+1), t(k), t(k+1)),
               lambda k: ('v_and_b32 v%d, 0xffff0000, v%d' % (t(k), t(k))) if k % 2 else ('v_lshlrev_b32 v%d, 16, v%d' % (t(k), t(k+1)))]
        st = [lambda k: 'v_lshlrev_b32 v%d, 16, v%d' % (x(k), x(k)),
              lambda k: 'v_sub_f32 v%d, v%d, v%d' % (t(k), x(k), mm(k))] + rnd + [
              lambda k: 'v_mul_f32 v%d, v%d, v%d' % (t(k), t(k), mm(k)+1)] + rnd + [
              lambda k: 'v_mul_f32 v%d, v%d, v%d' % (t(k), t(k), T+20+k//4),
              lambda k: 'v_cvt_pk_bf16_f32 v%d, v%d, v%d' % (t(k), x(k), t(k)),
              lambda k: 'v_accvgpr_write_b32 a%d, v%d' % (A_XX+12*j+k, t(k))]
        for k0 in range(0, 12, 4):
            for s in st:
                for k in range(k0, k0+4):
                    tx = s(k)
                    if tx: I(tx)

FPA = 9; FPL = 8
def flag_lanes(a, two):
    a('v_and_b32 v14, 31, v0'); a('v_lshrrev_b32 v15, v14, s%d' % S_MASK); a('v_and_b32 v15, 1, v15'); a('v_xor_b32 v15, 1, v15')
    a('v_lshlrev_b32 v%d, 7, %s' % (FPA, 'v0' if two else 'v14'))
    a('v_lshl_add_u32 v%d, v15, 30, v%d' % (FPA, FPA))
def flag_poll(tag='hp'):
    def ld(a):
        a('buffer_load_dword v%d, v%d, %s, s%d offen sc1' % (FPL, FPA, WSR, S_PF), tag)
    def chk(a):
        a('v_cmp_ne_u32 vcc, s%d, v%d' % (S_NONCE, FPL))
        a('s_nop 1')
        a('s_or_b32 s4, vcc_lo, vcc_hi'); a('s_and_b32 s4, s4, s%d' % S_MASK)
        a('s_cmp_eq_u32 s4, 0')
    return ld, chk

def b_common(a, ssm, part=0):
  if part != 2:
    a('s_mul_i32 s%d, s%d, %d' % (S_HBB, S_MT, 8*HF_RB)); a('s_mul_i32 s3, s%d, %d' % (S_SP, 72*1024))
    a('s_add_u32 s%d, s%d, s3' % (S_HBB, S_HBB)); a('s_add_u32 s%d, s%d, %d' % (S_HBB, S_HBB, HF_OFF))
    a('s_lshl_b32 s4, s%d, 3' % S_W)
    a('v_add_u32 v14, s4, v0'); a('v_and_b32 v14, 31, v14'); a('v_and_b32 v15, 32, v0'); a('v_add_u32 v14, v14, v15')
    a('s_mul_i32 s3, s%d, %d' % (S_W, 18*1024)); a('v_lshl_add_u32 v%d, v14, 4, s3' % VB_HO)
  if part != 1:
    a('s_mul_i32 s%d, s%d, 48' % (S_TEAM, S_MT)); a('s_add_u32 s%d, s%d, s%d' % (S_TEAM, S_TEAM, S_NT))
    if ssm:
        a('s_lshl_b32 s3, s%d, 14' % S_TEAM); a('s_add_u32 s%d, s3, %d' % (S_PB, PY_OFF))
        a('s_lshl_b32 s3, s%d, 12' % S_W); a('v_lshl_add_u32 v%d, v0, 4, s3' % VB_PO)
    else:
        a('s_lshl_b32 s3, s%d, 13' % S_TEAM); a('s_mul_i32 s4, s%d, %d' % (S_SP, 64*6*8192)); a('s_add_u32 s3, s3, s4'); a('s_add_u32 s%d, s3, %d' % (S_PB, PF_OFF))
        a('s_lshl_b32 s3, s%d, 11' % S_W); a('v_lshl_add_u32 v%d, v0, 4, s3' % VB_PO)
    for q in range(1, 4):
        a('s_sub_u32 s3, s%d, %d' % (S_W, q)); a('s_and_b32 s3, s3, 3'); a('s_mul_i32 s3, s3, 9216'); a('s_add_u32 s3, s3, %d' % ((q-1)*3072 + SLAB))
        a('v_lshl_add_u32 v%d, v0, 4, s3' % (VB_RR+q-1))
    a('s_mul_i32 s3, s%d, 9216' % S_W); a('s_add_u32 s3, s3, %d' % SLAB); a('v_lshl_add_u32 v%d, v0, 4, s3' % VB_RW)

def phaseB(a, ssm, st):
    NH = P('NHS', 24) if ssm else P('NHF', 18)
    hslot = lambda n: VB_H + 4*(n % NH)
    KE = P('KE', 8)
    seq = [(0, k) for k in range(KE)] + [(1, k) for k in range(KE)] + [(0, k) for k in range(KE, 18)] + [(1, k) for k in range(KE, 18)]
    seq += [(i, ks) for i in range(2, 8) for ks in range(18)]
    if ssm: seq = [(i, ks) for i in range(8) for ks in range(18)]
    def hload(a, n):
        i, ks = seq[n]
        if n == 0 or seq[n-1][0] != i:
            a('s_mul_i32 s%d, s%d, %d' % (S_HN, S_ORD+i, HF_RB)); a('s_add_u32 s%d, s%d, s%d' % (S_HN, S_HN, S_HBB))
            if ks: a('s_add_u32 s%d, s%d, %d' % (S_HN, S_HN, (ks//4)*4096))
        elif ks % 4 == 0: a('s_add_u32 s%d, s%d, 4096' % (S_HN, S_HN))
        a('buffer_load_dwordx4 %s, v%d, %s, s%d offen offset:%d sc1' % (vr(hslot(n), 4), VB_HO, WSR, S_HN, (ks % 4)*1024), 'h%d' % n)
    a.tagcount = {}
    a.vm = ['st']; a.seen |= {'st'}
    nld = [0]; okl = [ssm]
    def next_h(a):
        if nld[0] < 144: hload(a, nld[0]); nld[0] += 1
    a('s_add_u32 s%d, s%d, %d' % (S_TF, S_T4, HFL_OFF))
    if ssm:
        for i, r in enumerate((0, 2, 4, 6, 1, 3, 3, 3)): a('s_mov_b32 s%d, %d' % (S_ORD+i, r))
        a('s_mov_b32 s%d, 1' % S_SHORT); a('s_mov_b32 s%d, 0' % S_T3)
        for k2 in range(12 + TDN, 18):
            for t in w2_dma(k2): a(t, 'v%d' % k2)
        b_common(a, ssm)
    else:
        for i in range(3):
            a('s_add_u32 s3, s%d, %d' % (S_SP, i+1)); a('s_and_b32 s3, s3, 3'); a('s_lshl_b32 s%d, s3, 1' % (S_ORD+i)); a('s_add_u32 s%d, s%d, 1' % (S_ORD+3+i, S_ORD+i))
        b_common(a, ssm, 1)
        for _ in range(P('HBURST', 10)): next_h(a)
        a('s_lshl_b32 s%d, s%d, 1' % (S_ORD+6, S_SP)); a('s_add_u32 s%d, s%d, 1' % (S_ORD+7, S_ORD+6))
        xx_setup(a)
        b_common(a, ssm, 2)
    a('v_mov_b32 v%d, v%d' % (VB_RD, V_RDB))
    for ks in range(6, 12): w2_read(a, ks, ssm)
    a('v_subrev_u32 v%d, %d, v%d' % (VB_RD, SLAB, V_RDB))
    a('s_waitcnt lgkmcnt(0)')
    a.wait_vm('st'); a('s_barrier')
    a('buffer_store_dword v%d, v%d, %s, s%d offen sc1' % (V_PL, V_PA, WSR, S_TF), 'fl')
    nstamp(a, 'flg')
    if ssm:
        if TDN < 6: a.wait_vm('v17')
        for ks in range(12, 18): w2_read(a, ks, ssm)
        a('s_waitcnt lgkmcnt(0)')
        a('B_SSM2:')
        a.vm = []
        for _ in range(P('HBURST', 10)): next_h(a)
    S = Sched(a); R = S.stream('red'); G = S.stream('xchg'); C = S.stream('chain')
    C.gate = lambda: not R.q and 'prepA' in a.seen
    if not ssm:
        XR = VB_H + 4*NH
        L = [XR + 4*k for k in range(6)]
        PSr = [XR+24+k for k in range(8)] + [VB_RB+36+k for k in range(4)]
        psA = lambda k: PSr[k]
        yA = L[:4]
        acq = [accr(0, dt) + 4*q for q in (1, 2, 3) for dt in range(3)]
        fB = L[4:6] + acq[:4]; yB = [hslot(126+k) for k in range(4)]
        psB = lambda k: acq[6 + k//4] + k % 4
    if not ssm:
        I = G.ins
        l2, c2 = flag_poll('hl')
        I('s_lshl_b32 s3, s%d, 3' % S_SP); I('s_lshl_b32 s3, 0xff, s3'); I('s_lshl_b32 s5, s%d, 2' % S_SP); I('s_lshl_b32 s5, 0x3f, s5')
        I('s_or_b32 s3, s3, s5'); I('s_and_b32 s%d, s%d, s3' % (S_MASK, S_MASK))
        I('s_add_u32 s%d, s%d, %d' % (S_PF, S_PF, HFL_OFF - HEF_OFF))
        for k2 in range(12 + TDN, 18):
            for t in w2_dma(k2): I(t, 'v%d' % k2, P('D15', 6) + P('D15S', 2)*(k2-12-TDN), P('D15D', 0) if 'lds' in t else 0)
        C.gate, gsave = None, C.gate
        C.fn(l2, 2, P('LP0', 16)); C.fn(lambda a: setattr(C, 'gate', gsave), 0)
        S.streams = [C, R, G]
        I('s_mul_i32 s5, s%d, 12' % S_SP); I('s_add_u32 s5, s5, s%d' % S_TEAM); I('s_lshl_b32 s5, s5, 13')
        for src in range(3):
            I('s_sub_u32 s3, s%d, %d' % (S_SP, src+1)); I('s_and_b32 s3, s3, 3'); I('s_mul_i32 s3, s3, %d' % (64*6*8192))
            I('s_add_u32 s3, s3, s5'); I('s_add_u32 s%d, s3, %d' % (S_FB+src, PF_OFF))
        I('s_lshl_b32 s5, s5, 1'); I('s_add_u32 s%d, s5, %d' % (S_T2, PY_OFF)); I('s_mov_b32 s%d, 0' % S_T3)
        tmp = Asm()
        for ks in range(12, 18): w2_read(tmp, ks, False)
        for k, t in enumerate(tmp.lines):
            if k % 6 == 0 and k//6 >= TDN: G.fn(lambda a, k=k: a.wait_vm('v%d' % (12 + k//6)), 1, P('RDAT', 40) + P('RDS', 3)*(k//6))
            I(t.strip(), 'wr%d' % (12 + k//6))
        I('s_lshl_b32 s3, s%d, 12' % S_W); I('v_lshl_add_u32 v%d, v0, 4, s3' % VB_RD)
        G.fn(lambda a: None, 0, P('LPC', 33) + 1)
        xx_fill(G)
    for n in range(144):
        i, ks = seq[n]; s = i & 1; p = n // 18
        if ks == 0:
            S.note = None; S.drain(('acc', s))
            if S.note: sys.stderr.write('  B forced drain at block %d: %s\n' % (i, S.note))
        if n % 18 == 0:
            if ssm and p == 6:
                S.drain()
                a('s_cmp_eq_u32 s%d, 1' % S_SHORT); a('s_cbranch_scc1 B_SSM_TAIL')
            if p in (0, 7): stamp(a, st)
            nstamp(a, 'b%d' % p)
        base = S.mf
        if n > 0 and seq[n-1][1] == 17:
            j = seq[n-1][0]
            reduce_fill(R, j, base + 2, ssm or j < 6, ssm, None, 1, 1 if (not ssm and j == 0) else P('WRD', 2))
        if not ssm and n % 18 == 0:
            if p == 4:
                FA0 = P('FA0', 0); FSP = P('FSP', 12)
                for k, t in enumerate(ffn_loads(L)): G.ins(t, 'fA', base + FA0 + FSP*k)
                checked(G, 'fA', ffn_loads(L), L, P('CHKD', 40))
                presum(G, L, psA)
                for src in range(3): G.ins('s_add_u32 s%d, s%d, %d' % (S_FB+src, S_FB+src, 6*8192))
            if p == 6:
                for k, t in enumerate(y_loads(yA)): G.ins(t, 'yA', base + P('YAAT', 0) + P('YSP', 7)*k)
                for k, t in enumerate(ffn_loads(fB)[:2]): G.ins(t, 'fB', 0, P('YSP', 7))
                checked(G, 'yA', y_loads(yA), yA, P('CHKD2', 22))
                prep_s(G, 0, yA); G.fn(lambda a: a.seen.add('prepA'), 0)
                G.ins('s_add_u32 s%d, s%d, %d' % (S_T2, S_T2, 6*16384))
            if p == 7:
                G.fn(lambda a: ('rr6' in a.seen) or sys.exit('order'), 0, base + P('FBAT', 24))
                lb = ffn_loads(fB)
                for t in lb[2:4]: G.ins(t, 'fB', 0, 3)
                for t in y_loads(yB): G.ins(t, 'yB', 0, 3)
                for t in lb[4:6]: G.ins(t, 'fB', 0, 3)
                chain(C, 0, psA, yA)
        if ssm and i in (0, 2, 4):
            l2, c2 = flag_poll('hp%d' % i)
            if ks == 0: S.must_fn(lambda a: (a('s_add_u32 s%d, s%d, s%d' % (S_PF, S_PF, S_T3)), l2(a)))
            if ks == 35 - NH:
                assert nld[0] <= 18*(i+2)
                S.must_fn(lambda a: (a.wait_vm('hp%d' % i), poll_loop(a, l2, c2, 4)))
        if not okl[0] and S.mf >= P('LPC', 33):
            S.must_fn(lambda a: (nstamp(a, 'lp0'), a.wait_vm('hl'), poll_loop(a, l2, c2, 1, 'r_l'), nstamp(a, 'lp1')))
            okl[0] = True; S.streams = [R, G, C]
            for _ in range(P('LBURST', 6)):
                if nld[0] < n + NH: S.must_fn(next_h)
        S.fill(reserve=1)
        S.must_fn(lambda a: a.wait_vm('h%d' % n))
        if not ssm and i == 0 and ks >= 12:
            assert a.tagcount.get('wr%d' % ks, 0) == 6, ks
            S.must_fn(lambda a: a.wait_lg('wr%d' % ks))
        for dt in range(3):
            d = vr(accr(s, dt), 16)
            S.mfma('v_mfma_f32_32x32x16_bf16 %s, %s, %s, %s' % (d, vr(hslot(n), 4), wfrag(ks, dt), d if ks else '0'))
            lim = n + NH + (1 if dt == 2 else 0)
            if not okl[0]: lim = min(lim, 2*KE)
            if nld[0] < min(lim, 144) and (dt != 1 or n < 36): S.must_fn(next_h)
    sys.stderr.write('phaseB ssm=%d pending at end: %s\n' % (ssm, S.pending()))
    stamp(a, st); nstamp(a, 'e0')
    S.mf += 1000
    if ssm:
        S.drain()
        a('B_SSM_TAIL:')
        a('s_nop 11')
        a.lg = []
        reduce_fill(R, 7, 0, True, True); S.drain()
        stamp(a, st)
    else:
        S.drain(stream=R); S.drain(stream=G)
        restA = C.q; C.q = []
        reduce_fill(R, 7, 0, False, False)
        wr = R.q[:9]; rest = R.q[9:]
        R.q = []
        k = 0
        while wr or restA[k:]:
            if wr: R.q.append(wr.pop(0))
            R.q += restA[k:k+6]; k += 6
        S.drain()
        stamp(a, st); nstamp(a, 'e1')
        R.q = rest[:10]; S.drain()
        checked(G, 'yB', y_loads(yB), yB, 0); prep_s(G, 1, yB); S.drain()
        R.q = rest[10:]; S.drain()
        nstamp(a, 'e2')
        checked(G, 'fB', ffn_loads(fB), fB, 0); presum(G, fB, psB)
        G.ins('s_mov_b32 s%d, %d' % (S_T3, 16*2304))
        chain(G, 1, psB, yB); S.drain()
        a('s_lshl_b32 s3, s%d, 9' % S_SP); a('s_add_u32 s3, s3, s%d' % S_TEAM); a('s_lshl_b32 s4, s%d, 12' % S_W); a('s_add_u32 s3, s3, s4')
        a('s_cmp_eq_u32 s3, %d' % (7*48))
        a('s_cbranch_scc0 NOBUMP')
        a('v_mov_b32 v14, %d' % NONCE_OFF); a('v_mov_b32 v15, s%d' % S_NONCE)
        a('s_mov_b64 exec, 1')
        a('buffer_store_dword v15, v14, %s, 0 offen sc1' % WSR)
        a('NOBUMP:')
    stamp_flush(a, st, 0, S_WS, S_W, 14)
    a('s_endpgm')

def ln_part(a):
    X = 48; F = 72; T = 112
    a('s_lshl_b32 s3, s2, 1'); a('s_add_u32 s3, s3, s%d' % S_W)
    a('s_lshr_b32 s4, s3, 4'); a('s_lshl_b32 s4, s4, 6')
    a('s_and_b32 s5, s3, 1'); a('s_lshl_b32 s5, s5, 5'); a('s_add_u32 s4, s4, s5')
    a('s_bfe_u32 s5, s3, 0x10003'); a('s_lshl_b32 s5, s5, 4'); a('s_add_u32 s4, s4, s5')
    a('s_bfe_u32 s5, s3, 0x20001'); a('s_lshl_b32 s5, s5, 2'); a('s_add_u32 s4, s4, s5')
    a('v_and_b32 v%d, 3, v0' % T); a('v_lshrrev_b32 v%d, 2, v0' % (T+1))
    a('v_add_u32 v%d, s4, v%d' % (T+2, T))
    a('v_mul_u32_u24 v%d, 1152, v%d' % (T+3, T+2)); a('v_lshl_add_u32 v%d, v%d, 4, v%d' % (T+3, T+1, T+3))
    for k in range(4): a('v_mov_b32 v%d, 0' % (X+16+k))
    a('s_waitcnt lgkmcnt(0)'); nstamp(a, 'ln0')
    for n in range(4):
        a('global_load_dwordx4 %s, v%d, s[%d:%d] offset:%d%s' % (vr(X+4*n, 4), T+3, SP0, SP0+1, 256*n, XNT), 'lx')
    a('s_mov_b32 exec_hi, 0')
    a('global_load_dwordx4 %s, v%d, s[%d:%d] offset:1024%s' % (vr(X+16, 4), T+3, SP0, SP0+1, XNT), 'lx')
    a('s_mov_b32 exec_hi, -1')
    ws_srd(a)
    a('s_load_dword s%d, s[%d:%d], %d' % (S_NONCE, S_WS, S_WS+1, NONCE_OFF))
    a('s_lshr_b32 s5, s3, 3'); a('s_mul_i32 s5, s5, 36864'); a('s_and_b32 s6, s3, 7'); a('s_lshl_b32 s6, s6, 7'); a('s_add_u32 s5, s5, s6')
    a('s_add_u32 s5, s5, %d' % XF_OFF)
    a('v_lshrrev_b32 v%d, 3, v0' % (T+4)); a('v_lshlrev_b32 v%d, 10, v%d' % (T+4, T+4))
    a('v_and_b32 v%d, 7, v0' % (T+5)); a('v_lshl_add_u32 v%d, v%d, 4, v%d' % (T+4, T+5, T+4))
    a('v_lshlrev_b32 v%d, 3, v%d' % (T+2, T+2))
    MK = S_T; HM = S_T2
    a('s_mov_b32 s%d, 0xffff0000' % HM)
    DRY = P('DRY', 0)
    if DRY:
        a('s_mov_b32 s%d, 0' % MK); a('s_mov_b64 exec, 0')
    else:
        a('s_mov_b32 s%d, -1' % MK); a('s_waitcnt vmcnt(0)'); nstamp(a, 'ln1')
    a('LN_BODY:')
    def unpack(n): a('v_lshlrev_b32 v%d, 16, v%d' % (F+2*n, X+n)); a('v_and_b32 v%d, s%d, v%d' % (F+2*n+1, HM, X+n))
    A = T+8
    def allred(r):
        return ['v_add_f32_dpp v%d, v%d, v%d row_ror:4 row_mask:0xf bank_mask:0xf' % (r, r, r),
                'v_add_f32_dpp v%d, v%d, v%d row_ror:8 row_mask:0xf bank_mask:0xf' % (r, r, r),
                'v_mov_b32 v%d, v%d' % (T+6, r), 'v_permlane16_swap_b32 v%d, v%d' % (r, T+6), 'v_add_f32 v%d, v%d, v%d' % (r, r, T+6),
                'v_mov_b32 v%d, v%d' % (T+6, r), 'v_permlane32_swap_b32 v%d, v%d' % (r, T+6), 'v_add_f32 v%d, v%d, v%d' % (r, r, T+6)]
    pr = lambda r: vr(r, 2)
    Q = A+4
    for n in range(20):
        unpack(n)
        if n >= 5:
            k = n - 1
            a('v_pk_add_f32 %s, %s, %s' % (pr(Q+2*(k % 4)), pr(F+2*(k-4)) if k < 8 else pr(Q+2*(k % 4)), pr(F+2*k)))
    a('v_pk_add_f32 %s, %s, %s' % (pr(Q+6), pr(Q+6), pr(F+38)))
    a('v_pk_add_f32 %s, %s, %s' % (pr(Q), pr(Q), pr(Q+2))); a('v_pk_add_f32 %s, %s, %s' % (pr(Q+4), pr(Q+4), pr(Q+6)))
    a('v_pk_add_f32 %s, %s, %s' % (pr(Q), pr(Q), pr(Q+4))); a('v_add_f32 v%d, v%d, v%d' % (A+2, Q, Q+1))
    for t in allred(A+2): a(t)
    a('v_mul_f32 v%d, 0x%08x, v%d' % (A+2, f32bits(1.0/576), A+2))
    a('v_cvt_pk_bf16_f32 v%d, v%d, v%d' % (A, A+2, A+2)); a('v_lshlrev_b32 v%d, 16, v%d' % (A, A))
    a('v_sub_f32 v%d, v%d, v%d' % (A+2, A+2, A))
    for n in range(20):
        if n == 16: a('s_mov_b32 exec_hi, 0')
        a('v_pk_add_f32 %s, %s, %s op_sel_hi:[1,0] neg_lo:[0,1] neg_hi:[0,1]' % (pr(F+2*n), pr(F+2*n), pr(A)))
        if n % 4 == 3:
            for k in range(n-3, n+1):
                d = pr(F+2*k); q = pr(Q+2*(k % 4))
                a(('v_pk_mul_f32 %s, %s, %s' % (q, d, d)) if k < 4 else ('v_pk_fma_f32 %s, %s, %s, %s' % (q, d, d, q)))
    a('s_mov_b32 exec_hi, s%d' % MK)
    ch = ['v_pk_add_f32 %s, %s, %s' % (pr(Q), pr(Q), pr(Q+2)), 'v_pk_add_f32 %s, %s, %s' % (pr(Q+4), pr(Q+4), pr(Q+6)),
          'v_pk_add_f32 %s, %s, %s' % (pr(Q), pr(Q), pr(Q+4)), 'v_add_f32 v%d, v%d, v%d' % (A+1, Q, Q+1)] + allred(A+1) + [
          'v_mul_f32 v%d, 0x%08x, v%d' % (A+1, f32bits(1.0/576), A+1),
          'v_fma_f32 v%d, -v%d, v%d, v%d' % (A+1, A+2, A+2, A+1),
          'v_cvt_pk_bf16_f32 v%d, v%d, v%d' % (A+1, A+1, A+1), 'v_lshlrev_b32 v%d, 16, v%d' % (A+1, A+1),
          'v_add_f32 v%d, 0x%08x, v%d' % (A+1, f32bits(1e-5), A+1),
          'v_cvt_pk_bf16_f32 v%d, v%d, v%d' % (A+1, A+1, A+1), 'v_lshlrev_b32 v%d, 16, v%d' % (A+1, A+1),
          'v_sqrt_f32 v%d, v%d' % (A+1, A+1),
          'v_cvt_pk_bf16_f32 v%d, v%d, v%d' % (A+1, A+1, A+1), 'v_lshlrev_b32 v%d, 16, v%d' % (A+1, A+1),
          'v_rcp_f32 v%d, v%d' % (A+1, A+1)]
    for n in range(21):
        if n < 20: a('v_cvt_pk_bf16_f32 v%d, v%d, v%d' % (X+n, F+2*n, F+2*n+1))
        if ch: a(ch.pop(0))
        if n > 0: unpack(n-1)
    for t in ch: a(t)
    for q in range(5):
        if q == 4: a('s_mov_b32 exec_hi, 0')
        ns = range(4*q, 4*q+4)
        for n in ns: a('v_pk_mul_f32 %s, %s, %s op_sel:[0,1] op_sel_hi:[1,1]' % (pr(F+2*n), pr(F+2*n), pr(A)))
        for n in ns: a('v_cvt_pk_bf16_f32 v%d, v%d, v%d' % (X+n, F+2*n, F+2*n+1))
        if DRY: a('s_cbranch_execz LN_S%d' % q)
        a('buffer_store_dwordx4 %s, v%d, %s, s5 offen sc1' % (vr(X+4*q, 4), T+4, WSR))
        if q < 4: a('s_add_u32 s5, s5, 8192')
        if DRY and q < 4: a('LN_S%d:' % q)
    if DRY:
        a('s_branch LN_REAL_DONE')
        a('LN_S4:')
        a('s_mov_b32 s%d, -1' % MK); a('s_mov_b64 exec, -1'); nstamp(a, 'lnd')
        a('s_waitcnt vmcnt(0)'); nstamp(a, 'ln1')
        a('s_branch LN_BODY')
        a('LN_REAL_DONE:')
    a('s_mov_b32 exec_lo, 15')
    a('s_mov_b32 s5, %d' % STAT_OFF)
    assert A % 2 == 0
    a('buffer_store_dwordx2 %s, v%d, %s, s5 offen sc1' % (vr(A, 2), T+2, WSR))
    a('s_mov_b64 exec, -1'); nstamp(a, 'ln2')
    a('s_waitcnt lgkmcnt(0)')
    nonce_mix(a)
    a('s_lshl_b32 s3, s3, 7'); a('s_add_u32 s3, s3, %d' % LNF_OFF)
    a('v_mov_b32 v%d, 0' % T); a('v_mov_b32 v%d, s%d' % (T+1, S_NONCE))
    a('s_mov_b64 exec, 1')
    a('s_waitcnt vmcnt(0)')
    a('buffer_store_dword v%d, v%d, %s, s3 offen sc1' % (T+1, T, WSR)); nstamp(a, 'ln3')
    a('s_mov_b64 exec, -1')

def nonce_mix(a):
    a('s_mul_i32 s%d, s%d, 0x0019660d' % (S_NONCE, S_NONCE))
    a('s_add_u32 s%d, s%d, 0x3c6ef35f' % (S_NONCE, S_NONCE))

def light_part(a):
    if P('LBAR', 1): a('s_barrier')
    a('s_cmp_eq_u32 s%d, 0' % S_W); a('s_cbranch_scc1 LIGHT2')
    a('s_load_dwordx4 s[%d:%d], s[0:1], %d' % (SP0, SP0+3, A_CRE))
    a('s_sub_u32 s3, s2, 240'); a('s_mul_i32 s3, s3, 3'); a('s_add_u32 s3, s3, s%d' % S_W); a('s_sub_u32 s3, s3, 1')
    a('s_lshr_b32 s4, s3, 3'); a('s_mul_i32 s4, s4, %d' % (96*1152))
    a('s_bfe_u32 s5, s3, 0x10001'); a('s_mul_i32 s5, s5, 576'); a('s_add_u32 s4, s4, s5')
    a('s_and_b32 s5, s3, 1'); a('s_mul_i32 s5, s5, 288'); a('s_add_u32 s4, s4, s5')
    a('v_and_b32 v1, 31, v0'); a('v_mul_u32_u24 v1, 1152, v1'); a('v_lshrrev_b32 v2, 5, v0'); a('v_lshl_add_u32 v1, v2, 4, v1'); a('v_add_u32 v1, s4, v1')
    a('v_add_u32 v2, %d, v1' % (32*1152)); a('v_add_u32 v3, %d, v1' % (64*1152))
    a('v_lshlrev_b32 v4, 4, v0')
    a('s_mul_i32 s6, s3, 27648'); a('s_add_u32 s6, s6, %d' % CF_OFF)
    a('s_waitcnt lgkmcnt(0)')
    a('s_bitcmp1_b32 s3, 2')
    a('s_cselect_b32 s%d, s%d, s%d' % (SP0, SP0+2, SP0)); a('s_cselect_b32 s%d, s%d, s%d' % (SP0+1, SP0+3, SP0+1))
    for f in range(27):
        a('global_load_dwordx4 %s, v%d, s[%d:%d] offset:%d' % (vr(16+4*f, 4), 1 + f % 3, SP0, SP0+1, (f//3)*32), 'c%d' % f)
    for f in range(27):
        a.wait_vm('c%d' % f)
        a('buffer_store_dwordx4 %s, v4, %s, s6 offen offset:%d sc1' % (vr(16+4*f, 4), WSR, (f % 4)*1024))
        if f % 4 == 3: a('s_add_u32 s6, s6, 4096')
    a('s_lshl_b32 s3, s3, 7'); a('s_add_u32 s3, s3, %d' % CFL_OFF)
    a('v_mov_b32 v1, 0'); a('v_mov_b32 v2, s%d' % S_NONCE)
    a('s_mov_b64 exec, 1')
    a('s_waitcnt vmcnt(0)')
    a('buffer_store_dword v2, v1, %s, s3 offen sc1' % WSR)
    a('s_mov_b64 exec, -1')
    a('LIGHT2:')
    a.vm = []
    a('s_cmp_ge_u32 s2, 252'); a('s_cbranch_scc1 KEND')
    a('s_sub_u32 s3, s2, 240'); a('s_lshr_b32 s%d, s3, 1' % S_NT); a('s_and_b32 s3, s3, 1')
    a('s_lshl_b32 s4, s3, 1'); a('s_add_u32 s4, s4, 5')
    for i in range(8): a('s_add_u32 s%d, s4, %d' % (S_ORD+i, 8*i))
    a('s_mov_b32 s%d, 0' % S_MT); a('s_mov_b32 s%d, 4' % S_SP); a('s_mov_b32 s%d, 0' % S_SHORT); a('s_mov_b32 s%d, 0x3ffff' % S_MASK)
    a('s_mov_b32 s%d, %d' % (S_PF, HSF_OFF))
    a('v_min_u32 v1, 47, v0'); a('v_lshlrev_b32 v1, 7, v1'); a('s_mov_b32 s%d, %d' % (S_T3, CFL_OFF))
    ldc = 'buffer_load_dword v2, v1, %s, s%d offen sc1' % (WSR, S_T3)
    a(ldc); a('s_waitcnt vmcnt(0)')
    poll_loop(a, lambda a: a(ldc), chk_all_eq(2), 8)
    a('s_lshl_b32 s4, s%d, 2' % S_NT); a('s_add_u32 s4, s4, s%d' % S_W); a('s_mul_i32 s4, s4, 55296'); a('s_add_u32 s4, s4, %d' % CF_OFF)
    a('v_lshlrev_b32 v4, 4, v0')
    for f in range(54):
        a('buffer_load_dwordx4 %s, v4, %s, s4 offen offset:%d sc1' % (ar(4*f, 4), WSR, (f % 4)*1024))
        if f % 4 == 3: a('s_add_u32 s4, s4, 4096')
    flag_lanes(a, 1)
    a('s_mov_b32 s%d, 8192' % S_T3)
    ld, chk = flag_poll()
    ld(a); a('s_waitcnt vmcnt(0)')
    b_common(a, True)
    poll_loop(a, ld, chk, P('LSLEEP', 6))
    a('s_branch B_SSM2')

def early_pair(a, se, dst):
    a('s_mul_i32 s3, s%d, 86' % se); a('s_lshr_b32 s3, s3, 8'); a('s_mul_i32 s4, s3, 3'); a('s_sub_u32 s4, s%d, s4' % se)
    a('s_cmp_lt_u32 s4, 2'); a('s_cselect_b32 s4, s4, 5')
    a('s_mul_i32 s3, s3, 9'); a('s_add_u32 s3, s3, s4'); a('s_lshl_b32 s%d, s3, 7' % dst)
def mixed_pair(a):
    a('s_lshr_b32 s3, s%d, 1' % S_N); a('s_mul_i32 s3, s3, 9'); a('s_and_b32 s%d, s%d, 1' % (S_SW, S_N))
    a('s_lshl_b32 s4, s%d, 1' % S_SW); a('s_sub_u32 s3, s3, s4'); a('s_add_u32 s3, s3, 6')
    a('s_add_u32 s5, s%d, 54' % S_N); a('s_cmp_lt_u32 s%d, 16' % S_N); a('s_cselect_b32 s3, s3, s5')
    a('s_lshl_b32 s%d, s3, 7' % (S_P+1)); a('s_lshl_b32 s%d, s%d, 11' % (S_SW, S_SW))
def late_pair(a):
    a('s_lshr_b32 s3, s%d, 2' % S_N); a('s_and_b32 s4, s%d, 3' % S_N); a('s_mul_i32 s3, s3, 9'); a('s_add_u32 s3, s3, s4')
    a('s_cmp_lt_u32 s4, 2'); a('s_cselect_b32 s4, 2, 5'); a('s_add_u32 s3, s3, s4'); a('s_lshl_b32 s%d, s3, 7' % (S_P+2))

def gen():
    a = Asm()
    name = PFX + '_kernel'
    a(kernel_header(name))
    a('KSTART:')
    a('s_cmp_ge_u32 s2, 256'); a('s_cbranch_scc1 KEND')
    st = Stamps(); stamp(a, st); nstamp(a, 'start')
    for nm in ('ln0', 'lnd', 'ln1', 'ln2', 'ln3', 'w0a', 'w0b'): nstamp(a, nm)
    a('s_load_dwordx2 s[%d:%d], s[0:1], %d' % (SP0, SP0+1, A_X))
    a('s_load_dwordx2 s[%d:%d], s[0:1], %d' % (SP0+2, SP0+3, D_WS))
    a('s_load_dwordx2 s[%d:%d], s[0:1], %d' % (SP0+4, SP0+5, B_W1))
    a('s_load_dwordx4 s[56:59], s[0:1], %d' % A_BRE)
    a('s_load_dwordx4 s[60:63], s[0:1], %d' % A_LRE)
    a('s_load_dwordx2 s[54:55], s[0:1], %d' % A_LDT)
    a('v_lshrrev_b32 v13, 6, v0')
    a('v_readfirstlane_b32 s%d, v13' % S_W)
    a('v_and_b32 v0, 63, v0')
    a('s_cmp_ge_u32 s%d, 2' % S_W); a('s_cbranch_scc1 SKIP_LN')
    ln_part(a)
    a.vm = []
    a('s_branch LN_DONE')
    a('SKIP_LN:')
    if P('CODEPF', 1):
        a('s_getpc_b64 s[4:5]'); a('PFPC:')
        a('s_sub_u32 s4, s4, PFPC-KSTART'); a('s_subb_u32 s5, s5, 0')
        a('s_lshr_b32 s6, s2, 3'); a('s_and_b32 s6, s6, 7'); a('s_add_u32 s6, s6, 1'); a('s_lshl_b32 s6, s6, 13')
        a('s_cmp_eq_u32 s%d, 3' % S_W); a('s_cselect_b32 s6, 0, s6')
        a('v_lshl_add_u32 v%d, v0, 7, s6' % V_PL)
        a('v_min_u32 v%d, KLAST-KSTART, v%d' % (V_PL, V_PL))
        a('global_load_dword v%d, v%d, s[4:5]' % (V_PL+3, V_PL))
        a.vm = []
    a('LN_DONE:')
    a('s_waitcnt lgkmcnt(0)')
    ws_srd(a)
    a('s_cmp_lt_u32 s%d, 2' % S_W); a('s_cbranch_scc1 HAVE_NONCE')
    a('s_load_dword s%d, s[%d:%d], %d' % (S_NONCE, S_WS, S_WS+1, NONCE_OFF))
    a('s_cmp_lt_u32 s2, 240'); a('s_cbranch_scc1 HAVE_NONCE')
    a('s_waitcnt lgkmcnt(0)'); nonce_mix(a)
    a('HAVE_NONCE:')
    a('s_cmp_lt_u32 s2, 240'); a('s_cbranch_scc1 HEAVY')
    light_part(a)
    a.vm = []
    a('HEAVY:')
    srd(a, S_W1, SP0+4, 576*9216)
    a('s_and_b32 s3, s2, 7'); a('s_lshr_b32 s4, s2, 3')
    a('s_lshr_b32 s5, s3, 1'); a('s_mul_i32 s5, s5, 30'); a('s_add_u32 s5, s5, s4')
    a('s_lshr_b32 s6, s5, 2')
    a('s_mul_i32 s7, s6, 52'); a('s_lshr_b32 s7, s7, 8')
    a('s_mul_i32 s4, s7, 5'); a('s_sub_u32 s4, s6, s4')
    a('s_mul_i32 s6, s7, 3'); a('s_add_u32 s6, s6, s4')
    a('s_lshl_b32 s7, s7, 1'); a('s_add_u32 s7, s7, s4'); a('s_add_u32 s7, s7, 15')
    a('s_cmp_lt_u32 s4, 3'); a('s_cselect_b32 s%d, s6, s7' % S_N)
    a('s_and_b32 s5, s5, 3'); a('s_and_b32 s3, s3, 1'); a('s_lshl_b32 s3, s3, 2'); a('s_add_u32 s%d, s3, s5' % S_G)
    a('s_lshl_b32 s%d, s%d, 10' % (S_M0W, S_W))
    a('v_lshrrev_b32 v13, 3, v0'); a('v_and_b32 v14, 7, v0'); a('v_bfe_u32 v15, v0, 4, 1'); a('v_lshlrev_b32 v15, 2, v15'); a('v_xor_b32 v14, v14, v15')
    a('s_lshl_b32 s3, s%d, 3' % S_W); a('v_add_u32 v13, s3, v13')
    a('v_mul_u32_u24 v%d, 9216, v13' % V_WD); a('v_lshl_add_u32 v%d, v14, 4, v%d' % (V_WD, V_WD))
    def common2():
        a('s_mov_b32 s%d, 0x%08x' % (S_NL2E, f32bits(-LOG2E)))
        a('s_mul_i32 s%d, s%d, %d' % (S_XB, S_G, 8*36864)); a('s_add_u32 s%d, s%d, %d' % (S_XB, S_XB, XF_OFF))
        a('s_mul_i32 s%d, s%d, %d' % (S_HB, S_G, 8*HF_RB)); a('s_add_u32 s%d, s%d, %d' % (S_HB, S_HB, HF_OFF))
        a('s_mul_i32 s3, s%d, 73728' % S_W)
        a('v_bfe_u32 v14, v0, 2, 3'); a('v_lshlrev_b32 v14, 7, v14'); a('v_lshrrev_b32 v15, 5, v0'); a('v_lshl_add_u32 v14, v15, 6, v14')
        a('v_and_b32 v15, 3, v0'); a('v_lshl_add_u32 v14, v15, 4, v14'); a('v_add_u32 v%d, s3, v14' % V_XO)
        a('v_add_u32 v%d, 36864, v%d' % (V_XO+1, V_XO))
        a('s_mul_i32 s3, s%d, %d' % (S_W, 2*HF_RB))
        a('v_lshl_add_u32 v%d, v0, 4, s3' % V_HO); a('v_add_u32 v%d, %d, v%d' % (V_HO+1, HF_RB, V_HO))
        a('v_lshrrev_b32 v14, 5, v0'); a('v_lshlrev_b32 v14, 10, v14')
        a('v_bfe_u32 v15, v0, 2, 2'); a('v_lshl_add_u32 v14, v15, 7, v14')
        a('v_bfe_u32 v15, v0, 4, 1'); a('v_lshl_add_u32 v14, v15, 5, v14')
        a('v_and_b32 v15, 3, v0'); a('v_lshl_add_u32 v14, v15, 3, v14')
        a('v_bfe_u32 v15, v0, 3, 1'); a('v_lshl_add_u32 v%d, v15, 6, v14' % V_TR)
        a('v_xor_b32 v%d, 64, v%d' % (V_TR+1, V_TR))
    def w1_and_poll(tagp):
        nstamp(a, 'w1i')
        common2()
        a('v_and_b32 v%d, 15, v0' % V_PA); a('v_lshlrev_b32 v%d, 7, v%d' % (V_PA, V_PA))
        a('s_lshl_b32 s3, s%d, 13' % S_G); a('s_lshl_b32 s4, s%d, 11' % S_W); a('s_add_u32 s3, s3, s4'); a('s_add_u32 s%d, s3, %d' % (S_T3, LNF_OFF))
        ld = 'buffer_load_dword v%d, v%d, %s, s%d offen sc1' % (V_PL, V_PA, WSR, S_T3)
        a(ld); a('s_waitcnt vmcnt(0)')
        stamp(a, st); nstamp(a, 'pl0')
        poll_loop(a, lambda a: a(ld), chk_all_eq(V_PL))
        stamp(a, st); nstamp(a, 'pl1')
    def w0(mixed):
        L = 'W0SKIP%d' % mixed
        a('s_cmp_lt_u32 s%d, 2' % S_W); a('s_cbranch_scc1 %s' % L); nstamp(a, 'w0a')
        if P('WTOUCH', 0):
            a('s_and_b32 s3, s%d, 3' % S_G); a('s_mul_i32 s3, s3, %d' % (144*9216))
            a('s_cmp_eq_u32 s%d, 3' % S_W); a('s_cselect_b32 s4, s%d, s%d' % (S_P+1, S_P+(1 if mixed else 0))); a('s_add_u32 s3, s3, s4')
            a('v_min_u32 v%d, 47, v0' % V_PA); a('v_mul_u32_u24 v%d, 9216, v%d' % (V_PA, V_PA))
            for k in range(3):
                a('buffer_load_dword v%d, v%d, s[%d:%d], s3 offen' % (V_PL+3, V_PA, S_W1, S_W1+3))
                a('s_add_u32 s3, s3, %d' % (48*9216))
        if mixed:
            a('v_subrev_u32 v%d, %d, v%d' % (V_PA, 16*1152, V_BD))
            for n in range(18): dma_b(a, n//2, n % 2, 'w0'); dma_b(a, n//2, n % 2, 'w0', V_PA, -2048)
        else:
            a('v_subrev_u32 v%d, %d, v%d' % (V_PA, 16*9216, V_WD))
            for n in range(18): dma_w1(a, 0, 0, n, 'w0'); dma_w1(a, 0, 0, n, 'w0', V_PA, -2048)
        a('v_subrev_u32 v%d, %d, v%d' % (V_PA, 16*9216, V_WD))
        for n in range(18): dma_w1(a, 1, 1, n, 'w1'); dma_w1(a, 1, 1, n, 'w1', V_PA, -2048)
        nstamp(a, 'w0b'); a('s_waitcnt lgkmcnt(0)'); nonce_mix(a)
        a(L + ':')
        a.vm = []
    a('s_cmp_lt_u32 s%d, 18' % S_N); a('s_cbranch_scc1 A_MIXED')
    a('s_lshl_b32 s7, s%d, 1' % S_N); a('s_sub_u32 s7, s7, 36')
    early_pair(a, 7, S_P); a('s_add_u32 s7, s7, 1'); early_pair(a, 7, S_P+1); late_pair(a)
    w0(0); w1_and_poll(0)
    phaseA(a, False, st)
    a('s_branch A_DONE')
    nst = st.n; st.n = 1; a.vm = []; a.lg = []; a.seen = set()
    a('A_MIXED:')
    srd(a, S_BRE, 56, 576*1152); srd(a, S_BIM, 58, 576*1152)
    mixed_pair(a); late_pair(a)
    a('v_bfe_u32 v15, v13, 1, 3'); a('v_and_b32 v14, 7, v0'); a('v_xor_b32 v14, v14, v15')
    a('s_lshl_b32 s7, s%d, 5' % S_N); a('v_add_u32 v13, s7, v13')
    a('v_mul_u32_u24 v%d, 1152, v13' % V_BD); a('v_lshl_add_u32 v%d, v14, 4, v%d' % (V_BD, V_BD))
    w0(1)
    a('v_and_b32 v13, 31, v0'); a('v_lshrrev_b32 v14, 5, v0'); a('v_bfe_u32 v15, v0, 1, 3'); a('v_xor_b32 v14, v14, v15')
    a('v_lshlrev_b32 v14, 4, v14'); a('v_lshl_add_u32 v%d, v13, 7, v14' % V_BR)
    for e in range(1, 4): a('v_xor_b32 v%d, %d, v%d' % (V_BR+e, 32*e, V_BR))
    a('v_lshrrev_b32 v14, 5, v0'); a('s_lshl_b32 s4, s%d, 1' % S_W); a('v_add_u32 v%d, s4, v14' % R_SIDX)
    a('v_add_u32 v%d, s%d, v14' % (R_GH, S_G))
    a('v_mul_u32_u24 v%d, 80, v13' % R_TW); a('v_add_u32 v%d, 0x%x, v%d' % (R_TW, E_OFF - E_OFF % 65536, R_TW))
    a('v_lshl_add_u32 v%d, v%d, 3, v%d' % (R_EA, R_SIDX, R_TW)); a('v_add_u32 v%d, 0x%x, v%d' % (R_EA, E_OFF % 65536, R_EA))
    a('v_add_u32 v15, s7, v13')
    a('v_lshlrev_b32 v%d, 4, v15' % R_AW)
    a('v_mul_u32_u24 v14, 9216, v14'); a('v_add_u32 v%d, v14, v%d' % (R_AO, R_AW))
    a('v_min_u32 v14, 1, v%d' % R_SIDX); a('v_lshl_add_u32 v%d, v14, 30, v%d' % (R_AW, R_AW))
    a('v_lshlrev_b32 v15, 1, v15')
    a('global_load_ushort v%d, v15, s[60:61]' % R_T3); a('global_load_ushort v%d, v15, s[62:63]' % R_T4); a('global_load_ushort v%d, v15, s[54:55]' % R_ER)
    a('s_mul_i32 s%d, s%d, 9216' % (S_BB, S_G)); a('s_add_u32 s%d, s%d, %d' % (S_BB, S_BB, AGG_OFF))
    a('s_lshl_b32 s4, s%d, 11' % S_W); a('s_add_u32 s4, s4, %d' % TB_OFF)
    a('v_lshrrev_b32 v14, 5, v0'); a('v_lshlrev_b32 v14, 9, v14')
    a('v_bfe_u32 v15, v0, 2, 2'); a('v_lshl_add_u32 v14, v15, 6, v14')
    a('v_and_b32 v15, 1, v0'); a('v_lshl_add_u32 v14, v15, 5, v14')
    a('v_bfe_u32 v15, v0, 4, 1'); a('v_lshl_add_u32 v14, v15, 4, v14')
    a('v_bfe_u32 v15, v0, 1, 1'); a('v_lshl_add_u32 v14, v15, 3, v14')
    a('v_bfe_u32 v15, v0, 3, 1'); a('v_lshlrev_b32 v15, 4, v15'); a('v_xor_b32 v14, v14, v15')
    a('v_add_u32 v%d, s4, v14' % R_TRD)
    a('v_lshrrev_b32 v14, 5, v0'); a('v_lshlrev_b32 v14, 1, v14'); a('v_bfe_u32 v15, v0, 1, 2'); a('v_xor_b32 v14, v14, v15')
    a('v_lshlrev_b32 v14, 4, v14'); a('v_lshl_add_u32 v14, v13, 6, v14')
    a('v_add_u32 v%d, s4, v14' % R_TWA)
    w1_and_poll(1)
    a('s_lshr_b32 s4, s%d, 5' % S_SW); a('v_xor_b32 v%d, s4, v%d' % (V_TR, V_TR)); a('v_xor_b32 v%d, s4, v%d' % (V_TR+1, V_TR+1))
    a('s_lshl_b32 s4, s%d, 11' % S_N); a('s_add_u32 s4, s4, %d' % (288*1024)); a('s_add_u32 s%d, s4, s%d' % (S_HS, S_HB))
    phaseA(a, True, st)
    assert st.n == nst or not DIAG or STNAMES
    a('A_DONE:')
    a('s_nop 15')
    a.vm = []; a.lg = []; a.seen = set()
    a('s_cmp_eq_u32 s%d, 4' % S_SP); a('s_cbranch_scc1 B_SSM')
    phaseB(a, False, st)
    st.n = nst; a.vm = []; a.lg = []; a.seen = set()
    a('B_SSM:')
    phaseB(a, True, st)
    a.lines.extend(OOL)
    a('KEND:')
    a('KLAST:')
    a('s_endpgm')
    return name, a.lines, kernel_desc(name, 512, 256, 102)

if __name__ == '__main__':
    ref = open('cdna_kernels/%s.s.ref' % PFX).read().split('\n')
    hdr = [l for l in ref if l.startswith(';') and '@launch' not in l and 'Override launch' not in l and 'grid=ceil' not in l][:16]
    name, lines, desc = gen()
    padded, n = pad_hazards(lines)
    sys.stderr.write('%d lines, %d nops inserted\n' % (len(padded), n))
    out = hdr + ['; @launch grid=(256,1,1) block=(256,1,1) lds=%d' % LDS_BYTES, '.amdgcn_target "amdgcn-amd-amdhsa--gfx950"'] + padded + [desc]
    sys.stdout.write('\n'.join(out) + '\n')
```

```python
import sys, os, struct
from asmlib import *
from sched import *
def P(name, dflt): return int(os.environ.get(name, dflt))
def f32bits(x): return struct.unpack('<I', struct.pack('<f', x))[0]
PFX = "recurrent_scan__ssm_conv_s5__dense_activation_silu__prompt"
LOG2E = 1.4426950408889634

WSB      = P('WSB', 0)*1024*1024
NONCE_OFF= 0
STAT_OFF = 16384
AGG_OFF  = 65536
FS       = 128
LNF_OFF  = 256*1024
HEF_OFF  = 320*1024
HFL_OFF  = 384*1024
HSF_OFF  = 448*1024
CFL_OFF  = 512*1024
OOB      = 0x7ffffff0
XF_OFF   = 1024*1024
CF_OFF   = 4*1024*1024
HF_OFF   = 8*1024*1024
HF_RB    = 360*1024
PF_OFF   = 32*1024*1024
if P('COMPACT', 0):
    CF_OFF = XF_OFF + 64*36*1024; HF_OFF = CF_OFF + 24*55296; PF_OFF = HF_OFF + 64*HF_RB
PY_OFF   = (PF_OFF + 4*64*6*8192) if P('COMPACT', 0) else 48*1024*1024
WS_USED  = 64*1024*1024
A_X, A_LRE, A_LIM, A_BRE, A_BIM, A_CRE, A_CIM, A_LDT, A_DSK, B_X, B_W1, B_W2, D_OUT, D_DBG, D_WS = [8*i for i in range(15)]

SLAB = 73728
E_OFF = 2*SLAB
TB_OFF = E_OFF + 3072
LDS_BYTES = TB_OFF + 8192

def ws_srd(a):
    a('s_add_u32 s%d, s%d, 0x%x' % (S_WS, SP0+2, WSB))
    a('s_addc_u32 s%d, s%d, 0' % (S_WS+1, SP0+3))
    a('s_and_b32 s%d, s%d, 0xffff' % (S_WS+1, S_WS+1))
    a('s_mov_b32 s%d, 0x%x' % (S_WS+2, WS_USED))
    a('s_mov_b32 s%d, 0x00020000' % (S_WS+3))
def srd(a, s, lo, nbytes):
    a('s_mov_b32 s%d, s%d' % (s, lo))
    a('s_and_b32 s%d, s%d, 0xffff' % (s+1, lo+1))
    a('s_mov_b32 s%d, 0x%x' % (s+2, nbytes))
    a('s_mov_b32 s%d, 0x00020000' % (s+3))

S_WS = 8; S_W1 = 12; S_BRE = 16; S_BIM = 20; S_WT = 24
S_X = 16; S_OUT = 20
S_G = 28; S_N = 29; S_W = 30; S_XB = 31; S_T = 32; S_M0W = 33
S_P = 34
S_HB = 37; S_T2 = 38; S_BB = 39; S_NL2E = 40; S_TX = 41; S_TF = 42; S_CNT = 43; S_HS = 44; S_NONCE = 45
S_MT = 46; S_NT = 47; S_SP = 48; S_WB = 49; S_WSTR = 50; S_MW = 51; S_T3 = 52; S_T4 = 53; S_MASK = 54; S_TEAM = 55
S_SHORT = S_XB
S_SW = 34
S_PF = 12
S_ORD = 56
S_HBB = S_HB; S_HN = S_TX; S_PB = S_BB
SP0 = 96

V_XO = 1; V_WD = 3; V_BD = 4; V_TR = 5; V_BR = 7; V_HO = 11; V_T0 = 13
V_XV = 16; V_ACC = 48; V_WF = 176; V_ET = 200; V_SC = 208
V_W2D = 253
def xfrag(blk, ks):
    idx = (ks*2 + blk)*4
    return ar(idx, 4) if idx < 256 else vr(V_XV + idx - 256, 4)
def acc(s, blk): return V_ACC + 32*s + 16*blk
(R_LR, R_LI, R_CR, R_CI, R_P32R, R_P32I, R_P256R, R_P256I, R_T1, R_T2, R_T3, R_T4, R_ER, R_EI, R_TG0, R_TG1, R_EA, R_SIDX, R_AO, R_TW) = range(V_SC, V_SC+20)
R_BUF = V_SC + 20
R_TWA, R_TRD, R_P512R, R_P512I, R_GH, R_AW = range(244, 250)
R_NLI = 4
R_NCI = R_TG1
R_U0 = R_T4
R_MR, R_MI = 1, 2
R_LLR, R_LLI = 7, 8
V_PL = 250
V_PA = 252
V_DUM = 13
V_RDB = 251
assert R_BUF % 4 == 0 and R_ER % 4 == 0

WSR = 's[%d:%d]' % (S_WS, S_WS+3)
label_n = [0]
OOL = []
def poll_loop(a, loads, check, sleep=1, rec=None):
    label_n[0] += 1; L = 'POLL%d' % label_n[0]
    if DIAG: a('s_mov_b32 s%d, 0' % S_CNT)
    check(a)
    a('s_cbranch_scc0 %s' % L)
    a(L + '_OK:')
    if DIAG and STNAMES and rec in STNAMES: a('s_mov_b32 s%d, s%d' % (S_STAMP + 2*STNAMES.index(rec), S_CNT))
    b = Asm()
    b(L + ':')
    b('s_mov_b32 s%d, 0' % S_CNT)
    b(L + '_R:')
    b('s_add_u32 s%d, s%d, 1' % (S_CNT, S_CNT))
    b('s_cmp_gt_u32 s%d, %d' % (S_CNT, P('SPIN', 20000)))
    b('s_cbranch_scc1 %s_OK' % L)
    b('s_sleep %d' % sleep)
    loads(b)
    b('s_waitcnt vmcnt(0)')
    check(b)
    b('s_cbranch_scc0 %s_R' % L)
    b('s_branch %s_OK' % L)
    OOL.extend(b.lines)

def chk_all_eq(reg):
    def f(a):
        a('v_cmp_ne_u32 vcc, s%d, v%d' % (S_NONCE, reg))
        a('s_nop 1')
        a('s_cmp_eq_u64 vcc, 0')
    return f

def epi_ffn(E, s, pi, c, ready, blks=(0, 1), mixed=False):
    grp = ('acc', s)
    els = [(blk, j) for blk in blks for j in range(16)]
    n = len(els)
    r = lambda e: acc(s, els[e][0]) + els[e][1]
    t = lambda e: V_ET + (e % 8)
    I = lambda text, tag=None: E.ins(text, tag, ready, 0, grp)
    I('s_lshl_b32 s%d, s%d, 5' % (S_T2, S_P+pi))
    I('s_add_u32 s%d, s%d, s%d' % (S_T2, S_T2, S_HB))
    if mixed: I('%s s%d, s%d, s%d' % ('s_sub_u32' if c else 's_add_u32', S_T2, S_T2, S_SW))
    for step in range(n + 6):
        e = step
        if e < n: I('v_mul_f32 v%d, s%d, v%d' % (t(e), S_NL2E, r(e)))
        e = step - 1
        if 0 <= e < n: I('v_exp_f32 v%d, v%d' % (t(e), t(e)))
        e = step - 2
        if 0 <= e < n: I('v_add_f32 v%d, 1.0, v%d' % (t(e), t(e)))
        e = step - 3
        if 0 <= e < n: I('v_rcp_f32 v%d, v%d' % (t(e), t(e)))
        e = step - 4
        if 0 <= e < n: I('v_mul_f32 v%d, v%d, v%d' % (t(e), t(e), r(e)))
        e = step - 5
        if 0 <= e < n and e % 2 == 1:
            base = r(e - e % 8)
            I('v_cvt_pk_bf16_f32 v%d, v%d, v%d' % (base + (e % 8)//2, t(e-1), t(e)))
            if e % 8 == 7:
                blk = els[e][0]; fr = (e % 16)//8
                I('buffer_store_dwordx4 %s, v%d, %s, s%d offen offset:%d sc1' % (vr(base, 4), V_HO+blk, WSR, S_T2, c*2048 + fr*1024), 'st' if (pi == 2 or (mixed and c == 1)) else 'se')

def cmul_add(F, dr, di, ar_, ai, br, bi, cr, ci, ready=0):
    F.ins('v_fma_f32 v%d, -v%d, v%d, v%d' % (R_T1, ai, bi, cr), None, ready)
    F.ins('v_fma_f32 v%d, v%d, v%d, v%d' % (R_T2, ai, br, ci), None, ready)
    F.ins('v_fma_f32 v%d, v%d, v%d, v%d' % (dr, ar_, br, R_T1), None, ready)
    F.ins('v_fma_f32 v%d, v%d, v%d, v%d' % (di, ar_, bi, R_T2), None, ready)

def csq(F, dr, di, sr_, si):
    F.ins('v_mul_f32 v%d, v%d, v%d' % (R_T1, si, si))
    F.ins('v_mul_f32 v%d, v%d, v%d' % (R_T2, sr_, si))
    F.ins('v_fma_f32 v%d, v%d, v%d, -v%d' % (dr, sr_, sr_, R_T1))
    F.ins('v_add_f32 v%d, v%d, v%d' % (di, R_T2, R_T2))

def scan_tables(F):
    F.ins('v_lshlrev_b32 v%d, 16, v%d' % (R_T3, R_T3))
    F.ins('v_lshlrev_b32 v%d, 16, v%d' % (R_T4, R_T4))
    F.ins('v_lshlrev_b32 v%d, 16, v%d' % (R_ER, R_ER))
    F.ins('v_mul_f32 v%d, 0x%08x, v%d' % (R_ER, f32bits(LOG2E), R_ER))
    F.ins('v_exp_f32 v%d, v%d' % (R_ER, R_ER))
    F.ins('v_cvt_pk_bf16_f32 v%d, v%d, v%d' % (R_ER, R_ER, R_ER))
    F.ins('v_lshlrev_b32 v%d, 16, v%d' % (R_ER, R_ER))
    F.ins('v_mul_f32 v%d, v%d, v%d' % (R_T1, R_ER, R_T3))
    F.ins('v_mul_f32 v%d, v%d, v%d' % (R_T2, R_ER, R_T4))
    F.ins('v_mul_f32 v%d, 0x%08x, v%d' % (R_T1, f32bits(LOG2E), R_T1))
    F.ins('v_exp_f32 v%d, v%d' % (R_T1, R_T1))
    F.ins('v_mul_f32 v%d, 0.15915494, v%d' % (R_T2, R_T2))
    F.ins('v_rndne_f32 v%d, v%d' % (R_EI, R_T2))
    F.ins('v_sub_f32 v%d, v%d, v%d' % (R_T2, R_T2, R_EI))
    F.ins('v_cos_f32 v%d, v%d' % (R_LR, R_T2))
    F.ins('v_sin_f32 v%d, v%d' % (R_LI, R_T2))
    F.ins('v_mul_f32 v%d, v%d, v%d' % (R_LR, R_LR, R_T1))
    F.ins('v_mul_f32 v%d, v%d, v%d' % (R_LI, R_LI, R_T1))
    F.ins('v_add_f32 v%d, -1.0, v%d' % (R_ER, R_LR))
    F.ins('v_mul_f32 v%d, v%d, v%d' % (R_T1, R_T3, R_T3))
    F.ins('v_fmac_f32 v%d, v%d, v%d' % (R_T1, R_T4, R_T4))
    F.ins('v_rcp_f32 v%d, v%d' % (R_T1, R_T1))
    F.ins('v_mul_f32 v%d, v%d, v%d' % (R_CR, R_ER, R_T3))
    F.ins('v_fmac_f32 v%d, v%d, v%d' % (R_CR, R_LI, R_T4))
    F.ins('v_mul_f32 v%d, v%d, v%d' % (R_CI, R_LI, R_T3))
    F.ins('v_fma_f32 v%d, -v%d, v%d, v%d' % (R_CI, R_ER, R_T4, R_CI))
    F.ins('v_mul_f32 v%d, v%d, v%d' % (R_CR, R_CR, R_T1))
    F.ins('v_mul_f32 v%d, v%d, v%d' % (R_CI, R_CI, R_T1))
    csq(F, R_P32R, R_P32I, R_LR, R_LI)
    for _ in range(4): csq(F, R_P32R, R_P32I, R_P32R, R_P32I)
    MR, MI, Z = R_BUF, R_BUF+1, R_BUF+2
    F.ins('v_mov_b32 v%d, 0' % Z)
    F.ins('v_and_b32 v%d, 1, v%d' % (R_T3, R_SIDX)); F.ins('v_cmp_ne_u32 s[60:61], 0, v%d' % R_T3)
    F.ins('v_cndmask_b32 v%d, 1.0, v%d, s[60:61]' % (MR, R_P32R)); F.ins('v_cndmask_b32 v%d, 0, v%d, s[60:61]' % (MI, R_P32I))
    for b in (1, 2):
        if b == 1: csq(F, R_P256R, R_P256I, R_P32R, R_P32I)
        else: csq(F, R_P256R, R_P256I, R_P256R, R_P256I)
        F.ins('v_and_b32 v%d, %d, v%d' % (R_T3, 1 << b, R_SIDX)); F.ins('v_cmp_ne_u32 s[60:61], 0, v%d' % R_T3)
        cmul_add(F, R_BUF+4, R_BUF+5, R_P256R, R_P256I, MR, MI, Z, Z)
        F.ins('v_cndmask_b32 v%d, v%d, v%d, s[60:61]' % (MR, MR, R_BUF+4)); F.ins('v_cndmask_b32 v%d, v%d, v%d, s[60:61]' % (MI, MI, R_BUF+5))
    csq(F, R_P256R, R_P256I, R_P256R, R_P256I)
    csq(F, R_P512R, R_P512I, R_P256R, R_P256I)
    F.ins('v_mov_b32 v%d, s%d' % (R_TG0, S_NONCE))
    F.ins('v_sub_f32 v%d, 0, v%d' % (R_NLI, R_LI))
    F.ins('v_sub_f32 v%d, 0, v%d' % (R_NCI, R_CI))

def ureg(part, tt): return acc(part, tt >> 4) + (tt & 15)
def uim(tt): return R_U0 if tt == 0 else acc(1, 0) + tt - 1

def scan_early(F, ready, half, cb=None):
    for tt in range(16*half, 16*half + 16):
        ur, ui, un = ureg(0, tt), ureg(1, tt), uim(tt)
        F.ins('v_mul_f32 v%d, v%d, v%d' % (un, R_CI, ur), None, ready)
        F.ins('v_mul_f32 v%d, v%d, v%d' % (ur, R_CR, ur))
        F.ins('v_fmac_f32 v%d, v%d, v%d' % (un, R_CR, ui))
        F.ins('v_fmac_f32 v%d, v%d, v%d' % (ur, R_NCI, ui))
        if tt == 0: continue
        pairs = [(R_ER, R_EI), (R_T1, R_T2)]
        nr, ni = pairs[(31 - tt) % 2]
        er, ei = (ureg(0, 0), uim(0)) if tt == 1 else pairs[(32 - tt) % 2]
        F.ins('v_fma_f32 v%d, v%d, v%d, v%d' % (ni, R_LI, er, un))
        F.ins('v_fma_f32 v%d, v%d, v%d, v%d' % (nr, R_NLI, ei, ur))
        F.ins('v_fmac_f32 v%d, v%d, v%d' % (ni, R_LR, ei))
        F.ins('v_fmac_f32 v%d, v%d, v%d' % (nr, R_LR, er))
    if half == 0: return
    F.ins('v_mov_b32 v%d, v%d' % (R_MR, R_BUF)); F.ins('v_mov_b32 v%d, v%d' % (R_MI, R_BUF+1))
    F.ins('ds_write_b64 v%d, %s' % (R_EA, vr(R_ER, 2)), 'ew')
    F.fn(lambda a: (a.wait_lg('ew'), a('s_barrier')), 2, 0, 2)
    for n in range(4):
        F.ins('ds_read_b128 %s, v%d offset:%d' % (vr(R_BUF+4*n, 4), R_TW, E_OFF % 65536 + 16*n), 'er')
    F.ins('v_mov_b32 v%d, s%d' % (R_TG1, S_NONCE))
    F.ins('s_add_u32 s%d, s%d, %d' % (S_TF, S_BB, 8*9216))
    F.fn(lambda a: a.wait_lg('er'), 1, 0, 4)
    cmul_add(F, R_ER, R_EI, R_P32R, R_P32I, R_BUF, R_BUF+1, R_BUF+2, R_BUF+3)
    for s in range(2, 8):
        cmul_add(F, R_ER, R_EI, R_P32R, R_P32I, R_ER, R_EI, R_BUF+2*s, R_BUF+2*s+1)
    F.ins('buffer_store_dwordx4 %s, v%d, %s, s%d offen sc1' % (vr(R_ER, 4), R_AW, WSR, S_TF), 'st')
    F.fn(lambda a: cb(), 0)
    F.ins('v_xor_b32 v%d, 16, v%d' % (R_EA, R_TWA)); F.ins('v_xor_b32 v%d, 32, v%d' % (R_TW, R_TRD))
    F.ins('v_mov_b32 v%d, 0' % R_LLR); F.ins('v_mov_b32 v%d, 0' % R_LLI)
    for s in range(7):
        F.ins('v_cmp_lt_u32 s[60:61], %d, v%d' % (s, R_SIDX))
        cmul_add(F, R_T3, R_CI, R_P32R, R_P32I, R_LLR, R_LLI, R_BUF+2*s, R_BUF+2*s+1)
        F.ins('v_cndmask_b32 v%d, v%d, v%d, s[60:61]' % (R_LLR, R_LLR, R_T3))
        F.ins('v_cndmask_b32 v%d, v%d, v%d, s[60:61]' % (R_LLI, R_LLI, R_CI))

def agg_insts():
    out = []
    for m in range(4):
        out.append('s_add_u32 s%d, s%d, %d' % (S_TF, S_BB, 2*m*9216))
        out.append('buffer_load_dwordx4 %s, v%d, %s, s%d offen sc1' % (vr(R_BUF+4*m, 4), R_AO, WSR, S_TF))
    return out
def agg_check(a):
    for m in range(4):
        a('v_cmp_le_u32 vcc, %d, v%d' % (8-2*m, R_GH))
        a('v_cndmask_b32 v%d, v%d, v%d, vcc' % (R_BUF+4*m+3, R_TG0, R_BUF+4*m+2))
    a('v_xor_b32 v%d, v%d, v%d' % (R_T1, R_BUF+3, R_BUF+7))
    a('v_xor_b32 v%d, v%d, v%d' % (R_T2, R_BUF+11, R_BUF+15))
    a('v_xor_b32 v%d, v%d, v%d' % (R_T3, R_BUF+3, R_TG0))
    a('v_xor_b32 v%d, v%d, v%d' % (R_CI, R_BUF+11, R_TG0))
    a('v_or3_b32 v%d, v%d, v%d, v%d' % (R_T1, R_T1, R_T2, R_T3))
    a('v_or_b32 v%d, v%d, v%d' % (R_T1, R_T1, R_CI))
    a('v_cmp_ne_u32 vcc, 0, v%d' % R_T1)
    a('s_nop 1')
    a('s_cmp_eq_u64 vcc, 0')

def scan_late(F, ready_poll):
    for t in agg_insts(): F.ins(t, 'poll', ready_poll)
    F.fn(lambda a: (a.wait_vm('poll'), poll_loop(a, lambda a: [a(t) for t in agg_insts()], agg_check, 1, 'r_agg')), 5, 0, P('POLLD', 34))
    for m in range(4):
        F.ins('v_cmp_le_u32 s[60:61], %d, v%d' % (8-2*m, R_GH))
        F.ins('v_cndmask_b32 v%d, 0, v%d, s[60:61]' % (R_BUF+4*m, R_BUF+4*m))
        F.ins('v_cndmask_b32 v%d, 0, v%d, s[60:61]' % (R_BUF+4*m+1, R_BUF+4*m+1))
    cmul_add(F, R_ER, R_EI, R_P512R, R_P512I, R_BUF, R_BUF+1, R_BUF+4, R_BUF+5)
    for m in range(2, 4):
        cmul_add(F, R_ER, R_EI, R_P512R, R_P512I, R_ER, R_EI, R_BUF+4*m, R_BUF+4*m+1)
    F.ins('v_mov_b32 v%d, v%d' % (R_T3, R_ER)); F.ins('v_mov_b32 v%d, v%d' % (R_CI, R_EI))
    F.ins('v_permlane32_swap_b32 v%d, v%d' % (R_ER, R_T3)); F.ins('v_permlane32_swap_b32 v%d, v%d' % (R_EI, R_CI))
    cmul_add(F, R_ER, R_EI, R_P256R, R_P256I, R_ER, R_EI, R_T3, R_CI)
    cmul_add(F, R_ER, R_EI, R_MR, R_MI, R_ER, R_EI, R_LLR, R_LLI)
    pr, pi_ = R_ER, R_EI
    land = lambda part, blk: R_BUF if (part, blk) == (1, 0) else acc(part, blk) + 8
    def pack(part, blk):
        b = acc(part, blk); neg = '-' if part else ''
        src = (lambda t: uim(16*blk + t)) if part else (lambda t: b + t)
        for k in range(8):
            F.ins('v_cvt_pk_bf16_f32 v%d, %sv%d, %sv%d' % (b+k, neg, src(2*k), neg, src(2*k+1)))
        for u in range(2):
            F.ins('ds_write_b128 v%d, %s' % (R_EA if u else R_TWA, vr(b+4*u, 4)), 'tw', 0, P('TWSP', 1))
        for ph in range(2):
            for u in range(2):
                F.ins('ds_read_b64_tr_b16 %s, v%d offset:%d' % (vr(land(part, blk)+4*ph+2*u, 2), R_TW if u else R_TRD, ph*1024 + u*256), 'tr%d%d' % (part, blk))
    def store(part, blk, dl):
        b = land(part, blk)
        F.ins('s_add_u32 s%d, s%d, %d' % (S_TF, S_HS, part*36*1024))
        F.fn(lambda a: a.wait_lg('tr%d%d' % (part, blk)), 1, 0, dl)
        for ph in range(2):
            F.ins('buffer_store_dwordx4 %s, v%d, %s, s%d offen offset:%d sc1' % (vr(b+4*ph, 4), V_HO+blk, WSR, S_TF, ph*1024), 'hs', 0, P('HSSP', 0))
    for tt in range(32):
        ur, ui = ureg(0, tt), uim(tt)
        F.ins('v_fmac_f32 v%d, v%d, v%d' % (ur, R_LR, pr))
        F.ins('v_fmac_f32 v%d, v%d, v%d' % (ui, R_LI, pr))
        F.ins('v_fmac_f32 v%d, v%d, v%d' % (ur, R_NLI, pi_))
        F.ins('v_fmac_f32 v%d, v%d, v%d' % (ui, R_LR, pi_))
        pr, pi_ = ur, ui
        if tt == 16: pack(0, 0); pack(1, 0)
        if tt == 24: store(0, 0, 0); store(1, 0, 0)
    pack(0, 1); pack(1, 1); store(0, 1, 2); store(1, 1, 2)
    F.fn(hs_flag, 5, 0, P('HSD', 36), 'hsflag')

def hs_flag(a):
    a('s_add_u32 s%d, s%d, %d' % (S_TF, S_T4, HSF_OFF))
    a.wait_vm('hs'); a('s_barrier')
    a('buffer_store_dword v%d, v%d, %s, s%d offen sc1' % (R_TG0, V_PA, WSR, S_TF), 'fl')

WNT = os.environ.get('WNT', '')
XNT = os.environ.get('XNT', '')
W2NT = os.environ.get('W2NT', '')
def he_flag(a):
    a('s_add_u32 s%d, s%d, %d' % (S_T, S_T4, HEF_OFF))
    a.wait_vm('se'); a('s_barrier')
    a('buffer_store_dword v%d, v%d, %s, s%d offen sc1' % (V_PL, V_PA, WSR, S_T), 'fl')

def dma_w1(a, slab, pi, n, tag, vreg=V_WD, dm=0):
    a('s_add_u32 m0, s%d, %d' % (S_M0W, slab*SLAB + n*4096 + dm))
    a('s_add_u32 s%d, s%d, %d' % (S_T, S_P+pi, n*32*9216))
    a('buffer_load_dwordx4 v%d, s[%d:%d], s%d offen%s lds' % (vreg, S_W1, S_W1+3, S_T, WNT), tag)

def dma_b(a, kb, part, tag, vreg=V_BD, dm=0):
    a('s_add_u32 m0, s%d, %d' % (S_M0W, kb*8192 + part*4096 + dm))
    a('s_movk_i32 s%d, %d' % (S_T, kb*128))
    s = S_BIM if part else S_BRE
    a('buffer_load_dwordx4 v%d, s[%d:%d], s%d offen%s lds' % (vreg, s, s+3, S_T, WNT), tag)

def xload(a, ks, blk):
    if ks % 4 == 0: a('s_add_u32 s%d, s%d, %d' % (S_TX, S_XB, (ks//4)*4096))
    a('buffer_load_dwordx4 %s, v%d, %s, s%d offen offset:%d sc1' % (xfrag(blk, ks), V_XO+blk, WSR, S_TX, (ks % 4)*1024), 'x%d_%d' % (blk, ks))

def w2_slot(ks):
    u = ks // 2
    base = (SLAB if u < 6 else 0) + (u % 3)*6144
    return base + (ks % 2)*3072
def w2_dma(ks):
    out = ['s_add_u32 m0, s%d, %d' % (S_MW, w2_slot(ks))]
    for n in range(3):
        out.append('buffer_load_dwordx4 v%d, s[%d:%d], s%d offen offset:%d sc1%s lds' % (V_W2D+n, S_WT, S_WT+3, S_WB, n*1024, W2NT))
    out.append('s_add_u32 s%d, s%d, s%d' % (S_WB, S_WB, S_WSTR))
    return out

def phaseB_setup(F, ready):
    I = lambda t: F.ins(t, None, ready)
    def ld(a):
        a('s_load_dwordx2 s[%d:%d], s[0:1], %d' % (SP0, SP0+1, B_W2))
    F.fn(ld, 1, ready)
    I('s_and_b32 s3, s2, 7'); I('s_lshr_b32 s4, s2, 3')
    I('s_mul_i32 s5, s4, 43'); I('s_lshr_b32 s5, s5, 8')
    I('s_mul_i32 s6, s5, 6'); I('s_sub_u32 s%d, s4, s6' % S_NT)
    I('s_mul_i32 s3, s3, 5'); I('s_add_u32 s3, s3, s5')
    I('s_lshr_b32 s%d, s3, 3' % S_SP); I('s_and_b32 s%d, s3, 7' % S_MT)
    I('s_mul_i32 s%d, s%d, 18432' % (S_MW, S_W))
    I('s_mul_i32 s3, s%d, 1152' % S_SP); I('s_mul_i32 s4, s%d, 288' % S_W); I('s_add_u32 s3, s3, s4')
    I('s_mul_i32 s3, s3, 1152'); I('s_mul_i32 s4, s%d, 192' % S_NT); I('s_add_u32 s3, s3, s4')
    I('s_lshl_b32 s4, s%d, 2' % S_NT); I('s_add_u32 s4, s4, s%d' % S_W); I('s_mul_i32 s4, s4, 55296'); I('s_add_u32 s4, s4, %d' % CF_OFF)
    for n in range(3):
        I('v_add_u32 v13, %d, v0' % (64*n))
        I('v_mul_u32_u24 v14, 0x1556, v13'); I('v_lshrrev_b32 v14, 16, v14')
        I('v_mul_u32_u24 v15, 960, v14')
        I('v_lshl_add_u32 v%d, v0, 4, v15' % (V_W2D+n))
    I('v_lshrrev_b32 v14, 5, v0'); I('v_lshlrev_b32 v14, 2, v14'); I('v_bfe_u32 v15, v0, 2, 2'); I('v_add_u32 v14, v14, v15')
    I('v_mul_u32_u24 v14, 192, v14')
    I('v_bfe_u32 v15, v0, 4, 1'); I('v_lshl_add_u32 v14, v15, 5, v14')
    I('v_and_b32 v15, 3, v0'); I('v_lshl_add_u32 v%d, v15, 3, v14' % V_RDB)
    def sel(a):
        a('s_waitcnt lgkmcnt(0)')
        a('s_cmp_eq_u32 s%d, 4' % S_SP)
        a('s_cselect_b32 s%d, s4, s3' % S_WB)
        a('s_cselect_b32 s%d, 3072, s%d' % (S_WSTR, S_WSTR))
        a('s_cselect_b32 s%d, s%d, s%d' % (S_WT, S_WS, SP0))
        a('s_cselect_b32 s%d, s%d, s%d' % (S_WT+1, S_WS+1, SP0+1))
        a('s_cselect_b32 s%d, s%d, s%d' % (S_WT+2, S_WS+2, S_WT+2))
        a('s_cselect_b64 vcc, -1, 0')
        a('s_and_b32 s%d, s%d, 0xffff' % (S_WT+1, S_WT+1))
        a('v_lshlrev_b32 v13, 4, v0')
        for n in range(3): a('v_cndmask_b32 v%d, v%d, v13, vcc' % (V_W2D+n, V_W2D+n))
        a('v_cndmask_b32 v%d, v%d, v13, vcc' % (V_RDB, V_RDB))
        a('s_add_u32 s3, s%d, %d' % (S_MW, SLAB)); a('v_add_u32 v%d, s3, v%d' % (V_RDB, V_RDB))
    I('s_mov_b32 s%d, %d' % (S_WSTR, 16*1152)); I('s_mov_b32 s%d, %d' % (S_WT+2, 4608*1152)); I('s_mov_b32 s%d, 0x00020000' % (S_WT+3))
    F.fn(sel, 5, ready, 4)
    F.fn(lambda a: srd(a, 16, SP0, 4608*1152), 4, ready)
    I('s_lshl_b32 s3, s%d, 12' % S_G); I('s_lshl_b32 s4, s%d, 7' % S_N); I('s_add_u32 s%d, s3, s4' % S_T4)
    I('v_or_b32 v%d, s%d, v0' % (V_PA, S_W)); I('v_min_u32 v%d, 1, v%d' % (V_PA, V_PA)); I('v_lshlrev_b32 v%d, 30, v%d' % (V_PA, V_PA))
    I('v_mov_b32 v%d, s%d' % (V_PL, S_NONCE))

def w2_touch(F, ready):
    I = lambda t: F.ins(t, None, ready)
    if P('TGLOBAL', 0):
        NT_ = P('TNL', 11)
        I('s_lshl_b32 s3, s2, 2'); I('s_add_u32 s3, s3, s%d' % S_W); I('s_mul_i32 s3, s3, %d' % (44*128))
        I('v_min_u32 v13, %d, v0' % (NT_-1)); I('v_lshl_add_u32 v14, v13, 7, s3')
        for k in range(44 // NT_):
            F.ins('buffer_load_dword v%d, v14, s[16:19], 0 offen' % V_DUM, None, ready, P('TSP', 8) if k else 0)
            I('v_add_u32 v14, %d, v14' % (NT_*128))
        return
    I('s_lshr_b32 s3, s2, 3'); I('s_lshl_b32 s3, s3, 2'); I('s_add_u32 s3, s3, s%d' % S_W); I('s_mul_i32 s3, s3, %d' % (88*128))
    I('s_and_b32 s4, s2, 7'); I('s_mul_i32 s4, s4, 5'); I('s_add_u32 s5, s4, 4'); I('s_lshr_b32 s4, s4, 3'); I('s_lshr_b32 s5, s5, 3')
    I('s_mul_i32 s4, s4, %d' % (1152*1152)); I('s_mul_i32 s5, s5, %d' % (1152*1152)); I('s_add_u32 s4, s4, s3'); I('s_add_u32 s5, s5, s3')
    NT_ = P('TNL', 11); nper = 88 // NT_
    I('v_min_u32 v13, %d, v0' % (NT_-1)); I('v_lshlrev_b32 v13, 7, v13')
    I('v_add_u32 v14, s4, v13'); I('v_add_u32 v15, s5, v13')
    for k in range(nper):
        F.ins('buffer_load_dword v%d, v14, s[16:19], 0 offen' % V_DUM, None, ready, P('TSP', 8) if k else 0)
        F.ins('buffer_load_dword v%d, v15, s[16:19], 0 offen' % V_DUM, None, ready, P('TSP', 8))
        if k < nper-1: I('v_add_u32 v14, %d, v14' % (NT_*128)); I('v_add_u32 v15, %d, v15' % (NT_*128))

def code_touch(a):
    label_n[0] += 1; L = 'CT%d' % label_n[0]
    a('s_getpc_b64 s[4:5]'); a(L + ':')
    a('s_add_u32 s4, s4, A_DONE-%s' % L); a('s_addc_u32 s5, s5, 0')
    a('s_lshl_b32 s6, s%d, 13' % S_W)
    a('v_lshl_add_u32 v14, v0, 7, s6'); a('v_min_u32 v14, KLAST-A_DONE, v14')
    a('global_load_dword v10, v14, s[4:5]')

TDN = P('TDN', 0)
def cfl_check(a):
    label_n[0] += 1; L = 'CFS%d' % label_n[0]
    a('s_cmp_lg_u32 s%d, 4' % S_SP); a('s_cbranch_scc1 %s' % L)
    save = list(a.vm)
    a('v_min_u32 v15, 47, v0'); a('v_lshlrev_b32 v15, 7, v15'); a('s_mov_b32 s%d, %d' % (S_T3, CFL_OFF))
    ldc = 'buffer_load_dword v14, v15, %s, s%d offen sc1' % (WSR, S_T3)
    a(ldc); a('s_waitcnt vmcnt(0)')
    poll_loop(a, lambda a: a(ldc), chk_all_eq(14))
    a.vm = save
    a(L + ':')

def w2_read_br(ks):
    def f(a):
        label_n[0] += 1; L = 'WR%d' % label_n[0]
        off = w2_slot(ks) - SLAB
        a.wait_vm('v%d' % ks)
        a('s_cmp_eq_u32 s%d, 4' % S_SP); a('s_cbranch_scc1 %s_S' % L)
        save = list(a.lg)
        for dt in range(3):
            base = (ks*3 + dt)*4
            a('ds_read_b64_tr_b16 %s, v%d offset:%d' % (ar(base, 2), V_RDB, off + dt*64), 'wr%d' % ks)
            a('ds_read_b64_tr_b16 %s, v%d offset:%d' % (ar(base+2, 2), V_RDB, off + dt*64 + 1536), 'wr%d' % ks)
        a('s_branch %s_E' % L)
        a(L + '_S:')
        a.lg = save
        for dt in range(3):
            base = (ks*3 + dt)*4
            a('ds_read_b64 %s, v%d offset:%d' % (ar(base, 2), V_RDB, off + dt*1024), 'wr%d' % ks)
            a('ds_read_b64 %s, v%d offset:%d' % (ar(base+2, 2), V_RDB, off + dt*1024 + 8), 'wr%d' % ks)
        a(L + '_E:')
    return f

def phaseA(a, mixed, st):
    S = Sched(a)
    SC = S.stream('scan'); D = S.stream('dma'); E = S.stream('epi'); B = S.stream('bpre')
    TC = Stream('touch')
    EF = Stream('ef'); EF.fn(he_flag, 5); a.tagcount = {}
    NSE = 4 if mixed else 16; tse = [None]
    def ef_gate():
        if a.tagcount.get('se', 0) < NSE: return False
        if tse[0] is None: tse[0] = S.mf
        return S.mf >= tse[0] + P('EFD', 30)
    EF.gate = ef_gate
    pend = [lambda a, ks=ks, blk=blk: xload(a, ks, blk) for blk in range(2) for ks in range(36)]
    for _ in range(P('XBURST', 16)): pend.pop(0)(a)
    nstamp(a, 'xb'); a('s_barrier'); nstamp(a, 'bar0')
    if mixed: scan_tables(SC)
    phaseB_setup(B, 0)
    frs = []
    for blk in range(2):
        for ks in range(36):
            for c in range(2): frs.append(('p1', blk, ks, c))
    for ci in range(4):
        for ks in range(36): frs.append(('c', ci, ks, ci & 1))
    consumed = [0]; trbase = [0, 0]; reads = []
    def pre(n):
        kind, ci, ks, c = frs[n]
        def f(a):
            if kind == 'p1' and mixed and ks == 32 and c == 0:
                for r in range(4): a('v_add_u32 v%d, 0x10000, v%d' % (V_BR+r, V_BR+r))
            if kind == 'p1' and mixed and ks == 0 and c == 0 and ci == 1:
                for r in range(4): a('v_subrev_u32 v%d, 0x10000, v%d' % (V_BR+r, V_BR+r))
            if kind == 'c' and ci == 0 and ks == 0:
                a('s_waitcnt lgkmcnt(0)'); a('s_barrier')
                for k in range(18): D.fn(lambda a, k=k: dma_w1(a, 0, 2, k, 'w2'), 4, 0, P('W2SP', 3))
            if kind == 'c' and ci == 2 and ks == 0:
                assert not pend and not D.q and not TC.q
                a.wait_vm('w2'); a('s_waitcnt lgkmcnt(0)'); a('s_barrier')
            if not (kind == 'p1' and mixed):
                slab = 0 if kind == 'p1' else (1 if ci < 2 else 0)
                bias = slab*SLAB + (36864 if ks >= 18 else 0)
                if trbase[c] != bias:
                    a('v_add_u32 v%d, 0x%x, v%d' % (V_TR+c, (bias - trbase[c]) & 0xffffffff, V_TR+c)); trbase[c] = bias
        return f
    for n, (kind, ci, ks, c) in enumerate(frs):
        dst = V_WF + 4*(n % 6); tag = 'f%d' % n
        if kind == 'p1' and mixed:
            reads.append((n, lambda a, n=n, dst=dst, ks=ks, c=c, tag=tag: (pre(n)(a), a('ds_read_b128 %s, v%d offset:%d' % (vr(dst, 4), V_BR + (ks & 3), ((ks >> 2)*8192 + c*4096) % 65536), tag))))
        else:
            off = (ks % 18)*2048
            reads.append((n, lambda a, n=n, dst=dst, c=c, off=off, tag=tag: (pre(n)(a), a('ds_read_b64_tr_b16 %s, v%d offset:%d' % (vr(dst, 2), V_TR+c, off), tag))))
            reads.append((n, lambda a, dst=dst, c=c, off=off, tag=tag: a('ds_read_b64_tr_b16 %s, v%d offset:%d' % (vr(dst+2, 2), V_TR+c, off+512), tag)))
    def issue_reads(quota):
        while reads and quota > 0 and reads[0][0] < consumed[0] + 6:
            S.must_fn(reads.pop(0)[1]); quota -= 1
    def issued(n): return not reads or reads[0][0] > n
    accset = ([2, 3, 2, 0] if P('SC2', 1) else [2, 3, 2, 3]) if mixed else [2, 3, 0, 1]
    issue_reads(100)
    n = 0
    while n < len(frs):
        kind, ci, ks, c = frs[n]
        if kind == 'p1' and ks == 1 and c == 0 and ci == 0: stamp(a, st); nstamp(a, 'p1s')
        if kind == 'p1' and ks == 0 and c == 0 and ci == 1:
            nstamp(a, 'p1b')
            S.drain(stream=B)
            if P('W2TOUCH', 1):
                w2_touch(TC, S.mf + P('TAT', 44)); S.always = [TC]
            if mixed: scan_early(SC, S.mf + 3, 0)
            else:
                epi_ffn(E, 0, 0, 0, S.mf + 3, (0,)); epi_ffn(E, 1, 0, 1, S.mf + 3, (0,))
        if kind == 'c' and ks == 0:
            if ci in (0, 2): stamp(a, st)
            nstamp(a, 'c%d' % ci)
            S.note = None; S.drain(('acc', accset[ci]))
            if S.note: sys.stderr.write('  forced drain at chunk %d: %s\n' % (ci, S.note))
            rdy = S.mf + 2
            if ci == 0:
                if mixed:
                    scan_early(SC, rdy, 1, lambda: setattr(S, 'streams', [D, SC, E, B])); scan_late(SC, S.mf + P('POLLAT', 100))
                else:
                    epi_ffn(E, 0, 0, 0, rdy, (1,)); epi_ffn(E, 1, 0, 1, rdy, (1,))
            else:
                epi_ffn(E, accset[ci-1], 1 + (ci-1)//2, (ci-1) & 1, rdy, (0, 1), mixed)
            if ci == 1:
                S.streams = [D, SC, E, B]
            if ci == 0:
                S.drain(stream=B)
            if ci == 2:
                B.fn(cfl_check, 2, S.mf + 2)
                if P('CTOUCH', 1): B.fn(code_touch, 5, S.mf + 2)
                def pf(a):
                    a('s_cmp_eq_u32 s%d, 4' % S_SP)
                    a('s_cselect_b32 s%d, 0x3ffff, s%d' % (S_MASK, S_MASK)); a('s_cselect_b32 s%d, %d, s%d' % (S_PF, HSF_OFF, S_PF))
                B.ins('s_mov_b32 s%d, 0x3fffffff' % S_MASK); B.ins('s_mov_b32 s%d, %d' % (S_PF, HEF_OFF)); B.fn(pf, 3)
                B.ins('s_lshl_b32 s3, s%d, 12' % S_MT); B.ins('s_add_u32 s%d, s%d, s3' % (S_PF, S_PF))
                B.fn(lambda a: flag_lanes(a, 0), 5)
                for k2 in range(6):
                    for t in w2_dma(k2): B.ins(t, 'v%d' % k2, S.mf + P('W2AT', 4) + 11*k2, P('DMSP', 3) if 'lds' in t else 0)
                S.streams = [EF, B, SC, E]
            if ci == 3:
                if mixed and P('SC2', 1):
                    keep = [it for it in SC.q if it[4] == 'hsflag']; SC.q = [it for it in SC.q if it[4] != 'hsflag']
                    sys.stderr.write('  forced SC drain %s\n' % S.pending()); S.drain(stream=SC); SC.q = keep
                for k2 in range(6):
                    B.fn(w2_read_br(k2), 5, S.mf + 5 + 11*k2)
                    B.fn(lambda a, k2=k2: a.wait_lg('wr%d' % k2), 1, 0, 4)
                    for t in w2_dma(k2+6): B.ins(t, 'v%d' % (k2+6), 0, P('DMSP2', 2) if 'lds' in t else 0)
                S.streams = [EF, B, SC, E]
        while not issued(n): issue_reads(1)
        S.fill(reserve=2 if kind == 'p1' and c == 0 else 1)
        if kind == 'p1':
            if c == 0:
                S.must_fn(lambda a: a.wait_vm('x%d_%d' % (ci, ks)))
                S.must_fn(lambda a: a.wait_lg('f%d' % (n+1) if issued(n+1) else 'f%d' % n))
            else: S.must_fn(lambda a: a.wait_lg('f%d' % n))
        else:
            if ks % 2 == 0 and n + 1 < len(frs) and issued(n+1): S.must_fn(lambda a: a.wait_lg('f%d' % (n+1)))
            S.must_fn(lambda a: a.wait_lg('f%d' % n))
        blks = (ci,) if kind == 'p1' else (0, 1)
        for blk in blks:
            sset = c if kind == 'p1' else accset[ci]
            d = vr(acc(sset, blk), 16); w = vr(V_WF + 4*(n % 6), 4); x = xfrag(blk, ks)
            A, Bo = (x, w) if (mixed and kind == 'p1') else (w, x)
            S.mfma('v_mfma_f32_32x32x16_bf16 %s, %s, %s, %s' % (d, A, Bo, d if ks else '0'))
            if blk == blks[-1]: consumed[0] = n + 1
            issue_reads(2 if kind == 'p1' else 1)
            if pend and (c == 0 if kind == 'p1' else blk == 0): S.must_fn(pend.pop(0))
        n += 1
    sys.stderr.write('phaseA mixed=%d pending at end: %s\n' % (mixed, S.pending()))
    stamp(a, st); nstamp(a, 'tl0')
    S.mf += 1000
    S.drain(stream=B)
    a('s_barrier')
    epi_ffn(E, accset[3], 2, 1, 0, (0, 1), mixed)
    assert not SC.q and not EF.q
    q = E.q; E.q = []
    dm = []
    for k2 in range(12, 12 + TDN):
        t = w2_dma(k2); dm += [(t[0:2], k2), (t[2:3], k2), (t[3:5], k2)]
    sp_ = max(1, (len(q) - P('TD0', 10)) // max(1, 3*TDN))
    for i, it in enumerate(q):
        if i == max(0, len(q) - P('EPA', 150)): flag_poll('hp')[0](a)
        it[0](a)
        if dm and i >= P('TD0', 10) and (i - P('TD0', 10)) % sp_ == 0:
            ts, k2 = dm.pop(0)
            for t in ts: a(t, 'v%d' % k2)
    assert not dm and a.vm[-1] == 'st'
    nstamp(a, 'tl1')
    a.wait_vm('hp')
    ld, chk = flag_poll()
    poll_loop(a, ld, chk, 1, 'r_h')
    a.wait_vm('v11')
    stamp(a, st); nstamp(a, 't3')

VB_HO = 1; VB_O = 2; VB_RD = 5; VB_RW = 6; VB_T = 7; VB_RR = 10; VB_PO = 13
VB_ACC = 16; VB_RB = 112; VB_H = 152
A_XX = 216
RED = 36864
S_FB = 34
def wfrag(ks, dt): return ar((ks*3 + dt)*4, 4)
def accr(s, dt): return VB_ACC + 48*s + 16*dt
X = os.environ.get('X', '')

def w2_read(a, ks, ssm):
    sl = w2_slot(ks); hi = sl >= SLAB
    for dt in range(3):
        base = (ks*3 + dt)*4
        reg = VB_RD
        off = sl - (SLAB if hi else 0)
        if ssm:
            a('ds_read_b128 %s, v%d offset:%d' % (ar(base, 4), reg, off + dt*1024), 'wr%d' % ks)
        else:
            a('ds_read_b64_tr_b16 %s, v%d offset:%d' % (ar(base, 2), reg, off + dt*64), 'wr%d' % ks)
            a('ds_read_b64_tr_b16 %s, v%d offset:%d' % (ar(base+2, 2), reg, off + dt*64 + 1536), 'wr%d' % ks)

def reduce_fill(R, i, ready, send, ssm, io=None, dl=1, wrd=2):
    s = i & 1; grp = ('acc', s); buf = s*RED
    if io is None: io = i
    for q in range(1, 4):
        for dt in range(3):
            R.ins('ds_write_b128 v%d, %s offset:%d' % (VB_RW, vr(accr(s, dt) + 4*q, 4), buf + (q-1)*3072 + dt*1024), 'rw%d' % i, ready, wrd, grp)
    R.fn(lambda a: (a.wait_lg('rw%d' % i), a('s_barrier')), 2, 0, 2*dl)
    for q in range(1, 4):
        for dt in range(3):
            R.ins('ds_read_b128 %s, v%d offset:%d' % (vr(VB_RB + ((q-1)*3+dt)*4, 4), VB_RR+q-1, buf + dt*1024), 'rr%d' % i)
    R.fn(lambda a: a.wait_lg('rr%d' % i), 1, 0, 4*dl)
    for k in range(12):
        own = accr(s, k//4) + k % 4
        R.ins('v_add_f32 v%d, v%d, v%d' % (VB_RB+k, VB_RB+k, own), None, 0, 0, grp)
        R.ins('v_add_f32 v%d, v%d, v%d' % (VB_RB+12+k, VB_RB+12+k, VB_RB+24+k))
    SB = VB_RB + 24
    for k in range(12):
        dst = SB + 4*(k//3) + k % 3 if (send and ssm) else VB_RB + k
        R.ins('v_add_f32 v%d, v%d, v%d' % (dst, VB_RB+k, VB_RB+12+k), 'sum%d' % i)
    if send:
        ng = 4 if ssm else 2
        if not ssm:
            for p in range(6): R.ins('v_cvt_pk_bf16_f32 v%d, v%d, v%d' % (SB + 4*(p//3) + p % 3, VB_RB+2*p, VB_RB+2*p+1))
        for g in range(ng): R.ins('v_mov_b32 v%d, s%d' % (SB + 4*g + 3, S_NONCE))
        R.ins('s_mul_i32 s%d, s%d, %d' % (S_TF, S_ORD+io, 6*4*ng*1024))
        R.ins('s_add_u32 s%d, s%d, s%d' % (S_TF, S_TF, S_PB))
        for g in range(ng):
            if 'nost' in X: continue
            R.ins('buffer_store_dwordx4 %s, v%d, %s, s%d offen offset:%d%s' % (vr(SB+4*g, 4), VB_PO, WSR, S_TF, g*1024, '' if 'plainst' in X else ' sc1'), 'st', 0, 2 if g else 0)

def ffn_loads(quads):
    return ['buffer_load_dwordx4 %s, v%d, %s, s%d offen offset:%d sc1' % (vr(quads[src*2+g], 4), VB_PO, WSR, S_FB+src, g*1024) for src in range(3) for g in range(2)]
def y_loads(quads):
    return ['buffer_load_dwordx4 %s, v%d, %s, s%d offen offset:%d sc1' % (vr(quads[g], 4), VB_RD, WSR, S_T2, g*1024) for g in range(4)]
def tag_check(quads):
    def f(a):
        t = [q+3 for q in quads]
        for op, d in (('v_min3_u32', VB_T), ('v_max3_u32', VB_T+1)):
            a('%s v%d, v%d, v%d, v%d' % (op, d, t[0], t[1], t[2]))
            r = t[3:]
            while r:
                a('%s v%d, v%d, v%d, v%d' % (op, d, d, r[0], r[1] if len(r) > 1 else r[0])); r = r[2:]
        a('v_cmp_ne_u32 vcc, s%d, v%d' % (S_NONCE, VB_T))
        a('v_cmp_ne_u32 s[4:5], s%d, v%d' % (S_NONCE, VB_T+1))
        a('s_nop 1')
        a('s_or_b64 vcc, vcc, s[4:5]')
        a('s_cmp_eq_u64 vcc, 0')
    return f
def checked(G, tag, loads, quads, dl):
    G.fn(lambda a: (nstamp(a, 'w0' + tag), a.wait_vm(tag), nstamp(a, 'w1' + tag), poll_loop(a, lambda a: [a(t) for t in loads], tag_check(quads), P('RSLEEP', 8), 'r_' + tag)), 5, 0, dl)
def presum(G, quads, ps):
    pk = lambda src, k: quads[src*2 + (k//2)//3] + (k//2) % 3
    unp = lambda d, src, k: ('v_and_b32 v%d, 0xffff0000, v%d' if k % 2 else 'v_lshlrev_b32 v%d, 16, v%d') % (d, pk(src, k))
    for k in range(12):
        G.ins(unp(ps(k), 0, k)); G.ins(unp(VB_T, 1, k)); G.ins(unp(VB_T+1, 2, k))
        G.ins('v_add_f32 v%d, v%d, v%d' % (ps(k), ps(k), VB_T)); G.ins('v_add_f32 v%d, v%d, v%d' % (ps(k), ps(k), VB_T+1))
def prep_s(G, j, yq):
    y = lambda k: yq[k//3] + k % 3
    for k in range(12):
        G.ins('v_accvgpr_read_b32 v%d, a%d' % (VB_T + k % 2, A_XX+12*j+k))
        G.ins('v_and_b32 v%d, 0xffff0000, v%d' % (VB_T + k % 2, VB_T + k % 2))
        G.ins('v_fma_f32 v%d, 2.0, v%d, v%d' % (y(k), y(k), VB_T + k % 2))
OUTFL = os.environ.get('OUTFL', '')
def chain(G, j, ps, yq, first=None):
    y = lambda k: yq[k//3] + k % 3
    o = lambda k: VB_RB + k
    t1 = lambda k: VB_RB + 12 + k
    t2 = lambda k: VB_RB + 24 + k
    rnd = [lambda k: None if k % 2 else 'v_cvt_pk_bf16_f32 v%d, v%d, v%d' % (o(k+1), o(k), o(k+1)),
           lambda k: ('v_and_b32 v%d, 0xffff0000, v%d' % (o(k), o(k))) if k % 2 else ('v_lshlrev_b32 v%d, 16, v%d' % (o(k), o(k+1)))]
    stages = [lambda k: 'v_add_f32 v%d, v%d, v%d' % (o(k), o(k), ps(k))] + rnd + [
        lambda k: 'v_mul_f32 v%d, s%d, v%d' % (t1(k), S_NL2E, o(k)),
        lambda k: 'v_exp_f32 v%d, v%d' % (t1(k), t1(k)),
        lambda k: 'v_accvgpr_read_b32 v%d, a%d' % (t2(k), A_XX+12*j+k),
        lambda k: 'v_add_f32 v%d, 1.0, v%d' % (t1(k), t1(k)),
        lambda k: 'v_rcp_f32 v%d, v%d' % (t1(k), t1(k)),
        lambda k: 'v_lshlrev_b32 v%d, 16, v%d' % (t2(k), t2(k)),
        lambda k: 'v_mul_f32 v%d, v%d, v%d' % (o(k), o(k), t1(k))] + rnd + [
        lambda k: 'v_fma_f32 v%d, v%d, v%d, v%d' % (t2(k), y(k), o(k), t2(k)),
        lambda k: 'buffer_store_dword v%d, v%d, s[%d:%d], s%d offen offset:%d%s' % (t2(k), VB_O+1 + (k % 4)//2, S_OUT, S_OUT+3, S_T3, (k % 2)*2304 + (k//4)*128, OUTFL)]
    if first: G.fn(first, 0)
    for k0 in range(0, 12, 4):
        for stg in stages:
            for k in range(k0, k0+4):
                t = stg(k)
                if t: G.ins(t, 'out')

XT = 224
def xx_setup(a):
    a('s_load_dwordx2 s[%d:%d], s[0:1], %d' % (SP0, SP0+1, A_X))
    a('s_load_dwordx2 s[%d:%d], s[0:1], %d' % (SP0+2, SP0+3, D_OUT))
    a('s_load_dwordx2 s[%d:%d], s[0:1], %d' % (SP0+4, SP0+5, A_DSK))
def xx_fill(G):
    T = XT; I = G.ins
    SA, DA = T+27, T+28
    I('s_lshl_b32 s3, s%d, 8' % S_MT); I('s_lshl_b32 s4, s%d, 6' % S_SP); I('s_add_u32 s3, s3, s4')
    I('s_lshl_b32 s4, s%d, 2' % S_W); I('s_add_u32 s3, s3, s4')
    I('v_and_b32 v%d, 32, v0' % VB_O); I('v_add_u32 v%d, s3, v%d' % (VB_O, VB_O))
    I('v_lshlrev_b32 v%d, 3, v%d' % (SA, VB_O))
    I('v_mul_u32_u24 v%d, 576, v%d' % (VB_O, VB_O))
    I('v_and_b32 v%d, 31, v0' % (VB_O+1)); I('s_mul_i32 s4, s%d, 96' % S_NT)
    I('v_add_u32 v%d, s4, v%d' % (DA, VB_O+1)); I('v_add_u32 v%d, v%d, v%d' % (VB_O, VB_O, DA)); I('v_lshlrev_b32 v%d, 1, v%d' % (DA, DA))
    I('v_lshlrev_b32 v%d, 2, v%d' % (VB_O+1, VB_O)); I('v_add_u32 v%d, 4608, v%d' % (VB_O+2, VB_O+1)); I('v_lshlrev_b32 v%d, 1, v%d' % (VB_O, VB_O))
    G.fn(lambda a: srd(a, S_X, SP0, 2048*1152), 4); G.fn(lambda a: srd(a, S_OUT, SP0+2, 2048*2304), 4)
    I('s_movk_i32 s7, %d' % (16*1152)); I('s_mov_b32 s6, %d' % STAT_OFF)
    for dt in range(3):
        I('global_load_ushort v%d, v%d, s[%d:%d] offset:%d' % (T+20+dt, DA, SP0+4, SP0+5, dt*64), 'xx0')
    for j in range(2):
        for k in range(12):
            I('buffer_load_ushort v%d, v%d, s[%d:%d], %s offen offset:%d' % (T+k, VB_O, S_X, S_X+3, 's7' if j else '0', (k % 4)*1152 + (k//4)*64), 'xx%d' % j, 0, P('XXSP', 3))
        for u in range(2):
            I('buffer_load_dwordx4 %s, v%d, %s, s6 offen offset:%d sc1' % (vr(T+12+4*u, 4), SA, WSR, j*128 + u*16), 'xx%d' % j)
        G.fn(lambda a, j=j: a.wait_vm('xx%d' % j), 1, 0, P('XXD', 30))
        if j == 0:
            for dt in range(3): I('v_lshlrev_b32 v%d, 16, v%d' % (T+20+dt, T+20+dt))
        x = lambda k: T+k
        t = lambda k: T+23+k % 4
        mm = lambda k: T+12+2*(k % 4)
        rnd = [lambda k: None if k % 2 else 'v_cvt_pk_bf16_f32 v%d, v%d, v%d' % (t(k+1), t(k), t(k+1)),
               lambda k: ('v_and_b32 v%d, 0xffff0000, v%d' % (t(k), t(k))) if k % 2 else ('v_lshlrev_b32 v%d, 16, v%d' % (t(k), t(k+1)))]
        st = [lambda k: 'v_lshlrev_b32 v%d, 16, v%d' % (x(k), x(k)),
              lambda k: 'v_sub_f32 v%d, v%d, v%d' % (t(k), x(k), mm(k))] + rnd + [
              lambda k: 'v_mul_f32 v%d, v%d, v%d' % (t(k), t(k), mm(k)+1)] + rnd + [
              lambda k: 'v_mul_f32 v%d, v%d, v%d' % (t(k), t(k), T+20+k//4),
              lambda k: 'v_cvt_pk_bf16_f32 v%d, v%d, v%d' % (t(k), x(k), t(k)),
              lambda k: 'v_accvgpr_write_b32 a%d, v%d' % (A_XX+12*j+k, t(k))]
        for k0 in range(0, 12, 4):
            for s in st:
                for k in range(k0, k0+4):
                    tx = s(k)
                    if tx: I(tx)

FPA = 9; FPL = 8
def flag_lanes(a, two):
    a('v_and_b32 v14, 31, v0'); a('v_lshrrev_b32 v15, v14, s%d' % S_MASK); a('v_and_b32 v15, 1, v15'); a('v_xor_b32 v15, 1, v15')
    a('v_lshlrev_b32 v%d, 7, %s' % (FPA, 'v0' if two else 'v14'))
    a('v_lshl_add_u32 v%d, v15, 30, v%d' % (FPA, FPA))
def flag_poll(tag='hp'):
    def ld(a):
        a('buffer_load_dword v%d, v%d, %s, s%d offen sc1' % (FPL, FPA, WSR, S_PF), tag)
    def chk(a):
        a('v_cmp_ne_u32 vcc, s%d, v%d' % (S_NONCE, FPL))
        a('s_nop 1')
        a('s_or_b32 s4, vcc_lo, vcc_hi'); a('s_and_b32 s4, s4, s%d' % S_MASK)
        a('s_cmp_eq_u32 s4, 0')
    return ld, chk

def b_common(a, ssm, part=0):
  if part != 2:
    a('s_mul_i32 s%d, s%d, %d' % (S_HBB, S_MT, 8*HF_RB)); a('s_mul_i32 s3, s%d, %d' % (S_SP, 72*1024))
    a('s_add_u32 s%d, s%d, s3' % (S_HBB, S_HBB)); a('s_add_u32 s%d, s%d, %d' % (S_HBB, S_HBB, HF_OFF))
    a('s_lshl_b32 s4, s%d, 3' % S_W)
    a('v_add_u32 v14, s4, v0'); a('v_and_b32 v14, 31, v14'); a('v_and_b32 v15, 32, v0'); a('v_add_u32 v14, v14, v15')
    a('s_mul_i32 s3, s%d, %d' % (S_W, 18*1024)); a('v_lshl_add_u32 v%d, v14, 4, s3' % VB_HO)
  if part != 1:
    a('s_mul_i32 s%d, s%d, 48' % (S_TEAM, S_MT)); a('s_add_u32 s%d, s%d, s%d' % (S_TEAM, S_TEAM, S_NT))
    if ssm:
        a('s_lshl_b32 s3, s%d, 14' % S_TEAM); a('s_add_u32 s%d, s3, %d' % (S_PB, PY_OFF))
        a('s_lshl_b32 s3, s%d, 12' % S_W); a('v_lshl_add_u32 v%d, v0, 4, s3' % VB_PO)
    else:
        a('s_lshl_b32 s3, s%d, 13' % S_TEAM); a('s_mul_i32 s4, s%d, %d' % (S_SP, 64*6*8192)); a('s_add_u32 s3, s3, s4'); a('s_add_u32 s%d, s3, %d' % (S_PB, PF_OFF))
        a('s_lshl_b32 s3, s%d, 11' % S_W); a('v_lshl_add_u32 v%d, v0, 4, s3' % VB_PO)
    for q in range(1, 4):
        a('s_sub_u32 s3, s%d, %d' % (S_W, q)); a('s_and_b32 s3, s3, 3'); a('s_mul_i32 s3, s3, 9216'); a('s_add_u32 s3, s3, %d' % ((q-1)*3072 + SLAB))
        a('v_lshl_add_u32 v%d, v0, 4, s3' % (VB_RR+q-1))
    a('s_mul_i32 s3, s%d, 9216' % S_W); a('s_add_u32 s3, s3, %d' % SLAB); a('v_lshl_add_u32 v%d, v0, 4, s3' % VB_RW)

def phaseB(a, ssm, st):
    NH = P('NHS', 24) if ssm else P('NHF', 18)
    hslot = lambda n: VB_H + 4*(n % NH)
    KE = P('KE', 8)
    seq = [(0, k) for k in range(KE)] + [(1, k) for k in range(KE)] + [(0, k) for k in range(KE, 18)] + [(1, k) for k in range(KE, 18)]
    seq += [(i, ks) for i in range(2, 8) for ks in range(18)]
    if ssm: seq = [(i, ks) for i in range(8) for ks in range(18)]
    def hload(a, n):
        i, ks = seq[n]
        if n == 0 or seq[n-1][0] != i:
            a('s_mul_i32 s%d, s%d, %d' % (S_HN, S_ORD+i, HF_RB)); a('s_add_u32 s%d, s%d, s%d' % (S_HN, S_HN, S_HBB))
            if ks: a('s_add_u32 s%d, s%d, %d' % (S_HN, S_HN, (ks//4)*4096))
        elif ks % 4 == 0: a('s_add_u32 s%d, s%d, 4096' % (S_HN, S_HN))
        a('buffer_load_dwordx4 %s, v%d, %s, s%d offen offset:%d sc1' % (vr(hslot(n), 4), VB_HO, WSR, S_HN, (ks % 4)*1024), 'h%d' % n)
    a.tagcount = {}
    a.vm = ['st']; a.seen |= {'st'}
    nld = [0]; okl = [ssm]
    def next_h(a):
        if nld[0] < 144: hload(a, nld[0]); nld[0] += 1
    a('s_add_u32 s%d, s%d, %d' % (S_TF, S_T4, HFL_OFF))
    if ssm:
        for i, r in enumerate((0, 2, 4, 6, 1, 3, 3, 3)): a('s_mov_b32 s%d, %d' % (S_ORD+i, r))
        a('s_mov_b32 s%d, 1' % S_SHORT); a('s_mov_b32 s%d, 0' % S_T3)
        for k2 in range(12 + TDN, 18):
            for t in w2_dma(k2): a(t, 'v%d' % k2)
        b_common(a, ssm)
    else:
        for i in range(3):
            a('s_add_u32 s3, s%d, %d' % (S_SP, i+1)); a('s_and_b32 s3, s3, 3'); a('s_lshl_b32 s%d, s3, 1' % (S_ORD+i)); a('s_add_u32 s%d, s%d, 1' % (S_ORD+3+i, S_ORD+i))
        b_common(a, ssm, 1)
        for _ in range(P('HBURST', 10)): next_h(a)
        a('s_lshl_b32 s%d, s%d, 1' % (S_ORD+6, S_SP)); a('s_add_u32 s%d, s%d, 1' % (S_ORD+7, S_ORD+6))
        xx_setup(a)
        b_common(a, ssm, 2)
    a('v_mov_b32 v%d, v%d' % (VB_RD, V_RDB))
    for ks in range(6, 12): w2_read(a, ks, ssm)
    a('v_subrev_u32 v%d, %d, v%d' % (VB_RD, SLAB, V_RDB))
    a('s_waitcnt lgkmcnt(0)')
    a.wait_vm('st'); a('s_barrier')
    a('buffer_store_dword v%d, v%d, %s, s%d offen sc1' % (V_PL, V_PA, WSR, S_TF), 'fl')
    nstamp(a, 'flg')
    if ssm:
        if TDN < 6: a.wait_vm('v17')
        for ks in range(12, 18): w2_read(a, ks, ssm)
        a('s_waitcnt lgkmcnt(0)')
        a('B_SSM2:')
        a.vm = []
        for _ in range(P('HBURST', 10)): next_h(a)
    S = Sched(a); R = S.stream('red'); G = S.stream('xchg'); C = S.stream('chain')
    C.gate = lambda: not R.q and 'prepA' in a.seen
    if not ssm:
        XR = VB_H + 4*NH
        L = [XR + 4*k for k in range(6)]
        PSr = [XR+24+k for k in range(8)] + [VB_RB+36+k for k in range(4)]
        psA = lambda k: PSr[k]
        yA = L[:4]
        acq = [accr(0, dt) + 4*q for q in (1, 2, 3) for dt in range(3)]
        fB = L[4:6] + acq[:4]; yB = [hslot(126+k) for k in range(4)]
        psB = lambda k: acq[6 + k//4] + k % 4
    if not ssm:
        I = G.ins
        l2, c2 = flag_poll('hl')
        I('s_lshl_b32 s3, s%d, 3' % S_SP); I('s_lshl_b32 s3, 0xff, s3'); I('s_lshl_b32 s5, s%d, 2' % S_SP); I('s_lshl_b32 s5, 0x3f, s5')
        I('s_or_b32 s3, s3, s5'); I('s_and_b32 s%d, s%d, s3' % (S_MASK, S_MASK))
        I('s_add_u32 s%d, s%d, %d' % (S_PF, S_PF, HFL_OFF - HEF_OFF))
        for k2 in range(12 + TDN, 18):
            for t in w2_dma(k2): I(t, 'v%d' % k2, P('D15', 6) + P('D15S', 2)*(k2-12-TDN), P('D15D', 0) if 'lds' in t else 0)
        C.gate, gsave = None, C.gate
        C.fn(l2, 2, P('LP0', 16)); C.fn(lambda a: setattr(C, 'gate', gsave), 0)
        S.streams = [C, R, G]
        I('s_mul_i32 s5, s%d, 12' % S_SP); I('s_add_u32 s5, s5, s%d' % S_TEAM); I('s_lshl_b32 s5, s5, 13')
        for src in range(3):
            I('s_sub_u32 s3, s%d, %d' % (S_SP, src+1)); I('s_and_b32 s3, s3, 3'); I('s_mul_i32 s3, s3, %d' % (64*6*8192))
            I('s_add_u32 s3, s3, s5'); I('s_add_u32 s%d, s3, %d' % (S_FB+src, PF_OFF))
        I('s_lshl_b32 s5, s5, 1'); I('s_add_u32 s%d, s5, %d' % (S_T2, PY_OFF)); I('s_mov_b32 s%d, 0' % S_T3)
        tmp = Asm()
        for ks in range(12, 18): w2_read(tmp, ks, False)
        for k, t in enumerate(tmp.lines):
            if k % 6 == 0 and k//6 >= TDN: G.fn(lambda a, k=k: a.wait_vm('v%d' % (12 + k//6)), 1, P('RDAT', 40) + P('RDS', 3)*(k//6))
            I(t.strip(), 'wr%d' % (12 + k//6))
        I('s_lshl_b32 s3, s%d, 12' % S_W); I('v_lshl_add_u32 v%d, v0, 4, s3' % VB_RD)
        G.fn(lambda a: None, 0, P('LPC', 33) + 1)
        xx_fill(G)
    for n in range(144):
        i, ks = seq[n]; s = i & 1; p = n // 18
        if ks == 0:
            S.note = None; S.drain(('acc', s))
            if S.note: sys.stderr.write('  B forced drain at block %d: %s\n' % (i, S.note))
        if n % 18 == 0:
            if ssm and p == 6:
                S.drain()
                a('s_cmp_eq_u32 s%d, 1' % S_SHORT); a('s_cbranch_scc1 B_SSM_TAIL')
            if p in (0, 7): stamp(a, st)
            nstamp(a, 'b%d' % p)
        base = S.mf
        if n > 0 and seq[n-1][1] == 17:
            j = seq[n-1][0]
            reduce_fill(R, j, base + 2, ssm or j < 6, ssm, None, 1, 1 if (not ssm and j == 0) else P('WRD', 2))
        if not ssm and 'lat' in X and n == 18*5:
            a('s_waitcnt vmcnt(0)'); nstamp(a, 'l0'); a('s_waitcnt lgkmcnt(0)')
            a(ffn_loads(L)[0]); a('s_waitcnt vmcnt(0)'); nstamp(a, 'l1'); a('s_waitcnt lgkmcnt(0)')
            a(ffn_loads(L)[4]); a('s_waitcnt vmcnt(0)'); nstamp(a, 'l2'); a('s_waitcnt lgkmcnt(0)')
            a(y_loads(L)[0]); a('s_waitcnt vmcnt(0)'); nstamp(a, 'l3'); a('s_waitcnt lgkmcnt(0)')
            a('s_mul_i32 s3, s%d, %d' % (S_ORD+7, HF_RB)); a('s_add_u32 s3, s3, s%d' % S_HBB)
            a('buffer_load_dwordx4 %s, v%d, %s, s3 offen sc1' % (vr(L[0], 4), VB_HO, WSR)); a('s_waitcnt vmcnt(0)'); nstamp(a, 'l4'); a('s_waitcnt lgkmcnt(0)')
            a('buffer_store_dwordx4 %s, v%d, %s, s3 offen sc1' % (vr(L[0], 4), VB_HO, WSR)); a('s_waitcnt vmcnt(0)'); nstamp(a, 'l5'); a('s_waitcnt lgkmcnt(0)')
        if not ssm and n % 18 == 0:
            if p == (5 if 'lat' in X else 4):
                FA0 = P('FA0', 0); FSP = P('FSP', 12)
                for k, t in enumerate(ffn_loads(L)): G.ins(t, 'fA', base + FA0 + FSP*k)
                checked(G, 'fA', ffn_loads(L), L, P('CHKD', 40))
                presum(G, L, psA)
                for src in range(3): G.ins('s_add_u32 s%d, s%d, %d' % (S_FB+src, S_FB+src, 6*8192))
            if p == 6:
                for k, t in enumerate(y_loads(yA)): G.ins(t, 'yA', base + P('YAAT', 0) + P('YSP', 7)*k)
                for k, t in enumerate(ffn_loads(fB)[:2]): G.ins(t, 'fB', 0, P('YSP', 7))
                checked(G, 'yA', y_loads(yA), yA, P('CHKD2', 22))
                prep_s(G, 0, yA); G.fn(lambda a: a.seen.add('prepA'), 0)
                G.ins('s_add_u32 s%d, s%d, %d' % (S_T2, S_T2, 6*16384))
            if p == 7:
                G.fn(lambda a: ('rr6' in a.seen) or sys.exit('order'), 0, base + P('FBAT', 24))
                lb = ffn_loads(fB)
                for t in lb[2:4]: G.ins(t, 'fB', 0, 3)
                for t in y_loads(yB): G.ins(t, 'yB', 0, 3)
                for t in lb[4:6]: G.ins(t, 'fB', 0, 3)
                chain(C, 0, psA, yA)
        if ssm and i in (0, 2, 4):
            l2, c2 = flag_poll('hp%d' % i)
            if ks == 0: S.must_fn(lambda a: (a('s_add_u32 s%d, s%d, s%d' % (S_PF, S_PF, S_T3)), l2(a)))
            if ks == 35 - NH:
                assert nld[0] <= 18*(i+2)
                S.must_fn(lambda a: (a.wait_vm('hp%d' % i), poll_loop(a, l2, c2, 4)))
        if not okl[0] and S.mf >= P('LPC', 33):
            S.must_fn(lambda a: (nstamp(a, 'lp0'), a.wait_vm('hl'), poll_loop(a, l2, c2, 1, 'r_l'), nstamp(a, 'lp1')))
            okl[0] = True; S.streams = [R, G, C]
            for _ in range(P('LBURST', 6)):
                if nld[0] < n + NH: S.must_fn(next_h)
        S.fill(reserve=1)
        S.must_fn(lambda a: a.wait_vm('h%d' % n))
        if not ssm and i == 0 and ks >= 12:
            assert a.tagcount.get('wr%d' % ks, 0) == 6, ks
            S.must_fn(lambda a: a.wait_lg('wr%d' % ks))
        for dt in range(3):
            d = vr(accr(s, dt), 16)
            S.mfma('v_mfma_f32_32x32x16_bf16 %s, %s, %s, %s' % (d, vr(hslot(n), 4), wfrag(ks, dt), d if ks else '0'))
            lim = n + NH + (1 if dt == 2 else 0)
            if not okl[0]: lim = min(lim, 2*KE)
            if nld[0] < min(lim, 144) and (dt != 1 or n < 36): S.must_fn(next_h)
    sys.stderr.write('phaseB ssm=%d pending at end: %s\n' % (ssm, S.pending()))
    stamp(a, st); nstamp(a, 'e0')
    S.mf += 1000
    if ssm:
        S.drain()
        a('B_SSM_TAIL:')
        a('s_nop 11')
        a.lg = []
        reduce_fill(R, 7, 0, True, True); S.drain()
        stamp(a, st)
    else:
        S.drain(stream=R); S.drain(stream=G)
        restA = C.q; C.q = []
        reduce_fill(R, 7, 0, False, False)
        wr = R.q[:9]; rest = R.q[9:]
        R.q = []
        k = 0
        while wr or restA[k:]:
            if wr: R.q.append(wr.pop(0))
            R.q += restA[k:k+6]; k += 6
        S.drain()
        stamp(a, st); nstamp(a, 'e1')
        R.q = rest[:10]; S.drain()
        checked(G, 'yB', y_loads(yB), yB, 0); prep_s(G, 1, yB); S.drain()
        R.q = rest[10:]; S.drain()
        nstamp(a, 'e2')
        checked(G, 'fB', ffn_loads(fB), fB, 0); presum(G, fB, psB)
        G.ins('s_mov_b32 s%d, %d' % (S_T3, 16*2304))
        chain(G, 1, psB, yB); S.drain()
        a('s_lshl_b32 s3, s%d, 9' % S_SP); a('s_add_u32 s3, s3, s%d' % S_TEAM); a('s_lshl_b32 s4, s%d, 12' % S_W); a('s_add_u32 s3, s3, s4')
        a('s_cmp_eq_u32 s3, %d' % (7*48))
        a('s_cbranch_scc0 NOBUMP')
        a('v_mov_b32 v14, %d' % NONCE_OFF); a('v_mov_b32 v15, s%d' % S_NONCE)
        a('s_mov_b64 exec, 1')
        a('buffer_store_dword v15, v14, %s, 0 offen sc1' % WSR)
        a('NOBUMP:')
    stamp_flush(a, st, 0, S_WS, S_W, 14)
    a('s_endpgm')

def ln_part(a):
    X = 48; F = 72; T = 112
    a('s_lshl_b32 s3, s2, 1'); a('s_add_u32 s3, s3, s%d' % S_W)
    a('s_lshr_b32 s4, s3, 4'); a('s_lshl_b32 s4, s4, 6')
    a('s_and_b32 s5, s3, 1'); a('s_lshl_b32 s5, s5, 5'); a('s_add_u32 s4, s4, s5')
    a('s_bfe_u32 s5, s3, 0x10003'); a('s_lshl_b32 s5, s5, 4'); a('s_add_u32 s4, s4, s5')
    a('s_bfe_u32 s5, s3, 0x20001'); a('s_lshl_b32 s5, s5, 2'); a('s_add_u32 s4, s4, s5')
    a('v_and_b32 v%d, 3, v0' % T); a('v_lshrrev_b32 v%d, 2, v0' % (T+1))
    a('v_add_u32 v%d, s4, v%d' % (T+2, T))
    a('v_mul_u32_u24 v%d, 1152, v%d' % (T+3, T+2)); a('v_lshl_add_u32 v%d, v%d, 4, v%d' % (T+3, T+1, T+3))
    for k in range(4): a('v_mov_b32 v%d, 0' % (X+16+k))
    a('s_waitcnt lgkmcnt(0)'); nstamp(a, 'ln0')
    for n in range(4):
        a('global_load_dwordx4 %s, v%d, s[%d:%d] offset:%d%s' % (vr(X+4*n, 4), T+3, SP0, SP0+1, 256*n, XNT), 'lx')
    a('s_mov_b32 exec_hi, 0')
    a('global_load_dwordx4 %s, v%d, s[%d:%d] offset:1024%s' % (vr(X+16, 4), T+3, SP0, SP0+1, XNT), 'lx')
    a('s_mov_b32 exec_hi, -1')
    ws_srd(a)
    a('s_load_dword s%d, s[%d:%d], %d' % (S_NONCE, S_WS, S_WS+1, NONCE_OFF))
    a('s_lshr_b32 s5, s3, 3'); a('s_mul_i32 s5, s5, 36864'); a('s_and_b32 s6, s3, 7'); a('s_lshl_b32 s6, s6, 7'); a('s_add_u32 s5, s5, s6')
    a('s_add_u32 s5, s5, %d' % XF_OFF)
    a('v_lshrrev_b32 v%d, 3, v0' % (T+4)); a('v_lshlrev_b32 v%d, 10, v%d' % (T+4, T+4))
    a('v_and_b32 v%d, 7, v0' % (T+5)); a('v_lshl_add_u32 v%d, v%d, 4, v%d' % (T+4, T+5, T+4))
    a('v_lshlrev_b32 v%d, 3, v%d' % (T+2, T+2))
    MK = S_T; HM = S_T2
    a('s_mov_b32 s%d, 0xffff0000' % HM)
    DRY = P('DRY', 0)
    if DRY:
        a('s_mov_b32 s%d, 0' % MK); a('s_mov_b64 exec, 0')
    else:
        a('s_mov_b32 s%d, -1' % MK); a('s_waitcnt vmcnt(0)'); nstamp(a, 'ln1')
    a('LN_BODY:')
    def unpack(n): a('v_lshlrev_b32 v%d, 16, v%d' % (F+2*n, X+n)); a('v_and_b32 v%d, s%d, v%d' % (F+2*n+1, HM, X+n))
    A = T+8
    def allred(r):
        return ['v_add_f32_dpp v%d, v%d, v%d row_ror:4 row_mask:0xf bank_mask:0xf' % (r, r, r),
                'v_add_f32_dpp v%d, v%d, v%d row_ror:8 row_mask:0xf bank_mask:0xf' % (r, r, r),
                'v_mov_b32 v%d, v%d' % (T+6, r), 'v_permlane16_swap_b32 v%d, v%d' % (r, T+6), 'v_add_f32 v%d, v%d, v%d' % (r, r, T+6),
                'v_mov_b32 v%d, v%d' % (T+6, r), 'v_permlane32_swap_b32 v%d, v%d' % (r, T+6), 'v_add_f32 v%d, v%d, v%d' % (r, r, T+6)]
    pr = lambda r: vr(r, 2)
    Q = A+4
    for n in range(20):
        unpack(n)
        if n >= 5:
            k = n - 1
            a('v_pk_add_f32 %s, %s, %s' % (pr(Q+2*(k % 4)), pr(F+2*(k-4)) if k < 8 else pr(Q+2*(k % 4)), pr(F+2*k)))
    a('v_pk_add_f32 %s, %s, %s' % (pr(Q+6), pr(Q+6), pr(F+38)))
    a('v_pk_add_f32 %s, %s, %s' % (pr(Q), pr(Q), pr(Q+2))); a('v_pk_add_f32 %s, %s, %s' % (pr(Q+4), pr(Q+4), pr(Q+6)))
    a('v_pk_add_f32 %s, %s, %s' % (pr(Q), pr(Q), pr(Q+4))); a('v_add_f32 v%d, v%d, v%d' % (A+2, Q, Q+1))
    for t in allred(A+2): a(t)
    a('v_mul_f32 v%d, 0x%08x, v%d' % (A+2, f32bits(1.0/576), A+2))
    a('v_cvt_pk_bf16_f32 v%d, v%d, v%d' % (A, A+2, A+2)); a('v_lshlrev_b32 v%d, 16, v%d' % (A, A))
    a('v_sub_f32 v%d, v%d, v%d' % (A+2, A+2, A))
    for n in range(20):
        if n == 16: a('s_mov_b32 exec_hi, 0')
        a('v_pk_add_f32 %s, %s, %s op_sel_hi:[1,0] neg_lo:[0,1] neg_hi:[0,1]' % (pr(F+2*n), pr(F+2*n), pr(A)))
        if n % 4 == 3:
            for k in range(n-3, n+1):
                d = pr(F+2*k); q = pr(Q+2*(k % 4))
                a(('v_pk_mul_f32 %s, %s, %s' % (q, d, d)) if k < 4 else ('v_pk_fma_f32 %s, %s, %s, %s' % (q, d, d, q)))
    a('s_mov_b32 exec_hi, s%d' % MK)
    ch = ['v_pk_add_f32 %s, %s, %s' % (pr(Q), pr(Q), pr(Q+2)), 'v_pk_add_f32 %s, %s, %s' % (pr(Q+4), pr(Q+4), pr(Q+6)),
          'v_pk_add_f32 %s, %s, %s' % (pr(Q), pr(Q), pr(Q+4)), 'v_add_f32 v%d, v%d, v%d' % (A+1, Q, Q+1)] + allred(A+1) + [
          'v_mul_f32 v%d, 0x%08x, v%d' % (A+1, f32bits(1.0/576), A+1),
          'v_fma_f32 v%d, -v%d, v%d, v%d' % (A+1, A+2, A+2, A+1),
          'v_cvt_pk_bf16_f32 v%d, v%d, v%d' % (A+1, A+1, A+1), 'v_lshlrev_b32 v%d, 16, v%d' % (A+1, A+1),
          'v_add_f32 v%d, 0x%08x, v%d' % (A+1, f32bits(1e-5), A+1),
          'v_cvt_pk_bf16_f32 v%d, v%d, v%d' % (A+1, A+1, A+1), 'v_lshlrev_b32 v%d, 16, v%d' % (A+1, A+1),
          'v_sqrt_f32 v%d, v%d' % (A+1, A+1),
          'v_cvt_pk_bf16_f32 v%d, v%d, v%d' % (A+1, A+1, A+1), 'v_lshlrev_b32 v%d, 16, v%d' % (A+1, A+1),
          'v_rcp_f32 v%d, v%d' % (A+1, A+1)]
    for n in range(21):
        if n < 20: a('v_cvt_pk_bf16_f32 v%d, v%d, v%d' % (X+n, F+2*n, F+2*n+1))
        if ch: a(ch.pop(0))
        if n > 0: unpack(n-1)
    for t in ch: a(t)
    for q in range(5):
        if q == 4: a('s_mov_b32 exec_hi, 0')
        ns = range(4*q, 4*q+4)
        for n in ns: a('v_pk_mul_f32 %s, %s, %s op_sel:[0,1] op_sel_hi:[1,1]' % (pr(F+2*n), pr(F+2*n), pr(A)))
        for n in ns: a('v_cvt_pk_bf16_f32 v%d, v%d, v%d' % (X+n, F+2*n, F+2*n+1))
        if DRY: a('s_cbranch_execz LN_S%d' % q)
        a('buffer_store_dwordx4 %s, v%d, %s, s5 offen sc1' % (vr(X+4*q, 4), T+4, WSR))
        if q < 4: a('s_add_u32 s5, s5, 8192')
        if DRY and q < 4: a('LN_S%d:' % q)
    if DRY:
        a('s_branch LN_REAL_DONE')
        a('LN_S4:')
        a('s_mov_b32 s%d, -1' % MK); a('s_mov_b64 exec, -1'); nstamp(a, 'lnd')
        a('s_waitcnt vmcnt(0)'); nstamp(a, 'ln1')
        a('s_branch LN_BODY')
        a('LN_REAL_DONE:')
    a('s_mov_b32 exec_lo, 15')
    a('s_mov_b32 s5, %d' % STAT_OFF)
    assert A % 2 == 0
    a('buffer_store_dwordx2 %s, v%d, %s, s5 offen sc1' % (vr(A, 2), T+2, WSR))
    a('s_mov_b64 exec, -1'); nstamp(a, 'ln2')
    a('s_waitcnt lgkmcnt(0)')
    nonce_mix(a)
    a('s_lshl_b32 s3, s3, 7'); a('s_add_u32 s3, s3, %d' % LNF_OFF)
    a('v_mov_b32 v%d, 0' % T); a('v_mov_b32 v%d, s%d' % (T+1, S_NONCE))
    a('s_mov_b64 exec, 1')
    a('s_waitcnt vmcnt(0)')
    a('buffer_store_dword v%d, v%d, %s, s3 offen sc1' % (T+1, T, WSR)); nstamp(a, 'ln3')
    a('s_mov_b64 exec, -1')

def nonce_mix(a):
    a('s_mul_i32 s%d, s%d, 0x0019660d' % (S_NONCE, S_NONCE))
    a('s_add_u32 s%d, s%d, 0x3c6ef35f' % (S_NONCE, S_NONCE))

def light_part(a):
    if P('LBAR', 1): a('s_barrier')
    a('s_cmp_eq_u32 s%d, 0' % S_W); a('s_cbranch_scc1 LIGHT2')
    a('s_load_dwordx4 s[%d:%d], s[0:1], %d' % (SP0, SP0+3, A_CRE))
    a('s_sub_u32 s3, s2, 240'); a('s_mul_i32 s3, s3, 3'); a('s_add_u32 s3, s3, s%d' % S_W); a('s_sub_u32 s3, s3, 1')
    a('s_lshr_b32 s4, s3, 3'); a('s_mul_i32 s4, s4, %d' % (96*1152))
    a('s_bfe_u32 s5, s3, 0x10001'); a('s_mul_i32 s5, s5, 576'); a('s_add_u32 s4, s4, s5')
    a('s_and_b32 s5, s3, 1'); a('s_mul_i32 s5, s5, 288'); a('s_add_u32 s4, s4, s5')
    a('v_and_b32 v1, 31, v0'); a('v_mul_u32_u24 v1, 1152, v1'); a('v_lshrrev_b32 v2, 5, v0'); a('v_lshl_add_u32 v1, v2, 4, v1'); a('v_add_u32 v1, s4, v1')
    a('v_add_u32 v2, %d, v1' % (32*1152)); a('v_add_u32 v3, %d, v1' % (64*1152))
    a('v_lshlrev_b32 v4, 4, v0')
    a('s_mul_i32 s6, s3, 27648'); a('s_add_u32 s6, s6, %d' % CF_OFF)
    a('s_waitcnt lgkmcnt(0)')
    a('s_bitcmp1_b32 s3, 2')
    a('s_cselect_b32 s%d, s%d, s%d' % (SP0, SP0+2, SP0)); a('s_cselect_b32 s%d, s%d, s%d' % (SP0+1, SP0+3, SP0+1))
    for f in range(27):
        a('global_load_dwordx4 %s, v%d, s[%d:%d] offset:%d' % (vr(16+4*f, 4), 1 + f % 3, SP0, SP0+1, (f//3)*32), 'c%d' % f)
    for f in range(27):
        a.wait_vm('c%d' % f)
        a('buffer_store_dwordx4 %s, v4, %s, s6 offen offset:%d sc1' % (vr(16+4*f, 4), WSR, (f % 4)*1024))
        if f % 4 == 3: a('s_add_u32 s6, s6, 4096')
    a('s_lshl_b32 s3, s3, 7'); a('s_add_u32 s3, s3, %d' % CFL_OFF)
    a('v_mov_b32 v1, 0'); a('v_mov_b32 v2, s%d' % S_NONCE)
    a('s_mov_b64 exec, 1')
    a('s_waitcnt vmcnt(0)')
    a('buffer_store_dword v2, v1, %s, s3 offen sc1' % WSR)
    a('s_mov_b64 exec, -1')
    a('LIGHT2:')
    a.vm = []
    a('s_cmp_ge_u32 s2, 252'); a('s_cbranch_scc1 KEND')
    a('s_sub_u32 s3, s2, 240'); a('s_lshr_b32 s%d, s3, 1' % S_NT); a('s_and_b32 s3, s3, 1')
    a('s_lshl_b32 s4, s3, 1'); a('s_add_u32 s4, s4, 5')
    for i in range(8): a('s_add_u32 s%d, s4, %d' % (S_ORD+i, 8*i))
    a('s_mov_b32 s%d, 0' % S_MT); a('s_mov_b32 s%d, 4' % S_SP); a('s_mov_b32 s%d, 0' % S_SHORT); a('s_mov_b32 s%d, 0x3ffff' % S_MASK)
    a('s_mov_b32 s%d, %d' % (S_PF, HSF_OFF))
    a('v_min_u32 v1, 47, v0'); a('v_lshlrev_b32 v1, 7, v1'); a('s_mov_b32 s%d, %d' % (S_T3, CFL_OFF))
    ldc = 'buffer_load_dword v2, v1, %s, s%d offen sc1' % (WSR, S_T3)
    a(ldc); a('s_waitcnt vmcnt(0)')
    poll_loop(a, lambda a: a(ldc), chk_all_eq(2), 8)
    a('s_lshl_b32 s4, s%d, 2' % S_NT); a('s_add_u32 s4, s4, s%d' % S_W); a('s_mul_i32 s4, s4, 55296'); a('s_add_u32 s4, s4, %d' % CF_OFF)
    a('v_lshlrev_b32 v4, 4, v0')
    for f in range(54):
        a('buffer_load_dwordx4 %s, v4, %s, s4 offen offset:%d sc1' % (ar(4*f, 4), WSR, (f % 4)*1024))
        if f % 4 == 3: a('s_add_u32 s4, s4, 4096')
    flag_lanes(a, 1)
    a('s_mov_b32 s%d, 8192' % S_T3)
    ld, chk = flag_poll()
    ld(a); a('s_waitcnt vmcnt(0)')
    b_common(a, True)
    poll_loop(a, ld, chk, P('LSLEEP', 6))
    a('s_branch B_SSM2')

def early_pair(a, se, dst):
    a('s_mul_i32 s3, s%d, 86' % se); a('s_lshr_b32 s3, s3, 8'); a('s_mul_i32 s4, s3, 3'); a('s_sub_u32 s4, s%d, s4' % se)
    a('s_cmp_lt_u32 s4, 2'); a('s_cselect_b32 s4, s4, 5')
    a('s_mul_i32 s3, s3, 9'); a('s_add_u32 s3, s3, s4'); a('s_lshl_b32 s%d, s3, 7' % dst)
def mixed_pair(a):
    a('s_lshr_b32 s3, s%d, 1' % S_N); a('s_mul_i32 s3, s3, 9'); a('s_and_b32 s%d, s%d, 1' % (S_SW, S_N))
    a('s_lshl_b32 s4, s%d, 1' % S_SW); a('s_sub_u32 s3, s3, s4'); a('s_add_u32 s3, s3, 6')
    a('s_add_u32 s5, s%d, 54' % S_N); a('s_cmp_lt_u32 s%d, 16' % S_N); a('s_cselect_b32 s3, s3, s5')
    a('s_lshl_b32 s%d, s3, 7' % (S_P+1)); a('s_lshl_b32 s%d, s%d, 11' % (S_SW, S_SW))
def late_pair(a):
    a('s_lshr_b32 s3, s%d, 2' % S_N); a('s_and_b32 s4, s%d, 3' % S_N); a('s_mul_i32 s3, s3, 9'); a('s_add_u32 s3, s3, s4')
    a('s_cmp_lt_u32 s4, 2'); a('s_cselect_b32 s4, 2, 5'); a('s_add_u32 s3, s3, s4'); a('s_lshl_b32 s%d, s3, 7' % (S_P+2))

def gen():
    a = Asm()
    name = PFX + '_kernel'
    a(kernel_header(name))
    a('KSTART:')
    a('s_cmp_ge_u32 s2, 256'); a('s_cbranch_scc1 KEND')
    st = Stamps(); stamp(a, st); nstamp(a, 'start')
    for nm in ('ln0', 'lnd', 'ln1', 'ln2', 'ln3', 'w0a', 'w0b'): nstamp(a, nm)
    a('s_load_dwordx2 s[%d:%d], s[0:1], %d' % (SP0, SP0+1, A_X))
    a('s_load_dwordx2 s[%d:%d], s[0:1], %d' % (SP0+2, SP0+3, D_WS))
    a('s_load_dwordx2 s[%d:%d], s[0:1], %d' % (SP0+4, SP0+5, B_W1))
    a('s_load_dwordx4 s[56:59], s[0:1], %d' % A_BRE)
    a('s_load_dwordx4 s[60:63], s[0:1], %d' % A_LRE)
    a('s_load_dwordx2 s[54:55], s[0:1], %d' % A_LDT)
    a('v_lshrrev_b32 v13, 6, v0')
    a('v_readfirstlane_b32 s%d, v13' % S_W)
    a('v_and_b32 v0, 63, v0')
    a('s_cmp_ge_u32 s%d, 2' % S_W); a('s_cbranch_scc1 SKIP_LN')
    ln_part(a)
    a.vm = []
    a('s_branch LN_DONE')
    a('SKIP_LN:')
    if P('CODEPF', 1):
        a('s_getpc_b64 s[4:5]'); a('PFPC:')
        a('s_sub_u32 s4, s4, PFPC-KSTART'); a('s_subb_u32 s5, s5, 0')
        a('s_lshr_b32 s6, s2, 3'); a('s_and_b32 s6, s6, 7'); a('s_add_u32 s6, s6, 1'); a('s_lshl_b32 s6, s6, 13')
        a('s_cmp_eq_u32 s%d, 3' % S_W); a('s_cselect_b32 s6, 0, s6')
        a('v_lshl_add_u32 v%d, v0, 7, s6' % V_PL)
        a('v_min_u32 v%d, KLAST-KSTART, v%d' % (V_PL, V_PL))
        a('global_load_dword v%d, v%d, s[4:5]' % (V_PL+3, V_PL))
        a.vm = []
    a('LN_DONE:')
    a('s_waitcnt lgkmcnt(0)')
    ws_srd(a)
    a('s_cmp_lt_u32 s%d, 2' % S_W); a('s_cbranch_scc1 HAVE_NONCE')
    a('s_load_dword s%d, s[%d:%d], %d' % (S_NONCE, S_WS, S_WS+1, NONCE_OFF))
    a('s_cmp_lt_u32 s2, 240'); a('s_cbranch_scc1 HAVE_NONCE')
    a('s_waitcnt lgkmcnt(0)'); nonce_mix(a)
    a('HAVE_NONCE:')
    a('s_cmp_lt_u32 s2, 240'); a('s_cbranch_scc1 HEAVY')
    light_part(a)
    a.vm = []
    a('HEAVY:')
    srd(a, S_W1, SP0+4, 576*9216)
    a('s_and_b32 s3, s2, 7'); a('s_lshr_b32 s4, s2, 3')
    a('s_lshr_b32 s5, s3, 1'); a('s_mul_i32 s5, s5, 30'); a('s_add_u32 s5, s5, s4')
    a('s_lshr_b32 s6, s5, 2')
    a('s_mul_i32 s7, s6, 52'); a('s_lshr_b32 s7, s7, 8')
    a('s_mul_i32 s4, s7, 5'); a('s_sub_u32 s4, s6, s4')
    a('s_mul_i32 s6, s7, 3'); a('s_add_u32 s6, s6, s4')
    a('s_lshl_b32 s7, s7, 1'); a('s_add_u32 s7, s7, s4'); a('s_add_u32 s7, s7, 15')
    a('s_cmp_lt_u32 s4, 3'); a('s_cselect_b32 s%d, s6, s7' % S_N)
    a('s_and_b32 s5, s5, 3'); a('s_and_b32 s3, s3, 1'); a('s_lshl_b32 s3, s3, 2'); a('s_add_u32 s%d, s3, s5' % S_G)
    a('s_lshl_b32 s%d, s%d, 10' % (S_M0W, S_W))
    a('v_lshrrev_b32 v13, 3, v0'); a('v_and_b32 v14, 7, v0'); a('v_bfe_u32 v15, v0, 4, 1'); a('v_lshlrev_b32 v15, 2, v15'); a('v_xor_b32 v14, v14, v15')
    a('s_lshl_b32 s3, s%d, 3' % S_W); a('v_add_u32 v13, s3, v13')
    a('v_mul_u32_u24 v%d, 9216, v13' % V_WD); a('v_lshl_add_u32 v%d, v14, 4, v%d' % (V_WD, V_WD))
    def common2():
        a('s_mov_b32 s%d, 0x%08x' % (S_NL2E, f32bits(-LOG2E)))
        a('s_mul_i32 s%d, s%d, %d' % (S_XB, S_G, 8*36864)); a('s_add_u32 s%d, s%d, %d' % (S_XB, S_XB, XF_OFF))
        a('s_mul_i32 s%d, s%d, %d' % (S_HB, S_G, 8*HF_RB)); a('s_add_u32 s%d, s%d, %d' % (S_HB, S_HB, HF_OFF))
        a('s_mul_i32 s3, s%d, 73728' % S_W)
        a('v_bfe_u32 v14, v0, 2, 3'); a('v_lshlrev_b32 v14, 7, v14'); a('v_lshrrev_b32 v15, 5, v0'); a('v_lshl_add_u32 v14, v15, 6, v14')
        a('v_and_b32 v15, 3, v0'); a('v_lshl_add_u32 v14, v15, 4, v14'); a('v_add_u32 v%d, s3, v14' % V_XO)
        a('v_add_u32 v%d, 36864, v%d' % (V_XO+1, V_XO))
        a('s_mul_i32 s3, s%d, %d' % (S_W, 2*HF_RB))
        a('v_lshl_add_u32 v%d, v0, 4, s3' % V_HO); a('v_add_u32 v%d, %d, v%d' % (V_HO+1, HF_RB, V_HO))
        a('v_lshrrev_b32 v14, 5, v0'); a('v_lshlrev_b32 v14, 10, v14')
        a('v_bfe_u32 v15, v0, 2, 2'); a('v_lshl_add_u32 v14, v15, 7, v14')
        a('v_bfe_u32 v15, v0, 4, 1'); a('v_lshl_add_u32 v14, v15, 5, v14')
        a('v_and_b32 v15, 3, v0'); a('v_lshl_add_u32 v14, v15, 3, v14')
        a('v_bfe_u32 v15, v0, 3, 1'); a('v_lshl_add_u32 v%d, v15, 6, v14' % V_TR)
        a('v_xor_b32 v%d, 64, v%d' % (V_TR+1, V_TR))
    def w1_and_poll(tagp):
        nstamp(a, 'w1i')
        common2()
        a('v_and_b32 v%d, 15, v0' % V_PA); a('v_lshlrev_b32 v%d, 7, v%d' % (V_PA, V_PA))
        a('s_lshl_b32 s3, s%d, 13' % S_G); a('s_lshl_b32 s4, s%d, 11' % S_W); a('s_add_u32 s3, s3, s4'); a('s_add_u32 s%d, s3, %d' % (S_T3, LNF_OFF))
        ld = 'buffer_load_dword v%d, v%d, %s, s%d offen sc1' % (V_PL, V_PA, WSR, S_T3)
        a(ld); a('s_waitcnt vmcnt(0)')
        stamp(a, st); nstamp(a, 'pl0')
        poll_loop(a, lambda a: a(ld), chk_all_eq(V_PL))
        stamp(a, st); nstamp(a, 'pl1')
    def w0(mixed):
        L = 'W0SKIP%d' % mixed
        a('s_cmp_lt_u32 s%d, 2' % S_W); a('s_cbranch_scc1 %s' % L); nstamp(a, 'w0a')
        if P('WTOUCH', 0):
            a('s_and_b32 s3, s%d, 3' % S_G); a('s_mul_i32 s3, s3, %d' % (144*9216))
            a('s_cmp_eq_u32 s%d, 3' % S_W); a('s_cselect_b32 s4, s%d, s%d' % (S_P+1, S_P+(1 if mixed else 0))); a('s_add_u32 s3, s3, s4')
            a('v_min_u32 v%d, 47, v0' % V_PA); a('v_mul_u32_u24 v%d, 9216, v%d' % (V_PA, V_PA))
            for k in range(3):
                a('buffer_load_dword v%d, v%d, s[%d:%d], s3 offen' % (V_PL+3, V_PA, S_W1, S_W1+3))
                a('s_add_u32 s3, s3, %d' % (48*9216))
        if mixed:
            a('v_subrev_u32 v%d, %d, v%d' % (V_PA, 16*1152, V_BD))
            for n in range(18): dma_b(a, n//2, n % 2, 'w0'); dma_b(a, n//2, n % 2, 'w0', V_PA, -2048)
        else:
            a('v_subrev_u32 v%d, %d, v%d' % (V_PA, 16*9216, V_WD))
            for n in range(18): dma_w1(a, 0, 0, n, 'w0'); dma_w1(a, 0, 0, n, 'w0', V_PA, -2048)
        a('v_subrev_u32 v%d, %d, v%d' % (V_PA, 16*9216, V_WD))
        for n in range(18): dma_w1(a, 1, 1, n, 'w1'); dma_w1(a, 1, 1, n, 'w1', V_PA, -2048)
        nstamp(a, 'w0b'); a('s_waitcnt lgkmcnt(0)'); nonce_mix(a)
        a(L + ':')
        a.vm = []
    a('s_cmp_lt_u32 s%d, 18' % S_N); a('s_cbranch_scc1 A_MIXED')
    a('s_lshl_b32 s7, s%d, 1' % S_N); a('s_sub_u32 s7, s7, 36')
    early_pair(a, 7, S_P); a('s_add_u32 s7, s7, 1'); early_pair(a, 7, S_P+1); late_pair(a)
    w0(0); w1_and_poll(0)
    phaseA(a, False, st)
    a('s_branch A_DONE')
    nst = st.n; st.n = 1; a.vm = []; a.lg = []; a.seen = set()
    a('A_MIXED:')
    srd(a, S_BRE, 56, 576*1152); srd(a, S_BIM, 58, 576*1152)
    mixed_pair(a); late_pair(a)
    a('v_bfe_u32 v15, v13, 1, 3'); a('v_and_b32 v14, 7, v0'); a('v_xor_b32 v14, v14, v15')
    a('s_lshl_b32 s7, s%d, 5' % S_N); a('v_add_u32 v13, s7, v13')
    a('v_mul_u32_u24 v%d, 1152, v13' % V_BD); a('v_lshl_add_u32 v%d, v14, 4, v%d' % (V_BD, V_BD))
    w0(1)
    a('v_and_b32 v13, 31, v0'); a('v_lshrrev_b32 v14, 5, v0'); a('v_bfe_u32 v15, v0, 1, 3'); a('v_xor_b32 v14, v14, v15')
    a('v_lshlrev_b32 v14, 4, v14'); a('v_lshl_add_u32 v%d, v13, 7, v14' % V_BR)
    for e in range(1, 4): a('v_xor_b32 v%d, %d, v%d' % (V_BR+e, 32*e, V_BR))
    a('v_lshrrev_b32 v14, 5, v0'); a('s_lshl_b32 s4, s%d, 1' % S_W); a('v_add_u32 v%d, s4, v14' % R_SIDX)
    a('v_add_u32 v%d, s%d, v14' % (R_GH, S_G))
    a('v_mul_u32_u24 v%d, 80, v13' % R_TW); a('v_add_u32 v%d, 0x%x, v%d' % (R_TW, E_OFF - E_OFF % 65536, R_TW))
    a('v_lshl_add_u32 v%d, v%d, 3, v%d' % (R_EA, R_SIDX, R_TW)); a('v_add_u32 v%d, 0x%x, v%d' % (R_EA, E_OFF % 65536, R_EA))
    a('v_add_u32 v15, s7, v13')
    a('v_lshlrev_b32 v%d, 4, v15' % R_AW)
    a('v_mul_u32_u24 v14, 9216, v14'); a('v_add_u32 v%d, v14, v%d' % (R_AO, R_AW))
    a('v_min_u32 v14, 1, v%d' % R_SIDX); a('v_lshl_add_u32 v%d, v14, 30, v%d' % (R_AW, R_AW))
    a('v_lshlrev_b32 v15, 1, v15')
    a('global_load_ushort v%d, v15, s[60:61]' % R_T3); a('global_load_ushort v%d, v15, s[62:63]' % R_T4); a('global_load_ushort v%d, v15, s[54:55]' % R_ER)
    a('s_mul_i32 s%d, s%d, 9216' % (S_BB, S_G)); a('s_add_u32 s%d, s%d, %d' % (S_BB, S_BB, AGG_OFF))
    a('s_lshl_b32 s4, s%d, 11' % S_W); a('s_add_u32 s4, s4, %d' % TB_OFF)
    a('v_lshrrev_b32 v14, 5, v0'); a('v_lshlrev_b32 v14, 9, v14')
    a('v_bfe_u32 v15, v0, 2, 2'); a('v_lshl_add_u32 v14, v15, 6, v14')
    a('v_and_b32 v15, 1, v0'); a('v_lshl_add_u32 v14, v15, 5, v14')
    a('v_bfe_u32 v15, v0, 4, 1'); a('v_lshl_add_u32 v14, v15, 4, v14')
    a('v_bfe_u32 v15, v0, 1, 1'); a('v_lshl_add_u32 v14, v15, 3, v14')
    a('v_bfe_u32 v15, v0, 3, 1'); a('v_lshlrev_b32 v15, 4, v15'); a('v_xor_b32 v14, v14, v15')
    a('v_add_u32 v%d, s4, v14' % R_TRD)
    a('v_lshrrev_b32 v14, 5, v0'); a('v_lshlrev_b32 v14, 1, v14'); a('v_bfe_u32 v15, v0, 1, 2'); a('v_xor_b32 v14, v14, v15')
    a('v_lshlrev_b32 v14, 4, v14'); a('v_lshl_add_u32 v14, v13, 6, v14')
    a('v_add_u32 v%d, s4, v14' % R_TWA)
    w1_and_poll(1)
    a('s_lshr_b32 s4, s%d, 5' % S_SW); a('v_xor_b32 v%d, s4, v%d' % (V_TR, V_TR)); a('v_xor_b32 v%d, s4, v%d' % (V_TR+1, V_TR+1))
    a('s_lshl_b32 s4, s%d, 11' % S_N); a('s_add_u32 s4, s4, %d' % (288*1024)); a('s_add_u32 s%d, s4, s%d' % (S_HS, S_HB))
    phaseA(a, True, st)
    assert st.n == nst or not DIAG or STNAMES
    a('A_DONE:')
    a('s_nop 15')
    a.vm = []; a.lg = []; a.seen = set()
    a('s_cmp_eq_u32 s%d, 4' % S_SP); a('s_cbranch_scc1 B_SSM')
    phaseB(a, False, st)
    st.n = nst; a.vm = []; a.lg = []; a.seen = set()
    a('B_SSM:')
    phaseB(a, True, st)
    a.lines.extend(OOL)
    a('KEND:')
    a('KLAST:')
    a('s_endpgm')
    return name, a.lines, kernel_desc(name, 512, 256, 102)

if __name__ == '__main__':
    ref = open('cdna_kernels/%s.s.ref' % PFX).read().split('\n')
    hdr = [l for l in ref if l.startswith(';') and '@launch' not in l and 'Override launch' not in l and 'grid=ceil' not in l][:16]
    name, lines, desc = gen()
    padded, n = pad_hazards(lines)
    sys.stderr.write('%d lines, %d nops inserted\n' % (len(padded), n))
    out = hdr + ['; @launch grid=(256,1,1) block=(256,1,1) lds=%d' % LDS_BYTES, '.amdgcn_target "amdgcn-amd-amdhsa--gfx950"'] + padded + [desc]
    sys.stdout.write('\n'.join(out) + '\n')
```

```python
import sys, os, struct
from asmlib import *
from sched import *
def P(name, dflt): return int(os.environ.get(name, dflt))
def f32bits(x): return struct.unpack('<I', struct.pack('<f', x))[0]
PFX = "recurrent_scan__ssm_conv_s5__dense_activation_silu__prompt"
LOG2E = 1.4426950408889634

WSB      = P('WSB', 0)*1024*1024
NONCE_OFF= 0
STAT_OFF = 16384
AGG_OFF  = 65536
FS       = 128
LNF_OFF  = 256*1024
HEF_OFF  = 320*1024
HFL_OFF  = 384*1024
HSF_OFF  = 448*1024
CFL_OFF  = 512*1024
OOB      = 0x7ffffff0
XF_OFF   = 1024*1024
CF_OFF   = 4*1024*1024
HF_OFF   = 8*1024*1024
HF_RB    = 360*1024
PF_OFF   = 32*1024*1024
if P('COMPACT', 0):
    CF_OFF = XF_OFF + 64*36*1024; HF_OFF = CF_OFF + 24*55296; PF_OFF = HF_OFF + 64*HF_RB
PY_OFF   = (PF_OFF + 4*64*6*8192) if P('COMPACT', 0) else 48*1024*1024
WS_USED  = 64*1024*1024
A_X, A_LRE, A_LIM, A_BRE, A_BIM, A_CRE, A_CIM, A_LDT, A_DSK, B_X, B_W1, B_W2, D_OUT, D_DBG, D_WS = [8*i for i in range(15)]

SLAB = 73728
E_OFF = 2*SLAB
TB_OFF = E_OFF + 3072
LDS_BYTES = TB_OFF + 8192

def ws_srd(a):
    a('s_add_u32 s%d, s%d, 0x%x' % (S_WS, SP0+2, WSB))
    a('s_addc_u32 s%d, s%d, 0' % (S_WS+1, SP0+3))
    a('s_and_b32 s%d, s%d, 0xffff' % (S_WS+1, S_WS+1))
    a('s_mov_b32 s%d, 0x%x' % (S_WS+2, WS_USED))
    a('s_mov_b32 s%d, 0x00020000' % (S_WS+3))
def srd(a, s, lo, nbytes):
    a('s_mov_b32 s%d, s%d' % (s, lo))
    a('s_and_b32 s%d, s%d, 0xffff' % (s+1, lo+1))
    a('s_mov_b32 s%d, 0x%x' % (s+2, nbytes))
    a('s_mov_b32 s%d, 0x00020000' % (s+3))

S_WS = 8; S_W1 = 12; S_BRE = 16; S_BIM = 20; S_WT = 24
S_X = 16; S_OUT = 20
S_G = 28; S_N = 29; S_W = 30; S_XB = 31; S_T = 32; S_M0W = 33
S_P = 34
S_HB = 37; S_T2 = 38; S_BB = 39; S_NL2E = 40; S_TX = 41; S_TF = 42; S_CNT = 43; S_HS = 44; S_NONCE = 45
S_MT = 46; S_NT = 47; S_SP = 48; S_WB = 49; S_WSTR = 50; S_MW = 51; S_T3 = 52; S_T4 = 53; S_MASK = 54; S_TEAM = 55
S_SHORT = S_XB
S_SW = 34
S_PF = 12
S_ORD = 56
S_HBB = S_HB; S_HN = S_TX; S_PB = S_BB
SP0 = 96

V_XO = 1; V_WD = 3; V_BD = 4; V_TR = 5; V_BR = 7; V_HO = 11; V_T0 = 13
V_XV = 16; V_ACC = 48; V_WF = 176; V_ET = 200; V_SC = 208
V_W2D = 253
def xfrag(blk, ks):
    idx = (ks*2 + blk)*4
    return ar(idx, 4) if idx < 256 else vr(V_XV + idx - 256, 4)
def acc(s, blk): return V_ACC + 32*s + 16*blk
(R_LR, R_LI, R_CR, R_CI, R_P32R, R_P32I, R_P256R, R_P256I, R_T1, R_T2, R_T3, R_T4, R_ER, R_EI, R_TG0, R_TG1, R_EA, R_SIDX, R_AO, R_TW) = range(V_SC, V_SC+20)
R_BUF = V_SC + 20
R_TWA, R_TRD, R_P512R, R_P512I, R_GH, R_AW = range(244, 250)
R_NLI = 4
R_NCI = R_TG1
R_U0 = R_T4
R_MR, R_MI = 1, 2
R_LLR, R_LLI = 7, 8
V_PL = 250
V_PA = 252
V_DUM = 13
V_RDB = 251
assert R_BUF % 4 == 0 and R_ER % 4 == 0

WSR = 's[%d:%d]' % (S_WS, S_WS+3)
label_n = [0]
OOL = []
def poll_loop(a, loads, check, sleep=1, rec=None):
    label_n[0] += 1; L = 'POLL%d' % label_n[0]
    if DIAG: a('s_mov_b32 s%d, 0' % S_CNT)
    check(a)
    a('s_cbranch_scc0 %s' % L)
    a(L + '_OK:')
    if DIAG and STNAMES and rec in STNAMES: a('s_mov_b32 s%d, s%d' % (S_STAMP + 2*STNAMES.index(rec), S_CNT))
    b = Asm()
    b(L + ':')
    b('s_mov_b32 s%d, 0' % S_CNT)
    b(L + '_R:')
    b('s_add_u32 s%d, s%d, 1' % (S_CNT, S_CNT))
    b('s_cmp_gt_u32 s%d, %d' % (S_CNT, P('SPIN', 20000)))
    b('s_cbranch_scc1 %s_OK' % L)
    b('s_sleep %d' % sleep)
    loads(b)
    b('s_waitcnt vmcnt(0)')
    check(b)
    b('s_cbranch_scc0 %s_R' % L)
    b('s_branch %s_OK' % L)
    OOL.extend(b.lines)

def chk_all_eq(reg):
    def f(a):
        a('v_cmp_ne_u32 vcc, s%d, v%d' % (S_NONCE, reg))
        a('s_nop 1')
        a('s_cmp_eq_u64 vcc, 0')
    return f

def epi_ffn(E, s, pi, c, ready, blks=(0, 1), mixed=False):
    grp = ('acc', s)
    els = [(blk, j) for blk in blks for j in range(16)]
    n = len(els)
    r = lambda e: acc(s, els[e][0]) + els[e][1]
    t = lambda e: V_ET + (e % 8)
    I = lambda text, tag=None: E.ins(text, tag, ready, 0, grp)
    I('s_lshl_b32 s%d, s%d, 5' % (S_T2, S_P+pi))
    I('s_add_u32 s%d, s%d, s%d' % (S_T2, S_T2, S_HB))
    if mixed: I('%s s%d, s%d, s%d' % ('s_sub_u32' if c else 's_add_u32', S_T2, S_T2, S_SW))
    for step in range(n + 6):
        e = step
        if e < n: I('v_mul_f32 v%d, s%d, v%d' % (t(e), S_NL2E, r(e)))
        e = step - 1
        if 0 <= e < n: I('v_exp_f32 v%d, v%d' % (t(e), t(e)))
        e = step - 2
        if 0 <= e < n: I('v_add_f32 v%d, 1.0, v%d' % (t(e), t(e)))
        e = step - 3
        if 0 <= e < n: I('v_rcp_f32 v%d, v%d' % (t(e), t(e)))
        e = step - 4
        if 0 <= e < n: I('v_mul_f32 v%d, v%d, v%d' % (t(e), t(e), r(e)))
        e = step - 5
        if 0 <= e < n and e % 2 == 1:
            base = r(e - e % 8)
            I('v_cvt_pk_bf16_f32 v%d, v%d, v%d' % (base + (e % 8)//2, t(e-1), t(e)))
            if e % 8 == 7:
                blk = els[e][0]; fr = (e % 16)//8
                I('buffer_store_dwordx4 %s, v%d, %s, s%d offen offset:%d sc1' % (vr(base, 4), V_HO+blk, WSR, S_T2, c*2048 + fr*1024), 'st' if (pi == 2 or (mixed and c == 1)) else 'se')

def cmul_add(F, dr, di, ar_, ai, br, bi, cr, ci, ready=0):
    F.ins('v_fma_f32 v%d, -v%d, v%d, v%d' % (R_T1, ai, bi, cr), None, ready)
    F.ins('v_fma_f32 v%d, v%d, v%d, v%d' % (R_T2, ai, br, ci), None, ready)
    F.ins('v_fma_f32 v%d, v%d, v%d, v%d' % (dr, ar_, br, R_T1), None, ready)
    F.ins('v_fma_f32 v%d, v%d, v%d, v%d' % (di, ar_, bi, R_T2), None, ready)

def csq(F, dr, di, sr_, si):
    F.ins('v_mul_f32 v%d, v%d, v%d' % (R_T1, si, si))
    F.ins('v_mul_f32 v%d, v%d, v%d' % (R_T2, sr_, si))
    F.ins('v_fma_f32 v%d, v%d, v%d, -v%d' % (dr, sr_, sr_, R_T1))
    F.ins('v_add_f32 v%d, v%d, v%d' % (di, R_T2, R_T2))

def scan_tables(F):
    F.ins('v_lshlrev_b32 v%d, 16, v%d' % (R_T3, R_T3))
    F.ins('v_lshlrev_b32 v%d, 16, v%d' % (R_T4, R_T4))
    F.ins('v_lshlrev_b32 v%d, 16, v%d' % (R_ER, R_ER))
    F.ins('v_mul_f32 v%d, 0x%08x, v%d' % (R_ER, f32bits(LOG2E), R_ER))
    F.ins('v_exp_f32 v%d, v%d' % (R_ER, R_ER))
    F.ins('v_cvt_pk_bf16_f32 v%d, v%d, v%d' % (R_ER, R_ER, R_ER))
    F.ins('v_lshlrev_b32 v%d, 16, v%d' % (R_ER, R_ER))
    F.ins('v_mul_f32 v%d, v%d, v%d' % (R_T1, R_ER, R_T3))
    F.ins('v_mul_f32 v%d, v%d, v%d' % (R_T2, R_ER, R_T4))
    F.ins('v_mul_f32 v%d, 0x%08x, v%d' % (R_T1, f32bits(LOG2E), R_T1))
    F.ins('v_exp_f32 v%d, v%d' % (R_T1, R_T1))
    F.ins('v_mul_f32 v%d, 0.15915494, v%d' % (R_T2, R_T2))
    F.ins('v_rndne_f32 v%d, v%d' % (R_EI, R_T2))
    F.ins('v_sub_f32 v%d, v%d, v%d' % (R_T2, R_T2, R_EI))
    F.ins('v_cos_f32 v%d, v%d' % (R_LR, R_T2))
    F.ins('v_sin_f32 v%d, v%d' % (R_LI, R_T2))
    F.ins('v_mul_f32 v%d, v%d, v%d' % (R_LR, R_LR, R_T1))
    F.ins('v_mul_f32 v%d, v%d, v%d' % (R_LI, R_LI, R_T1))
    F.ins('v_add_f32 v%d, -1.0, v%d' % (R_ER, R_LR))
    F.ins('v_mul_f32 v%d, v%d, v%d' % (R_T1, R_T3, R_T3))
    F.ins('v_fmac_f32 v%d, v%d, v%d' % (R_T1, R_T4, R_T4))
    F.ins('v_rcp_f32 v%d, v%d' % (R_T1, R_T1))
    F.ins('v_mul_f32 v%d, v%d, v%d' % (R_CR, R_ER, R_T3))
    F.ins('v_fmac_f32 v%d, v%d, v%d' % (R_CR, R_LI, R_T4))
    F.ins('v_mul_f32 v%d, v%d, v%d' % (R_CI, R_LI, R_T3))
    F.ins('v_fma_f32 v%d, -v%d, v%d, v%d' % (R_CI, R_ER, R_T4, R_CI))
    F.ins('v_mul_f32 v%d, v%d, v%d' % (R_CR, R_CR, R_T1))
    F.ins('v_mul_f32 v%d, v%d, v%d' % (R_CI, R_CI, R_T1))
    csq(F, R_P32R, R_P32I, R_LR, R_LI)
    for _ in range(4): csq(F, R_P32R, R_P32I, R_P32R, R_P32I)
    MR, MI, Z = R_BUF, R_BUF+1, R_BUF+2
    F.ins('v_mov_b32 v%d, 0' % Z)
    F.ins('v_and_b32 v%d, 1, v%d' % (R_T3, R_SIDX)); F.ins('v_cmp_ne_u32 s[60:61], 0, v%d' % R_T3)
    F.ins('v_cndmask_b32 v%d, 1.0, v%d, s[60:61]' % (MR, R_P32R)); F.ins('v_cndmask_b32 v%d, 0, v%d, s[60:61]' % (MI, R_P32I))
    for b in (1, 2):
        if b == 1: csq(F, R_P256R, R_P256I, R_P32R, R_P32I)
        else: csq(F, R_P256R, R_P256I, R_P256R, R_P256I)
        F.ins('v_and_b32 v%d, %d, v%d' % (R_T3, 1 << b, R_SIDX)); F.ins('v_cmp_ne_u32 s[60:61], 0, v%d' % R_T3)
        cmul_add(F, R_BUF+4, R_BUF+5, R_P256R, R_P256I, MR, MI, Z, Z)
        F.ins('v_cndmask_b32 v%d, v%d, v%d, s[60:61]' % (MR, MR, R_BUF+4)); F.ins('v_cndmask_b32 v%d, v%d, v%d, s[60:61]' % (MI, MI, R_BUF+5))
    csq(F, R_P256R, R_P256I, R_P256R, R_P256I)
    csq(F, R_P512R, R_P512I, R_P256R, R_P256I)
    F.ins('v_mov_b32 v%d, s%d' % (R_TG0, S_NONCE))
    F.ins('v_sub_f32 v%d, 0, v%d' % (R_NLI, R_LI))
    F.ins('v_sub_f32 v%d, 0, v%d' % (R_NCI, R_CI))

def ureg(part, tt): return acc(part, tt >> 4) + (tt & 15)
def uim(tt): return R_U0 if tt == 0 else acc(1, 0) + tt - 1

def scan_early(F, ready, half, cb=None):
    for tt in range(16*half, 16*half + 16):
        ur, ui, un = ureg(0, tt), ureg(1, tt), uim(tt)
        F.ins('v_mul_f32 v%d, v%d, v%d' % (un, R_CI, ur), None, ready)
        F.ins('v_mul_f32 v%d, v%d, v%d' % (ur, R_CR, ur))
        F.ins('v_fmac_f32 v%d, v%d, v%d' % (un, R_CR, ui))
        F.ins('v_fmac_f32 v%d, v%d, v%d' % (ur, R_NCI, ui))
        if tt == 0: continue
        pairs = [(R_ER, R_EI), (R_T1, R_T2)]
        nr, ni = pairs[(31 - tt) % 2]
        er, ei = (ureg(0, 0), uim(0)) if tt == 1 else pairs[(32 - tt) % 2]
        F.ins('v_fma_f32 v%d, v%d, v%d, v%d' % (ni, R_LI, er, un))
        F.ins('v_fma_f32 v%d, v%d, v%d, v%d' % (nr, R_NLI, ei, ur))
        F.ins('v_fmac_f32 v%d, v%d, v%d' % (ni, R_LR, ei))
        F.ins('v_fmac_f32 v%d, v%d, v%d' % (nr, R_LR, er))
    if half == 0: return
    F.ins('v_mov_b32 v%d, v%d' % (R_MR, R_BUF)); F.ins('v_mov_b32 v%d, v%d' % (R_MI, R_BUF+1))
    F.ins('ds_write_b64 v%d, %s' % (R_EA, vr(R_ER, 2)), 'ew')
    F.fn(lambda a: (a.wait_lg('ew'), a('s_barrier')), 2, 0, 2)
    for n in range(4):
        F.ins('ds_read_b128 %s, v%d offset:%d' % (vr(R_BUF+4*n, 4), R_TW, E_OFF % 65536 + 16*n), 'er')
    F.ins('v_mov_b32 v%d, s%d' % (R_TG1, S_NONCE))
    F.ins('s_add_u32 s%d, s%d, %d' % (S_TF, S_BB, 8*9216))
    F.fn(lambda a: a.wait_lg('er'), 1, 0, 4)
    cmul_add(F, R_ER, R_EI, R_P32R, R_P32I, R_BUF, R_BUF+1, R_BUF+2, R_BUF+3)
    for s in range(2, 8):
        cmul_add(F, R_ER, R_EI, R_P32R, R_P32I, R_ER, R_EI, R_BUF+2*s, R_BUF+2*s+1)
    F.ins('buffer_store_dwordx4 %s, v%d, %s, s%d offen sc1' % (vr(R_ER, 4), R_AW, WSR, S_TF), 'st')
    F.fn(lambda a: cb(), 0)
    F.ins('v_xor_b32 v%d, 16, v%d' % (R_EA, R_TWA)); F.ins('v_xor_b32 v%d, 32, v%d' % (R_TW, R_TRD))
    F.ins('v_mov_b32 v%d, 0' % R_LLR); F.ins('v_mov_b32 v%d, 0' % R_LLI)
    for s in range(7):
        F.ins('v_cmp_lt_u32 s[60:61], %d, v%d' % (s, R_SIDX))
        cmul_add(F, R_T3, R_CI, R_P32R, R_P32I, R_LLR, R_LLI, R_BUF+2*s, R_BUF+2*s+1)
        F.ins('v_cndmask_b32 v%d, v%d, v%d, s[60:61]' % (R_LLR, R_LLR, R_T3))
        F.ins('v_cndmask_b32 v%d, v%d, v%d, s[60:61]' % (R_LLI, R_LLI, R_CI))

def agg_insts():
    out = []
    for m in range(4):
        out.append('s_add_u32 s%d, s%d, %d' % (S_TF, S_BB, 2*m*9216))
        out.append('buffer_load_dwordx4 %s, v%d, %s, s%d offen sc1' % (vr(R_BUF+4*m, 4), R_AO, WSR, S_TF))
    return out
def agg_check(a):
    for m in range(4):
        a('v_cmp_le_u32 vcc, %d, v%d' % (8-2*m, R_GH))
        a('v_cndmask_b32 v%d, v%d, v%d, vcc' % (R_BUF+4*m+3, R_TG0, R_BUF+4*m+2))
    a('v_xor_b32 v%d, v%d, v%d' % (R_T1, R_BUF+3, R_BUF+7))
    a('v_xor_b32 v%d, v%d, v%d' % (R_T2, R_BUF+11, R_BUF+15))
    a('v_xor_b32 v%d, v%d, v%d' % (R_T3, R_BUF+3, R_TG0))
    a('v_xor_b32 v%d, v%d, v%d' % (R_CI, R_BUF+11, R_TG0))
    a('v_or3_b32 v%d, v%d, v%d, v%d' % (R_T1, R_T1, R_T2, R_T3))
    a('v_or_b32 v%d, v%d, v%d' % (R_T1, R_T1, R_CI))
    a('v_cmp_ne_u32 vcc, 0, v%d' % R_T1)
    a('s_nop 1')
    a('s_cmp_eq_u64 vcc, 0')

def scan_late(F, ready_poll):
    for t in agg_insts(): F.ins(t, 'poll', ready_poll)
    F.fn(lambda a: (a.wait_vm('poll'), poll_loop(a, lambda a: [a(t) for t in agg_insts()], agg_check, 1, 'r_agg')), 5, 0, P('POLLD', 34))
    for m in range(4):
        F.ins('v_cmp_le_u32 s[60:61], %d, v%d' % (8-2*m, R_GH))
        F.ins('v_cndmask_b32 v%d, 0, v%d, s[60:61]' % (R_BUF+4*m, R_BUF+4*m))
        F.ins('v_cndmask_b32 v%d, 0, v%d, s[60:61]' % (R_BUF+4*m+1, R_BUF+4*m+1))
    cmul_add(F, R_ER, R_EI, R_P512R, R_P512I, R_BUF, R_BUF+1, R_BUF+4, R_BUF+5)
    for m in range(2, 4):
        cmul_add(F, R_ER, R_EI, R_P512R, R_P512I, R_ER, R_EI, R_BUF+4*m, R_BUF+4*m+1)
    F.ins('v_mov_b32 v%d, v%d' % (R_T3, R_ER)); F.ins('v_mov_b32 v%d, v%d' % (R_CI, R_EI))
    F.ins('v_permlane32_swap_b32 v%d, v%d' % (R_ER, R_T3)); F.ins('v_permlane32_swap_b32 v%d, v%d' % (R_EI, R_CI))
    cmul_add(F, R_ER, R_EI, R_P256R, R_P256I, R_ER, R_EI, R_T3, R_CI)
    cmul_add(F, R_ER, R_EI, R_MR, R_MI, R_ER, R_EI, R_LLR, R_LLI)
    pr, pi_ = R_ER, R_EI
    land = lambda part, blk: R_BUF if (part, blk) == (1, 0) else acc(part, blk) + 8
    def pack(part, blk):
        b = acc(part, blk); neg = '-' if part else ''
        src = (lambda t: uim(16*blk + t)) if part else (lambda t: b + t)
        for k in range(8):
            F.ins('v_cvt_pk_bf16_f32 v%d, %sv%d, %sv%d' % (b+k, neg, src(2*k), neg, src(2*k+1)))
        for u in range(2):
            F.ins('ds_write_b128 v%d, %s' % (R_EA if u else R_TWA, vr(b+4*u, 4)), 'tw', 0, P('TWSP', 1))
        for ph in range(2):
            for u in range(2):
                F.ins('ds_read_b64_tr_b16 %s, v%d offset:%d' % (vr(land(part, blk)+4*ph+2*u, 2), R_TW if u else R_TRD, ph*1024 + u*256), 'tr%d%d' % (part, blk))
    def store(part, blk, dl):
        b = land(part, blk)
        F.ins('s_add_u32 s%d, s%d, %d' % (S_TF, S_HS, part*36*1024))
        F.fn(lambda a: a.wait_lg('tr%d%d' % (part, blk)), 1, 0, dl)
        for ph in range(2):
            F.ins('buffer_store_dwordx4 %s, v%d, %s, s%d offen offset:%d sc1' % (vr(b+4*ph, 4), V_HO+blk, WSR, S_TF, ph*1024), 'hs', 0, P('HSSP', 0))
    for tt in range(32):
        ur, ui = ureg(0, tt), uim(tt)
        F.ins('v_fmac_f32 v%d, v%d, v%d' % (ur, R_LR, pr))
        F.ins('v_fmac_f32 v%d, v%d, v%d' % (ui, R_LI, pr))
        F.ins('v_fmac_f32 v%d, v%d, v%d' % (ur, R_NLI, pi_))
        F.ins('v_fmac_f32 v%d, v%d, v%d' % (ui, R_LR, pi_))
        pr, pi_ = ur, ui
        if tt == 16: pack(0, 0); pack(1, 0)
        if tt == 24: store(0, 0, 0); store(1, 0, 0)
    pack(0, 1); pack(1, 1); store(0, 1, 2); store(1, 1, 2)
    F.fn(hs_flag, 5, 0, P('HSD', 36), 'hsflag')

def hs_flag(a):
    a('s_add_u32 s%d, s%d, %d' % (S_TF, S_T4, HSF_OFF))
    a.wait_vm('hs'); a('s_barrier')
    a('buffer_store_dword v%d, v%d, %s, s%d offen sc1' % (R_TG0, V_PA, WSR, S_TF), 'fl')

WNT = os.environ.get('WNT', '')
XNT = os.environ.get('XNT', '')
W2NT = os.environ.get('W2NT', '')
def he_flag(a):
    a('s_add_u32 s%d, s%d, %d' % (S_T, S_T4, HEF_OFF))
    a.wait_vm('se'); a('s_barrier')
    a('buffer_store_dword v%d, v%d, %s, s%d offen sc1' % (V_PL, V_PA, WSR, S_T), 'fl')

def dma_w1(a, slab, pi, n, tag, vreg=V_WD, dm=0):
    a('s_add_u32 m0, s%d, %d' % (S_M0W, slab*SLAB + n*4096 + dm))
    a('s_add_u32 s%d, s%d, %d' % (S_T, S_P+pi, n*32*9216))
    a('buffer_load_dwordx4 v%d, s[%d:%d], s%d offen%s lds' % (vreg, S_W1, S_W1+3, S_T, WNT), tag)

def dma_b(a, kb, part, tag, vreg=V_BD, dm=0):
    a('s_add_u32 m0, s%d, %d' % (S_M0W, kb*8192 + part*4096 + dm))
    a('s_movk_i32 s%d, %d' % (S_T, kb*128))
    s = S_BIM if part else S_BRE
    a('buffer_load_dwordx4 v%d, s[%d:%d], s%d offen%s lds' % (vreg, s, s+3, S_T, WNT), tag)

def xload(a, ks, blk):
    if ks % 4 == 0: a('s_add_u32 s%d, s%d, %d' % (S_TX, S_XB, (ks//4)*4096))
    a('buffer_load_dwordx4 %s, v%d, %s, s%d offen offset:%d sc1' % (xfrag(blk, ks), V_XO+blk, WSR, S_TX, (ks % 4)*1024), 'x%d_%d' % (blk, ks))

def w2_slot(ks):
    u = ks // 2
    base = (SLAB if u < 6 else 0) + (u % 3)*6144
    return base + (ks % 2)*3072
def w2_dma(ks):
    out = ['s_add_u32 m0, s%d, %d' % (S_MW, w2_slot(ks))]
    for n in range(3):
        out.append('buffer_load_dwordx4 v%d, s[%d:%d], s%d offen offset:%d sc1%s lds' % (V_W2D+n, S_WT, S_WT+3, S_WB, n*1024, W2NT))
    out.append('s_add_u32 s%d, s%d, s%d' % (S_WB, S_WB, S_WSTR))
    return out

def phaseB_setup(F, ready):
    I = lambda t: F.ins(t, None, ready)
    def ld(a):
        a('s_load_dwordx2 s[%d:%d], s[0:1], %d' % (SP0, SP0+1, B_W2))
    F.fn(ld, 1, ready)
    I('s_and_b32 s3, s2, 7'); I('s_lshr_b32 s4, s2, 3')
    I('s_mul_i32 s5, s4, 43'); I('s_lshr_b32 s5, s5, 8')
    I('s_mul_i32 s6, s5, 6'); I('s_sub_u32 s%d, s4, s6' % S_NT)
    I('s_mul_i32 s3, s3, 5'); I('s_add_u32 s3, s3, s5')
    I('s_lshr_b32 s%d, s3, 3' % S_SP); I('s_and_b32 s%d, s3, 7' % S_MT)
    I('s_mul_i32 s%d, s%d, 18432' % (S_MW, S_W))
    I('s_mul_i32 s3, s%d, 1152' % S_SP); I('s_mul_i32 s4, s%d, 288' % S_W); I('s_add_u32 s3, s3, s4')
    I('s_mul_i32 s3, s3, 1152'); I('s_mul_i32 s4, s%d, 192' % S_NT); I('s_add_u32 s3, s3, s4')
    I('s_lshl_b32 s4, s%d, 2' % S_NT); I('s_add_u32 s4, s4, s%d' % S_W); I('s_mul_i32 s4, s4, 55296'); I('s_add_u32 s4, s4, %d' % CF_OFF)
    for n in range(3):
        I('v_add_u32 v13, %d, v0' % (64*n))
        I('v_mul_u32_u24 v14, 0x1556, v13'); I('v_lshrrev_b32 v14, 16, v14')
        I('v_mul_u32_u24 v15, 960, v14')
        I('v_lshl_add_u32 v%d, v0, 4, v15' % (V_W2D+n))
    I('v_lshrrev_b32 v14, 5, v0'); I('v_lshlrev_b32 v14, 2, v14'); I('v_bfe_u32 v15, v0, 2, 2'); I('v_add_u32 v14, v14, v15')
    I('v_mul_u32_u24 v14, 192, v14')
    I('v_bfe_u32 v15, v0, 4, 1'); I('v_lshl_add_u32 v14, v15, 5, v14')
    I('v_and_b32 v15, 3, v0'); I('v_lshl_add_u32 v%d, v15, 3, v14' % V_RDB)
    def sel(a):
        a('s_waitcnt lgkmcnt(0)')
        a('s_cmp_eq_u32 s%d, 4' % S_SP)
        a('s_cselect_b32 s%d, s4, s3' % S_WB)
        a('s_cselect_b32 s%d, 3072, s%d' % (S_WSTR, S_WSTR))
        a('s_cselect_b32 s%d, s%d, s%d' % (S_WT, S_WS, SP0))
        a('s_cselect_b32 s%d, s%d, s%d' % (S_WT+1, S_WS+1, SP0+1))
        a('s_cselect_b32 s%d, s%d, s%d' % (S_WT+2, S_WS+2, S_WT+2))
        a('s_cselect_b64 vcc, -1, 0')
        a('s_and_b32 s%d, s%d, 0xffff' % (S_WT+1, S_WT+1))
        a('v_lshlrev_b32 v13, 4, v0')
        for n in range(3): a('v_cndmask_b32 v%d, v%d, v13, vcc' % (V_W2D+n, V_W2D+n))
        a('v_cndmask_b32 v%d, v%d, v13, vcc' % (V_RDB, V_RDB))
        a('s_add_u32 s3, s%d, %d' % (S_MW, SLAB)); a('v_add_u32 v%d, s3, v%d' % (V_RDB, V_RDB))
    I('s_mov_b32 s%d, %d' % (S_WSTR, 16*1152)); I('s_mov_b32 s%d, %d' % (S_WT+2, 4608*1152)); I('s_mov_b32 s%d, 0x00020000' % (S_WT+3))
    F.fn(sel, 5, ready, 4)
    F.fn(lambda a: srd(a, 16, SP0, 4608*1152), 4, ready)
    I('s_lshl_b32 s3, s%d, 12' % S_G); I('s_lshl_b32 s4, s%d, 7' % S_N); I('s_add_u32 s%d, s3, s4' % S_T4)
    I('v_or_b32 v%d, s%d, v0' % (V_PA, S_W)); I('v_min_u32 v%d, 1, v%d' % (V_PA, V_PA)); I('v_lshlrev_b32 v%d, 30, v%d' % (V_PA, V_PA))
    I('v_mov_b32 v%d, s%d' % (V_PL, S_NONCE))

def w2_touch(F, ready):
    I = lambda t: F.ins(t, None, ready)
    if P('P2TOUCH', 0):
        I('s_mul_i32 s3, s%d, 72' % S_G); I('s_mul_i32 s4, s%d, 18' % S_W); I('s_add_u32 s3, s3, s4')
        I('v_min_u32 v13, 17, v0'); I('v_add_u32 v13, s3, v13'); I('v_mul_u32_u24 v15, 9216, v13')
        I('buffer_load_dword v%d, v15, s[%d:%d], s%d offen' % (V_DUM, S_W1, S_W1+3, S_P+2))
    if P('TGLOBAL', 1):
        NT_ = P('TNL', 11)
        I('s_lshl_b32 s3, s2, 2'); I('s_add_u32 s3, s3, s%d' % S_W); I('s_mul_i32 s3, s3, %d' % (44*128))
        I('v_min_u32 v14, %d, v0' % (NT_-1)); I('v_lshl_add_u32 v14, v14, 7, s3')
        for k in range(44 // NT_):
            F.ins('buffer_load_dword v%d, v14, s[16:19], 0 offen' % V_DUM, None, ready, P('TSP', 10) if k else 0)
            I('v_add_u32 v14, %d, v14' % (NT_*128))
        return
    I('s_lshr_b32 s3, s2, 3'); I('s_lshl_b32 s3, s3, 2'); I('s_add_u32 s3, s3, s%d' % S_W); I('s_mul_i32 s3, s3, %d' % (88*128))
    I('s_and_b32 s4, s2, 7'); I('s_mul_i32 s4, s4, 5'); I('s_add_u32 s5, s4, 4'); I('s_lshr_b32 s4, s4, 3'); I('s_lshr_b32 s5, s5, 3')
    I('s_mul_i32 s4, s4, %d' % (1152*1152)); I('s_mul_i32 s5, s5, %d' % (1152*1152)); I('s_add_u32 s4, s4, s3'); I('s_add_u32 s5, s5, s3')
    NT_ = P('TNL', 11); nper = 88 // NT_
    I('v_min_u32 v13, %d, v0' % (NT_-1)); I('v_lshlrev_b32 v13, 7, v13')
    I('v_add_u32 v14, s4, v13'); I('v_add_u32 v15, s5, v13')
    for k in range(nper):
        F.ins('buffer_load_dword v%d, v14, s[16:19], 0 offen' % V_DUM, None, ready, P('TSP', 10) if k else 0)
        F.ins('buffer_load_dword v%d, v15, s[16:19], 0 offen' % V_DUM, None, ready, P('TSP', 10))
        if k < nper-1: I('v_add_u32 v14, %d, v14' % (NT_*128)); I('v_add_u32 v15, %d, v15' % (NT_*128))

def code_touch(a):
    label_n[0] += 1; L = 'CT%d' % label_n[0]
    a('s_getpc_b64 s[4:5]'); a(L + ':')
    a('s_add_u32 s4, s4, A_DONE-%s' % L); a('s_addc_u32 s5, s5, 0')
    a('s_lshl_b32 s6, s%d, 13' % S_W)
    a('v_lshl_add_u32 v14, v0, 7, s6'); a('v_min_u32 v14, KLAST-A_DONE, v14')
    a('global_load_dword v10, v14, s[4:5]')

TDN = P('TDN', 0)
def cfl_check(a):
    label_n[0] += 1; L = 'CFS%d' % label_n[0]
    a('s_cmp_lg_u32 s%d, 4' % S_SP); a('s_cbranch_scc1 %s' % L)
    save = list(a.vm)
    a('v_min_u32 v15, 47, v0'); a('v_lshlrev_b32 v15, 7, v15'); a('s_mov_b32 s%d, %d' % (S_T3, CFL_OFF))
    ldc = 'buffer_load_dword v14, v15, %s, s%d offen sc1' % (WSR, S_T3)
    a(ldc); a('s_waitcnt vmcnt(0)')
    poll_loop(a, lambda a: a(ldc), chk_all_eq(14))
    a.vm = save
    a(L + ':')

def w2_read_br(ks):
    def f(a):
        label_n[0] += 1; L = 'WR%d' % label_n[0]
        off = w2_slot(ks) - SLAB
        a.wait_vm('v%d' % ks)
        a('s_cmp_eq_u32 s%d, 4' % S_SP); a('s_cbranch_scc1 %s_S' % L)
        save = list(a.lg)
        for dt in range(3):
            base = (ks*3 + dt)*4
            a('ds_read_b64_tr_b16 %s, v%d offset:%d' % (ar(base, 2), V_RDB, off + dt*64), 'wr%d' % ks)
            a('ds_read_b64_tr_b16 %s, v%d offset:%d' % (ar(base+2, 2), V_RDB, off + dt*64 + 1536), 'wr%d' % ks)
        a('s_branch %s_E' % L)
        a(L + '_S:')
        a.lg = save
        for dt in range(3):
            base = (ks*3 + dt)*4
            a('ds_read_b64 %s, v%d offset:%d' % (ar(base, 2), V_RDB, off + dt*1024), 'wr%d' % ks)
            a('ds_read_b64 %s, v%d offset:%d' % (ar(base+2, 2), V_RDB, off + dt*1024 + 8), 'wr%d' % ks)
        a(L + '_E:')
    return f

def phaseA(a, mixed, st):
    S = Sched(a)
    SC = S.stream('scan'); D = S.stream('dma'); E = S.stream('epi'); B = S.stream('bpre')
    TC = Stream('touch')
    EF = Stream('ef'); EF.fn(he_flag, 5); a.tagcount = {}
    NSE = 4 if mixed else 16; tse = [None]
    def ef_gate():
        if a.tagcount.get('se', 0) < NSE: return False
        if tse[0] is None: tse[0] = S.mf
        return S.mf >= tse[0] + P('EFD', 30)
    EF.gate = ef_gate
    pend = [lambda a, ks=ks, blk=blk: xload(a, ks, blk) for blk in range(2) for ks in range(36)]
    for _ in range(P('XBURST', 16)): pend.pop(0)(a)
    nstamp(a, 'xb'); a('s_barrier'); nstamp(a, 'bar0')
    if mixed: scan_tables(SC)
    phaseB_setup(B, 0)
    frs = []
    for blk in range(2):
        for ks in range(36):
            for c in range(2): frs.append(('p1', blk, ks, c))
    for ci in range(4):
        for ks in range(36): frs.append(('c', ci, ks, ci & 1))
    consumed = [0]; trbase = [0, 0]; reads = []
    def pre(n):
        kind, ci, ks, c = frs[n]
        def f(a):
            if kind == 'p1' and mixed and ks == 32 and c == 0:
                for r in range(4): a('v_add_u32 v%d, 0x10000, v%d' % (V_BR+r, V_BR+r))
            if kind == 'p1' and mixed and ks == 0 and c == 0 and ci == 1:
                for r in range(4): a('v_subrev_u32 v%d, 0x10000, v%d' % (V_BR+r, V_BR+r))
            if kind == 'c' and ci == 0 and ks == 0:
                a('s_waitcnt lgkmcnt(0)'); a('s_barrier')
                for k in range(18): D.fn(lambda a, k=k: dma_w1(a, 0, 2, k, 'w2'), 4, 0, P('W2SP', 3))
            if kind == 'c' and ci == 2 and ks == 0:
                assert not pend and not D.q and not TC.q
                a.wait_vm('w2'); a('s_waitcnt lgkmcnt(0)'); a('s_barrier')
            if not (kind == 'p1' and mixed):
                slab = 0 if kind == 'p1' else (1 if ci < 2 else 0)
                bias = slab*SLAB + (36864 if ks >= 18 else 0)
                if trbase[c] != bias:
                    a('v_add_u32 v%d, 0x%x, v%d' % (V_TR+c, (bias - trbase[c]) & 0xffffffff, V_TR+c)); trbase[c] = bias
        return f
    for n, (kind, ci, ks, c) in enumerate(frs):
        dst = V_WF + 4*(n % 6); tag = 'f%d' % n
        if kind == 'p1' and mixed:
            reads.append((n, lambda a, n=n, dst=dst, ks=ks, c=c, tag=tag: (pre(n)(a), a('ds_read_b128 %s, v%d offset:%d' % (vr(dst, 4), V_BR + (ks & 3), ((ks >> 2)*8192 + c*4096) % 65536), tag))))
        else:
            off = (ks % 18)*2048
            reads.append((n, lambda a, n=n, dst=dst, c=c, off=off, tag=tag: (pre(n)(a), a('ds_read_b64_tr_b16 %s, v%d offset:%d' % (vr(dst, 2), V_TR+c, off), tag))))
            reads.append((n, lambda a, dst=dst, c=c, off=off, tag=tag: a('ds_read_b64_tr_b16 %s, v%d offset:%d' % (vr(dst+2, 2), V_TR+c, off+512), tag)))
    def issue_reads(quota):
        while reads and quota > 0 and reads[0][0] < consumed[0] + 6:
            S.must_fn(reads.pop(0)[1]); quota -= 1
    def issued(n): return not reads or reads[0][0] > n
    accset = ([2, 3, 2, 0] if P('SC2', 1) else [2, 3, 2, 3]) if mixed else [2, 3, 0, 1]
    issue_reads(100)
    n = 0
    while n < len(frs):
        kind, ci, ks, c = frs[n]
        if kind == 'p1' and ks == 1 and c == 0 and ci == 0: stamp(a, st); nstamp(a, 'p1s')
        if kind == 'p1' and ks == 0 and c == 0 and ci == 1:
            nstamp(a, 'p1b')
            S.drain(stream=B)
            if P('W2TOUCH', 1):
                w2_touch(TC, S.mf + P('TAT', 44)); S.always = [TC]
            if mixed: scan_early(SC, S.mf + 3, 0)
            else:
                epi_ffn(E, 0, 0, 0, S.mf + 3, (0,)); epi_ffn(E, 1, 0, 1, S.mf + 3, (0,))
        if kind == 'c' and ks == 0:
            if ci in (0, 2): stamp(a, st)
            nstamp(a, 'c%d' % ci)
            S.note = None; S.drain(('acc', accset[ci]))
            if S.note: sys.stderr.write('  forced drain at chunk %d: %s\n' % (ci, S.note))
            rdy = S.mf + 2
            if ci == 0:
                if mixed:
                    scan_early(SC, rdy, 1, lambda: setattr(S, 'streams', [D, SC, E, B])); scan_late(SC, S.mf + P('POLLAT', 100))
                else:
                    epi_ffn(E, 0, 0, 0, rdy, (1,)); epi_ffn(E, 1, 0, 1, rdy, (1,))
            else:
                epi_ffn(E, accset[ci-1], 1 + (ci-1)//2, (ci-1) & 1, rdy, (0, 1), mixed)
            if ci == 1:
                S.streams = [D, SC, E, B]
            if ci == 0:
                S.drain(stream=B)
            if ci == 2:
                B.fn(cfl_check, 2, S.mf + 2)
                if P('CTOUCH', 1): B.fn(code_touch, 5, S.mf + 2)
                def pf(a):
                    a('s_cmp_eq_u32 s%d, 4' % S_SP)
                    a('s_cselect_b32 s%d, 0x3ffff, s%d' % (S_MASK, S_MASK)); a('s_cselect_b32 s%d, %d, s%d' % (S_PF, HSF_OFF, S_PF))
                B.ins('s_mov_b32 s%d, 0x3fffffff' % S_MASK); B.ins('s_mov_b32 s%d, %d' % (S_PF, HEF_OFF)); B.fn(pf, 3)
                B.ins('s_lshl_b32 s3, s%d, 12' % S_MT); B.ins('s_add_u32 s%d, s%d, s3' % (S_PF, S_PF))
                B.fn(lambda a: flag_lanes(a, 0), 5)
                for k2 in range(6):
                    for t in w2_dma(k2): B.ins(t, 'v%d' % k2, S.mf + P('W2AT', 4) + 11*k2, P('DMSP', 3) if 'lds' in t else 0)
                S.streams = [EF, B, SC, E]
            if ci == 3:
                if mixed and P('SC2', 1):
                    keep = [it for it in SC.q if it[4] == 'hsflag']; SC.q = [it for it in SC.q if it[4] != 'hsflag']
                    sys.stderr.write('  forced SC drain %s\n' % S.pending()); S.drain(stream=SC); SC.q = keep
                for k2 in range(6):
                    B.fn(w2_read_br(k2), 5, S.mf + 5 + 11*k2)
                    B.fn(lambda a, k2=k2: a.wait_lg('wr%d' % k2), 1, 0, 4)
                    for t in w2_dma(k2+6): B.ins(t, 'v%d' % (k2+6), 0, P('DMSP2', 2) if 'lds' in t else 0)
                S.streams = [EF, B, SC, E]
        while not issued(n): issue_reads(1)
        S.fill(reserve=2 if kind == 'p1' and c == 0 else 1)
        if kind == 'p1':
            if c == 0:
                S.must_fn(lambda a: a.wait_vm('x%d_%d' % (ci, ks)))
                S.must_fn(lambda a: a.wait_lg('f%d' % (n+1) if issued(n+1) else 'f%d' % n))
            else: S.must_fn(lambda a: a.wait_lg('f%d' % n))
        else:
            if ks % 2 == 0 and n + 1 < len(frs) and issued(n+1): S.must_fn(lambda a: a.wait_lg('f%d' % (n+1)))
            S.must_fn(lambda a: a.wait_lg('f%d' % n))
        blks = (ci,) if kind == 'p1' else (0, 1)
        for blk in blks:
            sset = c if kind == 'p1' else accset[ci]
            d = vr(acc(sset, blk), 16); w = vr(V_WF + 4*(n % 6), 4); x = xfrag(blk, ks)
            A, Bo = (x, w) if (mixed and kind == 'p1') else (w, x)
            S.mfma('v_mfma_f32_32x32x16_bf16 %s, %s, %s, %s' % (d, A, Bo, d if ks else '0'))
            if blk == blks[-1]: consumed[0] = n + 1
            issue_reads(2 if kind == 'p1' else 1)
            if pend and (c == 0 if kind == 'p1' else blk == 0): S.must_fn(pend.pop(0))
        n += 1
    sys.stderr.write('phaseA mixed=%d pending at end: %s\n' % (mixed, S.pending()))
    stamp(a, st); nstamp(a, 'tl0')
    S.mf += 1000
    S.drain(stream=B)
    a('s_barrier')
    epi_ffn(E, accset[3], 2, 1, 0, (0, 1), mixed)
    assert not SC.q and not EF.q
    q = E.q; E.q = []
    dm = []
    for k2 in range(12, 12 + TDN):
        t = w2_dma(k2); dm += [(t[0:2], k2), (t[2:3], k2), (t[3:5], k2)]
    sp_ = max(1, (len(q) - P('TD0', 10)) // max(1, 3*TDN))
    for i, it in enumerate(q):
        if i == max(0, len(q) - P('EPA', 150)): flag_poll('hp')[0](a)
        it[0](a)
        if dm and i >= P('TD0', 10) and (i - P('TD0', 10)) % sp_ == 0:
            ts, k2 = dm.pop(0)
            for t in ts: a(t, 'v%d' % k2)
    assert not dm and a.vm[-1] == 'st'
    nstamp(a, 'tl1')
    a.wait_vm('hp')
    ld, chk = flag_poll()
    poll_loop(a, ld, chk, 1, 'r_h')
    a.wait_vm('v11')
    stamp(a, st); nstamp(a, 't3')

VB_HO = 1; VB_O = 2; VB_RD = 5; VB_RW = 6; VB_T = 7; VB_RR = 10; VB_PO = 13
VB_ACC = 16; VB_RB = 112; VB_H = 152
A_XX = 216
RED = 36864
S_FB = 34
def wfrag(ks, dt): return ar((ks*3 + dt)*4, 4)
def accr(s, dt): return VB_ACC + 48*s + 16*dt
X = os.environ.get('X', '')

def w2_read(a, ks, ssm):
    sl = w2_slot(ks); hi = sl >= SLAB
    for dt in range(3):
        base = (ks*3 + dt)*4
        reg = VB_RD
        off = sl - (SLAB if hi else 0)
        if ssm:
            a('ds_read_b128 %s, v%d offset:%d' % (ar(base, 4), reg, off + dt*1024), 'wr%d' % ks)
        else:
            a('ds_read_b64_tr_b16 %s, v%d offset:%d' % (ar(base, 2), reg, off + dt*64), 'wr%d' % ks)
            a('ds_read_b64_tr_b16 %s, v%d offset:%d' % (ar(base+2, 2), reg, off + dt*64 + 1536), 'wr%d' % ks)

def reduce_fill(R, i, ready, send, ssm, io=None, dl=1, wrd=2):
    s = i & 1; grp = ('acc', s); buf = s*RED
    if io is None: io = i
    for q in range(1, 4):
        for dt in range(3):
            R.ins('ds_write_b128 v%d, %s offset:%d' % (VB_RW, vr(accr(s, dt) + 4*q, 4), buf + (q-1)*3072 + dt*1024), 'rw%d' % i, ready, wrd, grp)
    R.fn(lambda a: (a.wait_lg('rw%d' % i), a('s_barrier')), 2, 0, 2*dl)
    for q in range(1, 4):
        for dt in range(3):
            R.ins('ds_read_b128 %s, v%d offset:%d' % (vr(VB_RB + ((q-1)*3+dt)*4, 4), VB_RR+q-1, buf + dt*1024), 'rr%d' % i)
    R.fn(lambda a: a.wait_lg('rr%d' % i), 1, 0, 4*dl)
    for k in range(12):
        own = accr(s, k//4) + k % 4
        R.ins('v_add_f32 v%d, v%d, v%d' % (VB_RB+k, VB_RB+k, own), None, 0, 0, grp)
        R.ins('v_add_f32 v%d, v%d, v%d' % (VB_RB+12+k, VB_RB+12+k, VB_RB+24+k))
    SB = VB_RB + 24
    for k in range(12):
        dst = SB + 4*(k//3) + k % 3 if (send and ssm) else VB_RB + k
        R.ins('v_add_f32 v%d, v%d, v%d' % (dst, VB_RB+k, VB_RB+12+k), 'sum%d' % i)
    if send:
        ng = 4 if ssm else 2
        if not ssm:
            for p in range(6): R.ins('v_cvt_pk_bf16_f32 v%d, v%d, v%d' % (SB + 4*(p//3) + p % 3, VB_RB+2*p, VB_RB+2*p+1))
        for g in range(ng): R.ins('v_mov_b32 v%d, s%d' % (SB + 4*g + 3, S_NONCE))
        R.ins('s_mul_i32 s%d, s%d, %d' % (S_TF, S_ORD+io, 6*4*ng*1024))
        R.ins('s_add_u32 s%d, s%d, s%d' % (S_TF, S_TF, S_PB))
        for g in range(ng):
            if 'nost' in X: continue
            R.ins('buffer_store_dwordx4 %s, v%d, %s, s%d offen offset:%d%s' % (vr(SB+4*g, 4), VB_PO, WSR, S_TF, g*1024, '' if 'plainst' in X else ' sc1'), 'st', 0, 2 if g else 0)

def ffn_loads(quads):
    return ['buffer_load_dwordx4 %s, v%d, %s, s%d offen offset:%d sc1' % (vr(quads[src*2+g], 4), VB_PO, WSR, S_FB+src, g*1024) for src in range(3) for g in range(2)]
def y_loads(quads):
    return ['buffer_load_dwordx4 %s, v%d, %s, s%d offen offset:%d sc1' % (vr(quads[g], 4), VB_RD, WSR, S_T2, g*1024) for g in range(4)]
def tag_check(quads):
    def f(a):
        t = [q+3 for q in quads]
        for op, d in (('v_min3_u32', VB_T), ('v_max3_u32', VB_T+1)):
            a('%s v%d, v%d, v%d, v%d' % (op, d, t[0], t[1], t[2]))
            r = t[3:]
            while r:
                a('%s v%d, v%d, v%d, v%d' % (op, d, d, r[0], r[1] if len(r) > 1 else r[0])); r = r[2:]
        a('v_cmp_ne_u32 vcc, s%d, v%d' % (S_NONCE, VB_T))
        a('v_cmp_ne_u32 s[4:5], s%d, v%d' % (S_NONCE, VB_T+1))
        a('s_nop 1')
        a('s_or_b64 vcc, vcc, s[4:5]')
        a('s_cmp_eq_u64 vcc, 0')
    return f
def checked(G, tag, loads, quads, dl):
    G.fn(lambda a: (nstamp(a, 'w0' + tag), a.wait_vm(tag), nstamp(a, 'w1' + tag), poll_loop(a, lambda a: [a(t) for t in loads], tag_check(quads), P('RSLEEP', 8), 'r_' + tag)), 5, 0, dl)
def presum(G, quads, ps):
    pk = lambda src, k: quads[src*2 + (k//2)//3] + (k//2) % 3
    unp = lambda d, src, k: ('v_and_b32 v%d, 0xffff0000, v%d' if k % 2 else 'v_lshlrev_b32 v%d, 16, v%d') % (d, pk(src, k))
    for k in range(12):
        G.ins(unp(ps(k), 0, k)); G.ins(unp(VB_T, 1, k)); G.ins(unp(VB_T+1, 2, k))
        G.ins('v_add_f32 v%d, v%d, v%d' % (ps(k), ps(k), VB_T)); G.ins('v_add_f32 v%d, v%d, v%d' % (ps(k), ps(k), VB_T+1))
def prep_s(G, j, yq):
    y = lambda k: yq[k//3] + k % 3
    for k in range(12):
        G.ins('v_accvgpr_read_b32 v%d, a%d' % (VB_T + k % 2, A_XX+12*j+k))
        G.ins('v_and_b32 v%d, 0xffff0000, v%d' % (VB_T + k % 2, VB_T + k % 2))
        G.ins('v_fma_f32 v%d, 2.0, v%d, v%d' % (y(k), y(k), VB_T + k % 2))
OUTFL = os.environ.get('OUTFL', '')
def chain(G, j, ps, yq, first=None):
    y = lambda k: yq[k//3] + k % 3
    o = lambda k: VB_RB + k
    t1 = lambda k: VB_RB + 12 + k
    t2 = lambda k: VB_RB + 24 + k
    rnd = [lambda k: None if k % 2 else 'v_cvt_pk_bf16_f32 v%d, v%d, v%d' % (o(k+1), o(k), o(k+1)),
           lambda k: ('v_and_b32 v%d, 0xffff0000, v%d' % (o(k), o(k))) if k % 2 else ('v_lshlrev_b32 v%d, 16, v%d' % (o(k), o(k+1)))]
    stages = [lambda k: 'v_add_f32 v%d, v%d, v%d' % (o(k), o(k), ps(k))] + rnd + [
        lambda k: 'v_mul_f32 v%d, s%d, v%d' % (t1(k), S_NL2E, o(k)),
        lambda k: 'v_exp_f32 v%d, v%d' % (t1(k), t1(k)),
        lambda k: 'v_accvgpr_read_b32 v%d, a%d' % (t2(k), A_XX+12*j+k),
        lambda k: 'v_add_f32 v%d, 1.0, v%d' % (t1(k), t1(k)),
        lambda k: 'v_rcp_f32 v%d, v%d' % (t1(k), t1(k)),
        lambda k: 'v_lshlrev_b32 v%d, 16, v%d' % (t2(k), t2(k)),
        lambda k: 'v_mul_f32 v%d, v%d, v%d' % (o(k), o(k), t1(k))] + rnd + [
        lambda k: 'v_fma_f32 v%d, v%d, v%d, v%d' % (t2(k), y(k), o(k), t2(k))]
    X4 = P('X4', 1); fl = OUTFL.split(',')[j % len(OUTFL.split(','))]
    if not X4:
        stages.append(lambda k: 'buffer_store_dword v%d, v%d, s[%d:%d], s%d offen offset:%d%s' % (t2(k), VB_O+1 + (k % 4)//2, S_OUT, S_OUT+3, S_T3, (k % 2)*2304 + (k//4)*128, fl))
    if first: G.fn(first, 0)
    for k0 in range(0, 12, 4):
        for stg in stages:
            for k in range(k0, k0+4):
                t = stg(k)
                if t: G.ins(t, 'out')
        if X4:
            for src, dst, bit, qp, mi in ((t2, t1, 1, '[1,0,3,2]', 0), (t1, o, 2, '[2,3,0,1]', 2)):
                for hi in (1, 0):
                    def f(a, src=src, dst=dst, bit=bit, qp=qp, mi=mi, hi=hi, k0=k0):
                        a('s_mov_b64 vcc, s[%d:%d]' % (S_QM[mi+hi], S_QM[mi+hi]+1))
                        for k in range(4):
                            if bool(k & bit) == bool(hi):
                                a('v_cndmask_b32_dpp v%d, v%d, v%d, vcc quad_perm:%s row_mask:0xf bank_mask:0xf' % (dst(k0+k), src(k0+(k ^ bit)), src(k0+k), qp))
                    G.fn(f, 3)
            G.ins('buffer_store_dwordx4 %s, v%d, s[%d:%d], s%d offen offset:%d%s' % (vr(o(k0), 4), VB_O+1, S_OUT, S_OUT+3, S_T3, (k0//4)*128, fl), 'out')
S_QM = (24, 26, 14, 50)

XT = 224
def xx_setup(a):
    a('s_load_dwordx2 s[%d:%d], s[0:1], %d' % (SP0, SP0+1, A_X))
    a('s_load_dwordx2 s[%d:%d], s[0:1], %d' % (SP0+2, SP0+3, D_OUT))
    a('s_load_dwordx2 s[%d:%d], s[0:1], %d' % (SP0+4, SP0+5, A_DSK))
def xx_fill(G):
    T = XT; I = G.ins
    SA, DA = T+27, T+28
    I('s_lshl_b32 s3, s%d, 8' % S_MT); I('s_lshl_b32 s4, s%d, 6' % S_SP); I('s_add_u32 s3, s3, s4')
    I('s_lshl_b32 s4, s%d, 2' % S_W); I('s_add_u32 s3, s3, s4')
    I('v_and_b32 v%d, 32, v0' % VB_O); I('v_add_u32 v%d, s3, v%d' % (VB_O, VB_O))
    I('v_lshlrev_b32 v%d, 3, v%d' % (SA, VB_O))
    I('v_mul_u32_u24 v%d, 576, v%d' % (VB_O, VB_O))
    I('v_and_b32 v%d, 31, v0' % (VB_O+1)); I('s_mul_i32 s4, s%d, 96' % S_NT)
    I('v_add_u32 v%d, s4, v%d' % (DA, VB_O+1)); I('v_add_u32 v%d, v%d, v%d' % (VB_O, VB_O, DA)); I('v_lshlrev_b32 v%d, 1, v%d' % (DA, DA))
    I('v_lshlrev_b32 v%d, 2, v%d' % (VB_O+1, VB_O)); I('v_add_u32 v%d, 4608, v%d' % (VB_O+2, VB_O+1)); I('v_lshlrev_b32 v%d, 1, v%d' % (VB_O, VB_O))
    if P('X4', 1):
        I('v_and_b32 v%d, 3, v0' % (VB_O+2)); I('v_mul_u32_u24 v%d, 2300, v%d' % (VB_O+2, VB_O+2)); I('v_add_u32 v%d, v%d, v%d' % (VB_O+1, VB_O+1, VB_O+2))
        for r, v in zip(S_QM, (0x55555555, 0xaaaaaaaa, 0x33333333, 0xcccccccc)):
            I('s_mov_b32 s%d, 0x%x' % (r, v)); I('s_mov_b32 s%d, s%d' % (r+1, r))
    G.fn(lambda a: srd(a, S_X, SP0, 2048*1152), 4); G.fn(lambda a: srd(a, S_OUT, SP0+2, 2048*2304), 4)
    I('s_movk_i32 s7, %d' % (16*1152)); I('s_mov_b32 s6, %d' % STAT_OFF)
    for dt in range(3):
        I('global_load_ushort v%d, v%d, s[%d:%d] offset:%d' % (T+20+dt, DA, SP0+4, SP0+5, dt*64), 'xx0')
    for j in range(2):
        for k in range(12):
            I('buffer_load_ushort v%d, v%d, s[%d:%d], %s offen offset:%d' % (T+k, VB_O, S_X, S_X+3, 's7' if j else '0', (k % 4)*1152 + (k//4)*64), 'xx%d' % j, 0, P('XXSP', 3))
        for u in range(2):
            I('buffer_load_dwordx4 %s, v%d, %s, s6 offen offset:%d sc1' % (vr(T+12+4*u, 4), SA, WSR, j*128 + u*16), 'xx%d' % j)
        G.fn(lambda a, j=j: a.wait_vm('xx%d' % j), 1, 0, P('XXD', 30))
        if j == 0:
            for dt in range(3): I('v_lshlrev_b32 v%d, 16, v%d' % (T+20+dt, T+20+dt))
        x = lambda k: T+k
        t = lambda k: T+23+k % 4
        mm = lambda k: T+12+2*(k % 4)
        rnd = [lambda k: None if k % 2 else 'v_cvt_pk_bf16_f32 v%d, v%d, v%d' % (t(k+1), t(k), t(k+1)),
               lambda k: ('v_and_b32 v%d, 0xffff0000, v%d' % (t(k), t(k))) if k % 2 else ('v_lshlrev_b32 v%d, 16, v%d' % (t(k), t(k+1)))]
        st = [lambda k: 'v_lshlrev_b32 v%d, 16, v%d' % (x(k), x(k)),
              lambda k: 'v_sub_f32 v%d, v%d, v%d' % (t(k), x(k), mm(k))] + rnd + [
              lambda k: 'v_mul_f32 v%d, v%d, v%d' % (t(k), t(k), mm(k)+1)] + rnd + [
              lambda k: 'v_mul_f32 v%d, v%d, v%d' % (t(k), t(k), T+20+k//4),
              lambda k: 'v_cvt_pk_bf16_f32 v%d, v%d, v%d' % (t(k), x(k), t(k)),
              lambda k: 'v_accvgpr_write_b32 a%d, v%d' % (A_XX+12*j+k, t(k))]
        for k0 in range(0, 12, 4):
            for s in st:
                for k in range(k0, k0+4):
                    tx = s(k)
                    if tx: I(tx)

FPA = 9; FPL = 8
def flag_lanes(a, two):
    a('v_and_b32 v14, 31, v0'); a('v_lshrrev_b32 v15, v14, s%d' % S_MASK); a('v_and_b32 v15, 1, v15'); a('v_xor_b32 v15, 1, v15')
    a('v_lshlrev_b32 v%d, 7, %s' % (FPA, 'v0' if two else 'v14'))
    a('v_lshl_add_u32 v%d, v15, 30, v%d' % (FPA, FPA))
def flag_poll(tag='hp'):
    def ld(a):
        a('buffer_load_dword v%d, v%d, %s, s%d offen sc1' % (FPL, FPA, WSR, S_PF), tag)
    def chk(a):
        a('v_cmp_ne_u32 vcc, s%d, v%d' % (S_NONCE, FPL))
        a('s_nop 1')
        a('s_or_b32 s4, vcc_lo, vcc_hi'); a('s_and_b32 s4, s4, s%d' % S_MASK)
        a('s_cmp_eq_u32 s4, 0')
    return ld, chk

def b_common(a, ssm, part=0):
  if part != 2:
    a('s_mul_i32 s%d, s%d, %d' % (S_HBB, S_MT, 8*HF_RB)); a('s_mul_i32 s3, s%d, %d' % (S_SP, 72*1024))
    a('s_add_u32 s%d, s%d, s3' % (S_HBB, S_HBB)); a('s_add_u32 s%d, s%d, %d' % (S_HBB, S_HBB, HF_OFF))
    a('s_lshl_b32 s4, s%d, 3' % S_W)
    a('v_add_u32 v14, s4, v0'); a('v_and_b32 v14, 31, v14'); a('v_and_b32 v15, 32, v0'); a('v_add_u32 v14, v14, v15')
    a('s_mul_i32 s3, s%d, %d' % (S_W, 18*1024)); a('v_lshl_add_u32 v%d, v14, 4, s3' % VB_HO)
  if part != 1:
    a('s_mul_i32 s%d, s%d, 48' % (S_TEAM, S_MT)); a('s_add_u32 s%d, s%d, s%d' % (S_TEAM, S_TEAM, S_NT))
    if ssm:
        a('s_lshl_b32 s3, s%d, 14' % S_TEAM); a('s_add_u32 s%d, s3, %d' % (S_PB, PY_OFF))
        a('s_lshl_b32 s3, s%d, 12' % S_W); a('v_lshl_add_u32 v%d, v0, 4, s3' % VB_PO)
    else:
        a('s_lshl_b32 s3, s%d, 13' % S_TEAM); a('s_mul_i32 s4, s%d, %d' % (S_SP, 64*6*8192)); a('s_add_u32 s3, s3, s4'); a('s_add_u32 s%d, s3, %d' % (S_PB, PF_OFF))
        a('s_lshl_b32 s3, s%d, 11' % S_W); a('v_lshl_add_u32 v%d, v0, 4, s3' % VB_PO)
    for q in range(1, 4):
        a('s_sub_u32 s3, s%d, %d' % (S_W, q)); a('s_and_b32 s3, s3, 3'); a('s_mul_i32 s3, s3, 9216'); a('s_add_u32 s3, s3, %d' % ((q-1)*3072 + SLAB))
        a('v_lshl_add_u32 v%d, v0, 4, s3' % (VB_RR+q-1))
    a('s_mul_i32 s3, s%d, 9216' % S_W); a('s_add_u32 s3, s3, %d' % SLAB); a('v_lshl_add_u32 v%d, v0, 4, s3' % VB_RW)

def phaseB(a, ssm, st):
    os.environ['CLD'] = os.environ.get('CLDB', '2'); os.environ['CST'] = os.environ.get('CSTB', '3')
    NH = P('NHS', 24) if ssm else P('NHF', 18)
    hslot = lambda n: VB_H + 4*(n % NH)
    KE = P('KE', 8)
    seq = [(0, k) for k in range(KE)] + [(1, k) for k in range(KE)] + [(0, k) for k in range(KE, 18)] + [(1, k) for k in range(KE, 18)]
    seq += [(i, ks) for i in range(2, 8) for ks in range(18)]
    if ssm: seq = [(i, ks) for i in range(8) for ks in range(18)]
    def hload(a, n):
        i, ks = seq[n]
        if n == 0 or seq[n-1][0] != i:
            a('s_mul_i32 s%d, s%d, %d' % (S_HN, S_ORD+i, HF_RB)); a('s_add_u32 s%d, s%d, s%d' % (S_HN, S_HN, S_HBB))
            if ks: a('s_add_u32 s%d, s%d, %d' % (S_HN, S_HN, (ks//4)*4096))
        elif ks % 4 == 0: a('s_add_u32 s%d, s%d, 4096' % (S_HN, S_HN))
        a('buffer_load_dwordx4 %s, v%d, %s, s%d offen offset:%d sc1' % (vr(hslot(n), 4), VB_HO, WSR, S_HN, (ks % 4)*1024), 'h%d' % n)
    a.tagcount = {}
    a.vm = ['st']; a.seen |= {'st'}
    nld = [0]; okl = [ssm]
    def next_h(a):
        if nld[0] < 144: hload(a, nld[0]); nld[0] += 1
    a('s_add_u32 s%d, s%d, %d' % (S_TF, S_T4, HFL_OFF))
    if ssm:
        for i, r in enumerate((0, 2, 4, 6, 1, 3, 3, 3)): a('s_mov_b32 s%d, %d' % (S_ORD+i, r))
        a('s_mov_b32 s%d, 1' % S_SHORT); a('s_mov_b32 s%d, 0' % S_T3)
        for k2 in range(12 + TDN, 18):
            for t in w2_dma(k2): a(t, 'v%d' % k2)
        b_common(a, ssm)
    else:
        for i in range(3):
            a('s_add_u32 s3, s%d, %d' % (S_SP, i+1)); a('s_and_b32 s3, s3, 3'); a('s_lshl_b32 s%d, s3, 1' % (S_ORD+i)); a('s_add_u32 s%d, s%d, 1' % (S_ORD+3+i, S_ORD+i))
        b_common(a, ssm, 1)
        for _ in range(P('HBURST', 10)): next_h(a)
        a('s_lshl_b32 s%d, s%d, 1' % (S_ORD+6, S_SP)); a('s_add_u32 s%d, s%d, 1' % (S_ORD+7, S_ORD+6))
        xx_setup(a)
        b_common(a, ssm, 2)
    a('v_mov_b32 v%d, v%d' % (VB_RD, V_RDB))
    for ks in range(6, 12): w2_read(a, ks, ssm)
    a('v_subrev_u32 v%d, %d, v%d' % (VB_RD, SLAB, V_RDB))
    a('s_waitcnt lgkmcnt(0)')
    a.wait_vm('st'); a('s_barrier')
    a('buffer_store_dword v%d, v%d, %s, s%d offen sc1' % (V_PL, V_PA, WSR, S_TF), 'fl')
    nstamp(a, 'flg')
    if ssm:
        if TDN < 6: a.wait_vm('v17')
        for ks in range(12, 18): w2_read(a, ks, ssm)
        a('s_waitcnt lgkmcnt(0)')
        a('B_SSM2:')
        a.vm = []
        for _ in range(P('HBURST', 10)): next_h(a)
    S = Sched(a); R = S.stream('red'); G = S.stream('xchg'); C = S.stream('chain')
    C.gate = lambda: not R.q and 'prepA' in a.seen
    if not ssm:
        XR = VB_H + 4*NH
        L = [XR + 4*k for k in range(6)]
        PSr = [XR+24+k for k in range(8)] + [VB_RB+36+k for k in range(4)]
        psA = lambda k: PSr[k]
        yA = L[:4]
        acq = [accr(0, dt) + 4*q for q in (1, 2, 3) for dt in range(3)]
        fB = L[4:6] + acq[:4]; yB = [hslot(126+k) for k in range(4)]
        psB = lambda k: acq[6 + k//4] + k % 4
    if not ssm:
        I = G.ins
        l2, c2 = flag_poll('hl')
        I('s_lshl_b32 s3, s%d, 3' % S_SP); I('s_lshl_b32 s3, 0xff, s3'); I('s_lshl_b32 s5, s%d, 2' % S_SP); I('s_lshl_b32 s5, 0x3f, s5')
        I('s_or_b32 s3, s3, s5'); I('s_and_b32 s%d, s%d, s3' % (S_MASK, S_MASK))
        I('s_add_u32 s%d, s%d, %d' % (S_PF, S_PF, HFL_OFF - HEF_OFF))
        for k2 in range(12 + TDN, 18):
            for t in w2_dma(k2): I(t, 'v%d' % k2, P('D15', 6) + P('D15S', 2)*(k2-12-TDN), P('D15D', 0) if 'lds' in t else 0)
        C.gate, gsave = None, C.gate
        C.fn(l2, 2, P('LP0', 16)); C.fn(lambda a: setattr(C, 'gate', gsave), 0)
        S.streams = [C, R, G]
        I('s_mul_i32 s5, s%d, 12' % S_SP); I('s_add_u32 s5, s5, s%d' % S_TEAM); I('s_lshl_b32 s5, s5, 13')
        for src in range(3):
            I('s_sub_u32 s3, s%d, %d' % (S_SP, src+1)); I('s_and_b32 s3, s3, 3'); I('s_mul_i32 s3, s3, %d' % (64*6*8192))
            I('s_add_u32 s3, s3, s5'); I('s_add_u32 s%d, s3, %d' % (S_FB+src, PF_OFF))
        I('s_lshl_b32 s5, s5, 1'); I('s_add_u32 s%d, s5, %d' % (S_T2, PY_OFF)); I('s_mov_b32 s%d, 0' % S_T3)
        tmp = Asm()
        for ks in range(12, 18): w2_read(tmp, ks, False)
        for k, t in enumerate(tmp.lines):
            if k % 6 == 0 and k//6 >= TDN: G.fn(lambda a, k=k: a.wait_vm('v%d' % (12 + k//6)), 1, P('RDAT', 40) + P('RDS', 3)*(k//6))
            I(t.strip(), 'wr%d' % (12 + k//6))
        I('s_lshl_b32 s3, s%d, 12' % S_W); I('v_lshl_add_u32 v%d, v0, 4, s3' % VB_RD)
        G.fn(lambda a: None, 0, P('LPC', 33) + 1)
        xx_fill(G)
    for n in range(144):
        i, ks = seq[n]; s = i & 1; p = n // 18
        if ks == 0:
            S.note = None; S.drain(('acc', s))
            if S.note: sys.stderr.write('  B forced drain at block %d: %s\n' % (i, S.note))
        if n % 18 == 0:
            if ssm and p == 6:
                S.drain()
                a('s_cmp_eq_u32 s%d, 1' % S_SHORT); a('s_cbranch_scc1 B_SSM_TAIL')
            if p in (0, 7): stamp(a, st)
            nstamp(a, 'b%d' % p)
        base = S.mf
        if n > 0 and seq[n-1][1] == 17:
            j = seq[n-1][0]
            reduce_fill(R, j, base + 2, ssm or j < 6, ssm, None, 1, 1 if (not ssm and j == 0) else P('WRD', 2))
        if not ssm and 'lat' in X and n == 18*5:
            a('s_waitcnt vmcnt(0)'); nstamp(a, 'l0'); a('s_waitcnt lgkmcnt(0)')
            a(ffn_loads(L)[0]); a('s_waitcnt vmcnt(0)'); nstamp(a, 'l1'); a('s_waitcnt lgkmcnt(0)')
            a(ffn_loads(L)[4]); a('s_waitcnt vmcnt(0)'); nstamp(a, 'l2'); a('s_waitcnt lgkmcnt(0)')
            a(y_loads(L)[0]); a('s_waitcnt vmcnt(0)'); nstamp(a, 'l3'); a('s_waitcnt lgkmcnt(0)')
            a('s_mul_i32 s3, s%d, %d' % (S_ORD+7, HF_RB)); a('s_add_u32 s3, s3, s%d' % S_HBB)
            a('buffer_load_dwordx4 %s, v%d, %s, s3 offen sc1' % (vr(L[0], 4), VB_HO, WSR)); a('s_waitcnt vmcnt(0)'); nstamp(a, 'l4'); a('s_waitcnt lgkmcnt(0)')
            a('buffer_store_dwordx4 %s, v%d, %s, s3 offen sc1' % (vr(L[0], 4), VB_HO, WSR)); a('s_waitcnt vmcnt(0)'); nstamp(a, 'l5'); a('s_waitcnt lgkmcnt(0)')
        if not ssm and n % 18 == 0:
            if p == (5 if 'lat' in X else 4):
                FA0 = P('FA0', 0); FSP = P('FSP', 12)
                for k, t in enumerate(ffn_loads(L)): G.ins(t, 'fA', base + FA0 + FSP*k)
                checked(G, 'fA', ffn_loads(L), L, P('CHKD', 40))
                presum(G, L, psA)
                for src in range(3): G.ins('s_add_u32 s%d, s%d, %d' % (S_FB+src, S_FB+src, 6*8192))
            if p == 6:
                for k, t in enumerate(y_loads(yA)): G.ins(t, 'yA', base + P('YAAT', 0) + P('YSP', 7)*k)
                for k, t in enumerate(ffn_loads(fB)[:2]): G.ins(t, 'fB', 0, P('YSP', 7))
                checked(G, 'yA', y_loads(yA), yA, P('CHKD2', 22))
                prep_s(G, 0, yA); G.fn(lambda a: a.seen.add('prepA'), 0)
                G.ins('s_add_u32 s%d, s%d, %d' % (S_T2, S_T2, 6*16384))
            if p == 7:
                G.fn(lambda a: ('rr6' in a.seen) or sys.exit('order'), 0, base + P('FBAT', 24))
                lb = ffn_loads(fB)
                for t in lb[2:4]: G.ins(t, 'fB', 0, 3)
                for t in y_loads(yB): G.ins(t, 'yB', 0, 3)
                for t in lb[4:6]: G.ins(t, 'fB', 0, 3)
                chain(C, 0, psA, yA)
        if ssm and i in (0, 2, 4):
            l2, c2 = flag_poll('hp%d' % i)
            if ks == 0: S.must_fn(lambda a: (a('s_add_u32 s%d, s%d, s%d' % (S_PF, S_PF, S_T3)), l2(a)))
            if ks == 35 - NH:
                assert nld[0] <= 18*(i+2)
                S.must_fn(lambda a: (a.wait_vm('hp%d' % i), poll_loop(a, l2, c2, 4)))
        if not okl[0] and S.mf >= P('LPC', 33):
            S.must_fn(lambda a: (nstamp(a, 'lp0'), a.wait_vm('hl'), poll_loop(a, l2, c2, 1, 'r_l'), nstamp(a, 'lp1')))
            okl[0] = True; S.streams = [R, G, C]
            for _ in range(P('LBURST', 6)):
                if nld[0] < n + NH: S.must_fn(next_h)
        S.fill(reserve=1)
        S.must_fn(lambda a: a.wait_vm('h%d' % n))
        if not ssm and i == 0 and ks >= 12:
            assert a.tagcount.get('wr%d' % ks, 0) == 6, ks
            S.must_fn(lambda a: a.wait_lg('wr%d' % ks))
        for dt in range(3):
            d = vr(accr(s, dt), 16)
            S.mfma('v_mfma_f32_32x32x16_bf16 %s, %s, %s, %s' % (d, vr(hslot(n), 4), wfrag(ks, dt), d if ks else '0'))
            lim = n + NH + (1 if dt == 2 else 0)
            if not okl[0]: lim = min(lim, 2*KE)
            if nld[0] < min(lim, 144) and (dt != 1 or n < 36): S.must_fn(next_h)
    sys.stderr.write('phaseB ssm=%d pending at end: %s\n' % (ssm, S.pending()))
    stamp(a, st); nstamp(a, 'e0')
    S.mf += 1000
    if ssm:
        S.drain()
        a('B_SSM_TAIL:')
        a('s_nop 11')
        a.lg = []
        reduce_fill(R, 7, 0, True, True); S.drain()
        stamp(a, st)
    else:
        S.drain(stream=R); S.drain(stream=G)
        restA = C.q; C.q = []
        reduce_fill(R, 7, 0, False, False)
        wr = R.q[:9]; rest = R.q[9:]
        R.q = []
        k = 0
        while wr or restA[k:]:
            if wr: R.q.append(wr.pop(0))
            R.q += restA[k:k+6]; k += 6
        S.drain()
        stamp(a, st); nstamp(a, 'e1')
        R.q = rest[:10]; S.drain()
        checked(G, 'yB', y_loads(yB), yB, 0); prep_s(G, 1, yB); S.drain()
        R.q = rest[10:]; S.drain()
        nstamp(a, 'e2')
        checked(G, 'fB', ffn_loads(fB), fB, 0); presum(G, fB, psB)
        G.ins('s_mov_b32 s%d, %d' % (S_T3, 16*2304))
        chain(G, 1, psB, yB); S.drain()
        a('s_lshl_b32 s3, s%d, 9' % S_SP); a('s_add_u32 s3, s3, s%d' % S_TEAM); a('s_lshl_b32 s4, s%d, 12' % S_W); a('s_add_u32 s3, s3, s4')
        a('s_cmp_eq_u32 s3, %d' % (7*48))
        a('s_cbranch_scc0 NOBUMP')
        a('v_mov_b32 v14, %d' % NONCE_OFF); a('v_mov_b32 v15, s%d' % S_NONCE)
        a('s_mov_b64 exec, 1')
        a('buffer_store_dword v15, v14, %s, 0 offen sc1' % WSR)
        a('NOBUMP:')
    stamp_flush(a, st, 0, S_WS, S_W, 14)
    a('s_endpgm')

def ln_part(a):
    X = 48; F = 72; T = 112
    a('s_lshl_b32 s3, s2, 1'); a('s_add_u32 s3, s3, s%d' % S_W)
    a('s_lshr_b32 s4, s3, 4'); a('s_lshl_b32 s4, s4, 6')
    a('s_and_b32 s5, s3, 1'); a('s_lshl_b32 s5, s5, 5'); a('s_add_u32 s4, s4, s5')
    a('s_bfe_u32 s5, s3, 0x10003'); a('s_lshl_b32 s5, s5, 4'); a('s_add_u32 s4, s4, s5')
    a('s_bfe_u32 s5, s3, 0x20001'); a('s_lshl_b32 s5, s5, 2'); a('s_add_u32 s4, s4, s5')
    a('v_and_b32 v%d, 3, v0' % T); a('v_lshrrev_b32 v%d, 2, v0' % (T+1))
    a('v_add_u32 v%d, s4, v%d' % (T+2, T))
    a('v_mul_u32_u24 v%d, 1152, v%d' % (T+3, T+2)); a('v_lshl_add_u32 v%d, v%d, 4, v%d' % (T+3, T+1, T+3))
    for k in range(4): a('v_mov_b32 v%d, 0' % (X+16+k))
    a('s_waitcnt lgkmcnt(0)'); nstamp(a, 'ln0')
    for n in range(4):
        a('global_load_dwordx4 %s, v%d, s[%d:%d] offset:%d%s' % (vr(X+4*n, 4), T+3, SP0, SP0+1, 256*n, XNT), 'lx')
    a('s_mov_b32 exec_hi, 0')
    a('global_load_dwordx4 %s, v%d, s[%d:%d] offset:1024%s' % (vr(X+16, 4), T+3, SP0, SP0+1, XNT), 'lx')
    a('s_mov_b32 exec_hi, -1')
    ws_srd(a)
    a('s_load_dword s%d, s[%d:%d], %d' % (S_NONCE, S_WS, S_WS+1, NONCE_OFF))
    a('s_lshr_b32 s5, s3, 3'); a('s_mul_i32 s5, s5, 36864'); a('s_and_b32 s6, s3, 7'); a('s_lshl_b32 s6, s6, 7'); a('s_add_u32 s5, s5, s6')
    a('s_add_u32 s5, s5, %d' % XF_OFF)
    a('v_lshrrev_b32 v%d, 3, v0' % (T+4)); a('v_lshlrev_b32 v%d, 10, v%d' % (T+4, T+4))
    a('v_and_b32 v%d, 7, v0' % (T+5)); a('v_lshl_add_u32 v%d, v%d, 4, v%d' % (T+4, T+5, T+4))
    a('v_lshlrev_b32 v%d, 3, v%d' % (T+2, T+2))
    MK = S_T; HM = S_T2
    a('s_mov_b32 s%d, 0xffff0000' % HM)
    DRY = P('DRY', 0)
    if DRY:
        a('s_mov_b32 s%d, 0' % MK); a('s_mov_b64 exec, 0')
    else:
        a('s_mov_b32 s%d, -1' % MK); a('s_waitcnt vmcnt(0)'); nstamp(a, 'ln1')
    a('LN_BODY:')
    def unpack(n): a('v_lshlrev_b32 v%d, 16, v%d' % (F+2*n, X+n)); a('v_and_b32 v%d, s%d, v%d' % (F+2*n+1, HM, X+n))
    A = T+8
    def allred(r):
        return ['v_add_f32_dpp v%d, v%d, v%d row_ror:4 row_mask:0xf bank_mask:0xf' % (r, r, r),
                'v_add_f32_dpp v%d, v%d, v%d row_ror:8 row_mask:0xf bank_mask:0xf' % (r, r, r),
                'v_mov_b32 v%d, v%d' % (T+6, r), 'v_permlane16_swap_b32 v%d, v%d' % (r, T+6), 'v_add_f32 v%d, v%d, v%d' % (r, r, T+6),
                'v_mov_b32 v%d, v%d' % (T+6, r), 'v_permlane32_swap_b32 v%d, v%d' % (r, T+6), 'v_add_f32 v%d, v%d, v%d' % (r, r, T+6)]
    pr = lambda r: vr(r, 2)
    Q = A+4
    for n in range(20):
        unpack(n)
        if n >= 5:
            k = n - 1
            a('v_pk_add_f32 %s, %s, %s' % (pr(Q+2*(k % 4)), pr(F+2*(k-4)) if k < 8 else pr(Q+2*(k % 4)), pr(F+2*k)))
    a('v_pk_add_f32 %s, %s, %s' % (pr(Q+6), pr(Q+6), pr(F+38)))
    a('v_pk_add_f32 %s, %s, %s' % (pr(Q), pr(Q), pr(Q+2))); a('v_pk_add_f32 %s, %s, %s' % (pr(Q+4), pr(Q+4), pr(Q+6)))
    a('v_pk_add_f32 %s, %s, %s' % (pr(Q), pr(Q), pr(Q+4))); a('v_add_f32 v%d, v%d, v%d' % (A+2, Q, Q+1))
    for t in allred(A+2): a(t)
    a('v_mul_f32 v%d, 0x%08x, v%d' % (A+2, f32bits(1.0/576), A+2))
    a('v_cvt_pk_bf16_f32 v%d, v%d, v%d' % (A, A+2, A+2)); a('v_lshlrev_b32 v%d, 16, v%d' % (A, A))
    a('v_sub_f32 v%d, v%d, v%d' % (A+2, A+2, A))
    for n in range(20):
        if n == 16: a('s_mov_b32 exec_hi, 0')
        a('v_pk_add_f32 %s, %s, %s op_sel_hi:[1,0] neg_lo:[0,1] neg_hi:[0,1]' % (pr(F+2*n), pr(F+2*n), pr(A)))
        if n % 4 == 3:
            for k in range(n-3, n+1):
                d = pr(F+2*k); q = pr(Q+2*(k % 4))
                a(('v_pk_mul_f32 %s, %s, %s' % (q, d, d)) if k < 4 else ('v_pk_fma_f32 %s, %s, %s, %s' % (q, d, d, q)))
    a('s_mov_b32 exec_hi, s%d' % MK)
    ch = ['v_pk_add_f32 %s, %s, %s' % (pr(Q), pr(Q), pr(Q+2)), 'v_pk_add_f32 %s, %s, %s' % (pr(Q+4), pr(Q+4), pr(Q+6)),
          'v_pk_add_f32 %s, %s, %s' % (pr(Q), pr(Q), pr(Q+4)), 'v_add_f32 v%d, v%d, v%d' % (A+1, Q, Q+1)] + allred(A+1) + [
          'v_mul_f32 v%d, 0x%08x, v%d' % (A+1, f32bits(1.0/576), A+1),
          'v_fma_f32 v%d, -v%d, v%d, v%d' % (A+1, A+2, A+2, A+1),
          'v_cvt_pk_bf16_f32 v%d, v%d, v%d' % (A+1, A+1, A+1), 'v_lshlrev_b32 v%d, 16, v%d' % (A+1, A+1),
          'v_add_f32 v%d, 0x%08x, v%d' % (A+1, f32bits(1e-5), A+1),
          'v_cvt_pk_bf16_f32 v%d, v%d, v%d' % (A+1, A+1, A+1), 'v_lshlrev_b32 v%d, 16, v%d' % (A+1, A+1),
          'v_sqrt_f32 v%d, v%d' % (A+1, A+1),
          'v_cvt_pk_bf16_f32 v%d, v%d, v%d' % (A+1, A+1, A+1), 'v_lshlrev_b32 v%d, 16, v%d' % (A+1, A+1),
          'v_rcp_f32 v%d, v%d' % (A+1, A+1)]
    for n in range(21):
        if n < 20: a('v_cvt_pk_bf16_f32 v%d, v%d, v%d' % (X+n, F+2*n, F+2*n+1))
        if ch: a(ch.pop(0))
        if n > 0: unpack(n-1)
    for t in ch: a(t)
    for q in range(5):
        if q == 4: a('s_mov_b32 exec_hi, 0')
        ns = range(4*q, 4*q+4)
        for n in ns: a('v_pk_mul_f32 %s, %s, %s op_sel:[0,1] op_sel_hi:[1,1]' % (pr(F+2*n), pr(F+2*n), pr(A)))
        for n in ns: a('v_cvt_pk_bf16_f32 v%d, v%d, v%d' % (X+n, F+2*n, F+2*n+1))
        if DRY: a('s_cbranch_execz LN_S%d' % q)
        a('buffer_store_dwordx4 %s, v%d, %s, s5 offen sc1' % (vr(X+4*q, 4), T+4, WSR))
        if q < 4: a('s_add_u32 s5, s5, 8192')
        if DRY and q < 4: a('LN_S%d:' % q)
    if DRY:
        a('s_branch LN_REAL_DONE')
        a('LN_S4:')
        a('s_mov_b32 s%d, -1' % MK); a('s_mov_b64 exec, -1'); nstamp(a, 'lnd')
        a('s_waitcnt vmcnt(0)'); nstamp(a, 'ln1')
        a('s_branch LN_BODY')
        a('LN_REAL_DONE:')
    a('s_mov_b32 exec_lo, 15')
    a('s_mov_b32 s5, %d' % STAT_OFF)
    assert A % 2 == 0
    a('buffer_store_dwordx2 %s, v%d, %s, s5 offen sc1' % (vr(A, 2), T+2, WSR))
    a('s_mov_b64 exec, -1'); nstamp(a, 'ln2')
    a('s_waitcnt lgkmcnt(0)')
    nonce_mix(a)
    a('s_lshl_b32 s3, s3, 7'); a('s_add_u32 s3, s3, %d' % LNF_OFF)
    a('v_mov_b32 v%d, 0' % T); a('v_mov_b32 v%d, s%d' % (T+1, S_NONCE))
    a('s_mov_b64 exec, 1')
    a('s_waitcnt vmcnt(0)')
    a('buffer_store_dword v%d, v%d, %s, s3 offen sc1' % (T+1, T, WSR)); nstamp(a, 'ln3')
    a('s_mov_b64 exec, -1')

def nonce_mix(a):
    a('s_mul_i32 s%d, s%d, 0x0019660d' % (S_NONCE, S_NONCE))
    a('s_add_u32 s%d, s%d, 0x3c6ef35f' % (S_NONCE, S_NONCE))

def light_part(a):
    if P('LBAR', 1): a('s_barrier')
    a('s_cmp_eq_u32 s%d, 0' % S_W); a('s_cbranch_scc1 LIGHT2')
    a('s_load_dwordx4 s[%d:%d], s[0:1], %d' % (SP0, SP0+3, A_CRE))
    a('s_sub_u32 s3, s2, 240'); a('s_mul_i32 s3, s3, 3'); a('s_add_u32 s3, s3, s%d' % S_W); a('s_sub_u32 s3, s3, 1')
    a('s_lshr_b32 s4, s3, 3'); a('s_mul_i32 s4, s4, %d' % (96*1152))
    a('s_bfe_u32 s5, s3, 0x10001'); a('s_mul_i32 s5, s5, 576'); a('s_add_u32 s4, s4, s5')
    a('s_and_b32 s5, s3, 1'); a('s_mul_i32 s5, s5, 288'); a('s_add_u32 s4, s4, s5')
    a('v_and_b32 v1, 31, v0'); a('v_mul_u32_u24 v1, 1152, v1'); a('v_lshrrev_b32 v2, 5, v0'); a('v_lshl_add_u32 v1, v2, 4, v1'); a('v_add_u32 v1, s4, v1')
    a('v_add_u32 v2, %d, v1' % (32*1152)); a('v_add_u32 v3, %d, v1' % (64*1152))
    a('v_lshlrev_b32 v4, 4, v0')
    a('s_mul_i32 s6, s3, 27648'); a('s_add_u32 s6, s6, %d' % CF_OFF)
    a('s_waitcnt lgkmcnt(0)')
    a('s_bitcmp1_b32 s3, 2')
    a('s_cselect_b32 s%d, s%d, s%d' % (SP0, SP0+2, SP0)); a('s_cselect_b32 s%d, s%d, s%d' % (SP0+1, SP0+3, SP0+1))
    for f in range(27):
        a('global_load_dwordx4 %s, v%d, s[%d:%d] offset:%d' % (vr(16+4*f, 4), 1 + f % 3, SP0, SP0+1, (f//3)*32), 'c%d' % f)
    for f in range(27):
        a.wait_vm('c%d' % f)
        a('buffer_store_dwordx4 %s, v4, %s, s6 offen offset:%d sc1' % (vr(16+4*f, 4), WSR, (f % 4)*1024))
        if f % 4 == 3: a('s_add_u32 s6, s6, 4096')
    a('s_lshl_b32 s3, s3, 7'); a('s_add_u32 s3, s3, %d' % CFL_OFF)
    a('v_mov_b32 v1, 0'); a('v_mov_b32 v2, s%d' % S_NONCE)
    a('s_mov_b64 exec, 1')
    a('s_waitcnt vmcnt(0)')
    a('buffer_store_dword v2, v1, %s, s3 offen sc1' % WSR)
    a('s_mov_b64 exec, -1')
    a('LIGHT2:')
    a.vm = []
    a('s_cmp_ge_u32 s2, 252'); a('s_cbranch_scc1 KEND')
    a('s_sub_u32 s3, s2, 240'); a('s_lshr_b32 s%d, s3, 1' % S_NT); a('s_and_b32 s3, s3, 1')
    a('s_lshl_b32 s4, s3, 1'); a('s_add_u32 s4, s4, 5')
    for i in range(8): a('s_add_u32 s%d, s4, %d' % (S_ORD+i, 8*i))
    a('s_mov_b32 s%d, 0' % S_MT); a('s_mov_b32 s%d, 4' % S_SP); a('s_mov_b32 s%d, 0' % S_SHORT); a('s_mov_b32 s%d, 0x3ffff' % S_MASK)
    a('s_mov_b32 s%d, %d' % (S_PF, HSF_OFF))
    a('v_min_u32 v1, 47, v0'); a('v_lshlrev_b32 v1, 7, v1'); a('s_mov_b32 s%d, %d' % (S_T3, CFL_OFF))
    ldc = 'buffer_load_dword v2, v1, %s, s%d offen sc1' % (WSR, S_T3)
    a(ldc); a('s_waitcnt vmcnt(0)')
    poll_loop(a, lambda a: a(ldc), chk_all_eq(2), 8)
    a('s_lshl_b32 s4, s%d, 2' % S_NT); a('s_add_u32 s4, s4, s%d' % S_W); a('s_mul_i32 s4, s4, 55296'); a('s_add_u32 s4, s4, %d' % CF_OFF)
    a('v_lshlrev_b32 v4, 4, v0')
    for f in range(54):
        a('buffer_load_dwordx4 %s, v4, %s, s4 offen offset:%d sc1' % (ar(4*f, 4), WSR, (f % 4)*1024))
        if f % 4 == 3: a('s_add_u32 s4, s4, 4096')
    flag_lanes(a, 1)
    a('s_mov_b32 s%d, 8192' % S_T3)
    ld, chk = flag_poll()
    ld(a); a('s_waitcnt vmcnt(0)')
    b_common(a, True)
    poll_loop(a, ld, chk, P('LSLEEP', 6))
    a('s_branch B_SSM2')

def early_pair(a, se, dst):
    a('s_mul_i32 s3, s%d, 86' % se); a('s_lshr_b32 s3, s3, 8'); a('s_mul_i32 s4, s3, 3'); a('s_sub_u32 s4, s%d, s4' % se)
    a('s_cmp_lt_u32 s4, 2'); a('s_cselect_b32 s4, s4, 5')
    a('s_mul_i32 s3, s3, 9'); a('s_add_u32 s3, s3, s4'); a('s_lshl_b32 s%d, s3, 7' % dst)
def mixed_pair(a):
    a('s_lshr_b32 s3, s%d, 1' % S_N); a('s_mul_i32 s3, s3, 9'); a('s_and_b32 s%d, s%d, 1' % (S_SW, S_N))
    a('s_lshl_b32 s4, s%d, 1' % S_SW); a('s_sub_u32 s3, s3, s4'); a('s_add_u32 s3, s3, 6')
    a('s_add_u32 s5, s%d, 54' % S_N); a('s_cmp_lt_u32 s%d, 16' % S_N); a('s_cselect_b32 s3, s3, s5')
    a('s_lshl_b32 s%d, s3, 7' % (S_P+1)); a('s_lshl_b32 s%d, s%d, 11' % (S_SW, S_SW))
def late_pair(a):
    a('s_lshr_b32 s3, s%d, 2' % S_N); a('s_and_b32 s4, s%d, 3' % S_N); a('s_mul_i32 s3, s3, 9'); a('s_add_u32 s3, s3, s4')
    a('s_cmp_lt_u32 s4, 2'); a('s_cselect_b32 s4, 2, 5'); a('s_add_u32 s3, s3, s4'); a('s_lshl_b32 s%d, s3, 7' % (S_P+2))

def gen():
    a = Asm()
    name = PFX + '_kernel'
    a(kernel_header(name))
    a('KSTART:')
    a('s_cmp_ge_u32 s2, 256'); a('s_cbranch_scc1 KEND')
    st = Stamps(); stamp(a, st); nstamp(a, 'start')
    for nm in ('ln0', 'lnd', 'ln1', 'ln2', 'ln3', 'w0a', 'w0b'): nstamp(a, nm)
    a('s_load_dwordx2 s[%d:%d], s[0:1], %d' % (SP0, SP0+1, A_X))
    a('s_load_dwordx2 s[%d:%d], s[0:1], %d' % (SP0+2, SP0+3, D_WS))
    a('s_load_dwordx2 s[%d:%d], s[0:1], %d' % (SP0+4, SP0+5, B_W1))
    a('s_load_dwordx4 s[56:59], s[0:1], %d' % A_BRE)
    a('s_load_dwordx4 s[60:63], s[0:1], %d' % A_LRE)
    a('s_load_dwordx2 s[54:55], s[0:1], %d' % A_LDT)
    a('v_lshrrev_b32 v13, 6, v0')
    a('v_readfirstlane_b32 s%d, v13' % S_W)
    a('v_and_b32 v0, 63, v0')
    a('s_cmp_ge_u32 s%d, 2' % S_W); a('s_cbranch_scc1 SKIP_LN')
    ln_part(a)
    a.vm = []
    a('s_branch LN_DONE')
    a('SKIP_LN:')
    if P('CODEPF', 1):
        a('s_getpc_b64 s[4:5]'); a('PFPC:')
        a('s_sub_u32 s4, s4, PFPC-KSTART'); a('s_subb_u32 s5, s5, 0')
        a('s_lshr_b32 s6, s2, 3'); a('s_and_b32 s6, s6, 7'); a('s_add_u32 s6, s6, 1'); a('s_lshl_b32 s6, s6, 13')
        a('s_cmp_eq_u32 s%d, 3' % S_W); a('s_cselect_b32 s6, 0, s6')
        a('v_lshl_add_u32 v%d, v0, 7, s6' % V_PL)
        a('v_min_u32 v%d, KLAST-KSTART, v%d' % (V_PL, V_PL))
        a('global_load_dword v%d, v%d, s[4:5]' % (V_PL+3, V_PL))
        a.vm = []
    a('LN_DONE:')
    a('s_waitcnt lgkmcnt(0)')
    ws_srd(a)
    a('s_cmp_lt_u32 s%d, 2' % S_W); a('s_cbranch_scc1 HAVE_NONCE')
    a('s_load_dword s%d, s[%d:%d], %d' % (S_NONCE, S_WS, S_WS+1, NONCE_OFF))
    a('s_cmp_lt_u32 s2, 240'); a('s_cbranch_scc1 HAVE_NONCE')
    a('s_waitcnt lgkmcnt(0)'); nonce_mix(a)
    a('HAVE_NONCE:')
    a('s_cmp_lt_u32 s2, 240'); a('s_cbranch_scc1 HEAVY')
    light_part(a)
    a.vm = []
    a('HEAVY:')
    srd(a, S_W1, SP0+4, 576*9216)
    a('s_and_b32 s3, s2, 7'); a('s_lshr_b32 s4, s2, 3')
    a('s_lshr_b32 s5, s3, 1'); a('s_mul_i32 s5, s5, 30'); a('s_add_u32 s5, s5, s4')
    a('s_lshr_b32 s6, s5, 2')
    a('s_mul_i32 s7, s6, 52'); a('s_lshr_b32 s7, s7, 8')
    a('s_mul_i32 s4, s7, 5'); a('s_sub_u32 s4, s6, s4')
    a('s_mul_i32 s6, s7, 3'); a('s_add_u32 s6, s6, s4')
    a('s_lshl_b32 s7, s7, 1'); a('s_add_u32 s7, s7, s4'); a('s_add_u32 s7, s7, 15')
    a('s_cmp_lt_u32 s4, 3'); a('s_cselect_b32 s%d, s6, s7' % S_N)
    a('s_and_b32 s5, s5, 3'); a('s_and_b32 s3, s3, 1'); a('s_lshl_b32 s3, s3, 2'); a('s_add_u32 s%d, s3, s5' % S_G)
    a('s_lshl_b32 s%d, s%d, 10' % (S_M0W, S_W))
    a('v_lshrrev_b32 v13, 3, v0'); a('v_and_b32 v14, 7, v0'); a('v_bfe_u32 v15, v0, 4, 1'); a('v_lshlrev_b32 v15, 2, v15'); a('v_xor_b32 v14, v14, v15')
    a('s_lshl_b32 s3, s%d, 3' % S_W); a('v_add_u32 v13, s3, v13')
    a('v_mul_u32_u24 v%d, 9216, v13' % V_WD); a('v_lshl_add_u32 v%d, v14, 4, v%d' % (V_WD, V_WD))
    def common2():
        a('s_mov_b32 s%d, 0x%08x' % (S_NL2E, f32bits(-LOG2E)))
        a('s_mul_i32 s%d, s%d, %d' % (S_XB, S_G, 8*36864)); a('s_add_u32 s%d, s%d, %d' % (S_XB, S_XB, XF_OFF))
        a('s_mul_i32 s%d, s%d, %d' % (S_HB, S_G, 8*HF_RB)); a('s_add_u32 s%d, s%d, %d' % (S_HB, S_HB, HF_OFF))
        a('s_mul_i32 s3, s%d, 73728' % S_W)
        a('v_bfe_u32 v14, v0, 2, 3'); a('v_lshlrev_b32 v14, 7, v14'); a('v_lshrrev_b32 v15, 5, v0'); a('v_lshl_add_u32 v14, v15, 6, v14')
        a('v_and_b32 v15, 3, v0'); a('v_lshl_add_u32 v14, v15, 4, v14'); a('v_add_u32 v%d, s3, v14' % V_XO)
        a('v_add_u32 v%d, 36864, v%d' % (V_XO+1, V_XO))
        a('s_mul_i32 s3, s%d, %d' % (S_W, 2*HF_RB))
        a('v_lshl_add_u32 v%d, v0, 4, s3' % V_HO); a('v_add_u32 v%d, %d, v%d' % (V_HO+1, HF_RB, V_HO))
        a('v_lshrrev_b32 v14, 5, v0'); a('v_lshlrev_b32 v14, 10, v14')
        a('v_bfe_u32 v15, v0, 2, 2'); a('v_lshl_add_u32 v14, v15, 7, v14')
        a('v_bfe_u32 v15, v0, 4, 1'); a('v_lshl_add_u32 v14, v15, 5, v14')
        a('v_and_b32 v15, 3, v0'); a('v_lshl_add_u32 v14, v15, 3, v14')
        a('v_bfe_u32 v15, v0, 3, 1'); a('v_lshl_add_u32 v%d, v15, 6, v14' % V_TR)
        a('v_xor_b32 v%d, 64, v%d' % (V_TR+1, V_TR))
    def w1_and_poll(tagp):
        nstamp(a, 'w1i')
        common2()
        a('v_and_b32 v%d, 15, v0' % V_PA); a('v_lshlrev_b32 v%d, 7, v%d' % (V_PA, V_PA))
        a('s_lshl_b32 s3, s%d, 13' % S_G); a('s_lshl_b32 s4, s%d, 11' % S_W); a('s_add_u32 s3, s3, s4'); a('s_add_u32 s%d, s3, %d' % (S_T3, LNF_OFF))
        ld = 'buffer_load_dword v%d, v%d, %s, s%d offen sc1' % (V_PL, V_PA, WSR, S_T3)
        a(ld); a('s_waitcnt vmcnt(0)')
        stamp(a, st); nstamp(a, 'pl0')
        poll_loop(a, lambda a: a(ld), chk_all_eq(V_PL))
        stamp(a, st); nstamp(a, 'pl1')
    def w0(mixed):
        L = 'W0SKIP%d' % mixed
        a('s_cmp_lt_u32 s%d, 2' % S_W); a('s_cbranch_scc1 %s' % L); nstamp(a, 'w0a')
        if P('WTOUCH', 0):
            a('s_and_b32 s3, s%d, 3' % S_G); a('s_mul_i32 s3, s3, %d' % (144*9216))
            a('s_cmp_eq_u32 s%d, 3' % S_W); a('s_cselect_b32 s4, s%d, s%d' % (S_P+1, S_P+(1 if mixed else 0))); a('s_add_u32 s3, s3, s4')
            a('v_min_u32 v%d, 47, v0' % V_PA); a('v_mul_u32_u24 v%d, 9216, v%d' % (V_PA, V_PA))
            for k in range(3):
                a('buffer_load_dword v%d, v%d, s[%d:%d], s3 offen' % (V_PL+3, V_PA, S_W1, S_W1+3))
                a('s_add_u32 s3, s3, %d' % (48*9216))
        if mixed:
            a('v_subrev_u32 v%d, %d, v%d' % (V_PA, 16*1152, V_BD))
            for n in range(18): dma_b(a, n//2, n % 2, 'w0'); dma_b(a, n//2, n % 2, 'w0', V_PA, -2048)
        else:
            a('v_subrev_u32 v%d, %d, v%d' % (V_PA, 16*9216, V_WD))
            for n in range(18): dma_w1(a, 0, 0, n, 'w0'); dma_w1(a, 0, 0, n, 'w0', V_PA, -2048)
        a('v_subrev_u32 v%d, %d, v%d' % (V_PA, 16*9216, V_WD))
        for n in range(18): dma_w1(a, 1, 1, n, 'w1'); dma_w1(a, 1, 1, n, 'w1', V_PA, -2048)
        if P('STOUCH', 0):
            a('s_load_dwordx2 s[%d:%d], s[0:1], %d' % (SP0, SP0+1, B_W2)); a('s_waitcnt lgkmcnt(0)')
            srd(a, S_WT, SP0, 4608*1152)
            a('s_lshl_b32 s3, s2, 1'); a('s_add_u32 s3, s3, s%d' % S_W); a('s_sub_u32 s3, s3, 2'); a('s_mul_i32 s3, s3, %d' % (88*128))
            a('v_min_u32 v%d, 43, v0' % V_PA); a('v_lshl_add_u32 v%d, v%d, 7, s3' % (V_PA, V_PA))
            a('buffer_load_dword v%d, v%d, s[%d:%d], 0 offen' % (V_PL+3, V_PA, S_WT, S_WT+3))
            a('v_add_u32 v%d, %d, v%d' % (V_PA, 44*128, V_PA))
            a('buffer_load_dword v%d, v%d, s[%d:%d], 0 offen' % (V_PL+3, V_PA, S_WT, S_WT+3))
        nstamp(a, 'w0b'); a('s_waitcnt lgkmcnt(0)'); nonce_mix(a)
        a(L + ':')
        a.vm = []
    a('s_cmp_lt_u32 s%d, 18' % S_N); a('s_cbranch_scc1 A_MIXED')
    a('s_lshl_b32 s7, s%d, 1' % S_N); a('s_sub_u32 s7, s7, 36')
    early_pair(a, 7, S_P); a('s_add_u32 s7, s7, 1'); early_pair(a, 7, S_P+1); late_pair(a)
    w0(0); w1_and_poll(0)
    phaseA(a, False, st)
    a('s_branch A_DONE')
    nst = st.n; st.n = 1; a.vm = []; a.lg = []; a.seen = set()
    a('A_MIXED:')
    srd(a, S_BRE, 56, 576*1152); srd(a, S_BIM, 58, 576*1152)
    mixed_pair(a); late_pair(a)
    a('v_bfe_u32 v15, v13, 1, 3'); a('v_and_b32 v14, 7, v0'); a('v_xor_b32 v14, v14, v15')
    a('s_lshl_b32 s7, s%d, 5' % S_N); a('v_add_u32 v13, s7, v13')
    a('v_mul_u32_u24 v%d, 1152, v13' % V_BD); a('v_lshl_add_u32 v%d, v14, 4, v%d' % (V_BD, V_BD))
    w0(1)
    a('v_and_b32 v13, 31, v0'); a('v_lshrrev_b32 v14, 5, v0'); a('v_bfe_u32 v15, v0, 1, 3'); a('v_xor_b32 v14, v14, v15')
    a('v_lshlrev_b32 v14, 4, v14'); a('v_lshl_add_u32 v%d, v13, 7, v14' % V_BR)
    for e in range(1, 4): a('v_xor_b32 v%d, %d, v%d' % (V_BR+e, 32*e, V_BR))
    a('v_lshrrev_b32 v14, 5, v0'); a('s_lshl_b32 s4, s%d, 1' % S_W); a('v_add_u32 v%d, s4, v14' % R_SIDX)
    a('v_add_u32 v%d, s%d, v14' % (R_GH, S_G))
    a('v_mul_u32_u24 v%d, 80, v13' % R_TW); a('v_add_u32 v%d, 0x%x, v%d' % (R_TW, E_OFF - E_OFF % 65536, R_TW))
    a('v_lshl_add_u32 v%d, v%d, 3, v%d' % (R_EA, R_SIDX, R_TW)); a('v_add_u32 v%d, 0x%x, v%d' % (R_EA, E_OFF % 65536, R_EA))
    a('v_add_u32 v15, s7, v13')
    a('v_lshlrev_b32 v%d, 4, v15' % R_AW)
    a('v_mul_u32_u24 v14, 9216, v14'); a('v_add_u32 v%d, v14, v%d' % (R_AO, R_AW))
    a('v_min_u32 v14, 1, v%d' % R_SIDX); a('v_lshl_add_u32 v%d, v14, 30, v%d' % (R_AW, R_AW))
    a('v_lshlrev_b32 v15, 1, v15')
    a('global_load_ushort v%d, v15, s[60:61]' % R_T3); a('global_load_ushort v%d, v15, s[62:63]' % R_T4); a('global_load_ushort v%d, v15, s[54:55]' % R_ER)
    a('s_mul_i32 s%d, s%d, 9216' % (S_BB, S_G)); a('s_add_u32 s%d, s%d, %d' % (S_BB, S_BB, AGG_OFF))
    a('s_lshl_b32 s4, s%d, 11' % S_W); a('s_add_u32 s4, s4, %d' % TB_OFF)
    a('v_lshrrev_b32 v14, 5, v0'); a('v_lshlrev_b32 v14, 9, v14')
    a('v_bfe_u32 v15, v0, 2, 2'); a('v_lshl_add_u32 v14, v15, 6, v14')
    a('v_and_b32 v15, 1, v0'); a('v_lshl_add_u32 v14, v15, 5, v14')
    a('v_bfe_u32 v15, v0, 4, 1'); a('v_lshl_add_u32 v14, v15, 4, v14')
    a('v_bfe_u32 v15, v0, 1, 1'); a('v_lshl_add_u32 v14, v15, 3, v14')
    a('v_bfe_u32 v15, v0, 3, 1'); a('v_lshlrev_b32 v15, 4, v15'); a('v_xor_b32 v14, v14, v15')
    a('v_add_u32 v%d, s4, v14' % R_TRD)
    a('v_lshrrev_b32 v14, 5, v0'); a('v_lshlrev_b32 v14, 1, v14'); a('v_bfe_u32 v15, v0, 1, 2'); a('v_xor_b32 v14, v14, v15')
    a('v_lshlrev_b32 v14, 4, v14'); a('v_lshl_add_u32 v14, v13, 6, v14')
    a('v_add_u32 v%d, s4, v14' % R_TWA)
    w1_and_poll(1)
    a('s_lshr_b32 s4, s%d, 5' % S_SW); a('v_xor_b32 v%d, s4, v%d' % (V_TR, V_TR)); a('v_xor_b32 v%d, s4, v%d' % (V_TR+1, V_TR+1))
    a('s_lshl_b32 s4, s%d, 11' % S_N); a('s_add_u32 s4, s4, %d' % (288*1024)); a('s_add_u32 s%d, s4, s%d' % (S_HS, S_HB))
    phaseA(a, True, st)
    assert st.n == nst or not DIAG or STNAMES
    a('A_DONE:')
    a('s_nop 15')
    a.vm = []; a.lg = []; a.seen = set()
    a('s_cmp_eq_u32 s%d, 4' % S_SP); a('s_cbranch_scc1 B_SSM')
    phaseB(a, False, st)
    st.n = nst; a.vm = []; a.lg = []; a.seen = set()
    a('B_SSM:')
    phaseB(a, True, st)
    a.lines.extend(OOL)
    a('KEND:')
    a('KLAST:')
    a('s_endpgm')
    return name, a.lines, kernel_desc(name, 512, 256, 102)

if __name__ == '__main__':
    ref = open('cdna_kernels/%s.s.ref' % PFX).read().split('\n')
    hdr = [l for l in ref if l.startswith(';') and '@launch' not in l and 'Override launch' not in l and 'grid=ceil' not in l][:16]
    name, lines, desc = gen()
    padded, n = pad_hazards(lines)
    sys.stderr.write('%d lines, %d nops inserted\n' % (len(padded), n))
    out = hdr + ['; @launch grid=(256,1,1) block=(256,1,1) lds=%d' % LDS_BYTES, '.amdgcn_target "amdgcn-amd-amdhsa--gfx950"'] + padded + [desc]
    sys.stdout.write('\n'.join(out) + '\n')
```

```python
import sys, os, struct
from asmlib import *
from sched import *
def P(name, dflt): return int(os.environ.get(name, dflt))
def f32bits(x): return struct.unpack('<I', struct.pack('<f', x))[0]
PFX = "recurrent_scan__ssm_conv_s5__dense_activation_silu__prompt"
LOG2E = 1.4426950408889634

WSB      = P('WSB', 0)*1024*1024
NONCE_OFF= 0
STAT_OFF = 16384
AGG_OFF  = 65536
FS       = 128
LNF_OFF  = 256*1024
HEF_OFF  = 320*1024
HFL_OFF  = 384*1024
HSF_OFF  = 448*1024
CFL_OFF  = 512*1024
OOB      = 0x7ffffff0
XF_OFF   = 1024*1024
CF_OFF   = 4*1024*1024
HF_OFF   = 8*1024*1024
HF_RB    = 360*1024
PF_OFF   = 32*1024*1024
if P('COMPACT', 0):
    CF_OFF = XF_OFF + 64*36*1024; HF_OFF = CF_OFF + 24*55296; PF_OFF = HF_OFF + 64*HF_RB
PY_OFF   = (PF_OFF + 4*64*6*8192) if P('COMPACT', 0) else 48*1024*1024
WS_USED  = 64*1024*1024
A_X, A_LRE, A_LIM, A_BRE, A_BIM, A_CRE, A_CIM, A_LDT, A_DSK, B_X, B_W1, B_W2, D_OUT, D_DBG, D_WS = [8*i for i in range(15)]

SLAB = 73728
E_OFF = 2*SLAB
TB_OFF = E_OFF + 3072
LDS_BYTES = TB_OFF + 8192

def ws_srd(a):
    a('s_add_u32 s%d, s%d, 0x%x' % (S_WS, SP0+2, WSB))
    a('s_addc_u32 s%d, s%d, 0' % (S_WS+1, SP0+3))
    a('s_and_b32 s%d, s%d, 0xffff' % (S_WS+1, S_WS+1))
    a('s_mov_b32 s%d, 0x%x' % (S_WS+2, WS_USED))
    a('s_mov_b32 s%d, 0x00020000' % (S_WS+3))
def srd(a, s, lo, nbytes):
    a('s_mov_b32 s%d, s%d' % (s, lo))
    a('s_and_b32 s%d, s%d, 0xffff' % (s+1, lo+1))
    a('s_mov_b32 s%d, 0x%x' % (s+2, nbytes))
    a('s_mov_b32 s%d, 0x00020000' % (s+3))

S_WS = 8; S_W1 = 12; S_BRE = 16; S_BIM = 20; S_WT = 24
S_X = 16; S_OUT = 20
S_G = 28; S_N = 29; S_W = 30; S_XB = 31; S_T = 32; S_M0W = 33
S_P = 34
S_HB = 37; S_T2 = 38; S_BB = 39; S_NL2E = 40; S_TX = 41; S_TF = 42; S_CNT = 43; S_HS = 44; S_NONCE = 45
S_MT = 46; S_NT = 47; S_SP = 48; S_WB = 49; S_WSTR = 50; S_MW = 51; S_T3 = 52; S_T4 = 53; S_MASK = 54; S_TEAM = 55
S_SHORT = S_XB
S_SW = 34
S_PF = 12
S_ORD = 56
S_HBB = S_HB; S_HN = S_TX; S_PB = S_BB
SP0 = 96

V_XO = 1; V_WD = 3; V_BD = 4; V_TR = 5; V_BR = 7; V_HO = 11; V_T0 = 13
V_XV = 16; V_ACC = 48; V_WF = 176; V_ET = 200; V_SC = 208
V_W2D = 253
def xfrag(blk, ks):
    idx = (ks*2 + blk)*4
    return ar(idx, 4) if idx < 256 else vr(V_XV + idx - 256, 4)
def acc(s, blk): return V_ACC + 32*s + 16*blk
(R_LR, R_LI, R_CR, R_CI, R_P32R, R_P32I, R_P256R, R_P256I, R_T1, R_T2, R_T3, R_T4, R_ER, R_EI, R_TG0, R_TG1, R_EA, R_SIDX, R_AO, R_TW) = range(V_SC, V_SC+20)
R_BUF = V_SC + 20
R_TWA, R_TRD, R_P512R, R_P512I, R_GH, R_AW = range(244, 250)
R_NLI = 4
R_NCI = R_TG1
R_U0 = R_T4
R_MR, R_MI = 1, 2
R_LLR, R_LLI = 7, 8
V_PL = 250
V_PA = 252
V_DUM = 13
V_RDB = 251
assert R_BUF % 4 == 0 and R_ER % 4 == 0

WSR = 's[%d:%d]' % (S_WS, S_WS+3)
label_n = [0]
OOL = []
def poll_loop(a, loads, check, sleep=1, rec=None):
    label_n[0] += 1; L = 'POLL%d' % label_n[0]
    if DIAG: a('s_mov_b32 s%d, 0' % S_CNT)
    check(a)
    a('s_cbranch_scc0 %s' % L)
    a(L + '_OK:')
    if DIAG and STNAMES and rec in STNAMES: a('s_mov_b32 s%d, s%d' % (S_STAMP + 2*STNAMES.index(rec), S_CNT))
    b = Asm()
    b(L + ':')
    b('s_mov_b32 s%d, 0' % S_CNT)
    b(L + '_R:')
    b('s_add_u32 s%d, s%d, 1' % (S_CNT, S_CNT))
    b('s_cmp_gt_u32 s%d, %d' % (S_CNT, P('SPIN', 20000)))
    b('s_cbranch_scc1 %s_OK' % L)
    b('s_sleep %d' % sleep)
    loads(b)
    b('s_waitcnt vmcnt(0)')
    check(b)
    b('s_cbranch_scc0 %s_R' % L)
    b('s_branch %s_OK' % L)
    OOL.extend(b.lines)

def chk_all_eq(reg):
    def f(a):
        a('v_cmp_ne_u32 vcc, s%d, v%d' % (S_NONCE, reg))
        a('s_nop 1')
        a('s_cmp_eq_u64 vcc, 0')
    return f

def epi_ffn(E, s, pi, c, ready, blks=(0, 1), mixed=False):
    grp = ('acc', s)
    els = [(blk, j) for blk in blks for j in range(16)]
    n = len(els)
    r = lambda e: acc(s, els[e][0]) + els[e][1]
    t = lambda e: V_ET + (e % 8)
    I = lambda text, tag=None: E.ins(text, tag, ready, 0, grp)
    I('s_lshl_b32 s%d, s%d, 5' % (S_T2, S_P+pi))
    I('s_add_u32 s%d, s%d, s%d' % (S_T2, S_T2, S_HB))
    if mixed: I('%s s%d, s%d, s%d' % ('s_sub_u32' if c else 's_add_u32', S_T2, S_T2, S_SW))
    for step in range(n + 6):
        e = step
        if e < n: I('v_mul_f32 v%d, s%d, v%d' % (t(e), S_NL2E, r(e)))
        e = step - 1
        if 0 <= e < n: I('v_exp_f32 v%d, v%d' % (t(e), t(e)))
        e = step - 2
        if 0 <= e < n: I('v_add_f32 v%d, 1.0, v%d' % (t(e), t(e)))
        e = step - 3
        if 0 <= e < n: I('v_rcp_f32 v%d, v%d' % (t(e), t(e)))
        e = step - 4
        if 0 <= e < n: I('v_mul_f32 v%d, v%d, v%d' % (t(e), t(e), r(e)))
        e = step - 5
        if 0 <= e < n and e % 2 == 1:
            base = r(e - e % 8)
            I('v_cvt_pk_bf16_f32 v%d, v%d, v%d' % (base + (e % 8)//2, t(e-1), t(e)))
            if e % 8 == 7:
                blk = els[e][0]; fr = (e % 16)//8
                I('buffer_store_dwordx4 %s, v%d, %s, s%d offen offset:%d sc1' % (vr(base, 4), V_HO+blk, WSR, S_T2, c*2048 + fr*1024), 'st' if (pi == 2 or (mixed and c == 1)) else 'se')

def cmul_add(F, dr, di, ar_, ai, br, bi, cr, ci, ready=0):
    F.ins('v_fma_f32 v%d, -v%d, v%d, v%d' % (R_T1, ai, bi, cr), None, ready)
    F.ins('v_fma_f32 v%d, v%d, v%d, v%d' % (R_T2, ai, br, ci), None, ready)
    F.ins('v_fma_f32 v%d, v%d, v%d, v%d' % (dr, ar_, br, R_T1), None, ready)
    F.ins('v_fma_f32 v%d, v%d, v%d, v%d' % (di, ar_, bi, R_T2), None, ready)

def csq(F, dr, di, sr_, si):
    F.ins('v_mul_f32 v%d, v%d, v%d' % (R_T1, si, si))
    F.ins('v_mul_f32 v%d, v%d, v%d' % (R_T2, sr_, si))
    F.ins('v_fma_f32 v%d, v%d, v%d, -v%d' % (dr, sr_, sr_, R_T1))
    F.ins('v_add_f32 v%d, v%d, v%d' % (di, R_T2, R_T2))

def scan_tables(F):
    F.ins('v_lshlrev_b32 v%d, 16, v%d' % (R_T3, R_T3))
    F.ins('v_lshlrev_b32 v%d, 16, v%d' % (R_T4, R_T4))
    F.ins('v_lshlrev_b32 v%d, 16, v%d' % (R_ER, R_ER))
    F.ins('v_mul_f32 v%d, 0x%08x, v%d' % (R_ER, f32bits(LOG2E), R_ER))
    F.ins('v_exp_f32 v%d, v%d' % (R_ER, R_ER))
    F.ins('v_cvt_pk_bf16_f32 v%d, v%d, v%d' % (R_ER, R_ER, R_ER))
    F.ins('v_lshlrev_b32 v%d, 16, v%d' % (R_ER, R_ER))
    F.ins('v_mul_f32 v%d, v%d, v%d' % (R_T1, R_ER, R_T3))
    F.ins('v_mul_f32 v%d, v%d, v%d' % (R_T2, R_ER, R_T4))
    F.ins('v_mul_f32 v%d, 0x%08x, v%d' % (R_T1, f32bits(LOG2E), R_T1))
    F.ins('v_exp_f32 v%d, v%d' % (R_T1, R_T1))
    F.ins('v_mul_f32 v%d, 0.15915494, v%d' % (R_T2, R_T2))
    F.ins('v_rndne_f32 v%d, v%d' % (R_EI, R_T2))
    F.ins('v_sub_f32 v%d, v%d, v%d' % (R_T2, R_T2, R_EI))
    F.ins('v_cos_f32 v%d, v%d' % (R_LR, R_T2))
    F.ins('v_sin_f32 v%d, v%d' % (R_LI, R_T2))
    F.ins('v_mul_f32 v%d, v%d, v%d' % (R_LR, R_LR, R_T1))
    F.ins('v_mul_f32 v%d, v%d, v%d' % (R_LI, R_LI, R_T1))
    F.ins('v_add_f32 v%d, -1.0, v%d' % (R_ER, R_LR))
    F.ins('v_mul_f32 v%d, v%d, v%d' % (R_T1, R_T3, R_T3))
    F.ins('v_fmac_f32 v%d, v%d, v%d' % (R_T1, R_T4, R_T4))
    F.ins('v_rcp_f32 v%d, v%d' % (R_T1, R_T1))
    F.ins('v_mul_f32 v%d, v%d, v%d' % (R_CR, R_ER, R_T3))
    F.ins('v_fmac_f32 v%d, v%d, v%d' % (R_CR, R_LI, R_T4))
    F.ins('v_mul_f32 v%d, v%d, v%d' % (R_CI, R_LI, R_T3))
    F.ins('v_fma_f32 v%d, -v%d, v%d, v%d' % (R_CI, R_ER, R_T4, R_CI))
    F.ins('v_mul_f32 v%d, v%d, v%d' % (R_CR, R_CR, R_T1))
    F.ins('v_mul_f32 v%d, v%d, v%d' % (R_CI, R_CI, R_T1))
    csq(F, R_P32R, R_P32I, R_LR, R_LI)
    for _ in range(4): csq(F, R_P32R, R_P32I, R_P32R, R_P32I)
    MR, MI, Z = R_BUF, R_BUF+1, R_BUF+2
    F.ins('v_mov_b32 v%d, 0' % Z)
    F.ins('v_and_b32 v%d, 1, v%d' % (R_T3, R_SIDX)); F.ins('v_cmp_ne_u32 s[60:61], 0, v%d' % R_T3)
    F.ins('v_cndmask_b32 v%d, 1.0, v%d, s[60:61]' % (MR, R_P32R)); F.ins('v_cndmask_b32 v%d, 0, v%d, s[60:61]' % (MI, R_P32I))
    for b in (1, 2):
        if b == 1: csq(F, R_P256R, R_P256I, R_P32R, R_P32I)
        else: csq(F, R_P256R, R_P256I, R_P256R, R_P256I)
        F.ins('v_and_b32 v%d, %d, v%d' % (R_T3, 1 << b, R_SIDX)); F.ins('v_cmp_ne_u32 s[60:61], 0, v%d' % R_T3)
        cmul_add(F, R_BUF+4, R_BUF+5, R_P256R, R_P256I, MR, MI, Z, Z)
        F.ins('v_cndmask_b32 v%d, v%d, v%d, s[60:61]' % (MR, MR, R_BUF+4)); F.ins('v_cndmask_b32 v%d, v%d, v%d, s[60:61]' % (MI, MI, R_BUF+5))
    csq(F, R_P256R, R_P256I, R_P256R, R_P256I)
    csq(F, R_P512R, R_P512I, R_P256R, R_P256I)
    F.ins('v_mov_b32 v%d, s%d' % (R_TG0, S_NONCE))
    F.ins('v_sub_f32 v%d, 0, v%d' % (R_NLI, R_LI))
    F.ins('v_sub_f32 v%d, 0, v%d' % (R_NCI, R_CI))

def ureg(part, tt): return acc(part, tt >> 4) + (tt & 15)
def uim(tt): return R_U0 if tt == 0 else acc(1, 0) + tt - 1

def scan_early(F, ready, half, cb=None):
    for tt in range(16*half, 16*half + 16):
        ur, ui, un = ureg(0, tt), ureg(1, tt), uim(tt)
        F.ins('v_mul_f32 v%d, v%d, v%d' % (un, R_CI, ur), None, ready)
        F.ins('v_mul_f32 v%d, v%d, v%d' % (ur, R_CR, ur))
        F.ins('v_fmac_f32 v%d, v%d, v%d' % (un, R_CR, ui))
        F.ins('v_fmac_f32 v%d, v%d, v%d' % (ur, R_NCI, ui))
        if tt == 0: continue
        pairs = [(R_ER, R_EI), (R_T1, R_T2)]
        nr, ni = pairs[(31 - tt) % 2]
        er, ei = (ureg(0, 0), uim(0)) if tt == 1 else pairs[(32 - tt) % 2]
        F.ins('v_fma_f32 v%d, v%d, v%d, v%d' % (ni, R_LI, er, un))
        F.ins('v_fma_f32 v%d, v%d, v%d, v%d' % (nr, R_NLI, ei, ur))
        F.ins('v_fmac_f32 v%d, v%d, v%d' % (ni, R_LR, ei))
        F.ins('v_fmac_f32 v%d, v%d, v%d' % (nr, R_LR, er))
    if half == 0: return
    F.ins('v_mov_b32 v%d, v%d' % (R_MR, R_BUF)); F.ins('v_mov_b32 v%d, v%d' % (R_MI, R_BUF+1))
    F.ins('ds_write_b64 v%d, %s' % (R_EA, vr(R_ER, 2)), 'ew')
    F.fn(lambda a: (a.wait_lg('ew'), a('s_barrier')), 2, 0, 2)
    for n in range(4):
        F.ins('ds_read_b128 %s, v%d offset:%d' % (vr(R_BUF+4*n, 4), R_TW, E_OFF % 65536 + 16*n), 'er')
    F.ins('v_mov_b32 v%d, s%d' % (R_TG1, S_NONCE))
    F.ins('s_add_u32 s%d, s%d, %d' % (S_TF, S_BB, 8*9216))
    F.fn(lambda a: a.wait_lg('er'), 1, 0, 4)
    cmul_add(F, R_ER, R_EI, R_P32R, R_P32I, R_BUF, R_BUF+1, R_BUF+2, R_BUF+3)
    for s in range(2, 8):
        cmul_add(F, R_ER, R_EI, R_P32R, R_P32I, R_ER, R_EI, R_BUF+2*s, R_BUF+2*s+1)
    F.ins('buffer_store_dwordx4 %s, v%d, %s, s%d offen sc1' % (vr(R_ER, 4), R_AW, WSR, S_TF), 'st')
    F.fn(lambda a: cb(), 0)
    F.ins('v_xor_b32 v%d, 16, v%d' % (R_EA, R_TWA)); F.ins('v_xor_b32 v%d, 32, v%d' % (R_TW, R_TRD))
    F.ins('v_mov_b32 v%d, 0' % R_LLR); F.ins('v_mov_b32 v%d, 0' % R_LLI)
    for s in range(7):
        F.ins('v_cmp_lt_u32 s[60:61], %d, v%d' % (s, R_SIDX))
        cmul_add(F, R_T3, R_CI, R_P32R, R_P32I, R_LLR, R_LLI, R_BUF+2*s, R_BUF+2*s+1)
        F.ins('v_cndmask_b32 v%d, v%d, v%d, s[60:61]' % (R_LLR, R_LLR, R_T3))
        F.ins('v_cndmask_b32 v%d, v%d, v%d, s[60:61]' % (R_LLI, R_LLI, R_CI))

def agg_insts():
    out = []
    for m in range(4):
        out.append('s_add_u32 s%d, s%d, %d' % (S_TF, S_BB, 2*m*9216))
        out.append('buffer_load_dwordx4 %s, v%d, %s, s%d offen sc1' % (vr(R_BUF+4*m, 4), R_AO, WSR, S_TF))
    return out
def agg_check(a):
    for m in range(4):
        a('v_cmp_le_u32 vcc, %d, v%d' % (8-2*m, R_GH))
        a('v_cndmask_b32 v%d, v%d, v%d, vcc' % (R_BUF+4*m+3, R_TG0, R_BUF+4*m+2))
    a('v_xor_b32 v%d, v%d, v%d' % (R_T1, R_BUF+3, R_BUF+7))
    a('v_xor_b32 v%d, v%d, v%d' % (R_T2, R_BUF+11, R_BUF+15))
    a('v_xor_b32 v%d, v%d, v%d' % (R_T3, R_BUF+3, R_TG0))
    a('v_xor_b32 v%d, v%d, v%d' % (R_CI, R_BUF+11, R_TG0))
    a('v_or3_b32 v%d, v%d, v%d, v%d' % (R_T1, R_T1, R_T2, R_T3))
    a('v_or_b32 v%d, v%d, v%d' % (R_T1, R_T1, R_CI))
    a('v_cmp_ne_u32 vcc, 0, v%d' % R_T1)
    a('s_nop 1')
    a('s_cmp_eq_u64 vcc, 0')

def scan_late(F, ready_poll):
    for t in agg_insts(): F.ins(t, 'poll', ready_poll)
    F.fn(lambda a: (a.wait_vm('poll'), poll_loop(a, lambda a: [a(t) for t in agg_insts()], agg_check, 1, 'r_agg')), 5, 0, P('POLLD', 34))
    for m in range(4):
        F.ins('v_cmp_le_u32 s[60:61], %d, v%d' % (8-2*m, R_GH))
        F.ins('v_cndmask_b32 v%d, 0, v%d, s[60:61]' % (R_BUF+4*m, R_BUF+4*m))
        F.ins('v_cndmask_b32 v%d, 0, v%d, s[60:61]' % (R_BUF+4*m+1, R_BUF+4*m+1))
    cmul_add(F, R_ER, R_EI, R_P512R, R_P512I, R_BUF, R_BUF+1, R_BUF+4, R_BUF+5)
    for m in range(2, 4):
        cmul_add(F, R_ER, R_EI, R_P512R, R_P512I, R_ER, R_EI, R_BUF+4*m, R_BUF+4*m+1)
    F.ins('v_mov_b32 v%d, v%d' % (R_T3, R_ER)); F.ins('v_mov_b32 v%d, v%d' % (R_CI, R_EI))
    F.ins('v_permlane32_swap_b32 v%d, v%d' % (R_ER, R_T3)); F.ins('v_permlane32_swap_b32 v%d, v%d' % (R_EI, R_CI))
    cmul_add(F, R_ER, R_EI, R_P256R, R_P256I, R_ER, R_EI, R_T3, R_CI)
    cmul_add(F, R_ER, R_EI, R_MR, R_MI, R_ER, R_EI, R_LLR, R_LLI)
    pr, pi_ = R_ER, R_EI
    land = lambda part, blk: R_BUF if (part, blk) == (1, 0) else acc(part, blk) + 8
    def pack(part, blk):
        b = acc(part, blk); neg = '-' if part else ''
        src = (lambda t: uim(16*blk + t)) if part else (lambda t: b + t)
        for k in range(8):
            F.ins('v_cvt_pk_bf16_f32 v%d, %sv%d, %sv%d' % (b+k, neg, src(2*k), neg, src(2*k+1)))
        for u in range(2):
            F.ins('ds_write_b128 v%d, %s' % (R_EA if u else R_TWA, vr(b+4*u, 4)), 'tw', 0, P('TWSP', 1))
        for ph in range(2):
            for u in range(2):
                F.ins('ds_read_b64_tr_b16 %s, v%d offset:%d' % (vr(land(part, blk)+4*ph+2*u, 2), R_TW if u else R_TRD, ph*1024 + u*256), 'tr%d%d' % (part, blk))
    def store(part, blk, dl):
        b = land(part, blk)
        F.ins('s_add_u32 s%d, s%d, %d' % (S_TF, S_HS, part*36*1024))
        F.fn(lambda a: a.wait_lg('tr%d%d' % (part, blk)), 1, 0, dl)
        for ph in range(2):
            F.ins('buffer_store_dwordx4 %s, v%d, %s, s%d offen offset:%d sc1' % (vr(b+4*ph, 4), V_HO+blk, WSR, S_TF, ph*1024), 'hs', 0, P('HSSP', 0))
    for tt in range(32):
        ur, ui = ureg(0, tt), uim(tt)
        F.ins('v_fmac_f32 v%d, v%d, v%d' % (ur, R_LR, pr))
        F.ins('v_fmac_f32 v%d, v%d, v%d' % (ui, R_LI, pr))
        F.ins('v_fmac_f32 v%d, v%d, v%d' % (ur, R_NLI, pi_))
        F.ins('v_fmac_f32 v%d, v%d, v%d' % (ui, R_LR, pi_))
        pr, pi_ = ur, ui
        if tt == 16: pack(0, 0); pack(1, 0)
        if tt == 24: store(0, 0, 0); store(1, 0, 0)
    pack(0, 1); pack(1, 1); store(0, 1, 2); store(1, 1, 2)
    F.fn(hs_flag, 5, 0, P('HSD', 36), 'hsflag')

def hs_flag(a):
    a('s_add_u32 s%d, s%d, %d' % (S_TF, S_T4, HSF_OFF))
    a.wait_vm('hs'); a('s_barrier')
    a('buffer_store_dword v%d, v%d, %s, s%d offen sc1' % (R_TG0, V_PA, WSR, S_TF), 'fl')

WNT = os.environ.get('WNT', '')
XNT = os.environ.get('XNT', '')
W2NT = os.environ.get('W2NT', '')
def he_flag(a):
    a('s_add_u32 s%d, s%d, %d' % (S_T, S_T4, HEF_OFF))
    a.wait_vm('se'); a('s_barrier')
    a('buffer_store_dword v%d, v%d, %s, s%d offen sc1' % (V_PL, V_PA, WSR, S_T), 'fl')

def dma_w1(a, slab, pi, n, tag, vreg=V_WD, dm=0):
    a('s_add_u32 m0, s%d, %d' % (S_M0W, slab*SLAB + n*4096 + dm))
    a('s_add_u32 s%d, s%d, %d' % (S_T, S_P+pi, n*32*9216))
    a('buffer_load_dwordx4 v%d, s[%d:%d], s%d offen%s lds' % (vreg, S_W1, S_W1+3, S_T, WNT), tag)

def dma_b(a, kb, part, tag, vreg=V_BD, dm=0):
    a('s_add_u32 m0, s%d, %d' % (S_M0W, kb*8192 + part*4096 + dm))
    a('s_movk_i32 s%d, %d' % (S_T, kb*128))
    s = S_BIM if part else S_BRE
    a('buffer_load_dwordx4 v%d, s[%d:%d], s%d offen%s lds' % (vreg, s, s+3, S_T, WNT), tag)

def xload(a, ks, blk):
    if ks % 4 == 0: a('s_add_u32 s%d, s%d, %d' % (S_TX, S_XB, (ks//4)*4096))
    a('buffer_load_dwordx4 %s, v%d, %s, s%d offen offset:%d sc1' % (xfrag(blk, ks), V_XO+blk, WSR, S_TX, (ks % 4)*1024), 'x%d_%d' % (blk, ks))

def w2_slot(ks):
    u = ks // 2
    base = (SLAB if u < 6 else 0) + (u % 3)*6144
    return base + (ks % 2)*3072
def w2_dma(ks):
    out = ['s_add_u32 m0, s%d, %d' % (S_MW, w2_slot(ks))]
    for n in range(3):
        out.append('buffer_load_dwordx4 v%d, s[%d:%d], s%d offen offset:%d sc1%s lds' % (V_W2D+n, S_WT, S_WT+3, S_WB, n*1024, W2NT))
    out.append('s_add_u32 s%d, s%d, s%d' % (S_WB, S_WB, S_WSTR))
    return out

def phaseB_setup(F, ready):
    I = lambda t: F.ins(t, None, ready)
    def ld(a):
        a('s_load_dwordx2 s[%d:%d], s[0:1], %d' % (SP0, SP0+1, B_W2))
    F.fn(ld, 1, ready)
    I('s_and_b32 s3, s2, 7'); I('s_lshr_b32 s4, s2, 3')
    I('s_mul_i32 s5, s4, 43'); I('s_lshr_b32 s5, s5, 8')
    I('s_mul_i32 s6, s5, 6'); I('s_sub_u32 s%d, s4, s6' % S_NT)
    I('s_mul_i32 s3, s3, 5'); I('s_add_u32 s3, s3, s5')
    I('s_lshr_b32 s%d, s3, 3' % S_SP); I('s_and_b32 s%d, s3, 7' % S_MT)
    I('s_mul_i32 s%d, s%d, 18432' % (S_MW, S_W))
    I('s_mul_i32 s3, s%d, 1152' % S_SP); I('s_mul_i32 s4, s%d, 288' % S_W); I('s_add_u32 s3, s3, s4')
    I('s_mul_i32 s3, s3, 1152'); I('s_mul_i32 s4, s%d, 192' % S_NT); I('s_add_u32 s3, s3, s4')
    I('s_lshl_b32 s4, s%d, 2' % S_NT); I('s_add_u32 s4, s4, s%d' % S_W); I('s_mul_i32 s4, s4, 55296'); I('s_add_u32 s4, s4, %d' % CF_OFF)
    for n in range(3):
        I('v_add_u32 v13, %d, v0' % (64*n))
        I('v_mul_u32_u24 v14, 0x1556, v13'); I('v_lshrrev_b32 v14, 16, v14')
        I('v_mul_u32_u24 v15, 960, v14')
        I('v_lshl_add_u32 v%d, v0, 4, v15' % (V_W2D+n))
    I('v_lshrrev_b32 v14, 5, v0'); I('v_lshlrev_b32 v14, 2, v14'); I('v_bfe_u32 v15, v0, 2, 2'); I('v_add_u32 v14, v14, v15')
    I('v_mul_u32_u24 v14, 192, v14')
    I('v_bfe_u32 v15, v0, 4, 1'); I('v_lshl_add_u32 v14, v15, 5, v14')
    I('v_and_b32 v15, 3, v0'); I('v_lshl_add_u32 v%d, v15, 3, v14' % V_RDB)
    def sel(a):
        a('s_waitcnt lgkmcnt(0)')
        a('s_cmp_eq_u32 s%d, 4' % S_SP)
        a('s_cselect_b32 s%d, s4, s3' % S_WB)
        a('s_cselect_b32 s%d, 3072, s%d' % (S_WSTR, S_WSTR))
        a('s_cselect_b32 s%d, s%d, s%d' % (S_WT, S_WS, SP0))
        a('s_cselect_b32 s%d, s%d, s%d' % (S_WT+1, S_WS+1, SP0+1))
        a('s_cselect_b32 s%d, s%d, s%d' % (S_WT+2, S_WS+2, S_WT+2))
        a('s_cselect_b64 vcc, -1, 0')
        a('s_and_b32 s%d, s%d, 0xffff' % (S_WT+1, S_WT+1))
        a('v_lshlrev_b32 v13, 4, v0')
        for n in range(3): a('v_cndmask_b32 v%d, v%d, v13, vcc' % (V_W2D+n, V_W2D+n))
        a('v_cndmask_b32 v%d, v%d, v13, vcc' % (V_RDB, V_RDB))
        a('s_add_u32 s3, s%d, %d' % (S_MW, SLAB)); a('v_add_u32 v%d, s3, v%d' % (V_RDB, V_RDB))
    I('s_mov_b32 s%d, %d' % (S_WSTR, 16*1152)); I('s_mov_b32 s%d, %d' % (S_WT+2, 4608*1152)); I('s_mov_b32 s%d, 0x00020000' % (S_WT+3))
    F.fn(sel, 5, ready, 4)
    F.fn(lambda a: srd(a, 16, SP0, 4608*1152), 4, ready)
    I('s_lshl_b32 s3, s%d, 12' % S_G); I('s_lshl_b32 s4, s%d, 7' % S_N); I('s_add_u32 s%d, s3, s4' % S_T4)
    I('v_or_b32 v%d, s%d, v0' % (V_PA, S_W)); I('v_min_u32 v%d, 1, v%d' % (V_PA, V_PA)); I('v_lshlrev_b32 v%d, 30, v%d' % (V_PA, V_PA))
    I('v_mov_b32 v%d, s%d' % (V_PL, S_NONCE))

def w2_touch(F, ready):
    I = lambda t: F.ins(t, None, ready)
    if P('P2TOUCH', 0):
        I('s_mul_i32 s3, s%d, 72' % S_G); I('s_mul_i32 s4, s%d, 18' % S_W); I('s_add_u32 s3, s3, s4')
        I('v_min_u32 v13, 17, v0'); I('v_add_u32 v13, s3, v13'); I('v_mul_u32_u24 v15, 9216, v13')
        I('buffer_load_dword v%d, v15, s[%d:%d], s%d offen' % (V_DUM, S_W1, S_W1+3, S_P+2))
    if P('TGLOBAL', 1):
        NT_ = P('TNL', 11)
        I('s_lshl_b32 s3, s2, 2'); I('s_add_u32 s3, s3, s%d' % S_W); I('s_mul_i32 s3, s3, %d' % (44*128))
        I('v_min_u32 v14, %d, v0' % (NT_-1)); I('v_lshl_add_u32 v14, v14, 7, s3')
        for k in range(44 // NT_):
            F.ins('buffer_load_dword v%d, v14, s[16:19], 0 offen' % V_DUM, None, ready, P('TSP', 10) if k else 0)
            I('v_add_u32 v14, %d, v14' % (NT_*128))
        return
    I('s_lshr_b32 s3, s2, 3'); I('s_lshl_b32 s3, s3, 2'); I('s_add_u32 s3, s3, s%d' % S_W); I('s_mul_i32 s3, s3, %d' % (88*128))
    I('s_and_b32 s4, s2, 7'); I('s_mul_i32 s4, s4, 5'); I('s_add_u32 s5, s4, 4'); I('s_lshr_b32 s4, s4, 3'); I('s_lshr_b32 s5, s5, 3')
    I('s_mul_i32 s4, s4, %d' % (1152*1152)); I('s_mul_i32 s5, s5, %d' % (1152*1152)); I('s_add_u32 s4, s4, s3'); I('s_add_u32 s5, s5, s3')
    NT_ = P('TNL', 11); nper = 88 // NT_
    I('v_min_u32 v13, %d, v0' % (NT_-1)); I('v_lshlrev_b32 v13, 7, v13')
    I('v_add_u32 v14, s4, v13'); I('v_add_u32 v15, s5, v13')
    for k in range(nper):
        F.ins('buffer_load_dword v%d, v14, s[16:19], 0 offen' % V_DUM, None, ready, P('TSP', 10) if k else 0)
        F.ins('buffer_load_dword v%d, v15, s[16:19], 0 offen' % V_DUM, None, ready, P('TSP', 10))
        if k < nper-1: I('v_add_u32 v14, %d, v14' % (NT_*128)); I('v_add_u32 v15, %d, v15' % (NT_*128))

def code_touch(a):
    label_n[0] += 1; L = 'CT%d' % label_n[0]
    a('s_getpc_b64 s[4:5]'); a(L + ':')
    a('s_add_u32 s4, s4, A_DONE-%s' % L); a('s_addc_u32 s5, s5, 0')
    a('s_lshl_b32 s6, s%d, 13' % S_W)
    a('v_lshl_add_u32 v14, v0, 7, s6'); a('v_min_u32 v14, KLAST-A_DONE, v14')
    a('global_load_dword v10, v14, s[4:5]')

TDN = P('TDN', 0)
def cfl_check(a):
    label_n[0] += 1; L = 'CFS%d' % label_n[0]
    a('s_cmp_lg_u32 s%d, 4' % S_SP); a('s_cbranch_scc1 %s' % L)
    save = list(a.vm)
    a('v_min_u32 v15, 47, v0'); a('v_lshlrev_b32 v15, 7, v15'); a('s_mov_b32 s%d, %d' % (S_T3, CFL_OFF))
    ldc = 'buffer_load_dword v14, v15, %s, s%d offen sc1' % (WSR, S_T3)
    a(ldc); a('s_waitcnt vmcnt(0)')
    poll_loop(a, lambda a: a(ldc), chk_all_eq(14))
    a.vm = save
    a(L + ':')

def w2_read_br(ks):
    def f(a):
        label_n[0] += 1; L = 'WR%d' % label_n[0]
        off = w2_slot(ks) - SLAB
        a.wait_vm('v%d' % ks)
        a('s_cmp_eq_u32 s%d, 4' % S_SP); a('s_cbranch_scc1 %s_S' % L)
        save = list(a.lg)
        for dt in range(3):
            base = (ks*3 + dt)*4
            a('ds_read_b64_tr_b16 %s, v%d offset:%d' % (ar(base, 2), V_RDB, off + dt*64), 'wr%d' % ks)
            a('ds_read_b64_tr_b16 %s, v%d offset:%d' % (ar(base+2, 2), V_RDB, off + dt*64 + 1536), 'wr%d' % ks)
        a('s_branch %s_E' % L)
        a(L + '_S:')
        a.lg = save
        for dt in range(3):
            base = (ks*3 + dt)*4
            a('ds_read_b64 %s, v%d offset:%d' % (ar(base, 2), V_RDB, off + dt*1024), 'wr%d' % ks)
            a('ds_read_b64 %s, v%d offset:%d' % (ar(base+2, 2), V_RDB, off + dt*1024 + 8), 'wr%d' % ks)
        a(L + '_E:')
    return f

def phaseA(a, mixed, st):
    S = Sched(a)
    SC = S.stream('scan'); D = S.stream('dma'); E = S.stream('epi'); B = S.stream('bpre')
    TC = Stream('touch')
    EF = Stream('ef'); EF.fn(he_flag, 5); a.tagcount = {}
    NSE = 4 if mixed else 16; tse = [None]
    def ef_gate():
        if a.tagcount.get('se', 0) < NSE: return False
        if tse[0] is None: tse[0] = S.mf
        return S.mf >= tse[0] + P('EFD', 30)
    EF.gate = ef_gate
    pend = [lambda a, ks=ks, blk=blk: xload(a, ks, blk) for blk in range(2) for ks in range(36)]
    for _ in range(P('XBURST', 16)): pend.pop(0)(a)
    nstamp(a, 'xb'); a('s_barrier'); nstamp(a, 'bar0')
    if mixed: scan_tables(SC)
    phaseB_setup(B, 0)
    frs = []
    for blk in range(2):
        for ks in range(36):
            for c in range(2): frs.append(('p1', blk, ks, c))
    for ci in range(4):
        for ks in range(36): frs.append(('c', ci, ks, ci & 1))
    consumed = [0]; trbase = [0, 0]; reads = []
    def pre(n):
        kind, ci, ks, c = frs[n]
        def f(a):
            if kind == 'p1' and mixed and ks == 32 and c == 0:
                for r in range(4): a('v_add_u32 v%d, 0x10000, v%d' % (V_BR+r, V_BR+r))
            if kind == 'p1' and mixed and ks == 0 and c == 0 and ci == 1:
                for r in range(4): a('v_subrev_u32 v%d, 0x10000, v%d' % (V_BR+r, V_BR+r))
            if kind == 'c' and ci == 0 and ks == 0:
                a('s_waitcnt lgkmcnt(0)'); a('s_barrier')
                for k in range(18): D.fn(lambda a, k=k: dma_w1(a, 0, 2, k, 'w2'), 4, 0, P('W2SP', 3))
            if kind == 'c' and ci == 2 and ks == 0:
                assert not pend and not D.q and not TC.q
                a.wait_vm('w2'); a('s_waitcnt lgkmcnt(0)'); a('s_barrier')
            if not (kind == 'p1' and mixed):
                slab = 0 if kind == 'p1' else (1 if ci < 2 else 0)
                bias = slab*SLAB + (36864 if ks >= 18 else 0)
                if trbase[c] != bias:
                    a('v_add_u32 v%d, 0x%x, v%d' % (V_TR+c, (bias - trbase[c]) & 0xffffffff, V_TR+c)); trbase[c] = bias
        return f
    for n, (kind, ci, ks, c) in enumerate(frs):
        dst = V_WF + 4*(n % 6); tag = 'f%d' % n
        if kind == 'p1' and mixed:
            reads.append((n, lambda a, n=n, dst=dst, ks=ks, c=c, tag=tag: (pre(n)(a), a('ds_read_b128 %s, v%d offset:%d' % (vr(dst, 4), V_BR + (ks & 3), ((ks >> 2)*8192 + c*4096) % 65536), tag))))
        else:
            off = (ks % 18)*2048
            reads.append((n, lambda a, n=n, dst=dst, c=c, off=off, tag=tag: (pre(n)(a), a('ds_read_b64_tr_b16 %s, v%d offset:%d' % (vr(dst, 2), V_TR+c, off), tag))))
            reads.append((n, lambda a, dst=dst, c=c, off=off, tag=tag: a('ds_read_b64_tr_b16 %s, v%d offset:%d' % (vr(dst+2, 2), V_TR+c, off+512), tag)))
    def issue_reads(quota):
        while reads and quota > 0 and reads[0][0] < consumed[0] + 6:
            S.must_fn(reads.pop(0)[1]); quota -= 1
    def issued(n): return not reads or reads[0][0] > n
    accset = ([2, 3, 2, 0] if P('SC2', 1) else [2, 3, 2, 3]) if mixed else [2, 3, 0, 1]
    issue_reads(100)
    n = 0
    while n < len(frs):
        kind, ci, ks, c = frs[n]
        if kind == 'p1' and ks == 1 and c == 0 and ci == 0: stamp(a, st); nstamp(a, 'p1s')
        if kind == 'p1' and ks == 0 and c == 0 and ci == 1:
            nstamp(a, 'p1b')
            S.drain(stream=B)
            if P('W2TOUCH', 1):
                w2_touch(TC, S.mf + P('TAT', 44)); S.always = [TC]
            if mixed: scan_early(SC, S.mf + 3, 0)
            else:
                epi_ffn(E, 0, 0, 0, S.mf + 3, (0,)); epi_ffn(E, 1, 0, 1, S.mf + 3, (0,))
        if kind == 'c' and ks == 0:
            if ci in (0, 2): stamp(a, st)
            nstamp(a, 'c%d' % ci)
            S.note = None; S.drain(('acc', accset[ci]))
            if S.note: sys.stderr.write('  forced drain at chunk %d: %s\n' % (ci, S.note))
            rdy = S.mf + 2
            if ci == 0:
                if mixed:
                    scan_early(SC, rdy, 1, lambda: setattr(S, 'streams', [D, SC, E, B])); scan_late(SC, S.mf + P('POLLAT', 100))
                else:
                    epi_ffn(E, 0, 0, 0, rdy, (1,)); epi_ffn(E, 1, 0, 1, rdy, (1,))
            else:
                epi_ffn(E, accset[ci-1], 1 + (ci-1)//2, (ci-1) & 1, rdy, (0, 1), mixed)
            if ci == 1:
                S.streams = [D, SC, E, B]
            if ci == 0:
                S.drain(stream=B)
            if ci == 2:
                B.fn(cfl_check, 2, S.mf + 2)
                if P('CTOUCH', 1): B.fn(code_touch, 5, S.mf + 2)
                def pf(a):
                    a('s_cmp_eq_u32 s%d, 4' % S_SP)
                    a('s_cselect_b32 s%d, 0x3ffff, s%d' % (S_MASK, S_MASK)); a('s_cselect_b32 s%d, %d, s%d' % (S_PF, HSF_OFF, S_PF))
                B.ins('s_mov_b32 s%d, 0x3fffffff' % S_MASK); B.ins('s_mov_b32 s%d, %d' % (S_PF, HEF_OFF)); B.fn(pf, 3)
                B.ins('s_lshl_b32 s3, s%d, 12' % S_MT); B.ins('s_add_u32 s%d, s%d, s3' % (S_PF, S_PF))
                B.fn(lambda a: flag_lanes(a, 0), 5)
                for k2 in range(6):
                    for t in w2_dma(k2): B.ins(t, 'v%d' % k2, S.mf + P('W2AT', 4) + 11*k2, P('DMSP', 3) if 'lds' in t else 0)
                S.streams = [EF, B, SC, E]
            if ci == 3:
                if mixed and P('SC2', 1):
                    keep = [it for it in SC.q if it[4] == 'hsflag']; SC.q = [it for it in SC.q if it[4] != 'hsflag']
                    sys.stderr.write('  forced SC drain %s\n' % S.pending()); S.drain(stream=SC); SC.q = keep
                for k2 in range(6):
                    B.fn(w2_read_br(k2), 5, S.mf + 5 + 11*k2)
                    B.fn(lambda a, k2=k2: a.wait_lg('wr%d' % k2), 1, 0, 4)
                    for t in w2_dma(k2+6): B.ins(t, 'v%d' % (k2+6), 0, P('DMSP2', 2) if 'lds' in t else 0)
                S.streams = [EF, B, SC, E]
        while not issued(n): issue_reads(1)
        S.fill(reserve=2 if kind == 'p1' and c == 0 else 1)
        if kind == 'p1':
            if c == 0:
                S.must_fn(lambda a: a.wait_vm('x%d_%d' % (ci, ks)))
                S.must_fn(lambda a: a.wait_lg('f%d' % (n+1) if issued(n+1) else 'f%d' % n))
            else: S.must_fn(lambda a: a.wait_lg('f%d' % n))
        else:
            if ks % 2 == 0 and n + 1 < len(frs) and issued(n+1): S.must_fn(lambda a: a.wait_lg('f%d' % (n+1)))
            S.must_fn(lambda a: a.wait_lg('f%d' % n))
        blks = (ci,) if kind == 'p1' else (0, 1)
        for blk in blks:
            sset = c if kind == 'p1' else accset[ci]
            d = vr(acc(sset, blk), 16); w = vr(V_WF + 4*(n % 6), 4); x = xfrag(blk, ks)
            A, Bo = (x, w) if (mixed and kind == 'p1') else (w, x)
            S.mfma('v_mfma_f32_32x32x16_bf16 %s, %s, %s, %s' % (d, A, Bo, d if ks else '0'))
            if blk == blks[-1]: consumed[0] = n + 1
            issue_reads(2 if kind == 'p1' else 1)
            if pend and (c == 0 if kind == 'p1' else blk == 0): S.must_fn(pend.pop(0))
        n += 1
    sys.stderr.write('phaseA mixed=%d pending at end: %s\n' % (mixed, S.pending()))
    stamp(a, st); nstamp(a, 'tl0')
    S.mf += 1000
    S.drain(stream=B)
    a('s_barrier')
    epi_ffn(E, accset[3], 2, 1, 0, (0, 1), mixed)
    assert not SC.q and not EF.q
    q = E.q; E.q = []
    dm = []
    for k2 in range(12, 12 + TDN):
        t = w2_dma(k2); dm += [(t[0:2], k2), (t[2:3], k2), (t[3:5], k2)]
    sp_ = max(1, (len(q) - P('TD0', 10)) // max(1, 3*TDN))
    for i, it in enumerate(q):
        if i == max(0, len(q) - P('EPA', 150)): flag_poll('hp')[0](a)
        it[0](a)
        if dm and i >= P('TD0', 10) and (i - P('TD0', 10)) % sp_ == 0:
            ts, k2 = dm.pop(0)
            for t in ts: a(t, 'v%d' % k2)
    assert not dm and a.vm[-1] == 'st'
    nstamp(a, 'tl1')
    a.wait_vm('hp')
    ld, chk = flag_poll()
    poll_loop(a, ld, chk, 1, 'r_h')
    a.wait_vm('v11')
    stamp(a, st); nstamp(a, 't3')

VB_HO = 1; VB_O = 2; VB_RD = 5; VB_RW = 6; VB_T = 7; VB_RR = 10; VB_PO = 13
VB_ACC = 16; VB_RB = 112; VB_H = 152
A_XX = 216
RED = 36864
S_FB = 34
def wfrag(ks, dt): return ar((ks*3 + dt)*4, 4)
def accr(s, dt): return VB_ACC + 48*s + 16*dt
X = os.environ.get('X', '')

def w2_read(a, ks, ssm):
    sl = w2_slot(ks); hi = sl >= SLAB
    for dt in range(3):
        base = (ks*3 + dt)*4
        reg = VB_RD
        off = sl - (SLAB if hi else 0)
        if ssm:
            a('ds_read_b128 %s, v%d offset:%d' % (ar(base, 4), reg, off + dt*1024), 'wr%d' % ks)
        else:
            a('ds_read_b64_tr_b16 %s, v%d offset:%d' % (ar(base, 2), reg, off + dt*64), 'wr%d' % ks)
            a('ds_read_b64_tr_b16 %s, v%d offset:%d' % (ar(base+2, 2), reg, off + dt*64 + 1536), 'wr%d' % ks)

def reduce_fill(R, i, ready, send, ssm, io=None, dl=1, wrd=2):
    s = i & 1; grp = ('acc', s); buf = s*RED
    if io is None: io = i
    for q in range(1, 4):
        for dt in range(3):
            R.ins('ds_write_b128 v%d, %s offset:%d' % (VB_RW, vr(accr(s, dt) + 4*q, 4), buf + (q-1)*3072 + dt*1024), 'rw%d' % i, ready, wrd, grp)
    R.fn(lambda a: (a.wait_lg('rw%d' % i), a('s_barrier')), 2, 0, 2*dl)
    for q in range(1, 4):
        for dt in range(3):
            R.ins('ds_read_b128 %s, v%d offset:%d' % (vr(VB_RB + ((q-1)*3+dt)*4, 4), VB_RR+q-1, buf + dt*1024), 'rr%d' % i)
    R.fn(lambda a: a.wait_lg('rr%d' % i), 1, 0, 4*dl)
    for k in range(12):
        own = accr(s, k//4) + k % 4
        R.ins('v_add_f32 v%d, v%d, v%d' % (VB_RB+k, VB_RB+k, own), None, 0, 0, grp)
        R.ins('v_add_f32 v%d, v%d, v%d' % (VB_RB+12+k, VB_RB+12+k, VB_RB+24+k))
    SB = VB_RB + 24
    for k in range(12):
        dst = SB + 4*(k//3) + k % 3 if (send and ssm) else VB_RB + k
        R.ins('v_add_f32 v%d, v%d, v%d' % (dst, VB_RB+k, VB_RB+12+k), 'sum%d' % i)
    if send:
        ng = 4 if ssm else 2
        if not ssm:
            for p in range(6): R.ins('v_cvt_pk_bf16_f32 v%d, v%d, v%d' % (SB + 4*(p//3) + p % 3, VB_RB+2*p, VB_RB+2*p+1))
        for g in range(ng): R.ins('v_mov_b32 v%d, s%d' % (SB + 4*g + 3, S_NONCE))
        R.ins('s_mul_i32 s%d, s%d, %d' % (S_TF, S_ORD+io, 6*4*ng*1024))
        R.ins('s_add_u32 s%d, s%d, s%d' % (S_TF, S_TF, S_PB))
        for g in range(ng):
            if 'nost' in X: continue
            R.ins('buffer_store_dwordx4 %s, v%d, %s, s%d offen offset:%d%s' % (vr(SB+4*g, 4), VB_PO, WSR, S_TF, g*1024, '' if 'plainst' in X else ' sc1'), 'st', 0, 2 if g else 0)

def ffn_loads(quads):
    return ['buffer_load_dwordx4 %s, v%d, %s, s%d offen offset:%d sc1' % (vr(quads[src*2+g], 4), VB_PO, WSR, S_FB+src, g*1024) for src in range(3) for g in range(2)]
def y_loads(quads):
    return ['buffer_load_dwordx4 %s, v%d, %s, s%d offen offset:%d sc1' % (vr(quads[g], 4), VB_RD, WSR, S_T2, g*1024) for g in range(4)]
def tag_check(quads):
    def f(a):
        t = [q+3 for q in quads]
        for op, d in (('v_min3_u32', VB_T), ('v_max3_u32', VB_T+1)):
            a('%s v%d, v%d, v%d, v%d' % (op, d, t[0], t[1], t[2]))
            r = t[3:]
            while r:
                a('%s v%d, v%d, v%d, v%d' % (op, d, d, r[0], r[1] if len(r) > 1 else r[0])); r = r[2:]
        a('v_cmp_ne_u32 vcc, s%d, v%d' % (S_NONCE, VB_T))
        a('v_cmp_ne_u32 s[4:5], s%d, v%d' % (S_NONCE, VB_T+1))
        a('s_nop 1')
        a('s_or_b64 vcc, vcc, s[4:5]')
        a('s_cmp_eq_u64 vcc, 0')
    return f
def checked(G, tag, loads, quads, dl):
    G.fn(lambda a: (nstamp(a, 'w0' + tag), a.wait_vm(tag), nstamp(a, 'w1' + tag), poll_loop(a, lambda a: [a(t) for t in loads], tag_check(quads), P('RSLEEP', 8), 'r_' + tag)), 5, 0, dl)
def presum(G, quads, ps):
    pk = lambda src, k: quads[src*2 + (k//2)//3] + (k//2) % 3
    unp = lambda d, src, k: ('v_and_b32 v%d, 0xffff0000, v%d' if k % 2 else 'v_lshlrev_b32 v%d, 16, v%d') % (d, pk(src, k))
    for k in range(12):
        G.ins(unp(ps(k), 0, k)); G.ins(unp(VB_T, 1, k)); G.ins(unp(VB_T+1, 2, k))
        G.ins('v_add_f32 v%d, v%d, v%d' % (ps(k), ps(k), VB_T)); G.ins('v_add_f32 v%d, v%d, v%d' % (ps(k), ps(k), VB_T+1))
def prep_s(G, j, yq):
    y = lambda k: yq[k//3] + k % 3
    for k in range(12):
        G.ins('v_accvgpr_read_b32 v%d, a%d' % (VB_T + k % 2, A_XX+12*j+k))
        G.ins('v_and_b32 v%d, 0xffff0000, v%d' % (VB_T + k % 2, VB_T + k % 2))
        G.ins('v_fma_f32 v%d, 2.0, v%d, v%d' % (y(k), y(k), VB_T + k % 2))
OUTFL = os.environ.get('OUTFL', ' sc1,')
def chain(G, j, ps, yq, first=None):
    y = lambda k: yq[k//3] + k % 3
    o = lambda k: VB_RB + k
    t1 = lambda k: VB_RB + 12 + k
    t2 = lambda k: VB_RB + 24 + k
    rnd = [lambda k: None if k % 2 else 'v_cvt_pk_bf16_f32 v%d, v%d, v%d' % (o(k+1), o(k), o(k+1)),
           lambda k: ('v_and_b32 v%d, 0xffff0000, v%d' % (o(k), o(k))) if k % 2 else ('v_lshlrev_b32 v%d, 16, v%d' % (o(k), o(k+1)))]
    stages = [lambda k: 'v_add_f32 v%d, v%d, v%d' % (o(k), o(k), ps(k))] + rnd + [
        lambda k: 'v_mul_f32 v%d, s%d, v%d' % (t1(k), S_NL2E, o(k)),
        lambda k: 'v_exp_f32 v%d, v%d' % (t1(k), t1(k)),
        lambda k: 'v_accvgpr_read_b32 v%d, a%d' % (t2(k), A_XX+12*j+k),
        lambda k: 'v_add_f32 v%d, 1.0, v%d' % (t1(k), t1(k)),
        lambda k: 'v_rcp_f32 v%d, v%d' % (t1(k), t1(k)),
        lambda k: 'v_lshlrev_b32 v%d, 16, v%d' % (t2(k), t2(k)),
        lambda k: 'v_mul_f32 v%d, v%d, v%d' % (o(k), o(k), t1(k))] + rnd + [
        lambda k: 'v_fma_f32 v%d, v%d, v%d, v%d' % (t2(k), y(k), o(k), t2(k))]
    if os.environ.get('PERT'): stages.append(lambda k: 'v_mul_f32 v%d, 0x%08x, v%d' % (t2(k), f32bits(float(os.environ['PERT'])), t2(k)))
    X4 = P('X4', 0); fl = OUTFL.split(',')[j % len(OUTFL.split(','))]
    if not X4:
        stages.append(lambda k: 'buffer_store_dword v%d, v%d, s[%d:%d], s%d offen offset:%d%s' % (t2(k), VB_O+1 + (k % 4)//2, S_OUT, S_OUT+3, S_T3, (k % 2)*2304 + (k//4)*128, fl))
    if first: G.fn(first, 0)
    for k0 in range(0, 12, 4):
        for stg in stages:
            for k in range(k0, k0+4):
                t = stg(k)
                if t: G.ins(t, 'out')
        if X4:
            for src, dst, bit, qp, mi in ((t2, t1, 1, '[1,0,3,2]', 0), (t1, o, 2, '[2,3,0,1]', 2)):
                for hi in (1, 0):
                    def f(a, src=src, dst=dst, bit=bit, qp=qp, mi=mi, hi=hi, k0=k0):
                        a('s_mov_b64 vcc, s[%d:%d]' % (S_QM[mi+hi], S_QM[mi+hi]+1))
                        for k in range(4):
                            if bool(k & bit) == bool(hi):
                                a('v_cndmask_b32_dpp v%d, v%d, v%d, vcc quad_perm:%s row_mask:0xf bank_mask:0xf' % (dst(k0+k), src(k0+(k ^ bit)), src(k0+k), qp))
                    G.fn(f, 3)
            G.ins('buffer_store_dwordx4 %s, v%d, s[%d:%d], s%d offen offset:%d%s' % (vr(o(k0), 4), VB_O+1, S_OUT, S_OUT+3, S_T3, (k0//4)*128, fl), 'out')
S_QM = (24, 26, 14, 50)

XT = 224
def xx_setup(a):
    a('s_load_dwordx2 s[%d:%d], s[0:1], %d' % (SP0, SP0+1, A_X))
    a('s_load_dwordx2 s[%d:%d], s[0:1], %d' % (SP0+2, SP0+3, D_OUT))
    a('s_load_dwordx2 s[%d:%d], s[0:1], %d' % (SP0+4, SP0+5, A_DSK))
def xx_fill(G):
    T = XT; I = G.ins
    SA, DA = T+27, T+28
    I('s_lshl_b32 s3, s%d, 8' % S_MT); I('s_lshl_b32 s4, s%d, 6' % S_SP); I('s_add_u32 s3, s3, s4')
    I('s_lshl_b32 s4, s%d, 2' % S_W); I('s_add_u32 s3, s3, s4')
    I('v_and_b32 v%d, 32, v0' % VB_O); I('v_add_u32 v%d, s3, v%d' % (VB_O, VB_O))
    I('v_lshlrev_b32 v%d, 3, v%d' % (SA, VB_O))
    I('v_mul_u32_u24 v%d, 576, v%d' % (VB_O, VB_O))
    I('v_and_b32 v%d, 31, v0' % (VB_O+1)); I('s_mul_i32 s4, s%d, 96' % S_NT)
    I('v_add_u32 v%d, s4, v%d' % (DA, VB_O+1)); I('v_add_u32 v%d, v%d, v%d' % (VB_O, VB_O, DA)); I('v_lshlrev_b32 v%d, 1, v%d' % (DA, DA))
    I('v_lshlrev_b32 v%d, 2, v%d' % (VB_O+1, VB_O)); I('v_add_u32 v%d, 4608, v%d' % (VB_O+2, VB_O+1)); I('v_lshlrev_b32 v%d, 1, v%d' % (VB_O, VB_O))
    if P('X4', 0):
        I('v_and_b32 v%d, 3, v0' % (VB_O+2)); I('v_mul_u32_u24 v%d, 2300, v%d' % (VB_O+2, VB_O+2)); I('v_add_u32 v%d, v%d, v%d' % (VB_O+1, VB_O+1, VB_O+2))
        for r, v in zip(S_QM, (0x55555555, 0xaaaaaaaa, 0x33333333, 0xcccccccc)):
            I('s_mov_b32 s%d, 0x%x' % (r, v)); I('s_mov_b32 s%d, s%d' % (r+1, r))
    G.fn(lambda a: srd(a, S_X, SP0, 2048*1152), 4); G.fn(lambda a: srd(a, S_OUT, SP0+2, 2048*2304), 4)
    I('s_movk_i32 s7, %d' % (16*1152)); I('s_mov_b32 s6, %d' % STAT_OFF)
    for dt in range(3):
        I('global_load_ushort v%d, v%d, s[%d:%d] offset:%d' % (T+20+dt, DA, SP0+4, SP0+5, dt*64), 'xx0')
    for j in range(2):
        for k in range(12):
            I('buffer_load_ushort v%d, v%d, s[%d:%d], %s offen offset:%d' % (T+k, VB_O, S_X, S_X+3, 's7' if j else '0', (k % 4)*1152 + (k//4)*64), 'xx%d' % j, 0, P('XXSP', 3))
        for u in range(2):
            I('buffer_load_dwordx4 %s, v%d, %s, s6 offen offset:%d sc1' % (vr(T+12+4*u, 4), SA, WSR, j*128 + u*16), 'xx%d' % j)
        G.fn(lambda a, j=j: a.wait_vm('xx%d' % j), 1, 0, P('XXD', 30))
        if j == 0:
            for dt in range(3): I('v_lshlrev_b32 v%d, 16, v%d' % (T+20+dt, T+20+dt))
        x = lambda k: T+k
        t = lambda k: T+23+k % 4
        mm = lambda k: T+12+2*(k % 4)
        rnd = [lambda k: None if k % 2 else 'v_cvt_pk_bf16_f32 v%d, v%d, v%d' % (t(k+1), t(k), t(k+1)),
               lambda k: ('v_and_b32 v%d, 0xffff0000, v%d' % (t(k), t(k))) if k % 2 else ('v_lshlrev_b32 v%d, 16, v%d' % (t(k), t(k+1)))]
        st = [lambda k: 'v_lshlrev_b32 v%d, 16, v%d' % (x(k), x(k)),
              lambda k: 'v_sub_f32 v%d, v%d, v%d' % (t(k), x(k), mm(k))] + rnd + [
              lambda k: 'v_mul_f32 v%d, v%d, v%d' % (t(k), t(k), mm(k)+1)] + rnd + [
              lambda k: 'v_mul_f32 v%d, v%d, v%d' % (t(k), t(k), T+20+k//4),
              lambda k: 'v_cvt_pk_bf16_f32 v%d, v%d, v%d' % (t(k), x(k), t(k)),
              lambda k: 'v_accvgpr_write_b32 a%d, v%d' % (A_XX+12*j+k, t(k))]
        for k0 in range(0, 12, 4):
            for s in st:
                for k in range(k0, k0+4):
                    tx = s(k)
                    if tx: I(tx)

FPA = 9; FPL = 8
def flag_lanes(a, two):
    a('v_and_b32 v14, 31, v0'); a('v_lshrrev_b32 v15, v14, s%d' % S_MASK); a('v_and_b32 v15, 1, v15'); a('v_xor_b32 v15, 1, v15')
    a('v_lshlrev_b32 v%d, 7, %s' % (FPA, 'v0' if two else 'v14'))
    a('v_lshl_add_u32 v%d, v15, 30, v%d' % (FPA, FPA))
def flag_poll(tag='hp'):
    def ld(a):
        a('buffer_load_dword v%d, v%d, %s, s%d offen sc1' % (FPL, FPA, WSR, S_PF), tag)
    def chk(a):
        a('v_cmp_ne_u32 vcc, s%d, v%d' % (S_NONCE, FPL))
        a('s_nop 1')
        a('s_or_b32 s4, vcc_lo, vcc_hi'); a('s_and_b32 s4, s4, s%d' % S_MASK)
        a('s_cmp_eq_u32 s4, 0')
    return ld, chk

def b_common(a, ssm, part=0):
  if part != 2:
    a('s_mul_i32 s%d, s%d, %d' % (S_HBB, S_MT, 8*HF_RB)); a('s_mul_i32 s3, s%d, %d' % (S_SP, 72*1024))
    a('s_add_u32 s%d, s%d, s3' % (S_HBB, S_HBB)); a('s_add_u32 s%d, s%d, %d' % (S_HBB, S_HBB, HF_OFF))
    a('s_lshl_b32 s4, s%d, 3' % S_W)
    a('v_add_u32 v14, s4, v0'); a('v_and_b32 v14, 31, v14'); a('v_and_b32 v15, 32, v0'); a('v_add_u32 v14, v14, v15')
    a('s_mul_i32 s3, s%d, %d' % (S_W, 18*1024)); a('v_lshl_add_u32 v%d, v14, 4, s3' % VB_HO)
  if part != 1:
    a('s_mul_i32 s%d, s%d, 48' % (S_TEAM, S_MT)); a('s_add_u32 s%d, s%d, s%d' % (S_TEAM, S_TEAM, S_NT))
    if ssm:
        a('s_lshl_b32 s3, s%d, 14' % S_TEAM); a('s_add_u32 s%d, s3, %d' % (S_PB, PY_OFF))
        a('s_lshl_b32 s3, s%d, 12' % S_W); a('v_lshl_add_u32 v%d, v0, 4, s3' % VB_PO)
    else:
        a('s_lshl_b32 s3, s%d, 13' % S_TEAM); a('s_mul_i32 s4, s%d, %d' % (S_SP, 64*6*8192)); a('s_add_u32 s3, s3, s4'); a('s_add_u32 s%d, s3, %d' % (S_PB, PF_OFF))
        a('s_lshl_b32 s3, s%d, 11' % S_W); a('v_lshl_add_u32 v%d, v0, 4, s3' % VB_PO)
    for q in range(1, 4):
        a('s_sub_u32 s3, s%d, %d' % (S_W, q)); a('s_and_b32 s3, s3, 3'); a('s_mul_i32 s3, s3, 9216'); a('s_add_u32 s3, s3, %d' % ((q-1)*3072 + SLAB))
        a('v_lshl_add_u32 v%d, v0, 4, s3' % (VB_RR+q-1))
    a('s_mul_i32 s3, s%d, 9216' % S_W); a('s_add_u32 s3, s3, %d' % SLAB); a('v_lshl_add_u32 v%d, v0, 4, s3' % VB_RW)

def phaseB(a, ssm, st):
    os.environ['CLD'] = os.environ.get('CLDB', '2'); os.environ['CST'] = os.environ.get('CSTB', '3')
    NH = P('NHS', 24) if ssm else P('NHF', 18)
    hslot = lambda n: VB_H + 4*(n % NH)
    KE = P('KE', 8)
    seq = [(0, k) for k in range(KE)] + [(1, k) for k in range(KE)] + [(0, k) for k in range(KE, 18)] + [(1, k) for k in range(KE, 18)]
    seq += [(i, ks) for i in range(2, 8) for ks in range(18)]
    if ssm: seq = [(i, ks) for i in range(8) for ks in range(18)]
    def hload(a, n):
        i, ks = seq[n]
        if n == 0 or seq[n-1][0] != i:
            a('s_mul_i32 s%d, s%d, %d' % (S_HN, S_ORD+i, HF_RB)); a('s_add_u32 s%d, s%d, s%d' % (S_HN, S_HN, S_HBB))
            if ks: a('s_add_u32 s%d, s%d, %d' % (S_HN, S_HN, (ks//4)*4096))
        elif ks % 4 == 0: a('s_add_u32 s%d, s%d, 4096' % (S_HN, S_HN))
        a('buffer_load_dwordx4 %s, v%d, %s, s%d offen offset:%d sc1' % (vr(hslot(n), 4), VB_HO, WSR, S_HN, (ks % 4)*1024), 'h%d' % n)
    a.tagcount = {}
    a.vm = ['st']; a.seen |= {'st'}
    nld = [0]; okl = [ssm]
    def next_h(a):
        if nld[0] < 144: hload(a, nld[0]); nld[0] += 1
    a('s_add_u32 s%d, s%d, %d' % (S_TF, S_T4, HFL_OFF))
    if ssm:
        for i, r in enumerate((0, 2, 4, 6, 1, 3, 3, 3)): a('s_mov_b32 s%d, %d' % (S_ORD+i, r))
        a('s_mov_b32 s%d, 1' % S_SHORT); a('s_mov_b32 s%d, 0' % S_T3)
        for k2 in range(12 + TDN, 18):
            for t in w2_dma(k2): a(t, 'v%d' % k2)
        b_common(a, ssm)
    else:
        for i in range(3):
            a('s_add_u32 s3, s%d, %d' % (S_SP, i+1)); a('s_and_b32 s3, s3, 3'); a('s_lshl_b32 s%d, s3, 1' % (S_ORD+i)); a('s_add_u32 s%d, s%d, 1' % (S_ORD+3+i, S_ORD+i))
        b_common(a, ssm, 1)
        for _ in range(P('HBURST', 10)): next_h(a)
        a('s_lshl_b32 s%d, s%d, 1' % (S_ORD+6, S_SP)); a('s_add_u32 s%d, s%d, 1' % (S_ORD+7, S_ORD+6))
        xx_setup(a)
        b_common(a, ssm, 2)
    a('v_mov_b32 v%d, v%d' % (VB_RD, V_RDB))
    for ks in range(6, 12): w2_read(a, ks, ssm)
    a('v_subrev_u32 v%d, %d, v%d' % (VB_RD, SLAB, V_RDB))
    a('s_waitcnt lgkmcnt(0)')
    a.wait_vm('st'); a('s_barrier')
    a('buffer_store_dword v%d, v%d, %s, s%d offen sc1' % (V_PL, V_PA, WSR, S_TF), 'fl')
    nstamp(a, 'flg')
    if ssm:
        if TDN < 6: a.wait_vm('v17')
        for ks in range(12, 18): w2_read(a, ks, ssm)
        a('s_waitcnt lgkmcnt(0)')
        a('B_SSM2:')
        a.vm = []
        for _ in range(P('HBURST', 10)): next_h(a)
    S = Sched(a); R = S.stream('red'); G = S.stream('xchg'); C = S.stream('chain')
    C.gate = lambda: not R.q and 'prepA' in a.seen
    if not ssm:
        XR = VB_H + 4*NH
        L = [XR + 4*k for k in range(6)]
        PSr = [XR+24+k for k in range(8)] + [VB_RB+36+k for k in range(4)]
        psA = lambda k: PSr[k]
        yA = L[:4]
        acq = [accr(0, dt) + 4*q for q in (1, 2, 3) for dt in range(3)]
        fB = L[4:6] + acq[:4]; yB = [hslot(126+k) for k in range(4)]
        psB = lambda k: acq[6 + k//4] + k % 4
    if not ssm:
        I = G.ins
        l2, c2 = flag_poll('hl')
        I('s_lshl_b32 s3, s%d, 3' % S_SP); I('s_lshl_b32 s3, 0xff, s3'); I('s_lshl_b32 s5, s%d, 2' % S_SP); I('s_lshl_b32 s5, 0x3f, s5')
        I('s_or_b32 s3, s3, s5'); I('s_and_b32 s%d, s%d, s3' % (S_MASK, S_MASK))
        I('s_add_u32 s%d, s%d, %d' % (S_PF, S_PF, HFL_OFF - HEF_OFF))
        for k2 in range(12 + TDN, 18):
            for t in w2_dma(k2): I(t, 'v%d' % k2, P('D15', 6) + P('D15S', 2)*(k2-12-TDN), P('D15D', 0) if 'lds' in t else 0)
        C.gate, gsave = None, C.gate
        C.fn(l2, 2, P('LP0', 16)); C.fn(lambda a: setattr(C, 'gate', gsave), 0)
        S.streams = [C, R, G]
        I('s_mul_i32 s5, s%d, 12' % S_SP); I('s_add_u32 s5, s5, s%d' % S_TEAM); I('s_lshl_b32 s5, s5, 13')
        for src in range(3):
            I('s_sub_u32 s3, s%d, %d' % (S_SP, src+1)); I('s_and_b32 s3, s3, 3'); I('s_mul_i32 s3, s3, %d' % (64*6*8192))
            I('s_add_u32 s3, s3, s5'); I('s_add_u32 s%d, s3, %d' % (S_FB+src, PF_OFF))
        I('s_lshl_b32 s5, s5, 1'); I('s_add_u32 s%d, s5, %d' % (S_T2, PY_OFF)); I('s_mov_b32 s%d, 0' % S_T3)
        tmp = Asm()
        for ks in range(12, 18): w2_read(tmp, ks, False)
        for k, t in enumerate(tmp.lines):
            if k % 6 == 0 and k//6 >= TDN: G.fn(lambda a, k=k: a.wait_vm('v%d' % (12 + k//6)), 1, P('RDAT', 40) + P('RDS', 3)*(k//6))
            I(t.strip(), 'wr%d' % (12 + k//6))
        I('s_lshl_b32 s3, s%d, 12' % S_W); I('v_lshl_add_u32 v%d, v0, 4, s3' % VB_RD)
        G.fn(lambda a: None, 0, P('LPC', 33) + 1)
        xx_fill(G)
    for n in range(144):
        i, ks = seq[n]; s = i & 1; p = n // 18
        if ks == 0:
            S.note = None; S.drain(('acc', s))
            if S.note: sys.stderr.write('  B forced drain at block %d: %s\n' % (i, S.note))
        if n % 18 == 0:
            if ssm and p == 6:
                S.drain()
                a('s_cmp_eq_u32 s%d, 1' % S_SHORT); a('s_cbranch_scc1 B_SSM_TAIL')
            if p in (0, 7): stamp(a, st)
            nstamp(a, 'b%d' % p)
        base = S.mf
        if n > 0 and seq[n-1][1] == 17:
            j = seq[n-1][0]
            reduce_fill(R, j, base + 2, ssm or j < 6, ssm, None, 1, 1 if (not ssm and j == 0) else P('WRD', 2))
        if not ssm and 'lat' in X and n == 18*5:
            a('s_waitcnt vmcnt(0)'); nstamp(a, 'l0'); a('s_waitcnt lgkmcnt(0)')
            a(ffn_loads(L)[0]); a('s_waitcnt vmcnt(0)'); nstamp(a, 'l1'); a('s_waitcnt lgkmcnt(0)')
            a(ffn_loads(L)[4]); a('s_waitcnt vmcnt(0)'); nstamp(a, 'l2'); a('s_waitcnt lgkmcnt(0)')
            a(y_loads(L)[0]); a('s_waitcnt vmcnt(0)'); nstamp(a, 'l3'); a('s_waitcnt lgkmcnt(0)')
            a('s_mul_i32 s3, s%d, %d' % (S_ORD+7, HF_RB)); a('s_add_u32 s3, s3, s%d' % S_HBB)
            a('buffer_load_dwordx4 %s, v%d, %s, s3 offen sc1' % (vr(L[0], 4), VB_HO, WSR)); a('s_waitcnt vmcnt(0)'); nstamp(a, 'l4'); a('s_waitcnt lgkmcnt(0)')
            a('buffer_store_dwordx4 %s, v%d, %s, s3 offen sc1' % (vr(L[0], 4), VB_HO, WSR)); a('s_waitcnt vmcnt(0)'); nstamp(a, 'l5'); a('s_waitcnt lgkmcnt(0)')
        if not ssm and n % 18 == 0:
            if p == (5 if 'lat' in X else 4):
                FA0 = P('FA0', 0); FSP = P('FSP', 12)
                for k, t in enumerate(ffn_loads(L)): G.ins(t, 'fA', base + FA0 + FSP*k)
                checked(G, 'fA', ffn_loads(L), L, P('CHKD', 40))
                presum(G, L, psA)
                for src in range(3): G.ins('s_add_u32 s%d, s%d, %d' % (S_FB+src, S_FB+src, 6*8192))
            if p == 6:
                for k, t in enumerate(y_loads(yA)): G.ins(t, 'yA', base + P('YAAT', 0) + P('YSP', 7)*k)
                for k, t in enumerate(ffn_loads(fB)[:2]): G.ins(t, 'fB', 0, P('YSP', 7))
                checked(G, 'yA', y_loads(yA), yA, P('CHKD2', 22))
                prep_s(G, 0, yA); G.fn(lambda a: a.seen.add('prepA'), 0)
                G.ins('s_add_u32 s%d, s%d, %d' % (S_T2, S_T2, 6*16384))
            if p == 7:
                G.fn(lambda a: ('rr6' in a.seen) or sys.exit('order'), 0, base + P('FBAT', 24))
                lb = ffn_loads(fB)
                for t in lb[2:4]: G.ins(t, 'fB', 0, 3)
                for t in y_loads(yB): G.ins(t, 'yB', 0, 3)
                for t in lb[4:6]: G.ins(t, 'fB', 0, 3)
                chain(C, 0, psA, yA)
        if ssm and i in (0, 2, 4):
            l2, c2 = flag_poll('hp%d' % i)
            if ks == 0: S.must_fn(lambda a: (a('s_add_u32 s%d, s%d, s%d' % (S_PF, S_PF, S_T3)), l2(a)))
            if ks == 35 - NH:
                assert nld[0] <= 18*(i+2)
                S.must_fn(lambda a: (a.wait_vm('hp%d' % i), poll_loop(a, l2, c2, 4)))
        if not okl[0] and S.mf >= P('LPC', 33):
            S.must_fn(lambda a: (nstamp(a, 'lp0'), a.wait_vm('hl'), poll_loop(a, l2, c2, 1, 'r_l'), nstamp(a, 'lp1')))
            okl[0] = True; S.streams = [R, G, C]
            for _ in range(P('LBURST', 6)):
                if nld[0] < n + NH: S.must_fn(next_h)
        S.fill(reserve=1)
        S.must_fn(lambda a: a.wait_vm('h%d' % n))
        if not ssm and i == 0 and ks >= 12:
            assert a.tagcount.get('wr%d' % ks, 0) == 6, ks
            S.must_fn(lambda a: a.wait_lg('wr%d' % ks))
        for dt in range(3):
            d = vr(accr(s, dt), 16)
            S.mfma('v_mfma_f32_32x32x16_bf16 %s, %s, %s, %s' % (d, vr(hslot(n), 4), wfrag(ks, dt), d if ks else '0'))
            lim = n + NH + (1 if dt == 2 else 0)
            if not okl[0]: lim = min(lim, 2*KE)
            if nld[0] < min(lim, 144) and (dt != 1 or n < 36): S.must_fn(next_h)
    sys.stderr.write('phaseB ssm=%d pending at end: %s\n' % (ssm, S.pending()))
    stamp(a, st); nstamp(a, 'e0')
    S.mf += 1000
    if ssm:
        S.drain()
        a('B_SSM_TAIL:')
        a('s_nop 11')
        a.lg = []
        reduce_fill(R, 7, 0, True, True); S.drain()
        stamp(a, st)
    else:
        S.drain(stream=R); S.drain(stream=G)
        restA = C.q; C.q = []
        reduce_fill(R, 7, 0, False, False)
        wr = R.q[:9]; rest = R.q[9:]
        R.q = []
        k = 0
        while wr or restA[k:]:
            if wr: R.q.append(wr.pop(0))
            R.q += restA[k:k+6]; k += 6
        S.drain()
        stamp(a, st); nstamp(a, 'e1')
        R.q = rest[:10]; S.drain()
        checked(G, 'yB', y_loads(yB), yB, 0); prep_s(G, 1, yB); S.drain()
        R.q = rest[10:]; S.drain()
        nstamp(a, 'e2')
        checked(G, 'fB', ffn_loads(fB), fB, 0); presum(G, fB, psB)
        G.ins('s_mov_b32 s%d, %d' % (S_T3, 16*2304))
        chain(G, 1, psB, yB); S.drain()
        a('s_lshl_b32 s3, s%d, 9' % S_SP); a('s_add_u32 s3, s3, s%d' % S_TEAM); a('s_lshl_b32 s4, s%d, 12' % S_W); a('s_add_u32 s3, s3, s4')
        a('s_cmp_eq_u32 s3, %d' % (7*48))
        a('s_cbranch_scc0 NOBUMP')
        a('v_mov_b32 v14, %d' % NONCE_OFF); a('v_mov_b32 v15, s%d' % S_NONCE)
        a('s_mov_b64 exec, 1')
        a('buffer_store_dword v15, v14, %s, 0 offen sc1' % WSR)
        a('NOBUMP:')
    stamp_flush(a, st, 0, S_WS, S_W, 14)
    a('s_endpgm')

def ln_part(a):
    X = 48; F = 72; T = 112
    a('s_lshl_b32 s3, s2, 1'); a('s_add_u32 s3, s3, s%d' % S_W)
    a('s_lshr_b32 s4, s3, 4'); a('s_lshl_b32 s4, s4, 6')
    a('s_and_b32 s5, s3, 1'); a('s_lshl_b32 s5, s5, 5'); a('s_add_u32 s4, s4, s5')
    a('s_bfe_u32 s5, s3, 0x10003'); a('s_lshl_b32 s5, s5, 4'); a('s_add_u32 s4, s4, s5')
    a('s_bfe_u32 s5, s3, 0x20001'); a('s_lshl_b32 s5, s5, 2'); a('s_add_u32 s4, s4, s5')
    a('v_and_b32 v%d, 3, v0' % T); a('v_lshrrev_b32 v%d, 2, v0' % (T+1))
    a('v_add_u32 v%d, s4, v%d' % (T+2, T))
    a('v_mul_u32_u24 v%d, 1152, v%d' % (T+3, T+2)); a('v_lshl_add_u32 v%d, v%d, 4, v%d' % (T+3, T+1, T+3))
    for k in range(4): a('v_mov_b32 v%d, 0' % (X+16+k))
    a('s_waitcnt lgkmcnt(0)'); nstamp(a, 'ln0')
    for n in range(4):
        a('global_load_dwordx4 %s, v%d, s[%d:%d] offset:%d%s' % (vr(X+4*n, 4), T+3, SP0, SP0+1, 256*n, XNT), 'lx')
    a('s_mov_b32 exec_hi, 0')
    a('global_load_dwordx4 %s, v%d, s[%d:%d] offset:1024%s' % (vr(X+16, 4), T+3, SP0, SP0+1, XNT), 'lx')
    a('s_mov_b32 exec_hi, -1')
    ws_srd(a)
    a('s_load_dword s%d, s[%d:%d], %d' % (S_NONCE, S_WS, S_WS+1, NONCE_OFF))
    a('s_lshr_b32 s5, s3, 3'); a('s_mul_i32 s5, s5, 36864'); a('s_and_b32 s6, s3, 7'); a('s_lshl_b32 s6, s6, 7'); a('s_add_u32 s5, s5, s6')
    a('s_add_u32 s5, s5, %d' % XF_OFF)
    a('v_lshrrev_b32 v%d, 3, v0' % (T+4)); a('v_lshlrev_b32 v%d, 10, v%d' % (T+4, T+4))
    a('v_and_b32 v%d, 7, v0' % (T+5)); a('v_lshl_add_u32 v%d, v%d, 4, v%d' % (T+4, T+5, T+4))
    a('v_lshlrev_b32 v%d, 3, v%d' % (T+2, T+2))
    MK = S_T; HM = S_T2
    a('s_mov_b32 s%d, 0xffff0000' % HM)
    DRY = P('DRY', 0)
    if DRY:
        a('s_mov_b32 s%d, 0' % MK); a('s_mov_b64 exec, 0')
    else:
        a('s_mov_b32 s%d, -1' % MK); a('s_waitcnt vmcnt(0)'); nstamp(a, 'ln1')
    a('LN_BODY:')
    def unpack(n): a('v_lshlrev_b32 v%d, 16, v%d' % (F+2*n, X+n)); a('v_and_b32 v%d, s%d, v%d' % (F+2*n+1, HM, X+n))
    A = T+8
    def allred(r):
        return ['v_add_f32_dpp v%d, v%d, v%d row_ror:4 row_mask:0xf bank_mask:0xf' % (r, r, r),
                'v_add_f32_dpp v%d, v%d, v%d row_ror:8 row_mask:0xf bank_mask:0xf' % (r, r, r),
                'v_mov_b32 v%d, v%d' % (T+6, r), 'v_permlane16_swap_b32 v%d, v%d' % (r, T+6), 'v_add_f32 v%d, v%d, v%d' % (r, r, T+6),
                'v_mov_b32 v%d, v%d' % (T+6, r), 'v_permlane32_swap_b32 v%d, v%d' % (r, T+6), 'v_add_f32 v%d, v%d, v%d' % (r, r, T+6)]
    pr = lambda r: vr(r, 2)
    Q = A+4
    for n in range(20):
        unpack(n)
        if n >= 5:
            k = n - 1
            a('v_pk_add_f32 %s, %s, %s' % (pr(Q+2*(k % 4)), pr(F+2*(k-4)) if k < 8 else pr(Q+2*(k % 4)), pr(F+2*k)))
    a('v_pk_add_f32 %s, %s, %s' % (pr(Q+6), pr(Q+6), pr(F+38)))
    a('v_pk_add_f32 %s, %s, %s' % (pr(Q), pr(Q), pr(Q+2))); a('v_pk_add_f32 %s, %s, %s' % (pr(Q+4), pr(Q+4), pr(Q+6)))
    a('v_pk_add_f32 %s, %s, %s' % (pr(Q), pr(Q), pr(Q+4))); a('v_add_f32 v%d, v%d, v%d' % (A+2, Q, Q+1))
    for t in allred(A+2): a(t)
    a('v_mul_f32 v%d, 0x%08x, v%d' % (A+2, f32bits(1.0/576), A+2))
    a('v_cvt_pk_bf16_f32 v%d, v%d, v%d' % (A, A+2, A+2)); a('v_lshlrev_b32 v%d, 16, v%d' % (A, A))
    a('v_sub_f32 v%d, v%d, v%d' % (A+2, A+2, A))
    for n in range(20):
        if n == 16: a('s_mov_b32 exec_hi, 0')
        a('v_pk_add_f32 %s, %s, %s op_sel_hi:[1,0] neg_lo:[0,1] neg_hi:[0,1]' % (pr(F+2*n), pr(F+2*n), pr(A)))
        if n % 4 == 3:
            for k in range(n-3, n+1):
                d = pr(F+2*k); q = pr(Q+2*(k % 4))
                a(('v_pk_mul_f32 %s, %s, %s' % (q, d, d)) if k < 4 else ('v_pk_fma_f32 %s, %s, %s, %s' % (q, d, d, q)))
    a('s_mov_b32 exec_hi, s%d' % MK)
    ch = ['v_pk_add_f32 %s, %s, %s' % (pr(Q), pr(Q), pr(Q+2)), 'v_pk_add_f32 %s, %s, %s' % (pr(Q+4), pr(Q+4), pr(Q+6)),
          'v_pk_add_f32 %s, %s, %s' % (pr(Q), pr(Q), pr(Q+4)), 'v_add_f32 v%d, v%d, v%d' % (A+1, Q, Q+1)] + allred(A+1) + [
          'v_mul_f32 v%d, 0x%08x, v%d' % (A+1, f32bits(1.0/576), A+1),
          'v_fma_f32 v%d, -v%d, v%d, v%d' % (A+1, A+2, A+2, A+1),
          'v_cvt_pk_bf16_f32 v%d, v%d, v%d' % (A+1, A+1, A+1), 'v_lshlrev_b32 v%d, 16, v%d' % (A+1, A+1),
          'v_add_f32 v%d, 0x%08x, v%d' % (A+1, f32bits(1e-5), A+1),
          'v_cvt_pk_bf16_f32 v%d, v%d, v%d' % (A+1, A+1, A+1), 'v_lshlrev_b32 v%d, 16, v%d' % (A+1, A+1),
          'v_sqrt_f32 v%d, v%d' % (A+1, A+1),
          'v_cvt_pk_bf16_f32 v%d, v%d, v%d' % (A+1, A+1, A+1), 'v_lshlrev_b32 v%d, 16, v%d' % (A+1, A+1),
          'v_rcp_f32 v%d, v%d' % (A+1, A+1)]
    for n in range(21):
        if n < 20: a('v_cvt_pk_bf16_f32 v%d, v%d, v%d' % (X+n, F+2*n, F+2*n+1))
        if ch: a(ch.pop(0))
        if n > 0: unpack(n-1)
    for t in ch: a(t)
    for q in range(5):
        if q == 4: a('s_mov_b32 exec_hi, 0')
        ns = range(4*q, 4*q+4)
        for n in ns: a('v_pk_mul_f32 %s, %s, %s op_sel:[0,1] op_sel_hi:[1,1]' % (pr(F+2*n), pr(F+2*n), pr(A)))
        for n in ns: a('v_cvt_pk_bf16_f32 v%d, v%d, v%d' % (X+n, F+2*n, F+2*n+1))
        if DRY: a('s_cbranch_execz LN_S%d' % q)
        a('buffer_store_dwordx4 %s, v%d, %s, s5 offen sc1' % (vr(X+4*q, 4), T+4, WSR))
        if q < 4: a('s_add_u32 s5, s5, 8192')
        if DRY and q < 4: a('LN_S%d:' % q)
    if DRY:
        a('s_branch LN_REAL_DONE')
        a('LN_S4:')
        a('s_mov_b32 s%d, -1' % MK); a('s_mov_b64 exec, -1'); nstamp(a, 'lnd')
        a('s_waitcnt vmcnt(0)'); nstamp(a, 'ln1')
        a('s_branch LN_BODY')
        a('LN_REAL_DONE:')
    a('s_mov_b32 exec_lo, 15')
    a('s_mov_b32 s5, %d' % STAT_OFF)
    assert A % 2 == 0
    a('buffer_store_dwordx2 %s, v%d, %s, s5 offen sc1' % (vr(A, 2), T+2, WSR))
    a('s_mov_b64 exec, -1'); nstamp(a, 'ln2')
    a('s_waitcnt lgkmcnt(0)')
    nonce_mix(a)
    a('s_lshl_b32 s3, s3, 7'); a('s_add_u32 s3, s3, %d' % LNF_OFF)
    a('v_mov_b32 v%d, 0' % T); a('v_mov_b32 v%d, s%d' % (T+1, S_NONCE))
    a('s_mov_b64 exec, 1')
    a('s_waitcnt vmcnt(0)')
    a('buffer_store_dword v%d, v%d, %s, s3 offen sc1' % (T+1, T, WSR)); nstamp(a, 'ln3')
    a('s_mov_b64 exec, -1')

def nonce_mix(a):
    a('s_mul_i32 s%d, s%d, 0x0019660d' % (S_NONCE, S_NONCE))
    a('s_add_u32 s%d, s%d, 0x3c6ef35f' % (S_NONCE, S_NONCE))

def light_part(a):
    if P('LBAR', 1): a('s_barrier')
    a('s_cmp_eq_u32 s%d, 0' % S_W); a('s_cbranch_scc1 LIGHT2')
    a('s_load_dwordx4 s[%d:%d], s[0:1], %d' % (SP0, SP0+3, A_CRE))
    a('s_sub_u32 s3, s2, 240'); a('s_mul_i32 s3, s3, 3'); a('s_add_u32 s3, s3, s%d' % S_W); a('s_sub_u32 s3, s3, 1')
    a('s_lshr_b32 s4, s3, 3'); a('s_mul_i32 s4, s4, %d' % (96*1152))
    a('s_bfe_u32 s5, s3, 0x10001'); a('s_mul_i32 s5, s5, 576'); a('s_add_u32 s4, s4, s5')
    a('s_and_b32 s5, s3, 1'); a('s_mul_i32 s5, s5, 288'); a('s_add_u32 s4, s4, s5')
    a('v_and_b32 v1, 31, v0'); a('v_mul_u32_u24 v1, 1152, v1'); a('v_lshrrev_b32 v2, 5, v0'); a('v_lshl_add_u32 v1, v2, 4, v1'); a('v_add_u32 v1, s4, v1')
    a('v_add_u32 v2, %d, v1' % (32*1152)); a('v_add_u32 v3, %d, v1' % (64*1152))
    a('v_lshlrev_b32 v4, 4, v0')
    a('s_mul_i32 s6, s3, 27648'); a('s_add_u32 s6, s6, %d' % CF_OFF)
    a('s_waitcnt lgkmcnt(0)')
    a('s_bitcmp1_b32 s3, 2')
    a('s_cselect_b32 s%d, s%d, s%d' % (SP0, SP0+2, SP0)); a('s_cselect_b32 s%d, s%d, s%d' % (SP0+1, SP0+3, SP0+1))
    for f in range(27):
        a('global_load_dwordx4 %s, v%d, s[%d:%d] offset:%d' % (vr(16+4*f, 4), 1 + f % 3, SP0, SP0+1, (f//3)*32), 'c%d' % f)
    for f in range(27):
        a.wait_vm('c%d' % f)
        a('buffer_store_dwordx4 %s, v4, %s, s6 offen offset:%d sc1' % (vr(16+4*f, 4), WSR, (f % 4)*1024))
        if f % 4 == 3: a('s_add_u32 s6, s6, 4096')
    a('s_lshl_b32 s3, s3, 7'); a('s_add_u32 s3, s3, %d' % CFL_OFF)
    a('v_mov_b32 v1, 0'); a('v_mov_b32 v2, s%d' % S_NONCE)
    a('s_mov_b64 exec, 1')
    a('s_waitcnt vmcnt(0)')
    a('buffer_store_dword v2, v1, %s, s3 offen sc1' % WSR)
    a('s_mov_b64 exec, -1')
    a('LIGHT2:')
    a.vm = []
    a('s_cmp_ge_u32 s2, 252'); a('s_cbranch_scc1 KEND')
    a('s_sub_u32 s3, s2, 240'); a('s_lshr_b32 s%d, s3, 1' % S_NT); a('s_and_b32 s3, s3, 1')
    a('s_lshl_b32 s4, s3, 1'); a('s_add_u32 s4, s4, 5')
    for i in range(8): a('s_add_u32 s%d, s4, %d' % (S_ORD+i, 8*i))
    a('s_mov_b32 s%d, 0' % S_MT); a('s_mov_b32 s%d, 4' % S_SP); a('s_mov_b32 s%d, 0' % S_SHORT); a('s_mov_b32 s%d, 0x3ffff' % S_MASK)
    a('s_mov_b32 s%d, %d' % (S_PF, HSF_OFF))
    a('v_min_u32 v1, 47, v0'); a('v_lshlrev_b32 v1, 7, v1'); a('s_mov_b32 s%d, %d' % (S_T3, CFL_OFF))
    ldc = 'buffer_load_dword v2, v1, %s, s%d offen sc1' % (WSR, S_T3)
    a(ldc); a('s_waitcnt vmcnt(0)')
    poll_loop(a, lambda a: a(ldc), chk_all_eq(2), 8)
    a('s_lshl_b32 s4, s%d, 2' % S_NT); a('s_add_u32 s4, s4, s%d' % S_W); a('s_mul_i32 s4, s4, 55296'); a('s_add_u32 s4, s4, %d' % CF_OFF)
    a('v_lshlrev_b32 v4, 4, v0')
    for f in range(54):
        a('buffer_load_dwordx4 %s, v4, %s, s4 offen offset:%d sc1' % (ar(4*f, 4), WSR, (f % 4)*1024))
        if f % 4 == 3: a('s_add_u32 s4, s4, 4096')
    flag_lanes(a, 1)
    a('s_mov_b32 s%d, 8192' % S_T3)
    ld, chk = flag_poll()
    ld(a); a('s_waitcnt vmcnt(0)')
    b_common(a, True)
    poll_loop(a, ld, chk, P('LSLEEP', 6))
    a('s_branch B_SSM2')

def early_pair(a, se, dst):
    a('s_mul_i32 s3, s%d, 86' % se); a('s_lshr_b32 s3, s3, 8'); a('s_mul_i32 s4, s3, 3'); a('s_sub_u32 s4, s%d, s4' % se)
    a('s_cmp_lt_u32 s4, 2'); a('s_cselect_b32 s4, s4, 5')
    a('s_mul_i32 s3, s3, 9'); a('s_add_u32 s3, s3, s4'); a('s_lshl_b32 s%d, s3, 7' % dst)
def mixed_pair(a):
    a('s_lshr_b32 s3, s%d, 1' % S_N); a('s_mul_i32 s3, s3, 9'); a('s_and_b32 s%d, s%d, 1' % (S_SW, S_N))
    a('s_lshl_b32 s4, s%d, 1' % S_SW); a('s_sub_u32 s3, s3, s4'); a('s_add_u32 s3, s3, 6')
    a('s_add_u32 s5, s%d, 54' % S_N); a('s_cmp_lt_u32 s%d, 16' % S_N); a('s_cselect_b32 s3, s3, s5')
    a('s_lshl_b32 s%d, s3, 7' % (S_P+1)); a('s_lshl_b32 s%d, s%d, 11' % (S_SW, S_SW))
def late_pair(a):
    a('s_lshr_b32 s3, s%d, 2' % S_N); a('s_and_b32 s4, s%d, 3' % S_N); a('s_mul_i32 s3, s3, 9'); a('s_add_u32 s3, s3, s4')
    a('s_cmp_lt_u32 s4, 2'); a('s_cselect_b32 s4, 2, 5'); a('s_add_u32 s3, s3, s4'); a('s_lshl_b32 s%d, s3, 7' % (S_P+2))

def gen():
    a = Asm()
    name = PFX + '_kernel'
    a(kernel_header(name))
    a('KSTART:')
    a('s_cmp_ge_u32 s2, 256'); a('s_cbranch_scc1 KEND')
    st = Stamps(); stamp(a, st); nstamp(a, 'start')
    for nm in ('ln0', 'lnd', 'ln1', 'ln2', 'ln3', 'w0a', 'w0b'): nstamp(a, nm)
    a('s_load_dwordx2 s[%d:%d], s[0:1], %d' % (SP0, SP0+1, A_X))
    a('s_load_dwordx2 s[%d:%d], s[0:1], %d' % (SP0+2, SP0+3, D_WS))
    a('s_load_dwordx2 s[%d:%d], s[0:1], %d' % (SP0+4, SP0+5, B_W1))
    a('s_load_dwordx4 s[56:59], s[0:1], %d' % A_BRE)
    a('s_load_dwordx4 s[60:63], s[0:1], %d' % A_LRE)
    a('s_load_dwordx2 s[54:55], s[0:1], %d' % A_LDT)
    a('v_lshrrev_b32 v13, 6, v0')
    a('v_readfirstlane_b32 s%d, v13' % S_W)
    a('v_and_b32 v0, 63, v0')
    a('s_cmp_ge_u32 s%d, 2' % S_W); a('s_cbranch_scc1 SKIP_LN')
    ln_part(a)
    a.vm = []
    a('s_branch LN_DONE')
    a('SKIP_LN:')
    if P('CODEPF', 1):
        a('s_getpc_b64 s[4:5]'); a('PFPC:')
        a('s_sub_u32 s4, s4, PFPC-KSTART'); a('s_subb_u32 s5, s5, 0')
        a('s_lshr_b32 s6, s2, 3'); a('s_and_b32 s6, s6, 7'); a('s_add_u32 s6, s6, 1'); a('s_lshl_b32 s6, s6, 13')
        a('s_cmp_eq_u32 s%d, 3' % S_W); a('s_cselect_b32 s6, 0, s6')
        a('v_lshl_add_u32 v%d, v0, 7, s6' % V_PL)
        a('v_min_u32 v%d, KLAST-KSTART, v%d' % (V_PL, V_PL))
        a('global_load_dword v%d, v%d, s[4:5]' % (V_PL+3, V_PL))
        a.vm = []
    a('LN_DONE:')
    a('s_waitcnt lgkmcnt(0)')
    ws_srd(a)
    a('s_cmp_lt_u32 s%d, 2' % S_W); a('s_cbranch_scc1 HAVE_NONCE')
    a('s_load_dword s%d, s[%d:%d], %d' % (S_NONCE, S_WS, S_WS+1, NONCE_OFF))
    a('s_cmp_lt_u32 s2, 240'); a('s_cbranch_scc1 HAVE_NONCE')
    a('s_waitcnt lgkmcnt(0)'); nonce_mix(a)
    a('HAVE_NONCE:')
    a('s_cmp_lt_u32 s2, 240'); a('s_cbranch_scc1 HEAVY')
    light_part(a)
    a.vm = []
    a('HEAVY:')
    srd(a, S_W1, SP0+4, 576*9216)
    a('s_and_b32 s3, s2, 7'); a('s_lshr_b32 s4, s2, 3')
    a('s_lshr_b32 s5, s3, 1'); a('s_mul_i32 s5, s5, 30'); a('s_add_u32 s5, s5, s4')
    a('s_lshr_b32 s6, s5, 2')
    a('s_mul_i32 s7, s6, 52'); a('s_lshr_b32 s7, s7, 8')
    a('s_mul_i32 s4, s7, 5'); a('s_sub_u32 s4, s6, s4')
    a('s_mul_i32 s6, s7, 3'); a('s_add_u32 s6, s6, s4')
    a('s_lshl_b32 s7, s7, 1'); a('s_add_u32 s7, s7, s4'); a('s_add_u32 s7, s7, 15')
    a('s_cmp_lt_u32 s4, 3'); a('s_cselect_b32 s%d, s6, s7' % S_N)
    a('s_and_b32 s5, s5, 3'); a('s_and_b32 s3, s3, 1'); a('s_lshl_b32 s3, s3, 2'); a('s_add_u32 s%d, s3, s5' % S_G)
    a('s_lshl_b32 s%d, s%d, 10' % (S_M0W, S_W))
    a('v_lshrrev_b32 v13, 3, v0'); a('v_and_b32 v14, 7, v0'); a('v_bfe_u32 v15, v0, 4, 1'); a('v_lshlrev_b32 v15, 2, v15'); a('v_xor_b32 v14, v14, v15')
    a('s_lshl_b32 s3, s%d, 3' % S_W); a('v_add_u32 v13, s3, v13')
    a('v_mul_u32_u24 v%d, 9216, v13' % V_WD); a('v_lshl_add_u32 v%d, v14, 4, v%d' % (V_WD, V_WD))
    def common2():
        a('s_mov_b32 s%d, 0x%08x' % (S_NL2E, f32bits(-LOG2E)))
        a('s_mul_i32 s%d, s%d, %d' % (S_XB, S_G, 8*36864)); a('s_add_u32 s%d, s%d, %d' % (S_XB, S_XB, XF_OFF))
        a('s_mul_i32 s%d, s%d, %d' % (S_HB, S_G, 8*HF_RB)); a('s_add_u32 s%d, s%d, %d' % (S_HB, S_HB, HF_OFF))
        a('s_mul_i32 s3, s%d, 73728' % S_W)
        a('v_bfe_u32 v14, v0, 2, 3'); a('v_lshlrev_b32 v14, 7, v14'); a('v_lshrrev_b32 v15, 5, v0'); a('v_lshl_add_u32 v14, v15, 6, v14')
        a('v_and_b32 v15, 3, v0'); a('v_lshl_add_u32 v14, v15, 4, v14'); a('v_add_u32 v%d, s3, v14' % V_XO)
        a('v_add_u32 v%d, 36864, v%d' % (V_XO+1, V_XO))
        a('s_mul_i32 s3, s%d, %d' % (S_W, 2*HF_RB))
        a('v_lshl_add_u32 v%d, v0, 4, s3' % V_HO); a('v_add_u32 v%d, %d, v%d' % (V_HO+1, HF_RB, V_HO))
        a('v_lshrrev_b32 v14, 5, v0'); a('v_lshlrev_b32 v14, 10, v14')
        a('v_bfe_u32 v15, v0, 2, 2'); a('v_lshl_add_u32 v14, v15, 7, v14')
        a('v_bfe_u32 v15, v0, 4, 1'); a('v_lshl_add_u32 v14, v15, 5, v14')
        a('v_and_b32 v15, 3, v0'); a('v_lshl_add_u32 v14, v15, 3, v14')
        a('v_bfe_u32 v15, v0, 3, 1'); a('v_lshl_add_u32 v%d, v15, 6, v14' % V_TR)
        a('v_xor_b32 v%d, 64, v%d' % (V_TR+1, V_TR))
    def w1_and_poll(tagp):
        nstamp(a, 'w1i')
        common2()
        a('v_and_b32 v%d, 15, v0' % V_PA); a('v_lshlrev_b32 v%d, 7, v%d' % (V_PA, V_PA))
        a('s_lshl_b32 s3, s%d, 13' % S_G); a('s_lshl_b32 s4, s%d, 11' % S_W); a('s_add_u32 s3, s3, s4'); a('s_add_u32 s%d, s3, %d' % (S_T3, LNF_OFF))
        ld = 'buffer_load_dword v%d, v%d, %s, s%d offen sc1' % (V_PL, V_PA, WSR, S_T3)
        a(ld); a('s_waitcnt vmcnt(0)')
        stamp(a, st); nstamp(a, 'pl0')
        poll_loop(a, lambda a: a(ld), chk_all_eq(V_PL))
        stamp(a, st); nstamp(a, 'pl1')
    def w0(mixed):
        L = 'W0SKIP%d' % mixed
        a('s_cmp_lt_u32 s%d, 2' % S_W); a('s_cbranch_scc1 %s' % L); nstamp(a, 'w0a')
        if P('WTOUCH', 0):
            a('s_and_b32 s3, s%d, 3' % S_G); a('s_mul_i32 s3, s3, %d' % (144*9216))
            a('s_cmp_eq_u32 s%d, 3' % S_W); a('s_cselect_b32 s4, s%d, s%d' % (S_P+1, S_P+(1 if mixed else 0))); a('s_add_u32 s3, s3, s4')
            a('v_min_u32 v%d, 47, v0' % V_PA); a('v_mul_u32_u24 v%d, 9216, v%d' % (V_PA, V_PA))
            for k in range(3):
                a('buffer_load_dword v%d, v%d, s[%d:%d], s3 offen' % (V_PL+3, V_PA, S_W1, S_W1+3))
                a('s_add_u32 s3, s3, %d' % (48*9216))
        if mixed:
            a('v_subrev_u32 v%d, %d, v%d' % (V_PA, 16*1152, V_BD))
            for n in range(18): dma_b(a, n//2, n % 2, 'w0'); dma_b(a, n//2, n % 2, 'w0', V_PA, -2048)
        else:
            a('v_subrev_u32 v%d, %d, v%d' % (V_PA, 16*9216, V_WD))
            for n in range(18): dma_w1(a, 0, 0, n, 'w0'); dma_w1(a, 0, 0, n, 'w0', V_PA, -2048)
        a('v_subrev_u32 v%d, %d, v%d' % (V_PA, 16*9216, V_WD))
        for n in range(18): dma_w1(a, 1, 1, n, 'w1'); dma_w1(a, 1, 1, n, 'w1', V_PA, -2048)
        if P('STOUCH', 0):
            a('s_load_dwordx2 s[%d:%d], s[0:1], %d' % (SP0, SP0+1, B_W2)); a('s_waitcnt lgkmcnt(0)')
            srd(a, S_WT, SP0, 4608*1152)
            a('s_lshl_b32 s3, s2, 1'); a('s_add_u32 s3, s3, s%d' % S_W); a('s_sub_u32 s3, s3, 2'); a('s_mul_i32 s3, s3, %d' % (88*128))
            a('v_min_u32 v%d, 43, v0' % V_PA); a('v_lshl_add_u32 v%d, v%d, 7, s3' % (V_PA, V_PA))
            a('buffer_load_dword v%d, v%d, s[%d:%d], 0 offen' % (V_PL+3, V_PA, S_WT, S_WT+3))
            a('v_add_u32 v%d, %d, v%d' % (V_PA, 44*128, V_PA))
            a('buffer_load_dword v%d, v%d, s[%d:%d], 0 offen' % (V_PL+3, V_PA, S_WT, S_WT+3))
        nstamp(a, 'w0b'); a('s_waitcnt lgkmcnt(0)'); nonce_mix(a)
        a(L + ':')
        a.vm = []
    a('s_cmp_lt_u32 s%d, 18' % S_N); a('s_cbranch_scc1 A_MIXED')
    a('s_lshl_b32 s7, s%d, 1' % S_N); a('s_sub_u32 s7, s7, 36')
    early_pair(a, 7, S_P); a('s_add_u32 s7, s7, 1'); early_pair(a, 7, S_P+1); late_pair(a)
    w0(0); w1_and_poll(0)
    phaseA(a, False, st)
    a('s_branch A_DONE')
    nst = st.n; st.n = 1; a.vm = []; a.lg = []; a.seen = set()
    a('A_MIXED:')
    srd(a, S_BRE, 56, 576*1152); srd(a, S_BIM, 58, 576*1152)
    mixed_pair(a); late_pair(a)
    a('v_bfe_u32 v15, v13, 1, 3'); a('v_and_b32 v14, 7, v0'); a('v_xor_b32 v14, v14, v15')
    a('s_lshl_b32 s7, s%d, 5' % S_N); a('v_add_u32 v13, s7, v13')
    a('v_mul_u32_u24 v%d, 1152, v13' % V_BD); a('v_lshl_add_u32 v%d, v14, 4, v%d' % (V_BD, V_BD))
    w0(1)
    a('v_and_b32 v13, 31, v0'); a('v_lshrrev_b32 v14, 5, v0'); a('v_bfe_u32 v15, v0, 1, 3'); a('v_xor_b32 v14, v14, v15')
    a('v_lshlrev_b32 v14, 4, v14'); a('v_lshl_add_u32 v%d, v13, 7, v14' % V_BR)
    for e in range(1, 4): a('v_xor_b32 v%d, %d, v%d' % (V_BR+e, 32*e, V_BR))
    a('v_lshrrev_b32 v14, 5, v0'); a('s_lshl_b32 s4, s%d, 1' % S_W); a('v_add_u32 v%d, s4, v14' % R_SIDX)
    a('v_add_u32 v%d, s%d, v14' % (R_GH, S_G))
    a('v_mul_u32_u24 v%d, 80, v13' % R_TW); a('v_add_u32 v%d, 0x%x, v%d' % (R_TW, E_OFF - E_OFF % 65536, R_TW))
    a('v_lshl_add_u32 v%d, v%d, 3, v%d' % (R_EA, R_SIDX, R_TW)); a('v_add_u32 v%d, 0x%x, v%d' % (R_EA, E_OFF % 65536, R_EA))
    a('v_add_u32 v15, s7, v13')
    a('v_lshlrev_b32 v%d, 4, v15' % R_AW)
    a('v_mul_u32_u24 v14, 9216, v14'); a('v_add_u32 v%d, v14, v%d' % (R_AO, R_AW))
    a('v_min_u32 v14, 1, v%d' % R_SIDX); a('v_lshl_add_u32 v%d, v14, 30, v%d' % (R_AW, R_AW))
    a('v_lshlrev_b32 v15, 1, v15')
    a('global_load_ushort v%d, v15, s[60:61]' % R_T3); a('global_load_ushort v%d, v15, s[62:63]' % R_T4); a('global_load_ushort v%d, v15, s[54:55]' % R_ER)
    a('s_mul_i32 s%d, s%d, 9216' % (S_BB, S_G)); a('s_add_u32 s%d, s%d, %d' % (S_BB, S_BB, AGG_OFF))
    a('s_lshl_b32 s4, s%d, 11' % S_W); a('s_add_u32 s4, s4, %d' % TB_OFF)
    a('v_lshrrev_b32 v14, 5, v0'); a('v_lshlrev_b32 v14, 9, v14')
    a('v_bfe_u32 v15, v0, 2, 2'); a('v_lshl_add_u32 v14, v15, 6, v14')
    a('v_and_b32 v15, 1, v0'); a('v_lshl_add_u32 v14, v15, 5, v14')
    a('v_bfe_u32 v15, v0, 4, 1'); a('v_lshl_add_u32 v14, v15, 4, v14')
    a('v_bfe_u32 v15, v0, 1, 1'); a('v_lshl_add_u32 v14, v15, 3, v14')
    a('v_bfe_u32 v15, v0, 3, 1'); a('v_lshlrev_b32 v15, 4, v15'); a('v_xor_b32 v14, v14, v15')
    a('v_add_u32 v%d, s4, v14' % R_TRD)
    a('v_lshrrev_b32 v14, 5, v0'); a('v_lshlrev_b32 v14, 1, v14'); a('v_bfe_u32 v15, v0, 1, 2'); a('v_xor_b32 v14, v14, v15')
    a('v_lshlrev_b32 v14, 4, v14'); a('v_lshl_add_u32 v14, v13, 6, v14')
    a('v_add_u32 v%d, s4, v14' % R_TWA)
    w1_and_poll(1)
    a('s_lshr_b32 s4, s%d, 5' % S_SW); a('v_xor_b32 v%d, s4, v%d' % (V_TR, V_TR)); a('v_xor_b32 v%d, s4, v%d' % (V_TR+1, V_TR+1))
    a('s_lshl_b32 s4, s%d, 11' % S_N); a('s_add_u32 s4, s4, %d' % (288*1024)); a('s_add_u32 s%d, s4, s%d' % (S_HS, S_HB))
    phaseA(a, True, st)
    assert st.n == nst or not DIAG or STNAMES
    a('A_DONE:')
    a('s_nop 15')
    a.vm = []; a.lg = []; a.seen = set()
    a('s_cmp_eq_u32 s%d, 4' % S_SP); a('s_cbranch_scc1 B_SSM')
    phaseB(a, False, st)
    st.n = nst; a.vm = []; a.lg = []; a.seen = set()
    a('B_SSM:')
    phaseB(a, True, st)
    a.lines.extend(OOL)
    a('KEND:')
    a('KLAST:')
    a('s_endpgm')
    return name, a.lines, kernel_desc(name, 512, 256, 102)

if __name__ == '__main__':
    ref = open('cdna_kernels/%s.s.ref' % PFX).read().split('\n')
    hdr = [l for l in ref if l.startswith(';') and '@launch' not in l and 'Override launch' not in l and 'grid=ceil' not in l][:16]
    name, lines, desc = gen()
    padded, n = pad_hazards(lines)
    sys.stderr.write('%d lines, %d nops inserted\n' % (len(padded), n))
    out = hdr + ['; @launch grid=(256,1,1) block=(256,1,1) lds=%d' % LDS_BYTES, '.amdgcn_target "amdgcn-amd-amdhsa--gfx950"'] + padded + [desc]
    sys.stdout.write('\n'.join(out) + '\n')
```

```python
import sys
STAMP_OFF = 60*1024*1024
def amp(last):
    o = ['''.text
.globl amp_kernel
.p2align 8
.type amp_kernel,@function
amp_kernel:
  s_cmp_lg_u32 s2, 0
  s_cbranch_scc1 ADONE
  s_load_dwordx2 s[10:11], s[0:1], 112
  s_memrealtime s[12:13]
  s_waitcnt lgkmcnt(0)
  s_mov_b32 s16, s10
  s_and_b32 s17, s11, 0xffff
  s_mov_b32 s18, 0x4000000
  s_mov_b32 s19, 0x00020000
  v_lshlrev_b32 v1, 6, v0
  v_mov_b32 v2, 0
  v_mov_b32 v3, -1
  s_mov_b32 s20, %d''' % STAMP_OFF]
    for i in range(15):
        o.append('  buffer_load_dword v4, v1, s[16:19], s20 offen sc1')
        o.append('  buffer_load_dword v5, v1, s[16:19], s20 offen offset:%d sc1' % (8 if last == -2 else 4*max(last, 0)))
        o.append('  s_waitcnt vmcnt(0)')
        o.append('  v_sub_u32 v4, s12, v4\n  v_sub_u32 v5, s12, v5\n  v_max_u32 v2, v2, v4\n  v_min_u32 v3, v3, v5\n  s_add_u32 s20, s20, 4096')
    o.append('  s_mov_b32 s21, 0\n  s_mov_b32 s22, -1\n  s_nop 4')
    for l in range(64):
        o.append('  v_readlane_b32 s23, v2, %d\n  v_readlane_b32 s24, v3, %d\n  s_nop 3\n  s_max_u32 s21, s21, s23\n  s_min_u32 s22, s22, s24' % (l, l))
    if last >= 0: o.append('  s_sub_u32 s21, s21, s22')
    if last == -2: o.append('  s_mul_i32 s21, s22, 5')
    o.append('''  s_mul_i32 s21, s21, 9
  s_min_u32 s21, s21, 100000
ASPIN:
  s_sleep 2
  s_memrealtime s[6:7]
  s_waitcnt lgkmcnt(0)
  s_sub_u32 s8, s6, s12
  s_cmp_lt_u32 s8, s21
  s_cbranch_scc1 ASPIN
ADONE:
  s_endpgm
.section .rodata,"a"
.p2align 6
.amdhsa_kernel amp_kernel
  .amdhsa_next_free_vgpr 8
  .amdhsa_next_free_sgpr 32
  .amdhsa_accum_offset 8
  .amdhsa_group_segment_fixed_size 0
  .amdhsa_kernarg_size 120
  .amdhsa_user_sgpr_count 2
  .amdhsa_user_sgpr_kernarg_segment_ptr 1
  .amdhsa_system_sgpr_workgroup_id_x 1
.end_amdhsa_kernel
''')
    return '\n'.join(o)
for src in sys.argv[2:]:
    s = open(src).read()
    s = s.replace('; @launch grid', '; @launch kernel=recurrent_scan__ssm_conv_s5__dense_activation_silu__prompt_kernel grid')
    lines = [x + '\n' for x in s.split('\n') if x.startswith('; @launch')]
    l = '; @launch kernel=amp_kernel grid=(1,1,1) block=(64,1,1) lds=0\n'
    open(src.replace('.s', '_amp.s'), 'w').write(s.replace(lines[-1], lines[-1] + l) + amp(int(sys.argv[1])))
```

```python
import sys, os, struct
from asmlib import *
from sched import *
def P(name, dflt): return int(os.environ.get(name, dflt))
def f32bits(x): return struct.unpack('<I', struct.pack('<f', x))[0]
PFX = "recurrent_scan__ssm_conv_s5__dense_activation_silu__prompt"
LOG2E = 1.4426950408889634

WSB      = P('WSB', 0)*1024*1024
NONCE_OFF= 0
STAT_OFF = 16384
AGG_OFF  = 65536
FS       = 128
LNF_OFF  = 256*1024
HEF_OFF  = 320*1024
HFL_OFF  = 384*1024
HSF_OFF  = 448*1024
CFL_OFF  = 512*1024
OOB      = 0x7ffffff0
XF_OFF   = 1024*1024
CF_OFF   = 4*1024*1024
HF_OFF   = 8*1024*1024
HF_RB    = 360*1024
PF_OFF   = 32*1024*1024
if P('COMPACT', 0):
    CF_OFF = XF_OFF + 64*36*1024; HF_OFF = CF_OFF + 24*55296; PF_OFF = HF_OFF + 64*HF_RB
PY_OFF   = (PF_OFF + 4*64*6*8192) if P('COMPACT', 0) else 48*1024*1024
WS_USED  = 64*1024*1024
A_X, A_LRE, A_LIM, A_BRE, A_BIM, A_CRE, A_CIM, A_LDT, A_DSK, B_X, B_W1, B_W2, D_OUT, D_DBG, D_WS = [8*i for i in range(15)]

SLAB = 73728
E_OFF = 2*SLAB
TB_OFF = E_OFF + 3072
LDS_BYTES = TB_OFF + 8192

def ws_srd(a):
    a('s_add_u32 s%d, s%d, 0x%x' % (S_WS, SP0+2, WSB))
    a('s_addc_u32 s%d, s%d, 0' % (S_WS+1, SP0+3))
    a('s_and_b32 s%d, s%d, 0xffff' % (S_WS+1, S_WS+1))
    a('s_mov_b32 s%d, 0x%x' % (S_WS+2, WS_USED))
    a('s_mov_b32 s%d, 0x00020000' % (S_WS+3))
def srd(a, s, lo, nbytes):
    a('s_mov_b32 s%d, s%d' % (s, lo))
    a('s_and_b32 s%d, s%d, 0xffff' % (s+1, lo+1))
    a('s_mov_b32 s%d, 0x%x' % (s+2, nbytes))
    a('s_mov_b32 s%d, 0x00020000' % (s+3))

S_WS = 8; S_W1 = 12; S_BRE = 16; S_BIM = 20; S_WT = 24
S_X = 16; S_OUT = 20
S_G = 28; S_N = 29; S_W = 30; S_XB = 31; S_T = 32; S_M0W = 33
S_P = 34
S_HB = 37; S_T2 = 38; S_BB = 39; S_NL2E = 40; S_TX = 41; S_TF = 42; S_CNT = 43; S_HS = 44; S_NONCE = 45
S_MT = 46; S_NT = 47; S_SP = 48; S_WB = 49; S_WSTR = 50; S_MW = 51; S_T3 = 52; S_T4 = 53; S_MASK = 54; S_TEAM = 55
S_SHORT = S_XB
S_SW = 34
S_PF = 12
S_ORD = 56
S_HBB = S_HB; S_HN = S_TX; S_PB = S_BB
SP0 = 96

V_XO = 1; V_WD = 3; V_BD = 4; V_TR = 5; V_BR = 7; V_HO = 11; V_T0 = 13
V_XV = 16; V_ACC = 48; V_WF = 176; V_ET = 200; V_SC = 208
V_W2D = 253
def xfrag(blk, ks):
    idx = (ks*2 + blk)*4
    return ar(idx, 4) if idx < 256 else vr(V_XV + idx - 256, 4)
def acc(s, blk): return V_ACC + 32*s + 16*blk
(R_LR, R_LI, R_CR, R_CI, R_P32R, R_P32I, R_P256R, R_P256I, R_T1, R_T2, R_T3, R_T4, R_ER, R_EI, R_TG0, R_TG1, R_EA, R_SIDX, R_AO, R_TW) = range(V_SC, V_SC+20)
R_BUF = V_SC + 20
R_TWA, R_TRD, R_P512R, R_P512I, R_GH, R_AW = range(244, 250)
R_NLI = 4
R_NCI = R_TG1
R_U0 = R_T4
R_MR, R_MI = 1, 2
R_LLR, R_LLI = 7, 8
V_PL = 250
V_PA = 252
V_DUM = 13
V_RDB = 251
assert R_BUF % 4 == 0 and R_ER % 4 == 0

WSR = 's[%d:%d]' % (S_WS, S_WS+3)
label_n = [0]
OOL = []
def poll_loop(a, loads, check, sleep=1, rec=None, first=None):
    label_n[0] += 1; L = 'POLL%d' % label_n[0]
    if DIAG: a('s_mov_b32 s%d, 0' % S_CNT)
    (first or check)(a)
    a('s_cbranch_scc0 %s' % L)
    a(L + '_OK:')
    if DIAG and STNAMES and rec in STNAMES: a('s_mov_b32 s%d, s%d' % (S_STAMP + 2*STNAMES.index(rec), S_CNT))
    b = Asm()
    b(L + ':')
    b('s_mov_b32 s%d, 0' % S_CNT)
    b(L + '_R:')
    b('s_add_u32 s%d, s%d, 1' % (S_CNT, S_CNT))
    b('s_cmp_gt_u32 s%d, %d' % (S_CNT, P('SPIN', 20000)))
    b('s_cbranch_scc1 %s_OK' % L)
    b('s_sleep %d' % sleep)
    loads(b)
    b('s_waitcnt vmcnt(0)')
    check(b)
    b('s_cbranch_scc0 %s_R' % L)
    b('s_branch %s_OK' % L)
    OOL.extend(b.lines)

def split_check(F, tag, loads, check, ntail, dl, sleep, rec):
    t = Asm(); check(t); ins = [l.strip() for l in t.lines]
    F.fn(lambda a: a.wait_vm(tag), 1, 0, dl)
    for x in ins[:-ntail]: F.ins(x)
    F.fn(lambda a: poll_loop(a, loads, check, sleep, rec, lambda a: [a(x) for x in ins[-ntail:]]), ntail + 1)

def chk_all_eq(reg):
    def f(a):
        a('v_cmp_ne_u32 vcc, s%d, v%d' % (S_NONCE, reg))
        a('s_nop 1')
        a('s_cmp_eq_u64 vcc, 0')
    return f

def epi_ffn(E, s, pi, c, ready, blks=(0, 1), mixed=False):
    grp = ('acc', s)
    els = [(blk, j) for blk in blks for j in range(16)]
    n = len(els)
    r = lambda e: acc(s, els[e][0]) + els[e][1]
    t = lambda e: V_ET + (e % 8)
    I = lambda text, tag=None: E.ins(text, tag, ready, 0, grp)
    I('s_lshl_b32 s%d, s%d, 5' % (S_T2, S_P+pi))
    I('s_add_u32 s%d, s%d, s%d' % (S_T2, S_T2, S_HB))
    if mixed: I('%s s%d, s%d, s%d' % ('s_sub_u32' if c else 's_add_u32', S_T2, S_T2, S_SW))
    for step in range(n + 6):
        e = step
        if e < n: I('v_mul_f32 v%d, s%d, v%d' % (t(e), S_NL2E, r(e)))
        e = step - 1
        if 0 <= e < n: I('v_exp_f32 v%d, v%d' % (t(e), t(e)))
        e = step - 2
        if 0 <= e < n: I('v_add_f32 v%d, 1.0, v%d' % (t(e), t(e)))
        e = step - 3
        if 0 <= e < n: I('v_rcp_f32 v%d, v%d' % (t(e), t(e)))
        e = step - 4
        if 0 <= e < n: I('v_mul_f32 v%d, v%d, v%d' % (t(e), t(e), r(e)))
        e = step - 5
        if 0 <= e < n and e % 2 == 1:
            base = r(e - e % 8)
            I('v_cvt_pk_bf16_f32 v%d, v%d, v%d' % (base + (e % 8)//2, t(e-1), t(e)))
            if e % 8 == 7:
                blk = els[e][0]; fr = (e % 16)//8
                I('buffer_store_dwordx4 %s, v%d, %s, s%d offen offset:%d sc1' % (vr(base, 4), V_HO+blk, WSR, S_T2, c*2048 + fr*1024), 'st' if (pi == 2 or (mixed and c == 1)) else 'se')

def cmul_add(F, dr, di, ar_, ai, br, bi, cr, ci, ready=0):
    F.ins('v_fma_f32 v%d, -v%d, v%d, v%d' % (R_T1, ai, bi, cr), None, ready)
    F.ins('v_fma_f32 v%d, v%d, v%d, v%d' % (R_T2, ai, br, ci), None, ready)
    F.ins('v_fma_f32 v%d, v%d, v%d, v%d' % (dr, ar_, br, R_T1), None, ready)
    F.ins('v_fma_f32 v%d, v%d, v%d, v%d' % (di, ar_, bi, R_T2), None, ready)

def csq(F, dr, di, sr_, si):
    F.ins('v_mul_f32 v%d, v%d, v%d' % (R_T1, si, si))
    F.ins('v_mul_f32 v%d, v%d, v%d' % (R_T2, sr_, si))
    F.ins('v_fma_f32 v%d, v%d, v%d, -v%d' % (dr, sr_, sr_, R_T1))
    F.ins('v_add_f32 v%d, v%d, v%d' % (di, R_T2, R_T2))

def scan_tables(F):
    F.ins('v_lshlrev_b32 v%d, 16, v%d' % (R_T3, R_T3))
    F.ins('v_lshlrev_b32 v%d, 16, v%d' % (R_T4, R_T4))
    F.ins('v_lshlrev_b32 v%d, 16, v%d' % (R_ER, R_ER))
    F.ins('v_mul_f32 v%d, 0x%08x, v%d' % (R_ER, f32bits(LOG2E), R_ER))
    F.ins('v_exp_f32 v%d, v%d' % (R_ER, R_ER))
    F.ins('v_cvt_pk_bf16_f32 v%d, v%d, v%d' % (R_ER, R_ER, R_ER))
    F.ins('v_lshlrev_b32 v%d, 16, v%d' % (R_ER, R_ER))
    F.ins('v_mul_f32 v%d, v%d, v%d' % (R_T1, R_ER, R_T3))
    F.ins('v_mul_f32 v%d, v%d, v%d' % (R_T2, R_ER, R_T4))
    F.ins('v_mul_f32 v%d, 0x%08x, v%d' % (R_T1, f32bits(LOG2E), R_T1))
    F.ins('v_exp_f32 v%d, v%d' % (R_T1, R_T1))
    F.ins('v_mul_f32 v%d, 0.15915494, v%d' % (R_T2, R_T2))
    F.ins('v_rndne_f32 v%d, v%d' % (R_EI, R_T2))
    F.ins('v_sub_f32 v%d, v%d, v%d' % (R_T2, R_T2, R_EI))
    F.ins('v_cos_f32 v%d, v%d' % (R_LR, R_T2))
    F.ins('v_sin_f32 v%d, v%d' % (R_LI, R_T2))
    F.ins('v_mul_f32 v%d, v%d, v%d' % (R_LR, R_LR, R_T1))
    F.ins('v_mul_f32 v%d, v%d, v%d' % (R_LI, R_LI, R_T1))
    F.ins('v_add_f32 v%d, -1.0, v%d' % (R_ER, R_LR))
    F.ins('v_mul_f32 v%d, v%d, v%d' % (R_T1, R_T3, R_T3))
    F.ins('v_fmac_f32 v%d, v%d, v%d' % (R_T1, R_T4, R_T4))
    F.ins('v_rcp_f32 v%d, v%d' % (R_T1, R_T1))
    F.ins('v_mul_f32 v%d, v%d, v%d' % (R_CR, R_ER, R_T3))
    F.ins('v_fmac_f32 v%d, v%d, v%d' % (R_CR, R_LI, R_T4))
    F.ins('v_mul_f32 v%d, v%d, v%d' % (R_CI, R_LI, R_T3))
    F.ins('v_fma_f32 v%d, -v%d, v%d, v%d' % (R_CI, R_ER, R_T4, R_CI))
    F.ins('v_mul_f32 v%d, v%d, v%d' % (R_CR, R_CR, R_T1))
    F.ins('v_mul_f32 v%d, v%d, v%d' % (R_CI, R_CI, R_T1))
    csq(F, R_P32R, R_P32I, R_LR, R_LI)
    for _ in range(4): csq(F, R_P32R, R_P32I, R_P32R, R_P32I)
    MR, MI, Z = R_BUF, R_BUF+1, R_BUF+2
    F.ins('v_mov_b32 v%d, 0' % Z)
    F.ins('v_and_b32 v%d, 1, v%d' % (R_T3, R_SIDX)); F.ins('v_cmp_ne_u32 s[60:61], 0, v%d' % R_T3)
    F.ins('v_cndmask_b32 v%d, 1.0, v%d, s[60:61]' % (MR, R_P32R)); F.ins('v_cndmask_b32 v%d, 0, v%d, s[60:61]' % (MI, R_P32I))
    for b in (1, 2):
        if b == 1: csq(F, R_P256R, R_P256I, R_P32R, R_P32I)
        else: csq(F, R_P256R, R_P256I, R_P256R, R_P256I)
        F.ins('v_and_b32 v%d, %d, v%d' % (R_T3, 1 << b, R_SIDX)); F.ins('v_cmp_ne_u32 s[60:61], 0, v%d' % R_T3)
        cmul_add(F, R_BUF+4, R_BUF+5, R_P256R, R_P256I, MR, MI, Z, Z)
        F.ins('v_cndmask_b32 v%d, v%d, v%d, s[60:61]' % (MR, MR, R_BUF+4)); F.ins('v_cndmask_b32 v%d, v%d, v%d, s[60:61]' % (MI, MI, R_BUF+5))
    csq(F, R_P256R, R_P256I, R_P256R, R_P256I)
    csq(F, R_P512R, R_P512I, R_P256R, R_P256I)
    F.ins('v_mov_b32 v%d, s%d' % (R_TG0, S_NONCE))
    F.ins('v_sub_f32 v%d, 0, v%d' % (R_NLI, R_LI))
    F.ins('v_sub_f32 v%d, 0, v%d' % (R_NCI, R_CI))

def ureg(part, tt): return acc(part, tt >> 4) + (tt & 15)
def uim(tt): return R_U0 if tt == 0 else acc(1, 0) + tt - 1

def scan_early(F, ready, half, cb=None):
    for tt in range(16*half, 16*half + 16):
        ur, ui, un = ureg(0, tt), ureg(1, tt), uim(tt)
        F.ins('v_mul_f32 v%d, v%d, v%d' % (un, R_CI, ur), None, ready)
        F.ins('v_mul_f32 v%d, v%d, v%d' % (ur, R_CR, ur))
        F.ins('v_fmac_f32 v%d, v%d, v%d' % (un, R_CR, ui))
        F.ins('v_fmac_f32 v%d, v%d, v%d' % (ur, R_NCI, ui))
        if tt == 0: continue
        pairs = [(R_ER, R_EI), (R_T1, R_T2)]
        nr, ni = pairs[(31 - tt) % 2]
        er, ei = (ureg(0, 0), uim(0)) if tt == 1 else pairs[(32 - tt) % 2]
        F.ins('v_fma_f32 v%d, v%d, v%d, v%d' % (ni, R_LI, er, un))
        F.ins('v_fma_f32 v%d, v%d, v%d, v%d' % (nr, R_NLI, ei, ur))
        F.ins('v_fmac_f32 v%d, v%d, v%d' % (ni, R_LR, ei))
        F.ins('v_fmac_f32 v%d, v%d, v%d' % (nr, R_LR, er))
    if half == 0: return
    F.ins('v_mov_b32 v%d, v%d' % (R_MR, R_BUF)); F.ins('v_mov_b32 v%d, v%d' % (R_MI, R_BUF+1))
    F.ins('ds_write_b64 v%d, %s' % (R_EA, vr(R_ER, 2)), 'ew')
    F.fn(lambda a: (a.wait_lg('ew'), a('s_barrier')), 2, 0, 2)
    for n in range(4):
        F.ins('ds_read_b128 %s, v%d offset:%d' % (vr(R_BUF+4*n, 4), R_TW, E_OFF % 65536 + 16*n), 'er')
    F.ins('v_mov_b32 v%d, s%d' % (R_TG1, S_NONCE))
    F.ins('s_add_u32 s%d, s%d, %d' % (S_TF, S_BB, 8*9216))
    F.fn(lambda a: a.wait_lg('er'), 1, 0, 4)
    cmul_add(F, R_ER, R_EI, R_P32R, R_P32I, R_BUF, R_BUF+1, R_BUF+2, R_BUF+3)
    for s in range(2, 8):
        cmul_add(F, R_ER, R_EI, R_P32R, R_P32I, R_ER, R_EI, R_BUF+2*s, R_BUF+2*s+1)
    F.ins('buffer_store_dwordx4 %s, v%d, %s, s%d offen sc1' % (vr(R_ER, 4), R_AW, WSR, S_TF), 'st')
    F.fn(lambda a: cb(), 0)
    F.ins('v_xor_b32 v%d, 16, v%d' % (R_EA, R_TWA)); F.ins('v_xor_b32 v%d, 32, v%d' % (R_TW, R_TRD))
    F.ins('v_mov_b32 v%d, 0' % R_LLR); F.ins('v_mov_b32 v%d, 0' % R_LLI)
    for s in range(7):
        F.ins('v_cmp_lt_u32 s[60:61], %d, v%d' % (s, R_SIDX))
        cmul_add(F, R_T3, R_CI, R_P32R, R_P32I, R_LLR, R_LLI, R_BUF+2*s, R_BUF+2*s+1)
        F.ins('v_cndmask_b32 v%d, v%d, v%d, s[60:61]' % (R_LLR, R_LLR, R_T3))
        F.ins('v_cndmask_b32 v%d, v%d, v%d, s[60:61]' % (R_LLI, R_LLI, R_CI))

def agg_insts():
    out = []
    for m in range(4):
        out.append('s_add_u32 s%d, s%d, %d' % (S_TF, S_BB, 2*m*9216))
        out.append('buffer_load_dwordx4 %s, v%d, %s, s%d offen sc1' % (vr(R_BUF+4*m, 4), R_AO, WSR, S_TF))
    return out
def agg_check(a):
    for m in range(4):
        a('v_cmp_le_u32 s[60:61], %d, v%d' % (8-2*m, R_GH))
        a('v_cndmask_b32 v%d, v%d, v%d, s[60:61]' % (R_BUF+4*m+3, R_TG0, R_BUF+4*m+2))
        a('v_cndmask_b32 v%d, 0, v%d, s[60:61]' % (R_BUF+4*m, R_BUF+4*m))
        a('v_cndmask_b32 v%d, 0, v%d, s[60:61]' % (R_BUF+4*m+1, R_BUF+4*m+1))
    a('v_xor_b32 v%d, v%d, v%d' % (R_T1, R_BUF+3, R_BUF+7))
    a('v_xor_b32 v%d, v%d, v%d' % (R_T2, R_BUF+11, R_BUF+15))
    a('v_xor_b32 v%d, v%d, v%d' % (R_T3, R_BUF+3, R_TG0))
    a('v_xor_b32 v%d, v%d, v%d' % (R_CI, R_BUF+11, R_TG0))
    a('v_or3_b32 v%d, v%d, v%d, v%d' % (R_T1, R_T1, R_T2, R_T3))
    a('v_or_b32 v%d, v%d, v%d' % (R_T1, R_T1, R_CI))
    a('v_cmp_ne_u32 vcc, 0, v%d' % R_T1)
    a('s_nop 1')
    a('s_cmp_eq_u64 vcc, 0')

def scan_late(F, ready_poll):
    for t in agg_insts(): F.ins(t, 'poll', ready_poll)
    split_check(F, 'poll', lambda a: [a(t) for t in agg_insts()], agg_check, 3, P('POLLD', 34), 1, 'r_agg')
    cmul_add(F, R_ER, R_EI, R_P512R, R_P512I, R_BUF, R_BUF+1, R_BUF+4, R_BUF+5)
    for m in range(2, 4):
        cmul_add(F, R_ER, R_EI, R_P512R, R_P512I, R_ER, R_EI, R_BUF+4*m, R_BUF+4*m+1)
    F.ins('v_mov_b32 v%d, v%d' % (R_T3, R_ER)); F.ins('v_mov_b32 v%d, v%d' % (R_CI, R_EI))
    F.ins('v_permlane32_swap_b32 v%d, v%d' % (R_ER, R_T3)); F.ins('v_permlane32_swap_b32 v%d, v%d' % (R_EI, R_CI))
    cmul_add(F, R_ER, R_EI, R_P256R, R_P256I, R_ER, R_EI, R_T3, R_CI)
    cmul_add(F, R_ER, R_EI, R_MR, R_MI, R_ER, R_EI, R_LLR, R_LLI)
    pr, pi_ = R_ER, R_EI
    land = lambda part, blk: R_BUF if (part, blk) == (1, 0) else acc(part, blk) + 8
    def pack(part, blk):
        b = acc(part, blk); neg = '-' if part else ''
        src = (lambda t: uim(16*blk + t)) if part else (lambda t: b + t)
        for k in range(8):
            F.ins('v_cvt_pk_bf16_f32 v%d, %sv%d, %sv%d' % (b+k, neg, src(2*k), neg, src(2*k+1)))
        for u in range(2):
            F.ins('ds_write_b128 v%d, %s' % (R_EA if u else R_TWA, vr(b+4*u, 4)), 'tw', 0, P('TWSP', 1))
        for ph in range(2):
            for u in range(2):
                F.ins('ds_read_b64_tr_b16 %s, v%d offset:%d' % (vr(land(part, blk)+4*ph+2*u, 2), R_TW if u else R_TRD, ph*1024 + u*256), 'tr%d%d' % (part, blk))
    def store(part, blk, dl):
        b = land(part, blk)
        F.ins('s_add_u32 s%d, s%d, %d' % (S_TF, S_HS, part*36*1024))
        F.fn(lambda a: a.wait_lg('tr%d%d' % (part, blk)), 1, 0, dl)
        for ph in range(2):
            F.ins('buffer_store_dwordx4 %s, v%d, %s, s%d offen offset:%d sc1' % (vr(b+4*ph, 4), V_HO+blk, WSR, S_TF, ph*1024), 'hs', 0, P('HSSP', 0))
    for tt in range(32):
        ur, ui = ureg(0, tt), uim(tt)
        F.ins('v_fmac_f32 v%d, v%d, v%d' % (ur, R_LR, pr))
        F.ins('v_fmac_f32 v%d, v%d, v%d' % (ui, R_LI, pr))
        F.ins('v_fmac_f32 v%d, v%d, v%d' % (ur, R_NLI, pi_))
        F.ins('v_fmac_f32 v%d, v%d, v%d' % (ui, R_LR, pi_))
        pr, pi_ = ur, ui
        if tt == 16: pack(0, 0); pack(1, 0)
        if tt == 24: store(0, 0, 0); store(1, 0, 0)
    pack(0, 1); pack(1, 1); store(0, 1, 2); store(1, 1, 2)
    F.fn(hs_flag, 5, 0, P('HSD', 26), 'hsflag')

def hs_flag(a):
    a('s_add_u32 s%d, s%d, %d' % (S_TF, S_T4, HSF_OFF))
    a.wait_vm('hs'); a('s_barrier')
    a('buffer_store_dword v%d, v%d, %s, s%d offen sc1' % (R_TG0, V_PA, WSR, S_TF), 'fl')

WNT = os.environ.get('WNT', '')
XNT = os.environ.get('XNT', '')
W2NT = os.environ.get('W2NT', '')
def he_flag(a):
    a('s_add_u32 s%d, s%d, %d' % (S_T, S_T4, HEF_OFF))
    a.wait_vm('se'); a('s_barrier')
    a('buffer_store_dword v%d, v%d, %s, s%d offen sc1' % (V_PL, V_PA, WSR, S_T), 'fl')

def dma_w1(a, slab, pi, n, tag, vreg=V_WD, dm=0):
    a('s_add_u32 m0, s%d, %d' % (S_M0W, slab*SLAB + n*4096 + dm))
    a('s_add_u32 s%d, s%d, %d' % (S_T, S_P+pi, n*32*9216))
    a('buffer_load_dwordx4 v%d, s[%d:%d], s%d offen%s lds' % (vreg, S_W1, S_W1+3, S_T, WNT), tag)

def dma_b(a, kb, part, tag, vreg=V_BD, dm=0):
    a('s_add_u32 m0, s%d, %d' % (S_M0W, kb*8192 + part*4096 + dm))
    a('s_movk_i32 s%d, %d' % (S_T, kb*128))
    s = S_BIM if part else S_BRE
    a('buffer_load_dwordx4 v%d, s[%d:%d], s%d offen%s lds' % (vreg, s, s+3, S_T, WNT), tag)

def xload(a, ks, blk):
    if ks % 4 == 0: a('s_add_u32 s%d, s%d, %d' % (S_TX, S_XB, (ks//4)*4096))
    a('buffer_load_dwordx4 %s, v%d, %s, s%d offen offset:%d sc1' % (xfrag(blk, ks), V_XO+blk, WSR, S_TX, (ks % 4)*1024), 'x%d_%d' % (blk, ks))

def w2_slot(ks):
    u = ks // 2
    base = (SLAB if u < 6 else 0) + (u % 3)*6144
    return base + (ks % 2)*3072
def w2_dma(ks):
    out = ['s_add_u32 m0, s%d, %d' % (S_MW, w2_slot(ks))]
    for n in range(3):
        out.append('buffer_load_dwordx4 v%d, s[%d:%d], s%d offen offset:%d sc1%s lds' % (V_W2D+n, S_WT, S_WT+3, S_WB, n*1024, W2NT))
    out.append('s_add_u32 s%d, s%d, s%d' % (S_WB, S_WB, S_WSTR))
    return out

def phaseB_setup(F, ready):
    I = lambda t: F.ins(t, None, ready)
    def ld(a):
        a('s_load_dwordx2 s[%d:%d], s[0:1], %d' % (SP0, SP0+1, B_W2))
    F.fn(ld, 1, ready)
    I('s_and_b32 s3, s2, 7'); I('s_lshr_b32 s4, s2, 3')
    I('s_mul_i32 s5, s4, 43'); I('s_lshr_b32 s5, s5, 8')
    I('s_mul_i32 s6, s5, 6'); I('s_sub_u32 s%d, s4, s6' % S_NT)
    if P('BMAP', 1):
        I('s_lshr_b32 s%d, s3, 1' % S_SP); I('s_and_b32 s6, s3, 1'); I('s_lshl_b32 s6, s6, 2'); I('s_add_u32 s%d, s6, s5' % S_MT)
        F.fn(lambda a: (a('s_cmp_eq_u32 s5, 4'), a('s_cselect_b32 s%d, 4, s%d' % (S_SP, S_SP)), a('s_cselect_b32 s%d, s3, s%d' % (S_MT, S_MT))), 3, ready)
    else:
        I('s_mul_i32 s3, s3, 5'); I('s_add_u32 s3, s3, s5')
        I('s_lshr_b32 s%d, s3, 3' % S_SP); I('s_and_b32 s%d, s3, 7' % S_MT)
    I('s_mul_i32 s%d, s%d, 18432' % (S_MW, S_W))
    I('s_mul_i32 s3, s%d, 1152' % S_SP); I('s_mul_i32 s4, s%d, 288' % S_W); I('s_add_u32 s3, s3, s4')
    I('s_mul_i32 s3, s3, 1152'); I('s_mul_i32 s4, s%d, 192' % S_NT); I('s_add_u32 s3, s3, s4')
    I('s_lshl_b32 s4, s%d, 2' % S_NT); I('s_add_u32 s4, s4, s%d' % S_W); I('s_mul_i32 s4, s4, 55296'); I('s_add_u32 s4, s4, %d' % CF_OFF)
    for n in range(3):
        I('v_add_u32 v13, %d, v0' % (64*n))
        I('v_mul_u32_u24 v14, 0x1556, v13'); I('v_lshrrev_b32 v14, 16, v14')
        I('v_mul_u32_u24 v15, 960, v14')
        I('v_lshl_add_u32 v%d, v0, 4, v15' % (V_W2D+n))
    I('v_lshrrev_b32 v14, 5, v0'); I('v_lshlrev_b32 v14, 2, v14'); I('v_bfe_u32 v15, v0, 2, 2'); I('v_add_u32 v14, v14, v15')
    I('v_mul_u32_u24 v14, 192, v14')
    I('v_bfe_u32 v15, v0, 4, 1'); I('v_lshl_add_u32 v14, v15, 5, v14')
    I('v_and_b32 v15, 3, v0'); I('v_lshl_add_u32 v%d, v15, 3, v14' % V_RDB)
    def sel(a):
        a('s_waitcnt lgkmcnt(0)')
        a('s_cmp_eq_u32 s%d, 4' % S_SP)
        a('s_cselect_b32 s%d, s4, s3' % S_WB)
        a('s_cselect_b32 s%d, 3072, s%d' % (S_WSTR, S_WSTR))
        a('s_cselect_b32 s%d, s%d, s%d' % (S_WT, S_WS, SP0))
        a('s_cselect_b32 s%d, s%d, s%d' % (S_WT+1, S_WS+1, SP0+1))
        a('s_cselect_b32 s%d, s%d, s%d' % (S_WT+2, S_WS+2, S_WT+2))
        a('s_cselect_b64 vcc, -1, 0')
        a('s_and_b32 s%d, s%d, 0xffff' % (S_WT+1, S_WT+1))
        a('v_lshlrev_b32 v13, 4, v0')
        for n in range(3): a('v_cndmask_b32 v%d, v%d, v13, vcc' % (V_W2D+n, V_W2D+n))
        a('v_cndmask_b32 v%d, v%d, v13, vcc' % (V_RDB, V_RDB))
        a('s_add_u32 s3, s%d, %d' % (S_MW, SLAB)); a('v_add_u32 v%d, s3, v%d' % (V_RDB, V_RDB))
    I('s_mov_b32 s%d, %d' % (S_WSTR, 16*1152)); I('s_mov_b32 s%d, %d' % (S_WT+2, 4608*1152)); I('s_mov_b32 s%d, 0x00020000' % (S_WT+3))
    F.fn(sel, 5, ready, 4)
    F.fn(lambda a: srd(a, 16, SP0, 4608*1152), 4, ready)
    I('s_lshl_b32 s3, s%d, 12' % S_G); I('s_lshl_b32 s4, s%d, 7' % S_N); I('s_add_u32 s%d, s3, s4' % S_T4)
    I('v_or_b32 v%d, s%d, v0' % (V_PA, S_W)); I('v_min_u32 v%d, 1, v%d' % (V_PA, V_PA)); I('v_lshlrev_b32 v%d, 30, v%d' % (V_PA, V_PA))
    I('v_mov_b32 v%d, s%d' % (V_PL, S_NONCE))

def w2_touch(F, ready):
    I = lambda t: F.ins(t, None, ready)
    if P('P2TOUCH', 2) == 1:
        I('s_mul_i32 s3, s%d, 72' % S_G); I('s_mul_i32 s4, s%d, 18' % S_W); I('s_add_u32 s3, s3, s4')
        I('v_min_u32 v13, 17, v0'); I('v_add_u32 v13, s3, v13'); I('v_mul_u32_u24 v15, 9216, v13')
        I('buffer_load_dword v%d, v15, s[%d:%d], s%d offen' % (V_DUM, S_W1, S_W1+3, S_P+2))
    if P('P2TOUCH', 2) == 2:
        I('s_lshl_b32 s3, s2, 2'); I('s_add_u32 s3, s3, s%d' % S_W); I('s_mul_i32 s3, s3, %d' % (45*128)); I('s_add_u32 s3, s3, 256')
        I('v_min_u32 v13, 19, v0'); I('v_lshrrev_b32 v15, 2, v13'); I('v_mul_u32_u24 v15, 5, v15'); I('v_add_u32 v15, v15, v13')
        I('v_bfe_u32 v13, v13, 1, 1'); I('v_mul_u32_u24 v13, 3, v13'); I('v_add_u32 v15, v15, v13'); I('v_lshl_add_u32 v15, v15, 7, s3')
        I('buffer_load_dword v%d, v15, s[%d:%d], 0 offen' % (V_DUM, S_W1, S_W1+3))
    if P('OTOUCH', 0):
        def f0(a): a('s_load_dwordx2 s[%d:%d], s[0:1], %d' % (SP0+2, SP0+3, D_OUT))
        F.fn(f0, 1, ready)
    if P('TGLOBAL', 1):
        NT_ = P('TNL', 11)
        I('s_lshl_b32 s3, s2, 2'); I('s_add_u32 s3, s3, s%d' % S_W); I('s_mul_i32 s3, s3, %d' % (44*128))
        I('v_min_u32 v14, %d, v0' % (NT_-1)); I('v_lshl_add_u32 v14, v14, 7, s3')
        for k in range(44 // NT_):
            F.ins('buffer_load_dword v%d, v14, s[16:19], 0 offen' % V_DUM, None, ready, P('TSP', 10) if k else 0)
            I('v_add_u32 v14, %d, v14' % (NT_*128))
        if P('OTOUCH', 0):
            I('s_lshl_b32 s3, s2, 2'); I('s_add_u32 s3, s3, s%d' % S_W); I('s_mul_i32 s3, s3, %d' % (39*128))
            I('v_min_u32 v14, 12, v0'); I('v_lshl_add_u32 v14, v14, 7, s3')
            F.fn(lambda a: (a('s_waitcnt lgkmcnt(0)'), srd(a, 20, SP0+2, 2048*2304)), 5, ready + P('OTOUCH', 0))
            for k in range(3):
                F.ins('buffer_load_dword v%d, v14, s[20:23], 0 offen' % V_DUM, None, ready, P('TSP', 10))
                I('v_add_u32 v14, %d, v14' % (13*128))
        return
    I('s_lshr_b32 s3, s2, 3'); I('s_lshl_b32 s3, s3, 2'); I('s_add_u32 s3, s3, s%d' % S_W); I('s_mul_i32 s3, s3, %d' % (88*128))
    I('s_and_b32 s4, s2, 7'); I('s_mul_i32 s4, s4, 5'); I('s_add_u32 s5, s4, 4'); I('s_lshr_b32 s4, s4, 3'); I('s_lshr_b32 s5, s5, 3')
    I('s_mul_i32 s4, s4, %d' % (1152*1152)); I('s_mul_i32 s5, s5, %d' % (1152*1152)); I('s_add_u32 s4, s4, s3'); I('s_add_u32 s5, s5, s3')
    NT_ = P('TNL', 11); nper = 88 // NT_
    I('v_min_u32 v13, %d, v0' % (NT_-1)); I('v_lshlrev_b32 v13, 7, v13')
    I('v_add_u32 v14, s4, v13'); I('v_add_u32 v15, s5, v13')
    for k in range(nper):
        F.ins('buffer_load_dword v%d, v14, s[16:19], 0 offen' % V_DUM, None, ready, P('TSP', 10) if k else 0)
        F.ins('buffer_load_dword v%d, v15, s[16:19], 0 offen' % V_DUM, None, ready, P('TSP', 10))
        if k < nper-1: I('v_add_u32 v14, %d, v14' % (NT_*128)); I('v_add_u32 v15, %d, v15' % (NT_*128))

def code_touch(a):
    label_n[0] += 1; L = 'CT%d' % label_n[0]
    a('s_getpc_b64 s[4:5]'); a(L + ':')
    a('s_add_u32 s4, s4, A_DONE-%s' % L); a('s_addc_u32 s5, s5, 0')
    a('s_lshl_b32 s6, s%d, 13' % S_W)
    a('v_lshl_add_u32 v14, v0, 7, s6'); a('v_min_u32 v14, KLAST-A_DONE, v14')
    a('global_load_dword v10, v14, s[4:5]')

TDN = P('TDN', 0)
def cfl_check(a):
    label_n[0] += 1; L = 'CFS%d' % label_n[0]
    a('s_cmp_lg_u32 s%d, 4' % S_SP); a('s_cbranch_scc1 %s' % L)
    save = list(a.vm)
    a('v_min_u32 v15, 47, v0'); a('v_lshlrev_b32 v15, 7, v15'); a('s_mov_b32 s%d, %d' % (S_T3, CFL_OFF))
    ldc = 'buffer_load_dword v14, v15, %s, s%d offen sc1' % (WSR, S_T3)
    a(ldc); a('s_waitcnt vmcnt(0)')
    poll_loop(a, lambda a: a(ldc), chk_all_eq(14))
    a.vm = save
    a(L + ':')

def w2_read_br(ks):
    def f(a):
        label_n[0] += 1; L = 'WR%d' % label_n[0]
        off = w2_slot(ks) - SLAB
        a.wait_vm('v%d' % ks)
        a('s_cmp_eq_u32 s%d, 4' % S_SP); a('s_cbranch_scc1 %s_S' % L)
        save = list(a.lg)
        for dt in range(3):
            base = (ks*3 + dt)*4
            a('ds_read_b64_tr_b16 %s, v%d offset:%d' % (ar(base, 2), V_RDB, off + dt*64), 'wr%d' % ks)
            a('ds_read_b64_tr_b16 %s, v%d offset:%d' % (ar(base+2, 2), V_RDB, off + dt*64 + 1536), 'wr%d' % ks)
        a('s_branch %s_E' % L)
        a(L + '_S:')
        a.lg = save
        for dt in range(3):
            base = (ks*3 + dt)*4
            a('ds_read_b64 %s, v%d offset:%d' % (ar(base, 2), V_RDB, off + dt*1024), 'wr%d' % ks)
            a('ds_read_b64 %s, v%d offset:%d' % (ar(base+2, 2), V_RDB, off + dt*1024 + 8), 'wr%d' % ks)
        a(L + '_E:')
    return f

W0E = P('W0E', 6); W0M = P('W0M', 0)
W1E = 18; W1A = P('W1A', 0); W1P = P('W1P', 0)
assert W1P <= W1A
def phaseA(a, mixed, st, bt=0, mark=None):
    S = Sched(a)
    SC = S.stream('scan'); D = S.stream('dma'); E = S.stream('epi'); B = S.stream('bpre')
    TC = Stream('touch')
    EF = Stream('ef'); EF.fn(he_flag, 5); a.tagcount = {}
    NSE = 4 if mixed else 16; tse = [None]
    def ef_gate():
        if a.tagcount.get('se', 0) < NSE: return False
        if tse[0] is None: tse[0] = S.mf
        return S.mf >= tse[0] + P('EFD', 30)
    EF.gate = ef_gate
    pend = [lambda a, ks=ks, blk=blk: xload(a, ks, blk) for blk in range(2) for ks in range(36)]
    pend += [lambda a, n=n: dma_w1(a, 1, 1, n, 'w1_%d' % n) for n in range(W1E, 18)]
    sub = {}
    lo = W1E
    while lo < 18:
        hi = min(18, lo + P('W1SUB', 6)); sub[2*lo] = hi - 1; lo = hi
    for _ in range(P('XBURST', 16)): pend.pop(0)(a)
    a.wait_vm('w1')
    nstamp(a, 'xb'); a('s_barrier'); nstamp(a, 'bar0')
    if mixed: scan_tables(SC)
    phaseB_setup(B, 0)
    frs = []
    for blk in range(2):
        for ks in range(36):
            for c in range(2): frs.append(('p1', blk, ks, c))
    for ci in range(4):
        for ks in range(36): frs.append(('c', ci, ks, ci & 1))
    consumed = [0]; trbase = [0, 0]; reads = []
    def pre(n):
        kind, ci, ks, c = frs[n]
        def f(a):
            if kind == 'p1' and mixed and ks == 32 and c == 0:
                for r in range(4): a('v_add_u32 v%d, 0x10000, v%d' % (V_BR+r, V_BR+r))
            if kind == 'p1' and mixed and ks == 0 and c == 0 and ci == 1:
                for r in range(4): a('v_subrev_u32 v%d, 0x10000, v%d' % (V_BR+r, V_BR+r))
            if kind == 'c' and ci == 0 and ks in sub:
                while ('w1_%d' % sub[ks]) not in a.seen: pend.pop(0)(a)
                a.wait_vm('w1_%d' % sub[ks])
                if ks: a('s_barrier')
            if kind == 'c' and ci == 0 and ks == 0:
                a('s_waitcnt lgkmcnt(0)'); a('s_barrier')
                for k in range(18): D.fn(lambda a, k=k: dma_w1(a, 0, 2, k, 'w2'), 4, 0, P('W2SP', 3))
            if kind == 'c' and ci == 2 and ks == 0:
                assert not pend and not D.q and not TC.q
                a.wait_vm('w2'); a('s_waitcnt lgkmcnt(0)'); a('s_barrier')
            if not (kind == 'p1' and mixed):
                slab = 0 if kind == 'p1' else (1 if ci < 2 else 0)
                bias = slab*SLAB + (36864 if ks >= 18 else 0)
                if trbase[c] != bias:
                    a('v_add_u32 v%d, 0x%x, v%d' % (V_TR+c, (bias - trbase[c]) & 0xffffffff, V_TR+c)); trbase[c] = bias
        return f
    for n, (kind, ci, ks, c) in enumerate(frs):
        dst = V_WF + 4*(n % 6); tag = 'f%d' % n
        if kind == 'p1' and mixed:
            reads.append((n, lambda a, n=n, dst=dst, ks=ks, c=c, tag=tag: (pre(n)(a), a('ds_read_b128 %s, v%d offset:%d' % (vr(dst, 4), V_BR + (ks & 3), ((ks >> 2)*8192 + c*4096) % 65536), tag))))
        else:
            off = (ks % 18)*2048
            reads.append((n, lambda a, n=n, dst=dst, c=c, off=off, tag=tag: (pre(n)(a), a('ds_read_b64_tr_b16 %s, v%d offset:%d' % (vr(dst, 2), V_TR+c, off), tag))))
            reads.append((n, lambda a, dst=dst, c=c, off=off, tag=tag: a('ds_read_b64_tr_b16 %s, v%d offset:%d' % (vr(dst+2, 2), V_TR+c, off+512), tag)))
    def issue_reads(quota):
        while reads and quota > 0 and reads[0][0] < consumed[0] + 6:
            S.must_fn(reads.pop(0)[1]); quota -= 1
    def issued(n): return not reads or reads[0][0] > n
    accset = ([2, 3, 2, 0] if P('SC2', 1) else [2, 3, 2, 3]) if mixed else [2, 3, 0, 1]
    issue_reads(100)
    n = 0
    while n < len(frs):
        kind, ci, ks, c = frs[n]
        S.GAP = P('GP1M' if mixed else 'GP1P', 6) if kind == 'p1' else Sched.GAP
        if kind == 'p1' and ks == 1 and c == 0 and ci == 0: stamp(a, st); nstamp(a, 'p1s')
        if kind == 'p1' and ks == 0 and c == 0 and ci == 1:
            nstamp(a, 'p1b')
            S.drain(stream=B)
            if P('W2TOUCH', 1):
                w2_touch(TC, S.mf + P('TAT', 44)); S.always = [TC]
            if mixed: scan_early(SC, S.mf + 3, 0)
            else:
                epi_ffn(E, 0, 0, 0, S.mf + 3, (0,)); epi_ffn(E, 1, 0, 1, S.mf + 3, (0,))
        if kind == 'c' and ks == 0:
            if ci in (0, 2): stamp(a, st)
            nstamp(a, 'c%d' % ci)
            S.note = None; S.drain(('acc', accset[ci]))
            if S.note: sys.stderr.write('  forced drain at chunk %d: %s\n' % (ci, S.note))
            rdy = S.mf + 2
            if ci == 0:
                if mixed:
                    scan_early(SC, rdy, 1, lambda: setattr(S, 'streams', [D, SC, E, B])); scan_late(SC, S.mf + P('POLLAT', 100))
                else:
                    epi_ffn(E, 0, 0, 0, rdy, (1,)); epi_ffn(E, 1, 0, 1, rdy, (1,))
            else:
                epi_ffn(E, accset[ci-1], 1 + (ci-1)//2, (ci-1) & 1, rdy, (0, 1), mixed)
            if ci == 1:
                S.streams = [D, SC, E, B]
            if ci == 0:
                S.drain(stream=B)
            if ci == 2:
                mark(S)
                if bt:
                    B.ins('v_min_u32 v15, 47, v0'); B.ins('v_lshlrev_b32 v15, 7, v15'); B.ins('s_mov_b32 s%d, %d' % (S_T3, CFL_OFF))
                    ldc = 'buffer_load_dword v10, v15, %s, s%d offen sc1' % (WSR, S_T3)
                    B.ins(ldc, 'cfl')
                    B.fn(lambda a: (a.wait_vm('cfl'), poll_loop(a, lambda a: a(ldc), chk_all_eq(10))), 5, 0, 20)
                if P('CTOUCH', 0): B.fn(code_touch, 5, S.mf + 2)
                B.ins('s_mov_b32 s%d, 0x%x' % (S_MASK, 0x3ffff if bt else 0x3fffffff)); B.ins('s_mov_b32 s%d, %d' % (S_PF, HSF_OFF if bt else HEF_OFF))
                B.ins('s_lshl_b32 s3, s%d, 12' % S_MT); B.ins('s_add_u32 s%d, s%d, s3' % (S_PF, S_PF))
                B.fn(lambda a: flag_lanes(a, 0), 5)
                for k2 in range(6):
                    for t in w2_dma(k2): B.ins(t, 'v%d' % k2, S.mf + ((24 + 8*k2) if bt else (P('W2AT', 4) + 11*k2)), (2 if bt else P('DMSP', 3)) if 'lds' in t else 0)
                S.streams = [EF, B, SC, E]
            if ci == 3:
                if mixed and P('SC2', 1):
                    keep = [it for it in SC.q if it[4] == 'hsflag']; SC.q = [it for it in SC.q if it[4] != 'hsflag']
                    sys.stderr.write('  forced SC drain %s\n' % S.pending()); S.drain(stream=SC); SC.q = keep
                for k2 in range(6):
                    B.fn(lambda a, k2=k2: a.wait_vm('v%d' % k2), 1, S.mf + 5 + 11*k2)
                    tmp = Asm(); w2_read(tmp, k2, bt, V_RDB)
                    for j, t in enumerate(tmp.lines): B.ins(t.strip(), 'wr%d' % k2, 0, 1 if j % 2 == 0 and j else 0)
                    B.fn(lambda a, k2=k2: a.wait_lg('wr%d' % k2), 1, 0, 3)
                    for t in w2_dma(k2+6): B.ins(t, 'v%d' % (k2+6), 0, P('DMSP2', 2) if 'lds' in t else 0)
                S.streams = [EF, B, SC, E]
        while not issued(n): issue_reads(1)
        S.fill(reserve=2 if kind == 'p1' and c == 0 else 1)
        if kind == 'p1':
            if c == 0:
                S.must_fn(lambda a: a.wait_vm('x%d_%d' % (ci, ks)))
                S.must_fn(lambda a: a.wait_lg('f%d' % (n+1) if issued(n+1) else 'f%d' % n))
            else: S.must_fn(lambda a: a.wait_lg('f%d' % n))
        else:
            if ks % 2 == 0 and n + 1 < len(frs) and issued(n+1): S.must_fn(lambda a: a.wait_lg('f%d' % (n+1)))
            S.must_fn(lambda a: a.wait_lg('f%d' % n))
        blks = (ci,) if kind == 'p1' else (0, 1)
        for blk in blks:
            sset = c if kind == 'p1' else accset[ci]
            d = vr(acc(sset, blk), 16); w = vr(V_WF + 4*(n % 6), 4); x = xfrag(blk, ks)
            A, Bo = (x, w) if (mixed and kind == 'p1') else (w, x)
            S.mfma('v_mfma_f32_32x32x16_bf16 %s, %s, %s, %s' % (d, A, Bo, d if ks else '0'))
            if blk == blks[-1]: consumed[0] = n + 1
            issue_reads(2 if kind == 'p1' else 1)
            if pend and (c == 0 if kind == 'p1' else blk == 0): S.must_fn(pend.pop(0))
        n += 1
    sys.stderr.write('phaseA mixed=%d pending at end: %s\n' % (mixed, S.pending()))
    stamp(a, st); nstamp(a, 'tl0')
    S.mf += 1000
    S.drain(stream=B)
    a('s_barrier')
    epi_ffn(E, accset[3], 2, 1, 0, (0, 1), mixed)
    assert not SC.q and (tse[0] is not None or not EF.q)
    q = E.q; E.q = []
    at = max(0, (tse[0] + P('EFD', 30) - (S.mf - 1000))*7)
    dm = []
    for k2 in range(12, 12 + TDN):
        t = w2_dma(k2); dm += [(t[0:2], k2), (t[2:3], k2), (t[3:5], k2)]
    sp_ = max(1, (len(q) - P('TD0', 10)) // max(1, 3*TDN))
    for i, it in enumerate(q):
        if EF.q and i >= at: EF.q.pop()[0](a)
        if i == max(0, len(q) - P('EPA', 150)): flag_poll('hp')[0](a)
        it[0](a)
        if dm and i >= P('TD0', 10) and (i - P('TD0', 10)) % sp_ == 0:
            ts, k2 = dm.pop(0)
            for t in ts: a(t, 'v%d' % k2)
    assert not dm and a.vm[-1] == 'st'
    nstamp(a, 'tl1')
    if not bt:
        a.wait_vm('hp')
        ld, chk = flag_poll()
        poll_loop(a, ld, chk, 1, 'r_h')
    a.wait_vm('v11')
    stamp(a, st); nstamp(a, 't3')

VB_HO = 1; VB_O = 2; VB_RD = 5; VB_RW = 6; VB_T = 7; VB_RR = 10; VB_PO = 13
VB_ACC = 16; VB_RB = 112; VB_H = 152
A_XX = 216
RED = 36864
S_FB = 34
def wfrag(ks, dt): return ar((ks*3 + dt)*4, 4)
def accr(s, dt): return VB_ACC + 48*s + 16*dt
X = os.environ.get('X', '')

def w2_read(a, ks, ssm, reg=None):
    sl = w2_slot(ks); hi = sl >= SLAB
    for dt in range(3):
        base = (ks*3 + dt)*4
        if reg is None: reg = VB_RD
        off = sl - (SLAB if hi else 0)
        if ssm:
            a('ds_read_b128 %s, v%d offset:%d' % (ar(base, 4), reg, off + dt*1024), 'wr%d' % ks)
        else:
            a('ds_read_b64_tr_b16 %s, v%d offset:%d' % (ar(base, 2), reg, off + dt*64), 'wr%d' % ks)
            a('ds_read_b64_tr_b16 %s, v%d offset:%d' % (ar(base+2, 2), reg, off + dt*64 + 1536), 'wr%d' % ks)

def reduce_fill(R, i, ready, send, ssm, io=None, dl=1, wrd=2):
    s = i & 1; grp = ('acc', s); buf = s*RED
    if io is None: io = i
    for q in range(1, 4):
        for dt in range(3):
            R.ins('ds_write_b128 v%d, %s offset:%d' % (VB_RW, vr(accr(s, dt) + 4*q, 4), buf + (q-1)*3072 + dt*1024), 'rw%d' % i, ready, wrd, grp)
    R.fn(lambda a: (a.wait_lg('rw%d' % i), a('s_barrier')), 2, 0, 2*dl)
    for q in range(1, 4):
        for dt in range(3):
            R.ins('ds_read_b128 %s, v%d offset:%d' % (vr(VB_RB + ((q-1)*3+dt)*4, 4), VB_RR+q-1, buf + dt*1024), 'rr%d' % i)
    R.fn(lambda a: a.wait_lg('rr%d' % i), 1, 0, 4*dl)
    for k in range(12):
        own = accr(s, k//4) + k % 4
        R.ins('v_add_f32 v%d, v%d, v%d' % (VB_RB+k, VB_RB+k, own), None, 0, 0, grp)
        R.ins('v_add_f32 v%d, v%d, v%d' % (VB_RB+12+k, VB_RB+12+k, VB_RB+24+k))
    SB = VB_RB + 24
    for k in range(12):
        dst = VB_RB + k
        R.ins('v_add_f32 v%d, v%d, v%d' % (dst, VB_RB+k, VB_RB+12+k), 'sum%d' % i)
    if send:
        ng = 2
        if True:
            for p in range(6): R.ins('v_cvt_pk_bf16_f32 v%d, v%d, v%d' % (SB + 4*(p//3) + p % 3, VB_RB+2*p, VB_RB+2*p+1))
        for g in range(ng): R.ins('v_mov_b32 v%d, s%d' % (SB + 4*g + 3, S_NONCE))
        R.ins('s_mul_i32 s%d, s%d, %d' % (S_TF, S_ORD+io, 6*4*ng*1024))
        R.ins('s_add_u32 s%d, s%d, s%d' % (S_TF, S_TF, S_PB))
        for g in range(ng):
            if 'nost' in X: continue
            R.ins('buffer_store_dwordx4 %s, v%d, %s, s%d offen offset:%d%s' % (vr(SB+4*g, 4), VB_PO, WSR, S_TF, g*1024, '' if 'plainst' in X else ' sc1'), 'st', 0, 2 if g else 0)

def ffn_loads(quads):
    return ['buffer_load_dwordx4 %s, v%d, %s, s%d offen offset:%d sc1' % (vr(quads[src*2+g], 4), VB_PO, WSR, S_FB+src, g*1024) for src in range(3) for g in range(2)]
def y_loads(quads):
    return ['buffer_load_dwordx4 %s, v%d, %s, s%d offen offset:%d sc1' % (vr(quads[g], 4), VB_PO, WSR, S_T2, g*1024) for g in range(2)]
def tag_check(quads):
    def f(a):
        t = [q+3 for q in quads]
        for op, d in (('v_min3_u32', VB_T), ('v_max3_u32', VB_T+1)):
            a('%s v%d, v%d, v%d, v%d' % (op, d, t[0], t[1], t[2 % len(t)]))
            r = t[3:]
            while r:
                a('%s v%d, v%d, v%d, v%d' % (op, d, d, r[0], r[1] if len(r) > 1 else r[0])); r = r[2:]
        a('v_xor_b32 v%d, s%d, v%d' % (VB_T, S_NONCE, VB_T)); a('v_xor_b32 v%d, s%d, v%d' % (VB_T+1, S_NONCE, VB_T+1))
        a('v_or_b32 v%d, v%d, v%d' % (VB_T, VB_T, VB_T+1))
        a('v_cmp_ne_u32 vcc, 0, v%d' % VB_T)
        a('s_nop 1')
        a('s_cmp_eq_u64 vcc, 0')
    return f
def checked(G, tag, loads, quads, dl):
    split_check(G, tag, lambda a: [a(t) for t in loads], tag_check(quads), 3, dl, P('RSLEEP', 8) if dl else P('RSL2', 1), 'r_' + tag)
def presum(G, quads, ps):
    pk = lambda src, k: quads[src*2 + (k//2)//3] + (k//2) % 3
    unp = lambda d, src, k: ('v_and_b32 v%d, s15, v%d' if k % 2 else 'v_lshlrev_b32 v%d, 16, v%d') % (d, pk(src, k))
    for k in range(12):
        G.ins(unp(ps(k), 0, k)); G.ins(unp(VB_T, 1, k)); G.ins(unp(VB_T+1, 2, k))
        G.ins('v_add_f32 v%d, v%d, v%d' % (ps(k), ps(k), VB_T)); G.ins('v_add_f32 v%d, v%d, v%d' % (ps(k), ps(k), VB_T+1))
def prep_s(G, j, yq, sq):
    for k in range(12):
        pk = yq[(k//2)//3] + (k//2) % 3; s = sq[k//4] + k % 4
        G.ins('v_accvgpr_read_b32 v%d, a%d' % (VB_T + k % 2, A_XX+12*j+k))
        G.ins(('v_and_b32 v%d, s%d, v%d' % (s, S_HM, pk)) if k % 2 else ('v_lshlrev_b32 v%d, 16, v%d' % (s, pk)))
        G.ins('v_and_b32 v%d, s%d, v%d' % (VB_T + k % 2, S_HM, VB_T + k % 2))
        G.ins('v_fma_f32 v%d, 2.0, v%d, v%d' % (s, s, VB_T + k % 2))
S_HM = 15
OUTFL = os.environ.get('OUTFL', ' sc1,')
def chain(G, j, ps, yq, first=None):
    y = lambda k: yq[k//4] + k % 4
    o = lambda k: VB_RB + k
    t1 = lambda k: VB_RB + 12 + k
    t2 = lambda k: VB_RB + 24 + k
    rnd = [lambda k: None if k % 2 else 'v_cvt_pk_bf16_f32 v%d, v%d, v%d' % (o(k+1), o(k), o(k+1)),
           lambda k: ('v_and_b32 v%d, 0xffff0000, v%d' % (o(k), o(k))) if k % 2 else ('v_lshlrev_b32 v%d, 16, v%d' % (o(k), o(k+1)))]
    rnd = []
    stages = [lambda k: 'v_add_f32 v%d, v%d, v%d' % (o(k), o(k), ps(k))] + rnd + [
        lambda k: 'v_mul_f32 v%d, s%d, v%d' % (t1(k), S_NL2E, o(k)),
        lambda k: 'v_exp_f32 v%d, v%d' % (t1(k), t1(k)),
        lambda k: 'v_accvgpr_read_b32 v%d, a%d' % (t2(k), A_XX+12*j+k),
        lambda k: 'v_add_f32 v%d, 1.0, v%d' % (t1(k), t1(k)),
        lambda k: 'v_rcp_f32 v%d, v%d' % (t1(k), t1(k)),
        lambda k: 'v_lshlrev_b32 v%d, 16, v%d' % (t2(k), t2(k)),
        lambda k: 'v_mul_f32 v%d, v%d, v%d' % (o(k), o(k), t1(k))] + rnd + [
        lambda k: 'v_fma_f32 v%d, v%d, v%d, v%d' % (t2(k), y(k), o(k), t2(k))]
    if os.environ.get('PERT'): stages.append(lambda k: 'v_mul_f32 v%d, 0x%08x, v%d' % (t2(k), f32bits(float(os.environ['PERT'])), t2(k)))
    X4 = P('X4', 1) and j == 0; fl = OUTFL.split(',')[j % len(OUTFL.split(','))]
    if not X4:
        stages.append(lambda k: 'buffer_store_dword v%d, v%d, s[%d:%d], s%d offen offset:%d%s' % (t2(k), VB_O+1 + (k % 4)//2, S_OUT, S_OUT+3, S_T3, (k % 2)*2304 + (k//4)*128, fl))
    if first: G.fn(first, 0)
    for k0 in range(0, 12, 4):
        for stg in stages:
            for k in range(k0, k0+4):
                t = stg(k)
                if t: G.ins(t, 'out')
        if X4:
            for src, dst, bit, qp, mi in ((t2, t1, 1, '[1,0,3,2]', 0), (t1, o, 2, '[2,3,0,1]', 2)):
                for hi in (1, 0):
                    def f(a, src=src, dst=dst, bit=bit, qp=qp, mi=mi, hi=hi, k0=k0):
                        a('s_mov_b64 vcc, s[%d:%d]' % (S_QM[mi+hi], S_QM[mi+hi]+1))
                        for k in range(4):
                            if bool(k & bit) == bool(hi):
                                a('v_cndmask_b32_dpp v%d, v%d, v%d, vcc quad_perm:%s row_mask:0xf bank_mask:0xf' % (dst(k0+k), src(k0+(k ^ bit)), src(k0+k), qp))
                    G.fn(f, 3)
            G.ins('buffer_store_dwordx4 %s, v%d, s[%d:%d], s%d offen offset:%d%s' % (vr(o(k0), 4), VB_RD, S_OUT, S_OUT+3, S_T3, (k0//4)*128, fl), 'out')
S_QM = (24, 26, 28, 50)

XT = 224
def xx_setup(a):
    a('s_load_dwordx2 s[%d:%d], s[0:1], %d' % (SP0, SP0+1, A_X))
    a('s_load_dwordx2 s[%d:%d], s[0:1], %d' % (SP0+2, SP0+3, D_OUT))
    a('s_load_dwordx2 s[%d:%d], s[0:1], %d' % (SP0+4, SP0+5, A_DSK))
def xx_fill(G):
    T = XT; I = G.ins
    SA, DA = 253, 254
    I('s_lshl_b32 s3, s%d, 8' % S_MT); I('s_lshl_b32 s4, s%d, 6' % S_SP); I('s_add_u32 s3, s3, s4')
    I('s_lshl_b32 s4, s%d, 2' % S_W); I('s_add_u32 s3, s3, s4')
    I('v_and_b32 v%d, 32, v0' % VB_O); I('v_add_u32 v%d, s3, v%d' % (VB_O, VB_O))
    I('v_lshlrev_b32 v%d, 3, v%d' % (SA, VB_O))
    I('v_mul_u32_u24 v%d, 576, v%d' % (VB_O, VB_O))
    I('v_and_b32 v%d, 31, v0' % (VB_O+1)); I('s_mul_i32 s4, s%d, 96' % S_NT)
    I('v_add_u32 v%d, s4, v%d' % (DA, VB_O+1)); I('v_add_u32 v%d, v%d, v%d' % (VB_O, VB_O, DA)); I('v_lshlrev_b32 v%d, 1, v%d' % (DA, DA))
    I('v_lshlrev_b32 v%d, 2, v%d' % (VB_O+1, VB_O)); I('v_add_u32 v%d, 4608, v%d' % (VB_O+2, VB_O+1)); I('v_lshlrev_b32 v%d, 1, v%d' % (VB_O, VB_O))
    if P('X4', 1):
        I('v_and_b32 v%d, 3, v0' % VB_RD); I('v_mul_u32_u24 v%d, 2300, v%d' % (VB_RD, VB_RD)); I('v_add_u32 v%d, v%d, v%d' % (VB_RD, VB_O+1, VB_RD))
        for r, v in zip(S_QM, (0x55555555, 0xaaaaaaaa, 0x33333333, 0xcccccccc)):
            I('s_mov_b32 s%d, 0x%x' % (r, v)); I('s_mov_b32 s%d, s%d' % (r+1, r))
    G.fn(lambda a: srd(a, S_X, SP0, 2048*1152), 4); G.fn(lambda a: srd(a, S_OUT, SP0+2, 2048*2304), 4)
    I('s_movk_i32 s7, %d' % (16*1152)); I('s_mov_b32 s6, %d' % STAT_OFF)
    ST_, DK, TT = 232, 248, 251
    for dt in range(3):
        I('global_load_ushort v%d, v%d, s[%d:%d] offset:%d' % (DK+dt, DA, SP0+4, SP0+5, dt*64), 'xx')
    for j in range(2):
        for u in range(2):
            I('buffer_load_dwordx4 %s, v%d, %s, s6 offen offset:%d sc1' % (vr(ST_+8*j+4*u, 4), SA, WSR, j*128 + u*16), 'xx', 0, 1)
    for j in range(2):
        for k in range(12):
            I('buffer_load_ushort a%d, v%d, s[%d:%d], %s offen offset:%d' % (A_XX+12*j+k, VB_O, S_X, S_X+3, 's7' if j else '0', (k % 4)*1152 + (k//4)*64), 'xx%d' % j, 0, P('XXSP', 2))
    for j in range(2):
        G.fn(lambda a, j=j: a.wait_vm('xx%d' % j), 1, 0, P('XXD', 6) if j == 0 else 0)
        if j == 0:
            for dt in range(3): I('v_lshlrev_b32 v%d, 16, v%d' % (DK+dt, DK+dt))
        x = lambda k: 14 + k % 2
        t = lambda k: TT + k % 2
        mm = lambda k: ST_+8*j+2*(k % 4)
        st = [lambda k: 'v_accvgpr_read_b32 v%d, a%d' % (x(k), A_XX+12*j+k),
              lambda k: 'v_lshlrev_b32 v%d, 16, v%d' % (x(k), x(k)),
              lambda k: 'v_sub_f32 v%d, v%d, v%d' % (t(k), x(k), mm(k)),
              lambda k: 'v_mul_f32 v%d, v%d, v%d' % (t(k), t(k), mm(k)+1),
              lambda k: 'v_mul_f32 v%d, v%d, v%d' % (t(k), t(k), DK+k//4),
              lambda k: 'v_cvt_pk_bf16_f32 v%d, v%d, v%d' % (t(k), x(k), t(k)),
              lambda k: 'v_accvgpr_write_b32 a%d, v%d' % (A_XX+12*j+k, t(k))]
        for k0 in range(0, 12, 2):
            for s in st:
                for k in range(k0, k0+2): I(s(k))

FPA = 9; FPL = 8
def flag_lanes(a, two):
    a('v_and_b32 v14, 31, v0'); a('v_lshrrev_b32 v15, v14, s%d' % S_MASK); a('v_and_b32 v15, 1, v15'); a('v_xor_b32 v15, 1, v15')
    a('v_lshlrev_b32 v%d, 7, %s' % (FPA, 'v0' if two else 'v14'))
    a('v_lshl_add_u32 v%d, v15, 30, v%d' % (FPA, FPA))
def flag_poll(tag='hp'):
    def ld(a):
        a('buffer_load_dword v%d, v%d, %s, s%d offen sc1' % (FPL, FPA, WSR, S_PF), tag)
    def chk(a):
        a('v_cmp_ne_u32 vcc, s%d, v%d' % (S_NONCE, FPL))
        a('s_nop 1')
        a('s_or_b32 s4, vcc_lo, vcc_hi'); a('s_and_b32 s4, s4, s%d' % S_MASK)
        a('s_cmp_eq_u32 s4, 0')
    return ld, chk

def b_common(a, ssm, part=0):
  if part != 2:
    a('s_mul_i32 s%d, s%d, %d' % (S_HBB, S_MT, 8*HF_RB)); a('s_mul_i32 s3, s%d, %d' % (S_SP, 72*1024))
    a('s_add_u32 s%d, s%d, s3' % (S_HBB, S_HBB)); a('s_add_u32 s%d, s%d, %d' % (S_HBB, S_HBB, HF_OFF))
    a('s_lshl_b32 s4, s%d, 3' % S_W)
    a('v_add_u32 v14, s4, v0'); a('v_and_b32 v14, 31, v14'); a('v_and_b32 v15, 32, v0'); a('v_add_u32 v14, v14, v15')
    a('s_mul_i32 s3, s%d, %d' % (S_W, 18*1024)); a('v_lshl_add_u32 v%d, v14, 4, s3' % VB_HO)
  if part != 1:
    a('s_mul_i32 s%d, s%d, 48' % (S_TEAM, S_MT)); a('s_add_u32 s%d, s%d, s%d' % (S_TEAM, S_TEAM, S_NT))
    if True:
        a('s_lshl_b32 s3, s%d, 13' % S_TEAM); a('s_mul_i32 s4, s%d, %d' % (S_SP, 64*6*8192)); a('s_add_u32 s3, s3, s4'); a('s_add_u32 s%d, s3, %d' % (S_PB, PF_OFF))
        a('s_lshl_b32 s3, s%d, 11' % S_W); a('v_lshl_add_u32 v%d, v0, 4, s3' % VB_PO)
    for q in range(1, 4):
        a('s_sub_u32 s3, s%d, %d' % (S_W, q)); a('s_and_b32 s3, s3, 3'); a('s_mul_i32 s3, s3, 9216'); a('s_add_u32 s3, s3, %d' % ((q-1)*3072 + SLAB))
        a('v_lshl_add_u32 v%d, v0, 4, s3' % (VB_RR+q-1))
    a('s_mul_i32 s3, s%d, 9216' % S_W); a('s_add_u32 s3, s3, %d' % SLAB); a('v_lshl_add_u32 v%d, v0, 4, s3' % VB_RW)

def phaseB(a, ssm, st):
    os.environ['CLD'] = os.environ.get('CLDB', '2'); os.environ['CST'] = os.environ.get('CSTB', '3')
    NH = P('NHS', 24) if ssm else P('NHF', 18)
    hslot = lambda n: VB_H + 4*(n % NH)
    KE = P('KE', 8)
    seq = [(0, k) for k in range(KE)] + [(1, k) for k in range(KE)] + [(0, k) for k in range(KE, 18)] + [(1, k) for k in range(KE, 18)]
    seq += [(i, ks) for i in range(2, 8) for ks in range(18)]
    if ssm: seq = [(i, ks) for i in range(8) for ks in range(18)]
    def hload(a, n):
        i, ks = seq[n]
        if n == 0 or seq[n-1][0] != i:
            a('s_mul_i32 s%d, s%d, %d' % (S_HN, S_ORD+i, HF_RB)); a('s_add_u32 s%d, s%d, s%d' % (S_HN, S_HN, S_HBB))
            if ks: a('s_add_u32 s%d, s%d, %d' % (S_HN, S_HN, (ks//4)*4096))
        elif ks % 4 == 0: a('s_add_u32 s%d, s%d, 4096' % (S_HN, S_HN))
        a('buffer_load_dwordx4 %s, v%d, %s, s%d offen offset:%d sc1' % (vr(hslot(n), 4), VB_HO, WSR, S_HN, (ks % 4)*1024), 'h%d' % n)
    a.tagcount = {}
    a.vm = ['st']; a.seen |= {'st'}
    nld = [0]; okl = [ssm]
    def next_h(a):
        if nld[0] < 144: hload(a, nld[0]); nld[0] += 1
    a('s_add_u32 s%d, s%d, %d' % (S_TF, S_T4, HFL_OFF))
    if ssm:
        for i, r in enumerate((0, 2, 4, 6, 1, 3, 3, 3)): a('s_mov_b32 s%d, %d' % (S_ORD+i, r))
        a('s_mov_b32 s%d, 1' % S_SHORT); a('s_mov_b32 s%d, 0' % S_T3)
        for k2 in range(12 + TDN, 15):
            for t in w2_dma(k2): a(t, 'v%d' % k2)
        b_common(a, ssm)
    else:
        for i in range(3):
            a('s_add_u32 s3, s%d, %d' % (S_SP, i+1)); a('s_and_b32 s3, s3, 3'); a('s_lshl_b32 s%d, s3, 1' % (S_ORD+i)); a('s_add_u32 s%d, s%d, 1' % (S_ORD+3+i, S_ORD+i))
        b_common(a, ssm, 1)
        for _ in range(P('HBURST', 10)): next_h(a)
        a('s_lshl_b32 s%d, s%d, 1' % (S_ORD+6, S_SP)); a('s_add_u32 s%d, s%d, 1' % (S_ORD+7, S_ORD+6))
        xx_setup(a)
    FE = P('FE', 1)
    a('v_mov_b32 v%d, v%d' % (VB_RD, V_RDB))
    for ks in range(6, 6+FE): w2_read(a, ks, ssm)
    a.wait_vm('st'); a('s_barrier')
    a('buffer_store_dword v%d, v%d, %s, s%d offen sc1' % (V_PL, V_PA, WSR, S_TF), 'fl')
    nstamp(a, 'flg')
    if ssm:
        for k2 in range(15, 18):
            for t in w2_dma(k2): a(t, 'v%d' % k2)
    for ks in range(6+FE, 12): w2_read(a, ks, ssm)
    if not ssm: b_common(a, ssm, 2)
    a('v_subrev_u32 v%d, %d, v%d' % (VB_RD, SLAB, V_RDB))
    a('s_waitcnt lgkmcnt(0)')
    if ssm:
        ld, chk = flag_poll()
        poll_loop(a, ld, chk, 1, 'r_h')
        if TDN < 6: a.wait_vm('v17')
        for ks in range(12, 18): w2_read(a, ks, ssm)
        a('s_waitcnt lgkmcnt(0)')
        a('B_SSM2:')
        a.vm = []
        for _ in range(P('HBURST', 10)): next_h(a)
    S = Sched(a); R = S.stream('red'); G = S.stream('xchg'); C = S.stream('chain')
    C.gate = lambda: not R.q and 'prepA' in a.seen
    R.ins('s_barrier', None, 12)
    if not ssm:
        XR = VB_H + 4*NH
        L = [XR + 4*k for k in range(6)]
        PSr = [XR+24+k for k in range(8)] + [VB_RB+36+k for k in range(4)]
        psA = lambda k: PSr[k]
        yA = L[:2]; sA = L[2:5]
        acq = [accr(0, dt) + 4*q for q in (1, 2, 3) for dt in range(3)]
        fB = L[0:2] + acq[:4]; yB = [hslot(126+k) for k in range(2)]; sB = [hslot(128+k) for k in range(3)]
        psB = lambda k: acq[6 + k//4] + k % 4
    if not ssm:
        I = G.ins
        l2, c2 = flag_poll('hl')
        I('s_lshl_b32 s3, s%d, 3' % S_SP); I('s_lshl_b32 s3, 0xff, s3'); I('s_lshl_b32 s5, s%d, 2' % S_SP); I('s_lshl_b32 s5, 0x3f, s5')
        I('s_or_b32 s3, s3, s5'); I('s_and_b32 s%d, s%d, s3' % (S_MASK, S_MASK))
        I('s_add_u32 s%d, s%d, %d' % (S_PF, S_PF, HFL_OFF - HEF_OFF))
        for k2 in range(12 + TDN, 18):
            for t in (w2_dma(k2) if 'nod' not in X else ['s_nop 0']): I(t, 'v%d' % k2, P('D15', 6) + P('D15S', 2)*(k2-12-TDN), P('D15D', 0) if 'lds' in t else 0)
        C.gate, gsave = None, C.gate
        C.fn(l2, 2, P('LP0', 16)); C.fn(lambda a: setattr(C, 'gate', gsave), 0)
        S.streams = [C, R, G]
        I('s_mul_i32 s5, s%d, 12' % S_SP); I('s_add_u32 s5, s5, s%d' % S_TEAM); I('s_lshl_b32 s5, s5, 13')
        for src in range(3):
            I('s_sub_u32 s3, s%d, %d' % (S_SP, src+1)); I('s_and_b32 s3, s3, 3'); I('s_mul_i32 s3, s3, %d' % (64*6*8192))
            I('s_add_u32 s3, s3, s5'); I('s_add_u32 s%d, s3, %d' % (S_FB+src, PF_OFF))
        I('s_mov_b32 s15, 0xffff0000'); I('s_add_u32 s%d, s5, %d' % (S_T2, PF_OFF + 4*64*6*8192)); I('s_mov_b32 s%d, 0' % S_T3)
        tmp = Asm()
        for ks in range(12, 18): w2_read(tmp, ks, False)
        for k, t in enumerate(tmp.lines):
            if k % 6 == 0 and k//6 >= TDN: G.fn(lambda a, k=k: a.wait_vm('v%d' % (12 + k//6)), 1, P('RDAT', 40) + P('RDS', 3)*(k//6))
            I(t.strip(), 'wr%d' % (12 + k//6))
        G.fn(lambda a: None, 0, P('LPC', 33) + 1)
        xx_fill(G)
    for n in range(144):
        i, ks = seq[n]; s = i & 1; p = n // 18
        if ks == 0:
            S.note = None; S.drain(('acc', s))
            if S.note: sys.stderr.write('  B forced drain at block %d: %s\n' % (i, S.note))
        if n % 18 == 0:
            if ssm and p == 6:
                S.drain()
                a('s_cmp_eq_u32 s%d, 1' % S_SHORT); a('s_cbranch_scc1 B_SSM_TAIL')
            if p in (0, 7): stamp(a, st)
            nstamp(a, 'b%d' % p)
        base = S.mf
        if n > 0 and seq[n-1][1] == 17:
            j = seq[n-1][0]
            reduce_fill(R, j, base + 2, ssm or j < 6, ssm, None, 1, 1 if (not ssm and j in (0, P('W6', 0))) else P('WRD', 2))
        if not ssm and n % 18 == 0:
            if p == 3:
                F0 = Stream('f0'); S.always = [F0]
                for t in ffn_loads(L)[:2]: F0.ins(t, 'fA', base + P('FA0', 6))
            if p == 4:
                assert not F0.q
                for k, t in enumerate(ffn_loads(L)[2:]): G.ins(t, 'fA', base + P('FA0', 6) + P('FSP', 46)*(k//2))
                checked(G, 'fA', ffn_loads(L), L, P('CHKD', 30))
                presum(G, L, psA)
                for src in range(3): G.ins('s_add_u32 s%d, s%d, %d' % (S_FB+src, S_FB+src, 6*8192))
            if p == 5:
                for k, t in enumerate(y_loads(yA)): G.ins(t, 'yA', base + P('YAAT', 40))
                checked(G, 'yA', y_loads(yA), yA, P('CHKD2', 30))
                prep_s(G, 0, yA, sA); G.fn(lambda a: a.seen.add('prepA'), 0)
                for k, t in enumerate(ffn_loads(fB)[:2]): G.ins(t, 'fB', 0, 3)
                G.ins('s_add_u32 s%d, s%d, %d' % (S_T2, S_T2, 6*8192))
            if p == 7:
                G.fn(lambda a: ('rr6' in a.seen) or sys.exit('order'), 0, base + P('FBAT', 24))
                lb = ffn_loads(fB)
                for t in lb[2:4]: G.ins(t, 'fB', 0, 3)
                for t in y_loads(yB): G.ins(t, 'yB', 0, 3)
                for t in lb[4:6]: G.ins(t, 'fB', 0, 3)
                chain(C, 0, psA, sA)
                if P('G7', 1): S.streams = [G, R, C]
        if ssm and i in (0, 2, 4):
            l2, c2 = flag_poll('hp%d' % i)
            if ks == 0: S.must_fn(lambda a: (a('s_add_u32 s%d, s%d, s%d' % (S_PF, S_PF, S_T3)), l2(a)))
            if ks == 35 - NH:
                assert nld[0] <= 18*(i+2)
                S.must_fn(lambda a: (a.wait_vm('hp%d' % i), poll_loop(a, l2, c2, 4)))
        if not okl[0] and S.mf >= P('LPC', 33):
            S.must_fn(lambda a: (nstamp(a, 'lp0'), a.wait_vm('hl'), ('nol' in X or poll_loop(a, l2, c2, 1, 'r_l')), nstamp(a, 'lp1')))
            okl[0] = True; S.streams = [R, G, C]
            for _ in range(P('LBURST', 6)):
                if nld[0] < n + NH: S.must_fn(next_h)
        S.fill(reserve=1)
        S.must_fn(lambda a: a.wait_vm('h%d' % n))
        if not ssm and i == 0 and ks >= 12:
            assert a.tagcount.get('wr%d' % ks, 0) == 6, ks
            S.must_fn(lambda a: a.wait_lg('wr%d' % ks))
        for dt in range(3):
            d = vr(accr(s, dt), 16)
            S.mfma('v_mfma_f32_32x32x16_bf16 %s, %s, %s, %s' % (d, vr(hslot(n), 4), wfrag(ks, dt), d if ks else '0'))
            lim = n + NH + (1 if dt == 2 else 0)
            if not okl[0]: lim = min(lim, 2*KE)
            if nld[0] < min(lim, 144) and (dt != 1 or n < 36): S.must_fn(next_h)
    sys.stderr.write('phaseB ssm=%d pending at end: %s\n' % (ssm, S.pending()))
    stamp(a, st); nstamp(a, 'e0')
    S.mf += 1000
    if ssm:
        S.drain()
        a('B_SSM_TAIL:')
        a('s_nop 11')
        a.lg = []
        reduce_fill(R, 7, 0, True, True); S.drain()
        stamp(a, st)
    else:
        S.drain(stream=R); S.drain(stream=G)
        restA = C.q; C.q = []
        reduce_fill(R, 7, 0, False, False)
        wr = R.q[:9]; rest = R.q[9:]
        R.q = []
        k = 0
        while wr or restA[k:]:
            if wr: R.q.append(wr.pop(0))
            R.q += restA[k:k+6]; k += 6
        S.drain()
        stamp(a, st); nstamp(a, 'e1')
        R.q = rest[:10]; S.drain()
        checked(G, 'yB', y_loads(yB), yB, 0); prep_s(G, 1, yB, sB); S.drain()
        R.q = rest[10:]; S.drain()
        nstamp(a, 'e2')
        checked(G, 'fB', ffn_loads(fB), fB, 0); presum(G, fB, psB)
        G.ins('s_mov_b32 s%d, %d' % (S_T3, 16*2304))
        chain(G, 1, psB, sB); S.drain()
        a('s_lshl_b32 s3, s%d, 9' % S_SP); a('s_add_u32 s3, s3, s%d' % S_TEAM); a('s_lshl_b32 s4, s%d, 12' % S_W); a('s_add_u32 s3, s3, s4')
        a('s_cmp_eq_u32 s3, %d' % (7*48))
        a('s_cbranch_scc0 NOBUMP')
        a('v_mov_b32 v14, %d' % NONCE_OFF); a('v_mov_b32 v15, s%d' % S_NONCE)
        a('s_mov_b64 exec, 1')
        a('buffer_store_dword v15, v14, %s, 0 offen sc1' % WSR)
        a('NOBUMP:')
    stamp_flush(a, st, 0, S_WS, S_W, 14)
    a('s_endpgm')

def ln_part(a):
    X = 48; F = 72; T = 112
    a('s_lshl_b32 s3, s2, 1'); a('s_add_u32 s3, s3, s%d' % S_W)
    a('s_lshr_b32 s4, s3, 4'); a('s_lshl_b32 s4, s4, 6')
    a('s_and_b32 s5, s3, 1'); a('s_lshl_b32 s5, s5, 5'); a('s_add_u32 s4, s4, s5')
    a('s_bfe_u32 s5, s3, 0x10003'); a('s_lshl_b32 s5, s5, 4'); a('s_add_u32 s4, s4, s5')
    a('s_bfe_u32 s5, s3, 0x20001'); a('s_lshl_b32 s5, s5, 2'); a('s_add_u32 s4, s4, s5')
    a('v_and_b32 v%d, 3, v0' % T); a('v_lshrrev_b32 v%d, 2, v0' % (T+1))
    a('v_add_u32 v%d, s4, v%d' % (T+2, T))
    a('v_mul_u32_u24 v%d, 1152, v%d' % (T+3, T+2)); a('v_lshl_add_u32 v%d, v%d, 4, v%d' % (T+3, T+1, T+3))
    for k in range(4): a('v_mov_b32 v%d, 0' % (X+16+k))
    a('s_waitcnt lgkmcnt(0)'); nstamp(a, 'ln0')
    for n in range(4):
        a('global_load_dwordx4 %s, v%d, s[%d:%d] offset:%d%s' % (vr(X+4*n, 4), T+3, SP0, SP0+1, 256*n, XNT), 'lx')
    a('s_mov_b32 exec_hi, 0')
    a('global_load_dwordx4 %s, v%d, s[%d:%d] offset:1024%s' % (vr(X+16, 4), T+3, SP0, SP0+1, XNT), 'lx')
    a('s_mov_b32 exec_hi, -1')
    if P('DEC', 1):
        a('s_mov_b32 s%d, s3' % S_CNT); decode(a); a('s_mov_b32 s3, s%d' % S_CNT)
    srd(a, S_W1, SP0+4, 576*9216)
    for n in range(W1P): dma_w1(a, 1, 1, n, 'w1')
    ws_srd(a)
    a('s_load_dword s%d, s[%d:%d], %d' % (S_NONCE, S_WS, S_WS+1, NONCE_OFF))
    a('s_lshr_b32 s5, s3, 3'); a('s_mul_i32 s5, s5, 36864'); a('s_and_b32 s6, s3, 7'); a('s_lshl_b32 s6, s6, 7'); a('s_add_u32 s5, s5, s6')
    a('s_add_u32 s5, s5, %d' % XF_OFF)
    a('v_lshrrev_b32 v%d, 3, v0' % (T+4)); a('v_lshlrev_b32 v%d, 10, v%d' % (T+4, T+4))
    a('v_and_b32 v%d, 7, v0' % (T+5)); a('v_lshl_add_u32 v%d, v%d, 4, v%d' % (T+4, T+5, T+4))
    a('v_lshlrev_b32 v%d, 3, v%d' % (T+2, T+2))
    MK = S_T; HM = S_T2
    a('s_mov_b32 s%d, 0xffff0000' % HM)
    DRY = P('DRY', 0)
    if DRY:
        a('s_mov_b32 s%d, 0' % MK); a('s_mov_b64 exec, 0')
    else:
        a('s_mov_b32 s%d, -1' % MK); a.wait_vm('lx'); nstamp(a, 'ln1')
    a('LN_BODY:')
    def unpack(n): a('v_lshlrev_b32 v%d, 16, v%d' % (F+2*n, X+n)); a('v_and_b32 v%d, s%d, v%d' % (F+2*n+1, HM, X+n))
    A = T+8
    def allred(r):
        return ['v_add_f32_dpp v%d, v%d, v%d row_ror:4 row_mask:0xf bank_mask:0xf' % (r, r, r),
                'v_add_f32_dpp v%d, v%d, v%d row_ror:8 row_mask:0xf bank_mask:0xf' % (r, r, r),
                'v_mov_b32 v%d, v%d' % (T+6, r), 'v_permlane16_swap_b32 v%d, v%d' % (r, T+6), 'v_add_f32 v%d, v%d, v%d' % (r, r, T+6),
                'v_mov_b32 v%d, v%d' % (T+6, r), 'v_permlane32_swap_b32 v%d, v%d' % (r, T+6), 'v_add_f32 v%d, v%d, v%d' % (r, r, T+6)]
    pr = lambda r: vr(r, 2)
    Q = A+4
    for n in range(20):
        unpack(n)
        if n >= 5:
            k = n - 1
            a('v_pk_add_f32 %s, %s, %s' % (pr(Q+2*(k % 4)), pr(F+2*(k-4)) if k < 8 else pr(Q+2*(k % 4)), pr(F+2*k)))
    a('v_pk_add_f32 %s, %s, %s' % (pr(Q+6), pr(Q+6), pr(F+38)))
    a('v_pk_add_f32 %s, %s, %s' % (pr(Q), pr(Q), pr(Q+2))); a('v_pk_add_f32 %s, %s, %s' % (pr(Q+4), pr(Q+4), pr(Q+6)))
    a('v_pk_add_f32 %s, %s, %s' % (pr(Q), pr(Q), pr(Q+4))); a('v_add_f32 v%d, v%d, v%d' % (A+2, Q, Q+1))
    for t in allred(A+2): a(t)
    a('v_mul_f32 v%d, 0x%08x, v%d' % (A+2, f32bits(1.0/576), A+2))
    a('v_cvt_pk_bf16_f32 v%d, v%d, v%d' % (A, A+2, A+2)); a('v_lshlrev_b32 v%d, 16, v%d' % (A, A))
    a('v_sub_f32 v%d, v%d, v%d' % (A+2, A+2, A))
    for n in range(20):
        if n == 16: a('s_mov_b32 exec_hi, 0')
        a('v_pk_add_f32 %s, %s, %s op_sel_hi:[1,0] neg_lo:[0,1] neg_hi:[0,1]' % (pr(F+2*n), pr(F+2*n), pr(A)))
        if n % 4 == 3:
            for k in range(n-3, n+1):
                d = pr(F+2*k); q = pr(Q+2*(k % 4))
                a(('v_pk_mul_f32 %s, %s, %s' % (q, d, d)) if k < 4 else ('v_pk_fma_f32 %s, %s, %s, %s' % (q, d, d, q)))
    a('s_mov_b32 exec_hi, s%d' % MK)
    ch = ['v_pk_add_f32 %s, %s, %s' % (pr(Q), pr(Q), pr(Q+2)), 'v_pk_add_f32 %s, %s, %s' % (pr(Q+4), pr(Q+4), pr(Q+6)),
          'v_pk_add_f32 %s, %s, %s' % (pr(Q), pr(Q), pr(Q+4)), 'v_add_f32 v%d, v%d, v%d' % (A+1, Q, Q+1)] + allred(A+1) + [
          'v_mul_f32 v%d, 0x%08x, v%d' % (A+1, f32bits(1.0/576), A+1),
          'v_fma_f32 v%d, -v%d, v%d, v%d' % (A+1, A+2, A+2, A+1),
          'v_cvt_pk_bf16_f32 v%d, v%d, v%d' % (A+1, A+1, A+1), 'v_lshlrev_b32 v%d, 16, v%d' % (A+1, A+1),
          'v_add_f32 v%d, 0x%08x, v%d' % (A+1, f32bits(1e-5), A+1),
          'v_cvt_pk_bf16_f32 v%d, v%d, v%d' % (A+1, A+1, A+1), 'v_lshlrev_b32 v%d, 16, v%d' % (A+1, A+1),
          'v_sqrt_f32 v%d, v%d' % (A+1, A+1),
          'v_cvt_pk_bf16_f32 v%d, v%d, v%d' % (A+1, A+1, A+1), 'v_lshlrev_b32 v%d, 16, v%d' % (A+1, A+1),
          'v_rcp_f32 v%d, v%d' % (A+1, A+1)]
    for t in ch: a(t)
    for q in range(5):
        if q == 4: a('s_mov_b32 exec_hi, 0')
        ns = range(4*q, 4*q+4)
        for n in ns: a('v_pk_mul_f32 %s, %s, %s op_sel:[0,1] op_sel_hi:[1,1]' % (pr(F+2*n), pr(F+2*n), pr(A)))
        for n in ns: a('v_cvt_pk_bf16_f32 v%d, v%d, v%d' % (X+n, F+2*n, F+2*n+1))
        if DRY: a('s_cbranch_execz LN_S%d' % q)
        a('buffer_store_dwordx4 %s, v%d, %s, s5 offen sc1' % (vr(X+4*q, 4), T+4, WSR))
        if q < 4: a('s_add_u32 s5, s5, 8192')
        if DRY and q < 4: a('LN_S%d:' % q)
    if DRY:
        a('s_branch LN_REAL_DONE')
        a('LN_S4:')
        a('s_mov_b32 s%d, -1' % MK); a('s_mov_b64 exec, -1'); nstamp(a, 'lnd')
        a('s_waitcnt vmcnt(0)'); nstamp(a, 'ln1')
        a('s_branch LN_BODY')
        a('LN_REAL_DONE:')
    a('s_mov_b32 exec_lo, 15')
    a('s_mov_b32 s5, %d' % STAT_OFF)
    assert A % 2 == 0
    a('buffer_store_dwordx2 %s, v%d, %s, s5 offen sc1' % (vr(A, 2), T+2, WSR))
    a('s_mov_b64 exec, -1'); nstamp(a, 'ln2')
    if W0E < 99 and W0M == 0: a('s_barrier')
    a('s_waitcnt lgkmcnt(0)')
    nonce_mix(a)
    a('s_lshl_b32 s3, s3, 7'); a('s_add_u32 s3, s3, %d' % LNF_OFF)
    a('v_mov_b32 v%d, 0' % T); a('v_mov_b32 v%d, s%d' % (T+1, S_NONCE))
    a('s_mov_b64 exec, 1')
    a('s_waitcnt vmcnt(0)')
    a('buffer_store_dword v%d, v%d, %s, s3 offen sc1' % (T+1, T, WSR)); nstamp(a, 'ln3')
    a('s_mov_b64 exec, -1')
    if W0E < 99 and W0M == 1: a('s_barrier')

def nonce_mix(a):
    a('s_mul_i32 s%d, s%d, 0x0019660d' % (S_NONCE, S_NONCE))
    a('s_add_u32 s%d, s%d, 0x3c6ef35f' % (S_NONCE, S_NONCE))

def light_part(a):
    if P('LBAR', 1): a('s_barrier')
    a('s_cmp_eq_u32 s%d, 0' % S_W); a('s_cbranch_scc1 LIGHT2')
    a('s_load_dwordx4 s[%d:%d], s[0:1], %d' % (SP0, SP0+3, A_CRE))
    a('s_sub_u32 s3, s2, 240'); a('s_mul_i32 s3, s3, 3'); a('s_add_u32 s3, s3, s%d' % S_W); a('s_sub_u32 s3, s3, 1')
    a('s_lshr_b32 s4, s3, 3'); a('s_mul_i32 s4, s4, %d' % (96*1152))
    a('s_bfe_u32 s5, s3, 0x10001'); a('s_mul_i32 s5, s5, 576'); a('s_add_u32 s4, s4, s5')
    a('s_and_b32 s5, s3, 1'); a('s_mul_i32 s5, s5, 288'); a('s_add_u32 s4, s4, s5')
    a('v_and_b32 v1, 31, v0'); a('v_mul_u32_u24 v1, 1152, v1'); a('v_lshrrev_b32 v2, 5, v0'); a('v_lshl_add_u32 v1, v2, 4, v1'); a('v_add_u32 v1, s4, v1')
    a('v_add_u32 v2, %d, v1' % (32*1152)); a('v_add_u32 v3, %d, v1' % (64*1152))
    a('v_lshlrev_b32 v4, 4, v0')
    a('s_mul_i32 s6, s3, 27648'); a('s_add_u32 s6, s6, %d' % CF_OFF)
    a('s_waitcnt lgkmcnt(0)')
    a('s_bitcmp1_b32 s3, 2')
    a('s_cselect_b32 s%d, s%d, s%d' % (SP0, SP0+2, SP0)); a('s_cselect_b32 s%d, s%d, s%d' % (SP0+1, SP0+3, SP0+1))
    for f in range(27):
        a('global_load_dwordx4 %s, v%d, s[%d:%d] offset:%d' % (vr(16+4*f, 4), 1 + f % 3, SP0, SP0+1, (f//3)*32), 'c%d' % f)
    for f in range(27):
        a.wait_vm('c%d' % f)
        a('buffer_store_dwordx4 %s, v4, %s, s6 offen offset:%d sc1' % (vr(16+4*f, 4), WSR, (f % 4)*1024))
        if f % 4 == 3: a('s_add_u32 s6, s6, 4096')
    a('s_lshl_b32 s3, s3, 7'); a('s_add_u32 s3, s3, %d' % CFL_OFF)
    a('v_mov_b32 v1, 0'); a('v_mov_b32 v2, s%d' % S_NONCE)
    a('s_mov_b64 exec, 1')
    a('s_waitcnt vmcnt(0)')
    a('buffer_store_dword v2, v1, %s, s3 offen sc1' % WSR)
    a('s_mov_b64 exec, -1')
    a('LIGHT2:')
    a.vm = []
    a('s_and_b32 s3, s2, 7')
    if P('LMAP', 1):
        a('s_and_b32 s4, s3, 3'); a('s_cmp_eq_u32 s4, 3'); a('s_cbranch_scc1 KEND'); a('s_lshr_b32 s4, s3, 2'); a('s_sub_u32 s3, s3, s4')
    else:
        a('s_cmp_ge_u32 s3, 6'); a('s_cbranch_scc1 KEND')
    a('s_and_b32 s4, s3, 6'); a('s_bfe_u32 s5, s2, 0x10003'); a('s_add_u32 s%d, s4, s5' % S_NT); a('s_and_b32 s3, s3, 1')
    a('s_lshl_b32 s4, s3, 1'); a('s_add_u32 s4, s4, 5')
    for i in range(8): a('s_add_u32 s%d, s4, %d' % (S_ORD+i, 8*i))
    a('s_mov_b32 s%d, 0' % S_MT); a('s_mov_b32 s%d, 4' % S_SP); a('s_mov_b32 s%d, 0' % S_SHORT); a('s_mov_b32 s%d, 0x3ffff' % S_MASK)
    a('s_mov_b32 s%d, %d' % (S_PF, HSF_OFF))
    a('v_min_u32 v1, 47, v0'); a('v_lshlrev_b32 v1, 7, v1'); a('s_mov_b32 s%d, %d' % (S_T3, CFL_OFF))
    ldc = 'buffer_load_dword v2, v1, %s, s%d offen sc1' % (WSR, S_T3)
    a(ldc); a('s_waitcnt vmcnt(0)')
    poll_loop(a, lambda a: a(ldc), chk_all_eq(2), 8)
    a('s_lshl_b32 s4, s%d, 2' % S_NT); a('s_add_u32 s4, s4, s%d' % S_W); a('s_mul_i32 s4, s4, 55296'); a('s_add_u32 s4, s4, %d' % CF_OFF)
    a('v_lshlrev_b32 v4, 4, v0')
    for f in range(54):
        a('buffer_load_dwordx4 %s, v4, %s, s4 offen offset:%d sc1' % (ar(4*f, 4), WSR, (f % 4)*1024))
        if f % 4 == 3: a('s_add_u32 s4, s4, 4096')
    flag_lanes(a, 1)
    a('s_mov_b32 s%d, 8192' % S_T3)
    ld, chk = flag_poll()
    ld(a); a('s_waitcnt vmcnt(0)')
    b_common(a, True)
    poll_loop(a, ld, chk, P('LSLEEP', 3))
    a('s_branch B_SSM2')

def early_pair(a, se, dst):
    a('s_mul_i32 s3, s%d, 86' % se); a('s_lshr_b32 s3, s3, 8'); a('s_mul_i32 s4, s3, 3'); a('s_sub_u32 s4, s%d, s4' % se)
    a('s_cmp_lt_u32 s4, 2'); a('s_cselect_b32 s4, s4, 5')
    a('s_mul_i32 s3, s3, 9'); a('s_add_u32 s3, s3, s4'); a('s_lshl_b32 s%d, s3, 7' % dst)
def mixed_pair(a):
    a('s_lshr_b32 s3, s%d, 1' % S_N); a('s_mul_i32 s3, s3, 9'); a('s_and_b32 s%d, s%d, 1' % (S_SW, S_N))
    a('s_lshl_b32 s4, s%d, 1' % S_SW); a('s_sub_u32 s3, s3, s4'); a('s_add_u32 s3, s3, 6')
    a('s_add_u32 s5, s%d, 54' % S_N); a('s_cmp_lt_u32 s%d, 16' % S_N); a('s_cselect_b32 s3, s3, s5')
    a('s_lshl_b32 s%d, s3, 7' % (S_P+1)); a('s_lshl_b32 s%d, s%d, 11' % (S_SW, S_SW))
def late_pair(a):
    a('s_lshr_b32 s3, s%d, 2' % S_N); a('s_and_b32 s4, s%d, 3' % S_N); a('s_mul_i32 s3, s3, 9'); a('s_add_u32 s3, s3, s4')
    a('s_cmp_lt_u32 s4, 2'); a('s_cselect_b32 s4, 2, 5'); a('s_add_u32 s3, s3, s4'); a('s_lshl_b32 s%d, s3, 7' % (S_P+2))

def decode(a):
    a('s_and_b32 s3, s2, 7'); a('s_lshr_b32 s4, s2, 3')
    a('s_lshr_b32 s5, s3, 1'); a('s_mul_i32 s5, s5, 30'); a('s_add_u32 s5, s5, s4')
    a('s_lshr_b32 s6, s5, 2'); a('s_min_u32 s6, s6, 29')
    if P('AMAP', 1):
        pat = 'MMPMPMPMPMPMPMM'*2
        MK30 = sum(1 << i for i, c in enumerate(pat) if c == 'M')
        a('s_bfm_b32 s7, s6, 0'); a('s_and_b32 s7, s7, 0x%x' % MK30); a('s_bcnt1_i32_b32 s7, s7')
        a('s_sub_u32 s4, s6, s7'); a('s_add_u32 s4, s4, 18')
        a('s_bitcmp1_b32 0x%x, s6' % MK30); a('s_cselect_b32 s%d, s7, s4' % S_N)
    else:
        a('s_mul_i32 s7, s6, 52'); a('s_lshr_b32 s7, s7, 8')
        a('s_mul_i32 s4, s7, 5'); a('s_sub_u32 s4, s6, s4')
        a('s_mul_i32 s6, s7, 3'); a('s_add_u32 s6, s6, s4')
        a('s_lshl_b32 s7, s7, 1'); a('s_add_u32 s7, s7, s4'); a('s_add_u32 s7, s7, 15')
        a('s_cmp_lt_u32 s4, 3'); a('s_cselect_b32 s%d, s6, s7' % S_N)
    a('s_and_b32 s5, s5, 3'); a('s_and_b32 s3, s3, 1'); a('s_lshl_b32 s3, s3, 2'); a('s_add_u32 s%d, s3, s5' % S_G)
    a('s_lshl_b32 s%d, s%d, 10' % (S_M0W, S_W))
    a('v_lshrrev_b32 v13, 3, v0'); a('v_and_b32 v14, 7, v0'); a('v_bfe_u32 v15, v0, 4, 1'); a('v_lshlrev_b32 v15, 2, v15'); a('v_xor_b32 v14, v14, v15')
    a('s_lshl_b32 s3, s%d, 3' % S_W); a('v_add_u32 v13, s3, v13')
    a('v_mul_u32_u24 v%d, 9216, v13' % V_WD); a('v_lshl_add_u32 v%d, v14, 4, v%d' % (V_WD, V_WD))
    late_pair(a)
    mixed_pair(a); a('s_mov_b32 s%d, s%d' % (S_T, S_SW)); a('s_mov_b32 s%d, s%d' % (S_TF, S_P+1))
    a('s_lshl_b32 s7, s%d, 1' % S_N); a('s_sub_u32 s7, s7, 36')
    early_pair(a, 7, S_P); a('s_add_u32 s7, s7, 1'); early_pair(a, 7, S_P+1)
    a('s_cmp_lt_u32 s%d, 18' % S_N); a('s_cselect_b32 s%d, s%d, s%d' % (S_P, S_T, S_P)); a('s_cselect_b32 s%d, s%d, s%d' % (S_P+1, S_TF, S_P+1))

def phaseA2(a, mixed, st):
    import copy
    sv = (list(a.vm), list(a.lg), set(a.seen), st.n, label_n[0], len(a.lines), len(OOL))
    pos = {}
    for bt in (0, 1):
        def mark(S, bt=bt):
            if bt == 0:
                S.must('s_cmp_eq_u32 s%d, 4' % S_SP); S.must('s_cbranch_scc1 AS%d' % mixed)
            else:
                S.must('s_nop 0'); S.must('s_nop 0')
                del a.lines[pos['start']:]; del OOL[pos['ool']:]
                a('AS%d:' % mixed); a('s_nop 9')
                label_n[0] = pos['lab']
        if bt:
            pos['start'] = len(a.lines); pos['ool'] = len(OOL); pos['lab'] = label_n[0]
            a.vm, a.lg, a.seen, st.n = list(sv[0]), list(sv[1]), set(sv[2]), sv[3]
        phaseA(a, mixed, st, bt, mark)
        a('s_nop 3')
        a('s_branch %s' % ('B_SSM' if bt else 'B_FFN'))

def gen():
    a = Asm()
    name = PFX + '_kernel'
    a(kernel_header(name))
    a('KSTART:')
    a('s_cmp_ge_u32 s2, 256'); a('s_cbranch_scc1 KEND')
    st = Stamps(); stamp(a, st); nstamp(a, 'start')
    for nm in ('ln0', 'lnd', 'ln1', 'ln2', 'ln3', 'w0a', 'w0b'): nstamp(a, nm)
    a('s_load_dwordx2 s[%d:%d], s[0:1], %d' % (SP0, SP0+1, A_X))
    a('s_load_dwordx2 s[%d:%d], s[0:1], %d' % (SP0+2, SP0+3, D_WS))
    a('s_load_dwordx2 s[%d:%d], s[0:1], %d' % (SP0+4, SP0+5, B_W1))
    a('s_load_dwordx4 s[56:59], s[0:1], %d' % A_BRE)
    a('s_load_dwordx4 s[60:63], s[0:1], %d' % A_LRE)
    a('s_load_dwordx2 s[54:55], s[0:1], %d' % A_LDT)
    a('v_lshrrev_b32 v13, 6, v0')
    a('v_readfirstlane_b32 s%d, v13' % S_W)
    a('v_and_b32 v0, 63, v0')
    if P('DEC', 1) == 0: decode(a)
    a('s_cmp_ge_u32 s%d, 2' % S_W); a('s_cbranch_scc1 SKIP_LN')
    ln_part(a)
    a.vm = []
    a('s_branch LN_DONE')
    a('SKIP_LN:')
    if P('CODEPF', 1):
        a('s_getpc_b64 s[4:5]'); a('PFPC:')
        a('s_sub_u32 s4, s4, PFPC-KSTART'); a('s_subb_u32 s5, s5, 0')
        a('s_lshr_b32 s6, s2, 3'); a('s_and_b32 s6, s6, 15'); a('s_add_u32 s6, s6, 1'); a('s_mul_i32 s6, s6, 6144')
        a('s_cmp_eq_u32 s%d, 3' % S_W); a('s_cselect_b32 s6, 0, s6')
        a('v_lshl_add_u32 v%d, v0, 7, s6' % V_PL)
        a('v_min_u32 v%d, KLAST-KSTART, v%d' % (V_PL, V_PL))
        a('global_load_dword v%d, v%d, s[4:5]' % (V_PL+3, V_PL))
        a.vm = []
    if P('LTOUCH', 2):
        a('s_lshl_b32 s3, s2, 1'); a('s_add_u32 s3, s3, s%d' % S_W); a('s_sub_u32 s3, s3, 2')
        a('s_mul_i32 s4, s3, %d' % (11*128)); a('v_min_u32 v%d, 10, v0' % V_PA); a('v_lshl_add_u32 v%d, v%d, 7, s4' % (V_PA, V_PA))
        a('v_min_u32 v%d, %d, v%d' % (V_PA, 576*1152-4, V_PA))
        if P('LTOUCH', 2) == 2:
            a('s_mul_i32 s4, s3, 45'); a('v_min_u32 v%d, 44, v0' % V_PL); a('v_add_u32 v%d, s4, v%d' % (V_PL, V_PL))
            a('v_mul_u32_u24 v14, 52429, v%d' % V_PL); a('v_lshrrev_b32 v14, 18, v14')
            a('v_mul_u32_u24 v15, 5, v14'); a('v_sub_u32 v15, v%d, v15' % V_PL)
            a('v_lshl_add_u32 v%d, v14, 2, v%d' % (V_PL, V_PL)); a('v_cmp_lt_u32 vcc, 1, v15'); a('v_cndmask_b32 v15, 0, 2, vcc')
            a('v_add_lshl_u32 v%d, v%d, v15, 7' % (V_PL, V_PL))
        else:
            a('s_mul_i32 s4, s3, %d' % (82*128)); a('v_min_u32 v%d, 40, v0' % V_PL); a('v_lshl_add_u32 v%d, v%d, 7, s4' % (V_PL, V_PL))
            a('v_add_u32 v%d, %d, v%d' % (V_PL+1, 41*128, V_PL))
            a('v_min_u32 v%d, %d, v%d' % (V_PL+1, 576*9216-4, V_PL+1))
        a('v_min_u32 v%d, %d, v%d' % (V_PL, 576*9216-4, V_PL))
        if P('DEC', 1): decode(a)
        a('s_waitcnt lgkmcnt(0)')
        if P('LTD', 0): a('s_sleep %d' % P('LTD', 0))
        a('global_load_dword v%d, v%d, s[56:57]' % (V_PL+3, V_PA)); a('global_load_dword v%d, v%d, s[58:59]' % (V_PL+3, V_PA))
        a('global_load_dword v%d, v%d, s[%d:%d]' % (V_PL+3, V_PL, SP0+4, SP0+5))
        if P('LTOUCH', 2) == 1: a('global_load_dword v%d, v%d, s[%d:%d]' % (V_PL+3, V_PL+1, SP0+4, SP0+5))
        a.vm = []
    a('LN_DONE:')
    a('s_waitcnt lgkmcnt(0)')
    ws_srd(a)
    a('s_cmp_lt_u32 s%d, 2' % S_W); a('s_cbranch_scc1 HAVE_NONCE')
    a('s_load_dword s%d, s[%d:%d], %d' % (S_NONCE, S_WS, S_WS+1, NONCE_OFF))
    a('s_cmp_lt_u32 s2, 240'); a('s_cbranch_scc1 HAVE_NONCE')
    a('s_waitcnt lgkmcnt(0)'); nonce_mix(a)
    if W0E < 99: a('s_barrier')
    a('HAVE_NONCE:')
    a('s_cmp_lt_u32 s2, 240'); a('s_cbranch_scc1 HEAVY')
    light_part(a)
    a.vm = []
    a('HEAVY:')
    srd(a, S_W1, SP0+4, 576*9216)
    def common2():
        a('s_mov_b32 s%d, 0x%08x' % (S_NL2E, f32bits(-LOG2E)))
        a('s_mul_i32 s%d, s%d, %d' % (S_XB, S_G, 8*36864)); a('s_add_u32 s%d, s%d, %d' % (S_XB, S_XB, XF_OFF))
        a('s_mul_i32 s%d, s%d, %d' % (S_HB, S_G, 8*HF_RB)); a('s_add_u32 s%d, s%d, %d' % (S_HB, S_HB, HF_OFF))
        a('s_mul_i32 s3, s%d, 73728' % S_W)
        a('v_bfe_u32 v14, v0, 2, 3'); a('v_lshlrev_b32 v14, 7, v14'); a('v_lshrrev_b32 v15, 5, v0'); a('v_lshl_add_u32 v14, v15, 6, v14')
        a('v_and_b32 v15, 3, v0'); a('v_lshl_add_u32 v14, v15, 4, v14'); a('v_add_u32 v%d, s3, v14' % V_XO)
        a('v_add_u32 v%d, 36864, v%d' % (V_XO+1, V_XO))
        a('s_mul_i32 s3, s%d, %d' % (S_W, 2*HF_RB))
        a('v_lshl_add_u32 v%d, v0, 4, s3' % V_HO); a('v_add_u32 v%d, %d, v%d' % (V_HO+1, HF_RB, V_HO))
        a('v_lshrrev_b32 v14, 5, v0'); a('v_lshlrev_b32 v14, 10, v14')
        a('v_bfe_u32 v15, v0, 2, 2'); a('v_lshl_add_u32 v14, v15, 7, v14')
        a('v_bfe_u32 v15, v0, 4, 1'); a('v_lshl_add_u32 v14, v15, 5, v14')
        a('v_and_b32 v15, 3, v0'); a('v_lshl_add_u32 v14, v15, 3, v14')
        a('v_bfe_u32 v15, v0, 3, 1'); a('v_lshl_add_u32 v%d, v15, 6, v14' % V_TR)
        a('v_xor_b32 v%d, 64, v%d' % (V_TR+1, V_TR))
    def w1_and_poll(tagp):
        PK_ = P('POLLK', 0)
        a('v_and_b32 v%d, 15, v0' % V_PA); a('v_lshlrev_b32 v%d, 7, v%d' % (V_PA, V_PA))
        a('s_lshl_b32 s3, s%d, 13' % S_G); a('s_lshl_b32 s4, s%d, 11' % S_W); a('s_add_u32 s3, s3, s4'); a('s_add_u32 s%d, s3, %d' % (S_T3, LNF_OFF))
        ld = 'buffer_load_dword v%d, v%d, %s, s%d offen sc1' % (V_PL, V_PA, WSR, S_T3)
        W1X = P('W1X', 0)
        if W1X:
            L = 'W1X%d' % tagp
            a('s_cmp_ge_u32 s%d, 2' % S_W); a('s_cbranch_scc1 %s' % L)
            a('v_add_u32 v%d, %d, v%d' % (V_PL, 16*9216, V_WD))
            for n in range(W1X): dma_w1(a, 1, 1, n, 'w1'); dma_w1(a, 1, 1, n, 'w1', V_PL, 2048)
            a(L + ':'); a.vm = []
        for n in range(max(W1A, W1X), 18 - PK_): dma_w1(a, 1, 1, n, 'w1')
        if P('C2F', 0): common2()
        a(ld, 'lnp')
        for n in range(18 - PK_, 18): dma_w1(a, 1, 1, n, 'w1')
        nstamp(a, 'w1i')
        if not P('C2F', 0): common2()
        a.wait_vm('lnp')
        stamp(a, st); nstamp(a, 'pl0')
        poll_loop(a, lambda a: a(ld), chk_all_eq(V_PL))
        stamp(a, st); nstamp(a, 'pl1')
    def w0(mixed):
        L = 'W0SKIP%d' % mixed
        a('s_cmp_lt_u32 s%d, 2' % S_W); a('s_cbranch_scc1 %s' % L); nstamp(a, 'w0a')
        if mixed:
            a('v_subrev_u32 v%d, %d, v%d' % (V_PA, 16*1152, V_BD))
            for n in range(18):
                if n == W0E: a('s_barrier')
                dma_b(a, n//2, n % 2, 'w0'); dma_b(a, n//2, n % 2, 'w0', V_PA, -2048)
        else:
            a('v_subrev_u32 v%d, %d, v%d' % (V_PA, 16*9216, V_WD))
            for n in range(18):
                if n == W0E: a('s_barrier')
                dma_w1(a, 0, 0, n, 'w0'); dma_w1(a, 0, 0, n, 'w0', V_PA, -2048)
        if W0E == 18: a('s_barrier')
        a('v_subrev_u32 v%d, %d, v%d' % (V_PA, 16*9216, V_WD))
        for n in range(W1A):
            dma_w1(a, 1, 1, n, 'w1')
            if n >= W1P: dma_w1(a, 1, 1, n, 'w1', V_PA, -2048)
        nstamp(a, 'w0b'); a('s_waitcnt lgkmcnt(0)'); nonce_mix(a)
        a(L + ':')
        a.vm = []
    a('s_cmp_lt_u32 s%d, 18' % S_N); a('s_cbranch_scc1 A_MIXED')
    w0(0); w1_and_poll(0)
    phaseA2(a, False, st)
    nst = st.n; st.n = 1; a.vm = []; a.lg = []; a.seen = set()
    a('A_MIXED:')
    srd(a, S_BRE, 56, 576*1152); srd(a, S_BIM, 58, 576*1152)
    a('v_bfe_u32 v15, v13, 1, 3'); a('v_and_b32 v14, 7, v0'); a('v_xor_b32 v14, v14, v15')
    a('s_lshl_b32 s7, s%d, 5' % S_N); a('v_add_u32 v13, s7, v13')
    a('v_mul_u32_u24 v%d, 1152, v13' % V_BD); a('v_lshl_add_u32 v%d, v14, 4, v%d' % (V_BD, V_BD))
    w0(1)
    a('v_and_b32 v13, 31, v0'); a('v_lshrrev_b32 v14, 5, v0'); a('v_bfe_u32 v15, v0, 1, 3'); a('v_xor_b32 v14, v14, v15')
    a('v_lshlrev_b32 v14, 4, v14'); a('v_lshl_add_u32 v%d, v13, 7, v14' % V_BR)
    for e in range(1, 4): a('v_xor_b32 v%d, %d, v%d' % (V_BR+e, 32*e, V_BR))
    a('v_lshrrev_b32 v14, 5, v0'); a('s_lshl_b32 s4, s%d, 1' % S_W); a('v_add_u32 v%d, s4, v14' % R_SIDX)
    a('v_add_u32 v%d, s%d, v14' % (R_GH, S_G))
    a('v_mul_u32_u24 v%d, 80, v13' % R_TW); a('v_add_u32 v%d, 0x%x, v%d' % (R_TW, E_OFF - E_OFF % 65536, R_TW))
    a('v_lshl_add_u32 v%d, v%d, 3, v%d' % (R_EA, R_SIDX, R_TW)); a('v_add_u32 v%d, 0x%x, v%d' % (R_EA, E_OFF % 65536, R_EA))
    a('v_add_u32 v15, s7, v13')
    a('v_lshlrev_b32 v%d, 4, v15' % R_AW)
    a('v_mul_u32_u24 v14, 9216, v14'); a('v_add_u32 v%d, v14, v%d' % (R_AO, R_AW))
    a('v_min_u32 v14, 1, v%d' % R_SIDX); a('v_lshl_add_u32 v%d, v14, 30, v%d' % (R_AW, R_AW))
    a('v_lshlrev_b32 v15, 1, v15')
    a('global_load_ushort v%d, v15, s[60:61]' % R_T3); a('global_load_ushort v%d, v15, s[62:63]' % R_T4); a('global_load_ushort v%d, v15, s[54:55]' % R_ER)
    a('s_mul_i32 s%d, s%d, 9216' % (S_BB, S_G)); a('s_add_u32 s%d, s%d, %d' % (S_BB, S_BB, AGG_OFF))
    a('s_lshl_b32 s4, s%d, 11' % S_W); a('s_add_u32 s4, s4, %d' % TB_OFF)
    a('v_lshrrev_b32 v14, 5, v0'); a('v_lshlrev_b32 v14, 9, v14')
    a('v_bfe_u32 v15, v0, 2, 2'); a('v_lshl_add_u32 v14, v15, 6, v14')
    a('v_and_b32 v15, 1, v0'); a('v_lshl_add_u32 v14, v15, 5, v14')
    a('v_bfe_u32 v15, v0, 4, 1'); a('v_lshl_add_u32 v14, v15, 4, v14')
    a('v_bfe_u32 v15, v0, 1, 1'); a('v_lshl_add_u32 v14, v15, 3, v14')
    a('v_bfe_u32 v15, v0, 3, 1'); a('v_lshlrev_b32 v15, 4, v15'); a('v_xor_b32 v14, v14, v15')
    a('v_add_u32 v%d, s4, v14' % R_TRD)
    a('v_lshrrev_b32 v14, 5, v0'); a('v_lshlrev_b32 v14, 1, v14'); a('v_bfe_u32 v15, v0, 1, 2'); a('v_xor_b32 v14, v14, v15')
    a('v_lshlrev_b32 v14, 4, v14'); a('v_lshl_add_u32 v14, v13, 6, v14')
    a('v_add_u32 v%d, s4, v14' % R_TWA)
    w1_and_poll(1)
    a('s_lshr_b32 s4, s%d, 5' % S_SW); a('v_xor_b32 v%d, s4, v%d' % (V_TR, V_TR)); a('v_xor_b32 v%d, s4, v%d' % (V_TR+1, V_TR+1))
    a('s_lshl_b32 s4, s%d, 11' % S_N); a('s_add_u32 s4, s4, %d' % (288*1024)); a('s_add_u32 s%d, s4, s%d' % (S_HS, S_HB))
    phaseA2(a, True, st)
    assert st.n == nst or not DIAG or STNAMES
    a('A_DONE:')
    a('B_FFN:')
    a.vm = []; a.lg = []; a.seen = set()
    phaseB(a, False, st)
    st.n = nst; a.vm = []; a.lg = []; a.seen = set()
    a('B_SSM:')
    phaseB(a, True, st)
    a.lines.extend(OOL)
    a('KEND:')
    a('KLAST:')
    a('s_endpgm')
    return name, a.lines, kernel_desc(name, 512, 256, 102)

if __name__ == '__main__':
    ref = open('cdna_kernels/%s.s.ref' % PFX).read().split('\n')
    hdr = [l for l in ref if l.startswith(';') and '@launch' not in l and 'Override launch' not in l and 'grid=ceil' not in l][:16]
    name, lines, desc = gen()
    padded, n = pad_hazards(lines)
    sys.stderr.write('%d lines, %d nops inserted\n' % (len(padded), n))
    out = hdr + ['; @launch grid=(256,1,1) block=(256,1,1) lds=%d' % LDS_BYTES, '.amdgcn_target "amdgcn-amd-amdhsa--gfx950"'] + padded + [desc]
    sys.stdout.write('\n'.join(out) + '\n')
```

```python
from asmlib import *
import os as _os

def slots_of(text):
    op = text.split()[0]
    if op in TRANS: return 2
    if op == 'ds_write_b128': return 5
    if op.startswith('ds_write'): return 2
    if op.startswith('buffer_store') or op.startswith('global_store'): return int(_os.environ.get('CST', 3))
    if op.startswith('buffer_load') or op.startswith('global_load'):
        return int(_os.environ.get('CLD', 2))
    return 1

import re as _re, os as _os
VOP2 = ('v_add_f32','v_sub_f32','v_subrev_f32','v_mul_f32','v_fmac_f32','v_min_f32','v_max_f32','v_add_u32','v_sub_u32','v_subrev_u32','v_and_b32','v_or_b32','v_xor_b32',
        'v_lshlrev_b32','v_lshrrev_b32','v_mul_u32_u24','v_min_u32','v_max_u32','v_cndmask_b32')
VOP1 = ('v_mov_b32','v_exp_f32','v_rcp_f32','v_sqrt_f32','v_sin_f32','v_cos_f32','v_rndne_f32','v_permlane32_swap_b32','v_permlane16_swap_b32','v_readfirstlane_b32')
def _lit(o):
    o = o.strip()
    if _re.match(r'^-?[vas]\d|^[vas]\[|^vcc|^exec|^m0|^scc', o): return False
    if o in ('0.5','-0.5','1.0','-1.0','2.0','-2.0','4.0','-4.0','0.15915494'): return False
    try:
        v = int(o, 0); return not (-16 <= v <= 64)
    except ValueError: return True
def bytes_of(text):
    op, ops = split_ops(text)
    if op.startswith('s_'):
        if op.startswith('s_load') or op.startswith('s_mem'): return 8
        if op in ('s_waitcnt','s_barrier','s_nop','s_sleep','s_branch','s_movk_i32') or op.startswith('s_cbranch'): return 4
        return 8 if any(_lit(o) for o in ops[(0 if op.startswith('s_cmp') else 1):]) else 4
    if op in VOP1: return 8 if (_lit(ops[1]) or ops[1].startswith('-')) else 4
    if op in VOP2:
        if op == 'v_cndmask_b32' and ops[3] != 'vcc': return 8
        if not _re.match(r'^v\d', ops[2]) or ops[1].startswith('-v'): return 8
        return 8 if _lit(ops[1]) else 4
    if op.startswith('v_cmp'): return 4 if (ops[0] == 'vcc' and not _lit(ops[1])) else 8
    return 8

class Stream:
    def __init__(self, name): self.name = name; self.q = []; self.last = -10**9; self.gate = None
    def ins(self, text, tag=None, ready=0, delay=0, group=None):
        self.q.append((lambda a, t=text, g=tag: a(t, g), slots_of(text), ready, delay, group, bytes_of(text)))
    def fn(self, f, cost=1, ready=0, delay=0, group=None):
        self.q.append((f, cost, ready, delay, group, 4*cost))

class Sched:
    GAP = int(_os.environ.get('GAP', 6))
    MAXI = int(_os.environ.get('MAXI', 99))
    BYT = int(_os.environ.get('BYT', 48))
    def __init__(self, a):
        self.a = a; self.mf = 0; self.streams = []; self.used = 0; self.ub = 0; self.always = []; self.l0 = len(a.lines)
    def stream(self, name):
        s = Stream(name); self.streams.append(s); return s
    def mfma(self, text):
        self.fill()
        self.a(text); self.mf += 1; self.used = 0; self.ub = 0; self.l0 = len(self.a.lines)
    def must(self, text, tag=None):
        self.a(text, tag); self.used += slots_of(text); self.ub += bytes_of(text)
    def must_fn(self, f):
        n = len(self.a.lines); f(self.a)
        for l in self.a.lines[n:]:
            s = l.strip()
            if s and not s.endswith(':') and not s.startswith(';'): self.used += slots_of(s); self.ub += bytes_of(s)
    def fill(self, reserve=0):
        prog = True
        while prog:
            prog = False
            for s in self.always + self.streams:
                if not s.q or (s.gate and not s.gate()): continue
                f, cost, ready, delay, group, nb = s.q[0]
                if ready > self.mf or s.last + delay > self.mf: continue
                room = self.GAP - reserve - self.used
                if cost > room and not (cost > self.GAP and self.used == 0): continue
                if self.ub + nb + 4*reserve > self.BYT: continue
                if cost and len(self.a.lines) - self.l0 + reserve >= self.MAXI: continue
                s.q.pop(0); f(self.a); self.used += cost; self.ub += nb; s.last = self.mf; prog = True
                break
    def drain(self, group=None, stream=None):
        for s in self.streams:
            if stream is not None and s is not stream: continue
            if group is None: n = len(s.q)
            else:
                idx = [i for i, it in enumerate(s.q) if it[4] == group]
                n = idx[-1] + 1 if idx else 0
            for _ in range(n):
                f, cost, ready, delay, g, nb = s.q.pop(0)
                assert ready <= self.mf, 'draining unready filler %s' % s.name
                f(self.a); self.used += cost; s.last = self.mf
            if n and group is not None: self.note = (group, n)
    def pending(self): return {s.name: sum(it[1] for it in s.q) for s in self.streams}
```

```python
import sys, os, struct
from asmlib import *
from sched import *
def P(name, dflt): return int(os.environ.get(name, dflt))
def f32bits(x): return struct.unpack('<I', struct.pack('<f', x))[0]
PFX = "recurrent_scan__ssm_conv_s5__dense_activation_silu__prompt"
LOG2E = 1.4426950408889634

WSB      = P('WSB', 0)*1024*1024
NONCE_OFF= 0
STAT_OFF = 16384
AGG_OFF  = 65536
FS       = 128
LNF_OFF  = 256*1024
HEF_OFF  = 320*1024
HFL_OFF  = 384*1024
HSF_OFF  = 448*1024
CFL_OFF  = 512*1024
OOB      = 0x7ffffff0
XF_OFF   = 1024*1024
CF_OFF   = 4*1024*1024
HF_OFF   = 8*1024*1024
HF_RB    = 360*1024 + P('HSKEW', 0)
PF_OFF   = 32*1024*1024
if P('COMPACT', 0):
    CF_OFF = XF_OFF + 64*36*1024; HF_OFF = CF_OFF + 24*55296; PF_OFF = HF_OFF + 64*HF_RB
PY_OFF   = (PF_OFF + 4*64*6*8192) if P('COMPACT', 0) else 48*1024*1024
WS_USED  = 64*1024*1024
A_X, A_LRE, A_LIM, A_BRE, A_BIM, A_CRE, A_CIM, A_LDT, A_DSK, B_X, B_W1, B_W2, D_OUT, D_DBG, D_WS = [8*i for i in range(15)]

SLAB = 73728
E_OFF = 2*SLAB
TB_OFF = E_OFF + 3072
LDS_BYTES = TB_OFF + 8192

def ws_srd(a):
    a('s_add_u32 s%d, s%d, 0x%x' % (S_WS, SP0+2, WSB))
    a('s_addc_u32 s%d, s%d, 0' % (S_WS+1, SP0+3))
    a('s_and_b32 s%d, s%d, 0xffff' % (S_WS+1, S_WS+1))
    a('s_mov_b32 s%d, 0x%x' % (S_WS+2, WS_USED))
    a('s_mov_b32 s%d, 0x00020000' % (S_WS+3))
def srd(a, s, lo, nbytes):
    a('s_mov_b32 s%d, s%d' % (s, lo))
    a('s_and_b32 s%d, s%d, 0xffff' % (s+1, lo+1))
    a('s_mov_b32 s%d, 0x%x' % (s+2, nbytes))
    a('s_mov_b32 s%d, 0x00020000' % (s+3))

S_WS = 8; S_W1 = 12; S_BRE = 16; S_BIM = 20; S_WT = 24
S_X = 16; S_OUT = 20
S_G = 28; S_N = 29; S_W = 30; S_XB = 31; S_T = 32; S_M0W = 33
S_P = 34
S_HB = 37; S_T2 = 38; S_BB = 39; S_NL2E = 40; S_TX = 41; S_TF = 42; S_CNT = 43; S_HS = 44; S_NONCE = 45
S_MT = 46; S_NT = 47; S_SP = 48; S_WB = 49; S_WSTR = 50; S_MW = 51; S_T3 = 52; S_T4 = 53; S_MASK = 54; S_TEAM = 55
S_SHORT = S_XB
S_SW = 34
S_PF = 12
S_ORD = 56
S_HBB = S_HB; S_HN = S_TX; S_PB = S_BB
SP0 = 96

V_XO = 1; V_WD = 3; V_BD = 4; V_TR = 5; V_BR = 7; V_HO = 11; V_T0 = 13
V_XV = 16; V_ACC = 48; V_WF = 176; V_ET = 200; V_SC = 208
V_W2D = 253
def xfrag(blk, ks):
    idx = (ks*2 + blk)*4
    return ar(idx, 4) if idx < 256 else vr(V_XV + idx - 256, 4)
def acc(s, blk): return V_ACC + 32*s + 16*blk
(R_LR, R_LI, R_CR, R_CI, R_P32R, R_P32I, R_P256R, R_P256I, R_T1, R_T2, R_T3, R_T4, R_ER, R_EI, R_TG0, R_TG1, R_EA, R_SIDX, R_AO, R_TW) = range(V_SC, V_SC+20)
R_BUF = V_SC + 20
R_TWA, R_TRD, R_P512R, R_P512I, R_GH, R_AW = range(244, 250)
R_NLI = 4
R_NCI = R_TG1
R_U0 = R_T4
R_MR, R_MI = 1, 2
R_LLR, R_LLI = 7, 8
V_PL = 250
V_PA = 252
V_DUM = 13
V_RDB = 251
assert R_BUF % 4 == 0 and R_ER % 4 == 0

WSR = 's[%d:%d]' % (S_WS, S_WS+3)
label_n = [0]
OOL = []
def poll_loop(a, loads, check, sleep=1, rec=None, first=None):
    label_n[0] += 1; L = 'POLL%d' % label_n[0]
    if DIAG: a('s_mov_b32 s%d, 0' % S_CNT)
    (first or check)(a)
    a('s_cbranch_scc0 %s' % L)
    a(L + '_OK:')
    if DIAG and STNAMES and rec in STNAMES: a('s_mov_b32 s%d, s%d' % (S_STAMP + 2*STNAMES.index(rec), S_CNT))
    b = Asm()
    b(L + ':')
    b('s_mov_b32 s%d, 0' % S_CNT)
    b(L + '_R:')
    b('s_add_u32 s%d, s%d, 1' % (S_CNT, S_CNT))
    b('s_cmp_gt_u32 s%d, %d' % (S_CNT, P('SPIN', 20000)))
    b('s_cbranch_scc1 %s_OK' % L)
    b('s_sleep %d' % sleep)
    loads(b)
    b('s_waitcnt vmcnt(0)')
    check(b)
    b('s_cbranch_scc0 %s_R' % L)
    b('s_branch %s_OK' % L)
    OOL.extend(b.lines)

def split_check(F, tag, loads, check, ntail, dl, sleep, rec):
    t = Asm(); check(t); ins = [l.strip() for l in t.lines]
    F.fn(lambda a: a.wait_vm(tag), 1, 0, dl)
    for x in ins[:-ntail]: F.ins(x)
    F.fn(lambda a: poll_loop(a, loads, check, sleep, rec, lambda a: [a(x) for x in ins[-ntail:]]), ntail + 1)

def chk_all_eq(reg):
    def f(a):
        a('v_cmp_ne_u32 vcc, s%d, v%d' % (S_NONCE, reg))
        a('s_nop 1')
        a('s_cmp_eq_u64 vcc, 0')
    return f

def epi_ffn(E, s, pi, c, ready, blks=(0, 1), mixed=False):
    grp = ('acc', s)
    els = [(blk, j) for blk in blks for j in range(16)]
    n = len(els)
    r = lambda e: acc(s, els[e][0]) + els[e][1]
    t = lambda e: V_ET + (e % 8)
    I = lambda text, tag=None: E.ins(text, tag, ready, 0, grp)
    I('s_lshl_b32 s%d, s%d, 5' % (S_T2, S_P+pi))
    I('s_add_u32 s%d, s%d, s%d' % (S_T2, S_T2, S_HB))
    if mixed: I('%s s%d, s%d, s%d' % ('s_sub_u32' if c else 's_add_u32', S_T2, S_T2, S_SW))
    for step in range(n + 6):
        e = step
        if e < n: I('v_mul_f32 v%d, s%d, v%d' % (t(e), S_NL2E, r(e)))
        e = step - 1
        if 0 <= e < n: I('v_exp_f32 v%d, v%d' % (t(e), t(e)))
        e = step - 2
        if 0 <= e < n: I('v_add_f32 v%d, 1.0, v%d' % (t(e), t(e)))
        e = step - 3
        if 0 <= e < n: I('v_rcp_f32 v%d, v%d' % (t(e), t(e)))
        e = step - 4
        if 0 <= e < n: I('v_mul_f32 v%d, v%d, v%d' % (t(e), t(e), r(e)))
        e = step - 5
        if 0 <= e < n and e % 2 == 1:
            base = r(e - e % 8)
            I('v_cvt_pk_bf16_f32 v%d, v%d, v%d' % (base + (e % 8)//2, t(e-1), t(e)))
            if e % 8 == 7:
                blk = els[e][0]; fr = (e % 16)//8
                I('buffer_store_dwordx4 %s, v%d, %s, s%d offen offset:%d sc1' % (vr(base, 4), V_HO+blk, WSR, S_T2, c*2048 + fr*1024), 'st' if (pi == 2 or (mixed and c == 1)) else 'se')

def cmul_add(F, dr, di, ar_, ai, br, bi, cr, ci, ready=0):
    F.ins('v_fma_f32 v%d, -v%d, v%d, v%d' % (R_T1, ai, bi, cr), None, ready)
    F.ins('v_fma_f32 v%d, v%d, v%d, v%d' % (R_T2, ai, br, ci), None, ready)
    F.ins('v_fma_f32 v%d, v%d, v%d, v%d' % (dr, ar_, br, R_T1), None, ready)
    F.ins('v_fma_f32 v%d, v%d, v%d, v%d' % (di, ar_, bi, R_T2), None, ready)

def csq(F, dr, di, sr_, si):
    F.ins('v_mul_f32 v%d, v%d, v%d' % (R_T1, si, si))
    F.ins('v_mul_f32 v%d, v%d, v%d' % (R_T2, sr_, si))
    F.ins('v_fma_f32 v%d, v%d, v%d, -v%d' % (dr, sr_, sr_, R_T1))
    F.ins('v_add_f32 v%d, v%d, v%d' % (di, R_T2, R_T2))

def scan_tables(F):
    F.ins('v_lshlrev_b32 v%d, 16, v%d' % (R_T3, R_T3))
    F.ins('v_lshlrev_b32 v%d, 16, v%d' % (R_T4, R_T4))
    F.ins('v_lshlrev_b32 v%d, 16, v%d' % (R_ER, R_ER))
    F.ins('v_mul_f32 v%d, 0x%08x, v%d' % (R_ER, f32bits(LOG2E), R_ER))
    F.ins('v_exp_f32 v%d, v%d' % (R_ER, R_ER))
    F.ins('v_cvt_pk_bf16_f32 v%d, v%d, v%d' % (R_ER, R_ER, R_ER))
    F.ins('v_lshlrev_b32 v%d, 16, v%d' % (R_ER, R_ER))
    F.ins('v_mul_f32 v%d, v%d, v%d' % (R_T1, R_ER, R_T3))
    F.ins('v_mul_f32 v%d, v%d, v%d' % (R_T2, R_ER, R_T4))
    F.ins('v_mul_f32 v%d, 0x%08x, v%d' % (R_T1, f32bits(LOG2E), R_T1))
    F.ins('v_exp_f32 v%d, v%d' % (R_T1, R_T1))
    F.ins('v_mul_f32 v%d, 0.15915494, v%d' % (R_T2, R_T2))
    F.ins('v_rndne_f32 v%d, v%d' % (R_EI, R_T2))
    F.ins('v_sub_f32 v%d, v%d, v%d' % (R_T2, R_T2, R_EI))
    F.ins('v_cos_f32 v%d, v%d' % (R_LR, R_T2))
    F.ins('v_sin_f32 v%d, v%d' % (R_LI, R_T2))
    F.ins('v_mul_f32 v%d, v%d, v%d' % (R_LR, R_LR, R_T1))
    F.ins('v_mul_f32 v%d, v%d, v%d' % (R_LI, R_LI, R_T1))
    F.ins('v_add_f32 v%d, -1.0, v%d' % (R_ER, R_LR))
    F.ins('v_mul_f32 v%d, v%d, v%d' % (R_T1, R_T3, R_T3))
    F.ins('v_fmac_f32 v%d, v%d, v%d' % (R_T1, R_T4, R_T4))
    F.ins('v_rcp_f32 v%d, v%d' % (R_T1, R_T1))
    F.ins('v_mul_f32 v%d, v%d, v%d' % (R_CR, R_ER, R_T3))
    F.ins('v_fmac_f32 v%d, v%d, v%d' % (R_CR, R_LI, R_T4))
    F.ins('v_mul_f32 v%d, v%d, v%d' % (R_CI, R_LI, R_T3))
    F.ins('v_fma_f32 v%d, -v%d, v%d, v%d' % (R_CI, R_ER, R_T4, R_CI))
    F.ins('v_mul_f32 v%d, v%d, v%d' % (R_CR, R_CR, R_T1))
    F.ins('v_mul_f32 v%d, v%d, v%d' % (R_CI, R_CI, R_T1))
    csq(F, R_P32R, R_P32I, R_LR, R_LI)
    for _ in range(4): csq(F, R_P32R, R_P32I, R_P32R, R_P32I)
    MR, MI, Z = R_BUF, R_BUF+1, R_BUF+2
    F.ins('v_mov_b32 v%d, 0' % Z)
    F.ins('v_and_b32 v%d, 1, v%d' % (R_T3, R_SIDX)); F.ins('v_cmp_ne_u32 s[60:61], 0, v%d' % R_T3)
    F.ins('v_cndmask_b32 v%d, 1.0, v%d, s[60:61]' % (MR, R_P32R)); F.ins('v_cndmask_b32 v%d, 0, v%d, s[60:61]' % (MI, R_P32I))
    for b in (1, 2):
        if b == 1: csq(F, R_P256R, R_P256I, R_P32R, R_P32I)
        else: csq(F, R_P256R, R_P256I, R_P256R, R_P256I)
        F.ins('v_and_b32 v%d, %d, v%d' % (R_T3, 1 << b, R_SIDX)); F.ins('v_cmp_ne_u32 s[60:61], 0, v%d' % R_T3)
        cmul_add(F, R_BUF+4, R_BUF+5, R_P256R, R_P256I, MR, MI, Z, Z)
        F.ins('v_cndmask_b32 v%d, v%d, v%d, s[60:61]' % (MR, MR, R_BUF+4)); F.ins('v_cndmask_b32 v%d, v%d, v%d, s[60:61]' % (MI, MI, R_BUF+5))
    csq(F, R_P256R, R_P256I, R_P256R, R_P256I)
    csq(F, R_P512R, R_P512I, R_P256R, R_P256I)
    F.ins('v_mov_b32 v%d, s%d' % (R_TG0, S_NONCE))
    F.ins('v_sub_f32 v%d, 0, v%d' % (R_NLI, R_LI))
    F.ins('v_sub_f32 v%d, 0, v%d' % (R_NCI, R_CI))

def ureg(part, tt): return acc(part, tt >> 4) + (tt & 15)
def uim(tt): return R_U0 if tt == 0 else acc(1, 0) + tt - 1

def scan_early(F, ready, half, cb=None):
    for tt in range(16*half, 16*half + 16):
        ur, ui, un = ureg(0, tt), ureg(1, tt), uim(tt)
        F.ins('v_mul_f32 v%d, v%d, v%d' % (un, R_CI, ur), None, ready)
        F.ins('v_mul_f32 v%d, v%d, v%d' % (ur, R_CR, ur))
        F.ins('v_fmac_f32 v%d, v%d, v%d' % (un, R_CR, ui))
        F.ins('v_fmac_f32 v%d, v%d, v%d' % (ur, R_NCI, ui))
        if tt == 0: continue
        pairs = [(R_ER, R_EI), (R_T1, R_T2)]
        nr, ni = pairs[(31 - tt) % 2]
        er, ei = (ureg(0, 0), uim(0)) if tt == 1 else pairs[(32 - tt) % 2]
        F.ins('v_fma_f32 v%d, v%d, v%d, v%d' % (ni, R_LI, er, un))
        F.ins('v_fma_f32 v%d, v%d, v%d, v%d' % (nr, R_NLI, ei, ur))
        F.ins('v_fmac_f32 v%d, v%d, v%d' % (ni, R_LR, ei))
        F.ins('v_fmac_f32 v%d, v%d, v%d' % (nr, R_LR, er))
    if half == 0: return
    F.ins('v_mov_b32 v%d, v%d' % (R_MR, R_BUF)); F.ins('v_mov_b32 v%d, v%d' % (R_MI, R_BUF+1))
    F.ins('ds_write_b64 v%d, %s' % (R_EA, vr(R_ER, 2)), 'ew')
    F.fn(lambda a: (a.wait_lg('ew'), a('s_barrier')), 2, 0, 2)
    for n in range(4):
        F.ins('ds_read_b128 %s, v%d offset:%d' % (vr(R_BUF+4*n, 4), R_TW, E_OFF % 65536 + 16*n), 'er')
    F.ins('v_mov_b32 v%d, s%d' % (R_TG1, S_NONCE))
    F.ins('s_add_u32 s%d, s%d, %d' % (S_TF, S_BB, 8*9216))
    F.fn(lambda a: a.wait_lg('er'), 1, 0, 4)
    cmul_add(F, R_ER, R_EI, R_P32R, R_P32I, R_BUF, R_BUF+1, R_BUF+2, R_BUF+3)
    for s in range(2, 8):
        cmul_add(F, R_ER, R_EI, R_P32R, R_P32I, R_ER, R_EI, R_BUF+2*s, R_BUF+2*s+1)
    F.ins('buffer_store_dwordx4 %s, v%d, %s, s%d offen sc1' % (vr(R_ER, 4), R_AW, WSR, S_TF), 'st')
    F.fn(lambda a: cb(), 0)
    F.ins('v_xor_b32 v%d, 16, v%d' % (R_EA, R_TWA)); F.ins('v_xor_b32 v%d, 32, v%d' % (R_TW, R_TRD))
    F.ins('v_mov_b32 v%d, 0' % R_LLR); F.ins('v_mov_b32 v%d, 0' % R_LLI)
    for s in range(7):
        F.ins('v_cmp_lt_u32 s[60:61], %d, v%d' % (s, R_SIDX))
        cmul_add(F, R_T3, R_CI, R_P32R, R_P32I, R_LLR, R_LLI, R_BUF+2*s, R_BUF+2*s+1)
        F.ins('v_cndmask_b32 v%d, v%d, v%d, s[60:61]' % (R_LLR, R_LLR, R_T3))
        F.ins('v_cndmask_b32 v%d, v%d, v%d, s[60:61]' % (R_LLI, R_LLI, R_CI))

def agg_insts():
    out = []
    for m in range(4):
        out.append('s_add_u32 s%d, s%d, %d' % (S_TF, S_BB, 2*m*9216))
        out.append('buffer_load_dwordx4 %s, v%d, %s, s%d offen sc1' % (vr(R_BUF+4*m, 4), R_AO, WSR, S_TF))
    return out
def agg_check(a):
    for m in range(4):
        a('v_cmp_le_u32 s[60:61], %d, v%d' % (8-2*m, R_GH))
        a('v_cndmask_b32 v%d, v%d, v%d, s[60:61]' % (R_BUF+4*m+3, R_TG0, R_BUF+4*m+2))
        a('v_cndmask_b32 v%d, 0, v%d, s[60:61]' % (R_BUF+4*m, R_BUF+4*m))
        a('v_cndmask_b32 v%d, 0, v%d, s[60:61]' % (R_BUF+4*m+1, R_BUF+4*m+1))
    a('v_xor_b32 v%d, v%d, v%d' % (R_T1, R_BUF+3, R_BUF+7))
    a('v_xor_b32 v%d, v%d, v%d' % (R_T2, R_BUF+11, R_BUF+15))
    a('v_xor_b32 v%d, v%d, v%d' % (R_T3, R_BUF+3, R_TG0))
    a('v_xor_b32 v%d, v%d, v%d' % (R_CI, R_BUF+11, R_TG0))
    a('v_or3_b32 v%d, v%d, v%d, v%d' % (R_T1, R_T1, R_T2, R_T3))
    a('v_or_b32 v%d, v%d, v%d' % (R_T1, R_T1, R_CI))
    a('v_cmp_ne_u32 vcc, 0, v%d' % R_T1)
    a('s_nop 1')
    a('s_cmp_eq_u64 vcc, 0')

def scan_late(F, ready_poll):
    for t in agg_insts(): F.ins(t, 'poll', ready_poll)
    split_check(F, 'poll', lambda a: [a(t) for t in agg_insts()], agg_check, 3, P('POLLD', 34), 1, 'r_agg')
    cmul_add(F, R_ER, R_EI, R_P512R, R_P512I, R_BUF, R_BUF+1, R_BUF+4, R_BUF+5)
    for m in range(2, 4):
        cmul_add(F, R_ER, R_EI, R_P512R, R_P512I, R_ER, R_EI, R_BUF+4*m, R_BUF+4*m+1)
    F.ins('v_mov_b32 v%d, v%d' % (R_T3, R_ER)); F.ins('v_mov_b32 v%d, v%d' % (R_CI, R_EI))
    F.ins('v_permlane32_swap_b32 v%d, v%d' % (R_ER, R_T3)); F.ins('v_permlane32_swap_b32 v%d, v%d' % (R_EI, R_CI))
    cmul_add(F, R_ER, R_EI, R_P256R, R_P256I, R_ER, R_EI, R_T3, R_CI)
    cmul_add(F, R_ER, R_EI, R_MR, R_MI, R_ER, R_EI, R_LLR, R_LLI)
    pr, pi_ = R_ER, R_EI
    land = lambda part, blk: R_BUF if (part, blk) == (1, 0) else acc(part, blk) + 8
    def pack(part, blk):
        b = acc(part, blk); neg = '-' if part else ''
        src = (lambda t: uim(16*blk + t)) if part else (lambda t: b + t)
        for k in range(8):
            F.ins('v_cvt_pk_bf16_f32 v%d, %sv%d, %sv%d' % (b+k, neg, src(2*k), neg, src(2*k+1)))
        for u in range(2):
            F.ins('ds_write_b128 v%d, %s' % (R_EA if u else R_TWA, vr(b+4*u, 4)), 'tw', 0, P('TWSP', 1))
        for ph in range(2):
            for u in range(2):
                F.ins('ds_read_b64_tr_b16 %s, v%d offset:%d' % (vr(land(part, blk)+4*ph+2*u, 2), R_TW if u else R_TRD, ph*1024 + u*256), 'tr%d%d' % (part, blk))
    def store(part, blk, dl):
        b = land(part, blk)
        F.ins('s_add_u32 s%d, s%d, %d' % (S_TF, S_HS, part*36*1024))
        F.fn(lambda a: a.wait_lg('tr%d%d' % (part, blk)), 1, 0, dl)
        for ph in range(2):
            F.ins('buffer_store_dwordx4 %s, v%d, %s, s%d offen offset:%d sc1' % (vr(b+4*ph, 4), V_HO+blk, WSR, S_TF, ph*1024), 'hs', 0, P('HSSP', 0))
    for tt in range(32):
        ur, ui = ureg(0, tt), uim(tt)
        F.ins('v_fmac_f32 v%d, v%d, v%d' % (ur, R_LR, pr))
        F.ins('v_fmac_f32 v%d, v%d, v%d' % (ui, R_LI, pr))
        F.ins('v_fmac_f32 v%d, v%d, v%d' % (ur, R_NLI, pi_))
        F.ins('v_fmac_f32 v%d, v%d, v%d' % (ui, R_LR, pi_))
        pr, pi_ = ur, ui
        if tt == 16: pack(0, 0); pack(1, 0)
        if tt == 24: store(0, 0, 0); store(1, 0, 0)
    pack(0, 1); pack(1, 1); store(0, 1, 2); store(1, 1, 2)
    F.fn(hs_flag, 5, 0, P('HSD', 26), 'hsflag')

def hs_flag(a):
    a('s_add_u32 s%d, s%d, %d' % (S_TF, S_T4, HSF_OFF))
    a.wait_vm('hs'); a('s_barrier')
    a('buffer_store_dword v%d, v%d, %s, s%d offen sc1' % (R_TG0, V_PA, WSR, S_TF), 'fl')

WNT = os.environ.get('WNT', '')
XNT = os.environ.get('XNT', '')
W2NT = os.environ.get('W2NT', '')
def he_flag(a):
    a('s_add_u32 s%d, s%d, %d' % (S_T, S_T4, HEF_OFF))
    a.wait_vm('se'); a('s_barrier')
    a('buffer_store_dword v%d, v%d, %s, s%d offen sc1' % (V_PL, V_PA, WSR, S_T), 'fl')

def dma_w1(a, slab, pi, n, tag, vreg=V_WD, dm=0):
    a('s_add_u32 m0, s%d, %d' % (S_M0W, slab*SLAB + n*4096 + dm))
    a('s_add_u32 s%d, s%d, %d' % (S_T, S_P+pi, n*32*9216))
    a('buffer_load_dwordx4 v%d, s[%d:%d], s%d offen%s lds' % (vreg, S_W1, S_W1+3, S_T, WNT), tag)

def dma_b(a, kb, part, tag, vreg=V_BD, dm=0):
    a('s_add_u32 m0, s%d, %d' % (S_M0W, kb*8192 + part*4096 + dm))
    a('s_movk_i32 s%d, %d' % (S_T, kb*128))
    s = S_BIM if part else S_BRE
    a('buffer_load_dwordx4 v%d, s[%d:%d], s%d offen%s lds' % (vreg, s, s+3, S_T, WNT), tag)

def xload(a, ks, blk):
    if ks % 4 == 0: a('s_add_u32 s%d, s%d, %d' % (S_TX, S_XB, (ks//4)*4096))
    a('buffer_load_dwordx4 %s, v%d, %s, s%d offen offset:%d sc1' % (xfrag(blk, ks), V_XO+blk, WSR, S_TX, (ks % 4)*1024), 'x%d_%d' % (blk, ks))

def w2_slot(ks):
    u = ks // 2
    base = (SLAB if u < 6 else 0) + (u % 3)*6144
    return base + (ks % 2)*3072
def w2_dma(ks):
    out = ['s_add_u32 m0, s%d, %d' % (S_MW, w2_slot(ks))]
    for n in range(3):
        out.append('buffer_load_dwordx4 v%d, s[%d:%d], s%d offen offset:%d sc1%s lds' % (V_W2D+n, S_WT, S_WT+3, S_WB, n*1024, W2NT))
    out.append('s_add_u32 s%d, s%d, s%d' % (S_WB, S_WB, S_WSTR))
    return out

def phaseB_setup(F, ready):
    I = lambda t: F.ins(t, None, ready)
    def ld(a):
        a('s_load_dwordx2 s[%d:%d], s[0:1], %d' % (SP0, SP0+1, B_W2))
    F.fn(ld, 1, ready)
    I('s_and_b32 s3, s2, 7'); I('s_lshr_b32 s4, s2, 3')
    I('s_mul_i32 s5, s4, 43'); I('s_lshr_b32 s5, s5, 8')
    I('s_mul_i32 s6, s5, 6'); I('s_sub_u32 s%d, s4, s6' % S_NT)
    if P('BMAP', 1):
        I('s_lshr_b32 s%d, s3, 1' % S_SP); I('s_and_b32 s6, s3, 1'); I('s_lshl_b32 s6, s6, 2'); I('s_add_u32 s%d, s6, s5' % S_MT)
        F.fn(lambda a: (a('s_cmp_eq_u32 s5, 4'), a('s_cselect_b32 s%d, 4, s%d' % (S_SP, S_SP)), a('s_cselect_b32 s%d, s3, s%d' % (S_MT, S_MT))), 3, ready)
    else:
        I('s_mul_i32 s3, s3, 5'); I('s_add_u32 s3, s3, s5')
        I('s_lshr_b32 s%d, s3, 3' % S_SP); I('s_and_b32 s%d, s3, 7' % S_MT)
    I('s_mul_i32 s%d, s%d, 18432' % (S_MW, S_W))
    I('s_mul_i32 s3, s%d, 1152' % S_SP); I('s_mul_i32 s4, s%d, 288' % S_W); I('s_add_u32 s3, s3, s4')
    I('s_mul_i32 s3, s3, 1152'); I('s_mul_i32 s4, s%d, 192' % S_NT); I('s_add_u32 s3, s3, s4')
    I('s_lshl_b32 s4, s%d, 2' % S_NT); I('s_add_u32 s4, s4, s%d' % S_W); I('s_mul_i32 s4, s4, 55296'); I('s_add_u32 s4, s4, %d' % CF_OFF)
    for n in range(3):
        I('v_add_u32 v13, %d, v0' % (64*n))
        I('v_mul_u32_u24 v14, 0x1556, v13'); I('v_lshrrev_b32 v14, 16, v14')
        I('v_mul_u32_u24 v15, 960, v14')
        I('v_lshl_add_u32 v%d, v0, 4, v15' % (V_W2D+n))
    I('v_lshrrev_b32 v14, 5, v0'); I('v_lshlrev_b32 v14, 2, v14'); I('v_bfe_u32 v15, v0, 2, 2'); I('v_add_u32 v14, v14, v15')
    I('v_mul_u32_u24 v14, 192, v14')
    I('v_bfe_u32 v15, v0, 4, 1'); I('v_lshl_add_u32 v14, v15, 5, v14')
    I('v_and_b32 v15, 3, v0'); I('v_lshl_add_u32 v%d, v15, 3, v14' % V_RDB)
    def sel(a):
        a('s_waitcnt lgkmcnt(0)')
        a('s_cmp_eq_u32 s%d, 4' % S_SP)
        a('s_cselect_b32 s%d, s4, s3' % S_WB)
        a('s_cselect_b32 s%d, 3072, s%d' % (S_WSTR, S_WSTR))
        a('s_cselect_b32 s%d, s%d, s%d' % (S_WT, S_WS, SP0))
        a('s_cselect_b32 s%d, s%d, s%d' % (S_WT+1, S_WS+1, SP0+1))
        a('s_cselect_b32 s%d, s%d, s%d' % (S_WT+2, S_WS+2, S_WT+2))
        a('s_cselect_b64 vcc, -1, 0')
        a('s_and_b32 s%d, s%d, 0xffff' % (S_WT+1, S_WT+1))
        a('v_lshlrev_b32 v13, 4, v0')
        for n in range(3): a('v_cndmask_b32 v%d, v%d, v13, vcc' % (V_W2D+n, V_W2D+n))
        a('v_cndmask_b32 v%d, v%d, v13, vcc' % (V_RDB, V_RDB))
        a('s_add_u32 s3, s%d, %d' % (S_MW, SLAB)); a('v_add_u32 v%d, s3, v%d' % (V_RDB, V_RDB))
    I('s_mov_b32 s%d, %d' % (S_WSTR, 16*1152)); I('s_mov_b32 s%d, %d' % (S_WT+2, 4608*1152)); I('s_mov_b32 s%d, 0x00020000' % (S_WT+3))
    F.fn(sel, 5, ready, 4)
    F.fn(lambda a: srd(a, 16, SP0, 4608*1152), 4, ready)
    I('s_lshl_b32 s3, s%d, 12' % S_G); I('s_lshl_b32 s4, s%d, 7' % S_N); I('s_add_u32 s%d, s3, s4' % S_T4)
    I('v_or_b32 v%d, s%d, v0' % (V_PA, S_W)); I('v_min_u32 v%d, 1, v%d' % (V_PA, V_PA)); I('v_lshlrev_b32 v%d, 30, v%d' % (V_PA, V_PA))
    I('v_mov_b32 v%d, s%d' % (V_PL, S_NONCE))

def w2_touch(F, ready):
    I = lambda t: F.ins(t, None, ready)
    if P('P2TOUCH', 2) == 1:
        I('s_mul_i32 s3, s%d, 72' % S_G); I('s_mul_i32 s4, s%d, 18' % S_W); I('s_add_u32 s3, s3, s4')
        I('v_min_u32 v13, 17, v0'); I('v_add_u32 v13, s3, v13'); I('v_mul_u32_u24 v15, 9216, v13')
        I('buffer_load_dword v%d, v15, s[%d:%d], s%d offen' % (V_DUM, S_W1, S_W1+3, S_P+2))
    if P('P2TOUCH', 2) == 2:
        I('s_lshl_b32 s3, s2, 2'); I('s_add_u32 s3, s3, s%d' % S_W); I('s_mul_i32 s3, s3, %d' % (45*128)); I('s_add_u32 s3, s3, 256')
        I('v_min_u32 v13, 19, v0'); I('v_lshrrev_b32 v15, 2, v13'); I('v_mul_u32_u24 v15, 5, v15'); I('v_add_u32 v15, v15, v13')
        I('v_bfe_u32 v13, v13, 1, 1'); I('v_mul_u32_u24 v13, 3, v13'); I('v_add_u32 v15, v15, v13'); I('v_lshl_add_u32 v15, v15, 7, s3')
        I('buffer_load_dword v%d, v15, s[%d:%d], 0 offen' % (V_DUM, S_W1, S_W1+3))
    if P('OTOUCH', 0):
        def f0(a): a('s_load_dwordx2 s[%d:%d], s[0:1], %d' % (SP0+2, SP0+3, D_OUT))
        F.fn(f0, 1, ready)
    if P('TGLOBAL', 1):
        NT_ = P('TNL', 11)
        I('s_lshl_b32 s3, s2, 2'); I('s_add_u32 s3, s3, s%d' % S_W); I('s_mul_i32 s3, s3, %d' % (44*128))
        I('v_min_u32 v14, %d, v0' % (NT_-1)); I('v_lshl_add_u32 v14, v14, 7, s3')
        for k in range(44 // NT_):
            F.ins('buffer_load_dword v%d, v14, s[16:19], 0 offen' % V_DUM, None, ready, P('TSP', 10) if k else 0)
            I('v_add_u32 v14, %d, v14' % (NT_*128))
        if P('OTOUCH', 0):
            I('s_lshl_b32 s3, s2, 2'); I('s_add_u32 s3, s3, s%d' % S_W); I('s_mul_i32 s3, s3, %d' % (39*128))
            I('v_min_u32 v14, 12, v0'); I('v_lshl_add_u32 v14, v14, 7, s3')
            F.fn(lambda a: (a('s_waitcnt lgkmcnt(0)'), srd(a, 20, SP0+2, 2048*2304)), 5, ready + P('OTOUCH', 0))
            for k in range(3):
                F.ins('buffer_load_dword v%d, v14, s[20:23], 0 offen' % V_DUM, None, ready, P('TSP', 10))
                I('v_add_u32 v14, %d, v14' % (13*128))
        return
    I('s_lshr_b32 s3, s2, 3'); I('s_lshl_b32 s3, s3, 2'); I('s_add_u32 s3, s3, s%d' % S_W); I('s_mul_i32 s3, s3, %d' % (88*128))
    I('s_and_b32 s4, s2, 7'); I('s_mul_i32 s4, s4, 5'); I('s_add_u32 s5, s4, 4'); I('s_lshr_b32 s4, s4, 3'); I('s_lshr_b32 s5, s5, 3')
    I('s_mul_i32 s4, s4, %d' % (1152*1152)); I('s_mul_i32 s5, s5, %d' % (1152*1152)); I('s_add_u32 s4, s4, s3'); I('s_add_u32 s5, s5, s3')
    NT_ = P('TNL', 11); nper = 88 // NT_
    I('v_min_u32 v13, %d, v0' % (NT_-1)); I('v_lshlrev_b32 v13, 7, v13')
    I('v_add_u32 v14, s4, v13'); I('v_add_u32 v15, s5, v13')
    for k in range(nper):
        F.ins('buffer_load_dword v%d, v14, s[16:19], 0 offen' % V_DUM, None, ready, P('TSP', 10) if k else 0)
        F.ins('buffer_load_dword v%d, v15, s[16:19], 0 offen' % V_DUM, None, ready, P('TSP', 10))
        if k < nper-1: I('v_add_u32 v14, %d, v14' % (NT_*128)); I('v_add_u32 v15, %d, v15' % (NT_*128))

def code_touch(a):
    label_n[0] += 1; L = 'CT%d' % label_n[0]
    a('s_getpc_b64 s[4:5]'); a(L + ':')
    a('s_add_u32 s4, s4, A_DONE-%s' % L); a('s_addc_u32 s5, s5, 0')
    a('s_lshl_b32 s6, s%d, 13' % S_W)
    a('v_lshl_add_u32 v14, v0, 7, s6'); a('v_min_u32 v14, KLAST-A_DONE, v14')
    a('global_load_dword v10, v14, s[4:5]')

TDN = P('TDN', 0)
def cfl_check(a):
    label_n[0] += 1; L = 'CFS%d' % label_n[0]
    a('s_cmp_lg_u32 s%d, 4' % S_SP); a('s_cbranch_scc1 %s' % L)
    save = list(a.vm)
    a('v_min_u32 v15, 47, v0'); a('v_lshlrev_b32 v15, 7, v15'); a('s_mov_b32 s%d, %d' % (S_T3, CFL_OFF))
    ldc = 'buffer_load_dword v14, v15, %s, s%d offen sc1' % (WSR, S_T3)
    a(ldc); a('s_waitcnt vmcnt(0)')
    poll_loop(a, lambda a: a(ldc), chk_all_eq(14))
    a.vm = save
    a(L + ':')

def w2_read_br(ks):
    def f(a):
        label_n[0] += 1; L = 'WR%d' % label_n[0]
        off = w2_slot(ks) - SLAB
        a.wait_vm('v%d' % ks)
        a('s_cmp_eq_u32 s%d, 4' % S_SP); a('s_cbranch_scc1 %s_S' % L)
        save = list(a.lg)
        for dt in range(3):
            base = (ks*3 + dt)*4
            a('ds_read_b64_tr_b16 %s, v%d offset:%d' % (ar(base, 2), V_RDB, off + dt*64), 'wr%d' % ks)
            a('ds_read_b64_tr_b16 %s, v%d offset:%d' % (ar(base+2, 2), V_RDB, off + dt*64 + 1536), 'wr%d' % ks)
        a('s_branch %s_E' % L)
        a(L + '_S:')
        a.lg = save
        for dt in range(3):
            base = (ks*3 + dt)*4
            a('ds_read_b64 %s, v%d offset:%d' % (ar(base, 2), V_RDB, off + dt*1024), 'wr%d' % ks)
            a('ds_read_b64 %s, v%d offset:%d' % (ar(base+2, 2), V_RDB, off + dt*1024 + 8), 'wr%d' % ks)
        a(L + '_E:')
    return f

W0E = P('W0E', 6); W0M = P('W0M', 0)
W1E = 18; W1A = P('W1A', 0); W1P = P('W1P', 0)
assert W1P <= W1A
def phaseA(a, mixed, st, bt=0, mark=None):
    S = Sched(a); S.BYT = P('BYTA', 48); S.MAXI = P('MAXIA', 99)
    SC = S.stream('scan'); D = S.stream('dma'); E = S.stream('epi'); B = S.stream('bpre')
    TC = Stream('touch')
    EF = Stream('ef'); EF.fn(he_flag, 5); a.tagcount = {}
    NSE = 4 if mixed else 16; tse = [None]
    def ef_gate():
        if a.tagcount.get('se', 0) < NSE: return False
        if tse[0] is None: tse[0] = S.mf
        return S.mf >= tse[0] + P('EFD', 30)
    EF.gate = ef_gate
    pend = [lambda a, ks=ks, blk=blk: xload(a, ks, blk) for blk in range(2) for ks in range(36)]
    pend += [lambda a, n=n: dma_w1(a, 1, 1, n, 'w1_%d' % n) for n in range(W1E, 18)]
    sub = {}
    lo = W1E
    while lo < 18:
        hi = min(18, lo + P('W1SUB', 6)); sub[2*lo] = hi - 1; lo = hi
    for _ in range(P('XBURST', 16)): pend.pop(0)(a)
    a.wait_vm('w1')
    nstamp(a, 'xb'); a('s_barrier'); nstamp(a, 'bar0')
    if mixed: scan_tables(SC)
    phaseB_setup(B, 0)
    frs = []
    for blk in range(2):
        for ks in range(36):
            for c in range(2): frs.append(('p1', blk, ks, c))
    for ci in range(4):
        for ks in range(36): frs.append(('c', ci, ks, ci & 1))
    consumed = [0]; trbase = [0, 0]; reads = []
    def pre(n):
        kind, ci, ks, c = frs[n]
        def f(a):
            if kind == 'p1' and mixed and ks == 32 and c == 0:
                for r in range(4): a('v_add_u32 v%d, 0x10000, v%d' % (V_BR+r, V_BR+r))
            if kind == 'p1' and mixed and ks == 0 and c == 0 and ci == 1:
                for r in range(4): a('v_subrev_u32 v%d, 0x10000, v%d' % (V_BR+r, V_BR+r))
            if kind == 'c' and ci == 0 and ks in sub:
                while ('w1_%d' % sub[ks]) not in a.seen: pend.pop(0)(a)
                a.wait_vm('w1_%d' % sub[ks])
                if ks: a('s_barrier')
            if kind == 'c' and ci == 0 and ks == 0:
                a('s_waitcnt lgkmcnt(0)'); a('s_barrier')
                for k in range(18): D.fn(lambda a, k=k: dma_w1(a, 0, 2, k, 'w2'), 4, 0, P('W2SP', 3))
            if kind == 'c' and ci == 2 and ks == 0:
                assert not pend and not D.q and not TC.q
                a.wait_vm('w2'); a('s_waitcnt lgkmcnt(0)'); a('s_barrier')
            if not (kind == 'p1' and mixed):
                slab = 0 if kind == 'p1' else (1 if ci < 2 else 0)
                bias = slab*SLAB + (36864 if ks >= 18 else 0)
                if trbase[c] != bias:
                    a('v_add_u32 v%d, 0x%x, v%d' % (V_TR+c, (bias - trbase[c]) & 0xffffffff, V_TR+c)); trbase[c] = bias
        return f
    for n, (kind, ci, ks, c) in enumerate(frs):
        dst = V_WF + 4*(n % 6); tag = 'f%d' % n
        if kind == 'p1' and mixed:
            reads.append((n, lambda a, n=n, dst=dst, ks=ks, c=c, tag=tag: (pre(n)(a), a('ds_read_b128 %s, v%d offset:%d' % (vr(dst, 4), V_BR + (ks & 3), ((ks >> 2)*8192 + c*4096) % 65536), tag))))
        else:
            off = (ks % 18)*2048
            reads.append((n, lambda a, n=n, dst=dst, c=c, off=off, tag=tag: (pre(n)(a), a('ds_read_b64_tr_b16 %s, v%d offset:%d' % (vr(dst, 2), V_TR+c, off), tag))))
            reads.append((n, lambda a, dst=dst, c=c, off=off, tag=tag: a('ds_read_b64_tr_b16 %s, v%d offset:%d' % (vr(dst+2, 2), V_TR+c, off+512), tag)))
    def issue_reads(quota):
        while reads and quota > 0 and reads[0][0] < consumed[0] + 6:
            S.must_fn(reads.pop(0)[1]); quota -= 1
    def issued(n): return not reads or reads[0][0] > n
    accset = ([2, 3, 2, 0] if P('SC2', 1) else [2, 3, 2, 3]) if mixed else [2, 3, 0, 1]
    issue_reads(100)
    n = 0
    while n < len(frs):
        kind, ci, ks, c = frs[n]
        S.GAP = P('GP1M' if mixed else 'GP1P', 6) if kind == 'p1' else Sched.GAP
        if kind == 'p1' and ks == 1 and c == 0 and ci == 0: stamp(a, st); nstamp(a, 'p1s')
        if kind == 'p1' and ks == 0 and c == 0 and ci == 1:
            nstamp(a, 'p1b')
            S.drain(stream=B)
            if P('W2TOUCH', 1):
                w2_touch(TC, S.mf + P('TAT', 44)); S.always = [TC]
            if mixed: scan_early(SC, S.mf + 3, 0)
            else:
                epi_ffn(E, 0, 0, 0, S.mf + 3, (0,)); epi_ffn(E, 1, 0, 1, S.mf + 3, (0,))
        if kind == 'c' and ks == 0:
            if ci in (0, 2): stamp(a, st)
            nstamp(a, 'c%d' % ci)
            S.note = None; S.drain(('acc', accset[ci]))
            if S.note: sys.stderr.write('  forced drain at chunk %d: %s\n' % (ci, S.note))
            rdy = S.mf + 2
            if ci == 0:
                if mixed:
                    scan_early(SC, rdy, 1, lambda: setattr(S, 'streams', [D, SC, E, B])); scan_late(SC, S.mf + P('POLLAT', 100))
                else:
                    epi_ffn(E, 0, 0, 0, rdy, (1,)); epi_ffn(E, 1, 0, 1, rdy, (1,))
            else:
                epi_ffn(E, accset[ci-1], 1 + (ci-1)//2, (ci-1) & 1, rdy, (0, 1), mixed)
            if ci == 1:
                S.streams = [D, SC, E, B]
            if ci == 0:
                S.drain(stream=B)
            if ci == 2:
                mark(S)
                if bt:
                    B.ins('v_min_u32 v15, 47, v0'); B.ins('v_lshlrev_b32 v15, 7, v15'); B.ins('s_mov_b32 s%d, %d' % (S_T3, CFL_OFF))
                    ldc = 'buffer_load_dword v10, v15, %s, s%d offen sc1' % (WSR, S_T3)
                    B.ins(ldc, 'cfl')
                    B.fn(lambda a: (a.wait_vm('cfl'), poll_loop(a, lambda a: a(ldc), chk_all_eq(10))), 5, 0, 20)
                if P('CTOUCH', 0): B.fn(code_touch, 5, S.mf + 2)
                B.ins('s_mov_b32 s%d, 0x%x' % (S_MASK, 0x3ffff if bt else 0x3fffffff)); B.ins('s_mov_b32 s%d, %d' % (S_PF, HSF_OFF if bt else HEF_OFF))
                B.ins('s_lshl_b32 s3, s%d, 12' % S_MT); B.ins('s_add_u32 s%d, s%d, s3' % (S_PF, S_PF))
                B.fn(lambda a: flag_lanes(a, 0), 5)
                for k2 in range(6):
                    for t in w2_dma(k2): B.ins(t, 'v%d' % k2, S.mf + ((24 + 8*k2) if bt else (P('W2AT', 4) + 11*k2)), (2 if bt else P('DMSP', 3)) if 'lds' in t else 0)
                S.streams = [EF, B, SC, E]
            if ci == 3:
                if mixed and P('SC2', 1):
                    keep = [it for it in SC.q if it[4] == 'hsflag']; SC.q = [it for it in SC.q if it[4] != 'hsflag']
                    sys.stderr.write('  forced SC drain %s\n' % S.pending()); S.drain(stream=SC); SC.q = keep
                for k2 in range(6):
                    B.fn(lambda a, k2=k2: a.wait_vm('v%d' % k2), 1, S.mf + 5 + 11*k2)
                    tmp = Asm(); w2_read(tmp, k2, bt, V_RDB)
                    for j, t in enumerate(tmp.lines): B.ins(t.strip(), 'wr%d' % k2, 0, 1 if j % 2 == 0 and j else 0)
                    B.fn(lambda a, k2=k2: a.wait_lg('wr%d' % k2), 1, 0, 3)
                    for t in w2_dma(k2+6): B.ins(t, 'v%d' % (k2+6), 0, P('DMSP2', 2) if 'lds' in t else 0)
                S.streams = [EF, B, SC, E]
        while not issued(n): issue_reads(1)
        S.fill(reserve=2 if kind == 'p1' and c == 0 else 1)
        if kind == 'p1':
            if c == 0:
                S.must_fn(lambda a: a.wait_vm('x%d_%d' % (ci, ks)))
                S.must_fn(lambda a: a.wait_lg('f%d' % (n+1) if issued(n+1) else 'f%d' % n))
            else: S.must_fn(lambda a: a.wait_lg('f%d' % n))
        else:
            if ks % 2 == 0 and n + 1 < len(frs) and issued(n+1): S.must_fn(lambda a: a.wait_lg('f%d' % (n+1)))
            S.must_fn(lambda a: a.wait_lg('f%d' % n))
        blks = (ci,) if kind == 'p1' else (0, 1)
        for blk in blks:
            sset = c if kind == 'p1' else accset[ci]
            d = vr(acc(sset, blk), 16); w = vr(V_WF + 4*(n % 6), 4); x = xfrag(blk, ks)
            A, Bo = (x, w) if (mixed and kind == 'p1') else (w, x)
            S.mfma('v_mfma_f32_32x32x16_bf16 %s, %s, %s, %s' % (d, A, Bo, d if ks else '0'))
            if blk == blks[-1]: consumed[0] = n + 1
            issue_reads(2 if kind == 'p1' else 1)
            if pend and (c == 0 if kind == 'p1' else blk == 0): S.must_fn(pend.pop(0))
        n += 1
    sys.stderr.write('phaseA mixed=%d pending at end: %s\n' % (mixed, S.pending()))
    stamp(a, st); nstamp(a, 'tl0')
    S.mf += 1000
    S.drain(stream=B)
    a('s_barrier')
    epi_ffn(E, accset[3], 2, 1, 0, (0, 1), mixed)
    assert not SC.q and (tse[0] is not None or not EF.q)
    q = E.q; E.q = []
    at = max(0, (tse[0] + P('EFD', 30) - (S.mf - 1000))*7)
    dm = []
    for k2 in range(12, 12 + TDN):
        t = w2_dma(k2); dm += [(t[0:2], k2), (t[2:3], k2), (t[3:5], k2)]
    sp_ = max(1, (len(q) - P('TD0', 10)) // max(1, 3*TDN))
    for i, it in enumerate(q):
        if EF.q and i >= at: EF.q.pop()[0](a)
        if i == max(0, len(q) - P('EPA', 150)): flag_poll('hp')[0](a)
        it[0](a)
        if dm and i >= P('TD0', 10) and (i - P('TD0', 10)) % sp_ == 0:
            ts, k2 = dm.pop(0)
            for t in ts: a(t, 'v%d' % k2)
    assert not dm and a.vm[-1] == 'st'
    nstamp(a, 'tl1')
    if not bt:
        a.wait_vm('hp')
        ld, chk = flag_poll()
        poll_loop(a, ld, chk, 1, 'r_h')
    a.wait_vm('v11')
    stamp(a, st); nstamp(a, 't3')

VB_HO = 1; VB_O = 2; VB_RD = 5; VB_RW = 6; VB_T = 7; VB_RR = 10; VB_PO = 13
VB_ACC = 16; VB_RB = 112; VB_H = 152
A_XX = 216
RED = 36864
S_FB = 34
def wfrag(ks, dt): return ar((ks*3 + dt)*4, 4)
def accr(s, dt): return VB_ACC + 48*s + 16*dt
X = os.environ.get('X', '')

def w2_read(a, ks, ssm, reg=None):
    sl = w2_slot(ks); hi = sl >= SLAB
    for dt in range(3):
        base = (ks*3 + dt)*4
        if reg is None: reg = VB_RD
        off = sl - (SLAB if hi else 0)
        if ssm:
            a('ds_read_b128 %s, v%d offset:%d' % (ar(base, 4), reg, off + dt*1024), 'wr%d' % ks)
        else:
            a('ds_read_b64_tr_b16 %s, v%d offset:%d' % (ar(base, 2), reg, off + dt*64), 'wr%d' % ks)
            a('ds_read_b64_tr_b16 %s, v%d offset:%d' % (ar(base+2, 2), reg, off + dt*64 + 1536), 'wr%d' % ks)

def reduce_fill(R, i, ready, send, ssm, io=None, dl=1, wrd=2):
    s = i & 1; grp = ('acc', s); buf = s*RED
    if io is None: io = i
    for q in range(1, 4):
        for dt in range(3):
            R.ins('ds_write_b128 v%d, %s offset:%d' % (VB_RW, vr(accr(s, dt) + 4*q, 4), buf + (q-1)*3072 + dt*1024), 'rw%d' % i, ready, wrd, grp)
    R.fn(lambda a: (a.wait_lg('rw%d' % i), a('s_barrier')), 2, 0, 2*dl)
    for q in range(1, 4):
        for dt in range(3):
            R.ins('ds_read_b128 %s, v%d offset:%d' % (vr(VB_RB + ((q-1)*3+dt)*4, 4), VB_RR+q-1, buf + dt*1024), 'rr%d' % i)
    R.fn(lambda a: a.wait_lg('rr%d' % i), 1, 0, 4*dl)
    for k in range(12):
        own = accr(s, k//4) + k % 4
        R.ins('v_add_f32 v%d, v%d, v%d' % (VB_RB+k, VB_RB+k, own), None, 0, 0, grp)
        R.ins('v_add_f32 v%d, v%d, v%d' % (VB_RB+12+k, VB_RB+12+k, VB_RB+24+k))
    SB = VB_RB + 24
    for k in range(12):
        dst = VB_RB + k
        R.ins('v_add_f32 v%d, v%d, v%d' % (dst, VB_RB+k, VB_RB+12+k), 'sum%d' % i)
    if send:
        ng = 2
        if True:
            for p in range(6): R.ins('v_cvt_pk_bf16_f32 v%d, v%d, v%d' % (SB + 4*(p//3) + p % 3, VB_RB+2*p, VB_RB+2*p+1))
        for g in range(ng): R.ins('v_mov_b32 v%d, s%d' % (SB + 4*g + 3, S_NONCE))
        R.ins('s_mul_i32 s%d, s%d, %d' % (S_TF, S_ORD+io, 6*4*ng*1024))
        R.ins('s_add_u32 s%d, s%d, s%d' % (S_TF, S_TF, S_PB))
        for g in range(ng):
            if 'nost' in X: continue
            R.ins('buffer_store_dwordx4 %s, v%d, %s, s%d offen offset:%d%s' % (vr(SB+4*g, 4), VB_PO, WSR, S_TF, g*1024, '' if 'plainst' in X else ' sc1'), 'st', 0, 2 if g else 0)

def ffn_loads(quads):
    return ['buffer_load_dwordx4 %s, v%d, %s, s%d offen offset:%d sc1' % (vr(quads[src*2+g], 4), VB_PO, WSR, S_FB+src, g*1024) for src in range(3) for g in range(2)]
def y_loads(quads):
    return ['buffer_load_dwordx4 %s, v%d, %s, s%d offen offset:%d sc1' % (vr(quads[g], 4), VB_PO, WSR, S_T2, g*1024) for g in range(2)]
def tag_check(quads):
    def f(a):
        t = [q+3 for q in quads]
        for op, d in (('v_min3_u32', VB_T), ('v_max3_u32', VB_T+1)):
            a('%s v%d, v%d, v%d, v%d' % (op, d, t[0], t[1], t[2 % len(t)]))
            r = t[3:]
            while r:
                a('%s v%d, v%d, v%d, v%d' % (op, d, d, r[0], r[1] if len(r) > 1 else r[0])); r = r[2:]
        a('v_xor_b32 v%d, s%d, v%d' % (VB_T, S_NONCE, VB_T)); a('v_xor_b32 v%d, s%d, v%d' % (VB_T+1, S_NONCE, VB_T+1))
        a('v_or_b32 v%d, v%d, v%d' % (VB_T, VB_T, VB_T+1))
        a('v_cmp_ne_u32 vcc, 0, v%d' % VB_T)
        a('s_nop 1')
        a('s_cmp_eq_u64 vcc, 0')
    return f
def checked(G, tag, loads, quads, dl):
    split_check(G, tag, lambda a: [a(t) for t in loads], tag_check(quads), 3, dl, P('RSLEEP', 8) if dl else P('RSL2', 1), 'r_' + tag)
def presum(G, quads, ps):
    pk = lambda src, k: quads[src*2 + (k//2)//3] + (k//2) % 3
    unp = lambda d, src, k: ('v_and_b32 v%d, s15, v%d' if k % 2 else 'v_lshlrev_b32 v%d, 16, v%d') % (d, pk(src, k))
    for k in range(12):
        G.ins(unp(ps(k), 0, k)); G.ins(unp(VB_T, 1, k)); G.ins(unp(VB_T+1, 2, k))
        G.ins('v_add_f32 v%d, v%d, v%d' % (ps(k), ps(k), VB_T)); G.ins('v_add_f32 v%d, v%d, v%d' % (ps(k), ps(k), VB_T+1))
def prep_s(G, j, yq, sq):
    for k in range(12):
        pk = yq[(k//2)//3] + (k//2) % 3; s = sq[k//4] + k % 4
        G.ins('v_accvgpr_read_b32 v%d, a%d' % (VB_T + k % 2, A_XX+12*j+k))
        G.ins(('v_and_b32 v%d, s%d, v%d' % (s, S_HM, pk)) if k % 2 else ('v_lshlrev_b32 v%d, 16, v%d' % (s, pk)))
        G.ins('v_and_b32 v%d, s%d, v%d' % (VB_T + k % 2, S_HM, VB_T + k % 2))
        G.ins('v_fma_f32 v%d, 2.0, v%d, v%d' % (s, s, VB_T + k % 2))
S_HM = 15
OUTFL = os.environ.get('OUTFL', ' sc1,')
def chain(G, j, ps, yq, first=None):
    y = lambda k: yq[k//4] + k % 4
    o = lambda k: VB_RB + k
    t1 = lambda k: VB_RB + 12 + k
    t2 = lambda k: VB_RB + 24 + k
    rnd = [lambda k: None if k % 2 else 'v_cvt_pk_bf16_f32 v%d, v%d, v%d' % (o(k+1), o(k), o(k+1)),
           lambda k: ('v_and_b32 v%d, 0xffff0000, v%d' % (o(k), o(k))) if k % 2 else ('v_lshlrev_b32 v%d, 16, v%d' % (o(k), o(k+1)))]
    rnd = []
    stages = [lambda k: 'v_add_f32 v%d, v%d, v%d' % (o(k), o(k), ps(k))] + rnd + [
        lambda k: 'v_mul_f32 v%d, s%d, v%d' % (t1(k), S_NL2E, o(k)),
        lambda k: 'v_exp_f32 v%d, v%d' % (t1(k), t1(k)),
        lambda k: 'v_accvgpr_read_b32 v%d, a%d' % (t2(k), A_XX+12*j+k),
        lambda k: 'v_add_f32 v%d, 1.0, v%d' % (t1(k), t1(k)),
        lambda k: 'v_rcp_f32 v%d, v%d' % (t1(k), t1(k)),
        lambda k: 'v_lshlrev_b32 v%d, 16, v%d' % (t2(k), t2(k)),
        lambda k: 'v_mul_f32 v%d, v%d, v%d' % (o(k), o(k), t1(k))] + rnd + [
        lambda k: 'v_fma_f32 v%d, v%d, v%d, v%d' % (t2(k), y(k), o(k), t2(k))]
    if os.environ.get('PERT'): stages.append(lambda k: 'v_mul_f32 v%d, 0x%08x, v%d' % (t2(k), f32bits(float(os.environ['PERT'])), t2(k)))
    X4 = P('X4', 1) and (j == 0 or P('X4B', 0)); fl = OUTFL.split(',')[j % len(OUTFL.split(','))]
    if not X4:
        stages.append(lambda k: 'buffer_store_dword v%d, v%d, s[%d:%d], s%d offen offset:%d%s' % (t2(k), VB_O+1 + (k % 4)//2, S_OUT, S_OUT+3, S_T3, (k % 2)*2304 + (k//4)*128, fl))
    if first: G.fn(first, 0)
    for k0 in range(0, 12, 4):
        for stg in stages:
            for k in range(k0, k0+4):
                t = stg(k)
                if t: G.ins(t, 'out')
        if X4:
            for src, dst, bit, qp, mi in ((t2, t1, 1, '[1,0,3,2]', 0), (t1, o, 2, '[2,3,0,1]', 2)):
                for hi in (1, 0):
                    def f(a, src=src, dst=dst, bit=bit, qp=qp, mi=mi, hi=hi, k0=k0):
                        a('s_mov_b64 vcc, s[%d:%d]' % (S_QM[mi+hi], S_QM[mi+hi]+1))
                        for k in range(4):
                            if bool(k & bit) == bool(hi):
                                a('v_cndmask_b32_dpp v%d, v%d, v%d, vcc quad_perm:%s row_mask:0xf bank_mask:0xf' % (dst(k0+k), src(k0+(k ^ bit)), src(k0+k), qp))
                    G.fn(f, 3)
            G.ins('buffer_store_dwordx4 %s, v%d, s[%d:%d], s%d offen offset:%d%s' % (vr(o(k0), 4), VB_RD, S_OUT, S_OUT+3, S_T3, (k0//4)*128, fl), 'out')
S_QM = (24, 26, 28, 50)

XT = 224
def xx_setup(a):
    a('s_load_dwordx2 s[%d:%d], s[0:1], %d' % (SP0, SP0+1, A_X))
    a('s_load_dwordx2 s[%d:%d], s[0:1], %d' % (SP0+2, SP0+3, D_OUT))
    a('s_load_dwordx2 s[%d:%d], s[0:1], %d' % (SP0+4, SP0+5, A_DSK))
def xx_fill(G):
    T = XT; I = G.ins
    SA, DA = 253, 254
    I('s_lshl_b32 s3, s%d, 8' % S_MT); I('s_lshl_b32 s4, s%d, 6' % S_SP); I('s_add_u32 s3, s3, s4')
    I('s_lshl_b32 s4, s%d, 2' % S_W); I('s_add_u32 s3, s3, s4')
    I('v_and_b32 v%d, 32, v0' % VB_O); I('v_add_u32 v%d, s3, v%d' % (VB_O, VB_O))
    I('v_lshlrev_b32 v%d, 3, v%d' % (SA, VB_O))
    I('v_mul_u32_u24 v%d, 576, v%d' % (VB_O, VB_O))
    I('v_and_b32 v%d, 31, v0' % (VB_O+1)); I('s_mul_i32 s4, s%d, 96' % S_NT)
    I('v_add_u32 v%d, s4, v%d' % (DA, VB_O+1)); I('v_add_u32 v%d, v%d, v%d' % (VB_O, VB_O, DA)); I('v_lshlrev_b32 v%d, 1, v%d' % (DA, DA))
    I('v_lshlrev_b32 v%d, 2, v%d' % (VB_O+1, VB_O)); I('v_add_u32 v%d, 4608, v%d' % (VB_O+2, VB_O+1)); I('v_lshlrev_b32 v%d, 1, v%d' % (VB_O, VB_O))
    if P('X4', 1):
        I('v_and_b32 v%d, 3, v0' % VB_RD); I('v_mul_u32_u24 v%d, 2300, v%d' % (VB_RD, VB_RD)); I('v_add_u32 v%d, v%d, v%d' % (VB_RD, VB_O+1, VB_RD))
        for r, v in zip(S_QM, (0x55555555, 0xaaaaaaaa, 0x33333333, 0xcccccccc)):
            I('s_mov_b32 s%d, 0x%x' % (r, v)); I('s_mov_b32 s%d, s%d' % (r+1, r))
    G.fn(lambda a: srd(a, S_X, SP0, 2048*1152), 4); G.fn(lambda a: srd(a, S_OUT, SP0+2, 2048*2304), 4)
    I('s_movk_i32 s7, %d' % (16*1152)); I('s_mov_b32 s6, %d' % STAT_OFF)
    ST_, DK, TT = 232, 248, 251
    for dt in range(3):
        I('global_load_ushort v%d, v%d, s[%d:%d] offset:%d' % (DK+dt, DA, SP0+4, SP0+5, dt*64), 'xx')
    for j in range(2):
        for u in range(2):
            I('buffer_load_dwordx4 %s, v%d, %s, s6 offen offset:%d sc1' % (vr(ST_+8*j+4*u, 4), SA, WSR, j*128 + u*16), 'xx', 0, 1)
    for j in range(2):
        for k in range(12):
            I('buffer_load_ushort a%d, v%d, s[%d:%d], %s offen offset:%d' % (A_XX+12*j+k, VB_O, S_X, S_X+3, 's7' if j else '0', (k % 4)*1152 + (k//4)*64), 'xx%d' % j, 0, P('XXSP', 2))
    for j in range(2):
        G.fn(lambda a, j=j: a.wait_vm('xx%d' % j), 1, 0, P('XXD', 6) if j == 0 else 0)
        if j == 0:
            for dt in range(3): I('v_lshlrev_b32 v%d, 16, v%d' % (DK+dt, DK+dt))
        x = lambda k: 14 + k % 2
        t = lambda k: TT + k % 2
        mm = lambda k: ST_+8*j+2*(k % 4)
        st = [lambda k: 'v_accvgpr_read_b32 v%d, a%d' % (x(k), A_XX+12*j+k),
              lambda k: 'v_lshlrev_b32 v%d, 16, v%d' % (x(k), x(k)),
              lambda k: 'v_sub_f32 v%d, v%d, v%d' % (t(k), x(k), mm(k)),
              lambda k: 'v_mul_f32 v%d, v%d, v%d' % (t(k), t(k), mm(k)+1),
              lambda k: 'v_mul_f32 v%d, v%d, v%d' % (t(k), t(k), DK+k//4),
              lambda k: 'v_cvt_pk_bf16_f32 v%d, v%d, v%d' % (t(k), x(k), t(k)),
              lambda k: 'v_accvgpr_write_b32 a%d, v%d' % (A_XX+12*j+k, t(k))]
        for k0 in range(0, 12, 2):
            for s in st:
                for k in range(k0, k0+2): I(s(k))

FPA = 9; FPL = 8
def flag_lanes(a, two):
    a('v_and_b32 v14, 31, v0'); a('v_lshrrev_b32 v15, v14, s%d' % S_MASK); a('v_and_b32 v15, 1, v15'); a('v_xor_b32 v15, 1, v15')
    a('v_lshlrev_b32 v%d, 7, %s' % (FPA, 'v0' if two else 'v14'))
    a('v_lshl_add_u32 v%d, v15, 30, v%d' % (FPA, FPA))
def flag_poll(tag='hp'):
    def ld(a):
        a('buffer_load_dword v%d, v%d, %s, s%d offen sc1' % (FPL, FPA, WSR, S_PF), tag)
    def chk(a):
        a('v_cmp_ne_u32 vcc, s%d, v%d' % (S_NONCE, FPL))
        a('s_nop 1')
        a('s_or_b32 s4, vcc_lo, vcc_hi'); a('s_and_b32 s4, s4, s%d' % S_MASK)
        a('s_cmp_eq_u32 s4, 0')
    return ld, chk

def b_common(a, ssm, part=0):
  if part != 2:
    a('s_mul_i32 s%d, s%d, %d' % (S_HBB, S_MT, 8*HF_RB)); a('s_mul_i32 s3, s%d, %d' % (S_SP, 72*1024))
    a('s_add_u32 s%d, s%d, s3' % (S_HBB, S_HBB)); a('s_add_u32 s%d, s%d, %d' % (S_HBB, S_HBB, HF_OFF))
    a('s_lshl_b32 s4, s%d, 3' % S_W)
    a('v_add_u32 v14, s4, v0'); a('v_and_b32 v14, 31, v14'); a('v_and_b32 v15, 32, v0'); a('v_add_u32 v14, v14, v15')
    a('s_mul_i32 s3, s%d, %d' % (S_W, 18*1024)); a('v_lshl_add_u32 v%d, v14, 4, s3' % VB_HO)
  if part != 1:
    a('s_mul_i32 s%d, s%d, 48' % (S_TEAM, S_MT)); a('s_add_u32 s%d, s%d, s%d' % (S_TEAM, S_TEAM, S_NT))
    if True:
        a('s_lshl_b32 s3, s%d, 13' % S_TEAM); a('s_mul_i32 s4, s%d, %d' % (S_SP, 64*6*8192)); a('s_add_u32 s3, s3, s4'); a('s_add_u32 s%d, s3, %d' % (S_PB, PF_OFF))
        a('s_lshl_b32 s3, s%d, 11' % S_W); a('v_lshl_add_u32 v%d, v0, 4, s3' % VB_PO)
    for q in range(1, 4):
        a('s_sub_u32 s3, s%d, %d' % (S_W, q)); a('s_and_b32 s3, s3, 3'); a('s_mul_i32 s3, s3, 9216'); a('s_add_u32 s3, s3, %d' % ((q-1)*3072 + SLAB))
        a('v_lshl_add_u32 v%d, v0, 4, s3' % (VB_RR+q-1))
    a('s_mul_i32 s3, s%d, 9216' % S_W); a('s_add_u32 s3, s3, %d' % SLAB); a('v_lshl_add_u32 v%d, v0, 4, s3' % VB_RW)

def phaseB(a, ssm, st):
    os.environ['CLD'] = os.environ.get('CLDB', '2'); os.environ['CST'] = os.environ.get('CSTB', '3')
    NH = P('NHS', 24) if ssm else P('NHF', 18)
    hslot = lambda n: VB_H + 4*(n % NH)
    KE = P('KE', 8)
    seq = [(0, k) for k in range(KE)] + [(1, k) for k in range(KE)] + [(0, k) for k in range(KE, 18)] + [(1, k) for k in range(KE, 18)]
    seq += [(i, ks) for i in range(2, 8) for ks in range(18)]
    if ssm: seq = [(i, ks) for i in range(8) for ks in range(18)]
    def hload(a, n):
        i, ks = seq[n]
        if n == 0 or seq[n-1][0] != i:
            a('s_mul_i32 s%d, s%d, %d' % (S_HN, S_ORD+i, HF_RB)); a('s_add_u32 s%d, s%d, s%d' % (S_HN, S_HN, S_HBB))
            if ks: a('s_add_u32 s%d, s%d, %d' % (S_HN, S_HN, (ks//4)*4096))
        elif ks % 4 == 0: a('s_add_u32 s%d, s%d, 4096' % (S_HN, S_HN))
        a('buffer_load_dwordx4 %s, v%d, %s, s%d offen offset:%d sc1' % (vr(hslot(n), 4), VB_HO, WSR, S_HN, (ks % 4)*1024), 'h%d' % n)
    a.tagcount = {}
    a.vm = ['st']; a.seen |= {'st'}
    nld = [0]; okl = [ssm]
    def next_h(a):
        if nld[0] < 144: hload(a, nld[0]); nld[0] += 1
    a('s_add_u32 s%d, s%d, %d' % (S_TF, S_T4, HFL_OFF))
    if ssm:
        for i, r in enumerate((0, 2, 4, 6, 1, 3, 3, 3)): a('s_mov_b32 s%d, %d' % (S_ORD+i, r))
        a('s_mov_b32 s%d, 1' % S_SHORT); a('s_mov_b32 s%d, 0' % S_T3)
        for k2 in range(12 + TDN, 15):
            for t in w2_dma(k2): a(t, 'v%d' % k2)
        b_common(a, ssm)
    else:
        for i in range(3):
            a('s_add_u32 s3, s%d, %d' % (S_SP, i+1)); a('s_and_b32 s3, s3, 3'); a('s_lshl_b32 s%d, s3, 1' % (S_ORD+i)); a('s_add_u32 s%d, s%d, 1' % (S_ORD+3+i, S_ORD+i))
        b_common(a, ssm, 1)
        for _ in range(P('HBURST', 10)): next_h(a)
        a('s_lshl_b32 s%d, s%d, 1' % (S_ORD+6, S_SP)); a('s_add_u32 s%d, s%d, 1' % (S_ORD+7, S_ORD+6))
        xx_setup(a)
    FE = P('FE', 1)
    a('v_mov_b32 v%d, v%d' % (VB_RD, V_RDB))
    for ks in range(6, 6+FE): w2_read(a, ks, ssm)
    a.wait_vm('st'); a('s_barrier')
    a('buffer_store_dword v%d, v%d, %s, s%d offen sc1' % (V_PL, V_PA, WSR, S_TF), 'fl')
    nstamp(a, 'flg')
    if ssm:
        for k2 in range(15, 18):
            for t in w2_dma(k2): a(t, 'v%d' % k2)
    for ks in range(6+FE, 12): w2_read(a, ks, ssm)
    if not ssm: b_common(a, ssm, 2)
    a('v_subrev_u32 v%d, %d, v%d' % (VB_RD, SLAB, V_RDB))
    a('s_waitcnt lgkmcnt(0)')
    if ssm:
        ld, chk = flag_poll()
        poll_loop(a, ld, chk, 1, 'r_h')
        if TDN < 6: a.wait_vm('v17')
        for ks in range(12, 18): w2_read(a, ks, ssm)
        a('s_waitcnt lgkmcnt(0)')
        a('B_SSM2:')
        a.vm = []
        for _ in range(P('HBURST', 10)): next_h(a)
    S = Sched(a); R = S.stream('red'); G = S.stream('xchg'); C = S.stream('chain')
    C.gate = lambda: not R.q and 'prepA' in a.seen
    R.ins('s_barrier', None, 12)
    if not ssm:
        XR = VB_H + 4*NH
        L = [XR + 4*k for k in range(6)]
        PSr = [XR+24+k for k in range(8)] + [VB_RB+36+k for k in range(4)]
        psA = lambda k: PSr[k]
        yA = L[:2]; sA = L[2:5]
        acq = [accr(0, dt) + 4*q for q in (1, 2, 3) for dt in range(3)]
        fB = L[0:2] + acq[:4]; yB = [hslot(126+k) for k in range(2)]; sB = [hslot(128+k) for k in range(3)]
        psB = lambda k: acq[6 + k//4] + k % 4
    if not ssm:
        I = G.ins
        l2, c2 = flag_poll('hl')
        I('s_lshl_b32 s3, s%d, 3' % S_SP); I('s_lshl_b32 s3, 0xff, s3'); I('s_lshl_b32 s5, s%d, 2' % S_SP); I('s_lshl_b32 s5, 0x3f, s5')
        I('s_or_b32 s3, s3, s5'); I('s_and_b32 s%d, s%d, s3' % (S_MASK, S_MASK))
        I('s_add_u32 s%d, s%d, %d' % (S_PF, S_PF, HFL_OFF - HEF_OFF))
        for k2 in range(12 + TDN, 18):
            for t in (w2_dma(k2) if 'nod' not in X else ['s_nop 0']): I(t, 'v%d' % k2, P('D15', 6) + P('D15S', 2)*(k2-12-TDN), P('D15D', 0) if 'lds' in t else 0)
        C.gate, gsave = None, C.gate
        C.fn(l2, 2, P('LP0', 16)); C.fn(lambda a: setattr(C, 'gate', gsave), 0)
        S.streams = [C, R, G]
        I('s_mul_i32 s5, s%d, 12' % S_SP); I('s_add_u32 s5, s5, s%d' % S_TEAM); I('s_lshl_b32 s5, s5, 13')
        for src in range(3):
            I('s_sub_u32 s3, s%d, %d' % (S_SP, src+1)); I('s_and_b32 s3, s3, 3'); I('s_mul_i32 s3, s3, %d' % (64*6*8192))
            I('s_add_u32 s3, s3, s5'); I('s_add_u32 s%d, s3, %d' % (S_FB+src, PF_OFF))
        I('s_mov_b32 s15, 0xffff0000'); I('s_add_u32 s%d, s5, %d' % (S_T2, PF_OFF + 4*64*6*8192)); I('s_mov_b32 s%d, 0' % S_T3)
        tmp = Asm()
        for ks in range(12, 18): w2_read(tmp, ks, False)
        for k, t in enumerate(tmp.lines):
            if k % 6 == 0 and k//6 >= TDN: G.fn(lambda a, k=k: a.wait_vm('v%d' % (12 + k//6)), 1, P('RDAT', 40) + P('RDS', 3)*(k//6))
            I(t.strip(), 'wr%d' % (12 + k//6))
        G.fn(lambda a: None, 0, P('LPC', 33) + 1)
        xx_fill(G)
    for n in range(144):
        i, ks = seq[n]; s = i & 1; p = n // 18
        if ks == 0:
            S.note = None; S.drain(('acc', s))
            if S.note: sys.stderr.write('  B forced drain at block %d: %s\n' % (i, S.note))
        if n % 18 == 0:
            if ssm and p == 6:
                S.drain()
                a('s_cmp_eq_u32 s%d, 1' % S_SHORT); a('s_cbranch_scc1 B_SSM_TAIL')
            if p in (0, 7): stamp(a, st)
            nstamp(a, 'b%d' % p)
        base = S.mf
        if n > 0 and seq[n-1][1] == 17:
            j = seq[n-1][0]
            reduce_fill(R, j, base + 2, ssm or j < 6, ssm, None, 1, 1 if (not ssm and j in (0, P('W6', 0))) else P('WRD', 2))
        if not ssm and n % 18 == 0:
            if p == 3:
                F0 = Stream('f0'); S.always = [F0]
                for t in ffn_loads(L)[:2]: F0.ins(t, 'fA', base + P('FA0', 6))
            if p == 4:
                assert not F0.q
                for k, t in enumerate(ffn_loads(L)[2:]): G.ins(t, 'fA', base + P('FA0', 6) + P('FSP', 46)*(k//2))
                checked(G, 'fA', ffn_loads(L), L, P('CHKD', 30))
                presum(G, L, psA)
                for src in range(3): G.ins('s_add_u32 s%d, s%d, %d' % (S_FB+src, S_FB+src, 6*8192))
            if p == 5:
                for k, t in enumerate(y_loads(yA)): G.ins(t, 'yA', base + P('YAAT', 40))
                checked(G, 'yA', y_loads(yA), yA, P('CHKD2', 30))
                prep_s(G, 0, yA, sA); G.fn(lambda a: a.seen.add('prepA'), 0)
                for k, t in enumerate(ffn_loads(fB)[:2]): G.ins(t, 'fB', 0, 3)
                G.ins('s_add_u32 s%d, s%d, %d' % (S_T2, S_T2, 6*8192))
            if p == 7:
                G.fn(lambda a: ('rr6' in a.seen) or sys.exit('order'), 0, base + P('FBAT', 24))
                lb = ffn_loads(fB)
                for t in lb[2:4]: G.ins(t, 'fB', 0, 3)
                for t in y_loads(yB): G.ins(t, 'yB', 0, 3)
                for t in lb[4:6]: G.ins(t, 'fB', 0, 3)
                chain(C, 0, psA, sA)
                if P('G7', 1): S.streams = [G, R, C]
        if ssm and i in (0, 2, 4):
            l2, c2 = flag_poll('hp%d' % i)
            if ks == 0: S.must_fn(lambda a: (a('s_add_u32 s%d, s%d, s%d' % (S_PF, S_PF, S_T3)), l2(a)))
            if ks == 35 - NH:
                assert nld[0] <= 18*(i+2)
                S.must_fn(lambda a: (a.wait_vm('hp%d' % i), poll_loop(a, l2, c2, 4)))
        if not okl[0] and S.mf >= P('LPC', 33):
            S.must_fn(lambda a: (nstamp(a, 'lp0'), a.wait_vm('hl'), ('nol' in X or poll_loop(a, l2, c2, 1, 'r_l')), nstamp(a, 'lp1')))
            okl[0] = True; S.streams = [R, G, C]
            for _ in range(P('LBURST', 6)):
                if nld[0] < n + NH: S.must_fn(next_h)
        S.fill(reserve=1)
        S.must_fn(lambda a: a.wait_vm('h%d' % n))
        if not ssm and i == 0 and ks >= 12:
            assert a.tagcount.get('wr%d' % ks, 0) == 6, ks
            S.must_fn(lambda a: a.wait_lg('wr%d' % ks))
        for dt in range(3):
            d = vr(accr(s, dt), 16)
            S.mfma('v_mfma_f32_32x32x16_bf16 %s, %s, %s, %s' % (d, vr(hslot(n), 4), wfrag(ks, dt), d if ks else '0'))
            lim = n + NH + (1 if dt == 2 else 0)
            if not okl[0]: lim = min(lim, 2*KE)
            if nld[0] < min(lim, 144) and (dt != 1 or n < 36): S.must_fn(next_h)
    sys.stderr.write('phaseB ssm=%d pending at end: %s\n' % (ssm, S.pending()))
    stamp(a, st); nstamp(a, 'e0')
    S.mf += 1000
    if ssm:
        S.drain()
        a('B_SSM_TAIL:')
        a('s_nop 11')
        a.lg = []
        reduce_fill(R, 7, 0, True, True); S.drain()
        stamp(a, st)
    else:
        S.drain(stream=R); S.drain(stream=G)
        restA = C.q; C.q = []
        reduce_fill(R, 7, 0, False, False)
        wr = R.q[:9]; rest = R.q[9:]
        R.q = []
        k = 0
        while wr or restA[k:]:
            if wr: R.q.append(wr.pop(0))
            R.q += restA[k:k+6]; k += 6
        S.drain()
        stamp(a, st); nstamp(a, 'e1')
        R.q = rest[:10]; S.drain()
        checked(G, 'yB', y_loads(yB), yB, 0); prep_s(G, 1, yB, sB); S.drain()
        R.q = rest[10:]; S.drain()
        nstamp(a, 'e2')
        checked(G, 'fB', ffn_loads(fB), fB, 0); presum(G, fB, psB)
        G.ins('s_mov_b32 s%d, %d' % (S_T3, 16*2304))
        chain(G, 1, psB, sB); S.drain()
        a('s_lshl_b32 s3, s%d, 9' % S_SP); a('s_add_u32 s3, s3, s%d' % S_TEAM); a('s_lshl_b32 s4, s%d, 12' % S_W); a('s_add_u32 s3, s3, s4')
        a('s_cmp_eq_u32 s3, %d' % (7*48))
        a('s_cbranch_scc0 NOBUMP')
        a('v_mov_b32 v14, %d' % NONCE_OFF); a('v_mov_b32 v15, s%d' % S_NONCE)
        a('s_mov_b64 exec, 1')
        a('buffer_store_dword v15, v14, %s, 0 offen sc1' % WSR)
        a('NOBUMP:')
    stamp_flush(a, st, 0, S_WS, S_W, 14)
    a('s_endpgm')

def ln_part(a):
    X = 48; F = 72; T = 112
    a('s_lshl_b32 s3, s2, 1'); a('s_add_u32 s3, s3, s%d' % S_W)
    a('s_lshr_b32 s4, s3, 4'); a('s_lshl_b32 s4, s4, 6')
    a('s_and_b32 s5, s3, 1'); a('s_lshl_b32 s5, s5, 5'); a('s_add_u32 s4, s4, s5')
    a('s_bfe_u32 s5, s3, 0x10003'); a('s_lshl_b32 s5, s5, 4'); a('s_add_u32 s4, s4, s5')
    a('s_bfe_u32 s5, s3, 0x20001'); a('s_lshl_b32 s5, s5, 2'); a('s_add_u32 s4, s4, s5')
    a('v_and_b32 v%d, 3, v0' % T); a('v_lshrrev_b32 v%d, 2, v0' % (T+1))
    a('v_add_u32 v%d, s4, v%d' % (T+2, T))
    a('v_mul_u32_u24 v%d, 1152, v%d' % (T+3, T+2)); a('v_lshl_add_u32 v%d, v%d, 4, v%d' % (T+3, T+1, T+3))
    for k in range(4): a('v_mov_b32 v%d, 0' % (X+16+k))
    a('s_waitcnt lgkmcnt(0)'); nstamp(a, 'ln0')
    for n in range(4):
        a('global_load_dwordx4 %s, v%d, s[%d:%d] offset:%d%s' % (vr(X+4*n, 4), T+3, SP0, SP0+1, 256*n, XNT), 'lx')
    a('s_mov_b32 exec_hi, 0')
    a('global_load_dwordx4 %s, v%d, s[%d:%d] offset:1024%s' % (vr(X+16, 4), T+3, SP0, SP0+1, XNT), 'lx')
    a('s_mov_b32 exec_hi, -1')
    if P('DEC', 1):
        a('s_mov_b32 s%d, s3' % S_CNT); decode(a); a('s_mov_b32 s3, s%d' % S_CNT)
    srd(a, S_W1, SP0+4, 576*9216)
    for n in range(W1P): dma_w1(a, 1, 1, n, 'w1')
    ws_srd(a)
    a('s_load_dword s%d, s[%d:%d], %d' % (S_NONCE, S_WS, S_WS+1, NONCE_OFF))
    a('s_lshr_b32 s5, s3, 3'); a('s_mul_i32 s5, s5, 36864'); a('s_and_b32 s6, s3, 7'); a('s_lshl_b32 s6, s6, 7'); a('s_add_u32 s5, s5, s6')
    a('s_add_u32 s5, s5, %d' % XF_OFF)
    a('v_lshrrev_b32 v%d, 3, v0' % (T+4)); a('v_lshlrev_b32 v%d, 10, v%d' % (T+4, T+4))
    a('v_and_b32 v%d, 7, v0' % (T+5)); a('v_lshl_add_u32 v%d, v%d, 4, v%d' % (T+4, T+5, T+4))
    a('v_lshlrev_b32 v%d, 3, v%d' % (T+2, T+2))
    MK = S_T; HM = S_T2
    a('s_mov_b32 s%d, 0xffff0000' % HM)
    DRY = P('DRY', 0)
    if DRY:
        a('s_mov_b32 s%d, 0' % MK); a('s_mov_b64 exec, 0')
    else:
        a('s_mov_b32 s%d, -1' % MK); a.wait_vm('lx'); nstamp(a, 'ln1')
    a('LN_BODY:')
    def unpack(n): a('v_lshlrev_b32 v%d, 16, v%d' % (F+2*n, X+n)); a('v_and_b32 v%d, s%d, v%d' % (F+2*n+1, HM, X+n))
    A = T+8
    def allred(r):
        return ['v_add_f32_dpp v%d, v%d, v%d row_ror:4 row_mask:0xf bank_mask:0xf' % (r, r, r),
                'v_add_f32_dpp v%d, v%d, v%d row_ror:8 row_mask:0xf bank_mask:0xf' % (r, r, r),
                'v_mov_b32 v%d, v%d' % (T+6, r), 'v_permlane16_swap_b32 v%d, v%d' % (r, T+6), 'v_add_f32 v%d, v%d, v%d' % (r, r, T+6),
                'v_mov_b32 v%d, v%d' % (T+6, r), 'v_permlane32_swap_b32 v%d, v%d' % (r, T+6), 'v_add_f32 v%d, v%d, v%d' % (r, r, T+6)]
    pr = lambda r: vr(r, 2)
    Q = A+4
    for n in range(20):
        unpack(n)
        if n >= 5:
            k = n - 1
            a('v_pk_add_f32 %s, %s, %s' % (pr(Q+2*(k % 4)), pr(F+2*(k-4)) if k < 8 else pr(Q+2*(k % 4)), pr(F+2*k)))
    a('v_pk_add_f32 %s, %s, %s' % (pr(Q+6), pr(Q+6), pr(F+38)))
    a('v_pk_add_f32 %s, %s, %s' % (pr(Q), pr(Q), pr(Q+2))); a('v_pk_add_f32 %s, %s, %s' % (pr(Q+4), pr(Q+4), pr(Q+6)))
    a('v_pk_add_f32 %s, %s, %s' % (pr(Q), pr(Q), pr(Q+4))); a('v_add_f32 v%d, v%d, v%d' % (A+2, Q, Q+1))
    for t in allred(A+2): a(t)
    a('v_mul_f32 v%d, 0x%08x, v%d' % (A+2, f32bits(1.0/576), A+2))
    a('v_cvt_pk_bf16_f32 v%d, v%d, v%d' % (A, A+2, A+2)); a('v_lshlrev_b32 v%d, 16, v%d' % (A, A))
    a('v_sub_f32 v%d, v%d, v%d' % (A+2, A+2, A))
    for n in range(20):
        if n == 16: a('s_mov_b32 exec_hi, 0')
        a('v_pk_add_f32 %s, %s, %s op_sel_hi:[1,0] neg_lo:[0,1] neg_hi:[0,1]' % (pr(F+2*n), pr(F+2*n), pr(A)))
        if n % 4 == 3:
            for k in range(n-3, n+1):
                d = pr(F+2*k); q = pr(Q+2*(k % 4))
                a(('v_pk_mul_f32 %s, %s, %s' % (q, d, d)) if k < 4 else ('v_pk_fma_f32 %s, %s, %s, %s' % (q, d, d, q)))
    a('s_mov_b32 exec_hi, s%d' % MK)
    ch = ['v_pk_add_f32 %s, %s, %s' % (pr(Q), pr(Q), pr(Q+2)), 'v_pk_add_f32 %s, %s, %s' % (pr(Q+4), pr(Q+4), pr(Q+6)),
          'v_pk_add_f32 %s, %s, %s' % (pr(Q), pr(Q), pr(Q+4)), 'v_add_f32 v%d, v%d, v%d' % (A+1, Q, Q+1)] + allred(A+1) + [
          'v_mul_f32 v%d, 0x%08x, v%d' % (A+1, f32bits(1.0/576), A+1),
          'v_fma_f32 v%d, -v%d, v%d, v%d' % (A+1, A+2, A+2, A+1),
          'v_cvt_pk_bf16_f32 v%d, v%d, v%d' % (A+1, A+1, A+1), 'v_lshlrev_b32 v%d, 16, v%d' % (A+1, A+1),
          'v_add_f32 v%d, 0x%08x, v%d' % (A+1, f32bits(1e-5), A+1),
          'v_cvt_pk_bf16_f32 v%d, v%d, v%d' % (A+1, A+1, A+1), 'v_lshlrev_b32 v%d, 16, v%d' % (A+1, A+1),
          'v_sqrt_f32 v%d, v%d' % (A+1, A+1),
          'v_cvt_pk_bf16_f32 v%d, v%d, v%d' % (A+1, A+1, A+1), 'v_lshlrev_b32 v%d, 16, v%d' % (A+1, A+1),
          'v_rcp_f32 v%d, v%d' % (A+1, A+1)]
    for t in ch: a(t)
    for q in range(5):
        if q == 4: a('s_mov_b32 exec_hi, 0')
        ns = range(4*q, 4*q+4)
        for n in ns: a('v_pk_mul_f32 %s, %s, %s op_sel:[0,1] op_sel_hi:[1,1]' % (pr(F+2*n), pr(F+2*n), pr(A)))
        for n in ns: a('v_cvt_pk_bf16_f32 v%d, v%d, v%d' % (X+n, F+2*n, F+2*n+1))
        if DRY: a('s_cbranch_execz LN_S%d' % q)
        a('buffer_store_dwordx4 %s, v%d, %s, s5 offen sc1' % (vr(X+4*q, 4), T+4, WSR))
        if q < 4: a('s_add_u32 s5, s5, 8192')
        if DRY and q < 4: a('LN_S%d:' % q)
    if DRY:
        a('s_branch LN_REAL_DONE')
        a('LN_S4:')
        a('s_mov_b32 s%d, -1' % MK); a('s_mov_b64 exec, -1'); nstamp(a, 'lnd')
        a('s_waitcnt vmcnt(0)'); nstamp(a, 'ln1')
        a('s_branch LN_BODY')
        a('LN_REAL_DONE:')
    a('s_mov_b32 exec_lo, 15')
    a('s_mov_b32 s5, %d' % STAT_OFF)
    assert A % 2 == 0
    a('buffer_store_dwordx2 %s, v%d, %s, s5 offen sc1' % (vr(A, 2), T+2, WSR))
    a('s_mov_b64 exec, -1'); nstamp(a, 'ln2')
    if W0E < 99 and W0M == 0: a('s_barrier')
    a('s_waitcnt lgkmcnt(0)')
    nonce_mix(a)
    a('s_lshl_b32 s3, s3, 7'); a('s_add_u32 s3, s3, %d' % LNF_OFF)
    a('v_mov_b32 v%d, 0' % T); a('v_mov_b32 v%d, s%d' % (T+1, S_NONCE))
    a('s_mov_b64 exec, 1')
    a('s_waitcnt vmcnt(0)')
    a('buffer_store_dword v%d, v%d, %s, s3 offen sc1' % (T+1, T, WSR)); nstamp(a, 'ln3')
    a('s_mov_b64 exec, -1')
    if W0E < 99 and W0M == 1: a('s_barrier')

def nonce_mix(a):
    a('s_mul_i32 s%d, s%d, 0x0019660d' % (S_NONCE, S_NONCE))
    a('s_add_u32 s%d, s%d, 0x3c6ef35f' % (S_NONCE, S_NONCE))

def light_part(a):
    if P('LBAR', 1): a('s_barrier')
    a('s_cmp_eq_u32 s%d, 0' % S_W); a('s_cbranch_scc1 LIGHT2')
    a('s_load_dwordx4 s[%d:%d], s[0:1], %d' % (SP0, SP0+3, A_CRE))
    a('s_sub_u32 s3, s2, 240'); a('s_mul_i32 s3, s3, 3'); a('s_add_u32 s3, s3, s%d' % S_W); a('s_sub_u32 s3, s3, 1')
    a('s_lshr_b32 s4, s3, 3'); a('s_mul_i32 s4, s4, %d' % (96*1152))
    a('s_bfe_u32 s5, s3, 0x10001'); a('s_mul_i32 s5, s5, 576'); a('s_add_u32 s4, s4, s5')
    a('s_and_b32 s5, s3, 1'); a('s_mul_i32 s5, s5, 288'); a('s_add_u32 s4, s4, s5')
    a('v_and_b32 v1, 31, v0'); a('v_mul_u32_u24 v1, 1152, v1'); a('v_lshrrev_b32 v2, 5, v0'); a('v_lshl_add_u32 v1, v2, 4, v1'); a('v_add_u32 v1, s4, v1')
    a('v_add_u32 v2, %d, v1' % (32*1152)); a('v_add_u32 v3, %d, v1' % (64*1152))
    a('v_lshlrev_b32 v4, 4, v0')
    a('s_mul_i32 s6, s3, 27648'); a('s_add_u32 s6, s6, %d' % CF_OFF)
    a('s_waitcnt lgkmcnt(0)')
    a('s_bitcmp1_b32 s3, 2')
    a('s_cselect_b32 s%d, s%d, s%d' % (SP0, SP0+2, SP0)); a('s_cselect_b32 s%d, s%d, s%d' % (SP0+1, SP0+3, SP0+1))
    for f in range(27):
        a('global_load_dwordx4 %s, v%d, s[%d:%d] offset:%d' % (vr(16+4*f, 4), 1 + f % 3, SP0, SP0+1, (f//3)*32), 'c%d' % f)
    for f in range(27):
        a.wait_vm('c%d' % f)
        a('buffer_store_dwordx4 %s, v4, %s, s6 offen offset:%d sc1' % (vr(16+4*f, 4), WSR, (f % 4)*1024))
        if f % 4 == 3: a('s_add_u32 s6, s6, 4096')
    a('s_lshl_b32 s3, s3, 7'); a('s_add_u32 s3, s3, %d' % CFL_OFF)
    a('v_mov_b32 v1, 0'); a('v_mov_b32 v2, s%d' % S_NONCE)
    a('s_mov_b64 exec, 1')
    a('s_waitcnt vmcnt(0)')
    a('buffer_store_dword v2, v1, %s, s3 offen sc1' % WSR)
    a('s_mov_b64 exec, -1')
    a('LIGHT2:')
    a.vm = []
    a('s_and_b32 s3, s2, 7')
    if P('LMAP', 1):
        a('s_and_b32 s4, s3, 3'); a('s_cmp_eq_u32 s4, 3'); a('s_cbranch_scc1 KEND'); a('s_lshr_b32 s4, s3, 2'); a('s_sub_u32 s3, s3, s4')
    else:
        a('s_cmp_ge_u32 s3, 6'); a('s_cbranch_scc1 KEND')
    a('s_and_b32 s4, s3, 6'); a('s_bfe_u32 s5, s2, 0x10003'); a('s_add_u32 s%d, s4, s5' % S_NT); a('s_and_b32 s3, s3, 1')
    a('s_lshl_b32 s4, s3, 1'); a('s_add_u32 s4, s4, 5')
    for i in range(8): a('s_add_u32 s%d, s4, %d' % (S_ORD+i, 8*i))
    a('s_mov_b32 s%d, 0' % S_MT); a('s_mov_b32 s%d, 4' % S_SP); a('s_mov_b32 s%d, 0' % S_SHORT); a('s_mov_b32 s%d, 0x3ffff' % S_MASK)
    a('s_mov_b32 s%d, %d' % (S_PF, HSF_OFF))
    a('v_min_u32 v1, 47, v0'); a('v_lshlrev_b32 v1, 7, v1'); a('s_mov_b32 s%d, %d' % (S_T3, CFL_OFF))
    ldc = 'buffer_load_dword v2, v1, %s, s%d offen sc1' % (WSR, S_T3)
    a(ldc); a('s_waitcnt vmcnt(0)')
    poll_loop(a, lambda a: a(ldc), chk_all_eq(2), 8)
    a('s_lshl_b32 s4, s%d, 2' % S_NT); a('s_add_u32 s4, s4, s%d' % S_W); a('s_mul_i32 s4, s4, 55296'); a('s_add_u32 s4, s4, %d' % CF_OFF)
    a('v_lshlrev_b32 v4, 4, v0')
    for f in range(54):
        a('buffer_load_dwordx4 %s, v4, %s, s4 offen offset:%d sc1' % (ar(4*f, 4), WSR, (f % 4)*1024))
        if f % 4 == 3: a('s_add_u32 s4, s4, 4096')
    flag_lanes(a, 1)
    a('s_mov_b32 s%d, 8192' % S_T3)
    ld, chk = flag_poll()
    ld(a); a('s_waitcnt vmcnt(0)')
    b_common(a, True)
    poll_loop(a, ld, chk, P('LSLEEP', 3))
    a('s_branch B_SSM2')

def early_pair(a, se, dst):
    a('s_mul_i32 s3, s%d, 86' % se); a('s_lshr_b32 s3, s3, 8'); a('s_mul_i32 s4, s3, 3'); a('s_sub_u32 s4, s%d, s4' % se)
    a('s_cmp_lt_u32 s4, 2'); a('s_cselect_b32 s4, s4, 5')
    a('s_mul_i32 s3, s3, 9'); a('s_add_u32 s3, s3, s4'); a('s_lshl_b32 s%d, s3, 7' % dst)
def mixed_pair(a):
    a('s_lshr_b32 s3, s%d, 1' % S_N); a('s_mul_i32 s3, s3, 9'); a('s_and_b32 s%d, s%d, 1' % (S_SW, S_N))
    a('s_lshl_b32 s4, s%d, 1' % S_SW); a('s_sub_u32 s3, s3, s4'); a('s_add_u32 s3, s3, 6')
    a('s_add_u32 s5, s%d, 54' % S_N); a('s_cmp_lt_u32 s%d, 16' % S_N); a('s_cselect_b32 s3, s3, s5')
    a('s_lshl_b32 s%d, s3, 7' % (S_P+1)); a('s_lshl_b32 s%d, s%d, 11' % (S_SW, S_SW))
def late_pair(a):
    a('s_lshr_b32 s3, s%d, 2' % S_N); a('s_and_b32 s4, s%d, 3' % S_N); a('s_mul_i32 s3, s3, 9'); a('s_add_u32 s3, s3, s4')
    a('s_cmp_lt_u32 s4, 2'); a('s_cselect_b32 s4, 2, 5'); a('s_add_u32 s3, s3, s4'); a('s_lshl_b32 s%d, s3, 7' % (S_P+2))

def decode(a):
    a('s_and_b32 s3, s2, 7'); a('s_lshr_b32 s4, s2, 3')
    a('s_lshr_b32 s5, s3, 1'); a('s_mul_i32 s5, s5, 30'); a('s_add_u32 s5, s5, s4')
    a('s_lshr_b32 s6, s5, 2'); a('s_min_u32 s6, s6, 29')
    if P('AMAP', 1):
        pat = 'MMPMPMPMPMPMPMM'*2
        MK30 = sum(1 << i for i, c in enumerate(pat) if c == 'M')
        a('s_bfm_b32 s7, s6, 0'); a('s_and_b32 s7, s7, 0x%x' % MK30); a('s_bcnt1_i32_b32 s7, s7')
        a('s_sub_u32 s4, s6, s7'); a('s_add_u32 s4, s4, 18')
        a('s_bitcmp1_b32 0x%x, s6' % MK30); a('s_cselect_b32 s%d, s7, s4' % S_N)
    else:
        a('s_mul_i32 s7, s6, 52'); a('s_lshr_b32 s7, s7, 8')
        a('s_mul_i32 s4, s7, 5'); a('s_sub_u32 s4, s6, s4')
        a('s_mul_i32 s6, s7, 3'); a('s_add_u32 s6, s6, s4')
        a('s_lshl_b32 s7, s7, 1'); a('s_add_u32 s7, s7, s4'); a('s_add_u32 s7, s7, 15')
        a('s_cmp_lt_u32 s4, 3'); a('s_cselect_b32 s%d, s6, s7' % S_N)
    a('s_and_b32 s5, s5, 3'); a('s_and_b32 s3, s3, 1'); a('s_lshl_b32 s3, s3, 2'); a('s_add_u32 s%d, s3, s5' % S_G)
    a('s_lshl_b32 s%d, s%d, 10' % (S_M0W, S_W))
    a('v_lshrrev_b32 v13, 3, v0'); a('v_and_b32 v14, 7, v0'); a('v_bfe_u32 v15, v0, 4, 1'); a('v_lshlrev_b32 v15, 2, v15'); a('v_xor_b32 v14, v14, v15')
    a('s_lshl_b32 s3, s%d, 3' % S_W); a('v_add_u32 v13, s3, v13')
    a('v_mul_u32_u24 v%d, 9216, v13' % V_WD); a('v_lshl_add_u32 v%d, v14, 4, v%d' % (V_WD, V_WD))
    late_pair(a)
    mixed_pair(a); a('s_mov_b32 s%d, s%d' % (S_T, S_SW)); a('s_mov_b32 s%d, s%d' % (S_TF, S_P+1))
    a('s_lshl_b32 s7, s%d, 1' % S_N); a('s_sub_u32 s7, s7, 36')
    early_pair(a, 7, S_P); a('s_add_u32 s7, s7, 1'); early_pair(a, 7, S_P+1)
    a('s_cmp_lt_u32 s%d, 18' % S_N); a('s_cselect_b32 s%d, s%d, s%d' % (S_P, S_T, S_P)); a('s_cselect_b32 s%d, s%d, s%d' % (S_P+1, S_TF, S_P+1))

def phaseA2(a, mixed, st):
    import copy
    sv = (list(a.vm), list(a.lg), set(a.seen), st.n, label_n[0], len(a.lines), len(OOL))
    pos = {}
    for bt in (0, 1):
        def mark(S, bt=bt):
            if bt == 0:
                S.must('s_cmp_eq_u32 s%d, 4' % S_SP); S.must('s_cbranch_scc1 AS%d' % mixed)
            else:
                S.must('s_nop 0'); S.must('s_nop 0')
                del a.lines[pos['start']:]; del OOL[pos['ool']:]
                a('AS%d:' % mixed); a('s_nop 9')
                label_n[0] = pos['lab']
        if bt:
            pos['start'] = len(a.lines); pos['ool'] = len(OOL); pos['lab'] = label_n[0]
            a.vm, a.lg, a.seen, st.n = list(sv[0]), list(sv[1]), set(sv[2]), sv[3]
        phaseA(a, mixed, st, bt, mark)
        a('s_nop 3')
        a('s_branch %s' % ('B_SSM' if bt else 'B_FFN'))

def gen():
    a = Asm()
    name = PFX + '_kernel'
    a(kernel_header(name))
    a('KSTART:')
    a('s_cmp_ge_u32 s2, 256'); a('s_cbranch_scc1 KEND')
    st = Stamps(); stamp(a, st); nstamp(a, 'start')
    for nm in ('ln0', 'lnd', 'ln1', 'ln2', 'ln3', 'w0a', 'w0b'): nstamp(a, nm)
    a('s_load_dwordx2 s[%d:%d], s[0:1], %d' % (SP0, SP0+1, A_X))
    a('s_load_dwordx2 s[%d:%d], s[0:1], %d' % (SP0+2, SP0+3, D_WS))
    a('s_load_dwordx2 s[%d:%d], s[0:1], %d' % (SP0+4, SP0+5, B_W1))
    a('s_load_dwordx4 s[56:59], s[0:1], %d' % A_BRE)
    a('s_load_dwordx4 s[60:63], s[0:1], %d' % A_LRE)
    a('s_load_dwordx2 s[54:55], s[0:1], %d' % A_LDT)
    a('v_lshrrev_b32 v13, 6, v0')
    a('v_readfirstlane_b32 s%d, v13' % S_W)
    a('v_and_b32 v0, 63, v0')
    a('s_cmp_lt_u32 s%d, 2' % S_W); a('s_cbranch_scc1 DO_LN')
    a('s_lshl_b32 s3, s2, 1'); a('s_add_u32 s3, s3, s%d' % S_W); a('s_sub_u32 s3, s3, 2')
    a('s_mul_i32 s4, s3, %d' % (11*128)); a('v_min_u32 v%d, 10, v0' % V_PA); a('v_lshl_add_u32 v%d, v%d, 7, s4' % (V_PA, V_PA))
    a('v_min_u32 v%d, %d, v%d' % (V_PA, 576*1152-4, V_PA))
    a('s_mul_i32 s4, s3, 45'); a('v_min_u32 v%d, 44, v0' % V_PL); a('v_add_u32 v%d, s4, v%d' % (V_PL, V_PL))
    a('v_mul_u32_u24 v14, 52429, v%d' % V_PL); a('v_lshrrev_b32 v14, 18, v14')
    a('v_mul_u32_u24 v15, 5, v14'); a('v_sub_u32 v15, v%d, v15' % V_PL)
    a('v_lshl_add_u32 v%d, v14, 2, v%d' % (V_PL, V_PL)); a('v_cmp_lt_u32 vcc, 1, v15'); a('v_cndmask_b32 v15, 0, 2, vcc')
    a('v_add_lshl_u32 v%d, v%d, v15, 7' % (V_PL, V_PL)); a('v_min_u32 v%d, %d, v%d' % (V_PL, 576*9216-4, V_PL))
    a('s_getpc_b64 s[4:5]'); a('PFPC:')
    a('s_sub_u32 s4, s4, PFPC-KSTART'); a('s_subb_u32 s5, s5, 0')
    a('s_lshr_b32 s6, s2, 3'); a('s_and_b32 s6, s6, 15'); a('s_add_u32 s6, s6, 1'); a('s_mul_i32 s6, s6, 6144')
    a('s_cmp_eq_u32 s%d, 3' % S_W); a('s_cselect_b32 s6, 0, s6')
    a('v_lshl_add_u32 v14, v0, 7, s6'); a('v_min_u32 v14, KLAST-KSTART, v14')
    a('global_load_dword v%d, v14, s[4:5]' % (V_PL+3))
    def touches():
        a('global_load_dword v%d, v%d, s[56:57]' % (V_PL+3, V_PA)); a('global_load_dword v%d, v%d, s[58:59]' % (V_PL+3, V_PA))
        a('global_load_dword v%d, v%d, s[%d:%d]' % (V_PL+3, V_PL, SP0+4, SP0+5))
    if P('TE', 1):
        a('s_waitcnt lgkmcnt(0)'); ws_srd(a); srd(a, S_W1, SP0+4, 576*9216); srd(a, S_BRE, 56, 576*1152); srd(a, S_BIM, 58, 576*1152)
        touches()
    a('s_branch SKIP_LN')
    a.vm = []
    a('DO_LN:')
    ln_part(a)
    a.vm = []
    a('s_branch LN_DONE')
    a('SKIP_LN:')
    decode(a)
    if not P('TE', 1):
        a('s_waitcnt lgkmcnt(0)'); touches(); ws_srd(a); srd(a, S_W1, SP0+4, 576*9216); srd(a, S_BRE, 56, 576*1152); srd(a, S_BIM, 58, 576*1152)
    a('s_load_dword s%d, s[%d:%d], %d' % (S_NONCE, S_WS, S_WS+1, NONCE_OFF))
    S_D1, S_D2, S_W0 = 46, 47, 48
    a('v_bfe_u32 v15, v13, 1, 3'); a('v_and_b32 v14, 7, v0'); a('v_xor_b32 v14, v14, v15')
    a('s_lshl_b32 s7, s%d, 5' % S_N); a('v_add_u32 v13, s7, v13')
    a('v_mul_u32_u24 v%d, 1152, v13' % V_BD); a('v_lshl_add_u32 v%d, v14, 4, v%d' % (V_BD, V_BD))
    a('s_mov_b32 s3, %d' % (32*9216)); a('s_mov_b32 s4, %d' % (16*9216))
    a('s_cmp_lt_u32 s%d, 18' % S_N)
    a('s_cselect_b32 s%d, 0, s3' % S_D1); a('s_cselect_b32 s%d, 128, s3' % S_D2); a('s_cselect_b32 s%d, 0, s%d' % (S_W0, S_P)); a('s_cselect_b32 s4, %d, s4' % (16*1152))
    for s in (S_BRE, S_BIM):
        for k in range(3): a('s_cselect_b32 s%d, s%d, s%d' % (s+k, s+k, S_W1+k))
    a('s_cselect_b64 vcc, -1, 0'); a('v_cndmask_b32 v%d, v%d, v%d, vcc' % (V_BD, V_WD, V_BD)); a('v_subrev_u32 v14, s4, v%d' % V_BD)
    nstamp(a, 'w0a')
    for n in range(18):
        if n == W0E:
            a('s_waitcnt lgkmcnt(0)'); nonce_mix(a); a('s_barrier')
            a('s_cmp_ge_u32 s2, 240'); a('s_cbranch_scc1 LIGHT')
        s = S_BIM if n % 2 else S_BRE
        a('s_add_u32 m0, s%d, %d' % (S_M0W, n*4096))
        a('buffer_load_dwordx4 v%d, s[%d:%d], s%d offen lds' % (V_BD, s, s+3, S_W0))
        a('s_add_u32 m0, s%d, %d' % (S_M0W, n*4096 - 2048))
        a('buffer_load_dwordx4 v14, s[%d:%d], s%d offen lds' % (s, s+3, S_W0))
        a('s_add_u32 s%d, s%d, s%d' % (S_W0, S_W0, S_D2 if n % 2 else S_D1))
    nstamp(a, 'w0b')
    a.vm = []
    a('LN_DONE:')
    a('s_cmp_ge_u32 s2, 240'); a('s_cbranch_scc1 LIGHT')
    def common2():
        a('s_mov_b32 s%d, 0x%08x' % (S_NL2E, f32bits(-LOG2E)))
        a('s_mul_i32 s%d, s%d, %d' % (S_XB, S_G, 8*36864)); a('s_add_u32 s%d, s%d, %d' % (S_XB, S_XB, XF_OFF))
        a('s_mul_i32 s%d, s%d, %d' % (S_HB, S_G, 8*HF_RB)); a('s_add_u32 s%d, s%d, %d' % (S_HB, S_HB, HF_OFF))
        a('s_mul_i32 s3, s%d, 73728' % S_W)
        a('v_bfe_u32 v14, v0, 2, 3'); a('v_lshlrev_b32 v14, 7, v14'); a('v_lshrrev_b32 v15, 5, v0'); a('v_lshl_add_u32 v14, v15, 6, v14')
        a('v_and_b32 v15, 3, v0'); a('v_lshl_add_u32 v14, v15, 4, v14'); a('v_add_u32 v%d, s3, v14' % V_XO)
        a('v_add_u32 v%d, 36864, v%d' % (V_XO+1, V_XO))
        a('s_mul_i32 s3, s%d, %d' % (S_W, 2*HF_RB))
        a('v_lshl_add_u32 v%d, v0, 4, s3' % V_HO); a('v_add_u32 v%d, %d, v%d' % (V_HO+1, HF_RB, V_HO))
        a('v_lshrrev_b32 v14, 5, v0'); a('v_lshlrev_b32 v14, 10, v14')
        a('v_bfe_u32 v15, v0, 2, 2'); a('v_lshl_add_u32 v14, v15, 7, v14')
        a('v_bfe_u32 v15, v0, 4, 1'); a('v_lshl_add_u32 v14, v15, 5, v14')
        a('v_and_b32 v15, 3, v0'); a('v_lshl_add_u32 v14, v15, 3, v14')
        a('v_bfe_u32 v15, v0, 3, 1'); a('v_lshl_add_u32 v%d, v15, 6, v14' % V_TR)
        a('v_xor_b32 v%d, 64, v%d' % (V_TR+1, V_TR))
    a('v_and_b32 v%d, 15, v0' % V_PA); a('v_lshlrev_b32 v%d, 7, v%d' % (V_PA, V_PA))
    a('s_lshl_b32 s3, s%d, 13' % S_G); a('s_lshl_b32 s4, s%d, 11' % S_W); a('s_add_u32 s3, s3, s4'); a('s_add_u32 s%d, s3, %d' % (S_T3, LNF_OFF))
    ld = 'buffer_load_dword v%d, v%d, %s, s%d offen sc1' % (V_PL, V_PA, WSR, S_T3)
    for n in range(18):
        if n == 18 - P('POLLK', 4): a(ld, 'lnp')
        dma_w1(a, 1, 1, n, 'w1')
    if not P('POLLK', 4): a(ld, 'lnp')
    nstamp(a, 'w1i')
    common2()
    sv = (list(a.vm), set(a.seen))
    def poll():
        a.wait_vm('lnp')
        stamp(a, st); nstamp(a, 'pl0')
        poll_loop(a, lambda a: a(ld), chk_all_eq(V_PL))
        stamp(a, st); nstamp(a, 'pl1')
    a('s_cmp_lt_u32 s%d, 18' % S_N); a('s_cbranch_scc1 A_MIXED')
    poll()
    phaseA2(a, False, st)
    nst = st.n; st.n = 1; a.vm = list(sv[0]); a.lg = []; a.seen = set(sv[1])
    a('A_MIXED:')
    a('s_lshl_b32 s7, s%d, 5' % S_N)
    a('v_and_b32 v13, 31, v0'); a('v_lshrrev_b32 v14, 5, v0'); a('v_bfe_u32 v15, v0, 1, 3'); a('v_xor_b32 v14, v14, v15')
    a('v_lshlrev_b32 v14, 4, v14'); a('v_lshl_add_u32 v%d, v13, 7, v14' % V_BR)
    for e in range(1, 4): a('v_xor_b32 v%d, %d, v%d' % (V_BR+e, 32*e, V_BR))
    a('v_lshrrev_b32 v14, 5, v0'); a('s_lshl_b32 s4, s%d, 1' % S_W); a('v_add_u32 v%d, s4, v14' % R_SIDX)
    a('v_add_u32 v%d, s%d, v14' % (R_GH, S_G))
    a('v_mul_u32_u24 v%d, 80, v13' % R_TW); a('v_add_u32 v%d, 0x%x, v%d' % (R_TW, E_OFF - E_OFF % 65536, R_TW))
    a('v_lshl_add_u32 v%d, v%d, 3, v%d' % (R_EA, R_SIDX, R_TW)); a('v_add_u32 v%d, 0x%x, v%d' % (R_EA, E_OFF % 65536, R_EA))
    a('v_add_u32 v15, s7, v13')
    a('v_lshlrev_b32 v%d, 4, v15' % R_AW)
    a('v_mul_u32_u24 v14, 9216, v14'); a('v_add_u32 v%d, v14, v%d' % (R_AO, R_AW))
    a('v_min_u32 v14, 1, v%d' % R_SIDX); a('v_lshl_add_u32 v%d, v14, 30, v%d' % (R_AW, R_AW))
    a('v_lshlrev_b32 v15, 1, v15')
    a('global_load_ushort v%d, v15, s[60:61]' % R_T3); a('global_load_ushort v%d, v15, s[62:63]' % R_T4); a('global_load_ushort v%d, v15, s[54:55]' % R_ER, 'w1')
    a('s_mul_i32 s%d, s%d, 9216' % (S_BB, S_G)); a('s_add_u32 s%d, s%d, %d' % (S_BB, S_BB, AGG_OFF))
    a('s_lshl_b32 s4, s%d, 11' % S_W); a('s_add_u32 s4, s4, %d' % TB_OFF)
    a('v_lshrrev_b32 v14, 5, v0'); a('v_lshlrev_b32 v14, 9, v14')
    a('v_bfe_u32 v15, v0, 2, 2'); a('v_lshl_add_u32 v14, v15, 6, v14')
    a('v_and_b32 v15, 1, v0'); a('v_lshl_add_u32 v14, v15, 5, v14')
    a('v_bfe_u32 v15, v0, 4, 1'); a('v_lshl_add_u32 v14, v15, 4, v14')
    a('v_bfe_u32 v15, v0, 1, 1'); a('v_lshl_add_u32 v14, v15, 3, v14')
    a('v_bfe_u32 v15, v0, 3, 1'); a('v_lshlrev_b32 v15, 4, v15'); a('v_xor_b32 v14, v14, v15')
    a('v_add_u32 v%d, s4, v14' % R_TRD)
    a('v_lshrrev_b32 v14, 5, v0'); a('v_lshlrev_b32 v14, 1, v14'); a('v_bfe_u32 v15, v0, 1, 2'); a('v_xor_b32 v14, v14, v15')
    a('v_lshlrev_b32 v14, 4, v14'); a('v_lshl_add_u32 v14, v13, 6, v14')
    a('v_add_u32 v%d, s4, v14' % R_TWA)
    a('s_lshr_b32 s4, s%d, 5' % S_SW); a('v_xor_b32 v%d, s4, v%d' % (V_TR, V_TR)); a('v_xor_b32 v%d, s4, v%d' % (V_TR+1, V_TR+1))
    a('s_lshl_b32 s4, s%d, 11' % S_N); a('s_add_u32 s4, s4, %d' % (288*1024)); a('s_add_u32 s%d, s4, s%d' % (S_HS, S_HB))
    poll()
    phaseA2(a, True, st)
    assert st.n == nst or not DIAG or STNAMES
    a('A_DONE:')
    a('B_FFN:')
    a.vm = []; a.lg = []; a.seen = set()
    phaseB(a, False, st)
    st.n = nst; a.vm = []; a.lg = []; a.seen = set()
    a('B_SSM:')
    phaseB(a, True, st)
    a('LIGHT:'); a.vm = []; a.lg = []; a.seen = set()
    light_part(a)
    a.lines.extend(OOL)
    a('KEND:')
    a('KLAST:')
    a('s_endpgm')
    return name, a.lines, kernel_desc(name, 512, 256, 102)

if __name__ == '__main__':
    ref = open('cdna_kernels/%s.s.ref' % PFX).read().split('\n')
    hdr = [l for l in ref if l.startswith(';') and '@launch' not in l and 'Override launch' not in l and 'grid=ceil' not in l][:16]
    name, lines, desc = gen()
    padded, n = pad_hazards(lines)
    sys.stderr.write('%d lines, %d nops inserted\n' % (len(padded), n))
    out = hdr + ['; @launch grid=(256,1,1) block=(256,1,1) lds=%d' % LDS_BYTES, '.amdgcn_target "amdgcn-amd-amdhsa--gfx950"'] + padded + [desc]
    sys.stdout.write('\n'.join(out) + '\n')
```

```python
import sys, os, struct
from asmlib import *
from sched import *
def P(name, dflt): return int(os.environ.get(name, dflt))
def f32bits(x): return struct.unpack('<I', struct.pack('<f', x))[0]
PFX = "recurrent_scan__ssm_conv_s5__dense_activation_silu__prompt"
LOG2E = 1.4426950408889634

WSB      = P('WSB', 0)*1024*1024
NONCE_OFF= 0
STAT_OFF = 16384
AGG_OFF  = 65536
FS       = 128
LNF_OFF  = 256*1024
HEF_OFF  = 320*1024
HFL_OFF  = 384*1024
HSF_OFF  = 448*1024
CFL_OFF  = 512*1024
OOB      = 0x7ffffff0
XF_OFF   = 1024*1024
CF_OFF   = 4*1024*1024
HF_OFF   = 8*1024*1024
HF_RB    = 360*1024 + P('HSKEW', 0)
PF_OFF   = 32*1024*1024
if P('COMPACT', 0):
    CF_OFF = XF_OFF + 64*36*1024; HF_OFF = CF_OFF + 24*55296; PF_OFF = HF_OFF + 64*HF_RB
PY_OFF   = (PF_OFF + 4*64*6*8192) if P('COMPACT', 0) else 48*1024*1024
WS_USED  = 64*1024*1024
A_X, A_LRE, A_LIM, A_BRE, A_BIM, A_CRE, A_CIM, A_LDT, A_DSK, B_X, B_W1, B_W2, D_OUT, D_DBG, D_WS = [8*i for i in range(15)]

SLAB = 73728
E_OFF = 2*SLAB
TB_OFF = E_OFF + 3072
LDS_BYTES = TB_OFF + 8192

def ws_srd(a):
    a('s_add_u32 s%d, s%d, 0x%x' % (S_WS, SP0+2, WSB))
    a('s_addc_u32 s%d, s%d, 0' % (S_WS+1, SP0+3))
    a('s_and_b32 s%d, s%d, 0xffff' % (S_WS+1, S_WS+1))
    a('s_mov_b32 s%d, 0x%x' % (S_WS+2, WS_USED))
    a('s_mov_b32 s%d, 0x00020000' % (S_WS+3))
def srd(a, s, lo, nbytes):
    a('s_mov_b32 s%d, s%d' % (s, lo))
    a('s_and_b32 s%d, s%d, 0xffff' % (s+1, lo+1))
    a('s_mov_b32 s%d, 0x%x' % (s+2, nbytes))
    a('s_mov_b32 s%d, 0x00020000' % (s+3))

S_WS = 8; S_W1 = 12; S_BRE = 16; S_BIM = 20; S_WT = 24
S_X = 16; S_OUT = 20
S_G = 28; S_N = 29; S_W = 30; S_XB = 31; S_T = 32; S_M0W = 33
S_P = 34
S_HB = 37; S_T2 = 38; S_BB = 39; S_NL2E = 40; S_TX = 41; S_TF = 42; S_CNT = 43; S_HS = 44; S_NONCE = 45
S_MT = 46; S_NT = 47; S_SP = 48; S_WB = 49; S_WSTR = 50; S_MW = 51; S_T3 = 52; S_T4 = 53; S_MASK = 54; S_TEAM = 55
S_SHORT = S_XB
S_SW = 34
S_PF = 12
S_ORD = 56
S_HBB = S_HB; S_HN = S_TX; S_PB = S_BB
SP0 = 96

V_XO = 1; V_WD = 3; V_BD = 4; V_TR = 5; V_BR = 7; V_HO = 11; V_T0 = 13
V_XV = 16; V_ACC = 48; V_WF = 176; V_ET = 200; V_SC = 208
V_W2D = 253
def xfrag(blk, ks):
    idx = (ks*2 + blk)*4
    return ar(idx, 4) if idx < 256 else vr(V_XV + idx - 256, 4)
def acc(s, blk): return V_ACC + 32*s + 16*blk
(R_LR, R_LI, R_CR, R_CI, R_P32R, R_P32I, R_P256R, R_P256I, R_T1, R_T2, R_T3, R_T4, R_ER, R_EI, R_TG0, R_TG1, R_EA, R_SIDX, R_AO, R_TW) = range(V_SC, V_SC+20)
R_BUF = V_SC + 20
R_TWA, R_TRD, R_P512R, R_P512I, R_GH, R_AW = range(244, 250)
R_NLI = 4
R_NCI = R_TG1
R_U0 = R_T4
R_MR, R_MI = 1, 2
R_LLR, R_LLI = 7, 8
V_PL = 250
V_PA = 252
V_DUM = 13
V_RDB = 251
assert R_BUF % 4 == 0 and R_ER % 4 == 0

WSR = 's[%d:%d]' % (S_WS, S_WS+3)
label_n = [0]
OOL = []
def poll_loop(a, loads, check, sleep=1, rec=None, first=None):
    label_n[0] += 1; L = 'POLL%d' % label_n[0]
    if DIAG: a('s_mov_b32 s%d, 0' % S_CNT)
    (first or check)(a)
    a('s_cbranch_scc0 %s' % L)
    a(L + '_OK:')
    if DIAG and STNAMES and rec in STNAMES: a('s_mov_b32 s%d, s%d' % (S_STAMP + 2*STNAMES.index(rec), S_CNT))
    b = Asm()
    b(L + ':')
    b('s_mov_b32 s%d, 0' % S_CNT)
    b(L + '_R:')
    b('s_add_u32 s%d, s%d, 1' % (S_CNT, S_CNT))
    b('s_cmp_gt_u32 s%d, %d' % (S_CNT, P('SPIN', 20000)))
    b('s_cbranch_scc1 %s_OK' % L)
    b('s_sleep %d' % sleep)
    loads(b)
    b('s_waitcnt vmcnt(0)')
    check(b)
    b('s_cbranch_scc0 %s_R' % L)
    b('s_branch %s_OK' % L)
    OOL.extend(b.lines)

def split_check(F, tag, loads, check, ntail, dl, sleep, rec):
    t = Asm(); check(t); ins = [l.strip() for l in t.lines]
    F.fn(lambda a: a.wait_vm(tag), 1, 0, dl)
    for x in ins[:-ntail]: F.ins(x)
    F.fn(lambda a: poll_loop(a, loads, check, sleep, rec, lambda a: [a(x) for x in ins[-ntail:]]), ntail + 1)

def chk_all_eq(reg):
    def f(a):
        a('v_cmp_ne_u32 vcc, s%d, v%d' % (S_NONCE, reg))
        a('s_nop 1')
        a('s_cmp_eq_u64 vcc, 0')
    return f

def epi_ffn(E, s, pi, c, ready, blks=(0, 1), mixed=False):
    grp = ('acc', s)
    els = [(blk, j) for blk in blks for j in range(16)]
    n = len(els)
    r = lambda e: acc(s, els[e][0]) + els[e][1]
    t = lambda e: V_ET + (e % 8)
    I = lambda text, tag=None: E.ins(text, tag, ready, 0, grp)
    I('s_lshl_b32 s%d, s%d, 5' % (S_T2, S_P+pi))
    I('s_add_u32 s%d, s%d, s%d' % (S_T2, S_T2, S_HB))
    if mixed: I('%s s%d, s%d, s%d' % ('s_sub_u32' if c else 's_add_u32', S_T2, S_T2, S_SW))
    for step in range(n + 6):
        e = step
        if e < n: I('v_mul_f32 v%d, s%d, v%d' % (t(e), S_NL2E, r(e)))
        e = step - 1
        if 0 <= e < n: I('v_exp_f32 v%d, v%d' % (t(e), t(e)))
        e = step - 2
        if 0 <= e < n: I('v_add_f32 v%d, 1.0, v%d' % (t(e), t(e)))
        e = step - 3
        if 0 <= e < n: I('v_rcp_f32 v%d, v%d' % (t(e), t(e)))
        e = step - 4
        if 0 <= e < n: I('v_mul_f32 v%d, v%d, v%d' % (t(e), t(e), r(e)))
        e = step - 5
        if 0 <= e < n and e % 2 == 1:
            base = r(e - e % 8)
            I('v_cvt_pk_bf16_f32 v%d, v%d, v%d' % (base + (e % 8)//2, t(e-1), t(e)))
            if e % 8 == 7:
                blk = els[e][0]; fr = (e % 16)//8
                I('buffer_store_dwordx4 %s, v%d, %s, s%d offen offset:%d sc1' % (vr(base, 4), V_HO+blk, WSR, S_T2, c*2048 + fr*1024), 'st' if (pi == 2 or (mixed and c == 1)) else 'se')

def cmul_add(F, dr, di, ar_, ai, br, bi, cr, ci, ready=0):
    F.ins('v_fma_f32 v%d, -v%d, v%d, v%d' % (R_T1, ai, bi, cr), None, ready)
    F.ins('v_fma_f32 v%d, v%d, v%d, v%d' % (R_T2, ai, br, ci), None, ready)
    F.ins('v_fma_f32 v%d, v%d, v%d, v%d' % (dr, ar_, br, R_T1), None, ready)
    F.ins('v_fma_f32 v%d, v%d, v%d, v%d' % (di, ar_, bi, R_T2), None, ready)

def csq(F, dr, di, sr_, si):
    F.ins('v_mul_f32 v%d, v%d, v%d' % (R_T1, si, si))
    F.ins('v_mul_f32 v%d, v%d, v%d' % (R_T2, sr_, si))
    F.ins('v_fma_f32 v%d, v%d, v%d, -v%d' % (dr, sr_, sr_, R_T1))
    F.ins('v_add_f32 v%d, v%d, v%d' % (di, R_T2, R_T2))

def scan_tables(F):
    F.ins('v_lshlrev_b32 v%d, 16, v%d' % (R_T3, R_T3))
    F.ins('v_lshlrev_b32 v%d, 16, v%d' % (R_T4, R_T4))
    F.ins('v_lshlrev_b32 v%d, 16, v%d' % (R_ER, R_ER))
    F.ins('v_mul_f32 v%d, 0x%08x, v%d' % (R_ER, f32bits(LOG2E), R_ER))
    F.ins('v_exp_f32 v%d, v%d' % (R_ER, R_ER))
    F.ins('v_cvt_pk_bf16_f32 v%d, v%d, v%d' % (R_ER, R_ER, R_ER))
    F.ins('v_lshlrev_b32 v%d, 16, v%d' % (R_ER, R_ER))
    F.ins('v_mul_f32 v%d, v%d, v%d' % (R_T1, R_ER, R_T3))
    F.ins('v_mul_f32 v%d, v%d, v%d' % (R_T2, R_ER, R_T4))
    F.ins('v_mul_f32 v%d, 0x%08x, v%d' % (R_T1, f32bits(LOG2E), R_T1))
    F.ins('v_exp_f32 v%d, v%d' % (R_T1, R_T1))
    F.ins('v_mul_f32 v%d, 0.15915494, v%d' % (R_T2, R_T2))
    F.ins('v_rndne_f32 v%d, v%d' % (R_EI, R_T2))
    F.ins('v_sub_f32 v%d, v%d, v%d' % (R_T2, R_T2, R_EI))
    F.ins('v_cos_f32 v%d, v%d' % (R_LR, R_T2))
    F.ins('v_sin_f32 v%d, v%d' % (R_LI, R_T2))
    F.ins('v_mul_f32 v%d, v%d, v%d' % (R_LR, R_LR, R_T1))
    F.ins('v_mul_f32 v%d, v%d, v%d' % (R_LI, R_LI, R_T1))
    F.ins('v_add_f32 v%d, -1.0, v%d' % (R_ER, R_LR))
    F.ins('v_mul_f32 v%d, v%d, v%d' % (R_T1, R_T3, R_T3))
    F.ins('v_fmac_f32 v%d, v%d, v%d' % (R_T1, R_T4, R_T4))
    F.ins('v_rcp_f32 v%d, v%d' % (R_T1, R_T1))
    F.ins('v_mul_f32 v%d, v%d, v%d' % (R_CR, R_ER, R_T3))
    F.ins('v_fmac_f32 v%d, v%d, v%d' % (R_CR, R_LI, R_T4))
    F.ins('v_mul_f32 v%d, v%d, v%d' % (R_CI, R_LI, R_T3))
    F.ins('v_fma_f32 v%d, -v%d, v%d, v%d' % (R_CI, R_ER, R_T4, R_CI))
    F.ins('v_mul_f32 v%d, v%d, v%d' % (R_CR, R_CR, R_T1))
    F.ins('v_mul_f32 v%d, v%d, v%d' % (R_CI, R_CI, R_T1))
    csq(F, R_P32R, R_P32I, R_LR, R_LI)
    for _ in range(4): csq(F, R_P32R, R_P32I, R_P32R, R_P32I)
    MR, MI, Z = R_BUF, R_BUF+1, R_BUF+2
    F.ins('v_mov_b32 v%d, 0' % Z)
    F.ins('v_and_b32 v%d, 1, v%d' % (R_T3, R_SIDX)); F.ins('v_cmp_ne_u32 s[60:61], 0, v%d' % R_T3)
    F.ins('v_cndmask_b32 v%d, 1.0, v%d, s[60:61]' % (MR, R_P32R)); F.ins('v_cndmask_b32 v%d, 0, v%d, s[60:61]' % (MI, R_P32I))
    for b in (1, 2):
        if b == 1: csq(F, R_P256R, R_P256I, R_P32R, R_P32I)
        else: csq(F, R_P256R, R_P256I, R_P256R, R_P256I)
        F.ins('v_and_b32 v%d, %d, v%d' % (R_T3, 1 << b, R_SIDX)); F.ins('v_cmp_ne_u32 s[60:61], 0, v%d' % R_T3)
        cmul_add(F, R_BUF+4, R_BUF+5, R_P256R, R_P256I, MR, MI, Z, Z)
        F.ins('v_cndmask_b32 v%d, v%d, v%d, s[60:61]' % (MR, MR, R_BUF+4)); F.ins('v_cndmask_b32 v%d, v%d, v%d, s[60:61]' % (MI, MI, R_BUF+5))
    csq(F, R_P256R, R_P256I, R_P256R, R_P256I)
    csq(F, R_P512R, R_P512I, R_P256R, R_P256I)
    F.ins('v_mov_b32 v%d, s%d' % (R_TG0, S_NONCE))
    F.ins('v_sub_f32 v%d, 0, v%d' % (R_NLI, R_LI))
    F.ins('v_sub_f32 v%d, 0, v%d' % (R_NCI, R_CI))

def ureg(part, tt): return acc(part, tt >> 4) + (tt & 15)
def uim(tt): return R_U0 if tt == 0 else acc(1, 0) + tt - 1

def scan_early(F, ready, half, cb=None):
    for tt in range(16*half, 16*half + 16):
        ur, ui, un = ureg(0, tt), ureg(1, tt), uim(tt)
        F.ins('v_mul_f32 v%d, v%d, v%d' % (un, R_CI, ur), None, ready)
        F.ins('v_mul_f32 v%d, v%d, v%d' % (ur, R_CR, ur))
        F.ins('v_fmac_f32 v%d, v%d, v%d' % (un, R_CR, ui))
        F.ins('v_fmac_f32 v%d, v%d, v%d' % (ur, R_NCI, ui))
        if tt == 0: continue
        pairs = [(R_ER, R_EI), (R_T1, R_T2)]
        nr, ni = pairs[(31 - tt) % 2]
        er, ei = (ureg(0, 0), uim(0)) if tt == 1 else pairs[(32 - tt) % 2]
        F.ins('v_fma_f32 v%d, v%d, v%d, v%d' % (ni, R_LI, er, un))
        F.ins('v_fma_f32 v%d, v%d, v%d, v%d' % (nr, R_NLI, ei, ur))
        F.ins('v_fmac_f32 v%d, v%d, v%d' % (ni, R_LR, ei))
        F.ins('v_fmac_f32 v%d, v%d, v%d' % (nr, R_LR, er))
    if half == 0: return
    F.ins('v_mov_b32 v%d, v%d' % (R_MR, R_BUF)); F.ins('v_mov_b32 v%d, v%d' % (R_MI, R_BUF+1))
    F.ins('ds_write_b64 v%d, %s' % (R_EA, vr(R_ER, 2)), 'ew')
    F.fn(lambda a: (a.wait_lg('ew'), a('s_barrier')), 2, 0, 2)
    for n in range(4):
        F.ins('ds_read_b128 %s, v%d offset:%d' % (vr(R_BUF+4*n, 4), R_TW, E_OFF % 65536 + 16*n), 'er')
    F.ins('v_mov_b32 v%d, s%d' % (R_TG1, S_NONCE))
    F.ins('s_add_u32 s%d, s%d, %d' % (S_TF, S_BB, 8*9216))
    F.fn(lambda a: a.wait_lg('er'), 1, 0, 4)
    cmul_add(F, R_ER, R_EI, R_P32R, R_P32I, R_BUF, R_BUF+1, R_BUF+2, R_BUF+3)
    for s in range(2, 8):
        cmul_add(F, R_ER, R_EI, R_P32R, R_P32I, R_ER, R_EI, R_BUF+2*s, R_BUF+2*s+1)
    F.ins('buffer_store_dwordx4 %s, v%d, %s, s%d offen sc1' % (vr(R_ER, 4), R_AW, WSR, S_TF), 'st')
    F.fn(lambda a: cb(), 0)
    F.ins('v_xor_b32 v%d, 16, v%d' % (R_EA, R_TWA)); F.ins('v_xor_b32 v%d, 32, v%d' % (R_TW, R_TRD))
    F.ins('v_mov_b32 v%d, 0' % R_LLR); F.ins('v_mov_b32 v%d, 0' % R_LLI)
    for s in range(7):
        F.ins('v_cmp_lt_u32 s[60:61], %d, v%d' % (s, R_SIDX))
        cmul_add(F, R_T3, R_CI, R_P32R, R_P32I, R_LLR, R_LLI, R_BUF+2*s, R_BUF+2*s+1)
        F.ins('v_cndmask_b32 v%d, v%d, v%d, s[60:61]' % (R_LLR, R_LLR, R_T3))
        F.ins('v_cndmask_b32 v%d, v%d, v%d, s[60:61]' % (R_LLI, R_LLI, R_CI))

def agg_insts():
    out = []
    for m in range(4):
        out.append('s_add_u32 s%d, s%d, %d' % (S_TF, S_BB, 2*m*9216))
        out.append('buffer_load_dwordx4 %s, v%d, %s, s%d offen sc1' % (vr(R_BUF+4*m, 4), R_AO, WSR, S_TF))
    return out
def agg_check(a):
    for m in range(4):
        a('v_cmp_le_u32 s[60:61], %d, v%d' % (8-2*m, R_GH))
        a('v_cndmask_b32 v%d, v%d, v%d, s[60:61]' % (R_BUF+4*m+3, R_TG0, R_BUF+4*m+2))
        a('v_cndmask_b32 v%d, 0, v%d, s[60:61]' % (R_BUF+4*m, R_BUF+4*m))
        a('v_cndmask_b32 v%d, 0, v%d, s[60:61]' % (R_BUF+4*m+1, R_BUF+4*m+1))
    a('v_xor_b32 v%d, v%d, v%d' % (R_T1, R_BUF+3, R_BUF+7))
    a('v_xor_b32 v%d, v%d, v%d' % (R_T2, R_BUF+11, R_BUF+15))
    a('v_xor_b32 v%d, v%d, v%d' % (R_T3, R_BUF+3, R_TG0))
    a('v_xor_b32 v%d, v%d, v%d' % (R_CI, R_BUF+11, R_TG0))
    a('v_or3_b32 v%d, v%d, v%d, v%d' % (R_T1, R_T1, R_T2, R_T3))
    a('v_or_b32 v%d, v%d, v%d' % (R_T1, R_T1, R_CI))
    a('v_cmp_ne_u32 vcc, 0, v%d' % R_T1)
    a('s_nop 1')
    a('s_cmp_eq_u64 vcc, 0')

def scan_late(F, ready_poll):
    for t in agg_insts(): F.ins(t, 'poll', ready_poll)
    split_check(F, 'poll', lambda a: [a(t) for t in agg_insts()], agg_check, 3, P('POLLD', 34), 1, 'r_agg')
    cmul_add(F, R_ER, R_EI, R_P512R, R_P512I, R_BUF, R_BUF+1, R_BUF+4, R_BUF+5)
    for m in range(2, 4):
        cmul_add(F, R_ER, R_EI, R_P512R, R_P512I, R_ER, R_EI, R_BUF+4*m, R_BUF+4*m+1)
    F.ins('v_mov_b32 v%d, v%d' % (R_T3, R_ER)); F.ins('v_mov_b32 v%d, v%d' % (R_CI, R_EI))
    F.ins('v_permlane32_swap_b32 v%d, v%d' % (R_ER, R_T3)); F.ins('v_permlane32_swap_b32 v%d, v%d' % (R_EI, R_CI))
    cmul_add(F, R_ER, R_EI, R_P256R, R_P256I, R_ER, R_EI, R_T3, R_CI)
    cmul_add(F, R_ER, R_EI, R_MR, R_MI, R_ER, R_EI, R_LLR, R_LLI)
    pr, pi_ = R_ER, R_EI
    land = lambda part, blk: R_BUF if (part, blk) == (1, 0) else acc(part, blk) + 8
    def pack(part, blk):
        b = acc(part, blk); neg = '-' if part else ''
        src = (lambda t: uim(16*blk + t)) if part else (lambda t: b + t)
        for k in range(8):
            F.ins('v_cvt_pk_bf16_f32 v%d, %sv%d, %sv%d' % (b+k, neg, src(2*k), neg, src(2*k+1)))
        for u in range(2):
            F.ins('ds_write_b128 v%d, %s' % (R_EA if u else R_TWA, vr(b+4*u, 4)), 'tw', 0, P('TWSP', 1))
        for ph in range(2):
            for u in range(2):
                F.ins('ds_read_b64_tr_b16 %s, v%d offset:%d' % (vr(land(part, blk)+4*ph+2*u, 2), R_TW if u else R_TRD, ph*1024 + u*256), 'tr%d%d' % (part, blk))
    def store(part, blk, dl):
        b = land(part, blk)
        F.ins('s_add_u32 s%d, s%d, %d' % (S_TF, S_HS, part*36*1024))
        F.fn(lambda a: a.wait_lg('tr%d%d' % (part, blk)), 1, 0, dl)
        for ph in range(2):
            F.ins('buffer_store_dwordx4 %s, v%d, %s, s%d offen offset:%d sc1' % (vr(b+4*ph, 4), V_HO+blk, WSR, S_TF, ph*1024), 'hs', 0, P('HSSP', 0))
    for tt in range(32):
        ur, ui = ureg(0, tt), uim(tt)
        F.ins('v_fmac_f32 v%d, v%d, v%d' % (ur, R_LR, pr))
        F.ins('v_fmac_f32 v%d, v%d, v%d' % (ui, R_LI, pr))
        F.ins('v_fmac_f32 v%d, v%d, v%d' % (ur, R_NLI, pi_))
        F.ins('v_fmac_f32 v%d, v%d, v%d' % (ui, R_LR, pi_))
        pr, pi_ = ur, ui
        if tt == 16: pack(0, 0); pack(1, 0)
        if tt == 24: store(0, 0, 0); store(1, 0, 0)
    pack(0, 1); pack(1, 1); store(0, 1, 2); store(1, 1, 2)
    F.fn(hs_flag, 5, 0, P('HSD', 26), 'hsflag')

def hs_flag(a):
    a('s_add_u32 s%d, s%d, %d' % (S_TF, S_T4, HSF_OFF))
    a.wait_vm('hs'); a('s_barrier')
    a('buffer_store_dword v%d, v%d, %s, s%d offen sc1' % (R_TG0, V_PA, WSR, S_TF), 'fl')

WNT = os.environ.get('WNT', '')
XNT = os.environ.get('XNT', '')
W2NT = os.environ.get('W2NT', '')
def he_flag(a):
    a('s_add_u32 s%d, s%d, %d' % (S_T, S_T4, HEF_OFF))
    a.wait_vm('se'); a('s_barrier')
    a('buffer_store_dword v%d, v%d, %s, s%d offen sc1' % (V_PL, V_PA, WSR, S_T), 'fl')

def dma_w1(a, slab, pi, n, tag, vreg=V_WD, dm=0):
    a('s_add_u32 m0, s%d, %d' % (S_M0W, slab*SLAB + n*4096 + dm))
    a('s_add_u32 s%d, s%d, %d' % (S_T, S_P+pi, n*32*9216))
    a('buffer_load_dwordx4 v%d, s[%d:%d], s%d offen%s lds' % (vreg, S_W1, S_W1+3, S_T, WNT), tag)

def dma_b(a, kb, part, tag, vreg=V_BD, dm=0):
    a('s_add_u32 m0, s%d, %d' % (S_M0W, kb*8192 + part*4096 + dm))
    a('s_movk_i32 s%d, %d' % (S_T, kb*128))
    s = S_BIM if part else S_BRE
    a('buffer_load_dwordx4 v%d, s[%d:%d], s%d offen%s lds' % (vreg, s, s+3, S_T, WNT), tag)

def xload(a, ks, blk):
    if ks % 4 == 0: a('s_add_u32 s%d, s%d, %d' % (S_TX, S_XB, (ks//4)*4096))
    a('buffer_load_dwordx4 %s, v%d, %s, s%d offen offset:%d sc1' % (xfrag(blk, ks), V_XO+blk, WSR, S_TX, (ks % 4)*1024), 'x%d_%d' % (blk, ks))

def w2_slot(ks):
    u = ks // 2
    base = (SLAB if u < 6 else 0) + (u % 3)*6144
    return base + (ks % 2)*3072
def w2_dma(ks):
    out = ['s_add_u32 m0, s%d, %d' % (S_MW, w2_slot(ks))]
    for n in range(3):
        out.append('buffer_load_dwordx4 v%d, s[%d:%d], s%d offen offset:%d sc1%s lds' % (V_W2D+n, S_WT, S_WT+3, S_WB, n*1024, W2NT))
    out.append('s_add_u32 s%d, s%d, s%d' % (S_WB, S_WB, S_WSTR))
    return out

def phaseB_setup(F, ready):
    I = lambda t: F.ins(t, None, ready)
    def ld(a):
        a('s_load_dwordx2 s[%d:%d], s[0:1], %d' % (SP0, SP0+1, B_W2))
    F.fn(ld, 1, ready)
    I('s_and_b32 s3, s2, 7'); I('s_lshr_b32 s4, s2, 3')
    I('s_mul_i32 s5, s4, 43'); I('s_lshr_b32 s5, s5, 8')
    I('s_mul_i32 s6, s5, 6'); I('s_sub_u32 s%d, s4, s6' % S_NT)
    if P('BMAP', 1):
        I('s_lshr_b32 s%d, s3, 1' % S_SP); I('s_and_b32 s6, s3, 1'); I('s_lshl_b32 s6, s6, 2'); I('s_add_u32 s%d, s6, s5' % S_MT)
        F.fn(lambda a: (a('s_cmp_eq_u32 s5, 4'), a('s_cselect_b32 s%d, 4, s%d' % (S_SP, S_SP)), a('s_cselect_b32 s%d, s3, s%d' % (S_MT, S_MT))), 3, ready)
    else:
        I('s_mul_i32 s3, s3, 5'); I('s_add_u32 s3, s3, s5')
        I('s_lshr_b32 s%d, s3, 3' % S_SP); I('s_and_b32 s%d, s3, 7' % S_MT)
    I('s_mul_i32 s%d, s%d, 18432' % (S_MW, S_W))
    I('s_mul_i32 s3, s%d, 1152' % S_SP); I('s_mul_i32 s4, s%d, 288' % S_W); I('s_add_u32 s3, s3, s4')
    I('s_mul_i32 s3, s3, 1152'); I('s_mul_i32 s4, s%d, 192' % S_NT); I('s_add_u32 s3, s3, s4')
    I('s_lshl_b32 s4, s%d, 2' % S_NT); I('s_add_u32 s4, s4, s%d' % S_W); I('s_mul_i32 s4, s4, 55296'); I('s_add_u32 s4, s4, %d' % CF_OFF)
    for n in range(3):
        I('v_add_u32 v13, %d, v0' % (64*n))
        I('v_mul_u32_u24 v14, 0x1556, v13'); I('v_lshrrev_b32 v14, 16, v14')
        I('v_mul_u32_u24 v15, 960, v14')
        I('v_lshl_add_u32 v%d, v0, 4, v15' % (V_W2D+n))
    I('v_lshrrev_b32 v14, 5, v0'); I('v_lshlrev_b32 v14, 2, v14'); I('v_bfe_u32 v15, v0, 2, 2'); I('v_add_u32 v14, v14, v15')
    I('v_mul_u32_u24 v14, 192, v14')
    I('v_bfe_u32 v15, v0, 4, 1'); I('v_lshl_add_u32 v14, v15, 5, v14')
    I('v_and_b32 v15, 3, v0'); I('v_lshl_add_u32 v%d, v15, 3, v14' % V_RDB)
    def sel(a):
        a('s_waitcnt lgkmcnt(0)')
        a('s_cmp_eq_u32 s%d, 4' % S_SP)
        a('s_cselect_b32 s%d, s4, s3' % S_WB)
        a('s_cselect_b32 s%d, 3072, s%d' % (S_WSTR, S_WSTR))
        a('s_cselect_b32 s%d, s%d, s%d' % (S_WT, S_WS, SP0))
        a('s_cselect_b32 s%d, s%d, s%d' % (S_WT+1, S_WS+1, SP0+1))
        a('s_cselect_b32 s%d, s%d, s%d' % (S_WT+2, S_WS+2, S_WT+2))
        a('s_cselect_b64 vcc, -1, 0')
        a('s_and_b32 s%d, s%d, 0xffff' % (S_WT+1, S_WT+1))
        a('v_lshlrev_b32 v13, 4, v0')
        for n in range(3): a('v_cndmask_b32 v%d, v%d, v13, vcc' % (V_W2D+n, V_W2D+n))
        a('v_cndmask_b32 v%d, v%d, v13, vcc' % (V_RDB, V_RDB))
        a('s_add_u32 s3, s%d, %d' % (S_MW, SLAB)); a('v_add_u32 v%d, s3, v%d' % (V_RDB, V_RDB))
    I('s_mov_b32 s%d, %d' % (S_WSTR, 16*1152)); I('s_mov_b32 s%d, %d' % (S_WT+2, 4608*1152)); I('s_mov_b32 s%d, 0x00020000' % (S_WT+3))
    F.fn(sel, 5, ready, 4)
    F.fn(lambda a: srd(a, 16, SP0, 4608*1152), 4, ready)
    I('s_lshl_b32 s3, s%d, 12' % S_G); I('s_lshl_b32 s4, s%d, 7' % S_N); I('s_add_u32 s%d, s3, s4' % S_T4)
    I('v_or_b32 v%d, s%d, v0' % (V_PA, S_W)); I('v_min_u32 v%d, 1, v%d' % (V_PA, V_PA)); I('v_lshlrev_b32 v%d, 30, v%d' % (V_PA, V_PA))
    I('v_mov_b32 v%d, s%d' % (V_PL, S_NONCE))

def w2_touch(F, ready):
    I = lambda t: F.ins(t, None, ready)
    if P('P2TOUCH', 2) == 1:
        I('s_mul_i32 s3, s%d, 72' % S_G); I('s_mul_i32 s4, s%d, 18' % S_W); I('s_add_u32 s3, s3, s4')
        I('v_min_u32 v13, 17, v0'); I('v_add_u32 v13, s3, v13'); I('v_mul_u32_u24 v15, 9216, v13')
        I('buffer_load_dword v%d, v15, s[%d:%d], s%d offen' % (V_DUM, S_W1, S_W1+3, S_P+2))
    if P('P2TOUCH', 2) == 2:
        I('s_lshl_b32 s3, s2, 2'); I('s_add_u32 s3, s3, s%d' % S_W); I('s_mul_i32 s3, s3, %d' % (45*128)); I('s_add_u32 s3, s3, 256')
        I('v_min_u32 v13, 19, v0'); I('v_lshrrev_b32 v15, 2, v13'); I('v_mul_u32_u24 v15, 5, v15'); I('v_add_u32 v15, v15, v13')
        I('v_bfe_u32 v13, v13, 1, 1'); I('v_mul_u32_u24 v13, 3, v13'); I('v_add_u32 v15, v15, v13'); I('v_lshl_add_u32 v15, v15, 7, s3')
        I('buffer_load_dword v%d, v15, s[%d:%d], 0 offen' % (V_DUM, S_W1, S_W1+3))
    if P('OTOUCH', 0):
        def f0(a): a('s_load_dwordx2 s[%d:%d], s[0:1], %d' % (SP0+2, SP0+3, D_OUT))
        F.fn(f0, 1, ready)
    if P('TGLOBAL', 1):
        NT_ = P('TNL', 11)
        I('s_lshl_b32 s3, s2, 2'); I('s_add_u32 s3, s3, s%d' % S_W); I('s_mul_i32 s3, s3, %d' % (44*128))
        I('v_min_u32 v14, %d, v0' % (NT_-1)); I('v_lshl_add_u32 v14, v14, 7, s3')
        for k in range(44 // NT_):
            F.ins('buffer_load_dword v%d, v14, s[16:19], 0 offen' % V_DUM, None, ready, P('TSP', 10) if k else 0)
            I('v_add_u32 v14, %d, v14' % (NT_*128))
        if P('OTOUCH', 0):
            I('s_lshl_b32 s3, s2, 2'); I('s_add_u32 s3, s3, s%d' % S_W); I('s_mul_i32 s3, s3, %d' % (39*128))
            I('v_min_u32 v14, 12, v0'); I('v_lshl_add_u32 v14, v14, 7, s3')
            F.fn(lambda a: (a('s_waitcnt lgkmcnt(0)'), srd(a, 20, SP0+2, 2048*2304)), 5, ready + P('OTOUCH', 0))
            for k in range(3):
                F.ins('buffer_load_dword v%d, v14, s[20:23], 0 offen' % V_DUM, None, ready, P('TSP', 10))
                I('v_add_u32 v14, %d, v14' % (13*128))
        return
    I('s_lshr_b32 s3, s2, 3'); I('s_lshl_b32 s3, s3, 2'); I('s_add_u32 s3, s3, s%d' % S_W); I('s_mul_i32 s3, s3, %d' % (88*128))
    I('s_and_b32 s4, s2, 7'); I('s_mul_i32 s4, s4, 5'); I('s_add_u32 s5, s4, 4'); I('s_lshr_b32 s4, s4, 3'); I('s_lshr_b32 s5, s5, 3')
    I('s_mul_i32 s4, s4, %d' % (1152*1152)); I('s_mul_i32 s5, s5, %d' % (1152*1152)); I('s_add_u32 s4, s4, s3'); I('s_add_u32 s5, s5, s3')
    NT_ = P('TNL', 11); nper = 88 // NT_
    I('v_min_u32 v13, %d, v0' % (NT_-1)); I('v_lshlrev_b32 v13, 7, v13')
    I('v_add_u32 v14, s4, v13'); I('v_add_u32 v15, s5, v13')
    for k in range(nper):
        F.ins('buffer_load_dword v%d, v14, s[16:19], 0 offen' % V_DUM, None, ready, P('TSP', 10) if k else 0)
        F.ins('buffer_load_dword v%d, v15, s[16:19], 0 offen' % V_DUM, None, ready, P('TSP', 10))
        if k < nper-1: I('v_add_u32 v14, %d, v14' % (NT_*128)); I('v_add_u32 v15, %d, v15' % (NT_*128))

def code_touch(a):
    label_n[0] += 1; L = 'CT%d' % label_n[0]
    a('s_getpc_b64 s[4:5]'); a(L + ':')
    a('s_add_u32 s4, s4, A_DONE-%s' % L); a('s_addc_u32 s5, s5, 0')
    a('s_lshl_b32 s6, s%d, 13' % S_W)
    a('v_lshl_add_u32 v14, v0, 7, s6'); a('v_min_u32 v14, KLAST-A_DONE, v14')
    a('global_load_dword v10, v14, s[4:5]')

TDN = P('TDN', 0)
def cfl_check(a):
    label_n[0] += 1; L = 'CFS%d' % label_n[0]
    a('s_cmp_lg_u32 s%d, 4' % S_SP); a('s_cbranch_scc1 %s' % L)
    save = list(a.vm)
    a('v_min_u32 v15, 47, v0'); a('v_lshlrev_b32 v15, 7, v15'); a('s_mov_b32 s%d, %d' % (S_T3, CFL_OFF))
    ldc = 'buffer_load_dword v14, v15, %s, s%d offen sc1' % (WSR, S_T3)
    a(ldc); a('s_waitcnt vmcnt(0)')
    poll_loop(a, lambda a: a(ldc), chk_all_eq(14))
    a.vm = save
    a(L + ':')

def w2_read_br(ks):
    def f(a):
        label_n[0] += 1; L = 'WR%d' % label_n[0]
        off = w2_slot(ks) - SLAB
        a.wait_vm('v%d' % ks)
        a('s_cmp_eq_u32 s%d, 4' % S_SP); a('s_cbranch_scc1 %s_S' % L)
        save = list(a.lg)
        for dt in range(3):
            base = (ks*3 + dt)*4
            a('ds_read_b64_tr_b16 %s, v%d offset:%d' % (ar(base, 2), V_RDB, off + dt*64), 'wr%d' % ks)
            a('ds_read_b64_tr_b16 %s, v%d offset:%d' % (ar(base+2, 2), V_RDB, off + dt*64 + 1536), 'wr%d' % ks)
        a('s_branch %s_E' % L)
        a(L + '_S:')
        a.lg = save
        for dt in range(3):
            base = (ks*3 + dt)*4
            a('ds_read_b64 %s, v%d offset:%d' % (ar(base, 2), V_RDB, off + dt*1024), 'wr%d' % ks)
            a('ds_read_b64 %s, v%d offset:%d' % (ar(base+2, 2), V_RDB, off + dt*1024 + 8), 'wr%d' % ks)
        a(L + '_E:')
    return f

W0E = P('W0E', 6); W0M = P('W0M', 0)
W1E = 18; W1A = P('W1A', 0); W1P = P('W1P', 0)
assert W1P <= W1A
def phaseA(a, mixed, st, bt=0, mark=None):
    S = Sched(a); S.BYT = P('BYTA', 48); S.MAXI = P('MAXIA', 99)
    SC = S.stream('scan'); D = S.stream('dma'); E = S.stream('epi'); B = S.stream('bpre')
    TC = Stream('touch')
    EF = Stream('ef'); EF.fn(he_flag, 5); a.tagcount = {}
    NSE = 4 if mixed else 16; tse = [None]
    def ef_gate():
        if a.tagcount.get('se', 0) < NSE: return False
        if tse[0] is None: tse[0] = S.mf
        return S.mf >= tse[0] + P('EFD', 30)
    EF.gate = ef_gate
    pend = [lambda a, ks=ks, blk=blk: xload(a, ks, blk) for blk in range(2) for ks in range(36)]
    pend += [lambda a, n=n: dma_w1(a, 1, 1, n, 'w1_%d' % n) for n in range(W1E, 18)]
    sub = {}
    lo = W1E
    while lo < 18:
        hi = min(18, lo + P('W1SUB', 6)); sub[2*lo] = hi - 1; lo = hi
    for _ in range(P('XBURST', 16)): pend.pop(0)(a)
    a.wait_vm('w1')
    nstamp(a, 'xb'); a('s_barrier'); nstamp(a, 'bar0')
    if mixed: scan_tables(SC)
    phaseB_setup(B, 0)
    frs = []
    for blk in range(2):
        for ks in range(36):
            for c in range(2): frs.append(('p1', blk, ks, c))
    for ci in range(4):
        for ks in range(36): frs.append(('c', ci, ks, ci & 1))
    consumed = [0]; trbase = [0, 0]; reads = []
    def pre(n):
        kind, ci, ks, c = frs[n]
        def f(a):
            if kind == 'p1' and mixed and ks == 32 and c == 0:
                for r in range(4): a('v_add_u32 v%d, 0x10000, v%d' % (V_BR+r, V_BR+r))
            if kind == 'p1' and mixed and ks == 0 and c == 0 and ci == 1:
                for r in range(4): a('v_subrev_u32 v%d, 0x10000, v%d' % (V_BR+r, V_BR+r))
            if kind == 'c' and ci == 0 and ks in sub:
                while ('w1_%d' % sub[ks]) not in a.seen: pend.pop(0)(a)
                a.wait_vm('w1_%d' % sub[ks])
                if ks: a('s_barrier')
            if kind == 'c' and ci == 0 and ks == 0:
                a('s_waitcnt lgkmcnt(0)'); a('s_barrier')
                for k in range(18): D.fn(lambda a, k=k: dma_w1(a, 0, 2, k, 'w2'), 4, 0, P('W2SP', 3))
            if kind == 'c' and ci == 2 and ks == 0:
                assert not pend and not D.q and not TC.q
                a.wait_vm('w2'); a('s_waitcnt lgkmcnt(0)'); a('s_barrier')
            if not (kind == 'p1' and mixed):
                slab = 0 if kind == 'p1' else (1 if ci < 2 else 0)
                bias = slab*SLAB + (36864 if ks >= 18 else 0)
                if trbase[c] != bias:
                    a('v_add_u32 v%d, 0x%x, v%d' % (V_TR+c, (bias - trbase[c]) & 0xffffffff, V_TR+c)); trbase[c] = bias
        return f
    for n, (kind, ci, ks, c) in enumerate(frs):
        dst = V_WF + 4*(n % 6); tag = 'f%d' % n
        if kind == 'p1' and mixed:
            reads.append((n, lambda a, n=n, dst=dst, ks=ks, c=c, tag=tag: (pre(n)(a), a('ds_read_b128 %s, v%d offset:%d' % (vr(dst, 4), V_BR + (ks & 3), ((ks >> 2)*8192 + c*4096) % 65536), tag))))
        else:
            off = (ks % 18)*2048
            reads.append((n, lambda a, n=n, dst=dst, c=c, off=off, tag=tag: (pre(n)(a), a('ds_read_b64_tr_b16 %s, v%d offset:%d' % (vr(dst, 2), V_TR+c, off), tag))))
            reads.append((n, lambda a, dst=dst, c=c, off=off, tag=tag: a('ds_read_b64_tr_b16 %s, v%d offset:%d' % (vr(dst+2, 2), V_TR+c, off+512), tag)))
    def issue_reads(quota):
        while reads and quota > 0 and reads[0][0] < consumed[0] + 6:
            S.must_fn(reads.pop(0)[1]); quota -= 1
    def issued(n): return not reads or reads[0][0] > n
    accset = ([2, 3, 2, 0] if P('SC2', 1) else [2, 3, 2, 3]) if mixed else [2, 3, 0, 1]
    issue_reads(100)
    n = 0
    while n < len(frs):
        kind, ci, ks, c = frs[n]
        S.GAP = P('GP1M' if mixed else 'GP1P', 6) if kind == 'p1' else Sched.GAP
        if kind == 'p1' and ks == 1 and c == 0 and ci == 0: stamp(a, st); nstamp(a, 'p1s')
        if kind == 'p1' and ks == 0 and c == 0 and ci == 1:
            nstamp(a, 'p1b')
            S.drain(stream=B)
            if P('W2TOUCH', 1):
                w2_touch(TC, S.mf + P('TAT', 44)); S.always = [TC]
            if mixed: scan_early(SC, S.mf + 3, 0)
            else:
                epi_ffn(E, 0, 0, 0, S.mf + 3, (0,)); epi_ffn(E, 1, 0, 1, S.mf + 3, (0,))
        if kind == 'c' and ks == 0:
            if ci in (0, 2): stamp(a, st)
            nstamp(a, 'c%d' % ci)
            S.note = None; S.drain(('acc', accset[ci]))
            if S.note: sys.stderr.write('  forced drain at chunk %d: %s\n' % (ci, S.note))
            rdy = S.mf + 2
            if ci == 0:
                if mixed:
                    scan_early(SC, rdy, 1, lambda: setattr(S, 'streams', [D, SC, E, B])); scan_late(SC, S.mf + P('POLLAT', 100))
                else:
                    epi_ffn(E, 0, 0, 0, rdy, (1,)); epi_ffn(E, 1, 0, 1, rdy, (1,))
            else:
                epi_ffn(E, accset[ci-1], 1 + (ci-1)//2, (ci-1) & 1, rdy, (0, 1), mixed)
            if ci == 1:
                S.streams = [D, SC, E, B]
            if ci == 0:
                S.drain(stream=B)
            if ci == 2:
                mark(S)
                if bt:
                    B.ins('v_min_u32 v15, 47, v0'); B.ins('v_lshlrev_b32 v15, 7, v15'); B.ins('s_mov_b32 s%d, %d' % (S_T3, CFL_OFF))
                    ldc = 'buffer_load_dword v10, v15, %s, s%d offen sc1' % (WSR, S_T3)
                    B.ins(ldc, 'cfl')
                    B.fn(lambda a: (a.wait_vm('cfl'), poll_loop(a, lambda a: a(ldc), chk_all_eq(10))), 5, 0, 20)
                if P('CTOUCH', 0): B.fn(code_touch, 5, S.mf + 2)
                B.ins('s_mov_b32 s%d, 0x%x' % (S_MASK, 0x3ffff if bt else 0x3fffffff)); B.ins('s_mov_b32 s%d, %d' % (S_PF, HSF_OFF if bt else HEF_OFF))
                B.ins('s_lshl_b32 s3, s%d, 12' % S_MT); B.ins('s_add_u32 s%d, s%d, s3' % (S_PF, S_PF))
                B.fn(lambda a: flag_lanes(a, 0), 5)
                for k2 in range(6):
                    for t in w2_dma(k2): B.ins(t, 'v%d' % k2, S.mf + ((24 + 8*k2) if bt else (P('W2AT', 4) + 11*k2)), (2 if bt else P('DMSP', 3)) if 'lds' in t else 0)
                S.streams = [EF, B, SC, E]
            if ci == 3:
                if mixed and P('SC2', 1):
                    keep = [it for it in SC.q if it[4] == 'hsflag']; SC.q = [it for it in SC.q if it[4] != 'hsflag']
                    sys.stderr.write('  forced SC drain %s\n' % S.pending()); S.drain(stream=SC); SC.q = keep
                for k2 in range(6):
                    B.fn(lambda a, k2=k2: a.wait_vm('v%d' % k2), 1, S.mf + 5 + 11*k2)
                    tmp = Asm(); w2_read(tmp, k2, bt, V_RDB)
                    for j, t in enumerate(tmp.lines): B.ins(t.strip(), 'wr%d' % k2, 0, 1 if j % 2 == 0 and j else 0)
                    B.fn(lambda a, k2=k2: a.wait_lg('wr%d' % k2), 1, 0, 3)
                    for t in w2_dma(k2+6): B.ins(t, 'v%d' % (k2+6), 0, P('DMSP2', 2) if 'lds' in t else 0)
                S.streams = [EF, B, SC, E]
        while not issued(n): issue_reads(1)
        S.fill(reserve=2 if kind == 'p1' and c == 0 else 1)
        if kind == 'p1':
            if c == 0:
                S.must_fn(lambda a: a.wait_vm('x%d_%d' % (ci, ks)))
                S.must_fn(lambda a: a.wait_lg('f%d' % (n+1) if issued(n+1) else 'f%d' % n))
            else: S.must_fn(lambda a: a.wait_lg('f%d' % n))
        else:
            if ks % 2 == 0 and n + 1 < len(frs) and issued(n+1): S.must_fn(lambda a: a.wait_lg('f%d' % (n+1)))
            S.must_fn(lambda a: a.wait_lg('f%d' % n))
        blks = (ci,) if kind == 'p1' else (0, 1)
        for blk in blks:
            sset = c if kind == 'p1' else accset[ci]
            d = vr(acc(sset, blk), 16); w = vr(V_WF + 4*(n % 6), 4); x = xfrag(blk, ks)
            A, Bo = (x, w) if (mixed and kind == 'p1') else (w, x)
            S.mfma('v_mfma_f32_32x32x16_bf16 %s, %s, %s, %s' % (d, A, Bo, d if ks else '0'))
            if blk == blks[-1]: consumed[0] = n + 1
            issue_reads(2 if kind == 'p1' else 1)
            if pend and (c == 0 if kind == 'p1' else blk == 0): S.must_fn(pend.pop(0))
        n += 1
    sys.stderr.write('phaseA mixed=%d pending at end: %s\n' % (mixed, S.pending()))
    stamp(a, st); nstamp(a, 'tl0')
    S.mf += 1000
    S.drain(stream=B)
    a('s_barrier')
    epi_ffn(E, accset[3], 2, 1, 0, (0, 1), mixed)
    assert not SC.q and (tse[0] is not None or not EF.q)
    q = E.q; E.q = []
    at = max(0, (tse[0] + P('EFD', 30) - (S.mf - 1000))*7)
    dm = []
    for k2 in range(12, 12 + TDN):
        t = w2_dma(k2); dm += [(t[0:2], k2), (t[2:3], k2), (t[3:5], k2)]
    sp_ = max(1, (len(q) - P('TD0', 10)) // max(1, 3*TDN))
    for i, it in enumerate(q):
        if EF.q and i >= at: EF.q.pop()[0](a)
        if i == max(0, len(q) - P('EPA', 150)): flag_poll('hp')[0](a)
        it[0](a)
        if dm and i >= P('TD0', 10) and (i - P('TD0', 10)) % sp_ == 0:
            ts, k2 = dm.pop(0)
            for t in ts: a(t, 'v%d' % k2)
    assert not dm and a.vm[-1] == 'st'
    nstamp(a, 'tl1')
    if not bt:
        a.wait_vm('hp')
        ld, chk = flag_poll()
        poll_loop(a, ld, chk, 1, 'r_h')
    a.wait_vm('v11')
    stamp(a, st); nstamp(a, 't3')

VB_HO = 1; VB_O = 2; VB_RD = 5; VB_RW = 6; VB_T = 7; VB_RR = 10; VB_PO = 13
VB_ACC = 16; VB_RB = 112; VB_H = 152
A_XX = 216
RED = 36864
S_FB = 34
def wfrag(ks, dt): return ar((ks*3 + dt)*4, 4)
def accr(s, dt): return VB_ACC + 48*s + 16*dt
X = os.environ.get('X', '')

def w2_read(a, ks, ssm, reg=None):
    sl = w2_slot(ks); hi = sl >= SLAB
    for dt in range(3):
        base = (ks*3 + dt)*4
        if reg is None: reg = VB_RD
        off = sl - (SLAB if hi else 0)
        if ssm:
            a('ds_read_b128 %s, v%d offset:%d' % (ar(base, 4), reg, off + dt*1024), 'wr%d' % ks)
        else:
            a('ds_read_b64_tr_b16 %s, v%d offset:%d' % (ar(base, 2), reg, off + dt*64), 'wr%d' % ks)
            a('ds_read_b64_tr_b16 %s, v%d offset:%d' % (ar(base+2, 2), reg, off + dt*64 + 1536), 'wr%d' % ks)

def reduce_fill(R, i, ready, send, ssm, io=None, dl=1, wrd=2):
    s = i & 1; grp = ('acc', s); buf = s*RED
    if io is None: io = i
    for q in range(1, 4):
        for dt in range(3):
            R.ins('ds_write_b128 v%d, %s offset:%d' % (VB_RW, vr(accr(s, dt) + 4*q, 4), buf + (q-1)*3072 + dt*1024), 'rw%d' % i, ready, wrd, grp)
    R.fn(lambda a: (a.wait_lg('rw%d' % i), a('s_barrier')), 2, 0, 2*dl)
    for q in range(1, 4):
        for dt in range(3):
            R.ins('ds_read_b128 %s, v%d offset:%d' % (vr(VB_RB + ((q-1)*3+dt)*4, 4), VB_RR+q-1, buf + dt*1024), 'rr%d' % i)
    R.fn(lambda a: a.wait_lg('rr%d' % i), 1, 0, 4*dl)
    for k in range(12):
        own = accr(s, k//4) + k % 4
        R.ins('v_add_f32 v%d, v%d, v%d' % (VB_RB+k, VB_RB+k, own), None, 0, 0, grp)
        R.ins('v_add_f32 v%d, v%d, v%d' % (VB_RB+12+k, VB_RB+12+k, VB_RB+24+k))
    SB = VB_RB + 24
    for k in range(12):
        dst = VB_RB + k
        R.ins('v_add_f32 v%d, v%d, v%d' % (dst, VB_RB+k, VB_RB+12+k), 'sum%d' % i)
    if send:
        ng = 2
        if True:
            for p in range(6): R.ins('v_cvt_pk_bf16_f32 v%d, v%d, v%d' % (SB + 4*(p//3) + p % 3, VB_RB+2*p, VB_RB+2*p+1))
        for g in range(ng): R.ins('v_mov_b32 v%d, s%d' % (SB + 4*g + 3, S_NONCE))
        R.ins('s_mul_i32 s%d, s%d, %d' % (S_TF, S_ORD+io, 6*4*ng*1024))
        R.ins('s_add_u32 s%d, s%d, s%d' % (S_TF, S_TF, S_PB))
        for g in range(ng):
            if 'nost' in X: continue
            R.ins('buffer_store_dwordx4 %s, v%d, %s, s%d offen offset:%d%s' % (vr(SB+4*g, 4), VB_PO, WSR, S_TF, g*1024, '' if 'plainst' in X else ' sc1'), 'st', 0, 2 if g else 0)

def ffn_loads(quads):
    return ['buffer_load_dwordx4 %s, v%d, %s, s%d offen offset:%d sc1' % (vr(quads[src*2+g], 4), VB_PO, WSR, S_FB+src, g*1024) for src in range(3) for g in range(2)]
def y_loads(quads):
    return ['buffer_load_dwordx4 %s, v%d, %s, s%d offen offset:%d sc1' % (vr(quads[g], 4), VB_PO, WSR, S_T2, g*1024) for g in range(2)]
def tag_check(quads):
    def f(a):
        t = [q+3 for q in quads]
        for op, d in (('v_min3_u32', VB_T), ('v_max3_u32', VB_T+1)):
            a('%s v%d, v%d, v%d, v%d' % (op, d, t[0], t[1], t[2 % len(t)]))
            r = t[3:]
            while r:
                a('%s v%d, v%d, v%d, v%d' % (op, d, d, r[0], r[1] if len(r) > 1 else r[0])); r = r[2:]
        a('v_xor_b32 v%d, s%d, v%d' % (VB_T, S_NONCE, VB_T)); a('v_xor_b32 v%d, s%d, v%d' % (VB_T+1, S_NONCE, VB_T+1))
        a('v_or_b32 v%d, v%d, v%d' % (VB_T, VB_T, VB_T+1))
        a('v_cmp_ne_u32 vcc, 0, v%d' % VB_T)
        a('s_nop 1')
        a('s_cmp_eq_u64 vcc, 0')
    return f
def checked(G, tag, loads, quads, dl):
    split_check(G, tag, lambda a: [a(t) for t in loads], tag_check(quads), 3, dl, P('RSLEEP', 8) if dl else P('RSL2', 1), 'r_' + tag)
def presum(G, quads, ps):
    pk = lambda src, k: quads[src*2 + (k//2)//3] + (k//2) % 3
    unp = lambda d, src, k: ('v_and_b32 v%d, s15, v%d' if k % 2 else 'v_lshlrev_b32 v%d, 16, v%d') % (d, pk(src, k))
    for k in range(12):
        G.ins(unp(ps(k), 0, k)); G.ins(unp(VB_T, 1, k)); G.ins(unp(VB_T+1, 2, k))
        G.ins('v_add_f32 v%d, v%d, v%d' % (ps(k), ps(k), VB_T)); G.ins('v_add_f32 v%d, v%d, v%d' % (ps(k), ps(k), VB_T+1))
def prep_s(G, j, yq, sq):
    for k in range(12):
        pk = yq[(k//2)//3] + (k//2) % 3; s = sq[k//4] + k % 4
        G.ins('v_accvgpr_read_b32 v%d, a%d' % (VB_T + k % 2, A_XX+12*j+k))
        G.ins(('v_and_b32 v%d, s%d, v%d' % (s, S_HM, pk)) if k % 2 else ('v_lshlrev_b32 v%d, 16, v%d' % (s, pk)))
        G.ins('v_and_b32 v%d, s%d, v%d' % (VB_T + k % 2, S_HM, VB_T + k % 2))
        G.ins('v_fma_f32 v%d, 2.0, v%d, v%d' % (s, s, VB_T + k % 2))
S_HM = 15
OUTFL = os.environ.get('OUTFL', ' sc1,')
def chain(G, j, ps, yq, first=None):
    y = lambda k: yq[k//4] + k % 4
    o = lambda k: VB_RB + k
    t1 = lambda k: VB_RB + 12 + k
    t2 = lambda k: VB_RB + 24 + k
    rnd = [lambda k: None if k % 2 else 'v_cvt_pk_bf16_f32 v%d, v%d, v%d' % (o(k+1), o(k), o(k+1)),
           lambda k: ('v_and_b32 v%d, 0xffff0000, v%d' % (o(k), o(k))) if k % 2 else ('v_lshlrev_b32 v%d, 16, v%d' % (o(k), o(k+1)))]
    rnd = []
    stages = [lambda k: 'v_add_f32 v%d, v%d, v%d' % (o(k), o(k), ps(k))] + rnd + [
        lambda k: 'v_mul_f32 v%d, s%d, v%d' % (t1(k), S_NL2E, o(k)),
        lambda k: 'v_exp_f32 v%d, v%d' % (t1(k), t1(k)),
        lambda k: 'v_accvgpr_read_b32 v%d, a%d' % (t2(k), A_XX+12*j+k),
        lambda k: 'v_add_f32 v%d, 1.0, v%d' % (t1(k), t1(k)),
        lambda k: 'v_rcp_f32 v%d, v%d' % (t1(k), t1(k)),
        lambda k: 'v_lshlrev_b32 v%d, 16, v%d' % (t2(k), t2(k)),
        lambda k: 'v_mul_f32 v%d, v%d, v%d' % (o(k), o(k), t1(k))] + rnd + [
        lambda k: 'v_fma_f32 v%d, v%d, v%d, v%d' % (t2(k), y(k), o(k), t2(k))]
    if os.environ.get('PERT'): stages.append(lambda k: 'v_mul_f32 v%d, 0x%08x, v%d' % (t2(k), f32bits(float(os.environ['PERT'])), t2(k)))
    X4 = P('X4', 1) and (j == 0 or P('X4B', 0)); fl = OUTFL.split(',')[j % len(OUTFL.split(','))]
    if not X4:
        stages.append(lambda k: 'buffer_store_dword v%d, v%d, s[%d:%d], s%d offen offset:%d%s' % (t2(k), VB_O+1 + (k % 4)//2, S_OUT, S_OUT+3, S_T3, (k % 2)*2304 + (k//4)*128, fl))
    if first: G.fn(first, 0)
    for k0 in range(0, 12, 4):
        for stg in stages:
            for k in range(k0, k0+4):
                t = stg(k)
                if t: G.ins(t, 'out')
        if X4:
            for src, dst, bit, qp, mi in ((t2, t1, 1, '[1,0,3,2]', 0), (t1, o, 2, '[2,3,0,1]', 2)):
                for hi in (1, 0):
                    def f(a, src=src, dst=dst, bit=bit, qp=qp, mi=mi, hi=hi, k0=k0):
                        a('s_mov_b64 vcc, s[%d:%d]' % (S_QM[mi+hi], S_QM[mi+hi]+1))
                        for k in range(4):
                            if bool(k & bit) == bool(hi):
                                a('v_cndmask_b32_dpp v%d, v%d, v%d, vcc quad_perm:%s row_mask:0xf bank_mask:0xf' % (dst(k0+k), src(k0+(k ^ bit)), src(k0+k), qp))
                    G.fn(f, 3)
            G.ins('buffer_store_dwordx4 %s, v%d, s[%d:%d], s%d offen offset:%d%s' % (vr(o(k0), 4), VB_RD, S_OUT, S_OUT+3, S_T3, (k0//4)*128, fl), 'out')
S_QM = (24, 26, 28, 50)

XT = 224
def xx_setup(a):
    a('s_load_dwordx2 s[%d:%d], s[0:1], %d' % (SP0, SP0+1, A_X))
    a('s_load_dwordx2 s[%d:%d], s[0:1], %d' % (SP0+2, SP0+3, D_OUT))
    a('s_load_dwordx2 s[%d:%d], s[0:1], %d' % (SP0+4, SP0+5, A_DSK))
def xx_fill(G):
    T = XT; I = G.ins
    SA, DA = 253, 254
    I('s_lshl_b32 s3, s%d, 8' % S_MT); I('s_lshl_b32 s4, s%d, 6' % S_SP); I('s_add_u32 s3, s3, s4')
    I('s_lshl_b32 s4, s%d, 2' % S_W); I('s_add_u32 s3, s3, s4')
    I('v_and_b32 v%d, 32, v0' % VB_O); I('v_add_u32 v%d, s3, v%d' % (VB_O, VB_O))
    I('v_lshlrev_b32 v%d, 3, v%d' % (SA, VB_O))
    I('v_mul_u32_u24 v%d, 576, v%d' % (VB_O, VB_O))
    I('v_and_b32 v%d, 31, v0' % (VB_O+1)); I('s_mul_i32 s4, s%d, 96' % S_NT)
    I('v_add_u32 v%d, s4, v%d' % (DA, VB_O+1)); I('v_add_u32 v%d, v%d, v%d' % (VB_O, VB_O, DA)); I('v_lshlrev_b32 v%d, 1, v%d' % (DA, DA))
    I('v_lshlrev_b32 v%d, 2, v%d' % (VB_O+1, VB_O)); I('v_add_u32 v%d, 4608, v%d' % (VB_O+2, VB_O+1)); I('v_lshlrev_b32 v%d, 1, v%d' % (VB_O, VB_O))
    if P('X4', 1):
        I('v_and_b32 v%d, 3, v0' % VB_RD); I('v_mul_u32_u24 v%d, 2300, v%d' % (VB_RD, VB_RD)); I('v_add_u32 v%d, v%d, v%d' % (VB_RD, VB_O+1, VB_RD))
        for r, v in zip(S_QM, (0x55555555, 0xaaaaaaaa, 0x33333333, 0xcccccccc)):
            I('s_mov_b32 s%d, 0x%x' % (r, v)); I('s_mov_b32 s%d, s%d' % (r+1, r))
    G.fn(lambda a: srd(a, S_X, SP0, 2048*1152), 4); G.fn(lambda a: srd(a, S_OUT, SP0+2, 2048*2304), 4)
    I('s_movk_i32 s7, %d' % (16*1152)); I('s_mov_b32 s6, %d' % STAT_OFF)
    ST_, DK, TT = 232, 248, 251
    for dt in range(3):
        I('global_load_ushort v%d, v%d, s[%d:%d] offset:%d' % (DK+dt, DA, SP0+4, SP0+5, dt*64), 'xx')
    for j in range(2):
        for u in range(2):
            I('buffer_load_dwordx4 %s, v%d, %s, s6 offen offset:%d sc1' % (vr(ST_+8*j+4*u, 4), SA, WSR, j*128 + u*16), 'xx', 0, 1)
    for j in range(2):
        for k in range(12):
            I('buffer_load_ushort a%d, v%d, s[%d:%d], %s offen offset:%d' % (A_XX+12*j+k, VB_O, S_X, S_X+3, 's7' if j else '0', (k % 4)*1152 + (k//4)*64), 'xx%d' % j, 0, P('XXSP', 2))
    for j in range(2):
        G.fn(lambda a, j=j: a.wait_vm('xx%d' % j), 1, 0, P('XXD', 6) if j == 0 else 0)
        if j == 0:
            for dt in range(3): I('v_lshlrev_b32 v%d, 16, v%d' % (DK+dt, DK+dt))
        x = lambda k: 14 + k % 2
        t = lambda k: TT + k % 2
        mm = lambda k: ST_+8*j+2*(k % 4)
        st = [lambda k: 'v_accvgpr_read_b32 v%d, a%d' % (x(k), A_XX+12*j+k),
              lambda k: 'v_lshlrev_b32 v%d, 16, v%d' % (x(k), x(k)),
              lambda k: 'v_sub_f32 v%d, v%d, v%d' % (t(k), x(k), mm(k)),
              lambda k: 'v_mul_f32 v%d, v%d, v%d' % (t(k), t(k), mm(k)+1),
              lambda k: 'v_mul_f32 v%d, v%d, v%d' % (t(k), t(k), DK+k//4),
              lambda k: 'v_cvt_pk_bf16_f32 v%d, v%d, v%d' % (t(k), x(k), t(k)),
              lambda k: 'v_accvgpr_write_b32 a%d, v%d' % (A_XX+12*j+k, t(k))]
        for k0 in range(0, 12, 2):
            for s in st:
                for k in range(k0, k0+2): I(s(k))

FPA = 9; FPL = 8
def flag_lanes(a, two):
    a('v_and_b32 v14, 31, v0'); a('v_lshrrev_b32 v15, v14, s%d' % S_MASK); a('v_and_b32 v15, 1, v15'); a('v_xor_b32 v15, 1, v15')
    a('v_lshlrev_b32 v%d, 7, %s' % (FPA, 'v0' if two else 'v14'))
    a('v_lshl_add_u32 v%d, v15, 30, v%d' % (FPA, FPA))
def flag_poll(tag='hp'):
    def ld(a):
        a('buffer_load_dword v%d, v%d, %s, s%d offen sc1' % (FPL, FPA, WSR, S_PF), tag)
    def chk(a):
        a('v_cmp_ne_u32 vcc, s%d, v%d' % (S_NONCE, FPL))
        a('s_nop 1')
        a('s_or_b32 s4, vcc_lo, vcc_hi'); a('s_and_b32 s4, s4, s%d' % S_MASK)
        a('s_cmp_eq_u32 s4, 0')
    return ld, chk

def b_common(a, ssm, part=0):
  if part != 2:
    a('s_mul_i32 s%d, s%d, %d' % (S_HBB, S_MT, 8*HF_RB)); a('s_mul_i32 s3, s%d, %d' % (S_SP, 72*1024))
    a('s_add_u32 s%d, s%d, s3' % (S_HBB, S_HBB)); a('s_add_u32 s%d, s%d, %d' % (S_HBB, S_HBB, HF_OFF))
    a('s_lshl_b32 s4, s%d, 3' % S_W)
    a('v_add_u32 v14, s4, v0'); a('v_and_b32 v14, 31, v14'); a('v_and_b32 v15, 32, v0'); a('v_add_u32 v14, v14, v15')
    a('s_mul_i32 s3, s%d, %d' % (S_W, 18*1024)); a('v_lshl_add_u32 v%d, v14, 4, s3' % VB_HO)
  if part != 1:
    a('s_mul_i32 s%d, s%d, 48' % (S_TEAM, S_MT)); a('s_add_u32 s%d, s%d, s%d' % (S_TEAM, S_TEAM, S_NT))
    if True:
        a('s_lshl_b32 s3, s%d, 13' % S_TEAM); a('s_mul_i32 s4, s%d, %d' % (S_SP, 64*6*8192)); a('s_add_u32 s3, s3, s4'); a('s_add_u32 s%d, s3, %d' % (S_PB, PF_OFF))
        a('s_lshl_b32 s3, s%d, 11' % S_W); a('v_lshl_add_u32 v%d, v0, 4, s3' % VB_PO)
    for q in range(1, 4):
        a('s_sub_u32 s3, s%d, %d' % (S_W, q)); a('s_and_b32 s3, s3, 3'); a('s_mul_i32 s3, s3, 9216'); a('s_add_u32 s3, s3, %d' % ((q-1)*3072 + SLAB))
        a('v_lshl_add_u32 v%d, v0, 4, s3' % (VB_RR+q-1))
    a('s_mul_i32 s3, s%d, 9216' % S_W); a('s_add_u32 s3, s3, %d' % SLAB); a('v_lshl_add_u32 v%d, v0, 4, s3' % VB_RW)

def phaseB(a, ssm, st):
    os.environ['CLD'] = os.environ.get('CLDB', '2'); os.environ['CST'] = os.environ.get('CSTB', '3')
    NH = P('NHS', 24) if ssm else P('NHF', 18)
    hslot = lambda n: VB_H + 4*(n % NH)
    KE = P('KE', 8)
    seq = [(0, k) for k in range(KE)] + [(1, k) for k in range(KE)] + [(0, k) for k in range(KE, 18)] + [(1, k) for k in range(KE, 18)]
    seq += [(i, ks) for i in range(2, 8) for ks in range(18)]
    if ssm: seq = [(i, ks) for i in range(8) for ks in range(18)]
    def hload(a, n):
        i, ks = seq[n]
        if n == 0 or seq[n-1][0] != i:
            a('s_mul_i32 s%d, s%d, %d' % (S_HN, S_ORD+i, HF_RB)); a('s_add_u32 s%d, s%d, s%d' % (S_HN, S_HN, S_HBB))
            if ks: a('s_add_u32 s%d, s%d, %d' % (S_HN, S_HN, (ks//4)*4096))
        elif ks % 4 == 0: a('s_add_u32 s%d, s%d, 4096' % (S_HN, S_HN))
        a('buffer_load_dwordx4 %s, v%d, %s, s%d offen offset:%d sc1' % (vr(hslot(n), 4), VB_HO, WSR, S_HN, (ks % 4)*1024), 'h%d' % n)
    a.tagcount = {}
    a.vm = ['st']; a.seen |= {'st'}
    nld = [0]; okl = [ssm]
    def next_h(a):
        if nld[0] < 144: hload(a, nld[0]); nld[0] += 1
    a('s_add_u32 s%d, s%d, %d' % (S_TF, S_T4, HFL_OFF))
    if ssm:
        for i, r in enumerate((0, 2, 4, 6, 1, 3, 3, 3)): a('s_mov_b32 s%d, %d' % (S_ORD+i, r))
        a('s_mov_b32 s%d, 1' % S_SHORT); a('s_mov_b32 s%d, 0' % S_T3)
        for k2 in range(12 + TDN, 15):
            for t in w2_dma(k2): a(t, 'v%d' % k2)
        b_common(a, ssm)
    else:
        for i in range(3):
            a('s_add_u32 s3, s%d, %d' % (S_SP, i+1)); a('s_and_b32 s3, s3, 3'); a('s_lshl_b32 s%d, s3, 1' % (S_ORD+i)); a('s_add_u32 s%d, s%d, 1' % (S_ORD+3+i, S_ORD+i))
        b_common(a, ssm, 1)
        for _ in range(P('HBURST', 10)): next_h(a)
        a('s_lshl_b32 s%d, s%d, 1' % (S_ORD+6, S_SP)); a('s_add_u32 s%d, s%d, 1' % (S_ORD+7, S_ORD+6))
        xx_setup(a)
    FE = P('FE', 1)
    a('v_mov_b32 v%d, v%d' % (VB_RD, V_RDB))
    for ks in range(6, 6+FE): w2_read(a, ks, ssm)
    a.wait_vm('st'); a('s_barrier')
    a('buffer_store_dword v%d, v%d, %s, s%d offen sc1' % (V_PL, V_PA, WSR, S_TF), 'fl')
    nstamp(a, 'flg')
    if ssm:
        for k2 in range(15, 18):
            for t in w2_dma(k2): a(t, 'v%d' % k2)
    for ks in range(6+FE, 12): w2_read(a, ks, ssm)
    if not ssm: b_common(a, ssm, 2)
    a('v_subrev_u32 v%d, %d, v%d' % (VB_RD, SLAB, V_RDB))
    a('s_waitcnt lgkmcnt(0)')
    if ssm:
        ld, chk = flag_poll()
        poll_loop(a, ld, chk, 1, 'r_h')
        if TDN < 6: a.wait_vm('v17')
        for ks in range(12, 18): w2_read(a, ks, ssm)
        a('s_waitcnt lgkmcnt(0)')
        a('B_SSM2:')
        a.vm = []
        for _ in range(P('HBURST', 10)): next_h(a)
    S = Sched(a); R = S.stream('red'); G = S.stream('xchg'); C = S.stream('chain')
    C.gate = lambda: not R.q and 'prepA' in a.seen
    R.ins('s_barrier', None, 12)
    if not ssm:
        XR = VB_H + 4*NH
        L = [XR + 4*k for k in range(6)]
        PSr = [XR+24+k for k in range(8)] + [VB_RB+36+k for k in range(4)]
        psA = lambda k: PSr[k]
        yA = L[:2]; sA = L[2:5]
        acq = [accr(0, dt) + 4*q for q in (1, 2, 3) for dt in range(3)]
        fB = L[0:2] + acq[:4]; yB = [hslot(126+k) for k in range(2)]; sB = [hslot(128+k) for k in range(3)]
        psB = lambda k: acq[6 + k//4] + k % 4
    if not ssm:
        I = G.ins
        l2, c2 = flag_poll('hl')
        I('s_lshl_b32 s3, s%d, 3' % S_SP); I('s_lshl_b32 s3, 0xff, s3'); I('s_lshl_b32 s5, s%d, 2' % S_SP); I('s_lshl_b32 s5, 0x3f, s5')
        I('s_or_b32 s3, s3, s5'); I('s_and_b32 s%d, s%d, s3' % (S_MASK, S_MASK))
        I('s_add_u32 s%d, s%d, %d' % (S_PF, S_PF, HFL_OFF - HEF_OFF))
        for k2 in range(12 + TDN, 18):
            for t in (w2_dma(k2) if 'nod' not in X else ['s_nop 0']): I(t, 'v%d' % k2, P('D15', 6) + P('D15S', 2)*(k2-12-TDN), P('D15D', 0) if 'lds' in t else 0)
        C.gate, gsave = None, C.gate
        C.fn(l2, 2, P('LP0', 16)); C.fn(lambda a: setattr(C, 'gate', gsave), 0)
        S.streams = [C, R, G]
        I('s_mul_i32 s5, s%d, 12' % S_SP); I('s_add_u32 s5, s5, s%d' % S_TEAM); I('s_lshl_b32 s5, s5, 13')
        for src in range(3):
            I('s_sub_u32 s3, s%d, %d' % (S_SP, src+1)); I('s_and_b32 s3, s3, 3'); I('s_mul_i32 s3, s3, %d' % (64*6*8192))
            I('s_add_u32 s3, s3, s5'); I('s_add_u32 s%d, s3, %d' % (S_FB+src, PF_OFF))
        I('s_mov_b32 s15, 0xffff0000'); I('s_add_u32 s%d, s5, %d' % (S_T2, PF_OFF + 4*64*6*8192)); I('s_mov_b32 s%d, 0' % S_T3)
        tmp = Asm()
        for ks in range(12, 18): w2_read(tmp, ks, False)
        for k, t in enumerate(tmp.lines):
            if k % 6 == 0 and k//6 >= TDN: G.fn(lambda a, k=k: a.wait_vm('v%d' % (12 + k//6)), 1, P('RDAT', 40) + P('RDS', 3)*(k//6))
            I(t.strip(), 'wr%d' % (12 + k//6))
        G.fn(lambda a: None, 0, P('LPC', 33) + 1)
        xx_fill(G)
    for n in range(144):
        i, ks = seq[n]; s = i & 1; p = n // 18
        if ks == 0:
            S.note = None; S.drain(('acc', s))
            if S.note: sys.stderr.write('  B forced drain at block %d: %s\n' % (i, S.note))
        if n % 18 == 0:
            if ssm and p == 6:
                S.drain()
                a('s_cmp_eq_u32 s%d, 1' % S_SHORT); a('s_cbranch_scc1 B_SSM_TAIL')
            if p in (0, 7): stamp(a, st)
            nstamp(a, 'b%d' % p)
        base = S.mf
        if n > 0 and seq[n-1][1] == 17:
            j = seq[n-1][0]
            reduce_fill(R, j, base + 2, ssm or j < 6, ssm, None, 1, 1 if (not ssm and j in (0, P('W6', 0))) else P('WRD', 2))
        if not ssm and n % 18 == 0:
            if p == 3:
                F0 = Stream('f0'); S.always = [F0]
                for t in ffn_loads(L)[:2]: F0.ins(t, 'fA', base + P('FA0', 6))
            if p == 4:
                assert not F0.q
                for k, t in enumerate(ffn_loads(L)[2:]): G.ins(t, 'fA', base + P('FA0', 6) + P('FSP', 46)*(k//2))
                checked(G, 'fA', ffn_loads(L), L, P('CHKD', 30))
                presum(G, L, psA)
                for src in range(3): G.ins('s_add_u32 s%d, s%d, %d' % (S_FB+src, S_FB+src, 6*8192))
            if p == 5:
                for k, t in enumerate(y_loads(yA)): G.ins(t, 'yA', base + P('YAAT', 40))
                checked(G, 'yA', y_loads(yA), yA, P('CHKD2', 30))
                prep_s(G, 0, yA, sA); G.fn(lambda a: a.seen.add('prepA'), 0)
                for k, t in enumerate(ffn_loads(fB)[:2]): G.ins(t, 'fB', 0, 3)
                G.ins('s_add_u32 s%d, s%d, %d' % (S_T2, S_T2, 6*8192))
            if p == 7:
                G.fn(lambda a: ('rr6' in a.seen) or sys.exit('order'), 0, base + P('FBAT', 24))
                lb = ffn_loads(fB)
                for t in lb[2:4]: G.ins(t, 'fB', 0, 3)
                for t in y_loads(yB): G.ins(t, 'yB', 0, 3)
                for t in lb[4:6]: G.ins(t, 'fB', 0, 3)
                chain(C, 0, psA, sA)
                if P('G7', 1): S.streams = [G, R, C]
        if ssm and i in (0, 2, 4):
            l2, c2 = flag_poll('hp%d' % i)
            if ks == 0: S.must_fn(lambda a: (a('s_add_u32 s%d, s%d, s%d' % (S_PF, S_PF, S_T3)), l2(a)))
            if ks == 35 - NH:
                assert nld[0] <= 18*(i+2)
                S.must_fn(lambda a: (a.wait_vm('hp%d' % i), poll_loop(a, l2, c2, 4)))
        if not okl[0] and S.mf >= P('LPC', 33):
            S.must_fn(lambda a: (nstamp(a, 'lp0'), a.wait_vm('hl'), ('nol' in X or poll_loop(a, l2, c2, 1, 'r_l')), nstamp(a, 'lp1')))
            okl[0] = True; S.streams = [R, G, C]
            for _ in range(P('LBURST', 6)):
                if nld[0] < n + NH: S.must_fn(next_h)
        S.fill(reserve=1)
        S.must_fn(lambda a: a.wait_vm('h%d' % n))
        if not ssm and i == 0 and ks >= 12:
            assert a.tagcount.get('wr%d' % ks, 0) == 6, ks
            S.must_fn(lambda a: a.wait_lg('wr%d' % ks))
        for dt in range(3):
            d = vr(accr(s, dt), 16)
            S.mfma('v_mfma_f32_32x32x16_bf16 %s, %s, %s, %s' % (d, vr(hslot(n), 4), wfrag(ks, dt), d if ks else '0'))
            lim = n + NH + (1 if dt == 2 else 0)
            if not okl[0]: lim = min(lim, 2*KE)
            if nld[0] < min(lim, 144) and (dt != 1 or n < 36): S.must_fn(next_h)
    sys.stderr.write('phaseB ssm=%d pending at end: %s\n' % (ssm, S.pending()))
    stamp(a, st); nstamp(a, 'e0')
    S.mf += 1000
    if ssm:
        S.drain()
        a('B_SSM_TAIL:')
        a('s_nop 11')
        a.lg = []
        reduce_fill(R, 7, 0, True, True); S.drain()
        stamp(a, st)
    else:
        S.drain(stream=R); S.drain(stream=G)
        restA = C.q; C.q = []
        reduce_fill(R, 7, 0, False, False)
        wr = R.q[:9]; rest = R.q[9:]
        R.q = []
        k = 0
        while wr or restA[k:]:
            if wr: R.q.append(wr.pop(0))
            R.q += restA[k:k+6]; k += 6
        S.drain()
        stamp(a, st); nstamp(a, 'e1')
        R.q = rest[:10]; S.drain()
        checked(G, 'yB', y_loads(yB), yB, 0); prep_s(G, 1, yB, sB); S.drain()
        R.q = rest[10:]; S.drain()
        nstamp(a, 'e2')
        checked(G, 'fB', ffn_loads(fB), fB, 0); presum(G, fB, psB)
        G.ins('s_mov_b32 s%d, %d' % (S_T3, 16*2304))
        chain(G, 1, psB, sB); S.drain()
        a('s_lshl_b32 s3, s%d, 9' % S_SP); a('s_add_u32 s3, s3, s%d' % S_TEAM); a('s_lshl_b32 s4, s%d, 12' % S_W); a('s_add_u32 s3, s3, s4')
        a('s_cmp_eq_u32 s3, %d' % (7*48))
        a('s_cbranch_scc0 NOBUMP')
        a('v_mov_b32 v14, %d' % NONCE_OFF); a('v_mov_b32 v15, s%d' % S_NONCE)
        a('s_mov_b64 exec, 1')
        a('buffer_store_dword v15, v14, %s, 0 offen sc1' % WSR)
        a('NOBUMP:')
    stamp_flush(a, st, 0, S_WS, S_W, 14)
    a('s_endpgm')

def ln_part(a):
    X = 48; F = 72; T = 112
    a('s_lshl_b32 s3, s2, 1'); a('s_add_u32 s3, s3, s%d' % S_W)
    a('s_lshr_b32 s4, s3, 4'); a('s_lshl_b32 s4, s4, 6')
    a('s_and_b32 s5, s3, 1'); a('s_lshl_b32 s5, s5, 5'); a('s_add_u32 s4, s4, s5')
    a('s_bfe_u32 s5, s3, 0x10003'); a('s_lshl_b32 s5, s5, 4'); a('s_add_u32 s4, s4, s5')
    a('s_bfe_u32 s5, s3, 0x20001'); a('s_lshl_b32 s5, s5, 2'); a('s_add_u32 s4, s4, s5')
    a('v_and_b32 v%d, 3, v0' % T); a('v_lshrrev_b32 v%d, 2, v0' % (T+1))
    a('v_add_u32 v%d, s4, v%d' % (T+2, T))
    a('v_mul_u32_u24 v%d, 1152, v%d' % (T+3, T+2)); a('v_lshl_add_u32 v%d, v%d, 4, v%d' % (T+3, T+1, T+3))
    for k in range(4): a('v_mov_b32 v%d, 0' % (X+16+k))
    a('s_waitcnt lgkmcnt(0)'); nstamp(a, 'ln0')
    for n in range(4):
        a('global_load_dwordx4 %s, v%d, s[%d:%d] offset:%d%s' % (vr(X+4*n, 4), T+3, SP0, SP0+1, 256*n, XNT), 'lx')
    a('s_mov_b32 exec_hi, 0')
    a('global_load_dwordx4 %s, v%d, s[%d:%d] offset:1024%s' % (vr(X+16, 4), T+3, SP0, SP0+1, XNT), 'lx')
    a('s_mov_b32 exec_hi, -1')
    if P('DEC', 1):
        a('s_mov_b32 s%d, s3' % S_CNT); decode(a); a('s_mov_b32 s3, s%d' % S_CNT)
    srd(a, S_W1, SP0+4, 576*9216)
    for n in range(W1P): dma_w1(a, 1, 1, n, 'w1')
    ws_srd(a)
    a('s_load_dword s%d, s[%d:%d], %d' % (S_NONCE, S_WS, S_WS+1, NONCE_OFF))
    a('s_lshr_b32 s5, s3, 3'); a('s_mul_i32 s5, s5, 36864'); a('s_and_b32 s6, s3, 7'); a('s_lshl_b32 s6, s6, 7'); a('s_add_u32 s5, s5, s6')
    a('s_add_u32 s5, s5, %d' % XF_OFF)
    a('v_lshrrev_b32 v%d, 3, v0' % (T+4)); a('v_lshlrev_b32 v%d, 10, v%d' % (T+4, T+4))
    a('v_and_b32 v%d, 7, v0' % (T+5)); a('v_lshl_add_u32 v%d, v%d, 4, v%d' % (T+4, T+5, T+4))
    a('v_lshlrev_b32 v%d, 3, v%d' % (T+2, T+2))
    MK = S_T; HM = S_T2
    a('s_mov_b32 s%d, 0xffff0000' % HM)
    DRY = P('DRY', 0)
    if DRY:
        a('s_mov_b32 s%d, 0' % MK); a('s_mov_b64 exec, 0')
    else:
        a('s_mov_b32 s%d, -1' % MK); a.wait_vm('lx'); nstamp(a, 'ln1')
    a('LN_BODY:')
    def unpack(n): a('v_lshlrev_b32 v%d, 16, v%d' % (F+2*n, X+n)); a('v_and_b32 v%d, s%d, v%d' % (F+2*n+1, HM, X+n))
    A = T+8
    def allred(r):
        return ['v_add_f32_dpp v%d, v%d, v%d row_ror:4 row_mask:0xf bank_mask:0xf' % (r, r, r),
                'v_add_f32_dpp v%d, v%d, v%d row_ror:8 row_mask:0xf bank_mask:0xf' % (r, r, r),
                'v_mov_b32 v%d, v%d' % (T+6, r), 'v_permlane16_swap_b32 v%d, v%d' % (r, T+6), 'v_add_f32 v%d, v%d, v%d' % (r, r, T+6),
                'v_mov_b32 v%d, v%d' % (T+6, r), 'v_permlane32_swap_b32 v%d, v%d' % (r, T+6), 'v_add_f32 v%d, v%d, v%d' % (r, r, T+6)]
    pr = lambda r: vr(r, 2)
    Q = A+4
    for n in range(20):
        unpack(n)
        if n >= 5:
            k = n - 1
            a('v_pk_add_f32 %s, %s, %s' % (pr(Q+2*(k % 4)), pr(F+2*(k-4)) if k < 8 else pr(Q+2*(k % 4)), pr(F+2*k)))
    a('v_pk_add_f32 %s, %s, %s' % (pr(Q+6), pr(Q+6), pr(F+38)))
    a('v_pk_add_f32 %s, %s, %s' % (pr(Q), pr(Q), pr(Q+2))); a('v_pk_add_f32 %s, %s, %s' % (pr(Q+4), pr(Q+4), pr(Q+6)))
    a('v_pk_add_f32 %s, %s, %s' % (pr(Q), pr(Q), pr(Q+4))); a('v_add_f32 v%d, v%d, v%d' % (A+2, Q, Q+1))
    for t in allred(A+2): a(t)
    a('v_mul_f32 v%d, 0x%08x, v%d' % (A+2, f32bits(1.0/576), A+2))
    a('v_cvt_pk_bf16_f32 v%d, v%d, v%d' % (A, A+2, A+2)); a('v_lshlrev_b32 v%d, 16, v%d' % (A, A))
    a('v_sub_f32 v%d, v%d, v%d' % (A+2, A+2, A))
    for n in range(20):
        if n == 16: a('s_mov_b32 exec_hi, 0')
        a('v_pk_add_f32 %s, %s, %s op_sel_hi:[1,0] neg_lo:[0,1] neg_hi:[0,1]' % (pr(F+2*n), pr(F+2*n), pr(A)))
        if n % 4 == 3:
            for k in range(n-3, n+1):
                d = pr(F+2*k); q = pr(Q+2*(k % 4))
                a(('v_pk_mul_f32 %s, %s, %s' % (q, d, d)) if k < 4 else ('v_pk_fma_f32 %s, %s, %s, %s' % (q, d, d, q)))
    a('s_mov_b32 exec_hi, s%d' % MK)
    ch = ['v_pk_add_f32 %s, %s, %s' % (pr(Q), pr(Q), pr(Q+2)), 'v_pk_add_f32 %s, %s, %s' % (pr(Q+4), pr(Q+4), pr(Q+6)),
          'v_pk_add_f32 %s, %s, %s' % (pr(Q), pr(Q), pr(Q+4)), 'v_add_f32 v%d, v%d, v%d' % (A+1, Q, Q+1)] + allred(A+1) + [
          'v_mul_f32 v%d, 0x%08x, v%d' % (A+1, f32bits(1.0/576), A+1),
          'v_fma_f32 v%d, -v%d, v%d, v%d' % (A+1, A+2, A+2, A+1),
          'v_cvt_pk_bf16_f32 v%d, v%d, v%d' % (A+1, A+1, A+1), 'v_lshlrev_b32 v%d, 16, v%d' % (A+1, A+1),
          'v_add_f32 v%d, 0x%08x, v%d' % (A+1, f32bits(1e-5), A+1),
          'v_cvt_pk_bf16_f32 v%d, v%d, v%d' % (A+1, A+1, A+1), 'v_lshlrev_b32 v%d, 16, v%d' % (A+1, A+1),
          'v_sqrt_f32 v%d, v%d' % (A+1, A+1),
          'v_cvt_pk_bf16_f32 v%d, v%d, v%d' % (A+1, A+1, A+1), 'v_lshlrev_b32 v%d, 16, v%d' % (A+1, A+1),
          'v_rcp_f32 v%d, v%d' % (A+1, A+1)]
    for t in ch: a(t)
    for q in range(5):
        if q == 4: a('s_mov_b32 exec_hi, 0')
        ns = range(4*q, 4*q+4)
        for n in ns: a('v_pk_mul_f32 %s, %s, %s op_sel:[0,1] op_sel_hi:[1,1]' % (pr(F+2*n), pr(F+2*n), pr(A)))
        for n in ns: a('v_cvt_pk_bf16_f32 v%d, v%d, v%d' % (X+n, F+2*n, F+2*n+1))
        if DRY: a('s_cbranch_execz LN_S%d' % q)
        a('buffer_store_dwordx4 %s, v%d, %s, s5 offen sc1' % (vr(X+4*q, 4), T+4, WSR))
        if q < 4: a('s_add_u32 s5, s5, 8192')
        if DRY and q < 4: a('LN_S%d:' % q)
    if DRY:
        a('s_branch LN_REAL_DONE')
        a('LN_S4:')
        a('s_mov_b32 s%d, -1' % MK); a('s_mov_b64 exec, -1'); nstamp(a, 'lnd')
        a('s_waitcnt vmcnt(0)'); nstamp(a, 'ln1')
        a('s_branch LN_BODY')
        a('LN_REAL_DONE:')
    a('s_mov_b32 exec_lo, 15')
    a('s_mov_b32 s5, %d' % STAT_OFF)
    assert A % 2 == 0
    a('buffer_store_dwordx2 %s, v%d, %s, s5 offen sc1' % (vr(A, 2), T+2, WSR))
    a('s_mov_b64 exec, -1'); nstamp(a, 'ln2')
    if W0E < 99 and W0M == 0: a('s_barrier')
    a('s_waitcnt lgkmcnt(0)')
    nonce_mix(a)
    a('s_lshl_b32 s3, s3, 7'); a('s_add_u32 s3, s3, %d' % LNF_OFF)
    a('v_mov_b32 v%d, 0' % T); a('v_mov_b32 v%d, s%d' % (T+1, S_NONCE))
    a('s_mov_b64 exec, 1')
    a('s_waitcnt vmcnt(0)')
    a('buffer_store_dword v%d, v%d, %s, s3 offen sc1' % (T+1, T, WSR)); nstamp(a, 'ln3')
    a('s_mov_b64 exec, -1')
    if W0E < 99 and W0M == 1: a('s_barrier')

def nonce_mix(a):
    a('s_mul_i32 s%d, s%d, 0x0019660d' % (S_NONCE, S_NONCE))
    a('s_add_u32 s%d, s%d, 0x3c6ef35f' % (S_NONCE, S_NONCE))

def light_part(a):
    if P('LBAR', 1): a('s_barrier')
    a('s_cmp_eq_u32 s%d, 0' % S_W); a('s_cbranch_scc1 LIGHT2')
    a('s_load_dwordx4 s[%d:%d], s[0:1], %d' % (SP0, SP0+3, A_CRE))
    a('s_sub_u32 s3, s2, 240'); a('s_mul_i32 s3, s3, 3'); a('s_add_u32 s3, s3, s%d' % S_W); a('s_sub_u32 s3, s3, 1')
    a('s_lshr_b32 s4, s3, 3'); a('s_mul_i32 s4, s4, %d' % (96*1152))
    a('s_bfe_u32 s5, s3, 0x10001'); a('s_mul_i32 s5, s5, 576'); a('s_add_u32 s4, s4, s5')
    a('s_and_b32 s5, s3, 1'); a('s_mul_i32 s5, s5, 288'); a('s_add_u32 s4, s4, s5')
    a('v_and_b32 v1, 31, v0'); a('v_mul_u32_u24 v1, 1152, v1'); a('v_lshrrev_b32 v2, 5, v0'); a('v_lshl_add_u32 v1, v2, 4, v1'); a('v_add_u32 v1, s4, v1')
    a('v_add_u32 v2, %d, v1' % (32*1152)); a('v_add_u32 v3, %d, v1' % (64*1152))
    a('v_lshlrev_b32 v4, 4, v0')
    a('s_mul_i32 s6, s3, 27648'); a('s_add_u32 s6, s6, %d' % CF_OFF)
    a('s_waitcnt lgkmcnt(0)')
    a('s_bitcmp1_b32 s3, 2')
    a('s_cselect_b32 s%d, s%d, s%d' % (SP0, SP0+2, SP0)); a('s_cselect_b32 s%d, s%d, s%d' % (SP0+1, SP0+3, SP0+1))
    for f in range(27):
        a('global_load_dwordx4 %s, v%d, s[%d:%d] offset:%d' % (vr(16+4*f, 4), 1 + f % 3, SP0, SP0+1, (f//3)*32), 'c%d' % f)
    for f in range(27):
        a.wait_vm('c%d' % f)
        a('buffer_store_dwordx4 %s, v4, %s, s6 offen offset:%d sc1' % (vr(16+4*f, 4), WSR, (f % 4)*1024))
        if f % 4 == 3: a('s_add_u32 s6, s6, 4096')
    a('s_lshl_b32 s3, s3, 7'); a('s_add_u32 s3, s3, %d' % CFL_OFF)
    a('v_mov_b32 v1, 0'); a('v_mov_b32 v2, s%d' % S_NONCE)
    a('s_mov_b64 exec, 1')
    a('s_waitcnt vmcnt(0)')
    a('buffer_store_dword v2, v1, %s, s3 offen sc1' % WSR)
    a('s_mov_b64 exec, -1')
    a('LIGHT2:')
    a.vm = []
    a('s_and_b32 s3, s2, 7')
    if P('LMAP', 1):
        a('s_and_b32 s4, s3, 3'); a('s_cmp_eq_u32 s4, 3'); a('s_cbranch_scc1 KEND'); a('s_lshr_b32 s4, s3, 2'); a('s_sub_u32 s3, s3, s4')
    else:
        a('s_cmp_ge_u32 s3, 6'); a('s_cbranch_scc1 KEND')
    a('s_and_b32 s4, s3, 6'); a('s_bfe_u32 s5, s2, 0x10003'); a('s_add_u32 s%d, s4, s5' % S_NT); a('s_and_b32 s3, s3, 1')
    a('s_lshl_b32 s4, s3, 1'); a('s_add_u32 s4, s4, 5')
    for i in range(8): a('s_add_u32 s%d, s4, %d' % (S_ORD+i, 8*i))
    a('s_mov_b32 s%d, 0' % S_MT); a('s_mov_b32 s%d, 4' % S_SP); a('s_mov_b32 s%d, 0' % S_SHORT); a('s_mov_b32 s%d, 0x3ffff' % S_MASK)
    a('s_mov_b32 s%d, %d' % (S_PF, HSF_OFF))
    a('v_min_u32 v1, 47, v0'); a('v_lshlrev_b32 v1, 7, v1'); a('s_mov_b32 s%d, %d' % (S_T3, CFL_OFF))
    ldc = 'buffer_load_dword v2, v1, %s, s%d offen sc1' % (WSR, S_T3)
    a(ldc); a('s_waitcnt vmcnt(0)')
    poll_loop(a, lambda a: a(ldc), chk_all_eq(2), 8)
    a('s_lshl_b32 s4, s%d, 2' % S_NT); a('s_add_u32 s4, s4, s%d' % S_W); a('s_mul_i32 s4, s4, 55296'); a('s_add_u32 s4, s4, %d' % CF_OFF)
    a('v_lshlrev_b32 v4, 4, v0')
    for f in range(54):
        a('buffer_load_dwordx4 %s, v4, %s, s4 offen offset:%d sc1' % (ar(4*f, 4), WSR, (f % 4)*1024))
        if f % 4 == 3: a('s_add_u32 s4, s4, 4096')
    flag_lanes(a, 1)
    a('s_mov_b32 s%d, 8192' % S_T3)
    ld, chk = flag_poll()
    ld(a); a('s_waitcnt vmcnt(0)')
    b_common(a, True)
    poll_loop(a, ld, chk, P('LSLEEP', 3))
    a('s_branch B_SSM2')

def early_pair(a, se, dst):
    a('s_mul_i32 s3, s%d, 86' % se); a('s_lshr_b32 s3, s3, 8'); a('s_mul_i32 s4, s3, 3'); a('s_sub_u32 s4, s%d, s4' % se)
    a('s_cmp_lt_u32 s4, 2'); a('s_cselect_b32 s4, s4, 5')
    a('s_mul_i32 s3, s3, 9'); a('s_add_u32 s3, s3, s4'); a('s_lshl_b32 s%d, s3, 7' % dst)
def mixed_pair(a):
    a('s_lshr_b32 s3, s%d, 1' % S_N); a('s_mul_i32 s3, s3, 9'); a('s_and_b32 s%d, s%d, 1' % (S_SW, S_N))
    a('s_lshl_b32 s4, s%d, 1' % S_SW); a('s_sub_u32 s3, s3, s4'); a('s_add_u32 s3, s3, 6')
    a('s_add_u32 s5, s%d, 54' % S_N); a('s_cmp_lt_u32 s%d, 16' % S_N); a('s_cselect_b32 s3, s3, s5')
    a('s_lshl_b32 s%d, s3, 7' % (S_P+1)); a('s_lshl_b32 s%d, s%d, 11' % (S_SW, S_SW))
def late_pair(a):
    a('s_lshr_b32 s3, s%d, 2' % S_N); a('s_and_b32 s4, s%d, 3' % S_N); a('s_mul_i32 s3, s3, 9'); a('s_add_u32 s3, s3, s4')
    a('s_cmp_lt_u32 s4, 2'); a('s_cselect_b32 s4, 2, 5'); a('s_add_u32 s3, s3, s4'); a('s_lshl_b32 s%d, s3, 7' % (S_P+2))

def decode(a):
    a('s_and_b32 s3, s2, 7'); a('s_lshr_b32 s4, s2, 3')
    a('s_lshr_b32 s5, s3, 1'); a('s_mul_i32 s5, s5, 30'); a('s_add_u32 s5, s5, s4')
    a('s_lshr_b32 s6, s5, 2'); a('s_min_u32 s6, s6, 29')
    if P('AMAP', 1):
        pat = 'MMPMPMPMPMPMPMM'*2
        MK30 = sum(1 << i for i, c in enumerate(pat) if c == 'M')
        a('s_bfm_b32 s7, s6, 0'); a('s_and_b32 s7, s7, 0x%x' % MK30); a('s_bcnt1_i32_b32 s7, s7')
        a('s_sub_u32 s4, s6, s7'); a('s_add_u32 s4, s4, 18')
        a('s_bitcmp1_b32 0x%x, s6' % MK30); a('s_cselect_b32 s%d, s7, s4' % S_N)
    else:
        a('s_mul_i32 s7, s6, 52'); a('s_lshr_b32 s7, s7, 8')
        a('s_mul_i32 s4, s7, 5'); a('s_sub_u32 s4, s6, s4')
        a('s_mul_i32 s6, s7, 3'); a('s_add_u32 s6, s6, s4')
        a('s_lshl_b32 s7, s7, 1'); a('s_add_u32 s7, s7, s4'); a('s_add_u32 s7, s7, 15')
        a('s_cmp_lt_u32 s4, 3'); a('s_cselect_b32 s%d, s6, s7' % S_N)
    a('s_and_b32 s5, s5, 3'); a('s_and_b32 s3, s3, 1'); a('s_lshl_b32 s3, s3, 2'); a('s_add_u32 s%d, s3, s5' % S_G)
    a('s_lshl_b32 s%d, s%d, 10' % (S_M0W, S_W))
    a('v_lshrrev_b32 v13, 3, v0'); a('v_and_b32 v14, 7, v0'); a('v_bfe_u32 v15, v0, 4, 1'); a('v_lshlrev_b32 v15, 2, v15'); a('v_xor_b32 v14, v14, v15')
    a('s_lshl_b32 s3, s%d, 3' % S_W); a('v_add_u32 v13, s3, v13')
    a('v_mul_u32_u24 v%d, 9216, v13' % V_WD); a('v_lshl_add_u32 v%d, v14, 4, v%d' % (V_WD, V_WD))
    late_pair(a)
    mixed_pair(a); a('s_mov_b32 s%d, s%d' % (S_T, S_SW)); a('s_mov_b32 s%d, s%d' % (S_TF, S_P+1))
    a('s_lshl_b32 s7, s%d, 1' % S_N); a('s_sub_u32 s7, s7, 36')
    early_pair(a, 7, S_P); a('s_add_u32 s7, s7, 1'); early_pair(a, 7, S_P+1)
    a('s_cmp_lt_u32 s%d, 18' % S_N); a('s_cselect_b32 s%d, s%d, s%d' % (S_P, S_T, S_P)); a('s_cselect_b32 s%d, s%d, s%d' % (S_P+1, S_TF, S_P+1))

def phaseA2(a, mixed, st):
    import copy
    sv = (list(a.vm), list(a.lg), set(a.seen), st.n, label_n[0], len(a.lines), len(OOL))
    pos = {}
    for bt in (0, 1):
        def mark(S, bt=bt):
            if bt == 0:
                S.must('s_cmp_eq_u32 s%d, 4' % S_SP); S.must('s_cbranch_scc1 AS%d' % mixed)
            else:
                S.must('s_nop 0'); S.must('s_nop 0')
                del a.lines[pos['start']:]; del OOL[pos['ool']:]
                a('AS%d:' % mixed); a('s_nop 9')
                label_n[0] = pos['lab']
        if bt:
            pos['start'] = len(a.lines); pos['ool'] = len(OOL); pos['lab'] = label_n[0]
            a.vm, a.lg, a.seen, st.n = list(sv[0]), list(sv[1]), set(sv[2]), sv[3]
        phaseA(a, mixed, st, bt, mark)
        a('s_nop 3')
        a('s_branch %s' % ('B_SSM' if bt else 'B_FFN'))

def gen():
    a = Asm()
    name = PFX + '_kernel'
    a(kernel_header(name))
    a('KSTART:')
    a('s_cmp_ge_u32 s2, 256'); a('s_cbranch_scc1 KEND')
    st = Stamps(); stamp(a, st); nstamp(a, 'start')
    for nm in ('ln0', 'lnd', 'ln1', 'ln2', 'ln3', 'w0a', 'w0b'): nstamp(a, nm)
    a('s_load_dwordx2 s[%d:%d], s[0:1], %d' % (SP0, SP0+1, A_X))
    a('s_load_dwordx2 s[%d:%d], s[0:1], %d' % (SP0+2, SP0+3, D_WS))
    a('s_load_dwordx2 s[%d:%d], s[0:1], %d' % (SP0+4, SP0+5, B_W1))
    a('s_load_dwordx4 s[56:59], s[0:1], %d' % A_BRE)
    a('s_load_dwordx4 s[60:63], s[0:1], %d' % A_LRE)
    a('s_load_dwordx2 s[54:55], s[0:1], %d' % A_LDT)
    a('v_lshrrev_b32 v13, 6, v0')
    a('v_readfirstlane_b32 s%d, v13' % S_W)
    a('v_and_b32 v0, 63, v0')
    a('s_cmp_lt_u32 s%d, 2' % S_W); a('s_cbranch_scc1 DO_LN')
    a('s_lshl_b32 s3, s2, 1'); a('s_add_u32 s3, s3, s%d' % S_W); a('s_sub_u32 s3, s3, 2')
    a('s_mul_i32 s4, s3, %d' % (11*128)); a('v_min_u32 v%d, 10, v0' % V_PA); a('v_lshl_add_u32 v%d, v%d, 7, s4' % (V_PA, V_PA))
    a('v_min_u32 v%d, %d, v%d' % (V_PA, 576*1152-4, V_PA))
    a('s_mul_i32 s4, s3, 45'); a('v_min_u32 v%d, 44, v0' % V_PL); a('v_add_u32 v%d, s4, v%d' % (V_PL, V_PL))
    a('v_mul_u32_u24 v14, 52429, v%d' % V_PL); a('v_lshrrev_b32 v14, 18, v14')
    a('v_mul_u32_u24 v15, 5, v14'); a('v_sub_u32 v15, v%d, v15' % V_PL)
    a('v_lshl_add_u32 v%d, v14, 2, v%d' % (V_PL, V_PL)); a('v_cmp_lt_u32 vcc, 1, v15'); a('v_cndmask_b32 v15, 0, 2, vcc')
    a('v_add_lshl_u32 v%d, v%d, v15, 7' % (V_PL, V_PL)); a('v_min_u32 v%d, %d, v%d' % (V_PL, 576*9216-4, V_PL))
    a('s_getpc_b64 s[4:5]'); a('PFPC:')
    a('s_sub_u32 s4, s4, PFPC-KSTART'); a('s_subb_u32 s5, s5, 0')
    a('s_lshr_b32 s6, s2, 3'); a('s_and_b32 s6, s6, 15'); a('s_add_u32 s6, s6, 1'); a('s_mul_i32 s6, s6, 6144')
    a('s_cmp_eq_u32 s%d, 3' % S_W); a('s_cselect_b32 s6, 0, s6')
    a('v_lshl_add_u32 v14, v0, 7, s6'); a('v_min_u32 v14, KLAST-KSTART, v14')
    a('global_load_dword v%d, v14, s[4:5]' % (V_PL+3))
    def touches():
        a('global_load_dword v%d, v%d, s[56:57]' % (V_PL+3, V_PA)); a('global_load_dword v%d, v%d, s[58:59]' % (V_PL+3, V_PA))
        a('global_load_dword v%d, v%d, s[%d:%d]' % (V_PL+3, V_PL, SP0+4, SP0+5))
    if P('TE', 1):
        a('s_waitcnt lgkmcnt(0)'); ws_srd(a); srd(a, S_W1, SP0+4, 576*9216); srd(a, S_BRE, 56, 576*1152); srd(a, S_BIM, 58, 576*1152)
        touches()
    a('s_branch SKIP_LN')
    a.vm = []
    a('DO_LN:')
    ln_part(a)
    a.vm = []
    a('s_branch LN_DONE')
    a('SKIP_LN:')
    decode(a)
    if not P('TE', 1):
        a('s_waitcnt lgkmcnt(0)'); touches(); ws_srd(a); srd(a, S_W1, SP0+4, 576*9216); srd(a, S_BRE, 56, 576*1152); srd(a, S_BIM, 58, 576*1152)
    a('s_load_dword s%d, s[%d:%d], %d' % (S_NONCE, S_WS, S_WS+1, NONCE_OFF))
    S_D1, S_D2, S_W0 = 46, 47, 48
    a('v_bfe_u32 v15, v13, 1, 3'); a('v_and_b32 v14, 7, v0'); a('v_xor_b32 v14, v14, v15')
    a('s_lshl_b32 s7, s%d, 5' % S_N); a('v_add_u32 v13, s7, v13')
    a('v_mul_u32_u24 v%d, 1152, v13' % V_BD); a('v_lshl_add_u32 v%d, v14, 4, v%d' % (V_BD, V_BD))
    a('s_mov_b32 s3, %d' % (32*9216)); a('s_mov_b32 s4, %d' % (16*9216))
    a('s_cmp_lt_u32 s%d, 18' % S_N)
    a('s_cselect_b32 s%d, 0, s3' % S_D1); a('s_cselect_b32 s%d, 128, s3' % S_D2); a('s_cselect_b32 s%d, 0, s%d' % (S_W0, S_P)); a('s_cselect_b32 s4, %d, s4' % (16*1152))
    for s in (S_BRE, S_BIM):
        for k in range(3): a('s_cselect_b32 s%d, s%d, s%d' % (s+k, s+k, S_W1+k))
    a('s_cselect_b64 vcc, -1, 0'); a('v_cndmask_b32 v%d, v%d, v%d, vcc' % (V_BD, V_WD, V_BD)); a('v_subrev_u32 v14, s4, v%d' % V_BD)
    nstamp(a, 'w0a')
    for n in range(18):
        if n == W0E:
            a('s_waitcnt lgkmcnt(0)'); nonce_mix(a); a('s_barrier')
            a('s_cmp_ge_u32 s2, 240'); a('s_cbranch_scc1 LIGHT')
        s = S_BIM if n % 2 else S_BRE
        a('s_add_u32 m0, s%d, %d' % (S_M0W, n*4096))
        a('buffer_load_dwordx4 v%d, s[%d:%d], s%d offen lds' % (V_BD, s, s+3, S_W0))
        a('s_add_u32 m0, s%d, %d' % (S_M0W, n*4096 - 2048))
        a('buffer_load_dwordx4 v14, s[%d:%d], s%d offen lds' % (s, s+3, S_W0))
        a('s_add_u32 s%d, s%d, s%d' % (S_W0, S_W0, S_D2 if n % 2 else S_D1))
    nstamp(a, 'w0b')
    a.vm = []
    a('LN_DONE:')
    a('s_cmp_ge_u32 s2, 240'); a('s_cbranch_scc1 LIGHT')
    def common2():
        a('s_mov_b32 s%d, 0x%08x' % (S_NL2E, f32bits(-LOG2E)))
        a('s_mul_i32 s%d, s%d, %d' % (S_XB, S_G, 8*36864)); a('s_add_u32 s%d, s%d, %d' % (S_XB, S_XB, XF_OFF))
        a('s_mul_i32 s%d, s%d, %d' % (S_HB, S_G, 8*HF_RB)); a('s_add_u32 s%d, s%d, %d' % (S_HB, S_HB, HF_OFF))
        a('s_mul_i32 s3, s%d, 73728' % S_W)
        a('v_bfe_u32 v14, v0, 2, 3'); a('v_lshlrev_b32 v14, 7, v14'); a('v_lshrrev_b32 v15, 5, v0'); a('v_lshl_add_u32 v14, v15, 6, v14')
        a('v_and_b32 v15, 3, v0'); a('v_lshl_add_u32 v14, v15, 4, v14'); a('v_add_u32 v%d, s3, v14' % V_XO)
        a('v_add_u32 v%d, 36864, v%d' % (V_XO+1, V_XO))
        a('s_mul_i32 s3, s%d, %d' % (S_W, 2*HF_RB))
        a('v_lshl_add_u32 v%d, v0, 4, s3' % V_HO); a('v_add_u32 v%d, %d, v%d' % (V_HO+1, HF_RB, V_HO))
        a('v_lshrrev_b32 v14, 5, v0'); a('v_lshlrev_b32 v14, 10, v14')
        a('v_bfe_u32 v15, v0, 2, 2'); a('v_lshl_add_u32 v14, v15, 7, v14')
        a('v_bfe_u32 v15, v0, 4, 1'); a('v_lshl_add_u32 v14, v15, 5, v14')
        a('v_and_b32 v15, 3, v0'); a('v_lshl_add_u32 v14, v15, 3, v14')
        a('v_bfe_u32 v15, v0, 3, 1'); a('v_lshl_add_u32 v%d, v15, 6, v14' % V_TR)
        a('v_xor_b32 v%d, 64, v%d' % (V_TR+1, V_TR))
    a('v_and_b32 v%d, 15, v0' % V_PA); a('v_lshlrev_b32 v%d, 7, v%d' % (V_PA, V_PA))
    a('s_lshl_b32 s3, s%d, 13' % S_G); a('s_lshl_b32 s4, s%d, 11' % S_W); a('s_add_u32 s3, s3, s4'); a('s_add_u32 s%d, s3, %d' % (S_T3, LNF_OFF))
    ld = 'buffer_load_dword v%d, v%d, %s, s%d offen sc1' % (V_PL, V_PA, WSR, S_T3)
    for n in range(18):
        if n == 18 - P('POLLK', 4): a(ld, 'lnp')
        dma_w1(a, 1, 1, n, 'w1')
    if not P('POLLK', 4): a(ld, 'lnp')
    nstamp(a, 'w1i')
    common2()
    sv = (list(a.vm), set(a.seen))
    def poll():
        a.wait_vm('lnp')
        stamp(a, st); nstamp(a, 'pl0')
        poll_loop(a, lambda a: a(ld), chk_all_eq(V_PL))
        stamp(a, st); nstamp(a, 'pl1')
    a('s_cmp_lt_u32 s%d, 18' % S_N); a('s_cbranch_scc1 A_MIXED')
    poll()
    phaseA2(a, False, st)
    nst = st.n; st.n = 1; a.vm = list(sv[0]); a.lg = []; a.seen = set(sv[1])
    a('A_MIXED:')
    a('s_lshl_b32 s7, s%d, 5' % S_N)
    a('v_and_b32 v13, 31, v0'); a('v_lshrrev_b32 v14, 5, v0'); a('v_bfe_u32 v15, v0, 1, 3'); a('v_xor_b32 v14, v14, v15')
    a('v_lshlrev_b32 v14, 4, v14'); a('v_lshl_add_u32 v%d, v13, 7, v14' % V_BR)
    for e in range(1, 4): a('v_xor_b32 v%d, %d, v%d' % (V_BR+e, 32*e, V_BR))
    a('v_lshrrev_b32 v14, 5, v0'); a('s_lshl_b32 s4, s%d, 1' % S_W); a('v_add_u32 v%d, s4, v14' % R_SIDX)
    a('v_add_u32 v%d, s%d, v14' % (R_GH, S_G))
    a('v_mul_u32_u24 v%d, 80, v13' % R_TW); a('v_add_u32 v%d, 0x%x, v%d' % (R_TW, E_OFF - E_OFF % 65536, R_TW))
    a('v_lshl_add_u32 v%d, v%d, 3, v%d' % (R_EA, R_SIDX, R_TW)); a('v_add_u32 v%d, 0x%x, v%d' % (R_EA, E_OFF % 65536, R_EA))
    a('v_add_u32 v15, s7, v13')
    a('v_lshlrev_b32 v%d, 4, v15' % R_AW)
    a('v_mul_u32_u24 v14, 9216, v14'); a('v_add_u32 v%d, v14, v%d' % (R_AO, R_AW))
    a('v_min_u32 v14, 1, v%d' % R_SIDX); a('v_lshl_add_u32 v%d, v14, 30, v%d' % (R_AW, R_AW))
    a('v_lshlrev_b32 v15, 1, v15')
    a('global_load_ushort v%d, v15, s[60:61]' % R_T3); a('global_load_ushort v%d, v15, s[62:63]' % R_T4); a('global_load_ushort v%d, v15, s[54:55]' % R_ER, 'w1')
    a('s_mul_i32 s%d, s%d, 9216' % (S_BB, S_G)); a('s_add_u32 s%d, s%d, %d' % (S_BB, S_BB, AGG_OFF))
    a('s_lshl_b32 s4, s%d, 11' % S_W); a('s_add_u32 s4, s4, %d' % TB_OFF)
    a('v_lshrrev_b32 v14, 5, v0'); a('v_lshlrev_b32 v14, 9, v14')
    a('v_bfe_u32 v15, v0, 2, 2'); a('v_lshl_add_u32 v14, v15, 6, v14')
    a('v_and_b32 v15, 1, v0'); a('v_lshl_add_u32 v14, v15, 5, v14')
    a('v_bfe_u32 v15, v0, 4, 1'); a('v_lshl_add_u32 v14, v15, 4, v14')
    a('v_bfe_u32 v15, v0, 1, 1'); a('v_lshl_add_u32 v14, v15, 3, v14')
    a('v_bfe_u32 v15, v0, 3, 1'); a('v_lshlrev_b32 v15, 4, v15'); a('v_xor_b32 v14, v14, v15')
    a('v_add_u32 v%d, s4, v14' % R_TRD)
    a('v_lshrrev_b32 v14, 5, v0'); a('v_lshlrev_b32 v14, 1, v14'); a('v_bfe_u32 v15, v0, 1, 2'); a('v_xor_b32 v14, v14, v15')
    a('v_lshlrev_b32 v14, 4, v14'); a('v_lshl_add_u32 v14, v13, 6, v14')
    a('v_add_u32 v%d, s4, v14' % R_TWA)
    a('s_lshr_b32 s4, s%d, 5' % S_SW); a('v_xor_b32 v%d, s4, v%d' % (V_TR, V_TR)); a('v_xor_b32 v%d, s4, v%d' % (V_TR+1, V_TR+1))
    a('s_lshl_b32 s4, s%d, 11' % S_N); a('s_add_u32 s4, s4, %d' % (288*1024)); a('s_add_u32 s%d, s4, s%d' % (S_HS, S_HB))
    poll()
    phaseA2(a, True, st)
    assert st.n == nst or not DIAG or STNAMES
    a('A_DONE:')
    a('B_FFN:')
    a.vm = []; a.lg = []; a.seen = set()
    phaseB(a, False, st)
    st.n = nst; a.vm = []; a.lg = []; a.seen = set()
    a('B_SSM:')
    phaseB(a, True, st)
    a('LIGHT:'); a.vm = []; a.lg = []; a.seen = set()
    light_part(a)
    a.lines.extend(OOL)
    a('KEND:')
    a('KLAST:')
    a('s_endpgm')
    return name, a.lines, kernel_desc(name, 512, 256, 102)

if __name__ == '__main__':
    ref = open('cdna_kernels/%s.s.ref' % PFX).read().split('\n')
    hdr = [l for l in ref if l.startswith(';') and '@launch' not in l and 'Override launch' not in l and 'grid=ceil' not in l][:16]
    name, lines, desc = gen()
    padded, n = pad_hazards(lines)
    sys.stderr.write('%d lines, %d nops inserted\n' % (len(padded), n))
    hdr += ['; Generated by a hand-written scheduler script. One persistent kernel, 256 workgroups (one per CU):',
            ';   start : layernorm (4-row units) -> xn in MFMA fragment order; weight tiles DMAed to LDS',
            ';   A     : xn stationary in AGPRs; H = silu(xn w1), U = xn B^T + exact chunked scan (carry exchanged between workgroups)',
            ';   B     : w2 / C stationary in AGPRs; H streamed; 4-wave LDS reduction; split-K partials exchanged; final gate + residual',
            ';   hand-offs: write-through stores + per-launch nonce flags / tagged granules in d_ws, bounded polls']
    out = hdr + ['; @launch grid=(256,1,1) block=(256,1,1) lds=%d' % LDS_BYTES, '.amdgcn_target "amdgcn-amd-amdhsa--gfx950"'] + padded + [desc]
    sys.stdout.write('\n'.join(out) + '\n')
```
